```python
import torch

def _softmax(x, axis=-1):
    return torch.softmax(x, dim=axis)
def _gelu(x):
    return torch.nn.functional.gelu(x, approximate="tanh")
def _silu(x):
    return torch.nn.functional.silu(x)
def _sigmoid(x):
    return torch.sigmoid(x)
def _layernorm(x, axis=-1, eps=1e-5):
    m = x.mean(dim=axis, keepdim=True)
    v = x.var(dim=axis, keepdim=True, unbiased=False)
    return (x - m) / torch.sqrt(v + eps)
def _scatter_add(tgt, idx, src, axis=0):
    return tgt.clone().index_add_(axis, idx, src)
def _segment_sum(src, seg, n):
    out = torch.zeros((n,) + src.shape[1:], dtype=src.dtype)
    return out.index_add_(0, seg, src)
def _pad(x, pw):
    flat = tuple(v for pair in reversed(pw) for v in pair)
    return torch.nn.functional.pad(x, flat)

kernel_name = 'concat_heads__grouped_kv_mqa__ssm_conv_s5__prompt'

def setup_inputs():

    _w = (lambda a: (lambda t: t.to(torch.bfloat16) if t.is_floating_point() else t)(torch.as_tensor(a)))
    def _A_setup():
        B, S, D, H = 1, 2048, 512, 32
        Dh = D // H
        return {
            "x": _w((lambda *s: torch.randn(*s, dtype=torch.bfloat16) * 0.05)(B, S, D)),
            "wq": _w((lambda *s: torch.randn(*s, dtype=torch.bfloat16) * 0.8)(D, H * Dh)),
            "wk": _w((lambda *s: torch.randn(*s, dtype=torch.bfloat16) * 0.8)(D, Dh)),
            "wv": _w((lambda *s: torch.randn(*s, dtype=torch.bfloat16) * 0.05)(D, Dh)),
            "wo": _w((lambda *s: torch.randn(*s, dtype=torch.bfloat16) * 0.05)(H * Dh, D)),
        }
    _A_in = _A_setup()

    def _B_setup():
        B, S, D = 1, 2048, 512
        P = D
        Lambda_re = -0.5 * (lambda _x: torch.exp(torch.as_tensor(_x)))((lambda *s: torch.randn(*s, dtype=torch.bfloat16) * 0.2)(P))
        Lambda_im = (lambda *s: torch.randn(*s, dtype=torch.bfloat16) * 0.4)(P) * 1.0
        B_re = (lambda *s: torch.randn(*s, dtype=torch.bfloat16) * 0.2)(P, D) * (D ** -0.5)
        B_im = (lambda *s: torch.randn(*s, dtype=torch.bfloat16) * 0.2)(P, D) * (D ** -0.5)
        C_re = (lambda *s: torch.randn(*s, dtype=torch.bfloat16) * 0.2)(D, P) * (P ** -0.5)
        C_im = (lambda *s: torch.randn(*s, dtype=torch.bfloat16) * 0.2)(D, P) * (P ** -0.5)
        log_dt = (lambda *s: torch.randn(*s, dtype=torch.bfloat16) * 0.2)(P) * 0.3 - 2.0
        Dskip = (lambda *s: torch.randn(*s, dtype=torch.bfloat16) * 0.05)(D)
        return {
            "x": _w((lambda *s: torch.randn(*s, dtype=torch.bfloat16) * 0.05)(B, S, D)),
            "Lambda_re": _w(Lambda_re),
            "Lambda_im": _w(Lambda_im),
            "B_re": _w(B_re),
            "B_im": _w(B_im),
            "C_re": _w(C_re),
            "C_im": _w(C_im),
            "log_dt": _w(log_dt),
            "Dskip": _w(Dskip),
        }
    _B_in = _B_setup()

    return {
        "A_x": _A_in["x"],
        "A_wq": _A_in["wq"],
        "A_wk": _A_in["wk"],
        "A_wv": _A_in["wv"],
        "A_wo": _A_in["wo"],
        "B_x": _B_in["x"],
        "B_Lambda_re": _B_in["Lambda_re"],
        "B_Lambda_im": _B_in["Lambda_im"],
        "B_B_re": _B_in["B_re"],
        "B_B_im": _B_in["B_im"],
        "B_C_re": _B_in["C_re"],
        "B_C_im": _B_in["C_im"],
        "B_log_dt": _B_in["log_dt"],
        "B_Dskip": _B_in["Dskip"],
    }

def reference(A_x, A_wq, A_wk, A_wv, A_wo, B_x, B_Lambda_re, B_Lambda_im, B_B_re, B_B_im, B_C_re, B_C_im, B_log_dt, B_Dskip):
    def _A_ref(x, wq, wk, wv, wo):
        B, S, D = x.shape
        H = 32
        Dh = D // H
        q = (lambda x, *d: x.permute(*d))((x @ wq).reshape(B, S, H, Dh), 0, 2, 1, 3)
        k = x @ wk
        v = x @ wv
        scores = torch.einsum("bhqd,bkd->bhqk", q, k) * (Dh ** -0.5)
        p = _softmax(scores, axis=-1)
        o = torch.einsum("bhqk,bkd->bhqd", p, v)
        return (lambda x, *d: x.permute(*d))(o, 0, 2, 1, 3).reshape(B, S, H * Dh) @ wo

    def _B_ref(x, Lambda_re, Lambda_im, B_re, B_im, C_re, C_im, log_dt, Dskip):
        Bsz, L, H = x.shape
        Lam = Lambda_re + 1j * Lambda_im
        Bmat = B_re + 1j * B_im
        Cmat = C_re + 1j * C_im
        dt = torch.exp(log_dt)
        Lam_bar = torch.exp(dt * Lam)
        B_bar = ((Lam_bar - 1.0) / Lam)[:, None] * Bmat
        Bu = torch.einsum("bld,pd->blp", x + 0j, B_bar)
        h = torch.zeros_like(Bu[:, 0, :])
        hs = []
        for t in range(L):
            h = Lam_bar[None, :] * h + Bu[:, t, :]
            hs.append(h)
        hseq = torch.stack(hs, 1)
        y = 2.0 * torch.einsum("blp,dp->bld", hseq, Cmat).real + x * Dskip[None, None, :]
        return y

    a = _A_ref(A_x, A_wq, A_wk, A_wv, A_wo)
    b = _B_ref(B_x, B_Lambda_re, B_Lambda_im, B_B_re, B_B_im, B_C_re, B_C_im, B_log_dt, B_Dskip)
    return torch.concatenate([a, b], axis=-1)
```

```python
import re

TRANS = ('v_exp_f32', 'v_log_f32', 'v_rcp_f32', 'v_rsq_f32', 'v_sqrt_f32', 'v_sin_f32', 'v_cos_f32')
REG_RE = re.compile(r'^(-?)(abs\()?([vsa])(?:(\d+)|\[(\d+):(\d+)\])\)?$')

def regs_of(tok):
    tok = tok.strip()
    if tok.startswith('|') and tok.endswith('|'):
        tok = tok[1:-1]
    if tok.startswith('-|') and tok.endswith('|'):
        tok = tok[2:-1]
    if tok == 'vcc': return {('s', 'vcc')}
    if tok == 'exec': return {('s', 'exec')}
    if tok == 'm0': return {('s', 'm0')}
    m = REG_RE.match(tok)
    if not m: return set()
    k = m.group(3)
    if m.group(4) is not None:
        return {(k, int(m.group(4)))}
    return {(k, i) for i in range(int(m.group(5)), int(m.group(6)) + 1)}

def mfma_passes(op):
    if '32x32' in op: return 8
    if '16x16' in op: return 4
    raise ValueError(op)

class Ins:
    def __init__(self, text):
        self.text = text
        t = text.split(';')[0].strip()
        parts = t.split(None, 1)
        self.op = parts[0]
        rest = parts[1] if len(parts) > 1 else ''
        ops = []; cur = ''; depth = 0
        for ch in rest:
            if ch == '[': depth += 1
            if ch == ']': depth -= 1
            if ch == ',' and depth == 0:
                ops.append(cur.strip()); cur = ''
            else: cur += ch
        if cur.strip(): ops.append(cur.strip())
        self.mods = ''
        if ops:
            sp = ops[-1].split(None, 1)
            if len(sp) > 1:
                ops[-1] = sp[0]; self.mods = sp[1]
        self.ops = ops
        op = self.op
        self.is_mfma = op.startswith('v_mfma') or op.startswith('v_smfmac')
        self.is_valu = op.startswith('v_') and not self.is_mfma
        self.is_salu = op.startswith('s_')
        self.is_ds = op.startswith('ds_')
        self.is_vmem = op.startswith('buffer_') or op.startswith('global_')
        self.is_trans = op.replace('_e32', '').replace('_e64', '') in TRANS
        self.is_dpp = '_dpp' in op or 'row_' in self.mods or 'quad_perm' in self.mods
        self.is_perml = op.startswith('v_permlane')
        self.is_rdl = op.startswith('v_readfirstlane') or op.startswith('v_readlane')
        self.w = set(); self.r = set(); self.srcC = set(); self.srcAB = set()
        R = [regs_of(o) for o in ops]
        if self.is_mfma:
            self.w = R[0]; self.passes = mfma_passes(op)
            if op.startswith('v_smfmac'):
                self.srcC = R[0]; self.srcAB = R[1] | R[2] | R[3]
            else:
                self.srcC = R[3]; self.srcAB = R[1] | R[2]
            self.r = self.srcC | self.srcAB
        elif self.is_valu:
            if self.is_perml and 'swap' in op:
                self.w = R[0] | R[1]; self.r = R[0] | R[1]
            elif op.startswith('v_cmp'):
                self.w = R[0]; self.r = set().union(*R[1:])
            elif op.startswith('v_add_co') or op.startswith('v_sub_co') or op.startswith('v_addc_co'):
                self.w = R[0] | R[1]; self.r = set().union(*R[2:])
            elif op == 'v_nop':
                pass
            else:
                self.w = R[0]; self.r = set().union(*R[1:]) if len(R) > 1 else set()
                if op.startswith('v_fmac') or op.startswith('v_pk_fmac') or self.is_dpp or 'UNUSED_PRESERVE' in self.mods or op.startswith('v_writelane'):
                    self.r |= R[0]
        elif self.is_ds:
            if op.startswith('ds_read') or '_rtn' in op or op.startswith('ds_bpermute') or op.startswith('ds_permute') or op.startswith('ds_swizzle'):
                self.w = R[0]; self.r = set().union(*R[1:])
            else:
                self.r = set().union(*R)
        elif self.is_vmem:
            lds = ' lds' in (' ' + self.mods)
            self.is_dma = lds or 'load_lds' in op
            if 'load' in op and not self.is_dma:
                self.w = R[0]; self.r = set().union(*R[1:])
                if 'd16' in op: self.r |= R[0]
            else:
                self.r = set().union(*R)
                if self.is_dma: self.r |= {('s', 'm0')}
            self.wide_store = ('store' in op) and ('x3' in op or 'x4' in op)
            self.store_data = R[0] if ('store' in op and op.startswith('buffer_')) else (R[1] if 'store' in op else set())
        elif self.is_salu:
            nowrite = ('s_cmp', 's_cbranch', 's_branch', 's_waitcnt', 's_nop', 's_barrier', 's_sleep', 's_setprio', 's_endpgm', 's_bitcmp')
            if not op.startswith(nowrite) and R:
                self.w = R[0]; self.r = set().union(*R[1:]) if len(R) > 1 else set()
                if 'saveexec' in op: self.w |= {('s', 'exec')}
            else:
                self.r = set().union(*R) if R else set()
        self.states = 1
        if op == 's_nop': self.states = int(ops[0], 0) + 1

def need(prev, cur):
    n = 0
    vw = {x for x in prev.w if x[0] in 'va'}
    sw = {x for x in prev.w if x[0] == 's'}
    if prev.is_valu:
        if cur.is_mfma and vw & cur.r: n = max(n, 2)
        if prev.is_trans and cur.is_valu and not cur.is_trans and vw & cur.r: n = max(n, 1)
        if prev.is_trans and (cur.is_ds or cur.is_vmem) and vw & cur.r: n = max(n, 1)
        if cur.is_valu and sw & cur.r: n = max(n, 4 if cur.op.startswith(('v_readlane', 'v_writelane')) else 2)
        if cur.is_valu and cur.op.startswith('v_cndmask') and ('s', 'vcc') in sw and len(cur.ops) == 3: n = max(n, 2)
        if cur.is_vmem and sw & cur.r: n = max(n, 5)
        if cur.is_rdl and vw & cur.r: n = max(n, 1)
        if (cur.is_dpp or cur.is_perml) and vw & cur.r: n = max(n, 2)
        if ('sdwa' in prev.op or 'op_sel' in prev.mods) and not prev.op.startswith('v_pk_') and cur.is_valu and vw & (cur.r | cur.w): n = max(n, 1)
        if cur.is_salu and sw & cur.r: n = max(n, 1)
        if cur.op.startswith('s_cbranch_vcc') and ('s', 'vcc') in sw: n = max(n, 1)
    if prev.is_mfma:
        p = prev.passes
        if cur.is_mfma:
            if prev.w & cur.srcAB: n = max(n, {4: 8, 8: 12}[p])
            if prev.w & cur.srcC:
                if not (prev.w == cur.srcC and p == cur.passes): n = max(n, {4: 6, 8: 10}[p])
            if (prev.w & cur.w) and not (prev.w & cur.srcC) and p != cur.passes: n = max(n, {4: 6, 8: 10}[p])
        elif cur.is_valu or cur.is_ds or cur.is_vmem:
            if prev.w & (cur.r | cur.w): n = max(n, {4: 8, 8: 12}[p])
            if cur.is_valu and prev.srcC & cur.w: n = max(n, {4: 3, 8: 7}[p])
    if prev.is_salu and ('s', 'm0') in prev.w and ('s', 'm0') in cur.r and cur.is_vmem: n = max(n, 1)
    if prev.is_vmem and prev.wide_store and prev.store_data & cur.w:
        n = max(n, 2 if (cur.is_valu or cur.is_mfma) else 1)
    return n

class Asm:
    def __init__(self):
        self.items = []
        self.uid = 0
    def __call__(self, text):
        for line in text.split('\n'):
            s = line.strip()
            if not s: continue
            if s.startswith(';') or s.startswith('.'):
                self.items.append(('r', s))
            elif s.endswith(':'):
                self.items.append(('l', s[:-1]))
            else:
                self.items.append(('i', Ins(s)))
    def label(self, base='L'):
        self.uid += 1
        return f'{base}_{self.uid}'
    @staticmethod
    def _gap(hist, cur):
        n = 0; dist = 0
        for prev in reversed(hist):
            k = need(prev, cur) - dist
            if k > n: n = k
            dist += prev.states
            if dist > 14: break
        return n
    def finish(self):
        out = []; hist = []
        for kind, x in self.items:
            if kind == 'i':
                n = self._gap(hist, x)
                if n > 0:
                    nop = Ins(f's_nop {n - 1}')
                    out.append(('i', nop)); hist.append(nop)
                out.append((kind, x)); hist.append(x)
                if x.op in ('s_branch', 's_endpgm'): hist = []
            else:
                out.append((kind, x))
        pos = {x: i for i, (k, x) in enumerate(out) if k == 'l'}
        for i, (k, x) in enumerate(out):
            if k == 'i' and (x.op.startswith('s_cbranch') or x.op == 's_branch'):
                h = []
                j = i
                while j >= 0 and len(h) < 16:
                    if out[j][0] == 'i':
                        if j != i and out[j][1].op in ('s_branch', 's_endpgm'): break
                        h.insert(0, out[j][1])
                    j -= 1
                j = pos[x.ops[0]]; cnt = 0
                while j < len(out) and cnt < 16:
                    if out[j][0] == 'i':
                        c = out[j][1]
                        g = self._gap(h, c)
                        if g > 0:
                            raise RuntimeError(f'hazard across branch {x.text} -> {c.text}: need {g} more')
                        h.append(c); cnt += 1
                        if c.op in ('s_branch', 's_endpgm'): break
                    j += 1
        lines = []
        for k, x in out:
            if k == 'i': lines.append('    ' + x.text)
            elif k == 'l': lines.append(x + ':')
            else: lines.append(x)
        self.n_ins = sum(1 for k, _ in out if k == 'i')
        return '\n'.join(lines) + '\n'
```

```python
import sys, math, struct
from asm import Asm

NAME = 'concat_heads__grouped_kv_mqa__ssm_conv_s5__prompt'

def f2u(x): return struct.unpack('<I', struct.pack('<f', x))[0]

WS_EPOCH = 0x0
WS_KVFLAG = 0x1000
WS_KIMG = 0x10000
WS_VIMG = 0x20000
WS_HFLAG = 0x30000
WS_OFLAG = 0x32000
WS_EBUF = 0x40000
WS_OBUF = 0x100000
WS_HBUF = 0x400000
WS_DBG = 0x800000
WS_SIZE = 0x1000000
L_FLG = 0
F_LD = 0
F_SV = 32
F_KVD = 48
F_KVR = 52
F_KMR = 56
F_KMAX = 60
F_AT = 64
F_KST = 96
L_QN = 256
L_ACCF = 1024
L_QF = 5120
L_ACCD = 13312
L_A1 = 29696
L_A2 = 96256
L_TOTAL = 163840
XW = 16896
L_SXO = 1024
L_TBO = 2048

sWV, sRB, sCG, sTB, sPB, sTAG = 3, 4, 5, 6, 7, 8
sT0, sT1, sT2, sT3, sT4, sT5 = 9, 10, 11, 12, 13, 14
sCNT = 15
P = lambda i: 16 + 2 * i
SA, SB, SC, SWS, SOUT = 52, 56, 60, 64, 68
sSW = 72
sPH, sTJ, sPOS = 73, 74, 75
sM0, sM1 = 76, 78
sST = 82
SPIN = 400000

class G:
    def __init__(self, stamps=False):
        self.a = Asm(); self.stamps = stamps
    def srd(self, d, p, size):
        a = self.a
        a(f's_mov_b32 s{d}, s{p}\ns_mov_b32 s{d+1}, s{p+1}\ns_mov_b32 s{d+2}, {size:#x}\ns_mov_b32 s{d+3}, 0x20000')
    def stamp(self, i):
        if self.stamps:
            self.a(f's_memrealtime s[98:99]\ns_waitcnt lgkmcnt(0)\ns_mov_b32 s{sST+i}, s98')
    def end(self, vt):
        a = self.a
        if self.stamps:
            self.stamp(15)
            a(f's_mul_i32 s{sT0}, s2, 12\ns_add_u32 s{sT0}, s{sT0}, s{sWV}\ns_lshl_b32 s{sT0}, s{sT0}, 6\ns_add_u32 s{sT0}, s{sT0}, {WS_DBG:#x}')
            a('s_mov_b64 exec, 1')
            for i in range(16):
                a(f'v_mov_b32 v{vt}, s{sST+i}\nbuffer_store_dword v{vt}, off, s[{SWS}:{SWS+3}], s{sT0} offset:{4*i}')
            a('s_waitcnt vmcnt(0)')
        a('s_endpgm')
    def lds_signal(self, vaddr, vt, val, off=0):
        self.a(f'v_mov_b32 v{vt}, {val}\nds_write_b32 v{vaddr}, v{vt} offset:{off}')
    def lds_wait(self, vaddr, vt, val, off=0, sleep=1):
        a = self.a; L = a.label('W'); D = a.label('WD')
        a(f's_mov_b32 s{sCNT}, {SPIN}')
        a(f'{L}:')
        a(f'ds_read_b32 v{vt}, v{vaddr} offset:{off}\ns_waitcnt lgkmcnt(0)\nv_cmp_gt_u32 vcc, {val}, v{vt}\ns_cbranch_vccz {D}')
        a(f's_sleep {sleep}\ns_sub_u32 s{sCNT}, s{sCNT}, 1\ns_cbranch_scc0 {L}')
        a(f'{D}:')
    def get_tag(self, vw):
        a = self.a
        a(f'v_readfirstlane_b32 s{sTAG}, v{vw}\ns_mul_i32 s{sTAG}, s{sTAG}, 0x9E3779B1\ns_add_u32 s{sTAG}, s{sTAG}, 0x7F4A7C15')

    def build(self):
        a = self.a
        vLN, vL16, vEP, vX0, vX1, vX2, vX3 = 160, 161, 162, 163, 164, 165, 166
        self.vLN, self.vL16, self.vEP = vLN, vL16, vEP
        a('s_cmp_ge_u32 s2, 256\ns_cbranch_scc1 L_exit')
        a('s_load_dwordx16 s[16:31], s[0:1], 0\ns_load_dwordx16 s[32:47], s[0:1], 64\ns_load_dwordx2 s[48:49], s[0:1], 128')
        if self.stamps:
            for i in range(16): a(f's_mov_b32 s{sST+i}, 0')
        a(f'v_and_b32 v{vLN}, 63, v0\nv_lshrrev_b32 v{vX0}, 6, v0\nv_lshlrev_b32 v{vL16}, 4, v{vLN}\nv_readfirstlane_b32 s{sWV}, v{vX0}')
        a(f's_and_b32 s{sT0}, s2, 7\ns_lshr_b32 s{sT1}, s2, 3')
        a(f's_lshl_b32 s{sRB}, s{sT0}, 2\ns_lshr_b32 s{sT2}, s{sT1}, 3\ns_add_u32 s{sRB}, s{sRB}, s{sT2}\ns_and_b32 s{sCG}, s{sT1}, 7')
        a(f's_lshl_b32 s{sTB}, s{sT0}, 1\ns_lshr_b32 s{sT2}, s{sT1}, 4\ns_add_u32 s{sTB}, s{sTB}, s{sT2}\ns_and_b32 s{sPB}, s{sT1}, 15')
        a('s_waitcnt lgkmcnt(0)')
        self.stamp(0)
        self.srd(SWS, P(16), WS_SIZE)
        a(f'buffer_load_dword v{vEP}, off, s[{SWS}:{SWS+3}], 0 sc1')
        a(f's_cmp_lt_u32 s{sWV}, 4\ns_cbranch_scc1 L_noload')
        a(f's_sub_u32 s{sSW}, s{sWV}, 4')
        a(f's_cmp_lt_u32 s{sWV}, 8\ns_cbranch_scc1 L_noparam')
        self.service_param_loads()
        a('L_noparam:')
        self.srd(SA, P(0), 2048 * 1024)
        a(f's_bitcmp1_b32 s{sCG}, 0\ns_cselect_b32 s{SB}, s{P(3)}, s{P(2)}\ns_cselect_b32 s{SB+1}, s{P(3)+1}, s{P(2)+1}\ns_mov_b32 s{SB+2}, 0x4000\ns_mov_b32 s{SB+3}, 0x20000')
        self.srd(SC, P(1), 512 * 1024)
        a(f's_and_b32 s{sT5}, s{sCG}, 6')
        a(f's_lshl_b32 s{sT4}, s{sRB}, 16')
        def xa_row(n):
            a(f's_add_u32 s{sT0}, s{sT5}, {n}\ns_and_b32 s{sT0}, s{sT0}, 7\ns_lshl_b32 s{sT0}, s{sT0}, 3\ns_add_u32 s{sT0}, s{sT0}, s{sSW}')
            a(f's_mul_i32 s{sT1}, s{sT0}, 1040\ns_add_u32 m0, s{sT1}, {L_A1}\ns_lshl_b32 s{sT0}, s{sT0}, 10\ns_add_u32 s{sT0}, s{sT0}, s{sT4}')
            a(f'buffer_load_dwordx4 v{vL16}, s[{SA}:{SA+3}], s{sT0} offen lds')
        xa_row(0); xa_row(1)
        a(f's_lshl_b32 s{sT0}, s{sSW}, 11\ns_add_u32 m0, s{sT0}, {L_ACCD}')
        a(f'buffer_load_dwordx4 v{vL16}, s[{SB}:{SB+3}], s{sT0} offen lds')
        a(f'buffer_load_dwordx4 v{vL16}, s[{SB}:{SB+3}], s{sT0} offen offset:1024 lds')
        for n in range(2, 8): xa_row(n)
        self.wimg_lane_addr(vX1, vX0)
        a(f's_lshl_b32 s{sT0}, s{sSW}, 13\ns_lshl_b32 s{sT1}, s{sCG}, 7\ns_add_u32 s{sT0}, s{sT0}, s{sT1}')
        a(f's_lshl_b32 s{sT1}, s{sSW}, 10\ns_add_u32 m0, s{sT1}, {L_A2}')
        for n in range(8):
            a(f'buffer_load_dwordx4 v{vX1}, s[{SC}:{SC+3}], s{sT0} offen lds')
            if n < 7: a(f's_add_u32 m0, m0, 8192\ns_add_u32 s{sT0}, s{sT0}, 0x10000')
        a('s_branch L_start')
        a('L_noload:')
        a(f'v_mov_b32 v0, 0\nv_mov_b32 v1, 0\nv_mov_b32 v2, 0\nv_mov_b32 v3, 0')
        a(f's_lshl_b32 s{sT0}, s{sWV}, 10\nv_add_u32 v{vX0}, s{sT0}, v{vL16}\nds_write_b128 v{vX0}, v[0:3] offset:{L_ACCF}')
        a(f'v_lshlrev_b32 v{vX0}, 2, v{vLN}\nds_write_b32 v{vX0}, v0 offset:{L_FLG}')
        a('s_waitcnt lgkmcnt(0)')
        a('L_start:')
        a('s_barrier')
        self.stamp(1)
        a(f's_cmp_ge_u32 s{sWV}, 8\ns_cbranch_scc1 L_service')
        a(f's_cmp_ge_u32 s{sWV}, 4\ns_cbranch_scc1 L_ldsig')
        a(f's_waitcnt vmcnt(0)')
        self.get_tag(vEP)
        a(f's_cmp_eq_u32 s{sWV}, 0\ns_cbranch_scc1 L_kvproj')
        a(f's_cmp_eq_u32 s{sWV}, 1\ns_cbranch_scc1 L_poll')
        a(f's_cmp_eq_u32 s{sWV}, 3\ns_cbranch_scc1 L_attn')
        a(f's_cmp_lg_u32 s{sTB}, 0\ns_cbranch_scc1 L_attn')
        a(f'v_mov_b32 v2, s{sTAG}\ns_lshl_b32 s{sT0}, s{sPB}, 14\ns_add_u32 s{sT0}, s{sT0}, {WS_EBUF:#x}')
        for i in range(8):
            a(f'buffer_store_dwordx4 v[0:3], v{vL16}, s[{SWS}:{SWS+3}], s{sT0} offen offset:{(i%4)*1024} sc1')
            if i == 3: a(f's_add_u32 s{sT0}, s{sT0}, 4096')
        a('s_branch L_attn')
        a('L_ldsig:')
        a(f's_lshl_b32 s{sT0}, s{sSW}, 2\nv_mov_b32 v{vX0}, s{sT0}')
        for ph, cnt in ((1, 14), (2, 6), (3, 4), (4, 2), (5, 0)):
            a(f's_waitcnt vmcnt({cnt})')
            self.lds_signal(vX0, vX1, ph, F_LD)
        self.get_tag(vEP)
        a('s_branch L_attn')
        self.kvproj()
        self.poll()
        self.attention()
        self.service()
        a('L_exit:\ns_endpgm')
        return a.finish()

    def wimg_lane_addr(self, vd, vt):
        a = self.a; vLN = self.vLN
        a(f'v_lshrrev_b32 v{vt}, 2, v{vLN}\nv_and_b32 v{vt}, 4, v{vt}\nv_and_b32 v{vd}, 7, v{vLN}\nv_xor_b32 v{vd}, v{vd}, v{vt}\nv_lshlrev_b32 v{vd}, 4, v{vd}')
        a(f'v_lshrrev_b32 v{vt}, 3, v{vLN}\nv_lshl_add_u32 v{vd}, v{vt}, 10, v{vd}')

    def kvproj(self):
        a = self.a; vLN = self.vLN
        a('L_kvproj:')
        vXA, vWA, vT, vU, vF = 140, 141, 142, 143, 144
        a(f's_lshr_b32 s{sT5}, s{sCG}, 1')
        a(f'v_and_b32 v{vT}, 15, v{vLN}\ns_lshl_b32 s{sT0}, s{sT5}, 4\nv_add_u32 v{vT}, s{sT0}, v{vT}\nv_mul_u32_u24 v{vXA}, 1040, v{vT}')
        a(f'v_lshrrev_b32 v{vU}, 4, v{vLN}\nv_lshl_add_u32 v{vXA}, v{vU}, 4, v{vXA}\nv_add_u32 v{vXA}, {L_A1}, v{vXA}')
        a(f'v_and_b32 v{vT}, 15, v{vLN}\nv_lshlrev_b32 v{vWA}, 3, v{vT}\nv_lshl_add_u32 v{vWA}, v{vU}, 8, v{vWA}\nv_add_u32 v{vWA}, {L_ACCD}, v{vWA}')
        a(f'v_and_b32 v{vF}, 7, v{vLN}\nv_lshlrev_b32 v{vF}, 2, v{vF}')
        self.lds_wait(vF, vT, 1, F_LD, sleep=1)
        self.stamp(2)
        for s in range(16):
            a(f'ds_read_b128 v[{8*s}:{8*s+3}], v{vXA} offset:{64*s}')
            a(f'ds_read_b64_tr_b16 v[{8*s+4}:{8*s+5}], v{vWA} offset:{1024*s}')
            a(f'ds_read_b64_tr_b16 v[{8*s+6}:{8*s+7}], v{vWA} offset:{1024*s+128}')
        a(f's_bitcmp1_b32 s{sCG}, 0\ns_cbranch_scc1 L_kv_v')
        D = 128
        def chain(kind):
            for s in range(16):
                rem = 3 * (15 - s)
                if rem <= 15: a(f's_waitcnt lgkmcnt({rem})')
                elif s == 0: a('s_waitcnt lgkmcnt(15)')
                x = f'v[{8*s}:{8*s+3}]'; w = f'v[{8*s+4}:{8*s+7}]'
                A, B = (w, x) if kind == 'k' else (x, w)
                a(f'v_mfma_f32_16x16x32_bf16 v[{D}:{D+3}], {A}, {B}, {"0" if s == 0 else f"v[{D}:{D+3}]"}')
        chain('k')
        a(f's_lshl_b32 s{sT0}, s{sRB}, 1\ns_lshr_b32 s{sT1}, s{sT5}, 1\ns_add_u32 s{sT0}, s{sT0}, s{sT1}\ns_lshl_b32 s{sT0}, s{sT0}, 10')
        a(f's_and_b32 s{sT1}, s{sT5}, 1\ns_lshl_b32 s{sT1}, s{sT1}, 8\ns_add_u32 s{sT0}, s{sT0}, s{sT1}\ns_add_u32 s{sT0}, s{sT0}, {WS_KIMG:#x}')
        a(f'v_and_b32 v{vT}, 15, v{vLN}\nv_lshlrev_b32 v{vT}, 4, v{vT}\nv_and_b32 v{vXA}, 1, v{vU}\nv_lshl_add_u32 v{vT}, v{vXA}, 9, v{vT}')
        a(f'v_lshrrev_b32 v{vXA}, 1, v{vU}\nv_lshl_add_u32 v{vT}, v{vXA}, 3, v{vT}')
        a(f'v_cvt_pk_bf16_f32 v132, v{D}, v{D+1}\nv_cvt_pk_bf16_f32 v133, v{D+2}, v{D+3}')
        a(f'buffer_store_dwordx2 v[132:133], v{vT}, s[{SWS}:{SWS+3}], s{sT0} offen sc1')
        a(f'v_mul_f32 v134, v{D}, v{D}\nv_fmac_f32 v134, v{D+1}, v{D+1}\nv_fmac_f32 v134, v{D+2}, v{D+2}\nv_fmac_f32 v134, v{D+3}, v{D+3}')
        a('v_mov_b32 v135, v134\nv_permlane32_swap_b32 v134, v135\nv_add_f32 v134, v134, v135')
        a('v_mov_b32 v135, v134\nv_permlane16_swap_b32 v134, v135\nv_add_f32 v134, v134, v135')
        a('s_branch L_kv_fin')
        a('L_kv_v:')
        chain('v')
        a(f's_lshl_b32 s{sT0}, s{sRB}, 2\ns_add_u32 s{sT0}, s{sT0}, s{sT5}\ns_lshl_b32 s{sT0}, s{sT0}, 9\ns_add_u32 s{sT0}, s{sT0}, {WS_VIMG:#x}')
        a(f'v_and_b32 v{vT}, 15, v{vLN}\nv_lshlrev_b32 v{vT}, 4, v{vT}\nv_and_b32 v{vXA}, 1, v{vU}\nv_lshl_add_u32 v{vT}, v{vXA}, 3, v{vT}')
        a(f'v_lshrrev_b32 v{vXA}, 1, v{vU}\nv_lshl_add_u32 v{vT}, v{vXA}, 8, v{vT}')
        a(f'v_cvt_pk_bf16_f32 v132, v{D}, v{D+1}\nv_cvt_pk_bf16_f32 v133, v{D+2}, v{D+3}')
        a(f'buffer_store_dwordx2 v[132:133], v{vT}, s[{SWS}:{SWS+3}], s{sT0} offen sc1')
        a(f'v_max3_f32 v134, |v{D}|, |v{D+1}|, |v{D+2}|\nv_max_f32 v134, |v{D+3}|, v134')
        a(f's_mov_b32 s{sT1}, {f2u(2.0**50):#x}\nv_cmp_lt_f32 vcc, s{sT1}, v134\nv_mov_b32 v135, 0x7f800000\nv_cndmask_b32 v134, 0, v135, vcc')
        a('L_kv_fin:')
        a(f'v_mov_b32 v{vF}, 0')
        self.lds_signal(vF, vT, 1, F_KVD)
        a(f'ds_max_u32 v{vF}, v134 offset:{F_KST}\nds_read_b32 v137, v{vF} offset:{F_KST}\nv_mov_b32 v136, s{sTAG}')
        a(f's_lshl_b32 s{sT0}, s2, 3\ns_add_u32 s{sT0}, s{sT0}, {WS_KVFLAG:#x}')
        a('s_waitcnt vmcnt(0) lgkmcnt(0)')
        a(f's_mov_b64 exec, 1\nbuffer_store_dwordx2 v[136:137], off, s[{SWS}:{SWS+3}], s{sT0} sc1\ns_mov_b64 exec, -1')
        self.stamp(3)
        a('s_branch L_attn')

    def poll(self):
        a = self.a; vLN, vL16 = self.vLN, self.vL16
        a('L_poll:')
        vF, vT = 140, 141
        a(f'v_and_b32 v{vF}, 7, v{vLN}\nv_lshlrev_b32 v{vF}, 2, v{vF}')
        self.lds_wait(vF, vT, 4, F_LD, sleep=1)
        self.stamp(2)
        a(f's_mov_b32 s{sCNT}, 100000\ns_mov_b32 s{sT0}, {WS_KVFLAG:#x}')
        a('L_poll_l:')
        a(f'buffer_load_dwordx4 v[0:3], v{vL16}, s[{SWS}:{SWS+3}], s{sT0} offen sc1')
        a(f'buffer_load_dwordx4 v[4:7], v{vL16}, s[{SWS}:{SWS+3}], s{sT0} offen offset:1024 sc1')
        a('s_waitcnt vmcnt(0)')
        a(f'v_cmp_ne_u32 vcc, s{sTAG}, v0\nv_cmp_ne_u32 s[{sM0}:{sM0+1}], s{sTAG}, v2\ns_or_b64 vcc, vcc, s[{sM0}:{sM0+1}]')
        a(f'v_cmp_ne_u32 s[{sM0}:{sM0+1}], s{sTAG}, v4\ns_or_b64 vcc, vcc, s[{sM0}:{sM0+1}]')
        a(f'v_cmp_ne_u32 s[{sM0}:{sM0+1}], s{sTAG}, v6\ns_or_b64 vcc, vcc, s[{sM0}:{sM0+1}]')
        a(f's_cbranch_scc0 L_poll_d\ns_sleep 6\ns_sub_u32 s{sCNT}, s{sCNT}, 1\ns_cbranch_scc0 L_poll_l')
        a('L_poll_d:')
        a(f'v_mov_b32 v{vF}, 0')
        self.lds_signal(vF, vT, 1, F_KVR)
        self.stamp(3)
        a(f'v_max_u32 v1, v1, v3\nv_max3_u32 v1, v1, v5, v7\nds_max_u32 v{vF}, v1 offset:{F_KMAX}\nds_write_b32 v{vF}, v{vT} offset:{F_KMR}')
        a(f's_cmp_lg_u32 s2, 0\ns_cbranch_scc1 L_attn')
        a(f'v_mov_b32 v0, s{sTAG}\ns_mov_b64 exec, 1\nbuffer_store_dword v0, off, s[{SWS}:{SWS+3}], 0 sc1\ns_mov_b64 exec, -1')
        a('s_waitcnt vmcnt(0)')
        a('s_branch L_attn')

    def attention(self):
        a = self.a; vLN, vL16 = self.vLN, self.vL16
        K, V, S0, O, Q = 0, 32, 96, 128, 144
        vIDX, vA16, vA8, vQA, vL8, vT, vF, vM = 148, 149, 150, 151, 152, 153, 154, 155
        MB = 156
        a('L_attn:')
        a(f'v_mov_b32 v{vT}, 0x3f803f80')
        for i in range(64): a(f'v_mov_b32 v{V+i}, v{vT}')
        for i in range(16): a(f'v_mov_b32 v{O+i}, 0')
        a(f'v_mov_b32 v{vIDX}, 0xdddd\nv_lshlrev_b32 v{vL8}, 3, v{vLN}')
        a(f's_and_b32 s{sPOS}, s{sWV}, 3\ns_lshl_b32 s{sPOS}, s{sPOS}, 1\ns_lshr_b32 s{sT0}, s{sWV}, 2\ns_add_u32 s{sPOS}, s{sPOS}, s{sT0}')
        a(f's_mov_b32 s{sTJ}, s{sPOS}\ns_mov_b32 s{sPH}, 0')
        a(f'v_and_b32 v{vA8}, 31, v{vLN}\nv_lshlrev_b32 v{vA8}, 4, v{vA8}\nv_lshrrev_b32 v{vT}, 5, v{vLN}\nv_lshl_add_u32 v{vA8}, v{vT}, 8, v{vA8}')
        a(f's_lshl_b32 s{sT0}, s{sWV}, 13\ns_add_u32 s{sT1}, s{sT0}, {WS_VIMG:#x}\ns_add_u32 s{sT0}, s{sT0}, {WS_KIMG:#x}')
        a(f's_mov_b32 s{sM0}, 0xffff\ns_mov_b32 s{sM0+1}, 0xffff')
        a(f'v_mov_b32 v{vF}, 0')
        a('s_waitcnt vmcnt(0)')
        self.lds_wait(vF, vT, 1, F_KVR, sleep=1)
        self.stamp(4)
        for i in range(8):
            a(f'buffer_load_dwordx4 v[{K+4*i}:{K+4*i+3}], v{vL16}, s[{SWS}:{SWS+3}], s{sT0} offen offset:{(i%4)*1024} sc1')
            a(f's_mov_b64 exec, s[{sM0}:{sM0+1}]')
            a(f'buffer_load_dwordx4 v[{V+8*i}:{V+8*i+3}], v{vA8}, s[{SWS}:{SWS+3}], s{sT1} offen offset:{(i%4)*1024} sc1')
            a(f'buffer_load_dwordx4 v[{V+8*i+4}:{V+8*i+7}], v{vA8}, s[{SWS}:{SWS+3}], s{sT1} offen offset:{(i%4)*1024+512} sc1')
            a('s_mov_b64 exec, -1')
            if i == 3: a(f's_add_u32 s{sT0}, s{sT0}, 4096\ns_add_u32 s{sT1}, s{sT1}, 4096')
        a(f'v_and_b32 v{vF}, 7, v{vLN}\nv_min_u32 v{vF}, 6, v{vF}\nv_lshlrev_b32 v{vF}, 2, v{vF}')
        self.lds_wait(vF, vT, 1, F_SV, sleep=1)
        self.stamp(5)
        a(f'v_lshlrev_b32 v{vF}, 2, v{vLN}\nv_mov_b32 v{vA16}, 0')
        a(f'ds_read_b32 v{S0}, v{vF} offset:{L_QN}\nds_read_b32 v{S0+1}, v{vF} offset:{L_QN+256}\nds_read_b32 v{S0+2}, v{vA16} offset:{F_KMAX}')
        a(f's_lshl_b32 s{sT0}, s{sTJ}, 10\nv_add_u32 v{vQA}, s{sT0}, v{vL16}\nds_read_b128 v[{Q}:{Q+3}], v{vQA} offset:{L_QF}')
        a(f's_lshl_b32 s{sT0}, s{sTJ}, 11\nv_add_u32 v{vA16}, s{sT0}, v{vL16}\ns_lshl_b32 s{sT0}, s{sTJ}, 9\nv_add_u32 v{vA8}, s{sT0}, v{vL8}')
        a('s_waitcnt lgkmcnt(0)')
        a(f'v_max_f32 v{S0}, v{S0}, v{S0+1}\nv_mul_f32 v{S0}, v{S0}, v{S0+2}\ns_mov_b32 s{sT0}, {f2u(3400.0):#x}\nv_cmp_nge_f32 vcc, s{sT0}, v{S0}\ns_cbranch_vccnz L_slow')
        R = dict(K=K, V=V, S0=S0, O=O, Q=Q, vIDX=vIDX, vA16=vA16, vA8=vA8, vQA=vQA, vL8=vL8, vT=vT, vF=vF, vM=vM)
        self.attn_loop(R, False)
        a('L_attn_epi:')
        self.stamp(6)
        a(f'v_rcp_f32 v{vT}, v{O+8}')
        for r in range(8): a(f'v_mul_f32 v{O+r}, v{O+r}, v{vT}')
        for r in range(4): a(f'v_cvt_pk_bf16_f32 v{S0+r}, v{O+2*r}, v{O+2*r+1}')
        a(f's_and_b32 s{sT0}, s{sTJ}, 1\ns_xor_b32 s{sT0}, s{sT0}, 1\ns_lshl_b32 s{sT1}, s{sRB}, 1\ns_add_u32 s{sT0}, s{sT0}, s{sT1}\ns_lshl_b32 s{sT0}, s{sT0}, 5')
        a(f's_lshl_b32 s{sT1}, s{sCG}, 2\ns_add_u32 s{sT0}, s{sT0}, s{sT1}\ns_lshr_b32 s{sT1}, s{sTJ}, 1\ns_add_u32 s{sT0}, s{sT0}, s{sT1}')
        a(f's_lshl_b32 s{sT1}, s{sT0}, 10\ns_add_u32 s{sT1}, s{sT1}, {WS_OBUF:#x}\ns_lshl_b32 s{sT0}, s{sT0}, 2\ns_add_u32 s{sT0}, s{sT0}, {WS_OFLAG:#x}')
        a(f'buffer_store_dwordx4 v[{S0}:{S0+3}], v{vL16}, s[{SWS}:{SWS+3}], s{sT1} offen sc1')
        a(f'v_mov_b32 v{vT}, s{sTAG}\ns_waitcnt vmcnt(0)')
        a(f's_mov_b64 exec, 1\nbuffer_store_dword v{vT}, off, s[{SWS}:{SWS+3}], s{sT0} sc1\ns_mov_b64 exec, -1')
        self.end(vT)
        a('L_slow:')
        a('s_waitcnt vmcnt(0)')
        a(f's_mov_b32 s{sT2}, 0\ns_lshl_b32 s{sT3}, s{sWV}, 11\nv_lshlrev_b32 v{vF}, 2, v{vLN}\nv_add_u32 v{vM}, s{sT3}, v{vF}')
        a('L_slow_pre:')
        a(f's_lshl_b32 s{sT0}, s{sT2}, 10\nv_add_u32 v{vT}, s{sT0}, v{vL16}\nds_read_b128 v[{S0+16}:{S0+19}], v{vT} offset:{L_QF}\ns_waitcnt lgkmcnt(0)')
        a(f'v_mov_b32 v{S0+20}, 0xff800000')
        for i in range(8):
            a(f'v_mfma_f32_32x32x16_bf16 v[{S0}:{S0+15}], v[{K+4*i}:{K+4*i+3}], v[{S0+16}:{S0+19}], 0')
            for r in range(0, 16, 2): a(f'v_max3_f32 v{S0+20}, v{S0+r}, v{S0+r+1}, v{S0+20}')
        a(f'v_mov_b32 v{S0+21}, v{S0+20}\nv_permlane32_swap_b32 v{S0+20}, v{S0+21}\nv_max_f32 v{S0+20}, v{S0+20}, v{S0+21}')
        a(f'ds_write_b32 v{vM}, v{S0+20} offset:{L_ACCD}\nv_add_u32 v{vM}, 256, v{vM}')
        a(f's_add_u32 s{sT2}, s{sT2}, 1\ns_cmp_lt_u32 s{sT2}, 8\ns_cbranch_scc1 L_slow_pre')
        a(f's_lshl_b32 s{sT0}, s{sWV}, 2\nv_mov_b32 v{S0+22}, s{sT0}')
        self.lds_signal(S0 + 22, vT, 1, F_AT)
        a(f'v_and_b32 v{S0+23}, 7, v{vLN}\nv_lshlrev_b32 v{S0+23}, 2, v{S0+23}')
        self.lds_wait(S0 + 23, vT, 1, F_AT)
        MR = [vM, 156, 157, 158, 159, 163, 164, 165]
        for ph in range(8):
            a(f's_sub_u32 s{sT0}, s{sPOS}, {ph}\ns_and_b32 s{sT0}, s{sT0}, 7\ns_lshl_b32 s{sT0}, s{sT0}, 8\nv_add_u32 v{vT}, s{sT0}, v{vF}')
            for w in range(8): a(f'ds_read_b32 v{S0+w}, v{vT} offset:{L_ACCD + 2048*w}')
            a('s_waitcnt lgkmcnt(0)')
            a(f'v_max3_f32 v{S0}, v{S0}, v{S0+1}, v{S0+2}\nv_max3_f32 v{S0}, v{S0}, v{S0+3}, v{S0+4}\nv_max3_f32 v{S0}, v{S0}, v{S0+5}, v{S0+6}\nv_max_f32 v{MR[ph]}, v{S0}, v{S0+7}')
        self.lds_signal(S0 + 22, vT, 2, F_AT)
        self.lds_wait(S0 + 23, vT, 2, F_AT)
        R['MR'] = MR
        self.attn_loop(R, True)
        a('s_branch L_attn_epi')

    def attn_loop(self, R, slow):
        a = self.a; vL16 = self.vL16
        K, V, S0, O, Q = R['K'], R['V'], R['S0'], R['O'], R['Q']
        vIDX, vA16, vA8, vQA, vL8, vT, vM = R['vIDX'], R['vA16'], R['vA8'], R['vQA'], R['vL8'], R['vT'], R['vM']
        sf = '_s' if slow else '_f'
        def Sb(i): return S0 + 16 * (i % 2)
        def E(i, r):
            s = Sb(i) + r
            return (f'v_sub_f32 v{s}, v{s}, v{vM}\n' if slow else '') + f'v_exp_f32 v{s}, v{s}'
        def QK(i): return f'v_mfma_f32_32x32x16_bf16 v[{Sb(i)}:{Sb(i)+15}], v[{K+4*(i%8)}:{K+4*(i%8)+3}], v[{Q}:{Q+3}], 0'
        def PV(i, h): return f'v_smfmac_f32_32x32x32_bf16 v[{O}:{O+15}], v[{V+8*(i%8)+4*h}:{V+8*(i%8)+4*h+3}], v[{Sb(i)+8*h}:{Sb(i)+8*h+7}], v{vIDX}'
        def vm(n): return f's_waitcnt vmcnt({n})'
        def plain(i, first=False):
            e = [E(i, r) for r in range(16)]
            w = [vm(max(0, 23 - 3 * (i + 1)))] if i < 7 else [vm(0), 's_waitcnt lgkmcnt(0)']
            seq = e[0:2] + ([] if first else [PV(i - 1, 1)]) + e[2:5] + w + [QK(i + 1)]
            if i == 6:
                seq += [f's_sub_u32 s{sT2}, s{sTJ}, 1\ns_and_b32 s{sT2}, s{sT2}, 7\ns_lshl_b32 s{sT0}, s{sT2}, 10\nv_add_u32 v{vQA}, s{sT0}, v{vL16}',
                        f'ds_read_b128 v[{Q}:{Q+3}], v{vQA} offset:{L_QF}']
            seq += e[5:11] + [PV(i, 0)] + e[11:16]
            for x in seq: a(x)
        a(vm(23)); a(QK(0))
        plain(0, True); plain(1)
        a('.p2align 6')
        a(f'L_loop{sf}:')
        for i in range(2, 8): plain(i)
        a(f's_cmp_eq_u32 s{sPH}, 7\ns_cbranch_scc1 L_fin{sf}')
        a(f's_add_u32 s{sPH}, s{sPH}, 1\ns_mov_b32 s{sTJ}, s{sT2}')
        if slow:
            MR = R['MR']
            for q in range(7): a(f'v_mov_b32 v{MR[q]}, v{MR[q+1]}')
        e = [E(0, r) for r in range(16)]
        for x in e[0:2] + [PV(7, 1)] + e[2:5] + [QK(1)] + e[5:13]: a(x)
        a(f'v_mov_b32 v{O+9}, s{sPH}')
        a(f'ds_write_b128 v{vA16}, v[{O}:{O+3}] offset:{L_ACCD}\nds_write_b128 v{vA16}, v[{O+4}:{O+7}] offset:{L_ACCD+1024}\nds_write_b64 v{vA8}, v[{O+8}:{O+9}] offset:{L_ACCF}')
        a(f's_lshl_b32 s{sT0}, s{sTJ}, 9\nv_add_u32 v{vA8}, s{sT0}, v{vL8}\ns_lshl_b32 s{sT0}, s{sTJ}, 11\nv_add_u32 v{vA16}, s{sT0}, v{vL16}')
        rd = f'ds_read_b64 v[{O+8}:{O+9}], v{vA8} offset:{L_ACCF}\nds_read_b128 v[{O}:{O+3}], v{vA16} offset:{L_ACCD}\nds_read_b128 v[{O+4}:{O+7}], v{vA16} offset:{L_ACCD+1024}'
        a(rd)
        for x in e[13:16]: a(x)
        e = [E(1, r) for r in range(16)]
        for x in e[0:8]: a(x)
        a(f's_mov_b32 s{sCNT}, {SPIN}')
        a(f'L_hw{sf}:')
        a(f's_waitcnt lgkmcnt(0)\nv_cmp_gt_u32 vcc, s{sPH}, v{O+9}\ns_cbranch_vccz L_hd{sf}')
        a(f's_sleep 3\n{rd}\ns_sub_u32 s{sCNT}, s{sCNT}, 1\ns_cbranch_scc0 L_hw{sf}\ns_waitcnt lgkmcnt(0)')
        a(f'L_hd{sf}:')
        for x in [PV(0, 0)] + e[8:11] + [PV(0, 1)] + e[11:14] + [QK(2)] + e[14:16] + [PV(1, 0)]: a(x)
        a('s_nop 7')
        a(f's_branch L_loop{sf}')
        a(f'L_fin{sf}:')
        a('s_nop 0')
        a(PV(7, 1))
        a('s_nop 11')

    def service_param_loads(self):
        a = self.a; vLN = self.vLN
        a(f'v_and_b32 v150, 31, v{vLN}\nv_lshlrev_b32 v150, 1, v150\ns_lshl_b32 s{sT0}, s{sPB}, 6')
        for k, (p, v) in enumerate(((6, 140), (7, 141), (12, 142))):
            self.srd(SA, P(p), 1024)
            a(f'buffer_load_ushort v{v}, v150, s[{SA}:{SA+3}], s{sT0} offen')
        self.srd(SA, P(13), 1024)
        a(f's_lshl_b32 s{sT0}, s{sCG}, 7\ns_and_b32 s{sT1}, s{sWV}, 1\ns_lshl_b32 s{sT1}, s{sT1}, 6\ns_add_u32 s{sT0}, s{sT0}, s{sT1}')
        a(f'buffer_load_ushort v143, v150, s[{SA}:{SA+3}], s{sT0} offen')

    def service(self):
        a = self.a; vLN, vL16, vEP = self.vLN, self.vL16, self.vEP
        LR, LI, L16R, L16I, L128R, L128I, FR, FI, WR, WI, CR, CI = range(140, 152)
        DG = 152
        vT, vU, vF, vS, vW = 163, 164, 165, 166, 167
        a('L_service:')
        a('s_setprio 3')
        a(f's_lshl_b32 s{sT0}, s{sSW}, 2\nv_mov_b32 v{vS}, s{sT0}')
        a(f's_sub_u32 s{sSW}, s{sWV}, 8')
        a('s_waitcnt vmcnt(14)')
        self.lds_signal(vS, vT, 1, F_LD)
        self.get_tag(vEP)
        a('v_lshlrev_b32 v0, 16, v140\nv_lshlrev_b32 v1, 16, v141\nv_lshlrev_b32 v2, 16, v142\nv_mov_b32 v3, v143')
        LOG2E = f2u(math.log2(math.e)); INV2PI = f2u(1 / (2 * math.pi))
        a(f'v_mul_f32 v2, {LOG2E:#x}, v2\nv_exp_f32 v2, v2\nv_cvt_pk_bf16_f32 v2, v2, v2\nv_lshlrev_b32 v2, 16, v2')
        a(f'v_mul_f32 v4, v2, v0\nv_mul_f32 v5, v2, v1\nv_mul_f32 v4, {LOG2E:#x}, v4\nv_mul_f32 v5, {f2u(-1/(2*math.pi)):#x}, v5')
        def power(dr, di, n):
            a(f'v_mul_f32 v6, {n}, v4\nv_mul_f32 v7, {n}, v5\nv_exp_f32 v6, v6\nv_fract_f32 v7, v7\nv_cos_f32 v8, v7\nv_sin_f32 v9, v7\nv_mul_f32 v{dr}, v6, v8\nv_mul_f32 v{di}, v6, v9')
        power(LR, LI, '1.0')
        power(L16R, L16I, f'{f2u(16.0):#x}')
        power(L128R, L128I, f'{f2u(128.0):#x}')
        a(f'v_lshrrev_b32 v10, 5, v{vLN}\nv_cvt_f32_u32 v11, v10\nv_mul_f32 v11, {f2u(1024.0):#x}, v11')
        power(FR, FI, 'v11')
        a(f's_lshl_b32 s{sT0}, s{sSW}, 1\nv_add_u32 v11, s{sT0}, v10\nv_cvt_f32_u32 v11, v11\nv_mul_f32 v11, {f2u(16.0):#x}, v11')
        power(WR, WI, 'v11')
        a(f'v_add_f32 v6, -1.0, v{LR}\nv_mul_f32 v7, v0, v0\nv_fmac_f32 v7, v1, v1\nv_rcp_f32 v7, v7\nv_add_f32 v7, v7, v7')
        a(f'v_mul_f32 v8, v6, v0\nv_fma_f32 v8, -v{LI}, v1, v8\nv_mul_f32 v9, v6, v1\nv_fma_f32 v9, -v{LI}, v0, -v9\nv_mul_f32 v{CR}, v8, v7\nv_mul_f32 v{CI}, v9, v7')
        a(f'v_and_b32 v6, 1, v{vLN}\nv_lshlrev_b32 v6, 4, v6\nv_lshlrev_b32 v3, v6, v3')
        a(f'v_and_b32 v6, 31, v{vLN}\nv_lshrrev_b32 v6, 1, v6\nv_lshlrev_b32 v7, 2, v10\nv_sub_u32 v6, v6, v7')
        for q in range(8):
            a(f'v_cmp_eq_u32 vcc, {8*(q//4) + q%4}, v6\nv_cndmask_b32 v{DG+q}, 0, v3, vcc')
        vWA, vXA = 130, 131
        self.tr_addr(vWA, vT, vU, 8, L_A2)
        a(f's_lshr_b32 s{sT0}, s{sSW}, 1\ns_lshl_b32 s{sT0}, s{sT0}, 5')
        self.row_addr(vXA, vT, sT0, L_A1)
        a(f'v_and_b32 v{vF}, 7, v{vLN}\nv_lshlrev_b32 v{vF}, 2, v{vF}')
        D = 112
        for ch in range(4):
            a(f's_waitcnt vmcnt({6 - 2*ch})')
            self.lds_signal(vS, vT, 2 + ch, F_LD)
            self.lds_wait(vF, vT, 2 + ch, F_LD, sleep=1)
            if ch == 0: self.stamp(2)
            for u in range(8):
                s = 8 * ch + u
                a(f'ds_read_b64_tr_b16 v[{8*u}:{8*u+1}], v{vWA} offset:{2048*s}\nds_read_b64_tr_b16 v[{8*u+2}:{8*u+3}], v{vWA} offset:{2048*s+512}')
                a(f'ds_read_b128 v[{8*u+4}:{8*u+7}], v{vXA} offset:{32*s}')
            for u in range(8):
                rem = 3 * (7 - u)
                if rem <= 15: a(f's_waitcnt lgkmcnt({rem})')
                elif u == 0: a('s_waitcnt lgkmcnt(15)')
                a(f'v_mfma_f32_32x32x16_bf16 v[{D}:{D+15}], v[{8*u}:{8*u+3}], v[{8*u+4}:{8*u+7}], {"0" if ch == 0 and u == 0 else f"v[{D}:{D+15}]"}')
        QS = f2u(0.25 * math.log2(math.e))
        for r in range(16): a(f'v_mul_f32 v{D+r}, {QS:#x}, v{D+r}')
        for r in range(8): a(f'v_cvt_pk_bf16_f32 v{r}, v{D+2*r}, v{D+2*r+1}')
        a(f's_and_b32 s{sT0}, s{sSW}, 1\ns_lshl_b32 s{sT0}, s{sT0}, 2\ns_lshr_b32 s{sT1}, s{sSW}, 1\ns_xor_b32 s{sT1}, s{sT1}, 1\ns_add_u32 s{sT0}, s{sT0}, s{sT1}\ns_lshl_b32 s{sT0}, s{sT0}, 10')
        a(f'v_add_u32 v{vT}, s{sT0}, v{vL16}\nds_write_b128 v{vT}, v[0:3] offset:{L_QF}\nds_write_b128 v{vT}, v[4:7] offset:{L_QF+2048}')
        a(f'v_mul_f32 v8, v{D}, v{D}\nv_mul_f32 v9, v{D+8}, v{D+8}')
        for r in range(1, 8): a(f'v_fmac_f32 v8, v{D+r}, v{D+r}\nv_fmac_f32 v9, v{D+8+r}, v{D+8+r}')
        a('v_permlane32_swap_b32 v8, v9\nv_add_f32 v8, v8, v9')
        a('v_mov_b32 v9, v8\nv_permlane32_swap_b32 v8, v9\nv_max_f32 v8, v8, v9')
        a(f'v_and_b32 v{vT}, 31, v{vLN}\nv_lshlrev_b32 v{vT}, 2, v{vT}\ns_lshl_b32 s{sT0}, s{sSW}, 7\nv_add_u32 v{vT}, s{sT0}, v{vT}\nds_write_b32 v{vT}, v8 offset:{L_QN}')
        a(f's_lshl_b32 s{sT0}, s{sSW}, 2\nv_mov_b32 v{vS}, s{sT0}')
        self.lds_signal(vS, vT, 1, F_SV)
        self.stamp(3)
        a(f'v_and_b32 v{vF}, 7, v{vLN}\nv_min_u32 v{vF}, 4, v{vF}\nv_lshlrev_b32 v{vF}, 2, v{vF}')
        self.lds_wait(vF, vT, 1, F_SV, sleep=1)
        a(f'v_and_b32 v{vF}, 3, v{vLN}\nv_lshlrev_b32 v{vF}, 2, v{vF}')
        self.srd(SA, P(5), 2048 * 1024)
        self.srd(SB, P(8), 512 * 1024)
        self.srd(SC, P(9), 512 * 1024)
        vXD, vXR, vBR = 130, 131, 132
        a(f'v_lshrrev_b32 v{vT}, 5, v{vLN}\nv_and_b32 v{vXD}, 31, v{vLN}\nv_xor_b32 v{vXD}, v{vXD}, v{vT}\nv_lshlrev_b32 v{vXD}, 4, v{vXD}\nv_lshl_add_u32 v{vXD}, v{vT}, 10, v{vXD}')
        sXB, sXL = sT4, sT5
        a(f's_lshl_b32 s{sXB}, s{sTB}, 2\ns_add_u32 s{sXB}, s{sXB}, s{sSW}\ns_lshl_b32 s{sXB}, s{sXB}, 15')
        a(f's_mul_i32 s{sXL}, s{sSW}, {XW}\ns_add_u32 s{sXL}, s{sXL}, {L_A2}')
        def tmap(i): return (i & 3) | ((i >> 3) << 2) | (((i >> 2) & 1) << 4)
        def xdma(half):
            for m in range(16):
                a(f's_add_u32 m0, s{sXL}, {1056*m}\ns_add_u32 s{sT0}, s{sXB}, {tmap(2*m)*1024 + 512*half}')
                a(f'buffer_load_dwordx4 v{vXD}, s[{SA}:{SA+3}], s{sT0} offen lds')
        xdma(0)
        a(f's_mul_i32 s{sT1}, s{sSW}, {8*1040}\ns_lshl_b32 s{sT2}, s{sPB}, 15\ns_lshl_b32 s{sT3}, s{sSW}, 13\ns_add_u32 s{sT2}, s{sT2}, s{sT3}')
        for pl, srd in ((0, SB), (1, SC)):
            for m in range(8):
                a(f's_add_u32 m0, s{sT1}, {L_A1 + (32*pl + m)*1040}\ns_add_u32 s{sT0}, s{sT2}, {1024*m}')
                a(f'buffer_load_dwordx4 v{vL16}, s[{srd}:{srd+3}], s{sT0} offen lds')
        a(f'v_and_b32 v{vT}, 31, v{vLN}\nv_lshrrev_b32 v{vU}, 1, v{vT}\nv_mul_u32_u24 v{vXR}, 1056, v{vU}\nv_and_b32 v{vT}, 1, v{vT}\nv_lshl_add_u32 v{vXR}, v{vT}, 9, v{vXR}')
        a(f'v_lshrrev_b32 v{vU}, 5, v{vLN}\nv_xor_b32 v{vT}, v{vT}, v{vU}\nv_lshl_add_u32 v{vXR}, v{vT}, 4, v{vXR}\nv_add_u32 v{vXR}, s{sXL}, v{vXR}')
        a(f's_mov_b32 s{sT0}, 0')
        self.row_addr(vBR, vT, sT0, L_A1)
        a('s_waitcnt vmcnt(16)')
        self.stamp(4)
        for s in range(16): a(f'ds_read_b128 v[{4*s}:{4*s+3}], v{vXR} offset:{32*s}')
        a('s_waitcnt lgkmcnt(0)')
        xdma(1)
        a('s_waitcnt vmcnt(16)')
        self.lds_signal(vS, vT, 2, F_SV)
        self.lds_wait(vF, vT, 2, F_SV, sleep=1)
        self.stamp(5)
        GR, GI, BT = 96, 112, 64
        def bread(s): a(f'ds_read_b128 v[{BT+8*(s%4)}:{BT+8*(s%4)+3}], v{vBR} offset:{32*s}\nds_read_b128 v[{BT+8*(s%4)+4}:{BT+8*(s%4)+7}], v{vBR} offset:{32*1040+32*s}')
        def mm(s):
            x = f'v[{4*(s%16)}:{4*(s%16)+3}]'
            a(f'v_mfma_f32_32x32x16_bf16 v[{GR}:{GR+15}], {x}, v[{BT+8*(s%4)}:{BT+8*(s%4)+3}], {"0" if s == 0 else f"v[{GR}:{GR+15}]"}')
            a(f'v_mfma_f32_32x32x16_bf16 v[{GI}:{GI+15}], {x}, v[{BT+8*(s%4)+4}:{BT+8*(s%4)+7}], {"0" if s == 0 else f"v[{GI}:{GI+15}]"}')
        for half in range(2):
            if half == 1:
                a('s_waitcnt vmcnt(0)')
                for s in range(16): a(f'ds_read_b128 v[{4*s}:{4*s+3}], v{vXR} offset:{32*s}')
            s0 = 16 * half
            bread(s0); bread(s0 + 1); bread(s0 + 2)
            for s in range(s0, s0 + 16):
                left = min(2, s0 + 15 - s)
                a(f's_waitcnt lgkmcnt({2*left})')
                mm(s)
                if s + 3 < s0 + 16: bread(s + 3)
        self.stamp(6)
        for r in range(16):
            a(f'v_mul_f32 v0, v{CI}, v{GI+r}\nv_mul_f32 v1, v{CI}, v{GR+r}\nv_fma_f32 v{GR+r}, v{CR}, v{GR+r}, -v0\nv_fma_f32 v{GI+r}, -v{CR}, v{GI+r}, -v1')
        def cstep(dr, di, sr, si, lr, li, ur, ui, t0=0, t1=1):
            a(f'v_fma_f32 v{t0}, -v{li}, v{si}, v{ur}\nv_fma_f32 v{t1}, v{li}, v{sr}, v{ui}\nv_fma_f32 v{dr}, v{lr}, v{sr}, v{t0}\nv_fma_f32 v{di}, v{lr}, v{si}, v{t1}')
        ER, EI = 2, 3
        cstep(ER, EI, GR, GI, LR, LI, GR + 1, GI + 1)
        for r in range(2, 16): cstep(ER, EI, ER, EI, LR, LI, GR + r, GI + r)
        a(f'v_lshlrev_b32 v{vT}, 3, v{vLN}\nv_add_u32 v{vT}, s{sXL}, v{vT}\nds_write_b64 v{vT}, v[{ER}:{EI}] offset:{L_SXO}')
        self.lds_signal(vS, vT, 3, F_SV)
        self.lds_wait(vF, vT, 3, F_SV, sleep=1)
        a(f'v_and_b32 v{vT}, 31, v{vLN}\nv_lshlrev_b32 v{vT}, 3, v{vT}\nv_add_u32 v{vT}, {L_A2}, v{vT}')
        for c in range(7): a(f'ds_read_b64 v[{8+2*c}:{9+2*c}], v{vT} offset:{(c//2)*XW + L_SXO + (c%2)*256}')
        self.srd(SB, P(10), 512 * 1024)
        self.srd(SC, P(11), 512 * 1024)
        def cdma(srd, base):
            a(f's_mul_i32 s{sT1}, s{sSW}, {16*1040}\ns_lshl_b32 s{sT2}, s{sCG}, 16\ns_lshl_b32 s{sT3}, s{sSW}, 14\ns_add_u32 s{sT2}, s{sT2}, s{sT3}')
            for m in range(16):
                a(f's_add_u32 m0, s{sT1}, {base + m*1040}\ns_add_u32 s{sT0}, s{sT2}, {1024*m}')
                a(f'buffer_load_dwordx4 v{vL16}, s[{srd}:{srd+3}], s{sT0} offen lds')
        LCR, LCI = 4, 5
        a(f'v_mov_b32 v{LCR}, 0\nv_mov_b32 v{LCI}, 0\ns_lshl_b32 s{sT3}, s{sSW}, 1\ns_mov_b32 s{sM0}, 0\ns_mov_b32 s{sM0+1}, -1')
        a('s_waitcnt lgkmcnt(0)')
        self.lds_signal(vS, vT, 4, F_SV)
        for c in range(7):
            a(f's_cmp_lt_u32 s{sT3}, {c}\ns_cbranch_scc1 L_lh_done')
            a(f's_cmp_gt_u32 s{sT3}, {c}\ns_cselect_b64 exec, -1, s[{sM0}:{sM0+1}]')
            cstep(LCR, LCI, LCR, LCI, L16R, L16I, 8 + 2 * c, 9 + 2 * c)
        a('L_lh_done:\ns_mov_b64 exec, -1')
        a(f's_cmp_lg_u32 s{sSW}, 3\ns_cbranch_scc1 L_noE')
        cstep(8, 9, LCR, LCI, L16R, L16I, ER, EI)
        a(f'v_mov_b32 v10, s{sTAG}\nv_mov_b32 v11, 0')
        a(f's_lshl_b32 s{sT0}, s{sPB}, 14\ns_lshl_b32 s{sT1}, s{sTB}, 9\ns_add_u32 s{sT0}, s{sT0}, s{sT1}\ns_add_u32 s{sT0}, s{sT0}, {WS_EBUF + 16*512 - 512:#x}')
        a(f's_mov_b64 exec, s[{sM0}:{sM0+1}]\nbuffer_store_dwordx4 v[8:11], v{vL16}, s[{SWS}:{SWS+3}], s{sT0} offen sc1\ns_mov_b64 exec, -1')
        a('L_noE:')
        self.stamp(7)
        cdma(SB, L_A1)
        a(f'v_and_b32 v{vT}, 31, v{vLN}\nv_lshlrev_b32 v{vW}, 4, v{vT}\nv_lshrrev_b32 v{vT}, 5, v{vLN}\nv_xor_b32 v{vT}, 1, v{vT}\nv_lshl_add_u32 v{vW}, v{vT}, 12, v{vW}')
        a(f's_lshl_b32 s{sT0}, s{sPB}, 14\ns_lshl_b32 s{sT1}, s{sTB}, 9\ns_add_u32 s{sT0}, s{sT0}, s{sT1}\ns_add_u32 s{sT0}, s{sT0}, {WS_EBUF:#x}')
        a(f's_mov_b32 s{sCNT}, 100000')
        a('L_eg:')
        for q in range(8): a(f'buffer_load_dwordx3 v[{8+4*q}:{10+4*q}], v{vW}, s[{SWS}:{SWS+3}], s{sT0} offen offset:{512*q} sc1')
        a('s_waitcnt vmcnt(0)')
        a(f'v_cmp_ne_u32 vcc, s{sTAG}, v10')
        for q in range(1, 8): a(f'v_cmp_ne_u32 s[{sM1}:{sM1+1}], s{sTAG}, v{10+4*q}\ns_or_b64 vcc, vcc, s[{sM1}:{sM1+1}]')
        a(f's_cbranch_scc0 L_egd\ns_sleep 8\ns_sub_u32 s{sCNT}, s{sCNT}, 1\ns_cbranch_scc0 L_eg')
        a('L_egd:')
        self.stamp(8)
        for q in range(1, 8): cstep(8, 9, 8, 9, L128R, L128I, 8 + 4 * q, 9 + 4 * q)
        a(f'v_mul_f32 v12, v{FR}, v8\nv_mul_f32 v13, v{FR}, v9\nv_fma_f32 v12, -v{FI}, v9, v12\nv_fma_f32 v13, v{FI}, v8, v13')
        a('v_mov_b32 v14, v12\nv_mov_b32 v15, v13\nv_permlane32_swap_b32 v12, v14\nv_permlane32_swap_b32 v13, v15\nv_add_f32 v12, v12, v14\nv_add_f32 v13, v13, v15')
        cstep(LCR, LCI, 12, 13, WR, WI, LCR, LCI)
        cstep(GR, GI, LCR, LCI, LR, LI, GR, GI)
        for r in range(1, 16): cstep(GR + r, GI + r, GR + r - 1, GI + r - 1, LR, LI, GR + r, GI + r)
        for r in range(8): a(f'v_cvt_pk_bf16_f32 v{8+r}, v{GR+2*r}, v{GR+2*r+1}\nv_cvt_pk_bf16_f32 v{16+r}, v{GI+2*r}, v{GI+2*r+1}')
        a(f'v_and_b32 v{vT}, 31, v{vLN}\nv_lshlrev_b32 v{vT}, 6, v{vT}\nv_lshrrev_b32 v{vU}, 5, v{vLN}\nv_lshl_add_u32 v{vT}, v{vU}, 5, v{vT}\nv_add_u32 v{vT}, s{sXL}, v{vT}')
        for pl in range(2):
            a(f'ds_write_b128 v{vT}, v[{8+8*pl}:{11+8*pl}] offset:{L_TBO+2048*pl}\nds_write_b128 v{vT}, v[{12+8*pl}:{15+8*pl}] offset:{L_TBO+2048*pl+16}')
        a(f'v_lshrrev_b32 v{vT}, 5, v{vLN}\nv_lshlrev_b32 v{vT}, 9, v{vT}\nv_bfe_u32 v{vU}, v{vLN}, 2, 2\nv_lshl_add_u32 v{vT}, v{vU}, 6, v{vT}')
        a(f'v_bfe_u32 v{vU}, v{vLN}, 4, 1\nv_lshl_add_u32 v{vT}, v{vU}, 5, v{vT}\nv_and_b32 v{vU}, 3, v{vLN}\nv_lshl_add_u32 v{vT}, v{vU}, 3, v{vT}\nv_add_u32 v{vT}, s{sXL}, v{vT}')
        for pl in range(2):
            for f in range(2):
                d = 24 + 8 * pl + 4 * f
                a(f'ds_read_b64_tr_b16 v[{d}:{d+1}], v{vT} offset:{L_TBO+2048*pl+1024*f}\nds_read_b64_tr_b16 v[{d+2}:{d+3}], v{vT} offset:{L_TBO+2048*pl+1024*f+256}')
        a(f's_lshl_b32 s{sT3}, s{sTB}, 2\ns_add_u32 s{sT3}, s{sT3}, s{sSW}')
        a(f's_lshl_b32 s{sT0}, s{sT3}, 16\ns_lshl_b32 s{sT1}, s{sPB}, 11\ns_add_u32 s{sT0}, s{sT0}, s{sT1}\ns_add_u32 s{sT0}, s{sT0}, {WS_HBUF:#x}\ns_add_u32 s{sT1}, s{sT0}, 0x8000')
        a('s_waitcnt lgkmcnt(0)')
        for pl in range(2):
            for f in range(2):
                d = 24 + 8 * pl + 4 * f
                a(f'buffer_store_dwordx4 v[{d}:{d+3}], v{vL16}, s[{SWS}:{SWS+3}], s{sT0 if pl == 0 else sT1} offen offset:{1024*f} sc1')
        a(f's_lshl_b32 s{sT3}, s{sT3}, 4\ns_add_u32 s{sT3}, s{sT3}, s{sPB}\ns_lshl_b32 s{sT3}, s{sT3}, 2\ns_add_u32 s{sT4}, s{sT3}, {WS_HFLAG:#x}')
        self.lds_wait(vF, vT, 4, F_SV, sleep=1)
        a(f'v_mov_b32 v{vT}, s{sTAG}\ns_waitcnt vmcnt(0)')
        a(f's_mov_b64 exec, 1\nbuffer_store_dword v{vT}, off, s[{SWS}:{SWS+3}], s{sT4} sc1\ns_mov_b64 exec, -1')
        self.lds_signal(vS, vT, 5, F_SV)
        self.stamp(9)
        cdma(SC, L_A2)
        vCA, YA, CT = 144, 128, 146
        XF = 0
        a(f'v_and_b32 v{vT}, 31, v{vLN}\nv_lshlrev_b32 v{vT}, 10, v{vT}\nv_lshrrev_b32 v{vU}, 5, v{vLN}\nv_lshl_add_u32 v{vT}, v{vU}, 4, v{vT}')
        a(f's_lshl_b32 s{sT4}, s{sRB}, 1\ns_lshr_b32 s{sT0}, s{sSW}, 1\ns_add_u32 s{sT4}, s{sT4}, s{sT0}')
        a(f's_lshl_b32 s{sT5}, s{sCG}, 1\ns_and_b32 s{sT0}, s{sSW}, 1\ns_add_u32 s{sT5}, s{sT5}, s{sT0}')
        a(f's_lshl_b32 s{sT0}, s{sT4}, 15\ns_lshl_b32 s{sT1}, s{sT5}, 6\ns_add_u32 s{sT0}, s{sT0}, s{sT1}')
        a(f'buffer_load_dwordx4 v[{XF}:{XF+3}], v{vT}, s[{SA}:{SA+3}], s{sT0} offen\nbuffer_load_dwordx4 v[{XF+4}:{XF+7}], v{vT}, s[{SA}:{SA+3}], s{sT0} offen offset:32')
        a(f's_and_b32 s{sT0}, s{sSW}, 1\ns_lshl_b32 s{sT0}, s{sT0}, 5')
        self.row_addr(vCA, vT, sT0, L_A1)
        a(f'v_add_u32 v{vCA+1}, {L_A2 - L_A1}, v{vCA}')
        a('s_waitcnt vmcnt(0)')
        self.lds_signal(vS, vT, 6, F_SV)
        a(f'v_mfma_f32_32x32x16_bf16 v[{YA}:{YA+15}], v[{XF}:{XF+3}], v[{DG}:{DG+3}], 0')
        a(f'v_mfma_f32_32x32x16_bf16 v[{YA}:{YA+15}], v[{XF+4}:{XF+7}], v[{DG+4}:{DG+7}], v[{YA}:{YA+15}]')
        a(f'v_and_b32 v{vW}, 15, v{vLN}\nv_lshlrev_b32 v{vW}, 2, v{vW}\ns_lshl_b32 s{sT0}, s{sT4}, 6\ns_add_u32 s{sT0}, s{sT0}, {WS_HFLAG:#x}')
        self.gpoll(vW, vT, sT0, 'h')
        self.stamp(10)
        a(f's_lshl_b32 s{sT3}, s{sT4}, 16\ns_add_u32 s{sT3}, s{sT3}, {WS_HBUF:#x}')
        def hload(i):
            if i % 4 == 0 and i > 0: a(f's_add_u32 s{sT3}, s{sT3}, 4096')
            a(f'buffer_load_dwordx4 v[{4*(i%32)}:{4*(i%32)+3}], v{vL16}, s[{SWS}:{SWS+3}], s{sT3} offen offset:{1024*(i%4)} sc1')
        for i in range(32): hload(i)
        self.lds_wait(vF, vT, 6, F_SV, sleep=1)
        CTS = [146 + 2, 152, 156]
        def cread(s): a(f'ds_read_b128 v[{CTS[s%3]}:{CTS[s%3]+3}], v{vCA + s//32} offset:{32*(s%32)}')
        cread(0); cread(1)
        for s in range(64):
            if s == 46:
                a('s_waitcnt lgkmcnt(0)')
                self.lds_wait(vF, vT, 7, F_SV, sleep=1)
                self.srd(SB, P(4), 512 * 1024)
                self.wimg_lane_addr(vW, vT)
                a(f's_lshl_b32 s{sT0}, s{sSW}, 17\ns_lshl_b32 s{sT1}, s{sCG}, 7\ns_add_u32 s{sT0}, s{sT0}, s{sT1}\ns_lshl_b32 s{sT1}, s{sSW}, 14\ns_add_u32 m0, s{sT1}, {L_A1}')
                for m in range(16):
                    a(f'buffer_load_dwordx4 v{vW}, s[{SB}:{SB+3}], s{sT0} offen lds')
                    if m < 15: a(f's_add_u32 m0, m0, 1024\ns_add_u32 s{sT0}, s{sT0}, 8192')
            if s < 32: vmw = 31
            elif s < 46: vmw = 63 - s
            else: vmw = 63 - s + 16
            a(f's_waitcnt vmcnt({vmw}) lgkmcnt({1 if s < 63 else 0})')
            a(f'v_mfma_f32_32x32x16_bf16 v[{YA}:{YA+15}], v[{4*(s%32)}:{4*(s%32)+3}], v[{CTS[s%3]}:{CTS[s%3]+3}], v[{YA}:{YA+15}]')
            if s < 32: hload(32 + s)
            if s + 2 < 64: cread(s + 2)
            if s == 32:
                a('s_waitcnt lgkmcnt(0)')
                self.lds_signal(vS, vT, 7, F_SV)
                a('s_waitcnt lgkmcnt(0)')
        self.srd(SOUT, P(14), 2048 * 4096)
        vOA = 146
        a(f'v_and_b32 v{vOA}, 31, v{vLN}\nv_lshlrev_b32 v{vOA}, 2, v{vOA}\nv_lshrrev_b32 v{vT}, 5, v{vLN}\nv_lshl_add_u32 v{vOA}, v{vT}, 14, v{vOA}')
        a(f's_lshl_b32 s{sT2}, s{sT4}, 17\ns_lshl_b32 s{sT1}, s{sT5}, 7\ns_add_u32 s{sT2}, s{sT2}, s{sT1}')
        def store_tile(extra):
            for r in range(16):
                a(f's_add_u32 s{sT0}, s{sT2}, {((r % 4) + 8 * (r // 4)) * 4096}')
                a(f'buffer_store_dword v{YA+r}, v{vOA}, s[{SOUT}:{SOUT+3}], s{sT0} offen offset:{extra}')
        store_tile(2048)
        self.stamp(11)
        a('s_waitcnt vmcnt(16)')
        self.lds_signal(vS, vT, 8, F_SV)
        vWO = 144
        self.tr_addr(vWO, vT, vU, 4, L_A1)
        self.lds_wait(vF, vT, 8, F_SV, sleep=1)
        a(f'v_and_b32 v{vW}, 31, v{vLN}\nv_lshlrev_b32 v{vW}, 2, v{vW}\ns_lshl_b32 s{sT0}, s{sT4}, 7\ns_add_u32 s{sT0}, s{sT0}, {WS_OFLAG:#x}')
        self.gpoll(vW, vT, sT0, 'o')
        self.stamp(12)
        a(f's_lshl_b32 s{sT3}, s{sT4}, 15\ns_add_u32 s{sT3}, s{sT3}, {WS_OBUF:#x}')
        for i in range(32): hload(i)
        def wread(s): a(f'ds_read_b64_tr_b16 v[{CTS[s%3]}:{CTS[s%3]+1}], v{vWO} offset:{2048*s}\nds_read_b64_tr_b16 v[{CTS[s%3]+2}:{CTS[s%3]+3}], v{vWO} offset:{2048*s+1024}')
        wread(0); wread(1)
        for s in range(32):
            a(f's_waitcnt vmcnt({31-s}) lgkmcnt({2 if s < 31 else 0})')
            a(f'v_mfma_f32_32x32x16_bf16 v[{YA}:{YA+15}], v[{4*s}:{4*s+3}], v[{CTS[s%3]}:{CTS[s%3]+3}], {"0" if s == 0 else f"v[{YA}:{YA+15}]"}')
            if s + 2 < 32: wread(s + 2)
        store_tile(0)
        self.stamp(13)
        self.end(vT)

    def gpoll(self, vaddr, vt, sbase, nm):
        a = self.a
        a(f's_mov_b32 s{sCNT}, 100000')
        a(f'L_gp{nm}:')
        a(f'buffer_load_dword v{vt}, v{vaddr}, s[{SWS}:{SWS+3}], s{sbase} offen sc1\ns_waitcnt vmcnt(0)\nv_cmp_ne_u32 vcc, s{sTAG}, v{vt}\ns_cbranch_vccz L_gd{nm}')
        a(f's_sleep 4\ns_sub_u32 s{sCNT}, s{sCNT}, 1\ns_cbranch_scc0 L_gp{nm}')
        a(f'L_gd{nm}:')

    def row_addr(self, vd, vt, srow, base):
        a = self.a; vLN = self.vLN
        a(f'v_and_b32 v{vt}, 31, v{vLN}\nv_add_u32 v{vt}, s{srow}, v{vt}\nv_mul_u32_u24 v{vd}, 1040, v{vt}\nv_lshrrev_b32 v{vt}, 5, v{vLN}\nv_lshl_add_u32 v{vd}, v{vt}, 4, v{vd}\nv_add_u32 v{vd}, {base}, v{vd}')

    def tr_addr(self, vd, vt, vu, hrows, base):
        a = self.a; vLN = self.vLN
        sh = {8: 10, 4: 9}[hrows]
        a(f'v_lshrrev_b32 v{vd}, 5, v{vLN}\nv_lshlrev_b32 v{vd}, {sh}, v{vd}\nv_bfe_u32 v{vt}, v{vLN}, 2, 2\nv_lshl_add_u32 v{vd}, v{vt}, 7, v{vd}')
        a(f's_and_b32 s{sT0}, s{sSW}, 1\nv_lshrrev_b32 v{vt}, 1, v{vt}\nv_xor_b32 v{vt}, s{sT0}, v{vt}\nv_lshl_add_u32 v{vd}, v{vt}, 6, v{vd}')
        a(f'v_bfe_u32 v{vt}, v{vLN}, 4, 1\nv_lshl_add_u32 v{vd}, v{vt}, 5, v{vd}\nv_and_b32 v{vt}, 3, v{vLN}\nv_lshl_add_u32 v{vd}, v{vt}, 3, v{vd}\nv_add_u32 v{vd}, {base}, v{vd}')

HEADER = open('cdna_kernels/' + NAME + '.s.ref').read().split('; Override launch')[0]

def make(stamps=False):
    g = G(stamps)
    body = g.build()
    txt = HEADER + f'; @launch grid=(256,1,1) block=(768,1,1) lds={L_TOTAL}\n'
    txt += f'''.amdgcn_target "amdgcn-amd-amdhsa--gfx950"
.text
.globl {NAME}_kernel
.p2align 8
.type {NAME}_kernel,@function
{NAME}_kernel:
{body}.section .rodata,"a"
.p2align 6
.amdhsa_kernel {NAME}_kernel
  .amdhsa_next_free_vgpr 168
  .amdhsa_next_free_sgpr 102
  .amdhsa_accum_offset 168
  .amdhsa_group_segment_fixed_size 0
  .amdhsa_kernarg_size 136
  .amdhsa_user_sgpr_count 2
  .amdhsa_user_sgpr_kernarg_segment_ptr 1
  .amdhsa_system_sgpr_workgroup_id_x 1
.end_amdhsa_kernel
'''
    return txt, g.a.n_ins

if __name__ == '__main__':
    out = sys.argv[1] if len(sys.argv) > 1 else 'cdna_kernels/' + NAME + '.s'
    txt, n = make(stamps='--stamps' in sys.argv)
    open(out, 'w').write(txt)
    print('wrote', out, n, 'instructions')
```

```python
import sys, math, struct
from asm import Asm

NAME = 'concat_heads__grouped_kv_mqa__ssm_conv_s5__prompt'

def f2u(x): return struct.unpack('<I', struct.pack('<f', x))[0]

WS_EPOCH = 0x0
WS_KVFLAG = 0x1000
WS_KIMG = 0x10000
WS_VIMG = 0x20000
WS_HFLAG = 0x30000
WS_OFLAG = 0x32000
WS_EBUF = 0x40000
WS_OBUF = 0x100000
WS_HBUF = 0x400000
WS_DBG = 0x800000
WS_SIZE = 0x1000000
L_FLG = 0
F_LD = 0
F_PL = 32
F_SV = 48
F_KVD = 64
F_KVR = 68
F_KMR = 72
F_KMAX = 76
F_AT = 80
F_KST = 112
L_QN = 256
L_ACCF = 1024
L_QF = 5120
L_ACCD = 13312
L_A1 = 29696
L_A2 = 96256
L_TOTAL = 163840
XW = 16896
L_SXO = 1024
L_TBO = 2048

sWV, sRB, sCG, sTB, sPB, sTAG = 3, 4, 5, 6, 7, 8
sT0, sT1, sT2, sT3, sT4, sT5 = 9, 10, 11, 12, 13, 14
sCNT = 15
P = lambda i: 16 + 2 * i
SA, SB, SC, SWS, SOUT = 52, 56, 60, 64, 68
sSW = 72
sPH, sTJ, sPOS = 73, 74, 75
sM0, sM1 = 76, 78
sST = 82
SPIN = 400000

OPT = set(x[2:] for x in sys.argv if x.startswith('--'))
class G:
    def __init__(self, stamps=False):
        self.a = Asm(); self.stamps = stamps; self.cyc = True
    def srd(self, d, p, size):
        a = self.a
        a(f's_mov_b32 s{d}, s{p}\ns_mov_b32 s{d+1}, s{p+1}\ns_mov_b32 s{d+2}, {size:#x}\ns_mov_b32 s{d+3}, 0x20000')
    def stamp(self, i):
        if self.stamps:
            self.a(f's_memrealtime s[98:99]\ns_waitcnt lgkmcnt(0)\ns_mov_b32 s{sST+i}, s98')
            m = {0: 7, 5: 8, 6: 9, 15: 10}
            if self.cyc and i in m:
                self.a(f's_memtime s[98:99]\ns_waitcnt lgkmcnt(0)\ns_mov_b32 s{sST+m[i]}, s98')
    def end(self, vt):
        a = self.a
        if self.stamps:
            self.stamp(15)
            a(f's_mul_i32 s{sT0}, s2, 12\ns_add_u32 s{sT0}, s{sT0}, s{sWV}\ns_lshl_b32 s{sT0}, s{sT0}, 6\ns_add_u32 s{sT0}, s{sT0}, {WS_DBG:#x}')
            a('s_mov_b64 exec, 1')
            for i in range(16):
                a(f'v_mov_b32 v{vt}, s{sST+i}\nbuffer_store_dword v{vt}, off, s[{SWS}:{SWS+3}], s{sT0} offset:{4*i}')
            a('s_waitcnt vmcnt(0)')
        a('s_endpgm')
    def lds_signal(self, vaddr, vt, val, off=0):
        self.a(f'v_mov_b32 v{vt}, {val}\nds_write_b32 v{vaddr}, v{vt} offset:{off}')
    def lds_wait(self, vaddr, vt, val, off=0, sleep=1):
        a = self.a; L = a.label('W'); D = a.label('WD')
        a(f's_mov_b32 s{sCNT}, {SPIN}')
        a(f'{L}:')
        a(f'ds_read_b32 v{vt}, v{vaddr} offset:{off}\ns_waitcnt lgkmcnt(0)\nv_cmp_gt_u32 vcc, {val}, v{vt}\ns_cbranch_vccz {D}')
        a((f's_sleep {sleep}\n' if sleep else '') + f's_sub_u32 s{sCNT}, s{sCNT}, 1\ns_cbranch_scc0 {L}')
        a(f'{D}:')
    def get_tag(self, vw):
        a = self.a
        a(f'v_readfirstlane_b32 s{sTAG}, v{vw}\ns_mul_i32 s{sTAG}, s{sTAG}, 0x9E3779B1\ns_add_u32 s{sTAG}, s{sTAG}, 0x7F4A7C15')

    def build(self):
        a = self.a
        vLN, vL16, vEP, vX0, vX1, vX2, vX3 = 160, 161, 162, 163, 164, 165, 166
        self.vLN, self.vL16, self.vEP = vLN, vL16, vEP
        a('s_cmp_ge_u32 s2, 256\ns_cbranch_scc1 L_exit')
        a('s_load_dwordx16 s[16:31], s[0:1], 0\ns_load_dwordx16 s[32:47], s[0:1], 64\ns_load_dwordx2 s[48:49], s[0:1], 128')
        if self.stamps:
            for i in range(16): a(f's_mov_b32 s{sST+i}, 0')
        a(f'v_and_b32 v{vLN}, 63, v0\nv_lshrrev_b32 v{vX0}, 6, v0\nv_lshlrev_b32 v{vL16}, 4, v{vLN}\nv_readfirstlane_b32 s{sWV}, v{vX0}')
        a(f's_and_b32 s{sT0}, s2, 7\ns_lshr_b32 s{sT1}, s2, 3')
        a(f's_lshl_b32 s{sRB}, s{sT0}, 2\ns_lshr_b32 s{sT2}, s{sT1}, 3\ns_add_u32 s{sRB}, s{sRB}, s{sT2}\ns_and_b32 s{sCG}, s{sT1}, 7')
        a(f's_lshl_b32 s{sTB}, s{sT0}, 1\ns_lshr_b32 s{sT2}, s{sT1}, 4\ns_add_u32 s{sTB}, s{sTB}, s{sT2}\ns_and_b32 s{sPB}, s{sT1}, 15')
        a('s_waitcnt lgkmcnt(0)')
        self.stamp(0)
        self.srd(SWS, P(16), WS_SIZE)
        a(f'buffer_load_dword v{vEP}, off, s[{SWS}:{SWS+3}], 0 sc1')
        a(f's_cmp_lt_u32 s{sWV}, 4\ns_cbranch_scc1 L_prio')
        a('s_barrier')
        a(f's_sub_u32 s{sSW}, s{sWV}, 4')
        a(f's_cmp_lt_u32 s{sWV}, 8\ns_cbranch_scc1 L_noparam')
        self.service_param_loads()
        a('L_noparam:')
        self.srd(SA, P(0), 2048 * 1024)
        self.srd(SC, P(1), 512 * 1024)
        a(f's_and_b32 s{sT5}, s{sCG}, 6')
        a(f's_lshl_b32 s{sT4}, s{sRB}, 16')
        def xa_row(n):
            a(f's_add_u32 s{sT0}, s{sT5}, {n}\ns_and_b32 s{sT0}, s{sT0}, 7\ns_lshl_b32 s{sT0}, s{sT0}, 3\ns_add_u32 s{sT0}, s{sT0}, s{sSW}')
            a(f's_mul_i32 s{sT1}, s{sT0}, 1040\ns_add_u32 m0, s{sT1}, {L_A1}\ns_lshl_b32 s{sT0}, s{sT0}, 10\ns_add_u32 s{sT0}, s{sT0}, s{sT4}')
            a(f'buffer_load_dwordx4 v{vL16}, s[{SA}:{SA+3}], s{sT0} offen lds')
        for n in range(2, 8): xa_row(n)
        self.wimg_lane_addr(vX1, vX0)
        a(f's_lshl_b32 s{sT0}, s{sSW}, 13\ns_lshl_b32 s{sT1}, s{sCG}, 7\ns_add_u32 s{sT0}, s{sT0}, s{sT1}')
        a(f's_lshl_b32 s{sT1}, s{sSW}, 10\ns_add_u32 m0, s{sT1}, {L_A2}')
        for n in range(8):
            a(f'buffer_load_dwordx4 v{vX1}, s[{SC}:{SC+3}], s{sT0} offen lds')
            if n < 7: a(f's_add_u32 m0, m0, 8192\ns_add_u32 s{sT0}, s{sT0}, 0x10000')
        self.stamp(1)
        a(f's_cmp_ge_u32 s{sWV}, 8\ns_cbranch_scc1 L_service')
        a(f's_lshl_b32 s{sT0}, s{sSW}, 2\nv_mov_b32 v{vX0}, s{sT0}')
        for ph, cnt in ((2, 6), (3, 4), (4, 2), (5, 0)):
            a(f's_waitcnt vmcnt({cnt})')
            self.lds_signal(vX0, vX1, ph, F_LD)
        self.get_tag(vEP)
        a('s_branch L_attn')
        a('L_prio:')
        a('s_setprio 2')
        self.srd(SA, P(0), 2048 * 1024)
        a(f's_bitcmp1_b32 s{sCG}, 0\ns_cselect_b32 s{SB}, s{P(3)}, s{P(2)}\ns_cselect_b32 s{SB+1}, s{P(3)+1}, s{P(2)+1}\ns_mov_b32 s{SB+2}, 0x4000\ns_mov_b32 s{SB+3}, 0x20000')
        a(f's_and_b32 s{sT0}, s{sCG}, 6\ns_lshl_b32 s{sT0}, s{sT0}, 3\ns_lshl_b32 s{sT1}, s{sWV}, 2\ns_add_u32 s{sT0}, s{sT0}, s{sT1}')
        a(f's_mul_i32 s{sT1}, s{sT0}, 1040\ns_add_u32 m0, s{sT1}, {L_A1}\ns_lshl_b32 s{sT0}, s{sT0}, 10\ns_lshl_b32 s{sT1}, s{sRB}, 16\ns_add_u32 s{sT0}, s{sT0}, s{sT1}')
        for n in range(4):
            a(f'buffer_load_dwordx4 v{vL16}, s[{SA}:{SA+3}], s{sT0} offen offset:{1024*n} lds')
            if n < 3: a('s_add_u32 m0, m0, 16')
        a(f's_lshl_b32 s{sT0}, s{sWV}, 12\ns_add_u32 m0, s{sT0}, {L_ACCD}')
        for n in range(4):
            a(f'buffer_load_dwordx4 v{vL16}, s[{SB}:{SB+3}], s{sT0} offen offset:{1024*n} lds')
        a(f'v_mov_b32 v0, 0\nv_mov_b32 v1, 0\nv_mov_b32 v2, 0\nv_mov_b32 v3, 0')
        a(f's_lshl_b32 s{sT0}, s{sWV}, 10\nv_add_u32 v{vX0}, s{sT0}, v{vL16}\nds_write_b128 v{vX0}, v[0:3] offset:{L_ACCF}')
        a(f'v_lshlrev_b32 v{vX0}, 2, v{vLN}\nds_write_b32 v{vX0}, v0 offset:{L_FLG}')
        a(f'v_mov_b32 v4, -1\nv_mov_b32 v5, -1\nv_mov_b32 v6, -1\nv_mov_b32 v7, -1')
        a(f's_lshl_b32 s{sT0}, s{sRB}, 6\ns_lshl_b32 s{sT1}, s{sCG}, 2\ns_add_u32 s{sT0}, s{sT0}, s{sT1}\ns_add_u32 s{sT0}, s{sT0}, s{sWV}\ns_lshl_b32 s{sT0}, s{sT0}, 10\ns_add_u32 s{sT0}, s{sT0}, {WS_OBUF:#x}\ns_add_u32 s{sT1}, s{sT0}, 0x8000')
        a(f'buffer_store_dwordx4 v[4:7], v{vL16}, s[{SWS}:{SWS+3}], s{sT0} offen sc1\nbuffer_store_dwordx4 v[4:7], v{vL16}, s[{SWS}:{SWS+3}], s{sT1} offen sc1')
        a('s_waitcnt lgkmcnt(0)\ns_barrier')
        self.stamp(1)
        a(f's_lshl_b32 s{sT0}, s{sWV}, 2\nv_mov_b32 v{vX0}, s{sT0}')
        a(f's_waitcnt vmcnt(0)')
        self.lds_signal(vX0, vX1, 5, F_PL)
        self.get_tag(vEP)
        a(f's_cmp_eq_u32 s{sWV}, 0\ns_cbranch_scc1 L_kvproj')
        a(f's_cmp_eq_u32 s{sWV}, 1\ns_cbranch_scc1 L_poll')
        a(f's_cmp_eq_u32 s{sWV}, 3\ns_cbranch_scc1 L_attn')
        a(f's_cmp_lg_u32 s{sTB}, 0\ns_cbranch_scc1 L_attn')
        a(f'v_mov_b32 v2, s{sTAG}\ns_lshl_b32 s{sT0}, s{sPB}, 14\ns_add_u32 s{sT0}, s{sT0}, {WS_EBUF:#x}')
        for i in range(8):
            a(f'buffer_store_dwordx4 v[0:3], v{vL16}, s[{SWS}:{SWS+3}], s{sT0} offen offset:{(i%4)*1024} sc1')
            if i == 3: a(f's_add_u32 s{sT0}, s{sT0}, 4096')
        a('s_branch L_attn')
        self.kvproj()
        self.poll()
        self.attention()
        self.service()
        a('L_exit:\ns_endpgm')
        return a.finish()

    def wimg_lane_addr(self, vd, vt):
        a = self.a; vLN = self.vLN
        a(f'v_lshrrev_b32 v{vt}, 2, v{vLN}\nv_and_b32 v{vt}, 4, v{vt}\nv_and_b32 v{vd}, 7, v{vLN}\nv_xor_b32 v{vd}, v{vd}, v{vt}\nv_lshlrev_b32 v{vd}, 4, v{vd}')
        a(f'v_lshrrev_b32 v{vt}, 3, v{vLN}\nv_lshl_add_u32 v{vd}, v{vt}, 10, v{vd}')

    def kvproj(self):
        a = self.a; vLN = self.vLN
        a('L_kvproj:')
        vXA, vWA, vT, vU, vF = 140, 141, 142, 143, 144
        a(f's_lshr_b32 s{sT5}, s{sCG}, 1')
        a(f'v_and_b32 v{vT}, 15, v{vLN}\ns_lshl_b32 s{sT0}, s{sT5}, 4\nv_add_u32 v{vT}, s{sT0}, v{vT}\nv_mul_u32_u24 v{vXA}, 1040, v{vT}')
        a(f'v_lshrrev_b32 v{vU}, 4, v{vLN}\nv_lshl_add_u32 v{vXA}, v{vU}, 4, v{vXA}\nv_add_u32 v{vXA}, {L_A1}, v{vXA}')
        a(f'v_and_b32 v{vT}, 15, v{vLN}\nv_lshlrev_b32 v{vWA}, 3, v{vT}\nv_lshl_add_u32 v{vWA}, v{vU}, 8, v{vWA}\nv_add_u32 v{vWA}, {L_ACCD}, v{vWA}')
        a(f'v_and_b32 v{vF}, 3, v{vLN}\nv_lshlrev_b32 v{vF}, 2, v{vF}')
        self.lds_wait(vF, vT, 1, F_PL, sleep=0)
        self.stamp(2)
        for s in range(16):
            a(f'ds_read_b128 v[{8*s}:{8*s+3}], v{vXA} offset:{64*s}')
            a(f'ds_read_b64_tr_b16 v[{8*s+4}:{8*s+5}], v{vWA} offset:{1024*s}')
            a(f'ds_read_b64_tr_b16 v[{8*s+6}:{8*s+7}], v{vWA} offset:{1024*s+128}')
        a(f's_bitcmp1_b32 s{sCG}, 0\ns_cbranch_scc1 L_kv_v')
        D = 128
        def chain(kind):
            for s in range(16):
                rem = 3 * (15 - s)
                if rem <= 15: a(f's_waitcnt lgkmcnt({rem})')
                elif s == 0: a('s_waitcnt lgkmcnt(15)')
                x = f'v[{8*s}:{8*s+3}]'; w = f'v[{8*s+4}:{8*s+7}]'
                A, B = (w, x) if kind == 'k' else (x, w)
                a(f'v_mfma_f32_16x16x32_bf16 v[{D}:{D+3}], {A}, {B}, {"0" if s == 0 else f"v[{D}:{D+3}]"}')
        chain('k')
        a(f's_lshl_b32 s{sT0}, s{sRB}, 1\ns_lshr_b32 s{sT1}, s{sT5}, 1\ns_add_u32 s{sT0}, s{sT0}, s{sT1}\ns_lshl_b32 s{sT0}, s{sT0}, 10')
        a(f's_and_b32 s{sT1}, s{sT5}, 1\ns_lshl_b32 s{sT1}, s{sT1}, 8\ns_add_u32 s{sT0}, s{sT0}, s{sT1}\ns_add_u32 s{sT0}, s{sT0}, {WS_KIMG:#x}')
        a(f'v_and_b32 v{vT}, 15, v{vLN}\nv_lshlrev_b32 v{vT}, 4, v{vT}\nv_and_b32 v{vXA}, 1, v{vU}\nv_lshl_add_u32 v{vT}, v{vXA}, 9, v{vT}')
        a(f'v_lshrrev_b32 v{vXA}, 1, v{vU}\nv_lshl_add_u32 v{vT}, v{vXA}, 3, v{vT}')
        a(f'v_cvt_pk_bf16_f32 v132, v{D}, v{D+1}\nv_cvt_pk_bf16_f32 v133, v{D+2}, v{D+3}')
        a(f'buffer_store_dwordx2 v[132:133], v{vT}, s[{SWS}:{SWS+3}], s{sT0} offen sc1')
        a(f'v_mul_f32 v134, v{D}, v{D}\nv_fmac_f32 v134, v{D+1}, v{D+1}\nv_fmac_f32 v134, v{D+2}, v{D+2}\nv_fmac_f32 v134, v{D+3}, v{D+3}')
        a('v_mov_b32 v135, v134\nv_permlane32_swap_b32 v134, v135\nv_add_f32 v134, v134, v135')
        a('v_mov_b32 v135, v134\nv_permlane16_swap_b32 v134, v135\nv_add_f32 v134, v134, v135')
        a('s_branch L_kv_fin')
        a('L_kv_v:')
        chain('v')
        a(f's_lshl_b32 s{sT0}, s{sRB}, 2\ns_add_u32 s{sT0}, s{sT0}, s{sT5}\ns_lshl_b32 s{sT0}, s{sT0}, 9\ns_add_u32 s{sT0}, s{sT0}, {WS_VIMG:#x}')
        a(f'v_and_b32 v{vT}, 15, v{vLN}\nv_lshlrev_b32 v{vT}, 4, v{vT}\nv_and_b32 v{vXA}, 1, v{vU}\nv_lshl_add_u32 v{vT}, v{vXA}, 3, v{vT}')
        a(f'v_lshrrev_b32 v{vXA}, 1, v{vU}\nv_lshl_add_u32 v{vT}, v{vXA}, 8, v{vT}')
        a(f'v_cvt_pk_bf16_f32 v132, v{D}, v{D+1}\nv_cvt_pk_bf16_f32 v133, v{D+2}, v{D+3}')
        a(f'buffer_store_dwordx2 v[132:133], v{vT}, s[{SWS}:{SWS+3}], s{sT0} offen sc1')
        a(f'v_max3_f32 v134, |v{D}|, |v{D+1}|, |v{D+2}|\nv_max_f32 v134, |v{D+3}|, v134')
        a(f's_mov_b32 s{sT1}, {f2u(2.0**50):#x}\nv_cmp_lt_f32 vcc, s{sT1}, v134\nv_mov_b32 v135, 0x7f800000\nv_cndmask_b32 v134, 0, v135, vcc')
        a('L_kv_fin:')
        a(f'v_mov_b32 v{vF}, 0')
        self.lds_signal(vF, vT, 1, F_KVD)
        a(f'ds_max_u32 v{vF}, v134 offset:{F_KST}\nds_read_b32 v137, v{vF} offset:{F_KST}\nv_mov_b32 v136, s{sTAG}')
        a(f's_lshl_b32 s{sT0}, s2, 3\ns_add_u32 s{sT0}, s{sT0}, {WS_KVFLAG:#x}')
        a('s_waitcnt vmcnt(0) lgkmcnt(0)')
        a(f's_mov_b64 exec, 1\nbuffer_store_dwordx2 v[136:137], off, s[{SWS}:{SWS+3}], s{sT0} sc1\ns_mov_b64 exec, -1')
        self.stamp(3)
        a('s_branch L_attn')

    def poll(self):
        a = self.a; vLN, vL16 = self.vLN, self.vL16
        a('L_poll:')
        vF, vT = 140, 141
        a(f'v_and_b32 v{vF}, 7, v{vLN}\nv_lshlrev_b32 v{vF}, 2, v{vF}')
        self.lds_wait(vF, vT, 4, F_LD, sleep=1)
        self.stamp(2)
        a(f's_mov_b32 s{sCNT}, 100000\ns_mov_b32 s{sT0}, {WS_KVFLAG:#x}')
        a('L_poll_l:')
        a(f'buffer_load_dwordx4 v[0:3], v{vL16}, s[{SWS}:{SWS+3}], s{sT0} offen sc1')
        a(f'buffer_load_dwordx4 v[4:7], v{vL16}, s[{SWS}:{SWS+3}], s{sT0} offen offset:1024 sc1')
        a('s_waitcnt vmcnt(0)')
        a(f'v_cmp_ne_u32 vcc, s{sTAG}, v0\nv_cmp_ne_u32 s[{sM0}:{sM0+1}], s{sTAG}, v2\ns_or_b64 vcc, vcc, s[{sM0}:{sM0+1}]')
        a(f'v_cmp_ne_u32 s[{sM0}:{sM0+1}], s{sTAG}, v4\ns_or_b64 vcc, vcc, s[{sM0}:{sM0+1}]')
        a(f'v_cmp_ne_u32 s[{sM0}:{sM0+1}], s{sTAG}, v6\ns_or_b64 vcc, vcc, s[{sM0}:{sM0+1}]')
        a(f's_cbranch_scc0 L_poll_d\ns_sleep 6\ns_sub_u32 s{sCNT}, s{sCNT}, 1\ns_cbranch_scc0 L_poll_l')
        a('L_poll_d:')
        a(f'v_mov_b32 v{vF}, 0')
        self.lds_signal(vF, vT, 1, F_KVR)
        self.stamp(3)
        a(f'v_max_u32 v1, v1, v3\nv_max3_u32 v1, v1, v5, v7\nds_max_u32 v{vF}, v1 offset:{F_KMAX}\nds_write_b32 v{vF}, v{vT} offset:{F_KMR}')
        a(f's_cmp_lg_u32 s2, 0\ns_cbranch_scc1 L_attn')
        a(f'v_mov_b32 v0, s{sTAG}\ns_mov_b64 exec, 1\nbuffer_store_dword v0, off, s[{SWS}:{SWS+3}], 0 sc1\ns_mov_b64 exec, -1')
        a('s_waitcnt vmcnt(0)')
        a('s_branch L_attn')

    def attention(self):
        a = self.a; vLN, vL16 = self.vLN, self.vL16
        K, V, S0, O, Q = 0, 32, 96, 128, 144
        vIDX, vA16, vA8, vQA, vL8, vT, vF, vM = 148, 149, 150, 151, 152, 153, 154, 155
        MB = 156
        a('L_attn:')
        a(f'v_and_b32 v{vF}, 27, v{vLN}\nv_cmp_eq_u32 vcc, 16, v{vF}\nv_mov_b32 v{vF}, 0x3f803f80\nv_cndmask_b32 v{vT}, 0, v{vF}, vcc')
        for i in range(64): a(f'v_mov_b32 v{V+i}, v{vT}')
        for i in range(16): a(f'v_mov_b32 v{O+i}, 0')
        a(f'v_mov_b32 v{vIDX}, 0xdddd\nv_lshlrev_b32 v{vL8}, 3, v{vLN}')
        a(f's_and_b32 s{sPOS}, s{sWV}, 3\ns_lshl_b32 s{sPOS}, s{sPOS}, 1\ns_lshr_b32 s{sT0}, s{sWV}, 2\ns_add_u32 s{sPOS}, s{sPOS}, s{sT0}')
        a(f's_mov_b32 s{sTJ}, s{sPOS}\ns_mov_b32 s{sPH}, 0')
        a(f'v_and_b32 v{vA8}, 31, v{vLN}\nv_lshlrev_b32 v{vA8}, 4, v{vA8}\nv_lshrrev_b32 v{vT}, 5, v{vLN}\nv_lshl_add_u32 v{vA8}, v{vT}, 8, v{vA8}')
        a(f's_lshl_b32 s{sT0}, s{sWV}, 13\ns_add_u32 s{sT1}, s{sT0}, {WS_VIMG:#x}\ns_add_u32 s{sT0}, s{sT0}, {WS_KIMG:#x}')
        a(f's_mov_b32 s{sM0}, 0xffff\ns_mov_b32 s{sM0+1}, 0xffff')
        a(f'v_mov_b32 v{vF}, 0')
        a('s_waitcnt vmcnt(0)')
        self.lds_wait(vF, vT, 1, F_KVR, sleep=1)
        self.stamp(4)
        for i in range(8):
            a(f'buffer_load_dwordx4 v[{K+4*i}:{K+4*i+3}], v{vL16}, s[{SWS}:{SWS+3}], s{sT0} offen offset:{(i%4)*1024} sc1')
            a(f's_mov_b64 exec, s[{sM0}:{sM0+1}]')
            a(f'buffer_load_dwordx4 v[{V+8*i}:{V+8*i+3}], v{vA8}, s[{SWS}:{SWS+3}], s{sT1} offen offset:{(i%4)*1024} sc1')
            a(f'buffer_load_dwordx4 v[{V+8*i+4}:{V+8*i+7}], v{vA8}, s[{SWS}:{SWS+3}], s{sT1} offen offset:{(i%4)*1024+512} sc1')
            a('s_mov_b64 exec, -1')
            if i == 3: a(f's_add_u32 s{sT0}, s{sT0}, 4096\ns_add_u32 s{sT1}, s{sT1}, 4096')
        a(f's_lshl_b32 s{sT0}, s{sWV}, 2\nv_mov_b32 v{vM}, s{sT0}')
        self.lds_signal(vM, vT, 1, F_AT)
        a(f'v_and_b32 v{vF}, 7, v{vLN}\nv_min_u32 v{vF}, 6, v{vF}\nv_lshlrev_b32 v{vF}, 2, v{vF}')
        self.lds_wait(vF, vT, 1, F_SV, sleep=1)
        self.stamp(5)
        a(f'v_lshlrev_b32 v{vF}, 2, v{vLN}\nv_mov_b32 v{vA16}, 0')
        a(f'ds_read_b32 v{S0}, v{vF} offset:{L_QN}\nds_read_b32 v{S0+1}, v{vF} offset:{L_QN+256}\nds_read_b32 v{S0+2}, v{vA16} offset:{F_KMAX}')
        a(f's_lshl_b32 s{sT0}, s{sTJ}, 10\nv_add_u32 v{vQA}, s{sT0}, v{vL16}\nds_read_b128 v[{Q}:{Q+3}], v{vQA} offset:{L_QF}')
        a(f's_lshl_b32 s{sT0}, s{sTJ}, 11\nv_add_u32 v{vA16}, s{sT0}, v{vL16}\ns_lshl_b32 s{sT0}, s{sTJ}, 9\nv_add_u32 v{vA8}, s{sT0}, v{vL8}')
        a('s_waitcnt lgkmcnt(0)')
        a(f'v_max_f32 v{S0}, v{S0}, v{S0+1}\nv_mul_f32 v{S0}, v{S0}, v{S0+2}\ns_mov_b32 s{sT0}, {f2u(3400.0):#x}\nv_cmp_nge_f32 vcc, s{sT0}, v{S0}\ns_cbranch_vccnz L_slow')
        R = dict(K=K, V=V, S0=S0, O=O, Q=Q, vIDX=vIDX, vA16=vA16, vA8=vA8, vQA=vQA, vL8=vL8, vT=vT, vF=vF, vM=vM)
        self.attn_loop(R, False)
        a('L_attn_epi:')
        self.stamp(6)
        a(f'v_rcp_f32 v{vT}, v{O+8}')
        for r in range(8): a(f'v_mul_f32 v{O+r}, v{O+r}, v{vT}')
        for r in range(4): a(f'v_cvt_pk_bf16_f32 v{S0+r}, v{O+2*r}, v{O+2*r+1}')
        a(f's_and_b32 s{sT0}, s{sTJ}, 1\ns_xor_b32 s{sT0}, s{sT0}, 1\ns_lshl_b32 s{sT1}, s{sRB}, 1\ns_add_u32 s{sT0}, s{sT0}, s{sT1}\ns_lshl_b32 s{sT0}, s{sT0}, 5')
        a(f's_lshl_b32 s{sT1}, s{sCG}, 2\ns_add_u32 s{sT0}, s{sT0}, s{sT1}\ns_lshr_b32 s{sT1}, s{sTJ}, 1\ns_add_u32 s{sT0}, s{sT0}, s{sT1}')
        a(f's_lshl_b32 s{sT1}, s{sT0}, 10\ns_add_u32 s{sT1}, s{sT1}, {WS_OBUF:#x}\ns_lshl_b32 s{sT0}, s{sT0}, 2\ns_add_u32 s{sT0}, s{sT0}, {WS_OFLAG:#x}')
        a(f'buffer_store_dwordx4 v[{S0}:{S0+3}], v{vL16}, s[{SWS}:{SWS+3}], s{sT1} offen sc1')
        a(f's_lshl_b32 s{sT0}, s{sWV}, 2\nv_mov_b32 v{vM}, s{sT0}\ns_waitcnt vmcnt(0)')
        self.lds_signal(vM, vT, 9, F_AT)
        self.end(vT)
        a('L_slow:')
        a('s_waitcnt vmcnt(0)')
        a(f's_mov_b32 s{sT2}, 0\ns_lshl_b32 s{sT3}, s{sWV}, 11\nv_lshlrev_b32 v{vF}, 2, v{vLN}\nv_add_u32 v{vM}, s{sT3}, v{vF}')
        a('L_slow_pre:')
        a(f's_lshl_b32 s{sT0}, s{sT2}, 10\nv_add_u32 v{vT}, s{sT0}, v{vL16}\nds_read_b128 v[{S0+16}:{S0+19}], v{vT} offset:{L_QF}\ns_waitcnt lgkmcnt(0)')
        a(f'v_mov_b32 v{S0+20}, 0xff800000')
        for i in range(8):
            a(f'v_mfma_f32_32x32x16_bf16 v[{S0}:{S0+15}], v[{K+4*i}:{K+4*i+3}], v[{S0+16}:{S0+19}], 0')
            for r in range(0, 16, 2): a(f'v_max3_f32 v{S0+20}, v{S0+r}, v{S0+r+1}, v{S0+20}')
        a(f'v_mov_b32 v{S0+21}, v{S0+20}\nv_permlane32_swap_b32 v{S0+20}, v{S0+21}\nv_max_f32 v{S0+20}, v{S0+20}, v{S0+21}')
        a(f'ds_write_b32 v{vM}, v{S0+20} offset:{L_ACCD}\nv_add_u32 v{vM}, 256, v{vM}')
        a(f's_add_u32 s{sT2}, s{sT2}, 1\ns_cmp_lt_u32 s{sT2}, 8\ns_cbranch_scc1 L_slow_pre')
        a(f's_lshl_b32 s{sT0}, s{sWV}, 2\nv_mov_b32 v{S0+22}, s{sT0}')
        self.lds_signal(S0 + 22, vT, 2, F_AT)
        a(f'v_and_b32 v{S0+23}, 7, v{vLN}\nv_lshlrev_b32 v{S0+23}, 2, v{S0+23}')
        self.lds_wait(S0 + 23, vT, 2, F_AT)
        MR = [vM, 156, 157, 158, 159, 163, 164, 165]
        for ph in range(8):
            a(f's_sub_u32 s{sT0}, s{sPOS}, {ph}\ns_and_b32 s{sT0}, s{sT0}, 7\ns_lshl_b32 s{sT0}, s{sT0}, 8\nv_add_u32 v{vT}, s{sT0}, v{vF}')
            for w in range(8): a(f'ds_read_b32 v{S0+w}, v{vT} offset:{L_ACCD + 2048*w}')
            a('s_waitcnt lgkmcnt(0)')
            a(f'v_max3_f32 v{S0}, v{S0}, v{S0+1}, v{S0+2}\nv_max3_f32 v{S0}, v{S0}, v{S0+3}, v{S0+4}\nv_max3_f32 v{S0}, v{S0}, v{S0+5}, v{S0+6}\nv_max_f32 v{MR[ph]}, v{S0}, v{S0+7}')
        self.lds_signal(S0 + 22, vT, 3, F_AT)
        self.lds_wait(S0 + 23, vT, 3, F_AT)
        R['MR'] = MR
        self.attn_loop(R, True)
        a('s_branch L_attn_epi')

    def attn_loop(self, R, slow):
        a = self.a; vL16 = self.vL16
        K, V, S0, O, Q = R['K'], R['V'], R['S0'], R['O'], R['Q']
        vIDX, vA16, vA8, vQA, vL8, vT, vM = R['vIDX'], R['vA16'], R['vA8'], R['vQA'], R['vL8'], R['vT'], R['vM']
        sf = '_s' if slow else '_f'
        def Sb(i): return S0 + 16 * (i % 2)
        def E(i, r):
            s = Sb(i) + r
            return (f'v_sub_f32 v{s}, v{s}, v{vM}\n' if slow else '') + f'v_exp_f32 v{s}, v{s}'
        def QK(i): return f'v_mfma_f32_32x32x16_bf16 v[{Sb(i)}:{Sb(i)+15}], v[{K+4*(i%8)}:{K+4*(i%8)+3}], v[{Q}:{Q+3}], 0'
        def PV(i, h): return f'v_smfmac_f32_32x32x32_bf16 v[{O}:{O+15}], v[{V+8*(i%8)+4*h}:{V+8*(i%8)+4*h+3}], v[{Sb(i)+8*h}:{Sb(i)+8*h+7}], v{vIDX}'
        def vm(n): return f's_waitcnt vmcnt({n})'
        def plain(i, first=False):
            e = [E(i, r) for r in range(16)]
            w = [vm(max(0, 23 - 3 * (i + 1)))] if i < 7 else [vm(0), 's_waitcnt lgkmcnt(0)']
            pr = {4: ['s_setprio 1'], 6: ['s_setprio 0']}.get(i, []) if 'noprio' not in OPT else []
            seq = pr + e[0:2] + ([] if first else [PV(i - 1, 1)]) + e[2:5] + w + [QK(i + 1)]
            if i == 6:
                seq += [f's_sub_u32 s{sT2}, s{sTJ}, 1\ns_and_b32 s{sT2}, s{sT2}, 7\ns_lshl_b32 s{sT0}, s{sT2}, 10\nv_add_u32 v{vQA}, s{sT0}, v{vL16}',
                        f'ds_read_b128 v[{Q}:{Q+3}], v{vQA} offset:{L_QF}']
            seq += e[5:11] + [PV(i, 0)] + e[11:16]
            for x in seq: a(x)
        a('s_setprio 2'); a(vm(23)); a(QK(0))
        plain(0, True); plain(1)
        a('.p2align 6')
        a(f'L_loop{sf}:')
        for i in range(2, 8): plain(i)
        a(f's_cmp_eq_u32 s{sPH}, 7\ns_cbranch_scc1 L_fin{sf}')
        a(f's_add_u32 s{sPH}, s{sPH}, 1\ns_mov_b32 s{sTJ}, s{sT2}')
        if slow:
            MR = R['MR']
            for q in range(7): a(f'v_mov_b32 v{MR[q]}, v{MR[q+1]}')
        e = [E(0, r) for r in range(16)]
        for x in e[0:2] + [PV(7, 1)] + e[2:5] + [QK(1)] + e[5:13]: a(x)
        a(f'v_mov_b32 v{O+9}, s{sPH}')
        a(f'ds_write_b128 v{vA16}, v[{O}:{O+3}] offset:{L_ACCD}\nds_write_b128 v{vA16}, v[{O+4}:{O+7}] offset:{L_ACCD+1024}\nds_write_b64 v{vA8}, v[{O+8}:{O+9}] offset:{L_ACCF}')
        a(f's_lshl_b32 s{sT0}, s{sTJ}, 9\nv_add_u32 v{vA8}, s{sT0}, v{vL8}\ns_lshl_b32 s{sT0}, s{sTJ}, 11\nv_add_u32 v{vA16}, s{sT0}, v{vL16}')
        rd = f'ds_read_b64 v[{O+8}:{O+9}], v{vA8} offset:{L_ACCF}\nds_read_b128 v[{O}:{O+3}], v{vA16} offset:{L_ACCD}\nds_read_b128 v[{O+4}:{O+7}], v{vA16} offset:{L_ACCD+1024}'
        a(rd)
        for x in e[13:16]: a(x)
        e = [E(1, r) for r in range(16)]
        for x in e[0:8]: a(x)
        a(f's_mov_b32 s{sCNT}, {SPIN}')
        a(f'L_hw{sf}:')
        a(f's_waitcnt lgkmcnt(0)\nv_cmp_gt_u32 vcc, s{sPH}, v{O+9}\ns_cbranch_vccz L_hd{sf}')
        if 'nohand' in OPT: a(f's_branch L_hd{sf}')
        a(f's_sleep 1\n{rd}\ns_sub_u32 s{sCNT}, s{sCNT}, 1\ns_cbranch_scc0 L_hw{sf}\ns_waitcnt lgkmcnt(0)')
        a(f'L_hd{sf}:')
        a('s_setprio 2')
        for x in [PV(0, 0)] + e[8:11] + [PV(0, 1)] + e[11:14] + [QK(2)] + e[14:16] + [PV(1, 0)]: a(x)
        a('s_nop 7')
        a(f's_branch L_loop{sf}')
        a(f'L_fin{sf}:')
        a('s_nop 0')
        a(PV(7, 1))
        a('s_nop 11')

    def service_param_loads(self):
        a = self.a; vLN = self.vLN
        a(f'v_and_b32 v150, 31, v{vLN}\nv_lshlrev_b32 v150, 1, v150\ns_lshl_b32 s{sT0}, s{sPB}, 6')
        for k, (p, v) in enumerate(((6, 140), (7, 141), (12, 142))):
            self.srd(SA, P(p), 1024)
            a(f'buffer_load_ushort v{v}, v150, s[{SA}:{SA+3}], s{sT0} offen')
        self.srd(SA, P(13), 1024)
        a(f's_lshl_b32 s{sT0}, s{sCG}, 7\ns_and_b32 s{sT1}, s{sWV}, 1\ns_lshl_b32 s{sT1}, s{sT1}, 6\ns_add_u32 s{sT0}, s{sT0}, s{sT1}')
        a(f'buffer_load_ushort v143, v150, s[{SA}:{SA+3}], s{sT0} offen')

    def service(self):
        a = self.a; vLN, vL16, vEP = self.vLN, self.vL16, self.vEP
        LR, LI, L16R, L16I, L128R, L128I, FR, FI, WR, WI, CR, CI = range(140, 152)
        DG = 152
        vT, vU, vF, vS, vW = 163, 164, 165, 166, 167
        a('L_service:')
        self.cyc = False
        a('s_setprio 3')
        a(f's_lshl_b32 s{sT0}, s{sSW}, 2\nv_mov_b32 v{vS}, s{sT0}')
        a(f's_sub_u32 s{sSW}, s{sWV}, 8')
        a('s_waitcnt vmcnt(14)')
        self.get_tag(vEP)
        a('v_lshlrev_b32 v0, 16, v140\nv_lshlrev_b32 v1, 16, v141\nv_lshlrev_b32 v2, 16, v142\nv_mov_b32 v3, v143')
        LOG2E = f2u(math.log2(math.e)); INV2PI = f2u(1 / (2 * math.pi))
        a(f'v_mul_f32 v2, {LOG2E:#x}, v2\nv_exp_f32 v2, v2\nv_cvt_pk_bf16_f32 v2, v2, v2\nv_lshlrev_b32 v2, 16, v2')
        a(f'v_mul_f32 v4, v2, v0\nv_mul_f32 v5, v2, v1\nv_mul_f32 v4, {LOG2E:#x}, v4\nv_mul_f32 v5, {f2u(-1/(2*math.pi)):#x}, v5')
        def power(dr, di, n):
            a(f'v_mul_f32 v6, {n}, v4\nv_mul_f32 v7, {n}, v5\nv_exp_f32 v6, v6\nv_fract_f32 v7, v7\nv_cos_f32 v8, v7\nv_sin_f32 v9, v7\nv_mul_f32 v{dr}, v6, v8\nv_mul_f32 v{di}, v6, v9')
        power(LR, LI, '1.0')
        power(L16R, L16I, f'{f2u(16.0):#x}')
        power(L128R, L128I, f'{f2u(128.0):#x}')
        a(f'v_lshrrev_b32 v10, 5, v{vLN}\nv_cvt_f32_u32 v11, v10\nv_mul_f32 v11, {f2u(1024.0):#x}, v11')
        power(FR, FI, 'v11')
        a(f's_lshl_b32 s{sT0}, s{sSW}, 1\nv_add_u32 v11, s{sT0}, v10\nv_cvt_f32_u32 v11, v11\nv_mul_f32 v11, {f2u(16.0):#x}, v11')
        power(WR, WI, 'v11')
        a(f'v_add_f32 v6, -1.0, v{LR}\nv_mul_f32 v7, v0, v0\nv_fmac_f32 v7, v1, v1\nv_rcp_f32 v7, v7\nv_add_f32 v7, v7, v7')
        a(f'v_mul_f32 v8, v6, v0\nv_fma_f32 v8, -v{LI}, v1, v8\nv_mul_f32 v9, v6, v1\nv_fma_f32 v9, -v{LI}, v0, -v9\nv_mul_f32 v{CR}, v8, v7\nv_mul_f32 v{CI}, v9, v7')
        a(f'v_and_b32 v6, 1, v{vLN}\nv_lshlrev_b32 v6, 4, v6\nv_lshlrev_b32 v3, v6, v3')
        a(f'v_and_b32 v6, 31, v{vLN}\nv_lshrrev_b32 v6, 1, v6\nv_lshlrev_b32 v7, 2, v10\nv_sub_u32 v6, v6, v7')
        for q in range(8):
            a(f'v_cmp_eq_u32 vcc, {8*(q//4) + q%4}, v6\nv_cndmask_b32 v{DG+q}, 0, v3, vcc')
        vWA, vXA = 130, 131
        self.tr_addr(vWA, vT, vU, 8, L_A2)
        a(f's_lshr_b32 s{sT0}, s{sSW}, 1\ns_lshl_b32 s{sT0}, s{sT0}, 5')
        self.row_addr(vXA, vT, sT0, L_A1)
        a(f'v_and_b32 v{vF}, 15, v{vLN}\nv_min_u32 v{vF}, 11, v{vF}\nv_lshlrev_b32 v{vF}, 2, v{vF}')
        D = 112
        for ch in range(4):
            a(f's_waitcnt vmcnt({6 - 2*ch})')
            self.lds_signal(vS, vT, 2 + ch, F_LD)
            self.lds_wait(vF, vT, 2 + ch, F_LD, sleep=1)
            if ch == 0: self.stamp(2)
            for u in range(8):
                s = 8 * ch + u
                a(f'ds_read_b64_tr_b16 v[{8*u}:{8*u+1}], v{vWA} offset:{2048*s}\nds_read_b64_tr_b16 v[{8*u+2}:{8*u+3}], v{vWA} offset:{2048*s+512}')
                a(f'ds_read_b128 v[{8*u+4}:{8*u+7}], v{vXA} offset:{32*s}')
            for u in range(8):
                rem = 3 * (7 - u)
                if rem <= 15: a(f's_waitcnt lgkmcnt({rem})')
                elif u == 0: a('s_waitcnt lgkmcnt(15)')
                a(f'v_mfma_f32_32x32x16_bf16 v[{D}:{D+15}], v[{8*u}:{8*u+3}], v[{8*u+4}:{8*u+7}], {"0" if ch == 0 and u == 0 else f"v[{D}:{D+15}]"}')
        QS = f2u(0.25 * math.log2(math.e))
        for r in range(16): a(f'v_mul_f32 v{D+r}, {QS:#x}, v{D+r}')
        for r in range(8): a(f'v_cvt_pk_bf16_f32 v{r}, v{D+2*r}, v{D+2*r+1}')
        a(f's_and_b32 s{sT0}, s{sSW}, 1\ns_lshl_b32 s{sT0}, s{sT0}, 2\ns_lshr_b32 s{sT1}, s{sSW}, 1\ns_xor_b32 s{sT1}, s{sT1}, 1\ns_add_u32 s{sT0}, s{sT0}, s{sT1}\ns_lshl_b32 s{sT0}, s{sT0}, 10')
        a(f'v_add_u32 v{vT}, s{sT0}, v{vL16}\nds_write_b128 v{vT}, v[0:3] offset:{L_QF}\nds_write_b128 v{vT}, v[4:7] offset:{L_QF+2048}')
        a(f'v_mul_f32 v8, v{D}, v{D}\nv_mul_f32 v9, v{D+8}, v{D+8}')
        for r in range(1, 8): a(f'v_fmac_f32 v8, v{D+r}, v{D+r}\nv_fmac_f32 v9, v{D+8+r}, v{D+8+r}')
        a('v_permlane32_swap_b32 v8, v9\nv_add_f32 v8, v8, v9')
        a('v_mov_b32 v9, v8\nv_permlane32_swap_b32 v8, v9\nv_max_f32 v8, v8, v9')
        a(f'v_and_b32 v{vT}, 31, v{vLN}\nv_lshlrev_b32 v{vT}, 2, v{vT}\ns_lshl_b32 s{sT0}, s{sSW}, 7\nv_add_u32 v{vT}, s{sT0}, v{vT}\nds_write_b32 v{vT}, v8 offset:{L_QN}')
        a(f's_lshl_b32 s{sT0}, s{sSW}, 2\nv_mov_b32 v{vS}, s{sT0}')
        self.lds_signal(vS, vT, 1, F_SV)
        self.stamp(3)
        if 'nosvc' in OPT:
            self.end(vT); return
        a(f'v_and_b32 v{vF}, 7, v{vLN}\nv_min_u32 v{vF}, 4, v{vF}\nv_lshlrev_b32 v{vF}, 2, v{vF}')
        self.lds_wait(vF, vT, 1, F_SV, sleep=1)
        a(f'v_and_b32 v{vF}, 7, v{vLN}\nv_lshlrev_b32 v{vF}, 2, v{vF}')
        self.lds_wait(vF, vT, 1, F_AT, sleep=2)
        self.stamp(14)
        a(f'v_and_b32 v{vF}, 3, v{vLN}\nv_lshlrev_b32 v{vF}, 2, v{vF}')
        self.srd(SA, P(5), 2048 * 1024)
        self.srd(SB, P(8), 512 * 1024)
        self.srd(SC, P(9), 512 * 1024)
        vXD, vXR, vBR = 130, 131, 132
        a(f'v_lshrrev_b32 v{vT}, 5, v{vLN}\nv_and_b32 v{vXD}, 31, v{vLN}\nv_xor_b32 v{vXD}, v{vXD}, v{vT}\nv_lshlrev_b32 v{vXD}, 4, v{vXD}\nv_lshl_add_u32 v{vXD}, v{vT}, 10, v{vXD}')
        sXB, sXL = sT4, sT5
        a(f's_lshl_b32 s{sXB}, s{sTB}, 2\ns_add_u32 s{sXB}, s{sXB}, s{sSW}\ns_lshl_b32 s{sXB}, s{sXB}, 15')
        a(f's_mul_i32 s{sXL}, s{sSW}, {XW}\ns_add_u32 s{sXL}, s{sXL}, {L_A2}')
        def tmap(i): return (i & 3) | ((i >> 3) << 2) | (((i >> 2) & 1) << 4)
        def xdma(half):
            for m in range(16):
                a(f's_add_u32 m0, s{sXL}, {1056*m}\ns_add_u32 s{sT0}, s{sXB}, {tmap(2*m)*1024 + 512*half}')
                a(f'buffer_load_dwordx4 v{vXD}, s[{SA}:{SA+3}], s{sT0} offen lds')
        xdma(0)
        a(f's_mul_i32 s{sT1}, s{sSW}, {8*1040}\ns_lshl_b32 s{sT2}, s{sPB}, 15\ns_lshl_b32 s{sT3}, s{sSW}, 13\ns_add_u32 s{sT2}, s{sT2}, s{sT3}')
        for pl, srd in ((0, SB), (1, SC)):
            for m in range(8):
                a(f's_add_u32 m0, s{sT1}, {L_A1 + (32*pl + m)*1040}\ns_add_u32 s{sT0}, s{sT2}, {1024*m}')
                a(f'buffer_load_dwordx4 v{vL16}, s[{srd}:{srd+3}], s{sT0} offen lds')
        a(f'v_and_b32 v{vT}, 31, v{vLN}\nv_lshrrev_b32 v{vU}, 1, v{vT}\nv_mul_u32_u24 v{vXR}, 1056, v{vU}\nv_and_b32 v{vT}, 1, v{vT}\nv_lshl_add_u32 v{vXR}, v{vT}, 9, v{vXR}')
        a(f'v_lshrrev_b32 v{vU}, 5, v{vLN}\nv_xor_b32 v{vT}, v{vT}, v{vU}\nv_lshl_add_u32 v{vXR}, v{vT}, 4, v{vXR}\nv_add_u32 v{vXR}, s{sXL}, v{vXR}')
        a(f's_mov_b32 s{sT0}, 0')
        self.row_addr(vBR, vT, sT0, L_A1)
        a('s_waitcnt vmcnt(16)')
        self.stamp(4)
        for s in range(16): a(f'ds_read_b128 v[{4*s}:{4*s+3}], v{vXR} offset:{32*s}')
        a('s_waitcnt lgkmcnt(0)')
        xdma(1)
        a('s_waitcnt vmcnt(16)')
        self.lds_signal(vS, vT, 2, F_SV)
        self.lds_wait(vF, vT, 2, F_SV, sleep=1)
        self.stamp(5)
        GR, GI, BT = 96, 112, 64
        def bread(s): a(f'ds_read_b128 v[{BT+8*(s%4)}:{BT+8*(s%4)+3}], v{vBR} offset:{32*s}\nds_read_b128 v[{BT+8*(s%4)+4}:{BT+8*(s%4)+7}], v{vBR} offset:{32*1040+32*s}')
        def mm(s):
            x = f'v[{4*(s%16)}:{4*(s%16)+3}]'
            a(f'v_mfma_f32_32x32x16_bf16 v[{GR}:{GR+15}], {x}, v[{BT+8*(s%4)}:{BT+8*(s%4)+3}], {"0" if s == 0 else f"v[{GR}:{GR+15}]"}')
            a(f'v_mfma_f32_32x32x16_bf16 v[{GI}:{GI+15}], {x}, v[{BT+8*(s%4)+4}:{BT+8*(s%4)+7}], {"0" if s == 0 else f"v[{GI}:{GI+15}]"}')
        for half in range(2):
            if half == 1:
                a('s_waitcnt vmcnt(0)')
                for s in range(16): a(f'ds_read_b128 v[{4*s}:{4*s+3}], v{vXR} offset:{32*s}')
            s0 = 16 * half
            bread(s0); bread(s0 + 1); bread(s0 + 2)
            for s in range(s0, s0 + 16):
                left = min(2, s0 + 15 - s)
                a(f's_waitcnt lgkmcnt({2*left})')
                mm(s)
                if s + 3 < s0 + 16: bread(s + 3)
        self.stamp(6)
        for r in range(16):
            a(f'v_mul_f32 v0, v{CI}, v{GI+r}\nv_mul_f32 v1, v{CI}, v{GR+r}\nv_fma_f32 v{GR+r}, v{CR}, v{GR+r}, -v0\nv_fma_f32 v{GI+r}, -v{CR}, v{GI+r}, -v1')
        def cstep(dr, di, sr, si, lr, li, ur, ui, t0=0, t1=1):
            a(f'v_fma_f32 v{t0}, -v{li}, v{si}, v{ur}\nv_fma_f32 v{t1}, v{li}, v{sr}, v{ui}\nv_fma_f32 v{dr}, v{lr}, v{sr}, v{t0}\nv_fma_f32 v{di}, v{lr}, v{si}, v{t1}')
        ER, EI = 2, 3
        cstep(ER, EI, GR, GI, LR, LI, GR + 1, GI + 1)
        for r in range(2, 16): cstep(ER, EI, ER, EI, LR, LI, GR + r, GI + r)
        a(f'v_lshlrev_b32 v{vT}, 3, v{vLN}\nv_add_u32 v{vT}, s{sXL}, v{vT}\nds_write_b64 v{vT}, v[{ER}:{EI}] offset:{L_SXO}')
        self.lds_signal(vS, vT, 3, F_SV)
        self.lds_wait(vF, vT, 3, F_SV, sleep=1)
        a(f'v_and_b32 v{vT}, 31, v{vLN}\nv_lshlrev_b32 v{vT}, 3, v{vT}\nv_add_u32 v{vT}, {L_A2}, v{vT}')
        for c in range(7): a(f'ds_read_b64 v[{8+2*c}:{9+2*c}], v{vT} offset:{(c//2)*XW + L_SXO + (c%2)*256}')
        self.srd(SB, P(10), 512 * 1024)
        self.srd(SC, P(11), 512 * 1024)
        def cdma(srd, base):
            a(f's_mul_i32 s{sT1}, s{sSW}, {16*1040}\ns_lshl_b32 s{sT2}, s{sCG}, 16\ns_lshl_b32 s{sT3}, s{sSW}, 14\ns_add_u32 s{sT2}, s{sT2}, s{sT3}')
            for m in range(16):
                a(f's_add_u32 m0, s{sT1}, {base + m*1040}\ns_add_u32 s{sT0}, s{sT2}, {1024*m}')
                a(f'buffer_load_dwordx4 v{vL16}, s[{srd}:{srd+3}], s{sT0} offen lds')
        LCR, LCI = 4, 5
        a(f'v_mov_b32 v{LCR}, 0\nv_mov_b32 v{LCI}, 0\ns_lshl_b32 s{sT3}, s{sSW}, 1\ns_mov_b32 s{sM0}, 0\ns_mov_b32 s{sM0+1}, -1')
        a('s_waitcnt lgkmcnt(0)')
        self.lds_signal(vS, vT, 4, F_SV)
        for c in range(7):
            a(f's_cmp_lt_u32 s{sT3}, {c}\ns_cbranch_scc1 L_lh_done')
            a(f's_cmp_gt_u32 s{sT3}, {c}\ns_cselect_b64 exec, -1, s[{sM0}:{sM0+1}]')
            cstep(LCR, LCI, LCR, LCI, L16R, L16I, 8 + 2 * c, 9 + 2 * c)
        a('L_lh_done:\ns_mov_b64 exec, -1')
        a(f's_cmp_lg_u32 s{sSW}, 3\ns_cbranch_scc1 L_noE')
        cstep(8, 9, LCR, LCI, L16R, L16I, ER, EI)
        a(f'v_mov_b32 v10, s{sTAG}\nv_mov_b32 v11, 0')
        a(f's_lshl_b32 s{sT0}, s{sPB}, 14\ns_lshl_b32 s{sT1}, s{sTB}, 9\ns_add_u32 s{sT0}, s{sT0}, s{sT1}\ns_add_u32 s{sT0}, s{sT0}, {WS_EBUF + 16*512 - 512:#x}')
        a(f's_mov_b64 exec, s[{sM0}:{sM0+1}]\nbuffer_store_dwordx4 v[8:11], v{vL16}, s[{SWS}:{SWS+3}], s{sT0} offen sc1\ns_mov_b64 exec, -1')
        a('L_noE:')
        self.stamp(7)
        cdma(SB, L_A1)
        a(f'v_and_b32 v{vT}, 31, v{vLN}\nv_lshlrev_b32 v{vW}, 4, v{vT}\nv_lshrrev_b32 v{vT}, 5, v{vLN}\nv_xor_b32 v{vT}, 1, v{vT}\nv_lshl_add_u32 v{vW}, v{vT}, 12, v{vW}')
        a(f's_lshl_b32 s{sT0}, s{sPB}, 14\ns_lshl_b32 s{sT1}, s{sTB}, 9\ns_add_u32 s{sT0}, s{sT0}, s{sT1}\ns_add_u32 s{sT0}, s{sT0}, {WS_EBUF:#x}')
        a(f's_mov_b32 s{sCNT}, 100000')
        a('L_eg:')
        for q in range(8): a(f'buffer_load_dwordx3 v[{8+4*q}:{10+4*q}], v{vW}, s[{SWS}:{SWS+3}], s{sT0} offen offset:{512*q} sc1')
        a('s_waitcnt vmcnt(0)')
        a(f'v_cmp_ne_u32 vcc, s{sTAG}, v10')
        for q in range(1, 8): a(f'v_cmp_ne_u32 s[{sM1}:{sM1+1}], s{sTAG}, v{10+4*q}\ns_or_b64 vcc, vcc, s[{sM1}:{sM1+1}]')
        a(f's_cbranch_scc0 L_egd\ns_sleep 8\ns_sub_u32 s{sCNT}, s{sCNT}, 1\ns_cbranch_scc0 L_eg')
        a('L_egd:')
        self.stamp(8)
        for q in range(1, 8): cstep(8, 9, 8, 9, L128R, L128I, 8 + 4 * q, 9 + 4 * q)
        a(f'v_mul_f32 v12, v{FR}, v8\nv_mul_f32 v13, v{FR}, v9\nv_fma_f32 v12, -v{FI}, v9, v12\nv_fma_f32 v13, v{FI}, v8, v13')
        a('v_mov_b32 v14, v12\nv_mov_b32 v15, v13\nv_permlane32_swap_b32 v12, v14\nv_permlane32_swap_b32 v13, v15\nv_add_f32 v12, v12, v14\nv_add_f32 v13, v13, v15')
        cstep(LCR, LCI, 12, 13, WR, WI, LCR, LCI)
        cstep(GR, GI, LCR, LCI, LR, LI, GR, GI)
        for r in range(1, 16): cstep(GR + r, GI + r, GR + r - 1, GI + r - 1, LR, LI, GR + r, GI + r)
        for r in range(8): a(f'v_cvt_pk_bf16_f32 v{8+r}, v{GR+2*r}, v{GR+2*r+1}\nv_cvt_pk_bf16_f32 v{16+r}, v{GI+2*r}, v{GI+2*r+1}')
        a(f'v_and_b32 v{vT}, 31, v{vLN}\nv_lshlrev_b32 v{vT}, 6, v{vT}\nv_lshrrev_b32 v{vU}, 5, v{vLN}\nv_lshl_add_u32 v{vT}, v{vU}, 5, v{vT}\nv_add_u32 v{vT}, s{sXL}, v{vT}')
        for pl in range(2):
            a(f'ds_write_b128 v{vT}, v[{8+8*pl}:{11+8*pl}] offset:{L_TBO+2048*pl}\nds_write_b128 v{vT}, v[{12+8*pl}:{15+8*pl}] offset:{L_TBO+2048*pl+16}')
        a(f'v_lshrrev_b32 v{vT}, 5, v{vLN}\nv_lshlrev_b32 v{vT}, 9, v{vT}\nv_bfe_u32 v{vU}, v{vLN}, 2, 2\nv_lshl_add_u32 v{vT}, v{vU}, 6, v{vT}')
        a(f'v_bfe_u32 v{vU}, v{vLN}, 4, 1\nv_lshl_add_u32 v{vT}, v{vU}, 5, v{vT}\nv_and_b32 v{vU}, 3, v{vLN}\nv_lshl_add_u32 v{vT}, v{vU}, 3, v{vT}\nv_add_u32 v{vT}, s{sXL}, v{vT}')
        for pl in range(2):
            for f in range(2):
                d = 24 + 8 * pl + 4 * f
                a(f'ds_read_b64_tr_b16 v[{d}:{d+1}], v{vT} offset:{L_TBO+2048*pl+1024*f}\nds_read_b64_tr_b16 v[{d+2}:{d+3}], v{vT} offset:{L_TBO+2048*pl+1024*f+256}')
        a(f's_lshl_b32 s{sT3}, s{sTB}, 2\ns_add_u32 s{sT3}, s{sT3}, s{sSW}')
        a(f's_lshl_b32 s{sT0}, s{sT3}, 16\ns_lshl_b32 s{sT1}, s{sPB}, 11\ns_add_u32 s{sT0}, s{sT0}, s{sT1}\ns_add_u32 s{sT0}, s{sT0}, {WS_HBUF:#x}\ns_add_u32 s{sT1}, s{sT0}, 0x8000')
        a('s_waitcnt lgkmcnt(0)')
        for pl in range(2):
            for f in range(2):
                d = 24 + 8 * pl + 4 * f
                a(f'buffer_store_dwordx4 v[{d}:{d+3}], v{vL16}, s[{SWS}:{SWS+3}], s{sT0 if pl == 0 else sT1} offen offset:{1024*f} sc1')
        a(f's_lshl_b32 s{sT3}, s{sT3}, 4\ns_add_u32 s{sT3}, s{sT3}, s{sPB}\ns_lshl_b32 s{sT3}, s{sT3}, 2\ns_add_u32 s{sT4}, s{sT3}, {WS_HFLAG:#x}')
        self.lds_wait(vF, vT, 4, F_SV, sleep=1)
        a(f'v_mov_b32 v{vT}, s{sTAG}\ns_waitcnt vmcnt(0)')
        a(f's_mov_b64 exec, 1\nbuffer_store_dword v{vT}, off, s[{SWS}:{SWS+3}], s{sT4} sc1\ns_mov_b64 exec, -1')
        self.lds_signal(vS, vT, 5, F_SV)
        self.stamp(9)
        cdma(SC, L_A2)
        vCA, YA, CT = 144, 128, 146
        XF = 0
        a(f'v_and_b32 v{vT}, 31, v{vLN}\nv_lshlrev_b32 v{vT}, 10, v{vT}\nv_lshrrev_b32 v{vU}, 5, v{vLN}\nv_lshl_add_u32 v{vT}, v{vU}, 4, v{vT}')
        a(f's_lshl_b32 s{sT4}, s{sRB}, 1\ns_lshr_b32 s{sT0}, s{sSW}, 1\ns_add_u32 s{sT4}, s{sT4}, s{sT0}')
        a(f's_lshl_b32 s{sT5}, s{sCG}, 1\ns_and_b32 s{sT0}, s{sSW}, 1\ns_add_u32 s{sT5}, s{sT5}, s{sT0}')
        a(f's_lshl_b32 s{sT0}, s{sT4}, 15\ns_lshl_b32 s{sT1}, s{sT5}, 6\ns_add_u32 s{sT0}, s{sT0}, s{sT1}')
        a(f'buffer_load_dwordx4 v[{XF}:{XF+3}], v{vT}, s[{SA}:{SA+3}], s{sT0} offen\nbuffer_load_dwordx4 v[{XF+4}:{XF+7}], v{vT}, s[{SA}:{SA+3}], s{sT0} offen offset:32')
        a(f's_and_b32 s{sT0}, s{sSW}, 1\ns_lshl_b32 s{sT0}, s{sT0}, 5')
        self.row_addr(vCA, vT, sT0, L_A1)
        a(f'v_add_u32 v{vCA+1}, {L_A2 - L_A1}, v{vCA}')
        a('s_waitcnt vmcnt(0)')
        self.lds_signal(vS, vT, 6, F_SV)
        a(f'v_mfma_f32_32x32x16_bf16 v[{YA}:{YA+15}], v[{XF}:{XF+3}], v[{DG}:{DG+3}], 0')
        a(f'v_mfma_f32_32x32x16_bf16 v[{YA}:{YA+15}], v[{XF+4}:{XF+7}], v[{DG+4}:{DG+7}], v[{YA}:{YA+15}]')
        a(f'v_and_b32 v{vW}, 15, v{vLN}\nv_lshlrev_b32 v{vW}, 2, v{vW}\ns_lshl_b32 s{sT0}, s{sT4}, 6\ns_add_u32 s{sT0}, s{sT0}, {WS_HFLAG:#x}')
        self.gpoll(vW, vT, sT0, 'h')
        self.stamp(10)
        a(f's_lshl_b32 s{sT3}, s{sT4}, 16\ns_add_u32 s{sT3}, s{sT3}, {WS_HBUF:#x}')
        def hload(i):
            if i % 4 == 0 and i > 0: a(f's_add_u32 s{sT3}, s{sT3}, 4096')
            a(f'buffer_load_dwordx4 v[{4*(i%32)}:{4*(i%32)+3}], v{vL16}, s[{SWS}:{SWS+3}], s{sT3} offen offset:{1024*(i%4)} sc1')
        for i in range(32): hload(i)
        self.lds_wait(vF, vT, 6, F_SV, sleep=1)
        CTS = [146 + 2, 152, 156]
        def cread(s): a(f'ds_read_b128 v[{CTS[s%3]}:{CTS[s%3]+3}], v{vCA + s//32} offset:{32*(s%32)}')
        cread(0); cread(1)
        for s in range(64):
            if s == 46:
                a('s_waitcnt lgkmcnt(0)')
                self.lds_wait(vF, vT, 7, F_SV, sleep=1)
                self.srd(SB, P(4), 512 * 1024)
                self.wimg_lane_addr(vW, vT)
                a(f's_lshl_b32 s{sT0}, s{sSW}, 17\ns_lshl_b32 s{sT1}, s{sCG}, 7\ns_add_u32 s{sT0}, s{sT0}, s{sT1}\ns_lshl_b32 s{sT1}, s{sSW}, 14\ns_add_u32 m0, s{sT1}, {L_A1}')
                for m in range(16):
                    a(f'buffer_load_dwordx4 v{vW}, s[{SB}:{SB+3}], s{sT0} offen lds')
                    if m < 15: a(f's_add_u32 m0, m0, 1024\ns_add_u32 s{sT0}, s{sT0}, 8192')
            if s < 32: vmw = 31
            elif s < 46: vmw = 63 - s
            else: vmw = 63 - s + 16
            a(f's_waitcnt vmcnt({vmw}) lgkmcnt({1 if s < 63 else 0})')
            a(f'v_mfma_f32_32x32x16_bf16 v[{YA}:{YA+15}], v[{4*(s%32)}:{4*(s%32)+3}], v[{CTS[s%3]}:{CTS[s%3]+3}], v[{YA}:{YA+15}]')
            if s < 32: hload(32 + s)
            if s + 2 < 64: cread(s + 2)
            if s == 32:
                a('s_waitcnt lgkmcnt(0)')
                self.lds_signal(vS, vT, 7, F_SV)
                a('s_waitcnt lgkmcnt(0)')
        self.srd(SOUT, P(14), 2048 * 4096)
        vOA = 146
        a(f'v_and_b32 v{vOA}, 31, v{vLN}\nv_lshlrev_b32 v{vOA}, 2, v{vOA}\nv_lshrrev_b32 v{vT}, 5, v{vLN}\nv_lshl_add_u32 v{vOA}, v{vT}, 14, v{vOA}')
        a(f's_lshl_b32 s{sT2}, s{sT4}, 17\ns_lshl_b32 s{sT1}, s{sT5}, 7\ns_add_u32 s{sT2}, s{sT2}, s{sT1}')
        def store_tile(extra):
            for r in range(16):
                a(f's_add_u32 s{sT0}, s{sT2}, {((r % 4) + 8 * (r // 4)) * 4096}')
                a(f'buffer_store_dword v{YA+r}, v{vOA}, s[{SOUT}:{SOUT+3}], s{sT0} offen offset:{extra}')
        store_tile(2048)
        self.stamp(11)
        a('s_waitcnt vmcnt(16)')
        self.lds_signal(vS, vT, 8, F_SV)
        vWO = 144
        self.tr_addr(vWO, vT, vU, 4, L_A1)
        self.lds_wait(vF, vT, 8, F_SV, sleep=1)
        a(f's_lshr_b32 s{sT0}, s{sSW}, 1\ns_lshl_b32 s{sT0}, s{sT0}, 4\nv_add_u32 v{vW}, s{sT0}, v{vF}')
        self.lds_wait(vW, vT, 9, F_AT, sleep=4)
        self.stamp(12)
        a(f's_mov_b32 s{sCNT}, 20000')
        a('L_oretry:')
        a(f's_lshl_b32 s{sT3}, s{sT4}, 15\ns_add_u32 s{sT3}, s{sT3}, {WS_OBUF:#x}')
        for i in range(32): hload(i)
        def wread(s): a(f'ds_read_b64_tr_b16 v[{CTS[s%3]}:{CTS[s%3]+1}], v{vWO} offset:{2048*s}\nds_read_b64_tr_b16 v[{CTS[s%3]+2}:{CTS[s%3]+3}], v{vWO} offset:{2048*s+1024}')
        wread(0); wread(1)
        a(f'v_mov_b32 v{vU}, 0')
        for s in range(32):
            a(f's_waitcnt vmcnt({31-s}) lgkmcnt({2 if s < 31 else 0})')
            a(f'v_mfma_f32_32x32x16_bf16 v[{YA}:{YA+15}], v[{4*s}:{4*s+3}], v[{CTS[s%3]}:{CTS[s%3]+3}], {"0" if s == 0 else f"v[{YA}:{YA+15}]"}')
            if s + 2 < 32: wread(s + 2)
            a(f'v_max3_u32 v{vU}, v{4*s}, v{4*s+1}, v{vU}\nv_max3_u32 v{vU}, v{4*s+2}, v{4*s+3}, v{vU}')
        a(f'v_cmp_eq_u32 vcc, -1, v{vU}\ns_cbranch_vccz L_odone\ns_sub_u32 s{sCNT}, s{sCNT}, 1\ns_cbranch_scc0 L_oretry')
        a('L_odone:')
        if self.stamps: a(f's_mov_b32 s{sST+1}, s{sCNT}')
        a('s_nop 7')
        store_tile(0)
        self.stamp(13)
        self.end(vT)

    def gpoll(self, vaddr, vt, sbase, nm):
        a = self.a
        a(f's_mov_b32 s{sCNT}, 100000')
        a(f'L_gp{nm}:')
        a(f'buffer_load_dword v{vt}, v{vaddr}, s[{SWS}:{SWS+3}], s{sbase} offen sc1\ns_waitcnt vmcnt(0)\nv_cmp_ne_u32 vcc, s{sTAG}, v{vt}\ns_cbranch_vccz L_gd{nm}')
        a(f's_sleep 4\ns_sub_u32 s{sCNT}, s{sCNT}, 1\ns_cbranch_scc0 L_gp{nm}')
        a(f'L_gd{nm}:')

    def row_addr(self, vd, vt, srow, base):
        a = self.a; vLN = self.vLN
        a(f'v_and_b32 v{vt}, 31, v{vLN}\nv_add_u32 v{vt}, s{srow}, v{vt}\nv_mul_u32_u24 v{vd}, 1040, v{vt}\nv_lshrrev_b32 v{vt}, 5, v{vLN}\nv_lshl_add_u32 v{vd}, v{vt}, 4, v{vd}\nv_add_u32 v{vd}, {base}, v{vd}')

    def tr_addr(self, vd, vt, vu, hrows, base):
        a = self.a; vLN = self.vLN
        sh = {8: 10, 4: 9}[hrows]
        a(f'v_lshrrev_b32 v{vd}, 5, v{vLN}\nv_lshlrev_b32 v{vd}, {sh}, v{vd}\nv_bfe_u32 v{vt}, v{vLN}, 2, 2\nv_lshl_add_u32 v{vd}, v{vt}, 7, v{vd}')
        a(f's_and_b32 s{sT0}, s{sSW}, 1\nv_lshrrev_b32 v{vt}, 1, v{vt}\nv_xor_b32 v{vt}, s{sT0}, v{vt}\nv_lshl_add_u32 v{vd}, v{vt}, 6, v{vd}')
        a(f'v_bfe_u32 v{vt}, v{vLN}, 4, 1\nv_lshl_add_u32 v{vd}, v{vt}, 5, v{vd}\nv_and_b32 v{vt}, 3, v{vLN}\nv_lshl_add_u32 v{vd}, v{vt}, 3, v{vd}\nv_add_u32 v{vd}, {base}, v{vd}')

HEADER = open('cdna_kernels/' + NAME + '.s.ref').read().split('; Override launch')[0]

def make(stamps=False):
    g = G(stamps)
    body = g.build()
    txt = HEADER + f'; @launch grid=(256,1,1) block=(768,1,1) lds={L_TOTAL}\n'
    txt += f'''.amdgcn_target "amdgcn-amd-amdhsa--gfx950"
.text
.globl {NAME}_kernel
.p2align 8
.type {NAME}_kernel,@function
{NAME}_kernel:
{body}.section .rodata,"a"
.p2align 6
.amdhsa_kernel {NAME}_kernel
  .amdhsa_next_free_vgpr 168
  .amdhsa_next_free_sgpr 102
  .amdhsa_accum_offset 168
  .amdhsa_group_segment_fixed_size 0
  .amdhsa_kernarg_size 136
  .amdhsa_user_sgpr_count 2
  .amdhsa_user_sgpr_kernarg_segment_ptr 1
  .amdhsa_system_sgpr_workgroup_id_x 1
.end_amdhsa_kernel
'''
    return txt, g.a.n_ins

if __name__ == '__main__':
    out = sys.argv[1] if len(sys.argv) > 1 else 'cdna_kernels/' + NAME + '.s'
    txt, n = make(stamps='--stamps' in sys.argv)
    open(out, 'w').write(txt)
    print('wrote', out, n, 'instructions')
```

```python
import re

TRANS = ('v_exp_f32', 'v_log_f32', 'v_rcp_f32', 'v_rsq_f32', 'v_sqrt_f32', 'v_sin_f32', 'v_cos_f32')
REG_RE = re.compile(r'^(-?)(abs\()?([vsa])(?:(\d+)|\[(\d+):(\d+)\])\)?$')

def regs_of(tok):
    tok = tok.strip()
    if tok.startswith('|') and tok.endswith('|'):
        tok = tok[1:-1]
    if tok.startswith('-|') and tok.endswith('|'):
        tok = tok[2:-1]
    if tok in ('vcc', 'vcc_lo', 'vcc_hi'): return {('s', 'vcc')}
    if tok == 'exec': return {('s', 'exec')}
    if tok == 'm0': return {('s', 'm0')}
    m = REG_RE.match(tok)
    if not m: return set()
    k = m.group(3)
    if m.group(4) is not None:
        return {(k, int(m.group(4)))}
    return {(k, i) for i in range(int(m.group(5)), int(m.group(6)) + 1)}

def mfma_passes(op):
    if '32x32' in op: return 8
    if '16x16' in op: return 4
    raise ValueError(op)

class Ins:
    def __init__(self, text):
        self.text = text
        t = text.split(';')[0].strip()
        parts = t.split(None, 1)
        self.op = parts[0]
        rest = parts[1] if len(parts) > 1 else ''
        ops = []; cur = ''; depth = 0
        for ch in rest:
            if ch == '[': depth += 1
            if ch == ']': depth -= 1
            if ch == ',' and depth == 0:
                ops.append(cur.strip()); cur = ''
            else: cur += ch
        if cur.strip(): ops.append(cur.strip())
        self.mods = ''
        if ops:
            sp = ops[-1].split(None, 1)
            if len(sp) > 1:
                ops[-1] = sp[0]; self.mods = sp[1]
        self.ops = ops
        op = self.op
        self.is_mfma = op.startswith('v_mfma') or op.startswith('v_smfmac')
        self.is_valu = op.startswith('v_') and not self.is_mfma
        self.is_salu = op.startswith('s_')
        self.is_ds = op.startswith('ds_')
        self.is_vmem = op.startswith('buffer_') or op.startswith('global_')
        self.is_trans = op.replace('_e32', '').replace('_e64', '') in TRANS
        self.is_dpp = '_dpp' in op or 'row_' in self.mods or 'quad_perm' in self.mods
        self.is_perml = op.startswith('v_permlane')
        self.is_rdl = op.startswith('v_readfirstlane') or op.startswith('v_readlane')
        self.w = set(); self.r = set(); self.srcC = set(); self.srcAB = set()
        R = [regs_of(o) for o in ops]
        if self.is_mfma:
            self.w = R[0]; self.passes = mfma_passes(op)
            if op.startswith('v_smfmac'):
                self.srcC = R[0]; self.srcAB = R[1] | R[2] | R[3]
            else:
                self.srcC = R[3]; self.srcAB = R[1] | R[2]
            self.r = self.srcC | self.srcAB
        elif self.is_valu:
            if self.is_perml and 'swap' in op:
                self.w = R[0] | R[1]; self.r = R[0] | R[1]
            elif op.startswith('v_cmp'):
                self.w = R[0]; self.r = set().union(*R[1:])
            elif op.startswith('v_add_co') or op.startswith('v_sub_co') or op.startswith('v_addc_co'):
                self.w = R[0] | R[1]; self.r = set().union(*R[2:])
            elif op == 'v_nop':
                pass
            else:
                self.w = R[0]; self.r = set().union(*R[1:]) if len(R) > 1 else set()
                if op.startswith('v_fmac') or op.startswith('v_pk_fmac') or self.is_dpp or 'UNUSED_PRESERVE' in self.mods or op.startswith('v_writelane'):
                    self.r |= R[0]
        elif self.is_ds:
            if op.startswith('ds_read') or '_rtn' in op or op.startswith('ds_bpermute') or op.startswith('ds_permute') or op.startswith('ds_swizzle'):
                self.w = R[0]; self.r = set().union(*R[1:]) if len(R) > 1 else set()
            else:
                self.r = set().union(*R)
            if 'addtid' in op: self.r |= {('s', 'm0')}
        elif self.is_vmem:
            lds = ' lds' in (' ' + self.mods)
            self.is_dma = lds or 'load_lds' in op
            if 'load' in op and not self.is_dma:
                self.w = R[0]; self.r = set().union(*R[1:])
                if 'd16' in op: self.r |= R[0]
            else:
                self.r = set().union(*R)
                if self.is_dma: self.r |= {('s', 'm0')}
            self.wide_store = ('store' in op) and ('x3' in op or 'x4' in op)
            self.store_data = R[0] if ('store' in op and op.startswith('buffer_')) else (R[1] if 'store' in op else set())
        elif self.is_salu:
            nowrite = ('s_cmp', 's_cbranch', 's_branch', 's_waitcnt', 's_nop', 's_barrier', 's_sleep', 's_setprio', 's_endpgm', 's_bitcmp')
            if not op.startswith(nowrite) and R:
                self.w = R[0]; self.r = set().union(*R[1:]) if len(R) > 1 else set()
                if 'saveexec' in op: self.w |= {('s', 'exec')}
            else:
                self.r = set().union(*R) if R else set()
        self.states = 1
        if op == 's_nop': self.states = int(ops[0], 0) + 1

def need(prev, cur):
    n = 0
    vw = {x for x in prev.w if x[0] in 'va'}
    sw = {x for x in prev.w if x[0] == 's'}
    if prev.is_valu:
        if cur.is_mfma and vw & cur.r: n = max(n, 2)
        if prev.is_trans and cur.is_valu and not cur.is_trans and vw & cur.r: n = max(n, 1)
        if prev.is_trans and (cur.is_ds or cur.is_vmem) and vw & cur.r: n = max(n, 1)
        if cur.is_valu and sw & cur.r: n = max(n, 4 if cur.op.startswith(('v_readlane', 'v_writelane')) else 2)
        if cur.is_valu and cur.op.startswith('v_cndmask') and ('s', 'vcc') in sw and len(cur.ops) == 3: n = max(n, 2)
        if cur.is_vmem and sw & cur.r: n = max(n, 5)
        if cur.is_rdl and vw & cur.r: n = max(n, 1)
        if (cur.is_dpp or cur.is_perml) and vw & cur.r: n = max(n, 2)
        if ('sdwa' in prev.op or 'op_sel' in prev.mods) and not prev.op.startswith('v_pk_') and cur.is_valu and vw & (cur.r | cur.w): n = max(n, 1)
        if cur.is_salu and sw & cur.r: n = max(n, 1)
        if cur.op.startswith('s_cbranch_vcc') and ('s', 'vcc') in sw: n = max(n, 1)
    if prev.is_mfma:
        p = prev.passes
        if cur.is_mfma:
            if prev.w & cur.srcAB: n = max(n, {4: 8, 8: 12}[p])
            if prev.w & cur.srcC:
                if not (prev.w == cur.srcC and p == cur.passes): n = max(n, {4: 6, 8: 10}[p])
            if (prev.w & cur.w) and not (prev.w & cur.srcC) and p != cur.passes: n = max(n, {4: 6, 8: 10}[p])
        elif cur.is_valu or cur.is_ds or cur.is_vmem:
            if prev.w & (cur.r | cur.w): n = max(n, {4: 8, 8: 12}[p])
            if cur.is_valu and prev.srcC & cur.w: n = max(n, {4: 3, 8: 7}[p])
    if prev.is_salu and ('s', 'm0') in prev.w and ('s', 'm0') in cur.r and (cur.is_vmem or cur.is_ds): n = max(n, 1)
    if prev.is_vmem and prev.wide_store and prev.store_data & cur.w:
        n = max(n, 2 if (cur.is_valu or cur.is_mfma) else 1)
    return n

class Asm:
    def __init__(self):
        self.items = []
        self.uid = 0
    def __call__(self, text):
        for line in text.split('\n'):
            s = line.strip()
            if not s: continue
            if s.startswith(';') or s.startswith('.'):
                self.items.append(('r', s))
            elif s.endswith(':'):
                self.items.append(('l', s[:-1]))
            else:
                self.items.append(('i', Ins(s)))
    def label(self, base='L'):
        self.uid += 1
        return f'{base}_{self.uid}'
    @staticmethod
    def _gap(hist, cur):
        n = 0; dist = 0
        wdist = -1
        for prev in reversed(hist):
            k = need(prev, cur) - (max(dist, wdist) if prev.is_mfma else dist)
            if k > n: n = k
            dist += prev.states
            wdist += 2 if prev.is_trans else (3 if prev.op.startswith('v_smfmac') else (2 if (prev.is_mfma and 'x8_' not in prev.op) else prev.states))
            if dist > 14: break
        return n
    def finish(self):
        out = []; hist = []
        for kind, x in self.items:
            if kind == 'i':
                n = self._gap(hist, x)
                if n > 0:
                    nop = Ins(f's_nop {n - 1}')
                    out.append(('i', nop)); hist.append(nop)
                out.append((kind, x)); hist.append(x)
                if x.op in ('s_branch', 's_endpgm'): hist = []
            else:
                out.append((kind, x))
        pos = {x: i for i, (k, x) in enumerate(out) if k == 'l'}
        for i, (k, x) in enumerate(out):
            if k == 'i' and (x.op.startswith('s_cbranch') or x.op == 's_branch'):
                h = []
                j = i
                while j >= 0 and len(h) < 16:
                    if out[j][0] == 'i':
                        if j != i and out[j][1].op in ('s_branch', 's_endpgm'): break
                        h.insert(0, out[j][1])
                    j -= 1
                j = pos[x.ops[0]]; cnt = 0
                while j < len(out) and cnt < 16:
                    if out[j][0] == 'i':
                        c = out[j][1]
                        g = self._gap(h, c)
                        if g > 0:
                            raise RuntimeError(f'hazard across branch {x.text} -> {c.text}: need {g} more')
                        h.append(c); cnt += 1
                        if c.op in ('s_branch', 's_endpgm'): break
                    j += 1
        lines = []
        for k, x in out:
            if k == 'i': lines.append('    ' + x.text)
            elif k == 'l': lines.append(x + ':')
            else: lines.append(x)
        self.n_ins = sum(1 for k, _ in out if k == 'i')
        return '\n'.join(lines) + '\n'
```

```python
import sys, math, struct
from asm import Asm

NAME = 'concat_heads__grouped_kv_mqa__ssm_conv_s5__prompt'
OPT = dict((x[2:].split('=') + ['1'])[:2] for x in sys.argv if x.startswith('--'))
def opt(k, d): return int(OPT.get(k, d))
def f2u(x): return struct.unpack('<I', struct.pack('<f', x))[0]
def pr(r): return f'v[{r}:{r+1}]'
def q4(r): return f'v[{r}:{r+3}]'
def t16(r): return f'v[{r}:{r+15}]'

WS_KVFLAG = 0x8000
WS_KVIMG = 0x10000
WS_EBUF = 0x40000
WS_HFLAG = 0x80000
WS_OBUF = 0x100000
WS_HBUF = 0x400000
WS_DBG = 0x800000
WS_SIZE = 0x1000000
def FL(i): return 16 * i
F_L1, F_L2, F_L4, F_L6 = FL(0), FL(1), FL(2), FL(3)
F_QP, F_KVD = FL(4), FL(5)
F_A1, F_AX, F_AY = FL(6), FL(7), FL(8)
F_S = [FL(9 + i) for i in range(10)]
F_WO = FL(19)
F_OX = FL(20)
F_SL = [FL(22 + i) for i in range(3)]
F_KMAX, F_XC, F_KST = FL(25), FL(25) + 4, FL(25) + 8
L_QN = 512
L_ACCF = 1024
L_QF = 5120
L_ACCD = 13312
L_WKV = L_ACCD
L_A1 = 29696
L_A2 = 96256
L_MX = L_A2 + 66560
L_TOTAL = 163840
XW = 16640
L_SXO = 1024
L_TBO = 2048

sWV, sRB, sCG, sTB, sPB, sTAG = 3, 4, 5, 6, 7, 8
sT0, sT1, sT2, sT3, sT4, sT5 = 9, 10, 11, 12, 13, 14
sCNT = 15
P = lambda i: 16 + 2 * i
SA, SB, SC, SWS, SOUT = 52, 56, 60, 64, 68
sSW = 72
sPH, sTJ, sOW = 73, 74, 75
sM0, sM1 = 76, 78
sQH = 81
sXC = 100
sST = 82
SPIN = 400000
vT, vLN, vL16, vEP, vF, vS, vONE = 249, 250, 251, 252, 253, 254, 255

class G:
    def __init__(self, stamps=False):
        self.a = Asm(); self.stamps = stamps; self.cyc = True
    def srd(self, d, p, size):
        self.a(f's_mov_b32 s{d}, s{p}\ns_mov_b32 s{d+1}, s{p+1}\ns_mov_b32 s{d+2}, {size:#x}\ns_mov_b32 s{d+3}, 0x20000')
    def stamp(self, i):
        if self.stamps:
            self.a(f's_memrealtime s[98:99]\ns_waitcnt lgkmcnt(0)\ns_mov_b32 s{sST+i}, s98')
            m = {5: 8, 6: 9}
            if self.cyc and i in m:
                self.a(f's_memtime s[98:99]\ns_waitcnt lgkmcnt(0)\ns_mov_b32 s{sST+m[i]}, s98')
    def end(self):
        a = self.a
        if self.stamps:
            a('s_waitcnt vmcnt(0)')
            self.stamp(15)
            a(f's_lshl_b32 s{sT0}, s2, 3\ns_add_u32 s{sT0}, s{sT0}, s{sWV}\ns_lshl_b32 s{sT0}, s{sT0}, 6\ns_add_u32 s{sT0}, s{sT0}, {WS_DBG:#x}')
            a('s_mov_b64 exec, 1')
            for i in range(16):
                a(f'v_mov_b32 v{vT}, s{sST+i}\nbuffer_store_dword v{vT}, off, s[{SWS}:{SWS+3}], s{sT0} offset:{4*i}')
            a('s_waitcnt vmcnt(0)')
        a('s_endpgm')
    def sig(self, off, va=vS):
        self.a(f'ds_write_b32 v{va}, v{vONE} offset:{off}')
    def wait(self, off, sleep=1, va=vF):
        a = self.a; L = a.label('W'); D = a.label('WD')
        a(f's_mov_b32 s{sCNT}, {SPIN}')
        a(f'{L}:')
        a(f'ds_read_b32 v{vT}, v{va} offset:{off}\ns_waitcnt lgkmcnt(0)\nv_cmp_eq_u32 vcc, 0, v{vT}\ns_cbranch_vccz {D}')
        a((f's_sleep {sleep}\n' if sleep else '') + f's_sub_u32 s{sCNT}, s{sCNT}, 1\ns_cbranch_scc0 {L}')
        a(f'{D}:')
    def xstore(self, lines):
        a = self.a
        if not opt('xc', 1):
            for x in lines: a(x + (' sc1' if x.startswith('buffer') else ''))
            return
        L = a.label('X'); D = a.label('XD')
        a(f's_cmp_eq_u32 s{sXC}, 1\ns_cbranch_scc0 {L}')
        for x in lines: a(x)
        a(f's_branch {D}')
        a(f'{L}:')
        for x in lines: a(x + (' sc1' if x.startswith('buffer') else ''))
        a(f'{D}:')
    def get_tag(self):
        self.a(f'v_readfirstlane_b32 s{sTAG}, v{vEP}\ns_mul_i32 s{sTAG}, s{sTAG}, 0x9E3779B1\ns_add_u32 s{sTAG}, s{sTAG}, 0x7F4A7C15')

    def build(self):
        a = self.a
        a('s_cmp_ge_u32 s2, 256\ns_cbranch_scc1 L_exit')
        a('s_load_dwordx16 s[16:31], s[0:1], 0\ns_load_dwordx16 s[32:47], s[0:1], 64\ns_load_dwordx2 s[48:49], s[0:1], 128')
        if self.stamps:
            for i in range(16): a(f's_mov_b32 s{sST+i}, 0')
        a(f'v_and_b32 v{vLN}, 63, v0\nv_lshrrev_b32 v{vT}, 6, v0\nv_lshlrev_b32 v{vL16}, 4, v{vLN}\nv_readfirstlane_b32 s{sWV}, v{vT}')
        a(f's_and_b32 s{sT0}, s2, 7\ns_lshr_b32 s{sT1}, s2, 3')
        a(f's_lshl_b32 s{sRB}, s{sT0}, 2\ns_lshr_b32 s{sT2}, s{sT1}, 3\ns_add_u32 s{sRB}, s{sRB}, s{sT2}\ns_and_b32 s{sCG}, s{sT1}, 7')
        a(f's_lshr_b32 s{sTB}, s{sRB}, 1\ns_and_b32 s{sPB}, s{sT1}, 15\ns_and_b32 s{sSW}, s{sWV}, 3')
        a(f's_cmp_ge_u32 s{sWV}, 4\ns_cbranch_scc1 L_service')
        a(f's_lshr_b32 s{sT5}, s{sCG}, 1\ns_lshl_b32 s{sT4}, s{sRB}, 16')
        def xa_rows(g):
            a(f's_add_u32 s{sT0}, s{sT5}, {g}\ns_and_b32 s{sT0}, s{sT0}, 3\ns_lshl_b32 s{sT0}, s{sT0}, 2\ns_add_u32 s{sT0}, s{sT0}, s{sSW}\ns_lshl_b32 s{sT0}, s{sT0}, 2')
            a(f's_mul_i32 s{sT1}, s{sT0}, 1040\ns_add_u32 m0, s{sT1}, {L_A1}\ns_lshl_b32 s{sT0}, s{sT0}, 10\ns_add_u32 s{sT0}, s{sT0}, s{sT4}')
            if g == 0:
                a('s_waitcnt lgkmcnt(0)')
                self.stamp(0)
                self.srd(SA, P(0), 2048 * 1024)
            for n in range(4):
                a(f'buffer_load_dwordx4 v{vL16}, s[{SA}:{SA+3}], s{sT0} offen offset:{1024*n} lds')
                if n < 3: a('s_add_u32 m0, m0, 16')
        xa_rows(0)
        a(f's_bitcmp1_b32 s{sCG}, 0\ns_cselect_b32 s{SB}, s{P(3)}, s{P(2)}\ns_cselect_b32 s{SB+1}, s{P(3)+1}, s{P(2)+1}\ns_mov_b32 s{SB+2}, 0x4000\ns_mov_b32 s{SB+3}, 0x20000')
        a(f's_lshl_b32 s{sT0}, s{sWV}, 12\ns_add_u32 m0, s{sT0}, {L_WKV}')
        for n in range(4):
            a(f'buffer_load_dwordx4 v{vL16}, s[{SB}:{SB+3}], s{sT0} offen offset:{1024*n} lds')
        self.wimg_lane_addr(0, 1)
        self.srd(SC, P(1), 512 * 1024)
        a(f's_lshl_b32 s{sT3}, s{sSW}, 13\ns_lshl_b32 s{sT1}, s{sCG}, 7\ns_add_u32 s{sT3}, s{sT3}, s{sT1}\ns_and_b32 s{sT1}, s{sRB}, 3\ns_lshl_b32 s{sT1}, s{sT1}, 17\ns_add_u32 s{sT3}, s{sT3}, s{sT1}')
        a(f's_lshl_b32 s{sT2}, s{sSW}, 10')
        def wq_rows(c):
            for n in range(4 * c, 4 * c + 4):
                a(f's_add_u32 m0, s{sT2}, {L_A2 + 4096*n}\ns_xor_b32 s{sT0}, s{sT3}, {0x8000*n:#x}')
                a(f'buffer_load_dwordx4 v0, s[{SC}:{SC+3}], s{sT0} offen lds')
        FO = opt('fo', 1)
        if FO == 0: wq_rows(0)
        else: xa_rows(1)
        self.common_regs()
        self.srd(SWS, P(16), WS_SIZE)
        a('s_barrier')
        self.stamp(1)
        a('s_waitcnt vmcnt(4)')
        self.sig(F_L1)
        if FO == 0: xa_rows(1)
        xa_rows(2); xa_rows(3)
        a(f'buffer_load_dword v{vEP}, off, s[{SWS}:{SWS+3}], 0 sc1')
        if FO == 1: wq_rows(0)
        if FO == 0: wq_rows(1)
        a('s_waitcnt vmcnt(5)')
        self.sig(F_L2)
        if FO == 1: wq_rows(1)
        wq_rows(2); wq_rows(3)
        self.stamp(2)
        a('s_waitcnt vmcnt(8)')
        self.sig(F_L4)
        self.attention()
        self.service()
        a('L_exit:\ns_endpgm')
        return a.finish()

    def common_regs(self):
        self.a(f'v_and_b32 v{vF}, 3, v{vLN}\nv_lshlrev_b32 v{vF}, 2, v{vF}\ns_lshl_b32 s{sT0}, s{sSW}, 2\nv_mov_b32 v{vS}, s{sT0}\nv_mov_b32 v{vONE}, 1')

    def wimg_lane_addr(self, vd, vt):
        a = self.a
        a(f'v_lshrrev_b32 v{vt}, 2, v{vLN}\nv_and_b32 v{vt}, 4, v{vt}\nv_and_b32 v{vd}, 7, v{vLN}\nv_xor_b32 v{vd}, v{vd}, v{vt}\nv_lshlrev_b32 v{vd}, 4, v{vd}')
        a(f'v_lshrrev_b32 v{vt}, 3, v{vLN}\nv_lshl_add_u32 v{vd}, v{vt}, 10, v{vd}')

    def tr_parts(self, c0, r, wpart):
        a = self.a
        a(f'v_bfe_u32 v{c0}, v{vLN}, 4, 1\nv_lshlrev_b32 v{c0}, 5, v{c0}\nv_and_b32 v{r}, 3, v{vLN}\nv_lshl_add_u32 v{c0}, v{r}, 3, v{c0}\nv_bfe_u32 v{r}, v{vLN}, 2, 2')
        a(f's_and_b32 s{sT0}, s{sSW}, 1\nv_lshrrev_b32 v{wpart}, 1, v{r}\nv_xor_b32 v{wpart}, s{sT0}, v{wpart}\nv_lshl_add_u32 v{wpart}, v{wpart}, 6, v{c0}\nv_lshl_add_u32 v{wpart}, v{r}, 7, v{wpart}')

    def prefetch(self, ptrs, vd):
        a = self.a
        a(f's_lshr_b32 s{sT0}, s2, 3\ns_lshl_b32 s{sT0}, s{sT0}, 2\ns_add_u32 s{sT0}, s{sT0}, s{sSW}\ns_lshl_b32 s{sT0}, s{sT0}, 12')
        for p in ptrs:
            self.srd(SOUT, P(p), 512 * 1024)
            a(f'buffer_load_dword v{vEP}, v{vd}, s[{SOUT}:{SOUT+3}], s{sT0} offen')

    def attention(self):
        a = self.a
        K, V, S0, O, Q = 0, 64, 192, 224, 240
        vIDX, vA16, vA8, vQA, vL8 = 244, 245, 246, 247, 248
        R = dict(K=K, V=V, S0=S0, O=O, Q=Q, vIDX=vIDX, vA16=vA16, vA8=vA8, vQA=vQA, vL8=vL8, vM=vEP)
        a(f'v_and_b32 v{Q}, 11, v{vLN}\nv_cmp_eq_u32 vcc, 0, v{Q}\nv_mov_b32 v{Q}, 0x3f803f80\nv_cndmask_b32 v{vT}, 0, v{Q}, vcc')
        MK = opt('mask', 0)
        self.masked = lambda i: (MK >> i) & 1
        for i in range(16):
            for r in range(0 if self.masked(i) else 4, 8): a(f'v_mov_b32 v{V+8*i+r}, v{vT}')
        a(f'v_lshlrev_b32 v{vL8}, 3, v{vLN}\nv_mov_b32 v{vIDX}, 0xdddd')
        def init_state(ph0):
            for i in range(16): a(f'v_mov_b32 v{O+i}, 0')
            a(f's_mov_b32 s{sTJ}, s{sSW}\ns_mov_b32 s{sPH}, {ph0}')
            a(f's_lshl_b32 s{sT0}, s{sTJ}, 10\nv_add_u32 v{vQA}, s{sT0}, v{vL16}')
            a(f's_lshl_b32 s{sT0}, s{sTJ}, 11\nv_add_u32 v{vA16}, s{sT0}, v{vL16}\ns_lshl_b32 s{sT0}, s{sTJ}, 9\nv_add_u32 v{vA8}, s{sT0}, v{vL8}')
        init_state(0)
        FS = opt('fs', 7)
        a(f'v_lshlrev_b32 v{S0+4}, {FS}, v{vLN}\nv_mov_b32 v{S0+3}, 0\ns_getreg_b32 s{sXC}, hwreg(HW_REG_XCC_ID)')
        a(f's_lshl_b32 s{sT3}, s{sWV}, {FS + 6}\ns_add_u32 s{sT3}, s{sT3}, {WS_KVFLAG:#x}')
        a(f's_lshl_b32 s{sT4}, s{sWV}, 15\ns_add_u32 s{sT4}, s{sT4}, {WS_KVIMG:#x}\ns_lshl_b32 s{sT0}, s{sCG}, 12\ns_add_u32 s{sT4}, s{sT4}, s{sT0}')
        a(f's_lshl_b32 s{sOW}, s{sRB}, 16\ns_lshl_b32 s{sT0}, s{sCG}, 12\ns_add_u32 s{sOW}, s{sOW}, s{sT0}\ns_add_u32 s{sOW}, s{sOW}, {WS_OBUF:#x}')
        a(f's_add_u32 s{sT0}, s{sSW}, 1\ns_and_b32 s{sT0}, s{sT0}, 3\ns_lshl_b32 s{sT0}, s{sT0}, 10\ns_add_u32 s{sOW}, s{sOW}, s{sT0}')
        a(f's_mov_b32 s{sM0}, 0xffff\ns_mov_b32 s{sM0+1}, 0xffff')
        self.get_tag()
        a(f's_waitcnt vmcnt(0)')
        self.sig(F_L6)
        self.stamp(3)
        self.wait(F_KVD, sleep=1)
        if opt('pf1', 0):
            a(f's_lshr_b32 s{sT0}, s2, 3\ns_lshl_b32 s{sT0}, s{sT0}, 2\ns_add_u32 s{sT0}, s{sT0}, s{sSW}\ns_lshl_b32 s{sT0}, s{sT0}, 12')
            for k, p in enumerate((8, 9)):
                self.srd(SB, P(p), 512 * 1024)
                for n in range(4): a(f'buffer_load_dwordx4 {q4(4 + 16*k + 4*n)}, v{vL16}, s[{SB}:{SB+3}], s{sT0} offen offset:{1024*n}')
            self.srd(SB, P(5), 2048 * 1024)
            a(f's_lshr_b32 s{sT0}, s{sT0}, 1\ns_and_b32 s{sT1}, s2, 7\ns_lshl_b32 s{sT1}, s{sT1}, 18\ns_add_u32 s{sT0}, s{sT0}, s{sT1}')
            for n in range(2): a(f'buffer_load_dwordx4 {q4(36 + 4*n)}, v{vL16}, s[{SB}:{SB+3}], s{sT0} offen offset:{1024*n}')
        if opt('pw', 12): a(f's_sleep {opt("pw", 12)}')
        a(f's_mov_b32 s{sCNT}, 100000')
        a('L_kvp:')
        a(f'buffer_load_dwordx3 v[{S0}:{S0+2}], v{S0+4}, s[{SWS}:{SWS+3}], s{sT3} offen sc1\ns_waitcnt vmcnt(0)\nv_cmp_ne_u32 vcc, s{sTAG}, v{S0}\ns_cbranch_vccz L_kvpd')
        a(f's_sleep {opt("kvsleep", 4)}\ns_sub_u32 s{sCNT}, s{sCNT}, 1\ns_cbranch_scc0 L_kvp')
        a('L_kvpd:')
        if self.stamps: a(f's_mov_b32 s{sST+13}, s{sCNT}')
        self.stamp(4)
        for i in range(opt('nup', 7)): a(self.kvload(R, i))
        a(f'ds_max_u32 v{S0+3}, v{S0+1} offset:{F_KMAX}')
        a(f's_lshr_b32 s{sT0}, s{sRB}, 3\ns_cmp_eq_u32 s{sT0}, s{sSW}\ns_cbranch_scc0 L_noxc')
        a(f'v_cmp_ne_u32 vcc, s{sXC}, v{S0+2}\ns_bitcmp1_b32 s{sRB}, 2\ns_cselect_b32 s{sT0}, vcc_hi, vcc_lo\ns_cmp_eq_u32 s{sT0}, 0\ns_cselect_b32 s{sT0}, 1, 0')
        a(f'v_mov_b32 v{S0+2}, s{sT0}\nds_write_b32 v{S0+3}, v{S0+2} offset:{F_XC}')
        a('L_noxc:')
        self.wait(F_QP, sleep=0)
        a(f'ds_read_b128 {q4(Q)}, v{vQA} offset:{L_QF}')
        self.stamp(5)
        self.attn_fast(R)
        a('L_attn_epi:')
        if 'phs' in OPT:
            for p in range(8): a(f's_mov_b32 s{sST+2*p}, s{16+4*p}\ns_mov_b32 s{sST+2*p+1}, s{17+4*p}')
            a(f's_lshl_b32 s{sT0}, s2, 3\ns_add_u32 s{sT0}, s{sT0}, s{sWV}\ns_lshl_b32 s{sT0}, s{sT0}, 6\ns_add_u32 s{sT0}, s{sT0}, {WS_DBG + 0x100000:#x}')
            a('s_mov_b64 exec, 1')
            for i in range(16):
                a(f'v_mov_b32 v{vT}, s{sST+i}\nbuffer_store_dword v{vT}, off, s[{SWS}:{SWS+3}], s{sT0} offset:{4*i}')
            a('s_waitcnt vmcnt(0)\ns_endpgm')
        self.oproj_pre()
        self.stamp(6)
        self.publish(R, 0x8000, F_AY)
        if 'nosvc' in OPT or 'stop' in OPT: self.end()
        else: self.oproj()
        a('L_check6:')
        self.wait(F_S[9], sleep=1)
        a('s_branch L_checked6')
        a('L_check1:')
        self.wait(F_S[0], sleep=1)
        a(f'v_cmp_ne_u32 vcc, 1, v{vT}\ns_cbranch_vccz L_checked1')
        self.wait(F_S[9], sleep=1)
        a(f's_mov_b32 s{sXC}, 0')
        vL4, vW = vA8, vA16
        self.sig(F_SL[0]); self.wait(F_SL[0])
        a(f'v_lshrrev_b32 v{vL4}, 2, v{vL16}\ns_mov_b32 s{sT2}, 0\ns_lshl_b32 s{sT3}, s{sWV}, 11\nv_add_u32 v{vW}, s{sT3}, v{vL4}')
        a('L_slow_pre:')
        a(f's_lshl_b32 s{sT0}, s{sT2}, 10\nv_add_u32 v{vT}, s{sT0}, v{vL16}\nds_read_b128 {q4(Q)}, v{vT} offset:{L_QF}\ns_waitcnt lgkmcnt(0)')
        a(f'v_mov_b32 v{S0+20}, 0xff800000')
        for i in range(16):
            a(f'v_mfma_f32_32x32x16_bf16 {t16(S0)}, {q4(K+4*i)}, {q4(Q)}, 0')
            for r in range(0, 16, 2): a(f'v_max3_f32 v{S0+20}, v{S0+r}, v{S0+r+1}, v{S0+20}')
        a(f'v_mov_b32 v{S0+21}, v{S0+20}\nv_permlane32_swap_b32 v{S0+20}, v{S0+21}\nv_max_f32 v{S0+20}, v{S0+20}, v{S0+21}')
        a(f'ds_write_b32 v{vW}, v{S0+20} offset:{L_ACCD}\nv_add_u32 v{vW}, 256, v{vW}')
        a(f's_add_u32 s{sT2}, s{sT2}, 1\ns_cmp_lt_u32 s{sT2}, 8\ns_cbranch_scc1 L_slow_pre')
        self.sig(F_SL[1]); self.wait(F_SL[1])
        a(f's_lshl_b32 s{sT0}, s{sWV}, 8\nv_add_u32 v{vW}, s{sT0}, v{vL4}')
        for t in range(2):
            for w in range(4): a(f'ds_read_b32 v{S0+4*t+w}, v{vW} offset:{L_ACCD + 2048*w + 1024*t}')
        a(f'v_and_b32 v{vW}, 0x7c, v{vL4}\ns_lshl_b32 s{sT0}, s{sWV}, 7\ns_add_u32 s{sT0}, s{sT0}, {L_MX}\nv_add_u32 v{vW}, s{sT0}, v{vW}')
        a('s_waitcnt lgkmcnt(0)')
        for t in range(2):
            b = S0 + 4 * t
            a(f'v_max3_f32 v{b}, v{b}, v{b+1}, v{b+2}\nv_max_f32 v{b}, v{b}, v{b+3}\nds_write_b32 v{vW}, v{b} offset:{512*t}')
        init_state(16)
        a(f'v_mov_b32 v{S0}, 0\nv_mov_b32 v{S0+1}, 17\nds_write_b64 v{vA8}, {pr(S0)} offset:{L_ACCF+2048}')
        a(f'ds_write_b128 v{vA16}, {q4(O)} offset:{L_ACCD+8192}\nds_write_b128 v{vA16}, {q4(O)} offset:{L_ACCD+8192+1024}')
        self.sig(F_SL[2]); self.wait(F_SL[2])
        a(f'ds_read_b128 {q4(Q)}, v{vQA} offset:{L_QF}')
        self.attn_loop(R, True)
        a('s_branch L_attn_epi')

    def kvload(self, R, i):
        K, V = R['K'], R['V']
        t = ''
        if i % 2 == 0 and i > 0: t += f's_xor_b32 s{sT4}, s{sT4}, {((i // 2) ^ (i // 2 - 1)) << 12:#x}\n'
        o = (i % 2) * 2048
        t += f'buffer_load_dwordx4 {q4(K+4*i)}, v{vL16}, s[{SWS}:{SWS+3}], s{sT4} offen offset:{o} sc1\n'
        if self.masked(i):
            t += f's_mov_b64 exec, s[{sM0}:{sM0+1}]\nbuffer_load_dwordx4 {q4(V+8*i)}, v{vL16}, s[{SWS}:{SWS+3}], s{sT4} offen offset:{o+1024} sc1\n'
            t += f'buffer_load_dwordx4 {q4(V+8*i+4)}, v{vL16}, s[{SWS}:{SWS+3}], s{sT4} offen offset:{o+1024+256} sc1\ns_mov_b64 exec, -1'
        else:
            t += f'buffer_load_dwordx4 {q4(V+8*i)}, v{vL16}, s[{SWS}:{SWS+3}], s{sT4} offen offset:{o+1024} sc1'
        return t

    def publish(self, R, off, flag):
        a = self.a; O = R['O']
        a(f'v_rcp_f32 v{O+8}, v{O+8}\ns_add_u32 s{sT0}, s{sOW}, {off}')
        for r in range(0, 8, 2): a(f'v_pk_mul_f32 {pr(O+r)}, {pr(O+8)}, {pr(O+r)} op_sel:[0,0] op_sel_hi:[0,1]')
        for r in range(4): a(f'v_cvt_pk_bf16_f32 v{O+r}, v{O+2*r}, v{O+2*r+1}')
        self.xstore([f'buffer_store_dwordx4 {q4(O)}, v{vL16}, s[{SWS}:{SWS+3}], s{sT0} offen'])

    def attn_fast(self, R):
        a = self.a
        K, V, S0, O, Q = R['K'], R['V'], R['S0'], R['O'], R['Q']
        vIDX, vA16, vA8, vQA, vL8 = R['vIDX'], R['vA16'], R['vA8'], R['vQA'], R['vL8']
        NUP = opt('nup', 7)
        sK = [[50, 51, 80], [sT1, sT2, sT3], [sT5, sPH, sTJ]]
        for k in range(1, 4):
            a(f's_sub_u32 s{sT0}, s{sSW}, {k}\ns_and_b32 s{sT0}, s{sT0}, 3\ns_lshl_b32 s{sK[k-1][0]}, s{sT0}, 9\ns_lshl_b32 s{sK[k-1][1]}, s{sT0}, 10\ns_lshl_b32 s{sK[k-1][2]}, s{sT0}, 11')
        def Sb(i): return S0 + 16 * (i % 2)
        def E(i, r): return f'v_exp_f32 v{Sb(i)+r}, v{Sb(i)+r}'
        def QK(i): return f'v_mfma_f32_32x32x16_bf16 {t16(Sb(i))}, {q4(K+4*(i%16))}, {q4(Q)}, 0'
        def PV(i, h): return f'v_smfmac_f32_32x32x32_bf16 {t16(O)}, {q4(V+8*(i%16)+4*h)}, v[{Sb(i)+8*h}:{Sb(i)+8*h+7}], v{vIDX}'
        def rd(st): return [f'ds_read_b64 {pr(O+8)}, v{vA8} offset:{L_ACCF+2048*st}', f'ds_read_b128 {q4(O)}, v{vA16} offset:{L_ACCD+8192*st}', f'ds_read_b128 {q4(O+4)}, v{vA16} offset:{L_ACCD+8192*st+1024}']
        def wr(st): return [f'ds_write_b128 v{vA16}, {q4(O)} offset:{L_ACCD+8192*st}', f'ds_write_b128 v{vA16}, {q4(O+4)} offset:{L_ACCD+8192*st+1024}', f'ds_write_b64 v{vA8}, {pr(O+8)} offset:{L_ACCF+2048*st}']
        nl = lambda i: 3 if self.masked(i) else 2
        def plain(p, i):
            e = [E(i, r) for r in range(16)]
            w = []; sw = []; ld = []
            if p == 0:
                KR = opt('kr', 2)
                issued = sum(nl(t) for t in range(min(16, KR * i + NUP)))
                VW = opt('vw', 2)
                if i % VW == 0 or i < 2:
                    last = i if i < 2 else min(15, i + VW - 1)
                    needed = sum(nl(t) for t in range(last + 1)) + (1 if last < 15 else 0)
                    w = [f's_waitcnt vmcnt({issued - needed})']
                if not self.masked(i): sw = [f'v_permlane16_swap_b32 v{V+8*i+r}, v{V+8*i+4+r}' for r in range(4)]
                for t in range(KR * i + NUP, min(16, KR * (i + 1) + NUP)):
                    ld += [self.kvload(R, t)]
                    if t == 15: ld += [f'ds_write_b32 v{vS}, v{vONE} offset:{F_A1}']
            qk = [QK(i + 1)]
            if i == 15:
                if p < 7: w += ['s_waitcnt lgkmcnt(0)']
                else: qk = []
            if i == 14 and p < 7:
                if p % 2 == 1: ld += [f'v_add_u32 v{vQA}, s{sK[p//2][1]}, v{vL16}']
                ld += [f'ds_read_b128 {q4(Q)}, v{vQA} offset:{L_QF + 4096*((p+1)%2)}']
                if p in (1, 6): ld += [f'ds_read_b32 v{vT}, v{vF} offset:{F_S[0] if p == 1 else F_S[9]}']
                if p == 6: ld += [f'ds_read_b32 v{vEP}, v{vF} offset:{F_XC}']
            if i == 15 and p in (1, 6):
                sw = [f'v_cmp_ne_u32 vcc, 1, v{vT}'] + ([f'v_readfirstlane_b32 s{sXC}, v{vEP}'] if p == 6 else [])
                ld = [f's_cbranch_vccnz L_check{p}', f'L_checked{p}:']
            seq = e[0:2] + ([] if (p == 0 and i == 0) else [PV(i - 1, 1)]) + e[2:5] + w + qk + sw + e[5:7] + ld + e[7:11] + [PV(i, 0)] + e[11:16]
            for x in seq: a(x)
        a(f's_setprio {opt("aprio", 1)}')
        a(f's_waitcnt vmcnt({sum(nl(t) for t in range(NUP)) - 1}) lgkmcnt(0)')
        a(QK(0))
        NW = opt('nw', 5)
        for p in range(8):
            if p == 0:
                plain(0, 0); plain(0, 1)
            else:
                e = [E(0, r) for r in range(16)]
                for x in e[0:2] + [PV(15, 1)] + e[2:5] + [QK(1)] + e[5:8]: a(x)
                so, si = (p - 1) % 2, p % 2
                if p < 7:
                    for x in [wr(so)[0], f'v_mov_b32 v{O+9}, {p+1}', wr(so)[1], wr(so)[2]]: a(x)
                else:
                    self.publish(R, 0, F_AX)
                if p % 2 == 0: a(f'v_add_u32 v{vA8}, s{sK[p//2-1][0]}, v{vL8}\nv_add_u32 v{vA16}, s{sK[p//2-1][2]}, v{vL16}')
                if p == 1:
                    for r in range(0, 8, 2): a(f'v_pk_mul_f32 {pr(O+r)}, {pr(O+10)}, {pr(O+10)}')
                    a(f'v_mov_b32 v{O+8}, 0')
                    for x in e[8:11] + [PV(0, 0)] + e[11:16]: a(x)
                    plain(p, 1)
                else:
                    for x in rd(si) + e[8:16]: a(x)
                    e = [E(1, r) for r in range(16)]
                    for x in e[0:NW]: a(x)
                    a(f's_waitcnt lgkmcnt(0)\nv_cmp_gt_u32 vcc, {p}, v{O+9}')
                    a(e[NW])
                    a(f's_cbranch_vccnz L_hw{p}')
                    a(f'L_hd{p}:')
                    n = NW + 1
                    for x in [PV(0, 0)] + e[n:n+3] + [PV(0, 1)] + e[n+3:n+6] + [QK(2)] + e[n+6:n+9] + [PV(1, 0)] + e[n+9:16]: a(x)
            for i in range(2, 16):
                plain(p, i)
            if p == 0: self.stamp(7)
            if 'phs' in OPT: a(f's_memtime s[98:99]\ns_memrealtime s[{16+4*p}:{17+4*p}]\ns_waitcnt lgkmcnt(0)\ns_mov_b32 s{17+4*p}, s98')
        a('s_nop 0')
        a(PV(15, 1))
        a(f's_branch L_attn_epi')
        for p in range(2, 8):
            a(f'L_hw{p}:')
            a(f's_mov_b32 s{sCNT}, {SPIN}')
            a(f'L_hl{p}:')
            a(f's_sleep 1')
            for x in rd(p % 2): a(x)
            a(f's_waitcnt lgkmcnt(0)\nv_cmp_gt_u32 vcc, {p}, v{O+9}\ns_cbranch_vccz L_hd{p}\ns_sub_u32 s{sCNT}, s{sCNT}, 1\ns_cbranch_scc0 L_hl{p}\ns_branch L_hd{p}')

    def attn_loop(self, R, slow):
        a = self.a
        K, V, S0, O, Q = R['K'], R['V'], R['S0'], R['O'], R['Q']
        vIDX, vA16, vA8, vQA, vL8, vM = R['vIDX'], R['vA16'], R['vA8'], R['vQA'], R['vL8'], R['vM']
        sf = '_s' if slow else '_f'
        PH0 = 16 if slow else 0
        NUP = opt('nup', 6)
        def Sb(i): return S0 + 16 * (i % 2)
        def E(i, r):
            s = Sb(i) + r
            return (f'v_sub_f32 v{s}, v{s}, v{vM}\n' if slow else '') + f'v_exp_f32 v{s}, v{s}'
        def QK(i): return f'v_mfma_f32_32x32x16_bf16 {t16(Sb(i))}, {q4(K+4*(i%16))}, {q4(Q)}, 0'
        def PV(i, h): return f'v_smfmac_f32_32x32x32_bf16 {t16(O)}, {q4(V+8*(i%16)+4*h)}, v[{Sb(i)+8*h}:{Sb(i)+8*h+7}], v{vIDX}'
        rd = [f'ds_read_b64 {pr(O+8)}, v{vA8} offset:{L_ACCF}', f'ds_read_b128 {q4(O)}, v{vA16} offset:{L_ACCD}', f'ds_read_b128 {q4(O+4)}, v{vA16} offset:{L_ACCD+1024}']
        wr = [f'ds_write_b128 v{vA16}, {q4(O)} offset:{L_ACCD}', f'ds_write_b128 v{vA16}, {q4(O+4)} offset:{L_ACCD+1024}', f'ds_write_b64 v{vA8}, {pr(O+8)} offset:{L_ACCF}']
        def getm():
            if slow:
                a(f'v_lshrrev_b32 v{vT}, 2, v{vL16}\nv_and_b32 v{vT}, 0x7c, v{vT}\ns_lshl_b32 s{sT0}, s{sTJ}, 7\ns_add_u32 s{sT0}, s{sT0}, {L_MX}\nv_add_u32 v{vT}, s{sT0}, v{vT}')
                a(f'ds_read_b32 v{vM}, v{vT}\ns_waitcnt lgkmcnt(0)')
        nl = lambda i: 3 if self.masked(i) else 2
        def plain(i, ph0=False):
            e = [E(i, r) for r in range(16)]
            w = []; sw = []; ld = []
            if ph0 and not slow:
                issued = sum(nl(t) for t in range(min(16, i + NUP)))
                needed = sum(nl(t) for t in range(i + 1)) + (1 if i < 15 else 0)
                w = [f's_waitcnt vmcnt({issued - needed})']
                if not self.masked(i): sw = [f'v_permlane16_swap_b32 v{V+8*i+r}, v{V+8*i+4+r}' for r in range(4)]
                if i + NUP < 16: ld = [self.kvload(R, i + NUP)]
                if i + NUP == 15: ld += [f'ds_write_b32 v{vS}, v{vONE} offset:{F_A1}']
            if i == 15: w += ['s_waitcnt lgkmcnt(0)']
            seq = e[0:2] + ([] if (ph0 and i == 0) else [PV(i - 1, 1)]) + e[2:5] + w + [QK(i + 1)] + sw
            if i == 14:
                seq += [f's_add_u32 s{sT1}, s{sPH}, 1\ns_lshr_b32 s{sT2}, s{sT1}, 1\ns_sub_u32 s{sT2}, s{sSW}, s{sT2}', e[5],
                        f's_and_b32 s{sT2}, s{sT2}, 3\ns_and_b32 s{sT1}, s{sT1}, 1\ns_lshl_b32 s{sT1}, s{sT1}, 2', e[6],
                        f's_add_u32 s{sT2}, s{sT2}, s{sT1}\ns_lshl_b32 s{sT0}, s{sT2}, 10', e[7], f'v_add_u32 v{vQA}, s{sT0}, v{vL16}', e[8],
                        f'ds_read_b128 {q4(Q)}, v{vQA} offset:{L_QF}'] + e[9:11]
            else:
                seq += e[5:11]
            seq += [PV(i, 0)] + e[11:13] + ld + e[13:16]
            for x in seq: a(x)
        a(f's_setprio {opt("aprio", 1)}')
        getm()
        a(f's_waitcnt vmcnt({sum(nl(t) for t in range(NUP)) - 1}) lgkmcnt(0)')
        a(QK(0))
        if slow:
            plain(0, True); plain(1)
            a(f's_branch L_mid{sf}')
        else:
            for i in range(16): plain(i, True)
            self.stamp(7)
        a('.p2align 6')
        a(f'L_loop{sf}:')
        a(f's_add_u32 s{sPH}, s{sPH}, 1\ns_mov_b32 s{sTJ}, s{sT2}')
        getm()
        e = [E(0, r) for r in range(16)]
        for x in e[0:2] + [PV(15, 1), e[2], f's_add_u32 s{sT1}, s{sPH}, 1', e[3], f's_lshl_b32 s{sT3}, s{sTJ}, 9', e[4], QK(1), f's_lshl_b32 s{sT4}, s{sTJ}, 11', e[5], e[6],
                           f's_cmp_eq_u32 s{sPH}, {PH0 + 7}', e[7], f's_cbranch_scc1 L_finx{sf}',
                           wr[0], f'v_mov_b32 v{O+9}, s{sT1}', e[8], wr[1], e[9], wr[2]]: a(x)
        a(f'L_finxd{sf}:')
        for x in [f'v_add_u32 v{vA8}, s{sT3}, v{vL8}', f'v_add_u32 v{vA16}, s{sT4}, v{vL16}', rd[0], e[10], rd[1], e[11], rd[2]] + e[12:16]: a(x)
        e0 = e
        e = [E(1, r) for r in range(16)]
        NW = opt('nw', 6)
        for x in e[0:NW]: a(x)
        a(f's_waitcnt lgkmcnt(0)\nv_cmp_gt_u32 vcc, s{sPH}, v{O+9}\ns_cbranch_vccnz L_hw{sf}')
        a(f'L_hd{sf}:')
        for x in [PV(0, 0)] + e[NW:NW+3] + [PV(0, 1)] + e[NW+3:NW+6] + [QK(2)] + e[NW+6:NW+9] + [PV(1, 0)] + e[NW+9:16]: a(x)
        a(f'L_mid{sf}:')
        for i in range(2, 16):
            plain(i)
        a(f's_cmp_lt_u32 s{sPH}, {PH0 + 7}\ns_cbranch_scc1 L_loop{sf}')
        a(PV(15, 1))
        a(f's_nop 10\ns_branch L_end{sf}')
        a(f'L_finx{sf}:')
        a(e0[8]); a(e0[9])
        self.publish(R, 0, F_AX)
        a(f's_branch L_finxd{sf}')
        a(f'L_hw{sf}:')
        a(f's_mov_b32 s{sCNT}, {SPIN}')
        a(f'L_hl{sf}:')
        a(f's_sleep 1')
        for x in rd: a(x)
        a(f's_waitcnt lgkmcnt(0)\nv_cmp_gt_u32 vcc, s{sPH}, v{O+9}\ns_cbranch_vccz L_hd{sf}\ns_sub_u32 s{sCNT}, s{sCNT}, 1\ns_cbranch_scc0 L_hl{sf}\ns_branch L_hd{sf}')
        a(f'L_end{sf}:')

    def oproj_pre(self):
        a = self.a
        vWO, vG, vH = 240, 241, 242
        sOB, sKH = sT4, sT1
        a(f's_setprio 3\nds_read_b32 v{vT}, v{vF} offset:{F_WO}')
        a(f's_lshr_b32 s{sKH}, s{sSW}, 1\ns_lshl_b32 s{sOB}, s{sRB}, 16\ns_lshl_b32 s{sT0}, s{sKH}, 14\ns_add_u32 s{sOB}, s{sOB}, s{sT0}\ns_add_u32 s{sOB}, s{sOB}, {WS_OBUF:#x}')
        self.tr_parts(vG, vH, vWO)

    def oproj(self):
        a = self.a
        vWO, vG, vH, vOA, vXW, vXR, vP = range(240, 247)
        WF, OF, OA = 0, 64, [192, 208]
        sPEND, sOB, sKH, sOUT = sT3, sT4, sT1, sT5
        a(f's_waitcnt lgkmcnt(0)\nv_cmp_eq_u32 vcc, 0, v{vT}\ns_cbranch_vccz L_wook')
        self.wait(F_WO, sleep=1)
        a('L_wook:')
        self.stamp(11)
        def loads(q):
            a(f's_add_u32 s{sT0}, s{sOB}, {4096*(q%4) + 0x8000*(q//4)}')
            for n in range(4): a(f'buffer_load_dwordx4 {q4(OF+16*q+4*n)}, v{vL16}, s[{SWS}:{SWS+3}], s{sT0} offen offset:{1024*n} sc1')
        def proc(q, lab):
            b = OF + 16 * q
            a(f'v_max3_u32 v{vT}, v{b}, v{b+1}, v{b+2}')
            for r in range(3, 15, 2): a(f'v_max3_u32 v{vT}, v{b+r}, v{b+r+1}, v{vT}')
            a(f'v_max_u32 v{vT}, v{b+15}, v{vT}\nv_cmp_eq_u32 vcc, -1, v{vT}\ns_cbranch_vccnz {lab}')
            for n in range(4):
                a(f'v_mfma_f32_32x32x16_bf16 {t16(OA[q//4])}, {q4(b+4*n)}, {q4(WF+16*(q%4)+4*n)}, {t16(OA[q//4])}')
            a(f's_bitset0_b32 s{sPEND}, {q}')
            a(f'{lab}:')
        loads(0); loads(1)
        a(f'v_lshrrev_b32 v{vH}, 5, v{vLN}\nv_lshl_add_u32 v{vWO}, v{vH}, 9, v{vWO}\ns_lshl_b32 s{sT0}, s{sKH}, 15\ns_add_u32 s{sT0}, s{sT0}, {L_A1}\nv_add_u32 v{vWO}, s{sT0}, v{vWO}')
        for st in range(16):
            d = WF + 4 * st
            a(f'ds_read_b64_tr_b16 {pr(d)}, v{vWO} offset:{2048*st}\nds_read_b64_tr_b16 {pr(d+2)}, v{vWO} offset:{2048*st+1024}')
            if st == 7: loads(2)
        loads(3)
        for r in range(32): a(f'v_mov_b32 v{OA[0]+r}, 0')
        a(f's_mov_b32 s{sPEND}, 0xff\ns_mov_b32 s{sCNT}, 50000')
        for q in range(4):
            loads(4 + q)
            a(f's_waitcnt vmcnt(16) lgkmcnt(0)')
            proc(q, f'L_o1_{q}')
        self.stamp(12)
        a(f'v_and_b32 v{vOA}, 31, v{vLN}\nv_lshlrev_b32 v{vOA}, 2, v{vOA}\nv_lshl_add_u32 v{vOA}, v{vH}, 14, v{vOA}')
        a(f's_and_b32 s{sT0}, s{sOW}, 0xc00\ns_lshl_b32 s{sT0}, s{sT0}, 1\nv_add_u32 v{vXW}, s{sT0}, v{vL16}\ns_xor_b32 s{sT0}, s{sT0}, 0x1000\nv_add_u32 v{vXR}, s{sT0}, v{vL16}\nv_xor_b32 v{vP}, 8, v{vS}')
        self.srd(SOUT, P(14), 2048 * 4096)
        a(f's_lshl_b32 s{sOUT}, s{sRB}, 18\ns_lshl_b32 s{sT0}, s{sCG}, 1\ns_and_b32 s{sT2}, s{sWV}, 1\ns_add_u32 s{sT0}, s{sT0}, s{sT2}\ns_lshl_b32 s{sT0}, s{sT0}, 7\ns_add_u32 s{sOUT}, s{sOUT}, s{sT0}\ns_lshl_b32 s{sT0}, s{sKH}, 17\ns_add_u32 s{sOUT}, s{sOUT}, s{sT0}')
        for q in range(4, 8):
            a(f's_waitcnt vmcnt({28 - 4*q})')
            proc(q, f'L_o1_{q}')
        a('L_oretry:')
        a(f's_cmp_eq_u32 s{sPEND}, 0\ns_cbranch_scc1 L_odone\ns_sub_u32 s{sCNT}, s{sCNT}, 1\ns_cbranch_scc1 L_odone')
        for q in range(8):
            a(f's_bitcmp0_b32 s{sPEND}, {q}\ns_cbranch_scc1 L_ol_{q}')
            loads(q)
            a(f'L_ol_{q}:')
        a('s_waitcnt vmcnt(0)')
        for q in range(8):
            a(f's_bitcmp0_b32 s{sPEND}, {q}\ns_cbranch_scc1 L_o2_{q}')
            proc(q, f'L_o2_{q}')
        a('s_branch L_oretry')
        a('L_odone:')
        if self.stamps: a(f's_mov_b32 s{sST+14}, s{sCNT}')
        self.stamp(1)
        fl = {0: '', 1: ' sc1', 2: ' nt', 3: ' sc0 sc1'}[opt('ofl', 0)]
        a(f's_nop 7\ns_cmp_eq_u32 s{sKH}, 0\ns_cbranch_scc0 L_ohi')
        for kh in range(2):
            keep, send = OA[kh], OA[1 - kh]
            for q in range(4): a(f'ds_write_b128 v{vXW}, {q4(send+4*q)} offset:{L_ACCD + 8192*(q//2) + 1024*(q%2)}')
            self.sig(F_OX)
            self.wait(F_OX, sleep=0, va=vP)
            for q in range(4): a(f'ds_read_b128 {q4(4*q)}, v{vXR} offset:{L_ACCD + 8192*(q//2) + 1024*(q%2)}')
            for r in range(16):
                if r % 4 == 0: a(f's_waitcnt lgkmcnt({3 - r//4})')
                a(f'v_add_f32 v{r}, v{r}, v{keep+r}\ns_add_u32 s{sT0}, s{sOUT}, {((r % 4) + 8 * (r // 4)) * 4096}')
                a(f'buffer_store_dword v{r}, v{vOA}, s[{SOUT}:{SOUT+3}], s{sT0} offen{fl}')
            self.end()
            if kh == 0: a('L_ohi:')

    def kvproj(self):
        a = self.a
        vXA, vWA, vU, vO, vZ, D = 176, 177, 178, 179, 180, 184
        a(f's_lshr_b32 s{sT5}, s{sCG}, 1')
        a(f'v_and_b32 v{vT}, 15, v{vLN}\ns_lshl_b32 s{sT0}, s{sT5}, 4\nv_add_u32 v{vO}, s{sT0}, v{vT}\nv_mul_u32_u24 v{vXA}, 1040, v{vO}')
        a(f'v_lshrrev_b32 v{vU}, 4, v{vLN}\nv_lshl_add_u32 v{vXA}, v{vU}, 4, v{vXA}\nv_add_u32 v{vXA}, {L_A1}, v{vXA}')
        a(f'v_lshlrev_b32 v{vWA}, 3, v{vT}\nv_lshl_add_u32 v{vWA}, v{vU}, 8, v{vWA}\nv_add_u32 v{vWA}, {L_WKV}, v{vWA}')
        a(f's_and_b32 s{sT1}, s{sCG}, 1\ns_xor_b32 s{sT2}, s{sT1}, 1')
        a(f'v_lshrrev_b32 v{vO}, s{sT1}, v{vU}\nv_and_b32 v{vO}, 1, v{vO}\nv_lshlrev_b32 v{vO}, 9, v{vO}\nv_lshl_add_u32 v{vO}, v{vT}, 4, v{vO}')
        a(f'v_lshrrev_b32 v{vT}, s{sT2}, v{vU}\nv_and_b32 v{vT}, 1, v{vT}\nv_lshl_add_u32 v{vO}, v{vT}, 3, v{vO}')
        a(f's_lshl_b32 s{sT0}, s{sRB}, 1\ns_lshr_b32 s{sT2}, s{sT5}, 1\ns_add_u32 s{sT0}, s{sT0}, s{sT2}\ns_lshl_b32 s{sT0}, s{sT0}, 1\ns_add_u32 s{sT0}, s{sT0}, s{sT1}\ns_lshl_b32 s{sT0}, s{sT0}, 10')
        a(f's_and_b32 s{sT2}, s{sT5}, 1\ns_lshl_b32 s{sT2}, s{sT2}, 8\ns_add_u32 s{sT0}, s{sT0}, s{sT2}\ns_add_u32 s{sT3}, s{sT0}, {WS_KVIMG:#x}')
        a(f's_lshl_b32 s{sT4}, s{sRB}, 3\ns_add_u32 s{sT4}, s{sT4}, s{sCG}\ns_lshl_b32 s{sT4}, s{sT4}, {opt("fs", 7)}\ns_add_u32 s{sT4}, s{sT4}, {WS_KVFLAG:#x}')
        a(f'v_mov_b32 v{vZ}, 0')
        self.wait(F_L1, sleep=0)
        self.stamp(12)
        def rd(s):
            b = 128 + 8 * (s % 6)
            a(f'ds_read_b128 {q4(b)}, v{vXA} offset:{64*s}')
            a(f'ds_read_b64_tr_b16 {pr(b+4)}, v{vWA} offset:{1024*s}')
            a(f'ds_read_b64_tr_b16 {pr(b+6)}, v{vWA} offset:{1024*s+128}')
        for s in range(4): rd(s)
        a(f's_bitcmp1_b32 s{sCG}, 0\ns_cbranch_scc1 L_kv_v')
        def chain(kind):
            for s in range(16):
                if s + 4 < 16: rd(s + 4)
                a(f's_waitcnt lgkmcnt({3 * min(4, 15 - s)})')
                b = 128 + 8 * (s % 6)
                A, B = (q4(b + 4), q4(b)) if kind == 'k' else (q4(b), q4(b + 4))
                a(f'v_mfma_f32_16x16x32_bf16 {q4(D)}, {A}, {B}, {"0" if s == 0 else q4(D)}')
            a(f'v_cvt_pk_bf16_f32 v188, v{D}, v{D+1}\nv_cvt_pk_bf16_f32 v189, v{D+2}, v{D+3}')
            a(f'buffer_store_dwordx2 v[188:189], v{vO}, s[{SWS}:{SWS+3}], s{sT3} offen sc1')
        chain('k')
        a(f'v_mul_f32 v190, v{D}, v{D}\nv_fmac_f32 v190, v{D+1}, v{D+1}\nv_fmac_f32 v190, v{D+2}, v{D+2}\nv_fmac_f32 v190, v{D+3}, v{D+3}')
        a('v_mov_b32 v191, v190\nv_permlane32_swap_b32 v190, v191\nv_add_f32 v190, v190, v191')
        a('v_mov_b32 v191, v190\nv_permlane16_swap_b32 v190, v191\nv_add_f32 v190, v190, v191')
        a('s_mov_b64 exec, 0xffff\ns_branch L_kv_fin')
        a('L_kv_v:')
        chain('v')
        a(f'v_max3_f32 v190, |v{D}|, |v{D+1}|, |v{D+2}|\nv_max_f32 v190, |v{D+3}|, v190')
        a(f's_mov_b32 s{sT1}, {f2u(2.0**50):#x}\nv_cmp_lt_f32 vcc, s{sT1}, v190\nv_mov_b32 v190, 0x7f800000\ns_mov_b64 exec, vcc')
        a('L_kv_fin:')
        a(f'ds_max_u32 v{vZ}, v190 offset:{F_KST}\ns_mov_b64 exec, -1\nds_read_b32 v183, v{vZ} offset:{F_KST}')
        a('s_waitcnt vmcnt(1)')
        self.get_tag()
        a(f's_getreg_b32 s{sT0}, hwreg(HW_REG_XCC_ID)\nv_mov_b32 v182, s{sTAG}\nv_mov_b32 v184, s{sT0}')
        self.stamp(13)

    def service(self):
        a = self.a
        self.cyc = False
        L1, L8, L16, L128, FF, WW, CC = 192, 194, 196, 198, 200, 202, 204
        DG = 206
        vXD, vXR, vXR2, vBD, vHA, vHB, vSX, vTW, vTR, vEA, vXS, vOA, vWI, vP8, vCK, vCS, vCK2, vCS2, vHF, vYW, vE0, vPF, vTG, vYR = range(214, 238)
        PRM = 238
        vC31, vHI, vU, vWA, vXA, vQ = 242, 243, 244, 245, 246, 247
        a('L_service:')
        a(f'v_mov_b32 v0, 0\nv_mov_b32 v1, 0\nv_mov_b32 v2, 0\nv_mov_b32 v3, 0')
        a(f's_lshl_b32 s{sT0}, s{sSW}, 10\nv_add_u32 v{vT}, s{sT0}, v{vL16}\nds_write_b128 v{vT}, v[0:3] offset:{L_ACCF}')
        a(f'v_lshlrev_b32 v{vT}, 3, v{vLN}\nds_write_b64 v{vT}, v[0:1]')
        a(f'v_and_b32 v{vC31}, 31, v{vLN}\nv_lshlrev_b32 v{vU}, 1, v{vC31}\nv_lshrrev_b32 v{vHI}, 5, v{vLN}')
        a('s_waitcnt lgkmcnt(0)')
        self.stamp(0)
        a('s_barrier\ns_setprio 3')
        if opt('cpf', 1):
            a(f's_cmp_lg_u32 s{sSW}, 1\ns_cbranch_scc1 L_nocpf')
            a(f's_getpc_b64 s[{sM0}:{sM0+1}]')
            a('L_pc:')
            a(f's_sub_u32 s{sM0}, s{sM0}, L_pc-{NAME}_kernel\ns_subb_u32 s{sM0+1}, s{sM0+1}, 0')
            a(f's_lshr_b32 s{sT0}, s2, 3\ns_mul_i32 s{sT0}, s{sT0}, 1536\ns_min_u32 s{sT0}, s{sT0}, L_exit-{NAME}_kernel-1536\ns_add_u32 s{sM0}, s{sM0}, s{sT0}\ns_addc_u32 s{sM0+1}, s{sM0+1}, 0')
            for k in range(24): a(f's_load_dword s{SOUT + k % 4}, s[{sM0}:{sM0+1}], {64*k}')
            a('L_nocpf:')
        self.srd(SWS, P(16), WS_SIZE)
        a(f'buffer_load_dword v{vEP}, off, s[{SWS}:{SWS+3}], 0 sc1')
        a(f's_lshl_b32 s{sT0}, s{sPB}, 6')
        for k, p in enumerate((6, 7, 12)):
            self.srd(SA, P(p), 1024)
            a(f'buffer_load_ushort v{PRM+k}, v{vU}, s[{SA}:{SA+3}], s{sT0} offen')
        self.srd(SA, P(13), 1024)
        a(f's_lshl_b32 s{sT0}, s{sCG}, 7\ns_and_b32 s{sT1}, s{sWV}, 1\ns_lshl_b32 s{sT1}, s{sT1}, 6\ns_add_u32 s{sT0}, s{sT0}, s{sT1}')
        a(f'buffer_load_ushort v{PRM+3}, v{vU}, s[{SA}:{SA+3}], s{sT0} offen')
        self.common_regs()
        self.tr_parts(vTR, vU, vWA)
        a(f'v_lshl_add_u32 v{vTR}, v{vU}, 6, v{vTR}\nv_lshl_add_u32 v{vTR}, v{vHI}, 9, v{vTR}')
        a(f'v_lshl_add_u32 v{vWA}, v{vHI}, 10, v{vWA}\nv_add_u32 v{vWA}, {L_A2}, v{vWA}')
        a(f'v_mul_u32_u24 v{vCK}, 1040, v{vC31}\nv_lshl_add_u32 v{vCK}, v{vHI}, 4, v{vCK}\nv_add_u32 v{vCK}, {L_A1}, v{vCK}')
        a(f's_lshr_b32 s{sT0}, s{sSW}, 1\ns_mul_i32 s{sT0}, s{sT0}, {32*1040}\nv_add_u32 v{vXA}, s{sT0}, v{vCK}')
        a(f's_lshl_b32 s{sT0}, s{sSW}, 11\nv_add_u32 v{vQ}, s{sT0}, v{vL16}')
        a(f's_cmp_lg_u32 s{sSW}, 0\ns_cbranch_scc1 L_nokv')
        self.kvproj()
        a('L_nokv:')
        WT, D = 128, 160
        self.wait(F_L2, sleep=1)
        self.stamp(1)
        a(f's_and_b32 s{sT1}, s{sRB}, 3')
        for st in range(32):
            if st % 8 == 0: a(f's_xor_b32 s{sT0}, s{sT1}, {st//8}\ns_lshl_b32 s{sT0}, s{sT0}, 8\nv_add_u32 v{vU}, s{sT0}, v{vXA}')
            a(f'ds_read_b128 {q4(4*st)}, v{vU} offset:{32*(st%8)}')
        a(f's_cmp_lg_u32 s{sSW}, 0\ns_cbranch_scc1 L_nokvf')
        a('s_waitcnt vmcnt(0)')
        a(f's_mov_b64 exec, {(1 << (1 << (opt("fs", 7) - 4))) - 1:#x}\nbuffer_store_dwordx4 v[182:185], v{vL16}, s[{SWS}:{SWS+3}], s{sT4} offen sc1\ns_mov_b64 exec, -1')
        self.sig(F_KVD, va=vF)
        self.stamp(14)
        a('L_nokvf:')
        def wr(st):
            b = WT + 4 * (st % 8)
            a(f'ds_read_b64_tr_b16 {pr(b)}, v{vWA} offset:{2048*st}\nds_read_b64_tr_b16 {pr(b+2)}, v{vWA} offset:{2048*st+512}')
        for s0, s1, fl in ((0, 16, F_L4), (16, 32, F_L6)):
            self.wait(fl, sleep=0)
            if s0 == 0:
                self.stamp(2)
            for st in range(s0, s0 + 6): wr(st)
            for st in range(s0, s1):
                a(f's_waitcnt lgkmcnt({2 * min(5, s1 - 1 - st)})')
                a(f'v_mfma_f32_32x32x16_bf16 {t16(D)}, {q4(WT + 4*(st%8))}, {q4(4*st)}, {"0" if st == 0 else t16(D)}')
                if st + 6 < s1: wr(st + 6)
        QS = f2u(0.25 * math.log2(math.e))
        a(f'v_mov_b32 v24, {QS:#x}')
        for r in range(8):
            a(f'v_pk_mul_f32 {pr(D+2*r)}, v[24:25], {pr(D+2*r)} op_sel:[0,0] op_sel_hi:[0,1]')
            a(f'v_cvt_pk_bf16_f32 v{16+r}, v{D+2*r}, v{D+2*r+1}')
            if r == 3: a(f'ds_write_b128 v{vQ}, v[16:19] offset:{L_QF}')
        a(f'ds_write_b128 v{vQ}, v[20:23] offset:{L_QF+1024}')
        self.sig(F_QP)
        self.stamp(3)
        a(f'v_mul_f32 v8, v{D}, v{D}\nv_mul_f32 v9, v{D+8}, v{D+8}')
        for r in range(1, 8): a(f'v_fmac_f32 v8, v{D+r}, v{D+r}\nv_fmac_f32 v9, v{D+8+r}, v{D+8+r}')
        a('v_permlane32_swap_b32 v8, v9\nv_add_f32 v8, v8, v9')
        a(f'v_mov_b32 v{vQ}, v8')
        if 'nosvc' in OPT:
            self.sig(F_S[0]); self.sig(F_S[9]); self.end(); return
        sXB, sXL, sTP, sCT = 73, 74, 75, 80
        a(f's_lshl_b32 s{sXB}, s{sTB}, 2\ns_add_u32 s{sXB}, s{sXB}, s{sSW}\ns_lshl_b32 s{sXB}, s{sXB}, 15')
        a(f's_mul_i32 s{sXL}, s{sSW}, {XW}\ns_add_u32 s{sXL}, s{sXL}, {L_A2}')
        a(f's_lshl_b32 s{sTP}, s{sRB}, 1\ns_lshr_b32 s{sT0}, s{sSW}, 1\ns_add_u32 s{sTP}, s{sTP}, s{sT0}')
        a(f's_lshl_b32 s{sCT}, s{sCG}, 1\ns_and_b32 s{sT0}, s{sSW}, 1\ns_add_u32 s{sCT}, s{sCT}, s{sT0}')
        a(f'v_lshlrev_b32 v{vT}, 3, v{vHI}\nv_xor_b32 v{vT}, v{vC31}, v{vT}\nv_lshlrev_b32 v{vT}, 4, v{vT}\nv_lshl_add_u32 v{vXD}, v{vHI}, 13, v{vT}\nv_lshl_add_u32 v{vBD}, v{vHI}, 10, v{vT}')
        def tmap(i):
            r = 4 * (i >> 3) + (i & 3)
            return 16 * ((i >> 2) & 1) + (r >> 1) + 8 * (r & 1)
        def xdma(half, ms=range(16)):
            for m in ms:
                a(f's_xor_b32 s{sT0}, s{sXM}, {m}\ns_mul_i32 s{sT0}, s{sT0}, 1040\ns_add_u32 m0, s{sT0}, s{sXL}\ns_xor_b32 s{sT0}, s{sXG}, {tmap(2*m)*1024 + 512*half}')
                a(f'buffer_load_dwordx4 v{vXD}, s[{SA}:{SA+3}], s{sT0} offen lds')
        sXM, sXG, sHB = 50, 51, 81
        a(f's_and_b32 s{sXM}, s{sPB}, 14\ns_and_b32 s{sT0}, s{sPB}, 2\ns_lshl_b32 s{sT0}, s{sT0}, 3\ns_lshr_b32 s{sT1}, s{sPB}, 2\ns_lshl_b32 s{sT1}, s{sT1}, 1\ns_add_u32 s{sT0}, s{sT0}, s{sT1}\ns_lshl_b32 s{sT0}, s{sT0}, 10')
        a(f's_xor_b32 s{sHB}, s{sPB}, s{sTB}\ns_and_b32 s{sHB}, s{sHB}, 1\ns_lshl_b32 s{sHB}, s{sHB}, 9\ns_add_u32 s{sT0}, s{sT0}, s{sHB}\ns_add_u32 s{sXG}, s{sXB}, s{sT0}')
        self.srd(SA, P(5), 2048 * 1024)
        a(f'v_lshrrev_b32 v{vU}, 1, v{vC31}\nv_mul_u32_u24 v{vU}, 1040, v{vU}\nv_lshl_add_u32 v{vU}, v{vHI}, 4, v{vU}\nv_and_b32 v{vT}, 1, v{vC31}')
        a(f'v_mul_u32_u24 v{vHA}, 640, v{vT}\nv_mul_u32_u24 v{vHB}, 384, v{vT}\nv_add_u32 v{vHA}, v{vHA}, v{vU}\nv_add_u32 v{vHB}, v{vHB}, v{vU}')
        a(f'v_add_u32 v{vXR}, s{sXL}, v{vHA}\nv_add_u32 v{vXR2}, s{sXL}, v{vHB}\nv_add_u32 v{vHA}, {L_A1}, v{vHA}\nv_add_u32 v{vHB}, {L_A1}, v{vHB}')
        a(f'v_lshlrev_b32 v{vSX}, 3, v{vLN}\nv_add_u32 v{vSX}, s{sXL}, v{vSX}')
        a(f'v_lshlrev_b32 v{vP8}, 3, v{vC31}\nv_add_u32 v{vP8}, {L_A2}, v{vP8}')
        a(f'v_lshlrev_b32 v{vTW}, 6, v{vC31}\nv_lshl_add_u32 v{vTW}, v{vHI}, 5, v{vTW}\nv_add_u32 v{vTW}, s{sXL}, v{vTW}\nv_add_u32 v{vTR}, s{sXL}, v{vTR}')
        a(f'v_lshlrev_b32 v{vEA}, 4, v{vC31}\nv_xor_b32 v{vT}, 1, v{vHI}\nv_lshl_add_u32 v{vEA}, v{vT}, 12, v{vEA}')
        a(f'v_lshlrev_b32 v{vXS}, 10, v{vC31}\nv_lshl_add_u32 v{vXS}, v{vHI}, 4, v{vXS}')
        a(f'v_lshlrev_b32 v{vOA}, 2, v{vC31}\nv_lshl_add_u32 v{vOA}, v{vHI}, 14, v{vOA}')
        self.wimg_lane_addr(vWI, vT)
        a(f's_and_b32 s{sT0}, s{sSW}, 1\ns_mul_i32 s{sT1}, s{sT0}, {512 - 32*1040}\ns_add_u32 s{sT1}, s{sT1}, {32*1040}\nv_add_u32 v{vCS}, s{sT1}, v{vCK}')
        a(f's_mul_i32 s{sT1}, s{sT0}, {32*1040 + 512}\nv_add_u32 v{vCK}, s{sT1}, v{vCK}\nv_add_u32 v{vCK2}, {L_A2 - L_A1}, v{vCK}\nv_add_u32 v{vCS2}, {L_A2 - L_A1}, v{vCS}')
        a(f'v_and_b32 v{vHF}, 15, v{vLN}\nv_lshlrev_b32 v{vHF}, 7, v{vHF}\nv_lshlrev_b32 v{vPF}, 6, v{vLN}')
        a(f'v_add_u32 v{vYW}, s{sXL}, v{vL16}\ns_xor_b32 s{sT0}, s{sSW}, 1\ns_mul_i32 s{sT0}, s{sT0}, {XW}\ns_add_u32 s{sT0}, s{sT0}, {L_A2}\nv_add_u32 v{vYR}, s{sT0}, v{vL16}')
        a('s_waitcnt vmcnt(0)')
        self.get_tag()
        a(f'v_mov_b32 v{vTG}, s{sTAG}')
        a(f'v_lshlrev_b32 v0, 16, v{PRM}\nv_lshlrev_b32 v1, 16, v{PRM+1}\nv_lshlrev_b32 v2, 16, v{PRM+2}')
        LOG2E = f2u(math.log2(math.e))
        a(f'v_mul_f32 v2, {LOG2E:#x}, v2\nv_exp_f32 v2, v2\nv_cvt_pk_bf16_f32 v2, v2, v2\nv_lshlrev_b32 v2, 16, v2')
        a(f'v_mul_f32 v4, v2, v0\nv_mul_f32 v5, v2, v1\nv_mul_f32 v4, {LOG2E:#x}, v4\nv_mul_f32 v5, {f2u(-1/(2*math.pi)):#x}, v5')
        def power(d, n):
            a(f'v_mul_f32 v6, {n}, v4\nv_mul_f32 v7, {n}, v5\nv_exp_f32 v6, v6\nv_fract_f32 v7, v7\nv_cos_f32 v8, v7\nv_sin_f32 v9, v7\nv_mul_f32 v{d}, v6, v8\nv_mul_f32 v{d+1}, v6, v9')
        power(L1, '1.0')
        power(L8, f'{f2u(8.0):#x}')
        power(L16, f'{f2u(16.0):#x}')
        power(L128, f'{f2u(128.0):#x}')
        a(f'v_cvt_f32_u32 v11, v{vHI}\nv_mul_f32 v11, {f2u(1024.0):#x}, v11')
        power(FF, 'v11')
        a(f's_lshl_b32 s{sT0}, s{sSW}, 1\nv_add_u32 v11, s{sT0}, v{vHI}\nv_cvt_f32_u32 v11, v11\nv_mul_f32 v11, {f2u(16.0):#x}, v11')
        power(WW, 'v11')
        a(f'v_add_f32 v6, -1.0, v{L1}\nv_mul_f32 v7, v0, v0\nv_fmac_f32 v7, v1, v1\nv_rcp_f32 v7, v7\nv_add_f32 v7, v7, v7')
        a(f'v_mul_f32 v8, v6, v0\nv_fma_f32 v8, -v{L1+1}, v1, v8\nv_mul_f32 v9, v6, v1\nv_fma_f32 v9, -v{L1+1}, v0, -v9\nv_mul_f32 v{CC}, v8, v7\nv_mul_f32 v{CC+1}, v9, v7')
        a(f'v_and_b32 v6, 1, v{vLN}\nv_lshlrev_b32 v6, 4, v6\nv_lshlrev_b32 v3, v6, v{PRM+3}')
        a(f'v_lshrrev_b32 v6, 1, v{vC31}\nv_lshlrev_b32 v7, 2, v{vHI}\nv_sub_u32 v6, v6, v7')
        for q in range(8):
            a(f'v_cmp_eq_u32 vcc, {8*(q//4) + q%4}, v6\nv_cndmask_b32 v{DG+q}, 0, v3, vcc')
        LC = PRM
        a(f'v_mov_b32 v{LC}, 0\nv_mov_b32 v{LC+1}, 0')
        SN = 180
        a(f'v_mov_b32 v{SN}, -1\nv_mov_b32 v{SN+1}, -1\nv_mov_b32 v{SN+2}, -1\nv_mov_b32 v{SN+3}, -1\nv_mov_b32 v{SN+4}, 0\nv_mov_b32 v{SN+5}, 0\nv_mov_b32 v{SN+6}, s{sTAG}\nv_mov_b32 v{SN+7}, 0')
        self.srd(SB, P(8), 512 * 1024)
        self.srd(SC, P(9), 512 * 1024)
        self.stamp(11)
        def bdma(half, only=None):
            if half == 0: a(f's_mul_i32 s{sT1}, s{sSW}, {4*1040}\ns_lshl_b32 s{sT2}, s{sPB}, 15\ns_lshl_b32 s{sT3}, s{sSW}, 13\ns_add_u32 s{sT2}, s{sT2}, s{sT3}\ns_add_u32 s{sT2}, s{sT2}, s{sHB}')
            for pl, srd in ((0, SB), (1, SC)):
                for m in range(4):
                    if only is not None and only != 4 * pl + m: continue
                    a(f's_add_u32 m0, s{sT1}, {L_A1 + ((2*half + pl)*16 + m)*1040}\ns_xor_b32 s{sT0}, s{sT2}, {2048*m + 512*half}')
                    a(f'buffer_load_dwordx4 v{vBD}, s[{srd}:{srd+3}], s{sT0} offen lds')
        def xread(half):
            for s in range(16): a(f'ds_read_b128 {q4(64*half + 4*s)}, v{vXR2 if s & 4 else vXR} offset:{32*s}')
        def rowdma(srd, base, sg, n):
            for m in range(n):
                if m % 4 == 0: a(f's_add_u32 m0, s{sT1}, {base + m*1040}\ns_add_u32 s{sT0}, s{sg}, {1024*m}')
                else: a('s_add_u32 m0, m0, 16')
                a(f'buffer_load_dwordx4 v{vL16}, s[{srd}:{srd+3}], s{sT0} offen offset:{1024*(m%4)} lds')
        self.wait(F_A1, sleep=2)
        self.stamp(10)
        a(f'ds_read_b64 {pr(SN+8)}, v{SN+4} offset:{F_KMAX}')
        xdma(0, range(2)); a(f's_mov_b32 s{sT0}, {f2u(3400.0):#x}\ns_waitcnt lgkmcnt(0)')
        a(f'v_mul_f32 v{vT}, v{SN+8}, v{vQ}\nv_cmp_nge_f32 vcc, s{sT0}, v{vT}\nv_readfirstlane_b32 s{sXC}, v{SN+9}\ns_cmp_eq_u64 vcc, 0\ns_cselect_b32 s{sT0}, 1, 2\nv_mov_b32 v{vQ}, s{sT0}')
        a(f'ds_write_b32 v{vS}, v{vQ} offset:{F_S[0]}')
        bdma(0); xdma(0, range(2, 16))
        a('s_waitcnt vmcnt(0)')
        self.sig(F_S[1])
        self.stamp(4)
        xread(0)
        self.wait(F_S[1], sleep=1)
        self.stamp(5)
        GR, GI, BT = 128, 144, 160
        PD = opt('s1depth', 4)
        lq = []
        def bread(q):
            s, pl = q // 2, q % 2
            a(f'ds_read_b128 {q4(BT + 4*(q%5))}, v{vHB if s & 4 else vHA} offset:{((2*(s//16) + pl)*16)*1040 + 32*(s%16)}')
            lq.append(('b', q))
        a(f's_setprio {opt("gprio1", 0)}')
        for q in range(PD): bread(q)
        XQ = opt('xq', 20)
        for q in range(64):
            s, pl = q // 2, q % 2
            need = max([i for i, x in enumerate(lq) if x == ('b', q) or x == ('x', s)] + [-1])
            if need >= 0:
                a(f's_waitcnt lgkmcnt({len(lq) - 1 - need})')
                del lq[:need + 1]
            Gx = GI if pl else GR
            a(f'v_mfma_f32_32x32x16_bf16 {t16(Gx)}, {q4(4*s)}, {q4(BT + 4*(q%5))}, {"0" if s == 0 else t16(Gx)}')
            if q + PD == 32:
                a('s_setprio 3')
                self.wait(F_S[2], sleep=1); lq.clear()
                a(f's_setprio {opt("gprio1", 0)}')
                self.stamp(12)
            if q + PD < 64: bread(q + PD)
            if q < 4: bdma(1, 2 * q); bdma(1, 2 * q + 1)
            elif q < 12: xdma(1, [2 * q - 8, 2 * q - 7])
            elif pl == 1 and opt('pad1', 0): a(f's_nop {opt("pad1", 0) - 1}')
            if q == XQ:
                a('s_waitcnt vmcnt(0)')
                self.sig(F_S[2]); lq.append(('s', 0))
                a(f's_or_b32 s{sT0}, s2, s{sSW}\ns_cbranch_scc1 L_noep')
                a(f's_mov_b64 exec, 1\nbuffer_store_dword v{vTG}, off, s[{SWS}:{SWS+3}], 0 sc1\ns_mov_b64 exec, -1')
                a('L_noep:')
                a(f's_cmp_lg_u32 s{sTB}, 0\ns_cbranch_scc1 L_nozero')
                a(f's_lshl_b32 s{sT0}, s{sPB}, 14\ns_lshl_b32 s{sT1}, s{sSW}, 11\ns_add_u32 s{sT0}, s{sT0}, s{sT1}\ns_add_u32 s{sT0}, s{sT0}, {WS_EBUF:#x}')
                for n in range(2): a(f'buffer_store_dwordx4 {q4(SN+4)}, v{vL16}, s[{SWS}:{SWS+3}], s{sT0} offen offset:{1024*n} sc1')
                a('L_nozero:')
                a(f's_lshr_b32 s{sT0}, s{sSW}, 1\ns_and_b32 s{sT1}, s{sRB}, 1\ns_cmp_lg_u32 s{sT0}, s{sT1}\ns_cbranch_scc1 L_nosent')
                a(f's_lshl_b32 s{sT1}, s{sCG}, 12\ns_add_u32 s{sT0}, s{sXB}, s{sT1}\ns_add_u32 s{sT0}, s{sT0}, {WS_OBUF:#x}')
                self.xstore([f'buffer_store_dwordx4 {q4(SN)}, v{vL16}, s[{SWS}:{SWS+3}], s{sT0} offen offset:{1024*n}' for n in range(4)])
                a('L_nosent:')
                if opt('pf', 1): self.prefetch((10, 11, 4), vPF)
            if XQ < q <= XQ + 16:
                sx = q - XQ - 1
                a(f'ds_read_b128 {q4(64 + 4*sx)}, v{vXR2 if sx & 4 else vXR} offset:{32*sx}'); lq.append(('x', 16 + sx))
        a('s_setprio 3')
        self.stamp(6)
        if opt('stop', 0) == 6: self.end(); return
        RE = 'op_sel:[0,0,0] op_sel_hi:[0,1,1]'
        IM = 'op_sel:[1,0,0] op_sel_hi:[1,1,1]'
        T0, T1 = 8, 10
        def pstep(dr, di, sr, si, l, ur, ui, ns=0, nu=0):
            a(f'v_pk_fma_f32 {pr(T0)}, {pr(l)}, {pr(si)}, {pr(ur)} {IM} neg_lo:[{1-ns},0,0] neg_hi:[{1-ns},0,0]')
            a(f'v_pk_fma_f32 {pr(T1)}, {pr(l)}, {pr(sr)}, {pr(ui)} {IM} neg_lo:[0,0,{nu}] neg_hi:[0,0,{nu}]')
            a(f'v_pk_fma_f32 {pr(dr)}, {pr(l)}, {pr(sr)}, {pr(T0)} {RE}')
            a(f'v_pk_fma_f32 {pr(di)}, {pr(l)}, {pr(si)}, {pr(T1)} {RE} neg_lo:[{ns},0,0] neg_hi:[{ns},0,0]')
        def cstep(dr, di, sr, si, l, ur, ui):
            a(f'v_fma_f32 v{T0}, -v{l+1}, v{si}, v{ur}\nv_fma_f32 v{T1}, v{l+1}, v{sr}, v{ui}\nv_fma_f32 v{dr}, v{l}, v{sr}, v{T0}\nv_fma_f32 v{di}, v{l}, v{si}, v{T1}')
        def zstep(d, s, l, u):
            a(f'v_pk_fma_f32 {pr(T0)}, {pr(l)}, {pr(s)}, {pr(u)} {RE}')
            a(f'v_pk_fma_f32 {pr(d)}, {pr(l)}, {pr(s)}, {pr(T0)} op_sel:[1,1,0] op_sel_hi:[1,0,1] neg_lo:[1,0,0]')
        def cmul(r, i, neg):
            a(f'v_pk_mul_f32 {pr(T0)}, {pr(CC)}, {pr(i)} op_sel:[1,0] op_sel_hi:[1,1]')
            a(f'v_pk_mul_f32 {pr(T1)}, {pr(CC)}, {pr(r)} op_sel:[1,0] op_sel_hi:[1,1]')
            a(f'v_pk_fma_f32 {pr(r)}, {pr(CC)}, {pr(r)}, {pr(T0)} {RE} neg_lo:[0,0,{neg}] neg_hi:[0,0,{neg}]')
            a(f'v_pk_fma_f32 {pr(i)}, {pr(CC)}, {pr(i)}, {pr(T1)} {RE} neg_lo:[{neg},0,1] neg_hi:[{neg},0,1]')
        ER, EI, EE = 12, 14, 16
        pstep(ER, EI, GR, GI, L1, GR + 2, GI + 2, 1, 1)
        for r in range(4, 16, 2): pstep(ER, EI, ER, EI, L1, GR + r, GI + r, 0, 1)
        cstep(EE, EE + 1, ER, EI, L8, ER + 1, EI + 1)
        a(f'ds_write_b64 v{vSX}, {pr(EE)} offset:{L_SXO}')
        self.sig(F_S[3])
        self.srd(SB, P(10), 512 * 1024)
        self.srd(SC, P(11), 512 * 1024)
        a(f's_lshl_b32 s{sT3}, s{sSW}, 1\ns_mov_b32 s{sM0}, 0\ns_mov_b32 s{sM0+1}, -1')
        a(f's_lshl_b32 s{sT4}, s{sPB}, 14\ns_lshl_b32 s{sT1}, s{sTB}, 9\ns_add_u32 s{sT4}, s{sT4}, s{sT1}\ns_add_u32 s{sT4}, s{sT4}, {WS_EBUF:#x}')
        self.wait(F_S[3], sleep=1)
        for c in range(7): a(f'ds_read_b64 {pr(20+2*c)}, v{vP8} offset:{(c//2)*XW + L_SXO + (c%2)*256}')
        a('s_waitcnt lgkmcnt(0)')
        for c in range(7):
            a(f's_cmp_lt_u32 s{sT3}, {c}\ns_cbranch_scc1 L_lh_done')
            a(f's_cmp_gt_u32 s{sT3}, {c}\ns_cselect_b64 exec, -1, s[{sM0}:{sM0+1}]')
            zstep(LC, LC, L16, 20 + 2 * c)
        zstep(vTG - 2, LC, L16, EE)
        a(f's_add_u32 s{sT0}, s{sT4}, {16*512 - 512}\nbuffer_store_dwordx4 v[{vTG-2}:{vTG+1}], v{vL16}, s[{SWS}:{SWS+3}], s{sT0} offen sc1')
        a('L_lh_done:\ns_mov_b64 exec, -1')
        self.stamp(7)
        def cdma(srd, base):
            a(f's_mul_i32 s{sT1}, s{sSW}, {16*1040}\ns_lshl_b32 s{sT2}, s{sCG}, 16\ns_lshl_b32 s{sT3}, s{sSW}, 14\ns_add_u32 s{sT2}, s{sT2}, s{sT3}')
            rowdma(srd, base, sT2, 16)
        cdma(SB, L_A1)
        for r in range(0, 16, 2): cmul(GR + r, GI + r, 1)
        a(f's_mov_b32 s{sCNT}, 100000')
        a('L_eg:')
        for q in range(8): a(f'buffer_load_dwordx3 v[{24+4*q}:{26+4*q}], v{vEA}, s[{SWS}:{SWS+3}], s{sT4} offen offset:{512*q} sc1')
        a('s_waitcnt vmcnt(0)')
        a(f'v_cmp_ne_u32 vcc, s{sTAG}, v26')
        for q in range(1, 8): a(f'v_cmp_ne_u32 s[{sM1}:{sM1+1}], s{sTAG}, v{26+4*q}\ns_or_b64 vcc, vcc, s[{sM1}:{sM1+1}]')
        a(f's_cbranch_scc0 L_egd\ns_sleep {opt("esleep", 4)}\ns_sub_u32 s{sCNT}, s{sCNT}, 1\ns_cbranch_scc0 L_eg')
        a('L_egd:')
        self.sig(F_S[9])
        self.stamp(8)
        for q in range(1, 8): zstep(24, 24, L128, 24 + 4 * q)
        a(f'v_pk_mul_f32 {pr(T0)}, {pr(FF)}, {pr(24)} op_sel:[0,0] op_sel_hi:[0,1]')
        a(f'v_pk_fma_f32 {pr(20)}, {pr(FF)}, {pr(24)}, {pr(T0)} op_sel:[1,1,0] op_sel_hi:[1,0,1] neg_lo:[1,0,0]')
        a(f'v_mov_b32 v22, v20\nv_mov_b32 v23, v21\nv_permlane32_swap_b32 v20, v22\nv_permlane32_swap_b32 v21, v23\nv_pk_add_f32 {pr(20)}, {pr(20)}, {pr(22)}')
        IR, II = 24, 26
        cstep(IR, II, 20, 21, WW, LC, LC + 1)
        cstep(IR + 1, II + 1, IR, II, L8, ER, EI)
        cmul(IR, II, 0)
        pstep(GR, GI, IR, II, L1, GR, GI)
        for r in range(2, 16, 2): pstep(GR + r, GI + r, GR + r - 2, GI + r - 2, L1, GR + r, GI + r)
        for pl, Gx in ((0, GR), (1, GI)):
            for j in range(8):
                r0 = 4 * (j % 4) + j // 4
                a(f'v_cvt_pk_bf16_f32 v{28+8*pl+j}, v{Gx+r0}, v{Gx+r0+2}')
            a(f'ds_write_b128 v{vTW}, {q4(28+8*pl)} offset:{L_TBO+2048*pl}\nds_write_b128 v{vTW}, {q4(32+8*pl)} offset:{L_TBO+2048*pl+16}')
        for pl in range(2):
            for f in range(2):
                d = 44 + 8 * pl + 4 * f
                a(f'ds_read_b64_tr_b16 {pr(d)}, v{vTR} offset:{L_TBO+2048*pl+1024*f}\nds_read_b64_tr_b16 {pr(d+2)}, v{vTR} offset:{L_TBO+2048*pl+1024*f+256}')
        a(f's_lshl_b32 s{sT0}, s{sXB}, 1\ns_lshl_b32 s{sT1}, s{sPB}, 11\ns_add_u32 s{sT0}, s{sT0}, s{sT1}\ns_add_u32 s{sT0}, s{sT0}, {WS_HBUF:#x}\ns_add_u32 s{sT1}, s{sT0}, 0x8000')
        hs = []
        for pl in range(2):
            for f in range(2):
                d = 44 + 8 * pl + 4 * f
                hs += [f's_waitcnt lgkmcnt({6 - 4*pl - 2*f})', f'buffer_store_dwordx4 {q4(d)}, v{vL16}, s[{SWS}:{SWS+3}], s{sT0 if pl == 0 else sT1} offen offset:{1024*f}']
        self.xstore(hs)
        YK, YS, XF, HR = 128, 144, 184, 160
        a(f's_lshl_b32 s{sT0}, s{sTP}, 15\ns_lshl_b32 s{sT1}, s{sCT}, 6\ns_add_u32 s{sT0}, s{sT0}, s{sT1}')
        a(f'buffer_load_dwordx4 {q4(XF)}, v{vXS}, s[{SA}:{SA+3}], s{sT0} offen\nbuffer_load_dwordx4 {q4(XF+4)}, v{vXS}, s[{SA}:{SA+3}], s{sT0} offen offset:32')
        a(f's_lshr_b32 s{sT4}, s{sXB}, 4\ns_lshl_b32 s{sT3}, s{sPB}, 7\ns_add_u32 s{sT4}, s{sT4}, s{sT3}\ns_add_u32 s{sT4}, s{sT4}, {WS_HFLAG:#x}')
        self.wait(F_S[9], sleep=1)
        a(f's_mov_b32 s{sM1}, -1\ns_mov_b32 s{sM1+1}, 0\ns_waitcnt vmcnt(2)')
        a(f's_mov_b64 exec, s[{sM1}:{sM1+1}]')
        self.xstore([f'buffer_store_dword v{vTG}, v{vOA}, s[{SWS}:{SWS+3}], s{sT4} offen'])
        a('s_mov_b64 exec, -1')
        self.stamp(9)
        if opt('stop', 0) == 9: self.end(); return
        cdma(SC, L_A2)
        for j in range(16): a(f'ds_read_b128 {q4(8*j)}, v{vCK} offset:{32*j}\nds_read_b128 {q4(8*j+4)}, v{vCS} offset:{32*j}')
        self.sig(F_S[6])
        a('s_waitcnt vmcnt(17)')
        a(f'v_mfma_f32_32x32x16_bf16 {t16(YK)}, {q4(XF)}, {q4(DG)}, 0')
        a(f'v_mfma_f32_32x32x16_bf16 {t16(YK)}, {q4(XF+4)}, {q4(DG+4)}, {t16(YK)}')
        a(f's_lshl_b32 s{sT0}, s{sTP}, 11\ns_add_u32 s{sT0}, s{sT0}, {WS_HFLAG:#x}\ns_mov_b64 exec, 0xffff')
        a(f's_mov_b32 s{sCNT}, 100000')
        a('L_gph:')
        a(f'buffer_load_dword v{vT}, v{vHF}, s[{SWS}:{SWS+3}], s{sT0} offen sc1\ns_waitcnt vmcnt(0)\nv_cmp_ne_u32 vcc, s{sTAG}, v{vT}\ns_cbranch_vccz L_gdh')
        a(f's_sleep {opt("hsleep", 4)}\ns_sub_u32 s{sCNT}, s{sCNT}, 1\ns_cbranch_scc0 L_gph')
        a('L_gdh:\ns_mov_b64 exec, -1')
        self.sig(F_S[5])
        self.stamp(13)
        if opt('stop', 0) == 10: self.end(); return
        a(f's_lshl_b32 s{sT3}, s{sTP}, 16\ns_and_b32 s{sT0}, s{sSW}, 1\ns_lshl_b32 s{sT0}, s{sT0}, 14\ns_add_u32 s{sT3}, s{sT3}, s{sT0}\ns_add_u32 s{sT3}, s{sT3}, {WS_HBUF:#x}')
        NR = 13
        vq = []
        def hload(j):
            if j % 4 == 0 and j > 0: a(f's_add_u32 s{sT3}, s{sT3}, {4096 if j != 16 else 4096 + 16384}')
            a(f'buffer_load_dwordx4 {q4(HR + 4*(j%NR))}, v{vL16}, s[{SWS}:{SWS+3}], s{sT3} offen offset:{1024*(j%4)} sc1')
            vq.append(('h', j))
        for j in range(NR - 1): hload(j)
        self.wait(F_S[6], sleep=1)
        self.srd(SB, P(4), 512 * 1024)
        a(f's_lshl_b32 s{sT4}, s{sSW}, 17\ns_lshl_b32 s{sT1}, s{sCG}, 7\ns_add_u32 s{sT4}, s{sT4}, s{sT1}\ns_lshl_b32 s{sT1}, s{sSW}, 14\ns_add_u32 m0, s{sT1}, {L_A1}')
        a(f's_setprio {opt("gprio4", 0)}')
        lq = []
        def cread(j):
            c = 8 * (j % 16)
            a(f'ds_read_b128 {q4(c)}, v{vCK2} offset:{32*(j%16)}\nds_read_b128 {q4(c+4)}, v{vCS2} offset:{32*(j%16)}')
            lq.extend([('c', j), ('c', j)])
        wosig = False
        for j in range(32):
            need = vq.index(('h', j))
            w = f's_waitcnt vmcnt({len(vq) - 1 - need})'
            del vq[:need + 1]
            ln = max([i for i, x in enumerate(lq) if x == ('c', j)] + [-1])
            if ln >= 0:
                w += f' lgkmcnt({len(lq) - 1 - ln})'; del lq[:ln + 1]
            a(w)
            if j >= 8 and not wosig and not any(x[0] == 'w' for x in vq):
                self.sig(F_WO); lq.append(('s', 0)); wosig = True
            c = 8 * (j % 16); h = q4(HR + 4 * (j % NR))
            a(f'v_mfma_f32_32x32x16_bf16 {t16(YK)}, {h}, {q4(c)}, {t16(YK)}')
            if j + NR - 1 < 32: hload(j + NR - 1)
            a(f'v_mfma_f32_32x32x16_bf16 {t16(YS)}, {h}, {q4(c+4)}, {"0" if j == 0 else t16(YS)}')
            if j < 8:
                for m in range(2):
                    a(f'buffer_load_dwordx4 v{vWI}, s[{SB}:{SB+3}], s{sT4} offen lds\ns_add_u32 m0, m0, 1024\ns_add_u32 s{sT4}, s{sT4}, 8192')
                    vq.append(('w', 0))
            if j == 11:
                a('s_setprio 3')
                self.wait(F_S[5], sleep=1); lq.clear()
                a(f's_setprio {opt("gprio4", 0)}')
            if 12 <= j < 28: cread(j + 4)
            if opt('pad4', 0): a(f's_nop {opt("pad4", 0) - 1}')
        assert wosig
        a('s_setprio 3')
        self.sig(F_S[7])
        self.srd(SOUT, P(14), 2048 * 4096)
        a(f's_lshl_b32 s{sT2}, s{sTP}, 17\ns_lshl_b32 s{sT1}, s{sCT}, 7\ns_add_u32 s{sT2}, s{sT2}, s{sT1}')
        self.wait(F_S[7], sleep=1)
        for q in range(4): a(f'ds_write_b128 v{vYW}, {q4(YS+4*q)} offset:{1024*q}')
        self.sig(F_S[8])
        self.wait(F_S[8], sleep=1)
        for q in range(4): a(f'ds_read_b128 {q4(YS+4*q)}, v{vYR} offset:{1024*q}')
        a('s_waitcnt lgkmcnt(0)')
        fl = {0: '', 1: ' sc1', 2: ' nt', 3: ' sc0 sc1'}[opt('yfl', 0)]
        for r in range(0, 16, 2): a(f'v_pk_add_f32 {pr(YS+r)}, {pr(YK+r)}, {pr(YS+r)}')
        for r in range(16):
            a(f's_add_u32 s{sT0}, s{sT2}, {((r % 4) + 8 * (r // 4)) * 4096}')
            a(f'buffer_store_dword v{YS+r}, v{vOA}, s[{SOUT}:{SOUT+3}], s{sT0} offen offset:2048{fl}')
        self.stamp(2)
        self.end()

HEADER = open('cdna_kernels/' + NAME + '.s.ref').read().split('; Override launch')[0]

def make(stamps=False):
    g = G(stamps)
    body = g.build()
    txt = HEADER + f'; @launch grid=(256,1,1) block=(512,1,1) lds={L_TOTAL}\n'
    txt += f'''.amdgcn_target "amdgcn-amd-amdhsa--gfx950"
.text
.globl {NAME}_kernel
.p2align 8
.type {NAME}_kernel,@function
{NAME}_kernel:
{body}.section .rodata,"a"
.p2align 6
.amdhsa_kernel {NAME}_kernel
  .amdhsa_next_free_vgpr 256
  .amdhsa_next_free_sgpr 102
  .amdhsa_accum_offset 256
  .amdhsa_group_segment_fixed_size 0
  .amdhsa_kernarg_size 136
  .amdhsa_user_sgpr_count 2
  .amdhsa_user_sgpr_kernarg_segment_ptr 1
  .amdhsa_system_sgpr_workgroup_id_x 1
.end_amdhsa_kernel
'''
    return txt, g.a.n_ins

if __name__ == '__main__':
    pos = [x for x in sys.argv[1:] if not x.startswith('--')]
    out = pos[0] if pos else 'cdna_kernels/' + NAME + '.s'
    txt, n = make(stamps='stamps' in OPT)
    open(out, 'w').write(txt)
    print('wrote', out, n, 'instructions')
```

```python
import sys, math, struct
from asm import Asm

NAME = 'concat_heads__grouped_kv_mqa__ssm_conv_s5__prompt'
OPT = dict((x[2:].split('=') + ['1'])[:2] for x in sys.argv if x.startswith('--'))
def opt(k, d): return int(OPT.get(k, d))
def f2u(x): return struct.unpack('<I', struct.pack('<f', x))[0]
def pr(r): return f'v[{r}:{r+1}]'
def q4(r): return f'v[{r}:{r+3}]'
def t16(r): return f'v[{r}:{r+15}]'

WS_KVFLAG = 0x8000
WS_KVIMG = 0x10000
WS_EBUF = 0x40000
WS_HFLAG = 0x80000
WS_OBUF = 0x100000
WS_HBUF = 0x400000
WS_DBG = 0x800000
WS_SIZE = 0x1000000
def FL(i): return 16 * i
F_L1, F_L2, F_L4, F_L6 = FL(0), FL(1), FL(2), FL(3)
F_QP, F_KVD = FL(4), FL(5)
F_A1, F_AX, F_AY = FL(6), FL(7), FL(8)
F_S = [FL(9 + i) for i in range(10)]
F_WO = FL(19)
F_OX = FL(20)
F_SL = [FL(22 + i) for i in range(3)]
F_KMAX, F_XC, F_KST = FL(25), FL(25) + 4, FL(25) + 8
L_QN = 512
L_ACCF = 1024
L_QF = 5120
L_ACCD = 13312
L_WKV = L_ACCD
L_A1 = 29696
L_A2 = 96256
L_MX = L_A2 + 66560
L_TOTAL = 163840
XW = 16640
L_SXO = 1024
L_TBO = 2048

sWV, sRB, sCG, sTB, sPB, sTAG = 3, 4, 5, 6, 7, 8
sT0, sT1, sT2, sT3, sT4, sT5 = 9, 10, 11, 12, 13, 14
sCNT = 15
P = lambda i: 16 + 2 * i
SA, SB, SC, SWS, SOUT = 52, 56, 60, 64, 68
sSW = 72
sPH, sTJ, sOW = 73, 74, 75
sM0, sM1 = 76, 78
sQH = 81
sXC = 100
sST = 82
SPIN = 400000
vT, vLN, vL16, vEP, vF, vS, vONE = 249, 250, 251, 252, 253, 254, 255

class G:
    def __init__(self, stamps=False):
        self.a = Asm(); self.stamps = stamps; self.cyc = True
    def srd(self, d, p, size):
        self.a(f's_mov_b32 s{d}, s{p}\ns_mov_b32 s{d+1}, s{p+1}\ns_mov_b32 s{d+2}, {size:#x}\ns_mov_b32 s{d+3}, 0x20000')
    def stamp(self, i):
        if self.stamps:
            self.a(f's_memrealtime s[98:99]\ns_waitcnt lgkmcnt(0)\ns_mov_b32 s{sST+i}, s98')
            m = {5: 8, 6: 9}
            if self.cyc and i in m:
                self.a(f's_memtime s[98:99]\ns_waitcnt lgkmcnt(0)\ns_mov_b32 s{sST+m[i]}, s98')
    def end(self):
        a = self.a
        if self.stamps:
            a('s_waitcnt vmcnt(0)')
            self.stamp(15)
            if 'diag' in OPT and self.cyc != ('diagsv' in OPT):
                da, db = [int(x) for x in OPT['diag'].split(',')]
                L = a.label('DG')
                a(f's_sub_u32 s{sT1}, s{sST+db}, s{sST+da}')
                if 'diagcyc' in OPT: a(f's_lshr_b32 s{sT1}, s{sT1}, 1')
                else: a(f's_lshl_b32 s{sT1}, s{sT1}, 3')
                a(f's_min_u32 s{sT1}, s{sT1}, 100000\ns_add_u32 s{sT1}, s{sT1}, s{sST+15}')
                a(f'{L}:\ns_sleep 4\ns_memrealtime s[98:99]\ns_waitcnt lgkmcnt(0)\ns_cmp_lt_u32 s98, s{sT1}\ns_cbranch_scc1 {L}')
            a(f's_lshl_b32 s{sT0}, s2, 3\ns_add_u32 s{sT0}, s{sT0}, s{sWV}\ns_lshl_b32 s{sT0}, s{sT0}, 6\ns_add_u32 s{sT0}, s{sT0}, {WS_DBG:#x}')
            a('s_mov_b64 exec, 1')
            for i in range(16):
                a(f'v_mov_b32 v{vT}, s{sST+i}\nbuffer_store_dword v{vT}, off, s[{SWS}:{SWS+3}], s{sT0} offset:{4*i}')
            a('s_waitcnt vmcnt(0)')
        a('s_endpgm')
    def sig(self, off, va=vS):
        self.a(f'ds_write_b32 v{va}, v{vONE} offset:{off}')
    def wait(self, off, sleep=1, va=vF):
        a = self.a; L = a.label('W'); D = a.label('WD')
        a(f's_mov_b32 s{sCNT}, {SPIN}')
        a(f'{L}:')
        a(f'ds_read_b32 v{vT}, v{va} offset:{off}\ns_waitcnt lgkmcnt(0)\nv_cmp_eq_u32 vcc, 0, v{vT}\ns_cbranch_vccz {D}')
        a((f's_sleep {sleep}\n' if sleep else '') + f's_sub_u32 s{sCNT}, s{sCNT}, 1\ns_cbranch_scc0 {L}')
        a(f'{D}:')
    def xstore(self, lines):
        a = self.a
        if not opt('xc', 1):
            for x in lines: a(x + (' sc1' if x.startswith('buffer') else ''))
            return
        L = a.label('X'); D = a.label('XD')
        a(f's_cmp_eq_u32 s{sXC}, 1\ns_cbranch_scc0 {L}')
        for x in lines: a(x + (' nt' if x.startswith('buffer') and opt('xnt', 0) else ''))
        a(f's_branch {D}')
        a(f'{L}:')
        for x in lines: a(x + (' sc1' if x.startswith('buffer') else ''))
        a(f'{D}:')
    def get_tag(self):
        self.a(f'v_readfirstlane_b32 s{sTAG}, v{vEP}\ns_mul_i32 s{sTAG}, s{sTAG}, 0x9E3779B1\ns_add_u32 s{sTAG}, s{sTAG}, 0x7F4A7C15')

    def build(self):
        a = self.a
        a('s_cmp_ge_u32 s2, 256\ns_cbranch_scc1 L_exit')
        a('s_load_dwordx16 s[16:31], s[0:1], 0\ns_load_dwordx16 s[32:47], s[0:1], 64\ns_load_dwordx2 s[48:49], s[0:1], 128')
        if self.stamps:
            for i in range(16): a(f's_mov_b32 s{sST+i}, 0')
        a(f'v_and_b32 v{vLN}, 63, v0\nv_lshrrev_b32 v{vT}, 6, v0\nv_lshlrev_b32 v{vL16}, 4, v{vLN}\nv_readfirstlane_b32 s{sWV}, v{vT}')
        a(f's_and_b32 s{sT0}, s2, 7\ns_lshr_b32 s{sT1}, s2, 3')
        a(f's_lshl_b32 s{sRB}, s{sT0}, 2\ns_lshr_b32 s{sT2}, s{sT1}, 3\ns_add_u32 s{sRB}, s{sRB}, s{sT2}\ns_and_b32 s{sCG}, s{sT1}, 7')
        a(f's_lshr_b32 s{sTB}, s{sRB}, 1\ns_and_b32 s{sPB}, s{sT1}, 15\ns_and_b32 s{sSW}, s{sWV}, 3')
        a(f's_cmp_ge_u32 s{sWV}, 4\ns_cbranch_scc1 L_service')
        a(f's_lshr_b32 s{sT5}, s{sCG}, 1\ns_lshl_b32 s{sT4}, s{sRB}, 16')
        def xa_rows(g):
            a(f's_add_u32 s{sT0}, s{sT5}, {g}\ns_and_b32 s{sT0}, s{sT0}, 3\ns_lshl_b32 s{sT0}, s{sT0}, 2\ns_add_u32 s{sT0}, s{sT0}, s{sSW}\ns_lshl_b32 s{sT0}, s{sT0}, 2')
            a(f's_mul_i32 s{sT1}, s{sT0}, 1040\ns_add_u32 m0, s{sT1}, {L_A1}\ns_lshl_b32 s{sT0}, s{sT0}, 10\ns_add_u32 s{sT0}, s{sT0}, s{sT4}')
            if g == 0:
                a('s_waitcnt lgkmcnt(0)')
                self.stamp(0)
                self.srd(SA, P(0), 2048 * 1024)
            for n in range(4):
                a(f'buffer_load_dwordx4 v{vL16}, s[{SA}:{SA+3}], s{sT0} offen offset:{1024*n} lds')
                if n < 3: a('s_add_u32 m0, m0, 16')
        xa_rows(0)
        a(f's_bitcmp1_b32 s{sCG}, 0\ns_cselect_b32 s{SB}, s{P(3)}, s{P(2)}\ns_cselect_b32 s{SB+1}, s{P(3)+1}, s{P(2)+1}\ns_mov_b32 s{SB+2}, 0x4000\ns_mov_b32 s{SB+3}, 0x20000')
        a(f's_lshl_b32 s{sT0}, s{sWV}, 12\ns_add_u32 m0, s{sT0}, {L_WKV}')
        for n in range(4):
            a(f'buffer_load_dwordx4 v{vL16}, s[{SB}:{SB+3}], s{sT0} offen offset:{1024*n} lds')
        self.wimg_lane_addr(0, 1)
        self.srd(SC, P(1), 512 * 1024)
        a(f's_lshl_b32 s{sT3}, s{sSW}, 13\ns_lshl_b32 s{sT1}, s{sCG}, 7\ns_add_u32 s{sT3}, s{sT3}, s{sT1}\ns_and_b32 s{sT1}, s{sRB}, 3\ns_lshl_b32 s{sT1}, s{sT1}, 17\ns_add_u32 s{sT3}, s{sT3}, s{sT1}')
        a(f's_lshl_b32 s{sT2}, s{sSW}, 10')
        def wq_rows(c):
            for n in range(4 * c, 4 * c + 4):
                a(f's_add_u32 m0, s{sT2}, {L_A2 + 4096*n}\ns_xor_b32 s{sT0}, s{sT3}, {0x8000*n:#x}')
                a(f'buffer_load_dwordx4 v0, s[{SC}:{SC+3}], s{sT0} offen lds')
        FO = opt('fo', 1)
        if FO == 0: wq_rows(0)
        else: xa_rows(1)
        self.common_regs()
        self.srd(SWS, P(16), WS_SIZE)
        a('s_barrier')
        self.stamp(1)
        a('s_waitcnt vmcnt(4)')
        self.sig(F_L1)
        if FO == 0: xa_rows(1)
        xa_rows(2); xa_rows(3)
        a(f'buffer_load_dword v{vEP}, off, s[{SWS}:{SWS+3}], 0 sc1')
        if FO == 1: wq_rows(0)
        if FO == 0: wq_rows(1)
        a('s_waitcnt vmcnt(5)')
        self.sig(F_L2)
        if FO == 1: wq_rows(1)
        wq_rows(2); wq_rows(3)
        self.stamp(2)
        a('s_waitcnt vmcnt(8)')
        self.sig(F_L4)
        self.attention()
        self.service()
        a('L_exit:\ns_endpgm')
        return a.finish()

    def common_regs(self):
        self.a(f'v_and_b32 v{vF}, 3, v{vLN}\nv_lshlrev_b32 v{vF}, 2, v{vF}\ns_lshl_b32 s{sT0}, s{sSW}, 2\nv_mov_b32 v{vS}, s{sT0}\nv_mov_b32 v{vONE}, 1')

    def wimg_lane_addr(self, vd, vt):
        a = self.a
        a(f'v_lshrrev_b32 v{vt}, 2, v{vLN}\nv_and_b32 v{vt}, 4, v{vt}\nv_and_b32 v{vd}, 7, v{vLN}\nv_xor_b32 v{vd}, v{vd}, v{vt}\nv_lshlrev_b32 v{vd}, 4, v{vd}')
        a(f'v_lshrrev_b32 v{vt}, 3, v{vLN}\nv_lshl_add_u32 v{vd}, v{vt}, 10, v{vd}')

    def tr_parts(self, c0, r, wpart):
        a = self.a
        a(f'v_bfe_u32 v{c0}, v{vLN}, 4, 1\nv_lshlrev_b32 v{c0}, 5, v{c0}\nv_and_b32 v{r}, 3, v{vLN}\nv_lshl_add_u32 v{c0}, v{r}, 3, v{c0}\nv_bfe_u32 v{r}, v{vLN}, 2, 2')
        a(f's_and_b32 s{sT0}, s{sSW}, 1\nv_lshrrev_b32 v{wpart}, 1, v{r}\nv_xor_b32 v{wpart}, s{sT0}, v{wpart}\nv_lshl_add_u32 v{wpart}, v{wpart}, 6, v{c0}\nv_lshl_add_u32 v{wpart}, v{r}, 7, v{wpart}')

    def prefetch(self, ptrs, vd):
        a = self.a
        a(f's_lshr_b32 s{sT0}, s2, 3\ns_lshl_b32 s{sT0}, s{sT0}, 2\ns_add_u32 s{sT0}, s{sT0}, s{sSW}\ns_lshl_b32 s{sT0}, s{sT0}, 12')
        for p in ptrs:
            self.srd(SOUT, P(p), 512 * 1024)
            a(f'buffer_load_dword v{vEP}, v{vd}, s[{SOUT}:{SOUT+3}], s{sT0} offen')

    def attention(self):
        a = self.a
        K, V, S0, O, Q = 0, 64, 192, 224, 240
        vIDX, vA16, vA8, vQA, vL8 = 244, 245, 246, 247, 248
        R = dict(K=K, V=V, S0=S0, O=O, Q=Q, vIDX=vIDX, vA16=vA16, vA8=vA8, vQA=vQA, vL8=vL8, vM=vEP)
        a(f'v_and_b32 v{Q}, 11, v{vLN}\nv_cmp_eq_u32 vcc, 0, v{Q}\nv_mov_b32 v{Q}, 0x3f803f80\nv_cndmask_b32 v{vT}, 0, v{Q}, vcc')
        MK = opt('mask', 0)
        self.masked = lambda i: (MK >> i) & 1
        for i in range(16):
            for r in range(0 if self.masked(i) else 4, 8): a(f'v_mov_b32 v{V+8*i+r}, v{vT}')
        a(f'v_lshlrev_b32 v{vL8}, 3, v{vLN}\nv_mov_b32 v{vIDX}, 0xdddd')
        def init_state(ph0):
            for i in range(16): a(f'v_mov_b32 v{O+i}, 0')
            a(f's_mov_b32 s{sTJ}, s{sSW}\ns_mov_b32 s{sPH}, {ph0}')
            a(f's_lshl_b32 s{sT0}, s{sTJ}, 10\nv_add_u32 v{vQA}, s{sT0}, v{vL16}')
            a(f's_lshl_b32 s{sT0}, s{sTJ}, 11\nv_add_u32 v{vA16}, s{sT0}, v{vL16}\ns_lshl_b32 s{sT0}, s{sTJ}, 9\nv_add_u32 v{vA8}, s{sT0}, v{vL8}')
        init_state(0)
        FS = opt('fs', 7)
        a(f'v_lshlrev_b32 v{S0+4}, {FS}, v{vLN}\nv_mov_b32 v{S0+3}, 0\ns_getreg_b32 s{sXC}, hwreg(HW_REG_XCC_ID)')
        a(f's_lshl_b32 s{sT3}, s{sWV}, {FS + 6}\ns_add_u32 s{sT3}, s{sT3}, {WS_KVFLAG:#x}')
        a(f's_lshl_b32 s{sT4}, s{sWV}, 15\ns_add_u32 s{sT4}, s{sT4}, {WS_KVIMG:#x}\ns_lshl_b32 s{sT0}, s{sCG}, 12\ns_add_u32 s{sT4}, s{sT4}, s{sT0}')
        a(f's_lshl_b32 s{sOW}, s{sRB}, 16\ns_lshl_b32 s{sT0}, s{sCG}, 12\ns_add_u32 s{sOW}, s{sOW}, s{sT0}\ns_add_u32 s{sOW}, s{sOW}, {WS_OBUF:#x}')
        a(f's_add_u32 s{sT0}, s{sSW}, 1\ns_and_b32 s{sT0}, s{sT0}, 3\ns_lshl_b32 s{sT0}, s{sT0}, 10\ns_add_u32 s{sOW}, s{sOW}, s{sT0}')
        a(f's_mov_b32 s{sM0}, 0xffff\ns_mov_b32 s{sM0+1}, 0xffff')
        self.get_tag()
        a(f's_waitcnt vmcnt(0)')
        self.sig(F_L6)
        self.stamp(3)
        self.wait(F_KVD, sleep=1)
        if opt('pf1', 0):
            a(f's_lshr_b32 s{sT0}, s2, 3\ns_lshl_b32 s{sT0}, s{sT0}, 2\ns_add_u32 s{sT0}, s{sT0}, s{sSW}\ns_lshl_b32 s{sT0}, s{sT0}, 12')
            for k, p in enumerate((8, 9)):
                self.srd(SB, P(p), 512 * 1024)
                for n in range(4): a(f'buffer_load_dwordx4 {q4(4 + 16*k + 4*n)}, v{vL16}, s[{SB}:{SB+3}], s{sT0} offen offset:{1024*n}')
            self.srd(SB, P(5), 2048 * 1024)
            a(f's_lshr_b32 s{sT0}, s{sT0}, 1\ns_and_b32 s{sT1}, s2, 7\ns_lshl_b32 s{sT1}, s{sT1}, 18\ns_add_u32 s{sT0}, s{sT0}, s{sT1}')
            for n in range(2): a(f'buffer_load_dwordx4 {q4(36 + 4*n)}, v{vL16}, s[{SB}:{SB+3}], s{sT0} offen offset:{1024*n}')
        if opt('pw', 12): a(f's_sleep {opt("pw", 12)}')
        a(f's_mov_b32 s{sCNT}, 100000')
        a('L_kvp:')
        a(f'buffer_load_dwordx3 v[{S0}:{S0+2}], v{S0+4}, s[{SWS}:{SWS+3}], s{sT3} offen sc1\ns_waitcnt vmcnt(0)\nv_cmp_ne_u32 vcc, s{sTAG}, v{S0}\ns_cbranch_vccz L_kvpd')
        a(f's_sleep {opt("kvsleep", 4)}\ns_sub_u32 s{sCNT}, s{sCNT}, 1\ns_cbranch_scc0 L_kvp')
        a('L_kvpd:')
        if self.stamps: a(f's_mov_b32 s{sST+13}, s{sCNT}')
        self.stamp(4)
        for i in range(opt('nup', 7)): a(self.kvload(R, i))
        a(f'ds_max_u32 v{S0+3}, v{S0+1} offset:{F_KMAX}')
        a(f's_lshr_b32 s{sT0}, s{sRB}, 3\ns_cmp_eq_u32 s{sT0}, s{sSW}\ns_cbranch_scc0 L_noxc')
        a(f'v_cmp_ne_u32 vcc, s{sXC}, v{S0+2}\ns_bitcmp1_b32 s{sRB}, 2\ns_cselect_b32 s{sT0}, vcc_hi, vcc_lo\ns_cmp_eq_u32 s{sT0}, 0\ns_cselect_b32 s{sT0}, 1, 0')
        a(f'v_mov_b32 v{S0+2}, s{sT0}\nds_write_b32 v{S0+3}, v{S0+2} offset:{F_XC}')
        a('L_noxc:')
        self.wait(F_QP, sleep=0)
        a(f'ds_read_b128 {q4(Q)}, v{vQA} offset:{L_QF}')
        self.stamp(5)
        self.attn_fast(R)
        a('L_attn_epi:')
        if 'phs' in OPT:
            for p in range(8): a(f's_mov_b32 s{sST+2*p}, s{16+4*p}\ns_mov_b32 s{sST+2*p+1}, s{17+4*p}')
            a(f's_lshl_b32 s{sT0}, s2, 3\ns_add_u32 s{sT0}, s{sT0}, s{sWV}\ns_lshl_b32 s{sT0}, s{sT0}, 6\ns_add_u32 s{sT0}, s{sT0}, {WS_DBG + 0x100000:#x}')
            a('s_mov_b64 exec, 1')
            for i in range(16):
                a(f'v_mov_b32 v{vT}, s{sST+i}\nbuffer_store_dword v{vT}, off, s[{SWS}:{SWS+3}], s{sT0} offset:{4*i}')
            a('s_waitcnt vmcnt(0)\ns_endpgm')
        self.oproj_pre()
        self.stamp(6)
        self.publish(R, 0x8000, F_AY)
        if 'nosvc' in OPT or 'stop' in OPT: self.end()
        else: self.oproj()
        a('L_check6:')
        self.wait(F_S[9], sleep=1)
        a('s_branch L_checked6')
        a('L_check1:')
        self.wait(F_S[0], sleep=1)
        a(f'v_cmp_ne_u32 vcc, 1, v{vT}\ns_cbranch_vccz L_checked1')
        self.wait(F_S[9], sleep=1)
        a(f's_mov_b32 s{sXC}, 0')
        vL4, vW = vA8, vA16
        self.sig(F_SL[0]); self.wait(F_SL[0])
        a(f'v_lshrrev_b32 v{vL4}, 2, v{vL16}\ns_mov_b32 s{sT2}, 0\ns_lshl_b32 s{sT3}, s{sWV}, 11\nv_add_u32 v{vW}, s{sT3}, v{vL4}')
        a('L_slow_pre:')
        a(f's_lshl_b32 s{sT0}, s{sT2}, 10\nv_add_u32 v{vT}, s{sT0}, v{vL16}\nds_read_b128 {q4(Q)}, v{vT} offset:{L_QF}\ns_waitcnt lgkmcnt(0)')
        a(f'v_mov_b32 v{S0+20}, 0xff800000')
        for i in range(16):
            a(f'v_mfma_f32_32x32x16_bf16 {t16(S0)}, {q4(K+4*i)}, {q4(Q)}, 0')
            for r in range(0, 16, 2): a(f'v_max3_f32 v{S0+20}, v{S0+r}, v{S0+r+1}, v{S0+20}')
        a(f'v_mov_b32 v{S0+21}, v{S0+20}\nv_permlane32_swap_b32 v{S0+20}, v{S0+21}\nv_max_f32 v{S0+20}, v{S0+20}, v{S0+21}')
        a(f'ds_write_b32 v{vW}, v{S0+20} offset:{L_ACCD}\nv_add_u32 v{vW}, 256, v{vW}')
        a(f's_add_u32 s{sT2}, s{sT2}, 1\ns_cmp_lt_u32 s{sT2}, 8\ns_cbranch_scc1 L_slow_pre')
        self.sig(F_SL[1]); self.wait(F_SL[1])
        a(f's_lshl_b32 s{sT0}, s{sWV}, 8\nv_add_u32 v{vW}, s{sT0}, v{vL4}')
        for t in range(2):
            for w in range(4): a(f'ds_read_b32 v{S0+4*t+w}, v{vW} offset:{L_ACCD + 2048*w + 1024*t}')
        a(f'v_and_b32 v{vW}, 0x7c, v{vL4}\ns_lshl_b32 s{sT0}, s{sWV}, 7\ns_add_u32 s{sT0}, s{sT0}, {L_MX}\nv_add_u32 v{vW}, s{sT0}, v{vW}')
        a('s_waitcnt lgkmcnt(0)')
        for t in range(2):
            b = S0 + 4 * t
            a(f'v_max3_f32 v{b}, v{b}, v{b+1}, v{b+2}\nv_max_f32 v{b}, v{b}, v{b+3}\nds_write_b32 v{vW}, v{b} offset:{512*t}')
        init_state(16)
        a(f'v_mov_b32 v{S0}, 0\nv_mov_b32 v{S0+1}, 17\nds_write_b64 v{vA8}, {pr(S0)} offset:{L_ACCF+2048}')
        a(f'ds_write_b128 v{vA16}, {q4(O)} offset:{L_ACCD+8192}\nds_write_b128 v{vA16}, {q4(O)} offset:{L_ACCD+8192+1024}')
        self.sig(F_SL[2]); self.wait(F_SL[2])
        a(f'ds_read_b128 {q4(Q)}, v{vQA} offset:{L_QF}')
        self.attn_loop(R, True)
        a('s_branch L_attn_epi')

    def kvload(self, R, i):
        K, V = R['K'], R['V']
        t = ''
        if i % 2 == 0 and i > 0: t += f's_xor_b32 s{sT4}, s{sT4}, {((i // 2) ^ (i // 2 - 1)) << 12:#x}\n'
        o = (i % 2) * 2048
        t += f'buffer_load_dwordx4 {q4(K+4*i)}, v{vL16}, s[{SWS}:{SWS+3}], s{sT4} offen offset:{o} sc1\n'
        if self.masked(i):
            t += f's_mov_b64 exec, s[{sM0}:{sM0+1}]\nbuffer_load_dwordx4 {q4(V+8*i)}, v{vL16}, s[{SWS}:{SWS+3}], s{sT4} offen offset:{o+1024} sc1\n'
            t += f'buffer_load_dwordx4 {q4(V+8*i+4)}, v{vL16}, s[{SWS}:{SWS+3}], s{sT4} offen offset:{o+1024+256} sc1\ns_mov_b64 exec, -1'
        else:
            t += f'buffer_load_dwordx4 {q4(V+8*i)}, v{vL16}, s[{SWS}:{SWS+3}], s{sT4} offen offset:{o+1024} sc1'
        return t

    def publish(self, R, off, flag):
        a = self.a; O = R['O']
        a(f'v_rcp_f32 v{O+8}, v{O+8}\ns_add_u32 s{sT0}, s{sOW}, {off}')
        for r in range(0, 8, 2): a(f'v_pk_mul_f32 {pr(O+r)}, {pr(O+8)}, {pr(O+r)} op_sel:[0,0] op_sel_hi:[0,1]')
        for r in range(4): a(f'v_cvt_pk_bf16_f32 v{O+r}, v{O+2*r}, v{O+2*r+1}')
        self.xstore([f'buffer_store_dwordx4 {q4(O)}, v{vL16}, s[{SWS}:{SWS+3}], s{sT0} offen'])

    def attn_fast(self, R):
        a = self.a
        K, V, S0, O, Q = R['K'], R['V'], R['S0'], R['O'], R['Q']
        vIDX, vA16, vA8, vQA, vL8 = R['vIDX'], R['vA16'], R['vA8'], R['vQA'], R['vL8']
        NUP = opt('nup', 7)
        sK = [[50, 51, 80], [sT1, sT2, sT3], [sT5, sPH, sTJ]]
        for k in range(1, 4):
            a(f's_sub_u32 s{sT0}, s{sSW}, {k}\ns_and_b32 s{sT0}, s{sT0}, 3\ns_lshl_b32 s{sK[k-1][0]}, s{sT0}, 9\ns_lshl_b32 s{sK[k-1][1]}, s{sT0}, 10\ns_lshl_b32 s{sK[k-1][2]}, s{sT0}, 11')
        def Sb(i): return S0 + 16 * (i % 2)
        def E(i, r): return f'v_exp_f32 v{Sb(i)+r}, v{Sb(i)+r}'
        def QK(i): return f'v_mfma_f32_32x32x16_bf16 {t16(Sb(i))}, {q4(K+4*(i%16))}, {q4(Q)}, 0'
        def PV(i, h): return f'v_smfmac_f32_32x32x32_bf16 {t16(O)}, {q4(V+8*(i%16)+4*h)}, v[{Sb(i)+8*h}:{Sb(i)+8*h+7}], v{vIDX}'
        def rd(st): return [f'ds_read_b64 {pr(O+8)}, v{vA8} offset:{L_ACCF+2048*st}', f'ds_read_b128 {q4(O)}, v{vA16} offset:{L_ACCD+8192*st}', f'ds_read_b128 {q4(O+4)}, v{vA16} offset:{L_ACCD+8192*st+1024}']
        def wr(st): return [f'ds_write_b128 v{vA16}, {q4(O)} offset:{L_ACCD+8192*st}', f'ds_write_b128 v{vA16}, {q4(O+4)} offset:{L_ACCD+8192*st+1024}', f'ds_write_b64 v{vA8}, {pr(O+8)} offset:{L_ACCF+2048*st}']
        nl = lambda i: 3 if self.masked(i) else 2
        def plain(p, i):
            e = [E(i, r) for r in range(16)]
            w = []; sw = []; ld = []
            if p == 0:
                KR = opt('kr', 2)
                issued = sum(nl(t) for t in range(min(16, KR * i + NUP)))
                VW = opt('vw', 2)
                if i % VW == 0 or i < 2:
                    last = i if i < 2 else min(15, i + VW - 1)
                    needed = sum(nl(t) for t in range(last + 1)) + (1 if last < 15 else 0)
                    w = [f's_waitcnt vmcnt({issued - needed})']
                if not self.masked(i): sw = [f'v_permlane16_swap_b32 v{V+8*i+r}, v{V+8*i+4+r}' for r in range(4)]
                for t in range(KR * i + NUP, min(16, KR * (i + 1) + NUP)):
                    ld += [self.kvload(R, t)]
                    if t == 15: ld += [f'ds_write_b32 v{vS}, v{vONE} offset:{F_A1}']
            qk = [QK(i + 1)]
            if i == 15:
                if p < 7: w += ['s_waitcnt lgkmcnt(0)']
                else: qk = []
            if i == 14 and p < 7:
                if p % 2 == 1: ld += [f'v_add_u32 v{vQA}, s{sK[p//2][1]}, v{vL16}']
                ld += [f'ds_read_b128 {q4(Q)}, v{vQA} offset:{L_QF + 4096*((p+1)%2)}']
                if p in (1, 6): ld += [f'ds_read_b32 v{vT}, v{vF} offset:{F_S[0] if p == 1 else F_S[9]}']
                if p == 6: ld += [f'ds_read_b32 v{vEP}, v{vF} offset:{F_XC}']
            if i == 15 and p in (1, 6):
                sw = [f'v_cmp_ne_u32 vcc, 1, v{vT}'] + ([f'v_readfirstlane_b32 s{sXC}, v{vEP}'] if p == 6 else [])
                ld = [f's_cbranch_vccnz L_check{p}', f'L_checked{p}:']
            seq = e[0:2] + ([] if (p == 0 and i == 0) else [PV(i - 1, 1)]) + e[2:5] + w + qk + sw + e[5:7] + ld + e[7:11] + [PV(i, 0)] + e[11:16]
            for x in seq: a(x)
        a(f's_setprio {opt("aprio", 1)}')
        a(f's_waitcnt vmcnt({sum(nl(t) for t in range(NUP)) - 1}) lgkmcnt(0)')
        a(QK(0))
        NW = opt('nw', 5)
        for p in range(8):
            if p == 0:
                plain(0, 0); plain(0, 1)
            else:
                e = [E(0, r) for r in range(16)]
                for x in e[0:2] + [PV(15, 1)] + e[2:5] + [QK(1)] + e[5:8]: a(x)
                so, si = (p - 1) % 2, p % 2
                if p < 7:
                    for x in [wr(so)[0], f'v_mov_b32 v{O+9}, {p+1}', wr(so)[1], wr(so)[2]]: a(x)
                else:
                    self.publish(R, 0, F_AX)
                if p % 2 == 0: a(f'v_add_u32 v{vA8}, s{sK[p//2-1][0]}, v{vL8}\nv_add_u32 v{vA16}, s{sK[p//2-1][2]}, v{vL16}')
                if p == 1:
                    for r in range(0, 8, 2): a(f'v_pk_mul_f32 {pr(O+r)}, {pr(O+10)}, {pr(O+10)}')
                    a(f'v_mov_b32 v{O+8}, 0')
                    for x in e[8:11] + [PV(0, 0)] + e[11:16]: a(x)
                    plain(p, 1)
                else:
                    for x in rd(si) + e[8:16]: a(x)
                    e = [E(1, r) for r in range(16)]
                    for x in e[0:NW]: a(x)
                    a(f's_waitcnt lgkmcnt(0)\nv_cmp_gt_u32 vcc, {p}, v{O+9}')
                    a(e[NW])
                    a(f's_cbranch_vccnz L_hw{p}')
                    a(f'L_hd{p}:')
                    n = NW + 1
                    for x in [PV(0, 0)] + e[n:n+3] + [PV(0, 1)] + e[n+3:n+6] + [QK(2)] + e[n+6:n+9] + [PV(1, 0)] + e[n+9:16]: a(x)
            for i in range(2, 16):
                plain(p, i)
            if p == 0: self.stamp(7)
            if 'phs' in OPT: a(f's_memtime s[98:99]\ns_memrealtime s[{16+4*p}:{17+4*p}]\ns_waitcnt lgkmcnt(0)\ns_mov_b32 s{17+4*p}, s98')
        a('s_nop 0')
        a(PV(15, 1))
        a(f's_branch L_attn_epi')
        for p in range(2, 8):
            a(f'L_hw{p}:')
            a(f's_mov_b32 s{sCNT}, {SPIN}')
            a(f'L_hl{p}:')
            a(f's_sleep 1')
            for x in rd(p % 2): a(x)
            a(f's_waitcnt lgkmcnt(0)\nv_cmp_gt_u32 vcc, {p}, v{O+9}\ns_cbranch_vccz L_hd{p}\ns_sub_u32 s{sCNT}, s{sCNT}, 1\ns_cbranch_scc0 L_hl{p}\ns_branch L_hd{p}')

    def attn_loop(self, R, slow):
        a = self.a
        K, V, S0, O, Q = R['K'], R['V'], R['S0'], R['O'], R['Q']
        vIDX, vA16, vA8, vQA, vL8, vM = R['vIDX'], R['vA16'], R['vA8'], R['vQA'], R['vL8'], R['vM']
        sf = '_s' if slow else '_f'
        PH0 = 16 if slow else 0
        NUP = opt('nup', 6)
        def Sb(i): return S0 + 16 * (i % 2)
        def E(i, r):
            s = Sb(i) + r
            return (f'v_sub_f32 v{s}, v{s}, v{vM}\n' if slow else '') + f'v_exp_f32 v{s}, v{s}'
        def QK(i): return f'v_mfma_f32_32x32x16_bf16 {t16(Sb(i))}, {q4(K+4*(i%16))}, {q4(Q)}, 0'
        def PV(i, h): return f'v_smfmac_f32_32x32x32_bf16 {t16(O)}, {q4(V+8*(i%16)+4*h)}, v[{Sb(i)+8*h}:{Sb(i)+8*h+7}], v{vIDX}'
        rd = [f'ds_read_b64 {pr(O+8)}, v{vA8} offset:{L_ACCF}', f'ds_read_b128 {q4(O)}, v{vA16} offset:{L_ACCD}', f'ds_read_b128 {q4(O+4)}, v{vA16} offset:{L_ACCD+1024}']
        wr = [f'ds_write_b128 v{vA16}, {q4(O)} offset:{L_ACCD}', f'ds_write_b128 v{vA16}, {q4(O+4)} offset:{L_ACCD+1024}', f'ds_write_b64 v{vA8}, {pr(O+8)} offset:{L_ACCF}']
        def getm():
            if slow:
                a(f'v_lshrrev_b32 v{vT}, 2, v{vL16}\nv_and_b32 v{vT}, 0x7c, v{vT}\ns_lshl_b32 s{sT0}, s{sTJ}, 7\ns_add_u32 s{sT0}, s{sT0}, {L_MX}\nv_add_u32 v{vT}, s{sT0}, v{vT}')
                a(f'ds_read_b32 v{vM}, v{vT}\ns_waitcnt lgkmcnt(0)')
        nl = lambda i: 3 if self.masked(i) else 2
        def plain(i, ph0=False):
            e = [E(i, r) for r in range(16)]
            w = []; sw = []; ld = []
            if ph0 and not slow:
                issued = sum(nl(t) for t in range(min(16, i + NUP)))
                needed = sum(nl(t) for t in range(i + 1)) + (1 if i < 15 else 0)
                w = [f's_waitcnt vmcnt({issued - needed})']
                if not self.masked(i): sw = [f'v_permlane16_swap_b32 v{V+8*i+r}, v{V+8*i+4+r}' for r in range(4)]
                if i + NUP < 16: ld = [self.kvload(R, i + NUP)]
                if i + NUP == 15: ld += [f'ds_write_b32 v{vS}, v{vONE} offset:{F_A1}']
            if i == 15: w += ['s_waitcnt lgkmcnt(0)']
            seq = e[0:2] + ([] if (ph0 and i == 0) else [PV(i - 1, 1)]) + e[2:5] + w + [QK(i + 1)] + sw
            if i == 14:
                seq += [f's_add_u32 s{sT1}, s{sPH}, 1\ns_lshr_b32 s{sT2}, s{sT1}, 1\ns_sub_u32 s{sT2}, s{sSW}, s{sT2}', e[5],
                        f's_and_b32 s{sT2}, s{sT2}, 3\ns_and_b32 s{sT1}, s{sT1}, 1\ns_lshl_b32 s{sT1}, s{sT1}, 2', e[6],
                        f's_add_u32 s{sT2}, s{sT2}, s{sT1}\ns_lshl_b32 s{sT0}, s{sT2}, 10', e[7], f'v_add_u32 v{vQA}, s{sT0}, v{vL16}', e[8],
                        f'ds_read_b128 {q4(Q)}, v{vQA} offset:{L_QF}'] + e[9:11]
            else:
                seq += e[5:11]
            seq += [PV(i, 0)] + e[11:13] + ld + e[13:16]
            for x in seq: a(x)
        a(f's_setprio {opt("aprio", 1)}')
        getm()
        a(f's_waitcnt vmcnt({sum(nl(t) for t in range(NUP)) - 1}) lgkmcnt(0)')
        a(QK(0))
        if slow:
            plain(0, True); plain(1)
            a(f's_branch L_mid{sf}')
        else:
            for i in range(16): plain(i, True)
            self.stamp(7)
        a('.p2align 6')
        a(f'L_loop{sf}:')
        a(f's_add_u32 s{sPH}, s{sPH}, 1\ns_mov_b32 s{sTJ}, s{sT2}')
        getm()
        e = [E(0, r) for r in range(16)]
        for x in e[0:2] + [PV(15, 1), e[2], f's_add_u32 s{sT1}, s{sPH}, 1', e[3], f's_lshl_b32 s{sT3}, s{sTJ}, 9', e[4], QK(1), f's_lshl_b32 s{sT4}, s{sTJ}, 11', e[5], e[6],
                           f's_cmp_eq_u32 s{sPH}, {PH0 + 7}', e[7], f's_cbranch_scc1 L_finx{sf}',
                           wr[0], f'v_mov_b32 v{O+9}, s{sT1}', e[8], wr[1], e[9], wr[2]]: a(x)
        a(f'L_finxd{sf}:')
        for x in [f'v_add_u32 v{vA8}, s{sT3}, v{vL8}', f'v_add_u32 v{vA16}, s{sT4}, v{vL16}', rd[0], e[10], rd[1], e[11], rd[2]] + e[12:16]: a(x)
        e0 = e
        e = [E(1, r) for r in range(16)]
        NW = opt('nw', 6)
        for x in e[0:NW]: a(x)
        a(f's_waitcnt lgkmcnt(0)\nv_cmp_gt_u32 vcc, s{sPH}, v{O+9}\ns_cbranch_vccnz L_hw{sf}')
        a(f'L_hd{sf}:')
        for x in [PV(0, 0)] + e[NW:NW+3] + [PV(0, 1)] + e[NW+3:NW+6] + [QK(2)] + e[NW+6:NW+9] + [PV(1, 0)] + e[NW+9:16]: a(x)
        a(f'L_mid{sf}:')
        for i in range(2, 16):
            plain(i)
        a(f's_cmp_lt_u32 s{sPH}, {PH0 + 7}\ns_cbranch_scc1 L_loop{sf}')
        a(PV(15, 1))
        a(f's_nop 10\ns_branch L_end{sf}')
        a(f'L_finx{sf}:')
        a(e0[8]); a(e0[9])
        self.publish(R, 0, F_AX)
        a(f's_branch L_finxd{sf}')
        a(f'L_hw{sf}:')
        a(f's_mov_b32 s{sCNT}, {SPIN}')
        a(f'L_hl{sf}:')
        a(f's_sleep 1')
        for x in rd: a(x)
        a(f's_waitcnt lgkmcnt(0)\nv_cmp_gt_u32 vcc, s{sPH}, v{O+9}\ns_cbranch_vccz L_hd{sf}\ns_sub_u32 s{sCNT}, s{sCNT}, 1\ns_cbranch_scc0 L_hl{sf}\ns_branch L_hd{sf}')
        a(f'L_end{sf}:')

    def oproj_pre(self):
        a = self.a
        vWO, vG, vH = 240, 241, 242
        sOB, sKH = sT4, sT1
        a(f's_setprio 3\nds_read_b32 v{vT}, v{vF} offset:{F_WO}')
        a(f's_lshr_b32 s{sKH}, s{sSW}, 1\ns_lshl_b32 s{sOB}, s{sRB}, 16\ns_lshl_b32 s{sT0}, s{sKH}, 14\ns_add_u32 s{sOB}, s{sOB}, s{sT0}\ns_add_u32 s{sOB}, s{sOB}, {WS_OBUF:#x}')
        self.tr_parts(vG, vH, vWO)

    def oproj(self):
        a = self.a
        vWO, vG, vH, vOA, vXW, vXR, vP = range(240, 247)
        WF, OF, OA = 0, 64, [192, 208]
        sPEND, sOB, sKH, sOUT = sT3, sT4, sT1, sT5
        a(f's_waitcnt lgkmcnt(0)\nv_cmp_eq_u32 vcc, 0, v{vT}\ns_cbranch_vccz L_wook')
        self.wait(F_WO, sleep=1)
        a('L_wook:')
        self.stamp(11)
        def loads(q):
            a(f's_add_u32 s{sT0}, s{sOB}, {4096*(q%4) + 0x8000*(q//4)}')
            for n in range(4): a(f'buffer_load_dwordx4 {q4(OF+16*q+4*n)}, v{vL16}, s[{SWS}:{SWS+3}], s{sT0} offen offset:{1024*n} sc1')
        def proc(q, lab):
            b = OF + 16 * q
            a(f'v_max3_u32 v{vT}, v{b}, v{b+1}, v{b+2}')
            for r in range(3, 15, 2): a(f'v_max3_u32 v{vT}, v{b+r}, v{b+r+1}, v{vT}')
            a(f'v_max_u32 v{vT}, v{b+15}, v{vT}\nv_cmp_eq_u32 vcc, -1, v{vT}\ns_cbranch_vccnz {lab}')
            for n in range(4):
                a(f'v_mfma_f32_32x32x16_bf16 {t16(OA[q//4])}, {q4(b+4*n)}, {q4(WF+16*(q%4)+4*n)}, {t16(OA[q//4])}')
            a(f's_bitset0_b32 s{sPEND}, {q}')
            a(f'{lab}:')
        loads(0); loads(1)
        a(f'v_lshrrev_b32 v{vH}, 5, v{vLN}\nv_lshl_add_u32 v{vWO}, v{vH}, 9, v{vWO}\ns_lshl_b32 s{sT0}, s{sKH}, 15\ns_add_u32 s{sT0}, s{sT0}, {L_A1}\nv_add_u32 v{vWO}, s{sT0}, v{vWO}')
        for st in range(16):
            d = WF + 4 * st
            a(f'ds_read_b64_tr_b16 {pr(d)}, v{vWO} offset:{2048*st}\nds_read_b64_tr_b16 {pr(d+2)}, v{vWO} offset:{2048*st+1024}')
            if st == 7: loads(2)
        loads(3)
        for r in range(32): a(f'v_mov_b32 v{OA[0]+r}, 0')
        a(f's_mov_b32 s{sPEND}, 0xff\ns_mov_b32 s{sCNT}, 50000')
        for q in range(4):
            loads(4 + q)
            a(f's_waitcnt vmcnt(16) lgkmcnt(0)')
            proc(q, f'L_o1_{q}')
        self.stamp(12)
        a(f'v_and_b32 v{vOA}, 31, v{vLN}\nv_lshlrev_b32 v{vOA}, 2, v{vOA}\nv_lshl_add_u32 v{vOA}, v{vH}, 14, v{vOA}')
        a(f's_and_b32 s{sT0}, s{sOW}, 0xc00\ns_lshl_b32 s{sT0}, s{sT0}, 1\nv_add_u32 v{vXW}, s{sT0}, v{vL16}\ns_xor_b32 s{sT0}, s{sT0}, 0x1000\nv_add_u32 v{vXR}, s{sT0}, v{vL16}\nv_xor_b32 v{vP}, 8, v{vS}')
        self.srd(SOUT, P(14), 2048 * 4096)
        a(f's_lshl_b32 s{sOUT}, s{sRB}, 18\ns_lshl_b32 s{sT0}, s{sCG}, 1\ns_and_b32 s{sT2}, s{sWV}, 1\ns_add_u32 s{sT0}, s{sT0}, s{sT2}\ns_lshl_b32 s{sT0}, s{sT0}, 7\ns_add_u32 s{sOUT}, s{sOUT}, s{sT0}\ns_lshl_b32 s{sT0}, s{sKH}, 17\ns_add_u32 s{sOUT}, s{sOUT}, s{sT0}')
        for q in range(4, 8):
            a(f's_waitcnt vmcnt({28 - 4*q})')
            proc(q, f'L_o1_{q}')
        a('L_oretry:')
        a(f's_cmp_eq_u32 s{sPEND}, 0\ns_cbranch_scc1 L_odone\ns_sub_u32 s{sCNT}, s{sCNT}, 1\ns_cbranch_scc1 L_odone')
        for q in range(8):
            a(f's_bitcmp0_b32 s{sPEND}, {q}\ns_cbranch_scc1 L_ol_{q}')
            loads(q)
            a(f'L_ol_{q}:')
        a('s_waitcnt vmcnt(0)')
        for q in range(8):
            a(f's_bitcmp0_b32 s{sPEND}, {q}\ns_cbranch_scc1 L_o2_{q}')
            proc(q, f'L_o2_{q}')
        a('s_branch L_oretry')
        a('L_odone:')
        if self.stamps: a(f's_mov_b32 s{sST+14}, s{sCNT}')
        self.stamp(1)
        fl = {0: '', 1: ' sc1', 2: ' nt', 3: ' sc0 sc1', 4: ' sc1 nt', 5: ' sc0 nt', 6: ' sc0 sc1 nt'}[opt('ofl', 2)]
        a(f's_nop 7\ns_cmp_eq_u32 s{sKH}, 0\ns_cbranch_scc0 L_ohi')
        for kh in range(2):
            keep, send = OA[kh], OA[1 - kh]
            for q in range(4): a(f'ds_write_b128 v{vXW}, {q4(send+4*q)} offset:{L_ACCD + 8192*(q//2) + 1024*(q%2)}')
            self.sig(F_OX)
            self.wait(F_OX, sleep=0, va=vP)
            for q in range(4): a(f'ds_read_b128 {q4(4*q)}, v{vXR} offset:{L_ACCD + 8192*(q//2) + 1024*(q%2)}')
            for r in range(16):
                if r % 4 == 0: a(f's_waitcnt lgkmcnt({3 - r//4})')
                a(f'v_add_f32 v{r}, v{r}, v{keep+r}\ns_add_u32 s{sT0}, s{sOUT}, {((r % 4) + 8 * (r // 4)) * 4096}')
                a(f'buffer_store_dword v{r}, v{vOA}, s[{SOUT}:{SOUT+3}], s{sT0} offen{fl}')
            self.end()
            if kh == 0: a('L_ohi:')

    def kvproj(self):
        a = self.a
        vXA, vWA, vU, vO, vZ, D = 176, 177, 178, 179, 180, 184
        a(f's_lshr_b32 s{sT5}, s{sCG}, 1')
        a(f'v_and_b32 v{vT}, 15, v{vLN}\ns_lshl_b32 s{sT0}, s{sT5}, 4\nv_add_u32 v{vO}, s{sT0}, v{vT}\nv_mul_u32_u24 v{vXA}, 1040, v{vO}')
        a(f'v_lshrrev_b32 v{vU}, 4, v{vLN}\nv_lshl_add_u32 v{vXA}, v{vU}, 4, v{vXA}\nv_add_u32 v{vXA}, {L_A1}, v{vXA}')
        a(f'v_lshlrev_b32 v{vWA}, 3, v{vT}\nv_lshl_add_u32 v{vWA}, v{vU}, 8, v{vWA}\nv_add_u32 v{vWA}, {L_WKV}, v{vWA}')
        a(f's_and_b32 s{sT1}, s{sCG}, 1\ns_xor_b32 s{sT2}, s{sT1}, 1')
        a(f'v_lshrrev_b32 v{vO}, s{sT1}, v{vU}\nv_and_b32 v{vO}, 1, v{vO}\nv_lshlrev_b32 v{vO}, 9, v{vO}\nv_lshl_add_u32 v{vO}, v{vT}, 4, v{vO}')
        a(f'v_lshrrev_b32 v{vT}, s{sT2}, v{vU}\nv_and_b32 v{vT}, 1, v{vT}\nv_lshl_add_u32 v{vO}, v{vT}, 3, v{vO}')
        a(f's_lshl_b32 s{sT0}, s{sRB}, 1\ns_lshr_b32 s{sT2}, s{sT5}, 1\ns_add_u32 s{sT0}, s{sT0}, s{sT2}\ns_lshl_b32 s{sT0}, s{sT0}, 1\ns_add_u32 s{sT0}, s{sT0}, s{sT1}\ns_lshl_b32 s{sT0}, s{sT0}, 10')
        a(f's_and_b32 s{sT2}, s{sT5}, 1\ns_lshl_b32 s{sT2}, s{sT2}, 8\ns_add_u32 s{sT0}, s{sT0}, s{sT2}\ns_add_u32 s{sT3}, s{sT0}, {WS_KVIMG:#x}')
        a(f's_lshl_b32 s{sT4}, s{sRB}, 3\ns_add_u32 s{sT4}, s{sT4}, s{sCG}\ns_lshl_b32 s{sT4}, s{sT4}, {opt("fs", 7)}\ns_add_u32 s{sT4}, s{sT4}, {WS_KVFLAG:#x}')
        a(f'v_mov_b32 v{vZ}, 0')
        self.wait(F_L1, sleep=0)
        self.stamp(12)
        def rd(s):
            b = 128 + 8 * (s % 6)
            a(f'ds_read_b128 {q4(b)}, v{vXA} offset:{64*s}')
            a(f'ds_read_b64_tr_b16 {pr(b+4)}, v{vWA} offset:{1024*s}')
            a(f'ds_read_b64_tr_b16 {pr(b+6)}, v{vWA} offset:{1024*s+128}')
        for s in range(4): rd(s)
        a(f's_bitcmp1_b32 s{sCG}, 0\ns_cbranch_scc1 L_kv_v')
        def chain(kind):
            for s in range(16):
                if s + 4 < 16: rd(s + 4)
                a(f's_waitcnt lgkmcnt({3 * min(4, 15 - s)})')
                b = 128 + 8 * (s % 6)
                A, B = (q4(b + 4), q4(b)) if kind == 'k' else (q4(b), q4(b + 4))
                a(f'v_mfma_f32_16x16x32_bf16 {q4(D)}, {A}, {B}, {"0" if s == 0 else q4(D)}')
            a(f'v_cvt_pk_bf16_f32 v188, v{D}, v{D+1}\nv_cvt_pk_bf16_f32 v189, v{D+2}, v{D+3}')
            a(f'buffer_store_dwordx2 v[188:189], v{vO}, s[{SWS}:{SWS+3}], s{sT3} offen sc1')
        chain('k')
        a(f'v_mul_f32 v190, v{D}, v{D}\nv_fmac_f32 v190, v{D+1}, v{D+1}\nv_fmac_f32 v190, v{D+2}, v{D+2}\nv_fmac_f32 v190, v{D+3}, v{D+3}')
        a('v_mov_b32 v191, v190\nv_permlane32_swap_b32 v190, v191\nv_add_f32 v190, v190, v191')
        a('v_mov_b32 v191, v190\nv_permlane16_swap_b32 v190, v191\nv_add_f32 v190, v190, v191')
        a('s_mov_b64 exec, 0xffff\ns_branch L_kv_fin')
        a('L_kv_v:')
        chain('v')
        a(f'v_max3_f32 v190, |v{D}|, |v{D+1}|, |v{D+2}|\nv_max_f32 v190, |v{D+3}|, v190')
        a(f's_mov_b32 s{sT1}, {f2u(2.0**50):#x}\nv_cmp_lt_f32 vcc, s{sT1}, v190\nv_mov_b32 v190, 0x7f800000\ns_mov_b64 exec, vcc')
        a('L_kv_fin:')
        a(f'ds_max_u32 v{vZ}, v190 offset:{F_KST}\ns_mov_b64 exec, -1\nds_read_b32 v183, v{vZ} offset:{F_KST}')
        a('s_waitcnt vmcnt(1)')
        self.get_tag()
        a(f's_getreg_b32 s{sT0}, hwreg(HW_REG_XCC_ID)\nv_mov_b32 v182, s{sTAG}\nv_mov_b32 v184, s{sT0}')
        self.stamp(13)

    def service(self):
        a = self.a
        self.cyc = False
        L1, L8, L16, L128, FF, WW, CC = 192, 194, 196, 198, 200, 202, 204
        DG = 206
        vXD, vXR, vXR2, vBD, vHA, vHB, vSX, vTW, vTR, vEA, vXS, vOA, vWI, vP8, vCK, vCS, vCK2, vCS2, vHF, vYW, vE0, vPF, vTG, vYR = range(214, 238)
        PRM = 238
        vC31, vHI, vU, vWA, vXA, vQ = 242, 243, 244, 245, 246, 247
        a('L_service:')
        a(f'v_mov_b32 v0, 0\nv_mov_b32 v1, 0\nv_mov_b32 v2, 0\nv_mov_b32 v3, 0')
        a(f's_lshl_b32 s{sT0}, s{sSW}, 10\nv_add_u32 v{vT}, s{sT0}, v{vL16}\nds_write_b128 v{vT}, v[0:3] offset:{L_ACCF}')
        a(f'v_lshlrev_b32 v{vT}, 3, v{vLN}\nds_write_b64 v{vT}, v[0:1]')
        a(f'v_and_b32 v{vC31}, 31, v{vLN}\nv_lshlrev_b32 v{vU}, 1, v{vC31}\nv_lshrrev_b32 v{vHI}, 5, v{vLN}')
        a('s_waitcnt lgkmcnt(0)')
        self.stamp(0)
        a('s_barrier\ns_setprio 3')
        if opt('cpf', 1):
            a(f's_cmp_lg_u32 s{sSW}, 1\ns_cbranch_scc1 L_nocpf')
            a(f's_getpc_b64 s[{sM0}:{sM0+1}]')
            a('L_pc:')
            a(f's_sub_u32 s{sM0}, s{sM0}, L_pc-{NAME}_kernel\ns_subb_u32 s{sM0+1}, s{sM0+1}, 0')
            a(f's_lshr_b32 s{sT0}, s2, 3\ns_mul_i32 s{sT0}, s{sT0}, 1536\ns_min_u32 s{sT0}, s{sT0}, L_exit-{NAME}_kernel-1536\ns_add_u32 s{sM0}, s{sM0}, s{sT0}\ns_addc_u32 s{sM0+1}, s{sM0+1}, 0')
            for k in range(24): a(f's_load_dword s{SOUT + k % 4}, s[{sM0}:{sM0+1}], {64*k}')
            a('L_nocpf:')
        self.srd(SWS, P(16), WS_SIZE)
        a(f'buffer_load_dword v{vEP}, off, s[{SWS}:{SWS+3}], 0 sc1')
        a(f's_lshl_b32 s{sT0}, s{sPB}, 6')
        for k, p in enumerate((6, 7, 12)):
            self.srd(SA, P(p), 1024)
            a(f'buffer_load_ushort v{PRM+k}, v{vU}, s[{SA}:{SA+3}], s{sT0} offen')
        self.srd(SA, P(13), 1024)
        a(f's_lshl_b32 s{sT0}, s{sCG}, 7\ns_and_b32 s{sT1}, s{sWV}, 1\ns_lshl_b32 s{sT1}, s{sT1}, 6\ns_add_u32 s{sT0}, s{sT0}, s{sT1}')
        a(f'buffer_load_ushort v{PRM+3}, v{vU}, s[{SA}:{SA+3}], s{sT0} offen')
        self.common_regs()
        self.tr_parts(vTR, vU, vWA)
        a(f'v_lshl_add_u32 v{vTR}, v{vU}, 6, v{vTR}\nv_lshl_add_u32 v{vTR}, v{vHI}, 9, v{vTR}')
        a(f'v_lshl_add_u32 v{vWA}, v{vHI}, 10, v{vWA}\nv_add_u32 v{vWA}, {L_A2}, v{vWA}')
        a(f'v_mul_u32_u24 v{vCK}, 1040, v{vC31}\nv_lshl_add_u32 v{vCK}, v{vHI}, 4, v{vCK}\nv_add_u32 v{vCK}, {L_A1}, v{vCK}')
        a(f's_lshr_b32 s{sT0}, s{sSW}, 1\ns_mul_i32 s{sT0}, s{sT0}, {32*1040}\nv_add_u32 v{vXA}, s{sT0}, v{vCK}')
        a(f's_lshl_b32 s{sT0}, s{sSW}, 11\nv_add_u32 v{vQ}, s{sT0}, v{vL16}')
        a(f's_cmp_lg_u32 s{sSW}, 0\ns_cbranch_scc1 L_nokv')
        self.kvproj()
        a('L_nokv:')
        WT, D = 128, 160
        self.wait(F_L2, sleep=1)
        self.stamp(1)
        a(f's_and_b32 s{sT1}, s{sRB}, 3')
        for st in range(32):
            if st % 8 == 0: a(f's_xor_b32 s{sT0}, s{sT1}, {st//8}\ns_lshl_b32 s{sT0}, s{sT0}, 8\nv_add_u32 v{vU}, s{sT0}, v{vXA}')
            a(f'ds_read_b128 {q4(4*st)}, v{vU} offset:{32*(st%8)}')
        a(f's_cmp_lg_u32 s{sSW}, 0\ns_cbranch_scc1 L_nokvf')
        a('s_waitcnt vmcnt(0)')
        a(f's_mov_b64 exec, {(1 << (1 << (opt("fs", 7) - 4))) - 1:#x}\nbuffer_store_dwordx4 v[182:185], v{vL16}, s[{SWS}:{SWS+3}], s{sT4} offen sc1\ns_mov_b64 exec, -1')
        self.sig(F_KVD, va=vF)
        self.stamp(14)
        a('L_nokvf:')
        def wr(st):
            b = WT + 4 * (st % 8)
            a(f'ds_read_b64_tr_b16 {pr(b)}, v{vWA} offset:{2048*st}\nds_read_b64_tr_b16 {pr(b+2)}, v{vWA} offset:{2048*st+512}')
        for s0, s1, fl in ((0, 16, F_L4), (16, 32, F_L6)):
            self.wait(fl, sleep=0)
            if s0 == 0:
                self.stamp(2)
            for st in range(s0, s0 + 6): wr(st)
            for st in range(s0, s1):
                a(f's_waitcnt lgkmcnt({2 * min(5, s1 - 1 - st)})')
                a(f'v_mfma_f32_32x32x16_bf16 {t16(D)}, {q4(WT + 4*(st%8))}, {q4(4*st)}, {"0" if st == 0 else t16(D)}')
                if st + 6 < s1: wr(st + 6)
        QS = f2u(0.25 * math.log2(math.e))
        a(f'v_mov_b32 v24, {QS:#x}')
        for r in range(8):
            a(f'v_pk_mul_f32 {pr(D+2*r)}, v[24:25], {pr(D+2*r)} op_sel:[0,0] op_sel_hi:[0,1]')
            a(f'v_cvt_pk_bf16_f32 v{16+r}, v{D+2*r}, v{D+2*r+1}')
            if r == 3: a(f'ds_write_b128 v{vQ}, v[16:19] offset:{L_QF}')
        a(f'ds_write_b128 v{vQ}, v[20:23] offset:{L_QF+1024}')
        self.sig(F_QP)
        self.stamp(3)
        a(f'v_mul_f32 v8, v{D}, v{D}\nv_mul_f32 v9, v{D+8}, v{D+8}')
        for r in range(1, 8): a(f'v_fmac_f32 v8, v{D+r}, v{D+r}\nv_fmac_f32 v9, v{D+8+r}, v{D+8+r}')
        a('v_permlane32_swap_b32 v8, v9\nv_add_f32 v8, v8, v9')
        a(f'v_mov_b32 v{vQ}, v8')
        if 'nosvc' in OPT:
            self.sig(F_S[0]); self.sig(F_S[9]); self.end(); return
        sXB, sXL, sTP, sCT = 73, 74, 75, 80
        a(f's_lshl_b32 s{sXB}, s{sTB}, 2\ns_add_u32 s{sXB}, s{sXB}, s{sSW}\ns_lshl_b32 s{sXB}, s{sXB}, 15')
        a(f's_mul_i32 s{sXL}, s{sSW}, {XW}\ns_add_u32 s{sXL}, s{sXL}, {L_A2}')
        a(f's_lshl_b32 s{sTP}, s{sRB}, 1\ns_lshr_b32 s{sT0}, s{sSW}, 1\ns_add_u32 s{sTP}, s{sTP}, s{sT0}')
        a(f's_lshl_b32 s{sCT}, s{sCG}, 1\ns_and_b32 s{sT0}, s{sSW}, 1\ns_add_u32 s{sCT}, s{sCT}, s{sT0}')
        a(f'v_lshlrev_b32 v{vT}, 3, v{vHI}\nv_xor_b32 v{vT}, v{vC31}, v{vT}\nv_lshlrev_b32 v{vT}, 4, v{vT}\nv_lshl_add_u32 v{vXD}, v{vHI}, 13, v{vT}\nv_lshl_add_u32 v{vBD}, v{vHI}, 10, v{vT}')
        def tmap(i):
            r = 4 * (i >> 3) + (i & 3)
            return 16 * ((i >> 2) & 1) + (r >> 1) + 8 * (r & 1)
        def xdma(half, ms=range(16)):
            for m in ms:
                a(f's_xor_b32 s{sT0}, s{sXM}, {m}\ns_mul_i32 s{sT0}, s{sT0}, 1040\ns_add_u32 m0, s{sT0}, s{sXL}\ns_xor_b32 s{sT0}, s{sXG}, {tmap(2*m)*1024 + 512*half}')
                a(f'buffer_load_dwordx4 v{vXD}, s[{SA}:{SA+3}], s{sT0} offen lds')
        sXM, sXG, sHB = 50, 51, 81
        a(f's_and_b32 s{sXM}, s{sPB}, 14\ns_and_b32 s{sT0}, s{sPB}, 2\ns_lshl_b32 s{sT0}, s{sT0}, 3\ns_lshr_b32 s{sT1}, s{sPB}, 2\ns_lshl_b32 s{sT1}, s{sT1}, 1\ns_add_u32 s{sT0}, s{sT0}, s{sT1}\ns_lshl_b32 s{sT0}, s{sT0}, 10')
        a(f's_xor_b32 s{sHB}, s{sPB}, s{sTB}\ns_and_b32 s{sHB}, s{sHB}, 1\ns_lshl_b32 s{sHB}, s{sHB}, 9\ns_add_u32 s{sT0}, s{sT0}, s{sHB}\ns_add_u32 s{sXG}, s{sXB}, s{sT0}')
        self.srd(SA, P(5), 2048 * 1024)
        a(f'v_lshrrev_b32 v{vU}, 1, v{vC31}\nv_mul_u32_u24 v{vU}, 1040, v{vU}\nv_lshl_add_u32 v{vU}, v{vHI}, 4, v{vU}\nv_and_b32 v{vT}, 1, v{vC31}')
        a(f'v_mul_u32_u24 v{vHA}, 640, v{vT}\nv_mul_u32_u24 v{vHB}, 384, v{vT}\nv_add_u32 v{vHA}, v{vHA}, v{vU}\nv_add_u32 v{vHB}, v{vHB}, v{vU}')
        a(f'v_add_u32 v{vXR}, s{sXL}, v{vHA}\nv_add_u32 v{vXR2}, s{sXL}, v{vHB}\nv_add_u32 v{vHA}, {L_A1}, v{vHA}\nv_add_u32 v{vHB}, {L_A1}, v{vHB}')
        a(f'v_lshlrev_b32 v{vSX}, 3, v{vLN}\nv_add_u32 v{vSX}, s{sXL}, v{vSX}')
        a(f'v_lshlrev_b32 v{vP8}, 3, v{vC31}\nv_add_u32 v{vP8}, {L_A2}, v{vP8}')
        a(f'v_lshlrev_b32 v{vTW}, 6, v{vC31}\nv_lshl_add_u32 v{vTW}, v{vHI}, 5, v{vTW}\nv_add_u32 v{vTW}, s{sXL}, v{vTW}\nv_add_u32 v{vTR}, s{sXL}, v{vTR}')
        a(f'v_lshlrev_b32 v{vEA}, 4, v{vC31}\nv_xor_b32 v{vT}, 1, v{vHI}\nv_lshl_add_u32 v{vEA}, v{vT}, 12, v{vEA}')
        a(f'v_lshlrev_b32 v{vXS}, 10, v{vC31}\nv_lshl_add_u32 v{vXS}, v{vHI}, 4, v{vXS}')
        a(f'v_lshlrev_b32 v{vOA}, 2, v{vC31}\nv_lshl_add_u32 v{vOA}, v{vHI}, 14, v{vOA}')
        self.wimg_lane_addr(vWI, vT)
        a(f's_and_b32 s{sT0}, s{sSW}, 1\ns_mul_i32 s{sT1}, s{sT0}, {512 - 32*1040}\ns_add_u32 s{sT1}, s{sT1}, {32*1040}\nv_add_u32 v{vCS}, s{sT1}, v{vCK}')
        a(f's_mul_i32 s{sT1}, s{sT0}, {32*1040 + 512}\nv_add_u32 v{vCK}, s{sT1}, v{vCK}\nv_add_u32 v{vCK2}, {L_A2 - L_A1}, v{vCK}\nv_add_u32 v{vCS2}, {L_A2 - L_A1}, v{vCS}')
        a(f'v_and_b32 v{vHF}, 15, v{vLN}\nv_lshlrev_b32 v{vHF}, 7, v{vHF}\nv_lshlrev_b32 v{vPF}, 6, v{vLN}')
        a(f'v_add_u32 v{vYW}, s{sXL}, v{vL16}\ns_xor_b32 s{sT0}, s{sSW}, 1\ns_mul_i32 s{sT0}, s{sT0}, {XW}\ns_add_u32 s{sT0}, s{sT0}, {L_A2}\nv_add_u32 v{vYR}, s{sT0}, v{vL16}')
        a('s_waitcnt vmcnt(0)')
        self.get_tag()
        a(f'v_mov_b32 v{vTG}, s{sTAG}')
        a(f'v_lshlrev_b32 v0, 16, v{PRM}\nv_lshlrev_b32 v1, 16, v{PRM+1}\nv_lshlrev_b32 v2, 16, v{PRM+2}')
        LOG2E = f2u(math.log2(math.e))
        a(f'v_mul_f32 v2, {LOG2E:#x}, v2\nv_exp_f32 v2, v2\nv_cvt_pk_bf16_f32 v2, v2, v2\nv_lshlrev_b32 v2, 16, v2')
        a(f'v_mul_f32 v4, v2, v0\nv_mul_f32 v5, v2, v1\nv_mul_f32 v4, {LOG2E:#x}, v4\nv_mul_f32 v5, {f2u(-1/(2*math.pi)):#x}, v5')
        def power(d, n):
            a(f'v_mul_f32 v6, {n}, v4\nv_mul_f32 v7, {n}, v5\nv_exp_f32 v6, v6\nv_fract_f32 v7, v7\nv_cos_f32 v8, v7\nv_sin_f32 v9, v7\nv_mul_f32 v{d}, v6, v8\nv_mul_f32 v{d+1}, v6, v9')
        power(L1, '1.0')
        power(L8, f'{f2u(8.0):#x}')
        power(L16, f'{f2u(16.0):#x}')
        power(L128, f'{f2u(128.0):#x}')
        a(f'v_cvt_f32_u32 v11, v{vHI}\nv_mul_f32 v11, {f2u(1024.0):#x}, v11')
        power(FF, 'v11')
        a(f's_lshl_b32 s{sT0}, s{sSW}, 1\nv_add_u32 v11, s{sT0}, v{vHI}\nv_cvt_f32_u32 v11, v11\nv_mul_f32 v11, {f2u(16.0):#x}, v11')
        power(WW, 'v11')
        a(f'v_add_f32 v6, -1.0, v{L1}\nv_mul_f32 v7, v0, v0\nv_fmac_f32 v7, v1, v1\nv_rcp_f32 v7, v7\nv_add_f32 v7, v7, v7')
        a(f'v_mul_f32 v8, v6, v0\nv_fma_f32 v8, -v{L1+1}, v1, v8\nv_mul_f32 v9, v6, v1\nv_fma_f32 v9, -v{L1+1}, v0, -v9\nv_mul_f32 v{CC}, v8, v7\nv_mul_f32 v{CC+1}, v9, v7')
        a(f'v_and_b32 v6, 1, v{vLN}\nv_lshlrev_b32 v6, 4, v6\nv_lshlrev_b32 v3, v6, v{PRM+3}')
        a(f'v_lshrrev_b32 v6, 1, v{vC31}\nv_lshlrev_b32 v7, 2, v{vHI}\nv_sub_u32 v6, v6, v7')
        for q in range(8):
            a(f'v_cmp_eq_u32 vcc, {8*(q//4) + q%4}, v6\nv_cndmask_b32 v{DG+q}, 0, v3, vcc')
        LC = PRM
        a(f'v_mov_b32 v{LC}, 0\nv_mov_b32 v{LC+1}, 0')
        SN = 180
        a(f'v_mov_b32 v{SN}, -1\nv_mov_b32 v{SN+1}, -1\nv_mov_b32 v{SN+2}, -1\nv_mov_b32 v{SN+3}, -1\nv_mov_b32 v{SN+4}, 0\nv_mov_b32 v{SN+5}, 0\nv_mov_b32 v{SN+6}, s{sTAG}\nv_mov_b32 v{SN+7}, 0')
        self.srd(SB, P(8), 512 * 1024)
        self.srd(SC, P(9), 512 * 1024)
        self.stamp(11)
        def bdma(half, only=None):
            if half == 0: a(f's_mul_i32 s{sT1}, s{sSW}, {4*1040}\ns_lshl_b32 s{sT2}, s{sPB}, 15\ns_lshl_b32 s{sT3}, s{sSW}, 13\ns_add_u32 s{sT2}, s{sT2}, s{sT3}\ns_add_u32 s{sT2}, s{sT2}, s{sHB}')
            for pl, srd in ((0, SB), (1, SC)):
                for m in range(4):
                    if only is not None and only != 4 * pl + m: continue
                    a(f's_add_u32 m0, s{sT1}, {L_A1 + ((2*half + pl)*16 + m)*1040}\ns_xor_b32 s{sT0}, s{sT2}, {2048*m + 512*half}')
                    a(f'buffer_load_dwordx4 v{vBD}, s[{srd}:{srd+3}], s{sT0} offen lds')
        def xread(half):
            for s in range(16): a(f'ds_read_b128 {q4(64*half + 4*s)}, v{vXR2 if s & 4 else vXR} offset:{32*s}')
        def rowdma(srd, base, sg, n):
            for m in range(n):
                if m % 4 == 0: a(f's_add_u32 m0, s{sT1}, {base + m*1040}\ns_add_u32 s{sT0}, s{sg}, {1024*m}')
                else: a('s_add_u32 m0, m0, 16')
                a(f'buffer_load_dwordx4 v{vL16}, s[{srd}:{srd+3}], s{sT0} offen offset:{1024*(m%4)} lds')
        self.wait(F_A1, sleep=2)
        self.stamp(10)
        a(f'ds_read_b64 {pr(SN+8)}, v{SN+4} offset:{F_KMAX}')
        xdma(0, range(2)); a(f's_mov_b32 s{sT0}, {f2u(3400.0):#x}\ns_waitcnt lgkmcnt(0)')
        a(f'v_mul_f32 v{vT}, v{SN+8}, v{vQ}\nv_cmp_nge_f32 vcc, s{sT0}, v{vT}\nv_readfirstlane_b32 s{sXC}, v{SN+9}\ns_cmp_eq_u64 vcc, 0\ns_cselect_b32 s{sT0}, 1, 2\nv_mov_b32 v{vQ}, s{sT0}')
        a(f'ds_write_b32 v{vS}, v{vQ} offset:{F_S[0]}')
        bdma(0); xdma(0, range(2, 16))
        a('s_waitcnt vmcnt(0)')
        self.sig(F_S[1])
        self.stamp(4)
        xread(0)
        self.wait(F_S[1], sleep=1)
        self.stamp(5)
        GR, GI, BT = 128, 144, 160
        PD = opt('s1depth', 4)
        lq = []
        def bread(q):
            s, pl = q // 2, q % 2
            a(f'ds_read_b128 {q4(BT + 4*(q%5))}, v{vHB if s & 4 else vHA} offset:{((2*(s//16) + pl)*16)*1040 + 32*(s%16)}')
            lq.append(('b', q))
        a(f's_setprio {opt("gprio1", 0)}')
        for q in range(PD): bread(q)
        XQ = opt('xq', 20)
        for q in range(64):
            s, pl = q // 2, q % 2
            need = max([i for i, x in enumerate(lq) if x == ('b', q) or x == ('x', s)] + [-1])
            if need >= 0:
                a(f's_waitcnt lgkmcnt({len(lq) - 1 - need})')
                del lq[:need + 1]
            Gx = GI if pl else GR
            a(f'v_mfma_f32_32x32x16_bf16 {t16(Gx)}, {q4(4*s)}, {q4(BT + 4*(q%5))}, {"0" if s == 0 else t16(Gx)}')
            if q + PD == 32:
                a('s_setprio 3')
                self.wait(F_S[2], sleep=1); lq.clear()
                a(f's_setprio {opt("gprio1", 0)}')
                self.stamp(12)
            if q + PD < 64: bread(q + PD)
            if q < 4: bdma(1, 2 * q); bdma(1, 2 * q + 1)
            elif q < 12: xdma(1, [2 * q - 8, 2 * q - 7])
            elif pl == 1 and opt('pad1', 0): a(f's_nop {opt("pad1", 0) - 1}')
            if q == XQ:
                a('s_waitcnt vmcnt(0)')
                self.sig(F_S[2]); lq.append(('s', 0))
                a(f's_or_b32 s{sT0}, s2, s{sSW}\ns_cbranch_scc1 L_noep')
                a(f's_mov_b64 exec, 1\nbuffer_store_dword v{vTG}, off, s[{SWS}:{SWS+3}], 0 sc1\ns_mov_b64 exec, -1')
                a('L_noep:')
                a(f's_cmp_lg_u32 s{sTB}, 0\ns_cbranch_scc1 L_nozero')
                a(f's_lshl_b32 s{sT0}, s{sPB}, 14\ns_lshl_b32 s{sT1}, s{sSW}, 11\ns_add_u32 s{sT0}, s{sT0}, s{sT1}\ns_add_u32 s{sT0}, s{sT0}, {WS_EBUF:#x}')
                for n in range(2): a(f'buffer_store_dwordx4 {q4(SN+4)}, v{vL16}, s[{SWS}:{SWS+3}], s{sT0} offen offset:{1024*n} sc1')
                a('L_nozero:')
                a(f's_lshr_b32 s{sT0}, s{sSW}, 1\ns_and_b32 s{sT1}, s{sRB}, 1\ns_cmp_lg_u32 s{sT0}, s{sT1}\ns_cbranch_scc1 L_nosent')
                a(f's_lshl_b32 s{sT1}, s{sCG}, 12\ns_add_u32 s{sT0}, s{sXB}, s{sT1}\ns_add_u32 s{sT0}, s{sT0}, {WS_OBUF:#x}')
                self.xstore([f'buffer_store_dwordx4 {q4(SN)}, v{vL16}, s[{SWS}:{SWS+3}], s{sT0} offen offset:{1024*n}' for n in range(4)])
                a('L_nosent:')
                if opt('pf', 1): self.prefetch((10, 11, 4), vPF)
            if XQ < q <= XQ + 16:
                sx = q - XQ - 1
                a(f'ds_read_b128 {q4(64 + 4*sx)}, v{vXR2 if sx & 4 else vXR} offset:{32*sx}'); lq.append(('x', 16 + sx))
        a('s_setprio 3')
        self.stamp(6)
        if opt('stop', 0) == 6: self.end(); return
        RE = 'op_sel:[0,0,0] op_sel_hi:[0,1,1]'
        IM = 'op_sel:[1,0,0] op_sel_hi:[1,1,1]'
        T0, T1 = 8, 10
        def pstep(dr, di, sr, si, l, ur, ui, ns=0, nu=0):
            a(f'v_pk_fma_f32 {pr(T0)}, {pr(l)}, {pr(si)}, {pr(ur)} {IM} neg_lo:[{1-ns},0,0] neg_hi:[{1-ns},0,0]')
            a(f'v_pk_fma_f32 {pr(T1)}, {pr(l)}, {pr(sr)}, {pr(ui)} {IM} neg_lo:[0,0,{nu}] neg_hi:[0,0,{nu}]')
            a(f'v_pk_fma_f32 {pr(dr)}, {pr(l)}, {pr(sr)}, {pr(T0)} {RE}')
            a(f'v_pk_fma_f32 {pr(di)}, {pr(l)}, {pr(si)}, {pr(T1)} {RE} neg_lo:[{ns},0,0] neg_hi:[{ns},0,0]')
        def cstep(dr, di, sr, si, l, ur, ui):
            a(f'v_fma_f32 v{T0}, -v{l+1}, v{si}, v{ur}\nv_fma_f32 v{T1}, v{l+1}, v{sr}, v{ui}\nv_fma_f32 v{dr}, v{l}, v{sr}, v{T0}\nv_fma_f32 v{di}, v{l}, v{si}, v{T1}')
        def zstep(d, s, l, u):
            a(f'v_pk_fma_f32 {pr(T0)}, {pr(l)}, {pr(s)}, {pr(u)} {RE}')
            a(f'v_pk_fma_f32 {pr(d)}, {pr(l)}, {pr(s)}, {pr(T0)} op_sel:[1,1,0] op_sel_hi:[1,0,1] neg_lo:[1,0,0]')
        def cmul(r, i, neg):
            a(f'v_pk_mul_f32 {pr(T0)}, {pr(CC)}, {pr(i)} op_sel:[1,0] op_sel_hi:[1,1]')
            a(f'v_pk_mul_f32 {pr(T1)}, {pr(CC)}, {pr(r)} op_sel:[1,0] op_sel_hi:[1,1]')
            a(f'v_pk_fma_f32 {pr(r)}, {pr(CC)}, {pr(r)}, {pr(T0)} {RE} neg_lo:[0,0,{neg}] neg_hi:[0,0,{neg}]')
            a(f'v_pk_fma_f32 {pr(i)}, {pr(CC)}, {pr(i)}, {pr(T1)} {RE} neg_lo:[{neg},0,1] neg_hi:[{neg},0,1]')
        ER, EI, EE = 12, 14, 16
        pstep(ER, EI, GR, GI, L1, GR + 2, GI + 2, 1, 1)
        for r in range(4, 16, 2): pstep(ER, EI, ER, EI, L1, GR + r, GI + r, 0, 1)
        cstep(EE, EE + 1, ER, EI, L8, ER + 1, EI + 1)
        a(f'ds_write_b64 v{vSX}, {pr(EE)} offset:{L_SXO}')
        self.sig(F_S[3])
        self.srd(SB, P(10), 512 * 1024)
        self.srd(SC, P(11), 512 * 1024)
        a(f's_lshl_b32 s{sT3}, s{sSW}, 1\ns_mov_b32 s{sM0}, 0\ns_mov_b32 s{sM0+1}, -1')
        a(f's_lshl_b32 s{sT4}, s{sPB}, 14\ns_lshl_b32 s{sT1}, s{sTB}, 9\ns_add_u32 s{sT4}, s{sT4}, s{sT1}\ns_add_u32 s{sT4}, s{sT4}, {WS_EBUF:#x}')
        self.wait(F_S[3], sleep=1)
        for c in range(7): a(f'ds_read_b64 {pr(20+2*c)}, v{vP8} offset:{(c//2)*XW + L_SXO + (c%2)*256}')
        a('s_waitcnt lgkmcnt(0)')
        for c in range(7):
            a(f's_cmp_lt_u32 s{sT3}, {c}\ns_cbranch_scc1 L_lh_done')
            a(f's_cmp_gt_u32 s{sT3}, {c}\ns_cselect_b64 exec, -1, s[{sM0}:{sM0+1}]')
            zstep(LC, LC, L16, 20 + 2 * c)
        zstep(vTG - 2, LC, L16, EE)
        a(f's_add_u32 s{sT0}, s{sT4}, {16*512 - 512}\nbuffer_store_dwordx4 v[{vTG-2}:{vTG+1}], v{vL16}, s[{SWS}:{SWS+3}], s{sT0} offen sc1')
        a('L_lh_done:\ns_mov_b64 exec, -1')
        self.stamp(7)
        def cdma(srd, base):
            a(f's_mul_i32 s{sT1}, s{sSW}, {16*1040}\ns_lshl_b32 s{sT2}, s{sCG}, 16\ns_lshl_b32 s{sT3}, s{sSW}, 14\ns_add_u32 s{sT2}, s{sT2}, s{sT3}')
            rowdma(srd, base, sT2, 16)
        cdma(SB, L_A1)
        for r in range(0, 16, 2): cmul(GR + r, GI + r, 1)
        a(f's_mov_b32 s{sCNT}, 100000')
        a('L_eg:')
        for q in range(8): a(f'buffer_load_dwordx3 v[{24+4*q}:{26+4*q}], v{vEA}, s[{SWS}:{SWS+3}], s{sT4} offen offset:{512*q} sc1')
        a('s_waitcnt vmcnt(0)')
        a(f'v_cmp_ne_u32 vcc, s{sTAG}, v26')
        for q in range(1, 8): a(f'v_cmp_ne_u32 s[{sM1}:{sM1+1}], s{sTAG}, v{26+4*q}\ns_or_b64 vcc, vcc, s[{sM1}:{sM1+1}]')
        a(f's_cbranch_scc0 L_egd\ns_sleep {opt("esleep", 4)}\ns_sub_u32 s{sCNT}, s{sCNT}, 1\ns_cbranch_scc0 L_eg')
        a('L_egd:')
        self.sig(F_S[9])
        self.stamp(8)
        for q in range(1, 8): zstep(24, 24, L128, 24 + 4 * q)
        a(f'v_pk_mul_f32 {pr(T0)}, {pr(FF)}, {pr(24)} op_sel:[0,0] op_sel_hi:[0,1]')
        a(f'v_pk_fma_f32 {pr(20)}, {pr(FF)}, {pr(24)}, {pr(T0)} op_sel:[1,1,0] op_sel_hi:[1,0,1] neg_lo:[1,0,0]')
        a(f'v_mov_b32 v22, v20\nv_mov_b32 v23, v21\nv_permlane32_swap_b32 v20, v22\nv_permlane32_swap_b32 v21, v23\nv_pk_add_f32 {pr(20)}, {pr(20)}, {pr(22)}')
        IR, II = 24, 26
        cstep(IR, II, 20, 21, WW, LC, LC + 1)
        cstep(IR + 1, II + 1, IR, II, L8, ER, EI)
        cmul(IR, II, 0)
        pstep(GR, GI, IR, II, L1, GR, GI)
        for r in range(2, 16, 2): pstep(GR + r, GI + r, GR + r - 2, GI + r - 2, L1, GR + r, GI + r)
        for pl, Gx in ((0, GR), (1, GI)):
            for j in range(8):
                r0 = 4 * (j % 4) + j // 4
                a(f'v_cvt_pk_bf16_f32 v{28+8*pl+j}, v{Gx+r0}, v{Gx+r0+2}')
            a(f'ds_write_b128 v{vTW}, {q4(28+8*pl)} offset:{L_TBO+2048*pl}\nds_write_b128 v{vTW}, {q4(32+8*pl)} offset:{L_TBO+2048*pl+16}')
        for pl in range(2):
            for f in range(2):
                d = 44 + 8 * pl + 4 * f
                a(f'ds_read_b64_tr_b16 {pr(d)}, v{vTR} offset:{L_TBO+2048*pl+1024*f}\nds_read_b64_tr_b16 {pr(d+2)}, v{vTR} offset:{L_TBO+2048*pl+1024*f+256}')
        a(f's_lshl_b32 s{sT0}, s{sXB}, 1\ns_lshl_b32 s{sT1}, s{sPB}, 11\ns_add_u32 s{sT0}, s{sT0}, s{sT1}\ns_add_u32 s{sT0}, s{sT0}, {WS_HBUF:#x}\ns_add_u32 s{sT1}, s{sT0}, 0x8000')
        hs = []
        for pl in range(2):
            for f in range(2):
                d = 44 + 8 * pl + 4 * f
                hs += [f's_waitcnt lgkmcnt({6 - 4*pl - 2*f})', f'buffer_store_dwordx4 {q4(d)}, v{vL16}, s[{SWS}:{SWS+3}], s{sT0 if pl == 0 else sT1} offen offset:{1024*f}']
        self.xstore(hs)
        YK, YS, XF, HR = 128, 144, 184, 160
        a(f's_lshl_b32 s{sT0}, s{sTP}, 15\ns_lshl_b32 s{sT1}, s{sCT}, 6\ns_add_u32 s{sT0}, s{sT0}, s{sT1}')
        a(f'buffer_load_dwordx4 {q4(XF)}, v{vXS}, s[{SA}:{SA+3}], s{sT0} offen\nbuffer_load_dwordx4 {q4(XF+4)}, v{vXS}, s[{SA}:{SA+3}], s{sT0} offen offset:32')
        a(f's_lshr_b32 s{sT4}, s{sXB}, 4\ns_lshl_b32 s{sT3}, s{sPB}, 7\ns_add_u32 s{sT4}, s{sT4}, s{sT3}\ns_add_u32 s{sT4}, s{sT4}, {WS_HFLAG:#x}')
        self.wait(F_S[9], sleep=1)
        a(f's_mov_b32 s{sM1}, -1\ns_mov_b32 s{sM1+1}, 0\ns_waitcnt vmcnt(2)')
        a(f's_mov_b64 exec, s[{sM1}:{sM1+1}]')
        self.xstore([f'buffer_store_dword v{vTG}, v{vOA}, s[{SWS}:{SWS+3}], s{sT4} offen'])
        a('s_mov_b64 exec, -1')
        self.stamp(9)
        if opt('stop', 0) == 9: self.end(); return
        cdma(SC, L_A2)
        for j in range(16): a(f'ds_read_b128 {q4(8*j)}, v{vCK} offset:{32*j}\nds_read_b128 {q4(8*j+4)}, v{vCS} offset:{32*j}')
        self.sig(F_S[6])
        a('s_waitcnt vmcnt(17)')
        a(f'v_mfma_f32_32x32x16_bf16 {t16(YK)}, {q4(XF)}, {q4(DG)}, 0')
        a(f'v_mfma_f32_32x32x16_bf16 {t16(YK)}, {q4(XF+4)}, {q4(DG+4)}, {t16(YK)}')
        a(f's_lshl_b32 s{sT0}, s{sTP}, 11\ns_add_u32 s{sT0}, s{sT0}, {WS_HFLAG:#x}\ns_mov_b64 exec, 0xffff')
        a(f's_mov_b32 s{sCNT}, 100000')
        a('L_gph:')
        a(f'buffer_load_dword v{vT}, v{vHF}, s[{SWS}:{SWS+3}], s{sT0} offen sc1\ns_waitcnt vmcnt(0)\nv_cmp_ne_u32 vcc, s{sTAG}, v{vT}\ns_cbranch_vccz L_gdh')
        a(f's_sleep {opt("hsleep", 4)}\ns_sub_u32 s{sCNT}, s{sCNT}, 1\ns_cbranch_scc0 L_gph')
        a('L_gdh:\ns_mov_b64 exec, -1')
        self.sig(F_S[5])
        self.stamp(13)
        if opt('stop', 0) == 10: self.end(); return
        a(f's_lshl_b32 s{sT3}, s{sTP}, 16\ns_and_b32 s{sT0}, s{sSW}, 1\ns_lshl_b32 s{sT0}, s{sT0}, 14\ns_add_u32 s{sT3}, s{sT3}, s{sT0}\ns_add_u32 s{sT3}, s{sT3}, {WS_HBUF:#x}')
        NR = 13
        vq = []
        def hload(j):
            if j % 4 == 0 and j > 0: a(f's_add_u32 s{sT3}, s{sT3}, {4096 if j != 16 else 4096 + 16384}')
            a(f'buffer_load_dwordx4 {q4(HR + 4*(j%NR))}, v{vL16}, s[{SWS}:{SWS+3}], s{sT3} offen offset:{1024*(j%4)} sc1')
            vq.append(('h', j))
        for j in range(NR - 1): hload(j)
        self.wait(F_S[6], sleep=1)
        self.srd(SB, P(4), 512 * 1024)
        a(f's_lshl_b32 s{sT4}, s{sSW}, 17\ns_lshl_b32 s{sT1}, s{sCG}, 7\ns_add_u32 s{sT4}, s{sT4}, s{sT1}\ns_lshl_b32 s{sT1}, s{sSW}, 14\ns_add_u32 m0, s{sT1}, {L_A1}')
        a(f's_setprio {opt("gprio4", 0)}')
        lq = []
        def cread(j):
            c = 8 * (j % 16)
            a(f'ds_read_b128 {q4(c)}, v{vCK2} offset:{32*(j%16)}\nds_read_b128 {q4(c+4)}, v{vCS2} offset:{32*(j%16)}')
            lq.extend([('c', j), ('c', j)])
        wosig = False
        for j in range(32):
            need = vq.index(('h', j))
            w = f's_waitcnt vmcnt({len(vq) - 1 - need})'
            del vq[:need + 1]
            ln = max([i for i, x in enumerate(lq) if x == ('c', j)] + [-1])
            if ln >= 0:
                w += f' lgkmcnt({len(lq) - 1 - ln})'; del lq[:ln + 1]
            a(w)
            if j >= 8 and not wosig and not any(x[0] == 'w' for x in vq):
                self.sig(F_WO); lq.append(('s', 0)); wosig = True
            c = 8 * (j % 16); h = q4(HR + 4 * (j % NR))
            a(f'v_mfma_f32_32x32x16_bf16 {t16(YK)}, {h}, {q4(c)}, {t16(YK)}')
            if j + NR - 1 < 32: hload(j + NR - 1)
            a(f'v_mfma_f32_32x32x16_bf16 {t16(YS)}, {h}, {q4(c+4)}, {"0" if j == 0 else t16(YS)}')
            if j < 8:
                for m in range(2):
                    a(f'buffer_load_dwordx4 v{vWI}, s[{SB}:{SB+3}], s{sT4} offen lds\ns_add_u32 m0, m0, 1024\ns_add_u32 s{sT4}, s{sT4}, 8192')
                    vq.append(('w', 0))
            if j == 11:
                a('s_setprio 3')
                self.wait(F_S[5], sleep=1); lq.clear()
                a(f's_setprio {opt("gprio4", 0)}')
            if 12 <= j < 28: cread(j + 4)
            if opt('pad4', 0): a(f's_nop {opt("pad4", 0) - 1}')
        assert wosig
        a('s_setprio 3')
        self.sig(F_S[7])
        self.srd(SOUT, P(14), 2048 * 4096)
        a(f's_lshl_b32 s{sT2}, s{sTP}, 17\ns_lshl_b32 s{sT1}, s{sCT}, 7\ns_add_u32 s{sT2}, s{sT2}, s{sT1}')
        self.wait(F_S[7], sleep=1)
        for q in range(4): a(f'ds_write_b128 v{vYW}, {q4(YS+4*q)} offset:{1024*q}')
        self.sig(F_S[8])
        self.wait(F_S[8], sleep=1)
        for q in range(4): a(f'ds_read_b128 {q4(YS+4*q)}, v{vYR} offset:{1024*q}')
        a('s_waitcnt lgkmcnt(0)')
        fl = {0: '', 1: ' sc1', 2: ' nt', 3: ' sc0 sc1', 4: ' sc1 nt', 5: ' sc0 nt', 6: ' sc0 sc1 nt'}[opt('yfl', 2)]
        for r in range(0, 16, 2): a(f'v_pk_add_f32 {pr(YS+r)}, {pr(YK+r)}, {pr(YS+r)}')
        for r in range(16):
            a(f's_add_u32 s{sT0}, s{sT2}, {((r % 4) + 8 * (r // 4)) * 4096}')
            a(f'buffer_store_dword v{YS+r}, v{vOA}, s[{SOUT}:{SOUT+3}], s{sT0} offen offset:2048{fl}')
        self.stamp(2)
        self.end()

HEADER = open('cdna_kernels/' + NAME + '.s.ref').read().split('; Override launch')[0]

def make(stamps=False):
    g = G(stamps)
    body = g.build()
    txt = HEADER + f'; @launch grid=(256,1,1) block=(512,1,1) lds={L_TOTAL}\n'
    txt += f'''.amdgcn_target "amdgcn-amd-amdhsa--gfx950"
.text
.globl {NAME}_kernel
.p2align 8
.type {NAME}_kernel,@function
{NAME}_kernel:
{body}.section .rodata,"a"
.p2align 6
.amdhsa_kernel {NAME}_kernel
  .amdhsa_next_free_vgpr 256
  .amdhsa_next_free_sgpr 102
  .amdhsa_accum_offset 256
  .amdhsa_group_segment_fixed_size 0
  .amdhsa_kernarg_size 136
  .amdhsa_user_sgpr_count 2
  .amdhsa_user_sgpr_kernarg_segment_ptr 1
  .amdhsa_system_sgpr_workgroup_id_x 1
.end_amdhsa_kernel
'''
    return txt, g.a.n_ins

if __name__ == '__main__':
    pos = [x for x in sys.argv[1:] if not x.startswith('--')]
    out = pos[0] if pos else 'cdna_kernels/' + NAME + '.s'
    txt, n = make(stamps='stamps' in OPT)
    open(out, 'w').write(txt)
    print('wrote', out, n, 'instructions')
```

```python
import sys, math, struct
from asm import Asm

NAME = 'concat_heads__grouped_kv_mqa__ssm_conv_s5__prompt'
OPT = dict((x[2:].split('=') + ['1'])[:2] for x in sys.argv if x.startswith('--'))
def opt(k, d): return int(OPT.get(k, d))
def f2u(x): return struct.unpack('<I', struct.pack('<f', x))[0]
def pr(r): return f'v[{r}:{r+1}]'
def q4(r): return f'v[{r}:{r+3}]'
def t16(r): return f'v[{r}:{r+15}]'

WS_KVFLAG = 0x8000
WS_KVIMG = 0x10000
WS_EBUF = 0x40000
WS_HFLAG = 0x80000
WS_OBUF = 0x100000
WS_HBUF = 0x400000
WS_DBG = 0x800000
WS_SIZE = 0x1000000
def FL(i): return 16 * i
F_L1, F_L2, F_L4, F_L6 = FL(0), FL(1), FL(2), FL(3)
F_QP, F_KVD = FL(4), FL(5)
F_A1, F_AX, F_AY = FL(6), FL(7), FL(8)
F_S = [FL(9 + i) for i in range(10)]
F_WO = FL(19)
F_OX = FL(20)
F_SL = [FL(22 + i) for i in range(3)]
F_KMAX, F_XC, F_KST = FL(25), FL(25) + 4, FL(25) + 8
L_QN = 512
L_ACCF = 1024
L_QF = 5120
L_ACCD = 13312
L_WKV = L_ACCD
L_A1 = 29696
L_A2 = 96256
L_MX = L_A2 + 66560
L_TOTAL = 163840
XW = 16640
L_SXO = 1024
L_TBO = 2048

sWV, sRB, sCG, sTB, sPB, sTAG = 3, 4, 5, 6, 7, 8
sT0, sT1, sT2, sT3, sT4, sT5 = 9, 10, 11, 12, 13, 14
sCNT = 15
P = lambda i: 16 + 2 * i
SA, SB, SC, SWS, SOUT = 52, 56, 60, 64, 68
sSW = 72
sPH, sTJ, sOW = 73, 74, 75
sM0, sM1 = 76, 78
sQH = 81
sXC = 100
sST = 82
SPIN = 400000
vT, vLN, vL16, vEP, vF, vS, vONE = 249, 250, 251, 252, 253, 254, 255

class G:
    def __init__(self, stamps=False):
        self.a = Asm(); self.stamps = stamps; self.cyc = True
    def srd(self, d, p, size):
        self.a(f's_mov_b32 s{d}, s{p}\ns_mov_b32 s{d+1}, s{p+1}\ns_mov_b32 s{d+2}, {size:#x}\ns_mov_b32 s{d+3}, 0x20000')
    def stamp(self, i):
        if self.stamps:
            self.a(f's_memrealtime s[98:99]\ns_waitcnt lgkmcnt(0)\ns_mov_b32 s{sST+i}, s98')
            m = {5: 8, 6: 9}
            if self.cyc and i in m:
                self.a(f's_memtime s[98:99]\ns_waitcnt lgkmcnt(0)\ns_mov_b32 s{sST+m[i]}, s98')
    def end(self):
        a = self.a
        if self.stamps:
            a('s_waitcnt vmcnt(0)')
            self.stamp(15)
            if 'diag' in OPT and self.cyc != ('diagsv' in OPT):
                da, db = [int(x) for x in OPT['diag'].split(',')]
                L = a.label('DG')
                a(f's_sub_u32 s{sT1}, s{sST+db}, s{sST+da}')
                if 'diagcyc' in OPT: a(f's_lshr_b32 s{sT1}, s{sT1}, 1')
                else: a(f's_lshl_b32 s{sT1}, s{sT1}, 3')
                a(f's_min_u32 s{sT1}, s{sT1}, 100000\ns_add_u32 s{sT1}, s{sT1}, s{sST+15}')
                a(f'{L}:\ns_sleep 4\ns_memrealtime s[98:99]\ns_waitcnt lgkmcnt(0)\ns_cmp_lt_u32 s98, s{sT1}\ns_cbranch_scc1 {L}')
            a(f's_lshl_b32 s{sT0}, s2, 3\ns_add_u32 s{sT0}, s{sT0}, s{sWV}\ns_lshl_b32 s{sT0}, s{sT0}, 6\ns_add_u32 s{sT0}, s{sT0}, {WS_DBG:#x}')
            a('s_mov_b64 exec, 1')
            for i in range(16):
                a(f'v_mov_b32 v{vT}, s{sST+i}\nbuffer_store_dword v{vT}, off, s[{SWS}:{SWS+3}], s{sT0} offset:{4*i}')
            a('s_waitcnt vmcnt(0)')
        a('s_endpgm')
    def sig(self, off, va=vS):
        self.a(f'ds_write_b32 v{va}, v{vONE} offset:{off}')
    def wait(self, off, sleep=1, va=vF):
        a = self.a; L = a.label('W'); D = a.label('WD')
        a(f's_mov_b32 s{sCNT}, {SPIN}')
        a(f'{L}:')
        a(f'ds_read_b32 v{vT}, v{va} offset:{off}\ns_waitcnt lgkmcnt(0)\nv_cmp_eq_u32 vcc, 0, v{vT}\ns_cbranch_vccz {D}')
        a((f's_sleep {sleep}\n' if sleep else '') + f's_sub_u32 s{sCNT}, s{sCNT}, 1\ns_cbranch_scc0 {L}')
        a(f'{D}:')
    def xstore(self, lines, kind='o'):
        a = self.a
        if not opt('xc' + kind, 0):
            for x in lines: a(x + (' sc1' if x.startswith('buffer') else ''))
            return
        L = a.label('X'); D = a.label('XD')
        a(f's_cmp_eq_u32 s{sXC}, 1\ns_cbranch_scc0 {L}')
        for x in lines: a(x + (' nt' if x.startswith('buffer') and opt('xnt', 0) else ''))
        a(f's_branch {D}')
        a(f'{L}:')
        for x in lines: a(x + (' sc1' if x.startswith('buffer') else ''))
        a(f'{D}:')
    def get_tag(self):
        self.a(f'v_readfirstlane_b32 s{sTAG}, v{vEP}\ns_mul_i32 s{sTAG}, s{sTAG}, 0x9E3779B1\ns_add_u32 s{sTAG}, s{sTAG}, 0x7F4A7C15')

    def build(self):
        a = self.a
        a('s_cmp_ge_u32 s2, 256\ns_cbranch_scc1 L_exit')
        a('s_load_dwordx16 s[16:31], s[0:1], 0\ns_load_dwordx16 s[32:47], s[0:1], 64\ns_load_dwordx2 s[48:49], s[0:1], 128')
        if self.stamps:
            for i in range(16): a(f's_mov_b32 s{sST+i}, 0')
        a(f'v_and_b32 v{vLN}, 63, v0\nv_lshrrev_b32 v{vT}, 6, v0\nv_lshlrev_b32 v{vL16}, 4, v{vLN}\nv_readfirstlane_b32 s{sWV}, v{vT}')
        a(f's_and_b32 s{sT0}, s2, 7\ns_lshr_b32 s{sT1}, s2, 3')
        a(f's_lshl_b32 s{sRB}, s{sT0}, 2\ns_lshr_b32 s{sT2}, s{sT1}, 3\ns_add_u32 s{sRB}, s{sRB}, s{sT2}\ns_and_b32 s{sCG}, s{sT1}, 7')
        a(f's_lshr_b32 s{sTB}, s{sRB}, 1\ns_and_b32 s{sPB}, s{sT1}, 15\ns_and_b32 s{sSW}, s{sWV}, 3')
        a(f's_cmp_ge_u32 s{sWV}, 4\ns_cbranch_scc1 L_service')
        a(f's_lshr_b32 s{sT5}, s{sCG}, 1\ns_lshl_b32 s{sT4}, s{sRB}, 16')
        def xa_rows(g):
            a(f's_add_u32 s{sT0}, s{sT5}, {g}\ns_and_b32 s{sT0}, s{sT0}, 3\ns_lshl_b32 s{sT0}, s{sT0}, 2\ns_add_u32 s{sT0}, s{sT0}, s{sSW}\ns_lshl_b32 s{sT0}, s{sT0}, 2')
            a(f's_mul_i32 s{sT1}, s{sT0}, 1040\ns_add_u32 m0, s{sT1}, {L_A1}\ns_lshl_b32 s{sT0}, s{sT0}, 10\ns_add_u32 s{sT0}, s{sT0}, s{sT4}')
            if g == 0:
                a('s_waitcnt lgkmcnt(0)')
                self.stamp(0)
                self.srd(SA, P(0), 2048 * 1024)
            for n in range(4):
                a(f'buffer_load_dwordx4 v{vL16}, s[{SA}:{SA+3}], s{sT0} offen offset:{1024*n} lds')
                if n < 3: a('s_add_u32 m0, m0, 16')
        xa_rows(0)
        a(f's_bitcmp1_b32 s{sCG}, 0\ns_cselect_b32 s{SB}, s{P(3)}, s{P(2)}\ns_cselect_b32 s{SB+1}, s{P(3)+1}, s{P(2)+1}\ns_mov_b32 s{SB+2}, 0x4000\ns_mov_b32 s{SB+3}, 0x20000')
        a(f's_lshl_b32 s{sT0}, s{sWV}, 12\ns_add_u32 m0, s{sT0}, {L_WKV}')
        for n in range(4):
            a(f'buffer_load_dwordx4 v{vL16}, s[{SB}:{SB+3}], s{sT0} offen offset:{1024*n} lds')
        self.wimg_lane_addr(0, 1)
        self.srd(SC, P(1), 512 * 1024)
        a(f's_lshl_b32 s{sT3}, s{sSW}, 13\ns_lshl_b32 s{sT1}, s{sCG}, 7\ns_add_u32 s{sT3}, s{sT3}, s{sT1}\ns_and_b32 s{sT1}, s{sRB}, 3\ns_lshl_b32 s{sT1}, s{sT1}, 17\ns_add_u32 s{sT3}, s{sT3}, s{sT1}')
        a(f's_lshl_b32 s{sT2}, s{sSW}, 10')
        def wq_rows(c):
            for n in range(4 * c, 4 * c + 4):
                a(f's_add_u32 m0, s{sT2}, {L_A2 + 4096*n}\ns_xor_b32 s{sT0}, s{sT3}, {0x8000*n:#x}')
                a(f'buffer_load_dwordx4 v0, s[{SC}:{SC+3}], s{sT0} offen lds')
        FO = opt('fo', 1)
        if FO == 0: wq_rows(0)
        else: xa_rows(1)
        self.common_regs()
        self.srd(SWS, P(16), WS_SIZE)
        a('s_barrier')
        self.stamp(1)
        a('s_waitcnt vmcnt(4)')
        self.sig(F_L1)
        if FO == 0: xa_rows(1)
        xa_rows(2); xa_rows(3)
        a(f'buffer_load_dword v{vEP}, off, s[{SWS}:{SWS+3}], 0 sc1')
        if FO == 1: wq_rows(0)
        if FO == 0: wq_rows(1)
        a('s_waitcnt vmcnt(5)')
        self.sig(F_L2)
        if FO == 1: wq_rows(1)
        wq_rows(2); wq_rows(3)
        self.stamp(2)
        a('s_waitcnt vmcnt(8)')
        self.sig(F_L4)
        self.attention()
        self.service()
        a('L_exit:\ns_endpgm')
        return a.finish()

    def common_regs(self):
        self.a(f'v_and_b32 v{vF}, 3, v{vLN}\nv_lshlrev_b32 v{vF}, 2, v{vF}\ns_lshl_b32 s{sT0}, s{sSW}, 2\nv_mov_b32 v{vS}, s{sT0}\nv_mov_b32 v{vONE}, 1')

    def wimg_lane_addr(self, vd, vt):
        a = self.a
        a(f'v_lshrrev_b32 v{vt}, 2, v{vLN}\nv_and_b32 v{vt}, 4, v{vt}\nv_and_b32 v{vd}, 7, v{vLN}\nv_xor_b32 v{vd}, v{vd}, v{vt}\nv_lshlrev_b32 v{vd}, 4, v{vd}')
        a(f'v_lshrrev_b32 v{vt}, 3, v{vLN}\nv_lshl_add_u32 v{vd}, v{vt}, 10, v{vd}')

    def tr_parts(self, c0, r, wpart):
        a = self.a
        a(f'v_bfe_u32 v{c0}, v{vLN}, 4, 1\nv_lshlrev_b32 v{c0}, 5, v{c0}\nv_and_b32 v{r}, 3, v{vLN}\nv_lshl_add_u32 v{c0}, v{r}, 3, v{c0}\nv_bfe_u32 v{r}, v{vLN}, 2, 2')
        a(f's_and_b32 s{sT0}, s{sSW}, 1\nv_lshrrev_b32 v{wpart}, 1, v{r}\nv_xor_b32 v{wpart}, s{sT0}, v{wpart}\nv_lshl_add_u32 v{wpart}, v{wpart}, 6, v{c0}\nv_lshl_add_u32 v{wpart}, v{r}, 7, v{wpart}')

    def prefetch(self, ptrs, vd):
        a = self.a
        a(f's_lshr_b32 s{sT0}, s2, 3\ns_lshl_b32 s{sT0}, s{sT0}, 2\ns_add_u32 s{sT0}, s{sT0}, s{sSW}\ns_lshl_b32 s{sT0}, s{sT0}, 12')
        for p in ptrs:
            self.srd(SOUT, P(p), 512 * 1024)
            a(f'buffer_load_dword v{vEP}, v{vd}, s[{SOUT}:{SOUT+3}], s{sT0} offen')

    def attention(self):
        a = self.a
        K, V, S0, O, Q = 0, 64, 192, 224, 240
        vIDX, vA16, vA8, vQA, vL8 = 244, 245, 246, 247, 248
        R = dict(K=K, V=V, S0=S0, O=O, Q=Q, vIDX=vIDX, vA16=vA16, vA8=vA8, vQA=vQA, vL8=vL8, vM=vEP)
        a(f'v_and_b32 v{Q}, 11, v{vLN}\nv_cmp_eq_u32 vcc, 0, v{Q}\nv_mov_b32 v{Q}, 0x3f803f80\nv_cndmask_b32 v{vT}, 0, v{Q}, vcc')
        MK = opt('mask', 0)
        self.masked = lambda i: (MK >> i) & 1
        for i in range(16):
            for r in range(0 if self.masked(i) else 4, 8): a(f'v_mov_b32 v{V+8*i+r}, v{vT}')
        a(f'v_lshlrev_b32 v{vL8}, 3, v{vLN}\nv_mov_b32 v{vIDX}, 0xdddd')
        def init_state(ph0):
            for i in range(16): a(f'v_mov_b32 v{O+i}, 0')
            a(f's_mov_b32 s{sTJ}, s{sSW}\ns_mov_b32 s{sPH}, {ph0}')
            a(f's_lshl_b32 s{sT0}, s{sTJ}, 10\nv_add_u32 v{vQA}, s{sT0}, v{vL16}')
            a(f's_lshl_b32 s{sT0}, s{sTJ}, 11\nv_add_u32 v{vA16}, s{sT0}, v{vL16}\ns_lshl_b32 s{sT0}, s{sTJ}, 9\nv_add_u32 v{vA8}, s{sT0}, v{vL8}')
        init_state(0)
        FS = opt('fs', 7)
        a(f'v_lshlrev_b32 v{S0+4}, {FS}, v{vLN}\nv_mov_b32 v{S0+3}, 0\ns_getreg_b32 s{sXC}, hwreg(HW_REG_XCC_ID)')
        a(f's_lshl_b32 s{sT3}, s{sWV}, {FS + 6}\ns_add_u32 s{sT3}, s{sT3}, {WS_KVFLAG:#x}')
        a(f's_lshl_b32 s{sT4}, s{sWV}, 15\ns_add_u32 s{sT4}, s{sT4}, {WS_KVIMG:#x}\ns_lshl_b32 s{sT0}, s{sCG}, 12\ns_add_u32 s{sT4}, s{sT4}, s{sT0}')
        a(f's_lshl_b32 s{sOW}, s{sRB}, 16\ns_lshl_b32 s{sT0}, s{sCG}, 12\ns_add_u32 s{sOW}, s{sOW}, s{sT0}\ns_add_u32 s{sOW}, s{sOW}, {WS_OBUF:#x}')
        a(f's_add_u32 s{sT0}, s{sSW}, 1\ns_and_b32 s{sT0}, s{sT0}, 3\ns_lshl_b32 s{sT0}, s{sT0}, 10\ns_add_u32 s{sOW}, s{sOW}, s{sT0}')
        a(f's_mov_b32 s{sM0}, 0xffff\ns_mov_b32 s{sM0+1}, 0xffff')
        self.get_tag()
        a(f's_waitcnt vmcnt(0)')
        self.sig(F_L6)
        self.stamp(3)
        self.wait(F_KVD, sleep=1)
        if opt('pf1', 0):
            a(f's_lshr_b32 s{sT0}, s2, 3\ns_lshl_b32 s{sT0}, s{sT0}, 2\ns_add_u32 s{sT0}, s{sT0}, s{sSW}\ns_lshl_b32 s{sT0}, s{sT0}, 12')
            for k, p in enumerate((8, 9)):
                self.srd(SB, P(p), 512 * 1024)
                for n in range(4): a(f'buffer_load_dwordx4 {q4(4 + 16*k + 4*n)}, v{vL16}, s[{SB}:{SB+3}], s{sT0} offen offset:{1024*n}')
            self.srd(SB, P(5), 2048 * 1024)
            a(f's_lshr_b32 s{sT0}, s{sT0}, 1\ns_and_b32 s{sT1}, s2, 7\ns_lshl_b32 s{sT1}, s{sT1}, 18\ns_add_u32 s{sT0}, s{sT0}, s{sT1}')
            for n in range(2): a(f'buffer_load_dwordx4 {q4(36 + 4*n)}, v{vL16}, s[{SB}:{SB+3}], s{sT0} offen offset:{1024*n}')
        if opt('pw', 12): a(f's_sleep {opt("pw", 12)}')
        a(f's_mov_b32 s{sCNT}, 100000')
        a('L_kvp:')
        a(f'buffer_load_dwordx3 v[{S0}:{S0+2}], v{S0+4}, s[{SWS}:{SWS+3}], s{sT3} offen sc1\ns_waitcnt vmcnt(0)\nv_cmp_ne_u32 vcc, s{sTAG}, v{S0}\ns_cbranch_vccz L_kvpd')
        a(f's_sleep {opt("kvsleep", 4)}\ns_sub_u32 s{sCNT}, s{sCNT}, 1\ns_cbranch_scc0 L_kvp')
        a('L_kvpd:')
        if self.stamps: a(f's_mov_b32 s{sST+13}, s{sCNT}')
        self.stamp(4)
        for i in range(opt('nup', 7)): a(self.kvload(R, i))
        a(f'ds_max_u32 v{S0+3}, v{S0+1} offset:{F_KMAX}')
        a(f's_lshr_b32 s{sT0}, s{sRB}, 3\ns_cmp_eq_u32 s{sT0}, s{sSW}\ns_cbranch_scc0 L_noxc')
        a(f'v_cmp_ne_u32 vcc, s{sXC}, v{S0+2}\ns_bitcmp1_b32 s{sRB}, 2\ns_cselect_b32 s{sT0}, vcc_hi, vcc_lo\ns_cmp_eq_u32 s{sT0}, 0\ns_cselect_b32 s{sT0}, 1, 0')
        a(f'v_mov_b32 v{S0+2}, s{sT0}\nds_write_b32 v{S0+3}, v{S0+2} offset:{F_XC}')
        a('L_noxc:')
        self.wait(F_QP, sleep=0)
        a(f'ds_read_b128 {q4(Q)}, v{vQA} offset:{L_QF}')
        self.stamp(5)
        self.attn_fast(R)
        a('L_attn_epi:')
        if 'phs' in OPT:
            for p in range(8): a(f's_mov_b32 s{sST+2*p}, s{16+4*p}\ns_mov_b32 s{sST+2*p+1}, s{17+4*p}')
            a(f's_lshl_b32 s{sT0}, s2, 3\ns_add_u32 s{sT0}, s{sT0}, s{sWV}\ns_lshl_b32 s{sT0}, s{sT0}, 6\ns_add_u32 s{sT0}, s{sT0}, {WS_DBG + 0x100000:#x}')
            a('s_mov_b64 exec, 1')
            for i in range(16):
                a(f'v_mov_b32 v{vT}, s{sST+i}\nbuffer_store_dword v{vT}, off, s[{SWS}:{SWS+3}], s{sT0} offset:{4*i}')
            a('s_waitcnt vmcnt(0)\ns_endpgm')
        self.oproj_pre()
        self.stamp(6)
        self.publish(R, 0x8000, F_AY)
        if 'nosvc' in OPT or 'stop' in OPT: self.end()
        else: self.oproj()
        a('L_check6:')
        self.wait(F_S[9], sleep=1)
        a('s_branch L_checked6')
        a('L_check1:')
        self.wait(F_S[0], sleep=1)
        a(f'v_cmp_ne_u32 vcc, 1, v{vT}\ns_cbranch_vccz L_checked1')
        self.wait(F_S[9], sleep=1)
        a(f's_mov_b32 s{sXC}, 0')
        vL4, vW = vA8, vA16
        self.sig(F_SL[0]); self.wait(F_SL[0])
        a(f'v_lshrrev_b32 v{vL4}, 2, v{vL16}\ns_mov_b32 s{sT2}, 0\ns_lshl_b32 s{sT3}, s{sWV}, 11\nv_add_u32 v{vW}, s{sT3}, v{vL4}')
        a('L_slow_pre:')
        a(f's_lshl_b32 s{sT0}, s{sT2}, 10\nv_add_u32 v{vT}, s{sT0}, v{vL16}\nds_read_b128 {q4(Q)}, v{vT} offset:{L_QF}\ns_waitcnt lgkmcnt(0)')
        a(f'v_mov_b32 v{S0+20}, 0xff800000')
        for i in range(16):
            a(f'v_mfma_f32_32x32x16_bf16 {t16(S0)}, {q4(K+4*i)}, {q4(Q)}, 0')
            for r in range(0, 16, 2): a(f'v_max3_f32 v{S0+20}, v{S0+r}, v{S0+r+1}, v{S0+20}')
        a(f'v_mov_b32 v{S0+21}, v{S0+20}\nv_permlane32_swap_b32 v{S0+20}, v{S0+21}\nv_max_f32 v{S0+20}, v{S0+20}, v{S0+21}')
        a(f'ds_write_b32 v{vW}, v{S0+20} offset:{L_ACCD}\nv_add_u32 v{vW}, 256, v{vW}')
        a(f's_add_u32 s{sT2}, s{sT2}, 1\ns_cmp_lt_u32 s{sT2}, 8\ns_cbranch_scc1 L_slow_pre')
        self.sig(F_SL[1]); self.wait(F_SL[1])
        a(f's_lshl_b32 s{sT0}, s{sWV}, 8\nv_add_u32 v{vW}, s{sT0}, v{vL4}')
        for t in range(2):
            for w in range(4): a(f'ds_read_b32 v{S0+4*t+w}, v{vW} offset:{L_ACCD + 2048*w + 1024*t}')
        a(f'v_and_b32 v{vW}, 0x7c, v{vL4}\ns_lshl_b32 s{sT0}, s{sWV}, 7\ns_add_u32 s{sT0}, s{sT0}, {L_MX}\nv_add_u32 v{vW}, s{sT0}, v{vW}')
        a('s_waitcnt lgkmcnt(0)')
        for t in range(2):
            b = S0 + 4 * t
            a(f'v_max3_f32 v{b}, v{b}, v{b+1}, v{b+2}\nv_max_f32 v{b}, v{b}, v{b+3}\nds_write_b32 v{vW}, v{b} offset:{512*t}')
        init_state(16)
        a(f'v_mov_b32 v{S0}, 0\nv_mov_b32 v{S0+1}, 17\nds_write_b64 v{vA8}, {pr(S0)} offset:{L_ACCF+2048}')
        a(f'ds_write_b128 v{vA16}, {q4(O)} offset:{L_ACCD+8192}\nds_write_b128 v{vA16}, {q4(O)} offset:{L_ACCD+8192+1024}')
        self.sig(F_SL[2]); self.wait(F_SL[2])
        a(f'ds_read_b128 {q4(Q)}, v{vQA} offset:{L_QF}')
        self.attn_loop(R, True)
        a('s_branch L_attn_epi')

    def kvload(self, R, i):
        K, V = R['K'], R['V']
        t = ''
        if i % 2 == 0 and i > 0: t += f's_xor_b32 s{sT4}, s{sT4}, {((i // 2) ^ (i // 2 - 1)) << 12:#x}\n'
        o = (i % 2) * 2048
        t += f'buffer_load_dwordx4 {q4(K+4*i)}, v{vL16}, s[{SWS}:{SWS+3}], s{sT4} offen offset:{o} sc1\n'
        if self.masked(i):
            t += f's_mov_b64 exec, s[{sM0}:{sM0+1}]\nbuffer_load_dwordx4 {q4(V+8*i)}, v{vL16}, s[{SWS}:{SWS+3}], s{sT4} offen offset:{o+1024} sc1\n'
            t += f'buffer_load_dwordx4 {q4(V+8*i+4)}, v{vL16}, s[{SWS}:{SWS+3}], s{sT4} offen offset:{o+1024+256} sc1\ns_mov_b64 exec, -1'
        else:
            t += f'buffer_load_dwordx4 {q4(V+8*i)}, v{vL16}, s[{SWS}:{SWS+3}], s{sT4} offen offset:{o+1024} sc1'
        return t

    def publish(self, R, off, flag):
        a = self.a; O = R['O']
        a(f'v_rcp_f32 v{O+8}, v{O+8}\ns_add_u32 s{sT0}, s{sOW}, {off}')
        for r in range(0, 8, 2): a(f'v_pk_mul_f32 {pr(O+r)}, {pr(O+8)}, {pr(O+r)} op_sel:[0,0] op_sel_hi:[0,1]')
        for r in range(4): a(f'v_cvt_pk_bf16_f32 v{O+r}, v{O+2*r}, v{O+2*r+1}')
        self.xstore([f'buffer_store_dwordx4 {q4(O)}, v{vL16}, s[{SWS}:{SWS+3}], s{sT0} offen'])

    def attn_fast(self, R):
        a = self.a
        K, V, S0, O, Q = R['K'], R['V'], R['S0'], R['O'], R['Q']
        vIDX, vA16, vA8, vQA, vL8 = R['vIDX'], R['vA16'], R['vA8'], R['vQA'], R['vL8']
        NUP = opt('nup', 7)
        sK = [[50, 51, 80], [sT1, sT2, sT3], [sT5, sPH, sTJ]]
        for k in range(1, 4):
            a(f's_sub_u32 s{sT0}, s{sSW}, {k}\ns_and_b32 s{sT0}, s{sT0}, 3\ns_lshl_b32 s{sK[k-1][0]}, s{sT0}, 9\ns_lshl_b32 s{sK[k-1][1]}, s{sT0}, 10\ns_lshl_b32 s{sK[k-1][2]}, s{sT0}, 11')
        def Sb(i): return S0 + 16 * (i % 2)
        def E(i, r): return f'v_exp_f32 v{Sb(i)+r}, v{Sb(i)+r}'
        def QK(i): return f'v_mfma_f32_32x32x16_bf16 {t16(Sb(i))}, {q4(K+4*(i%16))}, {q4(Q)}, 0'
        def PV(i, h): return f'v_smfmac_f32_32x32x32_bf16 {t16(O)}, {q4(V+8*(i%16)+4*h)}, v[{Sb(i)+8*h}:{Sb(i)+8*h+7}], v{vIDX}'
        def rd(st): return [f'ds_read_b64 {pr(O+8)}, v{vA8} offset:{L_ACCF+2048*st}', f'ds_read_b128 {q4(O)}, v{vA16} offset:{L_ACCD+8192*st}', f'ds_read_b128 {q4(O+4)}, v{vA16} offset:{L_ACCD+8192*st+1024}']
        def wr(st): return [f'ds_write_b128 v{vA16}, {q4(O)} offset:{L_ACCD+8192*st}', f'ds_write_b128 v{vA16}, {q4(O+4)} offset:{L_ACCD+8192*st+1024}', f'ds_write_b64 v{vA8}, {pr(O+8)} offset:{L_ACCF+2048*st}']
        nl = lambda i: 3 if self.masked(i) else 2
        def plain(p, i):
            e = [E(i, r) for r in range(16)]
            w = []; sw = []; ld = []
            if p == 0:
                KR = opt('kr', 2)
                issued = sum(nl(t) for t in range(min(16, KR * i + NUP)))
                VW = opt('vw', 2)
                if i % VW == 0 or i < 2:
                    last = i if i < 2 else min(15, i + VW - 1)
                    needed = sum(nl(t) for t in range(last + 1)) + (1 if last < 15 else 0)
                    w = [f's_waitcnt vmcnt({issued - needed})']
                if not self.masked(i): sw = [f'v_permlane16_swap_b32 v{V+8*i+r}, v{V+8*i+4+r}' for r in range(4)]
                for t in range(KR * i + NUP, min(16, KR * (i + 1) + NUP)):
                    ld += [self.kvload(R, t)]
                    if t == 15: ld += [f'ds_write_b32 v{vS}, v{vONE} offset:{F_A1}']
            qk = [QK(i + 1)]
            if i == 15:
                if p < 7: w += ['s_waitcnt lgkmcnt(0)']
                else: qk = []
            if i == 14 and p < 7:
                if p % 2 == 1: ld += [f'v_add_u32 v{vQA}, s{sK[p//2][1]}, v{vL16}']
                ld += [f'ds_read_b128 {q4(Q)}, v{vQA} offset:{L_QF + 4096*((p+1)%2)}']
                if p in (1, 6): ld += [f'ds_read_b32 v{vT}, v{vF} offset:{F_S[0] if p == 1 else F_S[9]}']
                if p == 6: ld += [f'ds_read_b32 v{vEP}, v{vF} offset:{F_XC}']
            if i == 15 and p in (1, 6):
                sw = [f'v_cmp_ne_u32 vcc, 1, v{vT}'] + ([f'v_readfirstlane_b32 s{sXC}, v{vEP}'] if p == 6 else [])
                ld = [f's_cbranch_vccnz L_check{p}', f'L_checked{p}:']
            seq = e[0:2] + ([] if (p == 0 and i == 0) else [PV(i - 1, 1)]) + e[2:5] + w + qk + sw + e[5:7] + ld + e[7:11] + [PV(i, 0)] + e[11:16]
            for x in seq: a(x)
        a(f's_setprio {opt("aprio", 1)}')
        a(f's_waitcnt vmcnt({sum(nl(t) for t in range(NUP)) - 1}) lgkmcnt(0)')
        a(QK(0))
        NW = opt('nw', 5)
        for p in range(8):
            if p == 0:
                plain(0, 0); plain(0, 1)
            else:
                e = [E(0, r) for r in range(16)]
                for x in e[0:2] + [PV(15, 1)] + e[2:5] + [QK(1)] + e[5:8]: a(x)
                so, si = (p - 1) % 2, p % 2
                if p < 7:
                    for x in [wr(so)[0], f'v_mov_b32 v{O+9}, {p+1}', wr(so)[1], wr(so)[2]]: a(x)
                else:
                    self.publish(R, 0, F_AX)
                if p % 2 == 0: a(f'v_add_u32 v{vA8}, s{sK[p//2-1][0]}, v{vL8}\nv_add_u32 v{vA16}, s{sK[p//2-1][2]}, v{vL16}')
                if p == 1:
                    for r in range(0, 8, 2): a(f'v_pk_mul_f32 {pr(O+r)}, {pr(O+10)}, {pr(O+10)}')
                    a(f'v_mov_b32 v{O+8}, 0')
                    for x in e[8:11] + [PV(0, 0)] + e[11:16]: a(x)
                    plain(p, 1)
                else:
                    for x in rd(si) + e[8:16]: a(x)
                    e = [E(1, r) for r in range(16)]
                    for x in e[0:NW]: a(x)
                    a(f's_waitcnt lgkmcnt(0)\nv_cmp_gt_u32 vcc, {p}, v{O+9}')
                    a(e[NW])
                    a(f's_cbranch_vccnz L_hw{p}')
                    a(f'L_hd{p}:')
                    n = NW + 1
                    for x in [PV(0, 0)] + e[n:n+3] + [PV(0, 1)] + e[n+3:n+6] + [QK(2)] + e[n+6:n+9] + [PV(1, 0)] + e[n+9:16]: a(x)
            for i in range(2, 16):
                plain(p, i)
            if p == 0: self.stamp(7)
            if 'phs' in OPT: a(f's_memtime s[98:99]\ns_memrealtime s[{16+4*p}:{17+4*p}]\ns_waitcnt lgkmcnt(0)\ns_mov_b32 s{17+4*p}, s98')
        a('s_nop 0')
        a(PV(15, 1))
        a(f's_branch L_attn_epi')
        for p in range(2, 8):
            a(f'L_hw{p}:')
            a(f's_mov_b32 s{sCNT}, {SPIN}')
            a(f'L_hl{p}:')
            a(f's_sleep 1')
            for x in rd(p % 2): a(x)
            a(f's_waitcnt lgkmcnt(0)\nv_cmp_gt_u32 vcc, {p}, v{O+9}\ns_cbranch_vccz L_hd{p}\ns_sub_u32 s{sCNT}, s{sCNT}, 1\ns_cbranch_scc0 L_hl{p}\ns_branch L_hd{p}')

    def attn_loop(self, R, slow):
        a = self.a
        K, V, S0, O, Q = R['K'], R['V'], R['S0'], R['O'], R['Q']
        vIDX, vA16, vA8, vQA, vL8, vM = R['vIDX'], R['vA16'], R['vA8'], R['vQA'], R['vL8'], R['vM']
        sf = '_s' if slow else '_f'
        PH0 = 16 if slow else 0
        NUP = opt('nup', 6)
        def Sb(i): return S0 + 16 * (i % 2)
        def E(i, r):
            s = Sb(i) + r
            return (f'v_sub_f32 v{s}, v{s}, v{vM}\n' if slow else '') + f'v_exp_f32 v{s}, v{s}'
        def QK(i): return f'v_mfma_f32_32x32x16_bf16 {t16(Sb(i))}, {q4(K+4*(i%16))}, {q4(Q)}, 0'
        def PV(i, h): return f'v_smfmac_f32_32x32x32_bf16 {t16(O)}, {q4(V+8*(i%16)+4*h)}, v[{Sb(i)+8*h}:{Sb(i)+8*h+7}], v{vIDX}'
        rd = [f'ds_read_b64 {pr(O+8)}, v{vA8} offset:{L_ACCF}', f'ds_read_b128 {q4(O)}, v{vA16} offset:{L_ACCD}', f'ds_read_b128 {q4(O+4)}, v{vA16} offset:{L_ACCD+1024}']
        wr = [f'ds_write_b128 v{vA16}, {q4(O)} offset:{L_ACCD}', f'ds_write_b128 v{vA16}, {q4(O+4)} offset:{L_ACCD+1024}', f'ds_write_b64 v{vA8}, {pr(O+8)} offset:{L_ACCF}']
        def getm():
            if slow:
                a(f'v_lshrrev_b32 v{vT}, 2, v{vL16}\nv_and_b32 v{vT}, 0x7c, v{vT}\ns_lshl_b32 s{sT0}, s{sTJ}, 7\ns_add_u32 s{sT0}, s{sT0}, {L_MX}\nv_add_u32 v{vT}, s{sT0}, v{vT}')
                a(f'ds_read_b32 v{vM}, v{vT}\ns_waitcnt lgkmcnt(0)')
        nl = lambda i: 3 if self.masked(i) else 2
        def plain(i, ph0=False):
            e = [E(i, r) for r in range(16)]
            w = []; sw = []; ld = []
            if ph0 and not slow:
                issued = sum(nl(t) for t in range(min(16, i + NUP)))
                needed = sum(nl(t) for t in range(i + 1)) + (1 if i < 15 else 0)
                w = [f's_waitcnt vmcnt({issued - needed})']
                if not self.masked(i): sw = [f'v_permlane16_swap_b32 v{V+8*i+r}, v{V+8*i+4+r}' for r in range(4)]
                if i + NUP < 16: ld = [self.kvload(R, i + NUP)]
                if i + NUP == 15: ld += [f'ds_write_b32 v{vS}, v{vONE} offset:{F_A1}']
            if i == 15: w += ['s_waitcnt lgkmcnt(0)']
            seq = e[0:2] + ([] if (ph0 and i == 0) else [PV(i - 1, 1)]) + e[2:5] + w + [QK(i + 1)] + sw
            if i == 14:
                seq += [f's_add_u32 s{sT1}, s{sPH}, 1\ns_lshr_b32 s{sT2}, s{sT1}, 1\ns_sub_u32 s{sT2}, s{sSW}, s{sT2}', e[5],
                        f's_and_b32 s{sT2}, s{sT2}, 3\ns_and_b32 s{sT1}, s{sT1}, 1\ns_lshl_b32 s{sT1}, s{sT1}, 2', e[6],
                        f's_add_u32 s{sT2}, s{sT2}, s{sT1}\ns_lshl_b32 s{sT0}, s{sT2}, 10', e[7], f'v_add_u32 v{vQA}, s{sT0}, v{vL16}', e[8],
                        f'ds_read_b128 {q4(Q)}, v{vQA} offset:{L_QF}'] + e[9:11]
            else:
                seq += e[5:11]
            seq += [PV(i, 0)] + e[11:13] + ld + e[13:16]
            for x in seq: a(x)
        a(f's_setprio {opt("aprio", 1)}')
        getm()
        a(f's_waitcnt vmcnt({sum(nl(t) for t in range(NUP)) - 1}) lgkmcnt(0)')
        a(QK(0))
        if slow:
            plain(0, True); plain(1)
            a(f's_branch L_mid{sf}')
        else:
            for i in range(16): plain(i, True)
            self.stamp(7)
        a('.p2align 6')
        a(f'L_loop{sf}:')
        a(f's_add_u32 s{sPH}, s{sPH}, 1\ns_mov_b32 s{sTJ}, s{sT2}')
        getm()
        e = [E(0, r) for r in range(16)]
        for x in e[0:2] + [PV(15, 1), e[2], f's_add_u32 s{sT1}, s{sPH}, 1', e[3], f's_lshl_b32 s{sT3}, s{sTJ}, 9', e[4], QK(1), f's_lshl_b32 s{sT4}, s{sTJ}, 11', e[5], e[6],
                           f's_cmp_eq_u32 s{sPH}, {PH0 + 7}', e[7], f's_cbranch_scc1 L_finx{sf}',
                           wr[0], f'v_mov_b32 v{O+9}, s{sT1}', e[8], wr[1], e[9], wr[2]]: a(x)
        a(f'L_finxd{sf}:')
        for x in [f'v_add_u32 v{vA8}, s{sT3}, v{vL8}', f'v_add_u32 v{vA16}, s{sT4}, v{vL16}', rd[0], e[10], rd[1], e[11], rd[2]] + e[12:16]: a(x)
        e0 = e
        e = [E(1, r) for r in range(16)]
        NW = opt('nw', 6)
        for x in e[0:NW]: a(x)
        a(f's_waitcnt lgkmcnt(0)\nv_cmp_gt_u32 vcc, s{sPH}, v{O+9}\ns_cbranch_vccnz L_hw{sf}')
        a(f'L_hd{sf}:')
        for x in [PV(0, 0)] + e[NW:NW+3] + [PV(0, 1)] + e[NW+3:NW+6] + [QK(2)] + e[NW+6:NW+9] + [PV(1, 0)] + e[NW+9:16]: a(x)
        a(f'L_mid{sf}:')
        for i in range(2, 16):
            plain(i)
        a(f's_cmp_lt_u32 s{sPH}, {PH0 + 7}\ns_cbranch_scc1 L_loop{sf}')
        a(PV(15, 1))
        a(f's_nop 10\ns_branch L_end{sf}')
        a(f'L_finx{sf}:')
        a(e0[8]); a(e0[9])
        self.publish(R, 0, F_AX)
        a(f's_branch L_finxd{sf}')
        a(f'L_hw{sf}:')
        a(f's_mov_b32 s{sCNT}, {SPIN}')
        a(f'L_hl{sf}:')
        a(f's_sleep 1')
        for x in rd: a(x)
        a(f's_waitcnt lgkmcnt(0)\nv_cmp_gt_u32 vcc, s{sPH}, v{O+9}\ns_cbranch_vccz L_hd{sf}\ns_sub_u32 s{sCNT}, s{sCNT}, 1\ns_cbranch_scc0 L_hl{sf}\ns_branch L_hd{sf}')
        a(f'L_end{sf}:')

    def oproj_pre(self):
        a = self.a
        vWO, vG, vH = 240, 241, 242
        sOB, sKH = sT4, sT1
        a(f's_setprio 3\nds_read_b32 v{vT}, v{vF} offset:{F_WO}')
        a(f's_lshr_b32 s{sKH}, s{sSW}, 1\ns_lshl_b32 s{sOB}, s{sRB}, 16\ns_lshl_b32 s{sT0}, s{sKH}, 14\ns_add_u32 s{sOB}, s{sOB}, s{sT0}\ns_add_u32 s{sOB}, s{sOB}, {WS_OBUF:#x}')
        self.tr_parts(vG, vH, vWO)

    def oproj(self):
        a = self.a
        vWO, vG, vH, vOA, vXW, vXR, vP = range(240, 247)
        WF, OF, OA = 0, 64, [192, 208]
        sPEND, sOB, sKH, sOUT = sT3, sT4, sT1, sT5
        a(f's_waitcnt lgkmcnt(0)\nv_cmp_eq_u32 vcc, 0, v{vT}\ns_cbranch_vccz L_wook')
        self.wait(F_WO, sleep=1)
        a('L_wook:')
        self.stamp(11)
        def loads(q):
            a(f's_add_u32 s{sT0}, s{sOB}, {4096*(q%4) + 0x8000*(q//4)}')
            for n in range(4): a(f'buffer_load_dwordx4 {q4(OF+16*q+4*n)}, v{vL16}, s[{SWS}:{SWS+3}], s{sT0} offen offset:{1024*n} sc1')
        def proc(q, lab):
            b = OF + 16 * q
            a(f'v_max3_u32 v{vT}, v{b}, v{b+1}, v{b+2}')
            for r in range(3, 15, 2): a(f'v_max3_u32 v{vT}, v{b+r}, v{b+r+1}, v{vT}')
            a(f'v_max_u32 v{vT}, v{b+15}, v{vT}\nv_cmp_eq_u32 vcc, -1, v{vT}\ns_cbranch_vccnz {lab}')
            for n in range(4):
                a(f'v_mfma_f32_32x32x16_bf16 {t16(OA[q//4])}, {q4(b+4*n)}, {q4(WF+16*(q%4)+4*n)}, {t16(OA[q//4])}')
            a(f's_bitset0_b32 s{sPEND}, {q}')
            a(f'{lab}:')
        loads(0); loads(1)
        a(f'v_lshrrev_b32 v{vH}, 5, v{vLN}\nv_lshl_add_u32 v{vWO}, v{vH}, 9, v{vWO}\ns_lshl_b32 s{sT0}, s{sKH}, 15\ns_add_u32 s{sT0}, s{sT0}, {L_A1}\nv_add_u32 v{vWO}, s{sT0}, v{vWO}')
        for st in range(16):
            d = WF + 4 * st
            a(f'ds_read_b64_tr_b16 {pr(d)}, v{vWO} offset:{2048*st}\nds_read_b64_tr_b16 {pr(d+2)}, v{vWO} offset:{2048*st+1024}')
            if st == 7: loads(2)
        loads(3)
        for r in range(32): a(f'v_mov_b32 v{OA[0]+r}, 0')
        a(f's_mov_b32 s{sPEND}, 0xff\ns_mov_b32 s{sCNT}, 50000')
        for q in range(4):
            loads(4 + q)
            a(f's_waitcnt vmcnt(16) lgkmcnt(0)')
            proc(q, f'L_o1_{q}')
        self.stamp(12)
        a(f'v_and_b32 v{vOA}, 31, v{vLN}\nv_lshlrev_b32 v{vOA}, 2, v{vOA}\nv_lshl_add_u32 v{vOA}, v{vH}, 14, v{vOA}')
        a(f's_and_b32 s{sT0}, s{sOW}, 0xc00\ns_lshl_b32 s{sT0}, s{sT0}, 1\nv_add_u32 v{vXW}, s{sT0}, v{vL16}\ns_xor_b32 s{sT0}, s{sT0}, 0x1000\nv_add_u32 v{vXR}, s{sT0}, v{vL16}\nv_xor_b32 v{vP}, 8, v{vS}')
        self.srd(SOUT, P(14), 2048 * 4096)
        a(f's_lshl_b32 s{sOUT}, s{sRB}, 18\ns_lshl_b32 s{sT0}, s{sCG}, 1\ns_and_b32 s{sT2}, s{sWV}, 1\ns_add_u32 s{sT0}, s{sT0}, s{sT2}\ns_lshl_b32 s{sT0}, s{sT0}, 7\ns_add_u32 s{sOUT}, s{sOUT}, s{sT0}\ns_lshl_b32 s{sT0}, s{sKH}, 17\ns_add_u32 s{sOUT}, s{sOUT}, s{sT0}')
        for q in range(4, 8):
            a(f's_waitcnt vmcnt({28 - 4*q})')
            proc(q, f'L_o1_{q}')
        a('L_oretry:')
        a(f's_cmp_eq_u32 s{sPEND}, 0\ns_cbranch_scc1 L_odone\ns_sub_u32 s{sCNT}, s{sCNT}, 1\ns_cbranch_scc1 L_odone')
        for q in range(8):
            a(f's_bitcmp0_b32 s{sPEND}, {q}\ns_cbranch_scc1 L_ol_{q}')
            loads(q)
            a(f'L_ol_{q}:')
        a('s_waitcnt vmcnt(0)')
        for q in range(8):
            a(f's_bitcmp0_b32 s{sPEND}, {q}\ns_cbranch_scc1 L_o2_{q}')
            proc(q, f'L_o2_{q}')
        a('s_branch L_oretry')
        a('L_odone:')
        if self.stamps: a(f's_mov_b32 s{sST+14}, s{sCNT}')
        self.stamp(1)
        fl = {0: '', 1: ' sc1', 2: ' nt', 3: ' sc0 sc1', 4: ' sc1 nt', 5: ' sc0 nt', 6: ' sc0 sc1 nt'}[opt('ofl', 2)]
        a(f's_nop 7\ns_cmp_eq_u32 s{sKH}, 0\ns_cbranch_scc0 L_ohi')
        for kh in range(2):
            keep, send = OA[kh], OA[1 - kh]
            for q in range(4): a(f'ds_write_b128 v{vXW}, {q4(send+4*q)} offset:{L_ACCD + 8192*(q//2) + 1024*(q%2)}')
            self.sig(F_OX)
            self.wait(F_OX, sleep=0, va=vP)
            for q in range(4): a(f'ds_read_b128 {q4(4*q)}, v{vXR} offset:{L_ACCD + 8192*(q//2) + 1024*(q%2)}')
            for r in range(16):
                if r % 4 == 0: a(f's_waitcnt lgkmcnt({3 - r//4})')
                a(f'v_add_f32 v{r}, v{r}, v{keep+r}\ns_add_u32 s{sT0}, s{sOUT}, {((r % 4) + 8 * (r // 4)) * 4096}')
                a(f'buffer_store_dword v{r}, v{vOA}, s[{SOUT}:{SOUT+3}], s{sT0} offen{fl}')
            self.end()
            if kh == 0: a('L_ohi:')

    def kvproj(self):
        a = self.a
        vXA, vWA, vU, vO, vZ, D = 176, 177, 178, 179, 180, 184
        a(f's_lshr_b32 s{sT5}, s{sCG}, 1')
        a(f'v_and_b32 v{vT}, 15, v{vLN}\ns_lshl_b32 s{sT0}, s{sT5}, 4\nv_add_u32 v{vO}, s{sT0}, v{vT}\nv_mul_u32_u24 v{vXA}, 1040, v{vO}')
        a(f'v_lshrrev_b32 v{vU}, 4, v{vLN}\nv_lshl_add_u32 v{vXA}, v{vU}, 4, v{vXA}\nv_add_u32 v{vXA}, {L_A1}, v{vXA}')
        a(f'v_lshlrev_b32 v{vWA}, 3, v{vT}\nv_lshl_add_u32 v{vWA}, v{vU}, 8, v{vWA}\nv_add_u32 v{vWA}, {L_WKV}, v{vWA}')
        a(f's_and_b32 s{sT1}, s{sCG}, 1\ns_xor_b32 s{sT2}, s{sT1}, 1')
        a(f'v_lshrrev_b32 v{vO}, s{sT1}, v{vU}\nv_and_b32 v{vO}, 1, v{vO}\nv_lshlrev_b32 v{vO}, 9, v{vO}\nv_lshl_add_u32 v{vO}, v{vT}, 4, v{vO}')
        a(f'v_lshrrev_b32 v{vT}, s{sT2}, v{vU}\nv_and_b32 v{vT}, 1, v{vT}\nv_lshl_add_u32 v{vO}, v{vT}, 3, v{vO}')
        a(f's_lshl_b32 s{sT0}, s{sRB}, 1\ns_lshr_b32 s{sT2}, s{sT5}, 1\ns_add_u32 s{sT0}, s{sT0}, s{sT2}\ns_lshl_b32 s{sT0}, s{sT0}, 1\ns_add_u32 s{sT0}, s{sT0}, s{sT1}\ns_lshl_b32 s{sT0}, s{sT0}, 10')
        a(f's_and_b32 s{sT2}, s{sT5}, 1\ns_lshl_b32 s{sT2}, s{sT2}, 8\ns_add_u32 s{sT0}, s{sT0}, s{sT2}\ns_add_u32 s{sT3}, s{sT0}, {WS_KVIMG:#x}')
        a(f's_lshl_b32 s{sT4}, s{sRB}, 3\ns_add_u32 s{sT4}, s{sT4}, s{sCG}\ns_lshl_b32 s{sT4}, s{sT4}, {opt("fs", 7)}\ns_add_u32 s{sT4}, s{sT4}, {WS_KVFLAG:#x}')
        a(f'v_mov_b32 v{vZ}, 0')
        self.wait(F_L1, sleep=0)
        self.stamp(12)
        def rd(s):
            b = 128 + 8 * (s % 6)
            a(f'ds_read_b128 {q4(b)}, v{vXA} offset:{64*s}')
            a(f'ds_read_b64_tr_b16 {pr(b+4)}, v{vWA} offset:{1024*s}')
            a(f'ds_read_b64_tr_b16 {pr(b+6)}, v{vWA} offset:{1024*s+128}')
        for s in range(4): rd(s)
        a(f's_bitcmp1_b32 s{sCG}, 0\ns_cbranch_scc1 L_kv_v')
        def chain(kind):
            for s in range(16):
                if s + 4 < 16: rd(s + 4)
                a(f's_waitcnt lgkmcnt({3 * min(4, 15 - s)})')
                b = 128 + 8 * (s % 6)
                A, B = (q4(b + 4), q4(b)) if kind == 'k' else (q4(b), q4(b + 4))
                a(f'v_mfma_f32_16x16x32_bf16 {q4(D)}, {A}, {B}, {"0" if s == 0 else q4(D)}')
            a(f'v_cvt_pk_bf16_f32 v188, v{D}, v{D+1}\nv_cvt_pk_bf16_f32 v189, v{D+2}, v{D+3}')
            a(f'buffer_store_dwordx2 v[188:189], v{vO}, s[{SWS}:{SWS+3}], s{sT3} offen sc1')
        chain('k')
        a(f'v_mul_f32 v190, v{D}, v{D}\nv_fmac_f32 v190, v{D+1}, v{D+1}\nv_fmac_f32 v190, v{D+2}, v{D+2}\nv_fmac_f32 v190, v{D+3}, v{D+3}')
        a('v_mov_b32 v191, v190\nv_permlane32_swap_b32 v190, v191\nv_add_f32 v190, v190, v191')
        a('v_mov_b32 v191, v190\nv_permlane16_swap_b32 v190, v191\nv_add_f32 v190, v190, v191')
        a('s_mov_b64 exec, 0xffff\ns_branch L_kv_fin')
        a('L_kv_v:')
        chain('v')
        a(f'v_max3_f32 v190, |v{D}|, |v{D+1}|, |v{D+2}|\nv_max_f32 v190, |v{D+3}|, v190')
        a(f's_mov_b32 s{sT1}, {f2u(2.0**50):#x}\nv_cmp_lt_f32 vcc, s{sT1}, v190\nv_mov_b32 v190, 0x7f800000\ns_mov_b64 exec, vcc')
        a('L_kv_fin:')
        a(f'ds_max_u32 v{vZ}, v190 offset:{F_KST}\ns_mov_b64 exec, -1\nds_read_b32 v183, v{vZ} offset:{F_KST}')
        a('s_waitcnt vmcnt(1)')
        self.get_tag()
        a(f's_getreg_b32 s{sT0}, hwreg(HW_REG_XCC_ID)\nv_mov_b32 v182, s{sTAG}\nv_mov_b32 v184, s{sT0}')
        self.stamp(13)

    def service(self):
        a = self.a
        self.cyc = False
        L1, L8, L16, L128, FF, WW, CC = 192, 194, 196, 198, 200, 202, 204
        DG = 206
        vXD, vXR, vXR2, vBD, vHA, vHB, vSX, vTW, vTR, vEA, vXS, vOA, vWI, vP8, vCK, vCS, vCK2, vCS2, vHF, vYW, vE0, vPF, vTG, vYR = range(214, 238)
        PRM = 238
        vC31, vHI, vU, vWA, vXA, vQ = 242, 243, 244, 245, 246, 247
        a('L_service:')
        a(f'v_mov_b32 v0, 0\nv_mov_b32 v1, 0\nv_mov_b32 v2, 0\nv_mov_b32 v3, 0')
        a(f's_lshl_b32 s{sT0}, s{sSW}, 10\nv_add_u32 v{vT}, s{sT0}, v{vL16}\nds_write_b128 v{vT}, v[0:3] offset:{L_ACCF}')
        a(f'v_lshlrev_b32 v{vT}, 3, v{vLN}\nds_write_b64 v{vT}, v[0:1]')
        a(f'v_and_b32 v{vC31}, 31, v{vLN}\nv_lshlrev_b32 v{vU}, 1, v{vC31}\nv_lshrrev_b32 v{vHI}, 5, v{vLN}')
        a('s_waitcnt lgkmcnt(0)')
        self.stamp(0)
        a('s_barrier\ns_setprio 3')
        if opt('cpf', 1):
            a(f's_cmp_lg_u32 s{sSW}, 1\ns_cbranch_scc1 L_nocpf')
            a(f's_getpc_b64 s[{sM0}:{sM0+1}]')
            a('L_pc:')
            a(f's_sub_u32 s{sM0}, s{sM0}, L_pc-{NAME}_kernel\ns_subb_u32 s{sM0+1}, s{sM0+1}, 0')
            a(f's_lshr_b32 s{sT0}, s2, 3\ns_mul_i32 s{sT0}, s{sT0}, 1536\ns_min_u32 s{sT0}, s{sT0}, L_exit-{NAME}_kernel-1536\ns_add_u32 s{sM0}, s{sM0}, s{sT0}\ns_addc_u32 s{sM0+1}, s{sM0+1}, 0')
            for k in range(24): a(f's_load_dword s{SOUT + k % 4}, s[{sM0}:{sM0+1}], {64*k}')
            a('L_nocpf:')
        self.srd(SWS, P(16), WS_SIZE)
        a(f'buffer_load_dword v{vEP}, off, s[{SWS}:{SWS+3}], 0 sc1')
        a(f's_lshl_b32 s{sT0}, s{sPB}, 6')
        for k, p in enumerate((6, 7, 12)):
            self.srd(SA, P(p), 1024)
            a(f'buffer_load_ushort v{PRM+k}, v{vU}, s[{SA}:{SA+3}], s{sT0} offen')
        self.srd(SA, P(13), 1024)
        a(f's_lshl_b32 s{sT0}, s{sCG}, 7\ns_and_b32 s{sT1}, s{sWV}, 1\ns_lshl_b32 s{sT1}, s{sT1}, 6\ns_add_u32 s{sT0}, s{sT0}, s{sT1}')
        a(f'buffer_load_ushort v{PRM+3}, v{vU}, s[{SA}:{SA+3}], s{sT0} offen')
        self.common_regs()
        self.tr_parts(vTR, vU, vWA)
        a(f'v_lshl_add_u32 v{vTR}, v{vU}, 6, v{vTR}\nv_lshl_add_u32 v{vTR}, v{vHI}, 9, v{vTR}')
        a(f'v_lshl_add_u32 v{vWA}, v{vHI}, 10, v{vWA}\nv_add_u32 v{vWA}, {L_A2}, v{vWA}')
        a(f'v_mul_u32_u24 v{vCK}, 1040, v{vC31}\nv_lshl_add_u32 v{vCK}, v{vHI}, 4, v{vCK}\nv_add_u32 v{vCK}, {L_A1}, v{vCK}')
        a(f's_lshr_b32 s{sT0}, s{sSW}, 1\ns_mul_i32 s{sT0}, s{sT0}, {32*1040}\nv_add_u32 v{vXA}, s{sT0}, v{vCK}')
        a(f's_lshl_b32 s{sT0}, s{sSW}, 11\nv_add_u32 v{vQ}, s{sT0}, v{vL16}')
        a(f's_cmp_lg_u32 s{sSW}, 0\ns_cbranch_scc1 L_nokv')
        self.kvproj()
        a('L_nokv:')
        WT, D = 128, 160
        self.wait(F_L2, sleep=1)
        self.stamp(1)
        a(f's_and_b32 s{sT1}, s{sRB}, 3')
        for st in range(32):
            if st % 8 == 0: a(f's_xor_b32 s{sT0}, s{sT1}, {st//8}\ns_lshl_b32 s{sT0}, s{sT0}, 8\nv_add_u32 v{vU}, s{sT0}, v{vXA}')
            a(f'ds_read_b128 {q4(4*st)}, v{vU} offset:{32*(st%8)}')
        a(f's_cmp_lg_u32 s{sSW}, 0\ns_cbranch_scc1 L_nokvf')
        a('s_waitcnt vmcnt(0)')
        a(f's_mov_b64 exec, {(1 << (1 << (opt("fs", 7) - 4))) - 1:#x}\nbuffer_store_dwordx4 v[182:185], v{vL16}, s[{SWS}:{SWS+3}], s{sT4} offen sc1\ns_mov_b64 exec, -1')
        self.sig(F_KVD, va=vF)
        self.stamp(14)
        a('L_nokvf:')
        def wr(st):
            b = WT + 4 * (st % 8)
            a(f'ds_read_b64_tr_b16 {pr(b)}, v{vWA} offset:{2048*st}\nds_read_b64_tr_b16 {pr(b+2)}, v{vWA} offset:{2048*st+512}')
        for s0, s1, fl in ((0, 16, F_L4), (16, 32, F_L6)):
            self.wait(fl, sleep=0)
            if s0 == 0:
                self.stamp(2)
            for st in range(s0, s0 + 6): wr(st)
            for st in range(s0, s1):
                a(f's_waitcnt lgkmcnt({2 * min(5, s1 - 1 - st)})')
                a(f'v_mfma_f32_32x32x16_bf16 {t16(D)}, {q4(WT + 4*(st%8))}, {q4(4*st)}, {"0" if st == 0 else t16(D)}')
                if st + 6 < s1: wr(st + 6)
        QS = f2u(0.25 * math.log2(math.e))
        a(f'v_mov_b32 v24, {QS:#x}')
        for r in range(8):
            a(f'v_pk_mul_f32 {pr(D+2*r)}, v[24:25], {pr(D+2*r)} op_sel:[0,0] op_sel_hi:[0,1]')
            a(f'v_cvt_pk_bf16_f32 v{16+r}, v{D+2*r}, v{D+2*r+1}')
            if r == 3: a(f'ds_write_b128 v{vQ}, v[16:19] offset:{L_QF}')
        a(f'ds_write_b128 v{vQ}, v[20:23] offset:{L_QF+1024}')
        self.sig(F_QP)
        self.stamp(3)
        a(f'v_mul_f32 v8, v{D}, v{D}\nv_mul_f32 v9, v{D+8}, v{D+8}')
        for r in range(1, 8): a(f'v_fmac_f32 v8, v{D+r}, v{D+r}\nv_fmac_f32 v9, v{D+8+r}, v{D+8+r}')
        a('v_permlane32_swap_b32 v8, v9\nv_add_f32 v8, v8, v9')
        a(f'v_mov_b32 v{vQ}, v8')
        if 'nosvc' in OPT:
            self.sig(F_S[0]); self.sig(F_S[9]); self.end(); return
        sXB, sXL, sTP, sCT = 73, 74, 75, 80
        a(f's_lshl_b32 s{sXB}, s{sTB}, 2\ns_add_u32 s{sXB}, s{sXB}, s{sSW}\ns_lshl_b32 s{sXB}, s{sXB}, 15')
        a(f's_mul_i32 s{sXL}, s{sSW}, {XW}\ns_add_u32 s{sXL}, s{sXL}, {L_A2}')
        a(f's_lshl_b32 s{sTP}, s{sRB}, 1\ns_lshr_b32 s{sT0}, s{sSW}, 1\ns_add_u32 s{sTP}, s{sTP}, s{sT0}')
        a(f's_lshl_b32 s{sCT}, s{sCG}, 1\ns_and_b32 s{sT0}, s{sSW}, 1\ns_add_u32 s{sCT}, s{sCT}, s{sT0}')
        a(f'v_lshlrev_b32 v{vT}, 3, v{vHI}\nv_xor_b32 v{vT}, v{vC31}, v{vT}\nv_lshlrev_b32 v{vT}, 4, v{vT}\nv_lshl_add_u32 v{vXD}, v{vHI}, 13, v{vT}\nv_lshl_add_u32 v{vBD}, v{vHI}, 10, v{vT}')
        def tmap(i):
            r = 4 * (i >> 3) + (i & 3)
            return 16 * ((i >> 2) & 1) + (r >> 1) + 8 * (r & 1)
        def xdma(half, ms=range(16)):
            for m in ms:
                a(f's_xor_b32 s{sT0}, s{sXM}, {m}\ns_mul_i32 s{sT0}, s{sT0}, 1040\ns_add_u32 m0, s{sT0}, s{sXL}\ns_xor_b32 s{sT0}, s{sXG}, {tmap(2*m)*1024 + 512*half}')
                a(f'buffer_load_dwordx4 v{vXD}, s[{SA}:{SA+3}], s{sT0} offen lds')
        sXM, sXG, sHB = 50, 51, 81
        a(f's_and_b32 s{sXM}, s{sPB}, 14\ns_and_b32 s{sT0}, s{sPB}, 2\ns_lshl_b32 s{sT0}, s{sT0}, 3\ns_lshr_b32 s{sT1}, s{sPB}, 2\ns_lshl_b32 s{sT1}, s{sT1}, 1\ns_add_u32 s{sT0}, s{sT0}, s{sT1}\ns_lshl_b32 s{sT0}, s{sT0}, 10')
        a(f's_xor_b32 s{sHB}, s{sPB}, s{sTB}\ns_and_b32 s{sHB}, s{sHB}, 1\ns_lshl_b32 s{sHB}, s{sHB}, 9\ns_add_u32 s{sT0}, s{sT0}, s{sHB}\ns_add_u32 s{sXG}, s{sXB}, s{sT0}')
        self.srd(SA, P(5), 2048 * 1024)
        a(f'v_lshrrev_b32 v{vU}, 1, v{vC31}\nv_mul_u32_u24 v{vU}, 1040, v{vU}\nv_lshl_add_u32 v{vU}, v{vHI}, 4, v{vU}\nv_and_b32 v{vT}, 1, v{vC31}')
        a(f'v_mul_u32_u24 v{vHA}, 640, v{vT}\nv_mul_u32_u24 v{vHB}, 384, v{vT}\nv_add_u32 v{vHA}, v{vHA}, v{vU}\nv_add_u32 v{vHB}, v{vHB}, v{vU}')
        a(f'v_add_u32 v{vXR}, s{sXL}, v{vHA}\nv_add_u32 v{vXR2}, s{sXL}, v{vHB}\nv_add_u32 v{vHA}, {L_A1}, v{vHA}\nv_add_u32 v{vHB}, {L_A1}, v{vHB}')
        a(f'v_lshlrev_b32 v{vSX}, 3, v{vLN}\nv_add_u32 v{vSX}, s{sXL}, v{vSX}')
        a(f'v_lshlrev_b32 v{vP8}, 3, v{vC31}\nv_add_u32 v{vP8}, {L_A2}, v{vP8}')
        a(f'v_lshlrev_b32 v{vTW}, 6, v{vC31}\nv_lshl_add_u32 v{vTW}, v{vHI}, 5, v{vTW}\nv_add_u32 v{vTW}, s{sXL}, v{vTW}\nv_add_u32 v{vTR}, s{sXL}, v{vTR}')
        a(f'v_lshlrev_b32 v{vEA}, 4, v{vC31}\nv_xor_b32 v{vT}, 1, v{vHI}\nv_lshl_add_u32 v{vEA}, v{vT}, 12, v{vEA}')
        a(f'v_lshlrev_b32 v{vXS}, 10, v{vC31}\nv_lshl_add_u32 v{vXS}, v{vHI}, 4, v{vXS}')
        a(f'v_lshlrev_b32 v{vOA}, 2, v{vC31}\nv_lshl_add_u32 v{vOA}, v{vHI}, 14, v{vOA}')
        self.wimg_lane_addr(vWI, vT)
        a(f's_and_b32 s{sT0}, s{sSW}, 1\ns_mul_i32 s{sT1}, s{sT0}, {512 - 32*1040}\ns_add_u32 s{sT1}, s{sT1}, {32*1040}\nv_add_u32 v{vCS}, s{sT1}, v{vCK}')
        a(f's_mul_i32 s{sT1}, s{sT0}, {32*1040 + 512}\nv_add_u32 v{vCK}, s{sT1}, v{vCK}\nv_add_u32 v{vCK2}, {L_A2 - L_A1}, v{vCK}\nv_add_u32 v{vCS2}, {L_A2 - L_A1}, v{vCS}')
        a(f'v_and_b32 v{vHF}, 15, v{vLN}\nv_lshlrev_b32 v{vHF}, 7, v{vHF}\nv_lshlrev_b32 v{vPF}, 6, v{vLN}')
        a(f'v_add_u32 v{vYW}, s{sXL}, v{vL16}\ns_xor_b32 s{sT0}, s{sSW}, 1\ns_mul_i32 s{sT0}, s{sT0}, {XW}\ns_add_u32 s{sT0}, s{sT0}, {L_A2}\nv_add_u32 v{vYR}, s{sT0}, v{vL16}')
        a('s_waitcnt vmcnt(0)')
        self.get_tag()
        a(f'v_mov_b32 v{vTG}, s{sTAG}')
        a(f'v_lshlrev_b32 v0, 16, v{PRM}\nv_lshlrev_b32 v1, 16, v{PRM+1}\nv_lshlrev_b32 v2, 16, v{PRM+2}')
        LOG2E = f2u(math.log2(math.e))
        a(f'v_mul_f32 v2, {LOG2E:#x}, v2\nv_exp_f32 v2, v2\nv_cvt_pk_bf16_f32 v2, v2, v2\nv_lshlrev_b32 v2, 16, v2')
        a(f'v_mul_f32 v4, v2, v0\nv_mul_f32 v5, v2, v1\nv_mul_f32 v4, {LOG2E:#x}, v4\nv_mul_f32 v5, {f2u(-1/(2*math.pi)):#x}, v5')
        def power(d, n):
            a(f'v_mul_f32 v6, {n}, v4\nv_mul_f32 v7, {n}, v5\nv_exp_f32 v6, v6\nv_fract_f32 v7, v7\nv_cos_f32 v8, v7\nv_sin_f32 v9, v7\nv_mul_f32 v{d}, v6, v8\nv_mul_f32 v{d+1}, v6, v9')
        power(L1, '1.0')
        power(L8, f'{f2u(8.0):#x}')
        power(L16, f'{f2u(16.0):#x}')
        power(L128, f'{f2u(128.0):#x}')
        a(f'v_cvt_f32_u32 v11, v{vHI}\nv_mul_f32 v11, {f2u(1024.0):#x}, v11')
        power(FF, 'v11')
        a(f's_lshl_b32 s{sT0}, s{sSW}, 1\nv_add_u32 v11, s{sT0}, v{vHI}\nv_cvt_f32_u32 v11, v11\nv_mul_f32 v11, {f2u(16.0):#x}, v11')
        power(WW, 'v11')
        a(f'v_add_f32 v6, -1.0, v{L1}\nv_mul_f32 v7, v0, v0\nv_fmac_f32 v7, v1, v1\nv_rcp_f32 v7, v7\nv_add_f32 v7, v7, v7')
        a(f'v_mul_f32 v8, v6, v0\nv_fma_f32 v8, -v{L1+1}, v1, v8\nv_mul_f32 v9, v6, v1\nv_fma_f32 v9, -v{L1+1}, v0, -v9\nv_mul_f32 v{CC}, v8, v7\nv_mul_f32 v{CC+1}, v9, v7')
        a(f'v_and_b32 v6, 1, v{vLN}\nv_lshlrev_b32 v6, 4, v6\nv_lshlrev_b32 v3, v6, v{PRM+3}')
        a(f'v_lshrrev_b32 v6, 1, v{vC31}\nv_lshlrev_b32 v7, 2, v{vHI}\nv_sub_u32 v6, v6, v7')
        for q in range(8):
            a(f'v_cmp_eq_u32 vcc, {8*(q//4) + q%4}, v6\nv_cndmask_b32 v{DG+q}, 0, v3, vcc')
        LC = PRM
        a(f'v_mov_b32 v{LC}, 0\nv_mov_b32 v{LC+1}, 0')
        SN = 180
        a(f'v_mov_b32 v{SN}, -1\nv_mov_b32 v{SN+1}, -1\nv_mov_b32 v{SN+2}, -1\nv_mov_b32 v{SN+3}, -1\nv_mov_b32 v{SN+4}, 0\nv_mov_b32 v{SN+5}, 0\nv_mov_b32 v{SN+6}, s{sTAG}\nv_mov_b32 v{SN+7}, 0')
        self.srd(SB, P(8), 512 * 1024)
        self.srd(SC, P(9), 512 * 1024)
        self.stamp(11)
        def bdma(half, only=None):
            if half == 0: a(f's_mul_i32 s{sT1}, s{sSW}, {4*1040}\ns_lshl_b32 s{sT2}, s{sPB}, 15\ns_lshl_b32 s{sT3}, s{sSW}, 13\ns_add_u32 s{sT2}, s{sT2}, s{sT3}\ns_add_u32 s{sT2}, s{sT2}, s{sHB}')
            for pl, srd in ((0, SB), (1, SC)):
                for m in range(4):
                    if only is not None and only != 4 * pl + m: continue
                    a(f's_add_u32 m0, s{sT1}, {L_A1 + ((2*half + pl)*16 + m)*1040}\ns_xor_b32 s{sT0}, s{sT2}, {2048*m + 512*half}')
                    a(f'buffer_load_dwordx4 v{vBD}, s[{srd}:{srd+3}], s{sT0} offen lds')
        def xread(half):
            for s in range(16): a(f'ds_read_b128 {q4(64*half + 4*s)}, v{vXR2 if s & 4 else vXR} offset:{32*s}')
        def rowdma(srd, base, sg, n):
            for m in range(n):
                if m % 4 == 0: a(f's_add_u32 m0, s{sT1}, {base + m*1040}\ns_add_u32 s{sT0}, s{sg}, {1024*m}')
                else: a('s_add_u32 m0, m0, 16')
                a(f'buffer_load_dwordx4 v{vL16}, s[{srd}:{srd+3}], s{sT0} offen offset:{1024*(m%4)} lds')
        self.wait(F_A1, sleep=2)
        self.stamp(10)
        a(f'ds_read_b64 {pr(SN+8)}, v{SN+4} offset:{F_KMAX}')
        xdma(0, range(2)); a(f's_mov_b32 s{sT0}, {f2u(3400.0):#x}\ns_waitcnt lgkmcnt(0)')
        a(f'v_mul_f32 v{vT}, v{SN+8}, v{vQ}\nv_cmp_nge_f32 vcc, s{sT0}, v{vT}\nv_readfirstlane_b32 s{sXC}, v{SN+9}\ns_cmp_eq_u64 vcc, 0\ns_cselect_b32 s{sT0}, 1, 2\nv_mov_b32 v{vQ}, s{sT0}')
        a(f'ds_write_b32 v{vS}, v{vQ} offset:{F_S[0]}')
        bdma(0); xdma(0, range(2, 16))
        a('s_waitcnt vmcnt(0)')
        self.sig(F_S[1])
        self.stamp(4)
        xread(0)
        self.wait(F_S[1], sleep=1)
        self.stamp(5)
        GR, GI, BT = 128, 144, 160
        PD = opt('s1depth', 4)
        lq = []
        def bread(q):
            s, pl = q // 2, q % 2
            a(f'ds_read_b128 {q4(BT + 4*(q%5))}, v{vHB if s & 4 else vHA} offset:{((2*(s//16) + pl)*16)*1040 + 32*(s%16)}')
            lq.append(('b', q))
        a(f's_setprio {opt("gprio1", 0)}')
        for q in range(PD): bread(q)
        XQ = opt('xq', 20)
        for q in range(64):
            s, pl = q // 2, q % 2
            need = max([i for i, x in enumerate(lq) if x == ('b', q) or x == ('x', s)] + [-1])
            if need >= 0:
                a(f's_waitcnt lgkmcnt({len(lq) - 1 - need})')
                del lq[:need + 1]
            Gx = GI if pl else GR
            a(f'v_mfma_f32_32x32x16_bf16 {t16(Gx)}, {q4(4*s)}, {q4(BT + 4*(q%5))}, {"0" if s == 0 else t16(Gx)}')
            if q + PD == 32:
                a('s_setprio 3')
                self.wait(F_S[2], sleep=1); lq.clear()
                a(f's_setprio {opt("gprio1", 0)}')
                self.stamp(12)
            if q + PD < 64: bread(q + PD)
            if q < 4: bdma(1, 2 * q); bdma(1, 2 * q + 1)
            elif q < 12: xdma(1, [2 * q - 8, 2 * q - 7])
            elif pl == 1 and opt('pad1', 0): a(f's_nop {opt("pad1", 0) - 1}')
            if q == XQ:
                a('s_waitcnt vmcnt(0)')
                self.sig(F_S[2]); lq.append(('s', 0))
                a(f's_or_b32 s{sT0}, s2, s{sSW}\ns_cbranch_scc1 L_noep')
                a(f's_mov_b64 exec, 1\nbuffer_store_dword v{vTG}, off, s[{SWS}:{SWS+3}], 0 sc1\ns_mov_b64 exec, -1')
                a('L_noep:')
                a(f's_cmp_lg_u32 s{sTB}, 0\ns_cbranch_scc1 L_nozero')
                a(f's_lshl_b32 s{sT0}, s{sPB}, 14\ns_lshl_b32 s{sT1}, s{sSW}, 11\ns_add_u32 s{sT0}, s{sT0}, s{sT1}\ns_add_u32 s{sT0}, s{sT0}, {WS_EBUF:#x}')
                for n in range(2): a(f'buffer_store_dwordx4 {q4(SN+4)}, v{vL16}, s[{SWS}:{SWS+3}], s{sT0} offen offset:{1024*n} sc1')
                a('L_nozero:')
                a(f's_lshr_b32 s{sT0}, s{sSW}, 1\ns_and_b32 s{sT1}, s{sRB}, 1\ns_cmp_lg_u32 s{sT0}, s{sT1}\ns_cbranch_scc1 L_nosent')
                a(f's_lshl_b32 s{sT1}, s{sCG}, 12\ns_add_u32 s{sT0}, s{sXB}, s{sT1}\ns_add_u32 s{sT0}, s{sT0}, {WS_OBUF:#x}')
                self.xstore([f'buffer_store_dwordx4 {q4(SN)}, v{vL16}, s[{SWS}:{SWS+3}], s{sT0} offen offset:{1024*n}' for n in range(4)], 's')
                a('L_nosent:')
                if opt('pf', 1): self.prefetch((10, 11, 4), vPF)
            if XQ < q <= XQ + 16:
                sx = q - XQ - 1
                a(f'ds_read_b128 {q4(64 + 4*sx)}, v{vXR2 if sx & 4 else vXR} offset:{32*sx}'); lq.append(('x', 16 + sx))
        a('s_setprio 3')
        self.stamp(6)
        if opt('stop', 0) == 6: self.end(); return
        RE = 'op_sel:[0,0,0] op_sel_hi:[0,1,1]'
        IM = 'op_sel:[1,0,0] op_sel_hi:[1,1,1]'
        T0, T1 = 8, 10
        def pstep(dr, di, sr, si, l, ur, ui, ns=0, nu=0):
            a(f'v_pk_fma_f32 {pr(T0)}, {pr(l)}, {pr(si)}, {pr(ur)} {IM} neg_lo:[{1-ns},0,0] neg_hi:[{1-ns},0,0]')
            a(f'v_pk_fma_f32 {pr(T1)}, {pr(l)}, {pr(sr)}, {pr(ui)} {IM} neg_lo:[0,0,{nu}] neg_hi:[0,0,{nu}]')
            a(f'v_pk_fma_f32 {pr(dr)}, {pr(l)}, {pr(sr)}, {pr(T0)} {RE}')
            a(f'v_pk_fma_f32 {pr(di)}, {pr(l)}, {pr(si)}, {pr(T1)} {RE} neg_lo:[{ns},0,0] neg_hi:[{ns},0,0]')
        def cstep(dr, di, sr, si, l, ur, ui):
            a(f'v_fma_f32 v{T0}, -v{l+1}, v{si}, v{ur}\nv_fma_f32 v{T1}, v{l+1}, v{sr}, v{ui}\nv_fma_f32 v{dr}, v{l}, v{sr}, v{T0}\nv_fma_f32 v{di}, v{l}, v{si}, v{T1}')
        def zstep(d, s, l, u):
            a(f'v_pk_fma_f32 {pr(T0)}, {pr(l)}, {pr(s)}, {pr(u)} {RE}')
            a(f'v_pk_fma_f32 {pr(d)}, {pr(l)}, {pr(s)}, {pr(T0)} op_sel:[1,1,0] op_sel_hi:[1,0,1] neg_lo:[1,0,0]')
        def cmul(r, i, neg):
            a(f'v_pk_mul_f32 {pr(T0)}, {pr(CC)}, {pr(i)} op_sel:[1,0] op_sel_hi:[1,1]')
            a(f'v_pk_mul_f32 {pr(T1)}, {pr(CC)}, {pr(r)} op_sel:[1,0] op_sel_hi:[1,1]')
            a(f'v_pk_fma_f32 {pr(r)}, {pr(CC)}, {pr(r)}, {pr(T0)} {RE} neg_lo:[0,0,{neg}] neg_hi:[0,0,{neg}]')
            a(f'v_pk_fma_f32 {pr(i)}, {pr(CC)}, {pr(i)}, {pr(T1)} {RE} neg_lo:[{neg},0,1] neg_hi:[{neg},0,1]')
        ER, EI, EE = 12, 14, 16
        pstep(ER, EI, GR, GI, L1, GR + 2, GI + 2, 1, 1)
        for r in range(4, 16, 2): pstep(ER, EI, ER, EI, L1, GR + r, GI + r, 0, 1)
        cstep(EE, EE + 1, ER, EI, L8, ER + 1, EI + 1)
        a(f'ds_write_b64 v{vSX}, {pr(EE)} offset:{L_SXO}')
        self.sig(F_S[3])
        self.srd(SB, P(10), 512 * 1024)
        self.srd(SC, P(11), 512 * 1024)
        a(f's_lshl_b32 s{sT3}, s{sSW}, 1\ns_mov_b32 s{sM0}, 0\ns_mov_b32 s{sM0+1}, -1')
        a(f's_lshl_b32 s{sT4}, s{sPB}, 14\ns_lshl_b32 s{sT1}, s{sTB}, 9\ns_add_u32 s{sT4}, s{sT4}, s{sT1}\ns_add_u32 s{sT4}, s{sT4}, {WS_EBUF:#x}')
        self.wait(F_S[3], sleep=1)
        for c in range(7): a(f'ds_read_b64 {pr(20+2*c)}, v{vP8} offset:{(c//2)*XW + L_SXO + (c%2)*256}')
        a('s_waitcnt lgkmcnt(0)')
        for c in range(7):
            a(f's_cmp_lt_u32 s{sT3}, {c}\ns_cbranch_scc1 L_lh_done')
            a(f's_cmp_gt_u32 s{sT3}, {c}\ns_cselect_b64 exec, -1, s[{sM0}:{sM0+1}]')
            zstep(LC, LC, L16, 20 + 2 * c)
        zstep(vTG - 2, LC, L16, EE)
        a(f's_add_u32 s{sT0}, s{sT4}, {16*512 - 512}\nbuffer_store_dwordx4 v[{vTG-2}:{vTG+1}], v{vL16}, s[{SWS}:{SWS+3}], s{sT0} offen sc1')
        a('L_lh_done:\ns_mov_b64 exec, -1')
        self.stamp(7)
        def cdma(srd, base):
            a(f's_mul_i32 s{sT1}, s{sSW}, {16*1040}\ns_lshl_b32 s{sT2}, s{sCG}, 16\ns_lshl_b32 s{sT3}, s{sSW}, 14\ns_add_u32 s{sT2}, s{sT2}, s{sT3}')
            rowdma(srd, base, sT2, 16)
        cdma(SB, L_A1)
        for r in range(0, 16, 2): cmul(GR + r, GI + r, 1)
        a(f's_mov_b32 s{sCNT}, 100000')
        a('L_eg:')
        for q in range(8): a(f'buffer_load_dwordx3 v[{24+4*q}:{26+4*q}], v{vEA}, s[{SWS}:{SWS+3}], s{sT4} offen offset:{512*q} sc1')
        a('s_waitcnt vmcnt(0)')
        a(f'v_cmp_ne_u32 vcc, s{sTAG}, v26')
        for q in range(1, 8): a(f'v_cmp_ne_u32 s[{sM1}:{sM1+1}], s{sTAG}, v{26+4*q}\ns_or_b64 vcc, vcc, s[{sM1}:{sM1+1}]')
        a(f's_cbranch_scc0 L_egd\ns_sleep {opt("esleep", 4)}\ns_sub_u32 s{sCNT}, s{sCNT}, 1\ns_cbranch_scc0 L_eg')
        a('L_egd:')
        self.sig(F_S[9])
        self.stamp(8)
        for q in range(1, 8): zstep(24, 24, L128, 24 + 4 * q)
        a(f'v_pk_mul_f32 {pr(T0)}, {pr(FF)}, {pr(24)} op_sel:[0,0] op_sel_hi:[0,1]')
        a(f'v_pk_fma_f32 {pr(20)}, {pr(FF)}, {pr(24)}, {pr(T0)} op_sel:[1,1,0] op_sel_hi:[1,0,1] neg_lo:[1,0,0]')
        a(f'v_mov_b32 v22, v20\nv_mov_b32 v23, v21\nv_permlane32_swap_b32 v20, v22\nv_permlane32_swap_b32 v21, v23\nv_pk_add_f32 {pr(20)}, {pr(20)}, {pr(22)}')
        IR, II = 24, 26
        cstep(IR, II, 20, 21, WW, LC, LC + 1)
        cstep(IR + 1, II + 1, IR, II, L8, ER, EI)
        cmul(IR, II, 0)
        pstep(GR, GI, IR, II, L1, GR, GI)
        for r in range(2, 16, 2): pstep(GR + r, GI + r, GR + r - 2, GI + r - 2, L1, GR + r, GI + r)
        for pl, Gx in ((0, GR), (1, GI)):
            for j in range(8):
                r0 = 4 * (j % 4) + j // 4
                a(f'v_cvt_pk_bf16_f32 v{28+8*pl+j}, v{Gx+r0}, v{Gx+r0+2}')
            a(f'ds_write_b128 v{vTW}, {q4(28+8*pl)} offset:{L_TBO+2048*pl}\nds_write_b128 v{vTW}, {q4(32+8*pl)} offset:{L_TBO+2048*pl+16}')
        for pl in range(2):
            for f in range(2):
                d = 44 + 8 * pl + 4 * f
                a(f'ds_read_b64_tr_b16 {pr(d)}, v{vTR} offset:{L_TBO+2048*pl+1024*f}\nds_read_b64_tr_b16 {pr(d+2)}, v{vTR} offset:{L_TBO+2048*pl+1024*f+256}')
        a(f's_lshl_b32 s{sT0}, s{sXB}, 1\ns_lshl_b32 s{sT1}, s{sPB}, 11\ns_add_u32 s{sT0}, s{sT0}, s{sT1}\ns_add_u32 s{sT0}, s{sT0}, {WS_HBUF:#x}\ns_add_u32 s{sT1}, s{sT0}, 0x8000')
        hs = []
        for pl in range(2):
            for f in range(2):
                d = 44 + 8 * pl + 4 * f
                hs += [f's_waitcnt lgkmcnt({6 - 4*pl - 2*f})', f'buffer_store_dwordx4 {q4(d)}, v{vL16}, s[{SWS}:{SWS+3}], s{sT0 if pl == 0 else sT1} offen offset:{1024*f}']
        self.xstore(hs, 'h')
        YK, YS, XF, HR = 128, 144, 184, 160
        a(f's_lshl_b32 s{sT0}, s{sTP}, 15\ns_lshl_b32 s{sT1}, s{sCT}, 6\ns_add_u32 s{sT0}, s{sT0}, s{sT1}')
        a(f'buffer_load_dwordx4 {q4(XF)}, v{vXS}, s[{SA}:{SA+3}], s{sT0} offen\nbuffer_load_dwordx4 {q4(XF+4)}, v{vXS}, s[{SA}:{SA+3}], s{sT0} offen offset:32')
        a(f's_lshr_b32 s{sT4}, s{sXB}, 4\ns_lshl_b32 s{sT3}, s{sPB}, 7\ns_add_u32 s{sT4}, s{sT4}, s{sT3}\ns_add_u32 s{sT4}, s{sT4}, {WS_HFLAG:#x}')
        self.wait(F_S[9], sleep=1)
        a(f's_mov_b32 s{sM1}, -1\ns_mov_b32 s{sM1+1}, 0\ns_waitcnt vmcnt(2)')
        a(f's_mov_b64 exec, s[{sM1}:{sM1+1}]')
        self.xstore([f'buffer_store_dword v{vTG}, v{vOA}, s[{SWS}:{SWS+3}], s{sT4} offen'], 'h')
        a('s_mov_b64 exec, -1')
        self.stamp(9)
        if opt('stop', 0) == 9: self.end(); return
        cdma(SC, L_A2)
        for j in range(16): a(f'ds_read_b128 {q4(8*j)}, v{vCK} offset:{32*j}\nds_read_b128 {q4(8*j+4)}, v{vCS} offset:{32*j}')
        self.sig(F_S[6])
        a('s_waitcnt vmcnt(17)')
        a(f'v_mfma_f32_32x32x16_bf16 {t16(YK)}, {q4(XF)}, {q4(DG)}, 0')
        a(f'v_mfma_f32_32x32x16_bf16 {t16(YK)}, {q4(XF+4)}, {q4(DG+4)}, {t16(YK)}')
        a(f's_lshl_b32 s{sT0}, s{sTP}, 11\ns_add_u32 s{sT0}, s{sT0}, {WS_HFLAG:#x}\ns_mov_b64 exec, 0xffff')
        a(f's_mov_b32 s{sCNT}, 100000')
        a('L_gph:')
        a(f'buffer_load_dword v{vT}, v{vHF}, s[{SWS}:{SWS+3}], s{sT0} offen sc1\ns_waitcnt vmcnt(0)\nv_cmp_ne_u32 vcc, s{sTAG}, v{vT}\ns_cbranch_vccz L_gdh')
        a(f's_sleep {opt("hsleep", 4)}\ns_sub_u32 s{sCNT}, s{sCNT}, 1\ns_cbranch_scc0 L_gph')
        a('L_gdh:\ns_mov_b64 exec, -1')
        self.sig(F_S[5])
        self.stamp(13)
        if opt('stop', 0) == 10: self.end(); return
        a(f's_lshl_b32 s{sT3}, s{sTP}, 16\ns_and_b32 s{sT0}, s{sSW}, 1\ns_lshl_b32 s{sT0}, s{sT0}, 14\ns_add_u32 s{sT3}, s{sT3}, s{sT0}\ns_add_u32 s{sT3}, s{sT3}, {WS_HBUF:#x}')
        NR = 13
        vq = []
        def hload(j):
            if j % 4 == 0 and j > 0: a(f's_add_u32 s{sT3}, s{sT3}, {4096 if j != 16 else 4096 + 16384}')
            a(f'buffer_load_dwordx4 {q4(HR + 4*(j%NR))}, v{vL16}, s[{SWS}:{SWS+3}], s{sT3} offen offset:{1024*(j%4)} sc1')
            vq.append(('h', j))
        for j in range(NR - 1): hload(j)
        self.wait(F_S[6], sleep=1)
        self.srd(SB, P(4), 512 * 1024)
        a(f's_lshl_b32 s{sT4}, s{sSW}, 17\ns_lshl_b32 s{sT1}, s{sCG}, 7\ns_add_u32 s{sT4}, s{sT4}, s{sT1}\ns_lshl_b32 s{sT1}, s{sSW}, 14\ns_add_u32 m0, s{sT1}, {L_A1}')
        a(f's_setprio {opt("gprio4", 0)}')
        lq = []
        def cread(j):
            c = 8 * (j % 16)
            a(f'ds_read_b128 {q4(c)}, v{vCK2} offset:{32*(j%16)}\nds_read_b128 {q4(c+4)}, v{vCS2} offset:{32*(j%16)}')
            lq.extend([('c', j), ('c', j)])
        wosig = False
        for j in range(32):
            need = vq.index(('h', j))
            w = f's_waitcnt vmcnt({len(vq) - 1 - need})'
            del vq[:need + 1]
            ln = max([i for i, x in enumerate(lq) if x == ('c', j)] + [-1])
            if ln >= 0:
                w += f' lgkmcnt({len(lq) - 1 - ln})'; del lq[:ln + 1]
            a(w)
            if j >= 8 and not wosig and not any(x[0] == 'w' for x in vq):
                self.sig(F_WO); lq.append(('s', 0)); wosig = True
            c = 8 * (j % 16); h = q4(HR + 4 * (j % NR))
            a(f'v_mfma_f32_32x32x16_bf16 {t16(YK)}, {h}, {q4(c)}, {t16(YK)}')
            if j + NR - 1 < 32: hload(j + NR - 1)
            a(f'v_mfma_f32_32x32x16_bf16 {t16(YS)}, {h}, {q4(c+4)}, {"0" if j == 0 else t16(YS)}')
            if j < 8:
                for m in range(2):
                    a(f'buffer_load_dwordx4 v{vWI}, s[{SB}:{SB+3}], s{sT4} offen lds\ns_add_u32 m0, m0, 1024\ns_add_u32 s{sT4}, s{sT4}, 8192')
                    vq.append(('w', 0))
            if j == 11:
                a('s_setprio 3')
                self.wait(F_S[5], sleep=1); lq.clear()
                a(f's_setprio {opt("gprio4", 0)}')
            if 12 <= j < 28: cread(j + 4)
            if opt('pad4', 0): a(f's_nop {opt("pad4", 0) - 1}')
        assert wosig
        a('s_setprio 3')
        self.sig(F_S[7])
        self.srd(SOUT, P(14), 2048 * 4096)
        a(f's_lshl_b32 s{sT2}, s{sTP}, 17\ns_lshl_b32 s{sT1}, s{sCT}, 7\ns_add_u32 s{sT2}, s{sT2}, s{sT1}')
        self.wait(F_S[7], sleep=1)
        for q in range(4): a(f'ds_write_b128 v{vYW}, {q4(YS+4*q)} offset:{1024*q}')
        self.sig(F_S[8])
        self.wait(F_S[8], sleep=1)
        for q in range(4): a(f'ds_read_b128 {q4(YS+4*q)}, v{vYR} offset:{1024*q}')
        a('s_waitcnt lgkmcnt(0)')
        fl = {0: '', 1: ' sc1', 2: ' nt', 3: ' sc0 sc1', 4: ' sc1 nt', 5: ' sc0 nt', 6: ' sc0 sc1 nt'}[opt('yfl', 2)]
        for r in range(0, 16, 2): a(f'v_pk_add_f32 {pr(YS+r)}, {pr(YK+r)}, {pr(YS+r)}')
        for r in range(16):
            a(f's_add_u32 s{sT0}, s{sT2}, {((r % 4) + 8 * (r // 4)) * 4096}')
            a(f'buffer_store_dword v{YS+r}, v{vOA}, s[{SOUT}:{SOUT+3}], s{sT0} offen offset:2048{fl}')
        self.stamp(2)
        self.end()

HEADER = open('cdna_kernels/' + NAME + '.s.ref').read().split('; Override launch')[0]

def make(stamps=False):
    g = G(stamps)
    body = g.build()
    txt = HEADER + f'; @launch grid=(256,1,1) block=(512,1,1) lds={L_TOTAL}\n'
    txt += f'''.amdgcn_target "amdgcn-amd-amdhsa--gfx950"
.text
.globl {NAME}_kernel
.p2align 8
.type {NAME}_kernel,@function
{NAME}_kernel:
{body}.section .rodata,"a"
.p2align 6
.amdhsa_kernel {NAME}_kernel
  .amdhsa_next_free_vgpr 256
  .amdhsa_next_free_sgpr 102
  .amdhsa_accum_offset 256
  .amdhsa_group_segment_fixed_size 0
  .amdhsa_kernarg_size 136
  .amdhsa_user_sgpr_count 2
  .amdhsa_user_sgpr_kernarg_segment_ptr 1
  .amdhsa_system_sgpr_workgroup_id_x 1
.end_amdhsa_kernel
'''
    return txt, g.a.n_ins

if __name__ == '__main__':
    pos = [x for x in sys.argv[1:] if not x.startswith('--')]
    out = pos[0] if pos else 'cdna_kernels/' + NAME + '.s'
    txt, n = make(stamps='stamps' in OPT)
    open(out, 'w').write(txt)
    print('wrote', out, n, 'instructions')
```

```python
import sys, math, struct
from asm import Asm

NAME = 'concat_heads__grouped_kv_mqa__ssm_conv_s5__prompt'
OPT = dict((x[2:].split('=') + ['1'])[:2] for x in sys.argv if x.startswith('--'))
def opt(k, d): return int(OPT.get(k, d))
def f2u(x): return struct.unpack('<I', struct.pack('<f', x))[0]
def pr(r): return f'v[{r}:{r+1}]'
def q4(r): return f'v[{r}:{r+3}]'
def t16(r): return f'v[{r}:{r+15}]'

WS_KVFLAG = 0x8000
WS_KVIMG = 0x10000
WS_EBUF = 0x40000
WS_HFLAG = 0x80000
WS_OBUF = 0x100000
WS_HBUF = 0x400000
WS_DBG = 0x800000
WS_SIZE = 0x1000000
def FL(i): return 16 * i
F_L1, F_L2, F_L4, F_L6 = FL(0), FL(1), FL(2), FL(3)
F_QP, F_KVD = FL(4), FL(5)
F_A1, F_AX, F_AY = FL(6), FL(7), FL(8)
F_S = [FL(9 + i) for i in range(10)]
F_WO = FL(19)
F_OX = FL(20)
F_SL = [FL(22 + i) for i in range(3)]
F_KMAX, F_XC, F_KST = FL(25), FL(25) + 4, FL(25) + 8
L_QN = 512
L_ACCF = 1024
L_QF = 5120
L_ACCD = 13312
L_WKV = L_ACCD
L_A1 = 29696
L_A2 = 96256
L_MX = L_A2 + 66560
L_TOTAL = 163840
XW = 16640
L_SXO = 1024
L_TBO = 2048

sWV, sRB, sCG, sTB, sPB, sTAG = 3, 4, 5, 6, 7, 8
sT0, sT1, sT2, sT3, sT4, sT5 = 9, 10, 11, 12, 13, 14
sCNT = 15
P = lambda i: 16 + 2 * i
SA, SB, SC, SWS, SOUT = 52, 56, 60, 64, 68
sSW = 72
sPH, sTJ, sOW = 73, 74, 75
sM0, sM1 = 76, 78
sQH = 81
sOB, sPRE = 101, 81
sXC = 100
sST = 82
SPIN = 400000
vT, vLN, vL16, vEP, vF, vS, vONE = 249, 250, 251, 252, 253, 254, 255

class G:
    def __init__(self, stamps=False):
        self.a = Asm(); self.stamps = stamps; self.cyc = True
    def srd(self, d, p, size):
        self.a(f's_mov_b32 s{d}, s{p}\ns_mov_b32 s{d+1}, s{p+1}\ns_mov_b32 s{d+2}, {size:#x}\ns_mov_b32 s{d+3}, 0x20000')
    def stamp(self, i):
        if self.stamps:
            self.a(f's_memrealtime s[98:99]\ns_waitcnt lgkmcnt(0)\ns_mov_b32 s{sST+i}, s98')
            m = {5: 8, 6: 9}
            if self.cyc and i in m:
                self.a(f's_memtime s[98:99]\ns_waitcnt lgkmcnt(0)\ns_mov_b32 s{sST+m[i]}, s98')
    def end(self):
        a = self.a
        if self.stamps:
            a('s_waitcnt vmcnt(0)')
            self.stamp(15)
            if 'diag' in OPT and self.cyc != ('diagsv' in OPT):
                da, db = [int(x) for x in OPT['diag'].split(',')]
                L = a.label('DG')
                a(f's_sub_u32 s{sT1}, s{sST+db}, s{sST+da}')
                if 'diagcyc' in OPT: a(f's_lshr_b32 s{sT1}, s{sT1}, 1')
                else: a(f's_lshl_b32 s{sT1}, s{sT1}, 3')
                a(f's_min_u32 s{sT1}, s{sT1}, 100000\ns_add_u32 s{sT1}, s{sT1}, s{sST+15}')
                a(f'{L}:\ns_sleep 4\ns_memrealtime s[98:99]\ns_waitcnt lgkmcnt(0)\ns_cmp_lt_u32 s98, s{sT1}\ns_cbranch_scc1 {L}')
            a(f's_lshl_b32 s{sT0}, s2, 3\ns_add_u32 s{sT0}, s{sT0}, s{sWV}\ns_lshl_b32 s{sT0}, s{sT0}, 6\ns_add_u32 s{sT0}, s{sT0}, {WS_DBG:#x}')
            a('s_mov_b64 exec, 1')
            for i in range(16):
                a(f'v_mov_b32 v{vT}, s{sST+i}\nbuffer_store_dword v{vT}, off, s[{SWS}:{SWS+3}], s{sT0} offset:{4*i}')
            a('s_waitcnt vmcnt(0)')
        a('s_endpgm')
    def sig(self, off, va=vS):
        self.a(f'ds_write_b32 v{va}, v{vONE} offset:{off}')
    def wait(self, off, sleep=1, va=vF):
        a = self.a; L = a.label('W'); D = a.label('WD')
        a(f's_mov_b32 s{sCNT}, {SPIN}')
        a(f'{L}:')
        a(f'ds_read_b32 v{vT}, v{va} offset:{off}\ns_waitcnt lgkmcnt(0)\nv_cmp_eq_u32 vcc, 0, v{vT}\ns_cbranch_vccz {D}')
        a((f's_sleep {sleep}\n' if sleep else '') + f's_sub_u32 s{sCNT}, s{sCNT}, 1\ns_cbranch_scc0 {L}')
        a(f'{D}:')
    def xstore(self, lines, kind='o'):
        a = self.a
        if not opt('xc' + kind, 0 if kind == 'h' else 1):
            for x in lines: a(x + (' sc1' if x.startswith('buffer') else ''))
            return
        L = a.label('X'); D = a.label('XD')
        a(f's_cmp_eq_u32 s{sXC}, 1\ns_cbranch_scc0 {L}')
        for x in lines: a(x + (' nt' if x.startswith('buffer') and opt('xnt', 0) else ''))
        a(f's_branch {D}')
        a(f'{L}:')
        for x in lines: a(x + (' sc1' if x.startswith('buffer') else ''))
        a(f'{D}:')
    def get_tag(self):
        self.a(f'v_readfirstlane_b32 s{sTAG}, v{vEP}\ns_mul_i32 s{sTAG}, s{sTAG}, 0x9E3779B1\ns_add_u32 s{sTAG}, s{sTAG}, 0x7F4A7C15')

    def build(self):
        a = self.a
        a('s_cmp_ge_u32 s2, 256\ns_cbranch_scc1 L_exit')
        a('s_load_dwordx16 s[16:31], s[0:1], 0\ns_load_dwordx16 s[32:47], s[0:1], 64\ns_load_dwordx2 s[48:49], s[0:1], 128')
        if self.stamps:
            for i in range(16): a(f's_mov_b32 s{sST+i}, 0')
        a(f'v_and_b32 v{vLN}, 63, v0\nv_lshrrev_b32 v{vT}, 6, v0\nv_lshlrev_b32 v{vL16}, 4, v{vLN}\nv_readfirstlane_b32 s{sWV}, v{vT}')
        if opt('cpf', 1):
            a(f's_cmp_lt_u32 s{sWV}, 5\ns_cbranch_scc1 L_nocpf')
            a(f's_getpc_b64 s[{sM0}:{sM0+1}]')
            a('L_pc:')
            a(f's_lshr_b32 s{sT0}, s2, 3\ns_mul_i32 s{sT0}, s{sT0}, 3\ns_add_u32 s{sT0}, s{sT0}, s{sWV}\ns_sub_u32 s{sT0}, s{sT0}, 5\ns_lshl_b32 s{sT0}, s{sT0}, 9')
            a(f's_min_u32 s{sT0}, s{sT0}, L_exit-L_pc-512\ns_add_u32 s{sM0}, s{sM0}, s{sT0}\ns_addc_u32 s{sM0+1}, s{sM0+1}, 0')
            for k in range(8): a(f's_load_dword s{SOUT + k % 4}, s[{sM0}:{sM0+1}], {64*k}')
            a('L_nocpf:')
        a(f's_and_b32 s{sT0}, s2, 7\ns_lshr_b32 s{sT1}, s2, 3')
        a(f's_lshl_b32 s{sRB}, s{sT0}, 2\ns_lshr_b32 s{sT2}, s{sT1}, 3\ns_add_u32 s{sRB}, s{sRB}, s{sT2}\ns_and_b32 s{sCG}, s{sT1}, 7')
        a(f's_lshr_b32 s{sTB}, s{sRB}, 1\ns_and_b32 s{sPB}, s{sT1}, 15\ns_and_b32 s{sSW}, s{sWV}, 3')
        a(f's_cmp_ge_u32 s{sWV}, 4\ns_cbranch_scc1 L_service')
        a(f's_lshr_b32 s{sT5}, s{sCG}, 1\ns_lshl_b32 s{sT4}, s{sRB}, 16')
        def xa_rows(g):
            a(f's_add_u32 s{sT0}, s{sT5}, {g}\ns_and_b32 s{sT0}, s{sT0}, 3\ns_lshl_b32 s{sT0}, s{sT0}, 2\ns_add_u32 s{sT0}, s{sT0}, s{sSW}\ns_lshl_b32 s{sT0}, s{sT0}, 2')
            a(f's_mul_i32 s{sT1}, s{sT0}, 1040\ns_add_u32 m0, s{sT1}, {L_A1}\ns_lshl_b32 s{sT0}, s{sT0}, 10\ns_add_u32 s{sT0}, s{sT0}, s{sT4}')
            if g == 0:
                a('s_waitcnt lgkmcnt(0)')
                self.stamp(0)
                self.srd(SA, P(0), 2048 * 1024)
            for n in range(4):
                a(f'buffer_load_dwordx4 v{vL16}, s[{SA}:{SA+3}], s{sT0} offen offset:{1024*n} lds')
                if n < 3: a('s_add_u32 m0, m0, 16')
        xa_rows(0)
        a(f's_bitcmp1_b32 s{sCG}, 0\ns_cselect_b32 s{SB}, s{P(3)}, s{P(2)}\ns_cselect_b32 s{SB+1}, s{P(3)+1}, s{P(2)+1}\ns_mov_b32 s{SB+2}, 0x4000\ns_mov_b32 s{SB+3}, 0x20000')
        a(f's_lshl_b32 s{sT0}, s{sWV}, 12\ns_add_u32 m0, s{sT0}, {L_WKV}')
        a(f'v_lshrrev_b32 v2, 1, v{vL16}\nv_and_b32 v2, 128, v2\nv_xor_b32 v2, v2, v{vL16}')
        for n in range(4):
            a(f'buffer_load_dwordx4 v2, s[{SB}:{SB+3}], s{sT0} offen offset:{1024*n} lds')
        self.wimg_lane_addr(0, 1)
        self.srd(SC, P(1), 512 * 1024)
        a(f's_lshl_b32 s{sT3}, s{sSW}, 13\ns_lshl_b32 s{sT1}, s{sCG}, 7\ns_add_u32 s{sT3}, s{sT3}, s{sT1}\ns_and_b32 s{sT1}, s{sRB}, 3\ns_lshl_b32 s{sT1}, s{sT1}, 17\ns_add_u32 s{sT3}, s{sT3}, s{sT1}')
        a(f's_lshl_b32 s{sT2}, s{sSW}, 10')
        def wq_rows(c):
            for n in range(4 * c, 4 * c + 4):
                a(f's_add_u32 m0, s{sT2}, {L_A2 + 4096*n}\ns_xor_b32 s{sT0}, s{sT3}, {0x8000*n:#x}')
                a(f'buffer_load_dwordx4 v0, s[{SC}:{SC+3}], s{sT0} offen lds')
        FO = opt('fo', 1)
        if FO == 0: wq_rows(0)
        else: xa_rows(1)
        self.common_regs()
        self.srd(SWS, P(16), WS_SIZE)
        a('s_barrier')
        self.stamp(1)
        a('s_waitcnt vmcnt(4)')
        self.sig(F_L1)
        if FO == 0: xa_rows(1)
        xa_rows(2); xa_rows(3)
        a(f'buffer_load_dword v{vEP}, off, s[{SWS}:{SWS+3}], 0 sc1')
        if FO == 1: wq_rows(0)
        if FO == 0: wq_rows(1)
        a('s_waitcnt vmcnt(5)')
        self.sig(F_L2)
        if FO == 1: wq_rows(1)
        wq_rows(2); wq_rows(3)
        self.stamp(2)
        a('s_waitcnt vmcnt(8)')
        self.sig(F_L4)
        if opt('lay', 1):
            a('s_branch L_attn')
            self.service()
            self.cyc = True
            a('L_attn:')
            self.attention()
        else:
            self.attention()
            self.service()
        a('L_exit:\ns_endpgm')
        return a.finish()

    def common_regs(self):
        self.a(f'v_and_b32 v{vF}, 3, v{vLN}\nv_lshlrev_b32 v{vF}, 2, v{vF}\ns_lshl_b32 s{sT0}, s{sSW}, 2\nv_mov_b32 v{vS}, s{sT0}\nv_mov_b32 v{vONE}, 1')

    def wimg_lane_addr(self, vd, vt):
        a = self.a
        a(f'v_lshrrev_b32 v{vt}, 2, v{vLN}\nv_and_b32 v{vt}, 4, v{vt}\nv_and_b32 v{vd}, 7, v{vLN}\nv_xor_b32 v{vd}, v{vd}, v{vt}\nv_lshlrev_b32 v{vd}, 4, v{vd}')
        a(f'v_lshrrev_b32 v{vt}, 3, v{vLN}\nv_lshl_add_u32 v{vd}, v{vt}, 10, v{vd}')

    def tr_parts(self, c0, r, wpart):
        a = self.a
        a(f'v_bfe_u32 v{c0}, v{vLN}, 4, 1\nv_lshlrev_b32 v{c0}, 5, v{c0}\nv_and_b32 v{r}, 3, v{vLN}\nv_lshl_add_u32 v{c0}, v{r}, 3, v{c0}\nv_bfe_u32 v{r}, v{vLN}, 2, 2')
        a(f's_and_b32 s{sT0}, s{sSW}, 1\nv_lshrrev_b32 v{wpart}, 1, v{r}\nv_xor_b32 v{wpart}, s{sT0}, v{wpart}\nv_lshl_add_u32 v{wpart}, v{wpart}, 6, v{c0}\nv_lshl_add_u32 v{wpart}, v{r}, 7, v{wpart}')

    def prefetch(self, ptrs, vd):
        a = self.a
        a(f's_lshr_b32 s{sT0}, s2, 3\ns_lshl_b32 s{sT0}, s{sT0}, 2\ns_add_u32 s{sT0}, s{sT0}, s{sSW}\ns_lshl_b32 s{sT0}, s{sT0}, 12')
        for p in ptrs:
            self.srd(SOUT, P(p), 512 * 1024)
            a(f'buffer_load_dword v{vEP}, v{vd}, s[{SOUT}:{SOUT+3}], s{sT0} offen')

    def attention(self):
        a = self.a
        K, V, S0, O, Q = 0, 64, 192, 224, 240
        vIDX, vA16, vA8, vQA, vL8 = 244, 245, 246, 247, 248
        R = dict(K=K, V=V, S0=S0, O=O, Q=Q, vIDX=vIDX, vA16=vA16, vA8=vA8, vQA=vQA, vL8=vL8, vM=vEP)
        a(f'v_and_b32 v{Q}, 11, v{vLN}\nv_cmp_eq_u32 vcc, 0, v{Q}\nv_mov_b32 v{Q}, 0x3f803f80\nv_cndmask_b32 v{vT}, 0, v{Q}, vcc')
        MK = opt('mask', 0)
        self.masked = lambda i: (MK >> i) & 1
        for i in range(16):
            for r in range(0 if self.masked(i) else 4, 8): a(f'v_mov_b32 v{V+8*i+r}, v{vT}')
        a(f'v_lshlrev_b32 v{vL8}, 3, v{vLN}\nv_mov_b32 v{vIDX}, 0xdddd')
        def init_state(ph0):
            for i in range(16): a(f'v_mov_b32 v{O+i}, 0')
            a(f's_mov_b32 s{sTJ}, s{sSW}\ns_mov_b32 s{sPH}, {ph0}')
            a(f's_lshl_b32 s{sT0}, s{sTJ}, 10\nv_add_u32 v{vQA}, s{sT0}, v{vL16}')
            a(f's_lshl_b32 s{sT0}, s{sTJ}, 11\nv_add_u32 v{vA16}, s{sT0}, v{vL16}\ns_lshl_b32 s{sT0}, s{sTJ}, 9\nv_add_u32 v{vA8}, s{sT0}, v{vL8}')
        init_state(0)
        FS = opt('fs', 7)
        a(f'v_lshlrev_b32 v{S0+4}, {FS}, v{vLN}\nv_mov_b32 v{S0+3}, 0\ns_getreg_b32 s{sXC}, hwreg(HW_REG_XCC_ID)')
        a(f's_lshl_b32 s{sT3}, s{sWV}, {FS + 6}\ns_add_u32 s{sT3}, s{sT3}, {WS_KVFLAG:#x}')
        a(f's_lshl_b32 s{sT4}, s{sWV}, 15\ns_add_u32 s{sT4}, s{sT4}, {WS_KVIMG:#x}\ns_lshl_b32 s{sT0}, s{sCG}, 12\ns_add_u32 s{sT4}, s{sT4}, s{sT0}')
        a(f's_lshl_b32 s{sOW}, s{sRB}, 16\ns_lshl_b32 s{sT0}, s{sCG}, 12\ns_add_u32 s{sOW}, s{sOW}, s{sT0}\ns_add_u32 s{sOW}, s{sOW}, {WS_OBUF:#x}')
        a(f's_add_u32 s{sT0}, s{sSW}, 1\ns_and_b32 s{sT0}, s{sT0}, 3\ns_lshl_b32 s{sT0}, s{sT0}, 10\ns_add_u32 s{sOW}, s{sOW}, s{sT0}')
        a(f's_mov_b32 s{sM0}, 0xffff\ns_mov_b32 s{sM0+1}, 0xffff')
        a(f's_lshl_b32 s{sOB}, s{sRB}, 16\ns_lshr_b32 s{sT0}, s{sSW}, 1\ns_lshl_b32 s{sT0}, s{sT0}, 2\ns_and_b32 s{sT2}, s{sCG}, 3\ns_add_u32 s{sT0}, s{sT0}, s{sT2}\ns_lshl_b32 s{sT0}, s{sT0}, 12')
        a(f's_add_u32 s{sOB}, s{sOB}, s{sT0}\ns_add_u32 s{sOB}, s{sOB}, {WS_OBUF:#x}\ns_mov_b32 s{sPRE}, 0')
        self.tr_parts(0, 1, 2)
        a(f'v_lshrrev_b32 v1, 5, v{vLN}\nv_lshl_add_u32 v2, v1, 9, v2\ns_lshr_b32 s{sT0}, s{sSW}, 1\ns_lshl_b32 s{sT0}, s{sT0}, 15\ns_add_u32 s{sT0}, s{sT0}, {L_A1}\nv_add_u32 v{vLN}, s{sT0}, v2')
        self.get_tag()
        a(f's_waitcnt vmcnt(0)')
        self.sig(F_L6)
        self.stamp(3)
        self.wait(F_KVD, sleep=1)
        if opt('pf1', 0):
            a(f's_lshr_b32 s{sT0}, s2, 3\ns_lshl_b32 s{sT0}, s{sT0}, 2\ns_add_u32 s{sT0}, s{sT0}, s{sSW}\ns_lshl_b32 s{sT0}, s{sT0}, 12')
            for k, p in enumerate((8, 9)):
                self.srd(SB, P(p), 512 * 1024)
                for n in range(4): a(f'buffer_load_dwordx4 {q4(4 + 16*k + 4*n)}, v{vL16}, s[{SB}:{SB+3}], s{sT0} offen offset:{1024*n}')
            self.srd(SB, P(5), 2048 * 1024)
            a(f's_lshr_b32 s{sT0}, s{sT0}, 1\ns_and_b32 s{sT1}, s2, 7\ns_lshl_b32 s{sT1}, s{sT1}, 18\ns_add_u32 s{sT0}, s{sT0}, s{sT1}')
            for n in range(2): a(f'buffer_load_dwordx4 {q4(36 + 4*n)}, v{vL16}, s[{SB}:{SB+3}], s{sT0} offen offset:{1024*n}')
        if opt('pw', 12): a(f's_sleep {opt("pw", 12)}')
        a(f's_mov_b32 s{sCNT}, 100000')
        KW = opt('kw', 1)
        a(f's_lshr_b32 s{sT0}, s2, 3\ns_lshl_b32 s{sT0}, s{sT0}, 2\ns_add_u32 s{sT0}, s{sT0}, s{sSW}\ns_lshl_b32 s{sT0}, s{sT0}, 10\ns_add_u32 s{sT0}, s{sT0}, {WS_KVIMG:#x}')
        kwl = f'buffer_load_dwordx4 {q4(S0+8)}, v{vL16}, s[{SWS}:{SWS+3}], s{sT0} offen sc1'
        if KW == 2: a(kwl)
        a('L_kvp:')
        a(f'buffer_load_dwordx3 v[{S0}:{S0+2}], v{S0+4}, s[{SWS}:{SWS+3}], s{sT3} offen sc1')
        if KW == 1: a(kwl)
        a(f's_waitcnt vmcnt({1 if KW == 1 else 0})\nv_cmp_ne_u32 vcc, s{sTAG}, v{S0}\ns_cbranch_vccz L_kvpd')
        a(f's_sleep {opt("kvsleep", 4)}\ns_sub_u32 s{sCNT}, s{sCNT}, 1\ns_cbranch_scc0 L_kvp')
        a('L_kvpd:')
        if self.stamps: a(f's_mov_b32 s{sST+13}, s{sCNT}')
        self.stamp(4)
        for i in range(opt('nup', 7)): a(self.kvload(R, i))
        a(f'ds_max_u32 v{S0+3}, v{S0+1} offset:{F_KMAX}')
        a(f's_lshr_b32 s{sT0}, s{sRB}, 3\ns_cmp_eq_u32 s{sT0}, s{sSW}\ns_cbranch_scc0 L_noxc')
        a(f'v_cmp_ne_u32 vcc, s{sXC}, v{S0+2}\ns_bitcmp1_b32 s{sRB}, 2\ns_cselect_b32 s{sT0}, vcc_hi, vcc_lo\ns_cmp_eq_u32 s{sT0}, 0\ns_cselect_b32 s{sT0}, 1, 0')
        a(f'v_mov_b32 v{S0+2}, s{sT0}\nds_write_b32 v{S0+3}, v{S0+2} offset:{F_XC}')
        a('L_noxc:')
        self.wait(F_QP, sleep=0)
        a(f'ds_read_b128 {q4(Q)}, v{vQA} offset:{L_QF}')
        self.stamp(5)
        self.attn_fast(R)
        a('L_attn_epi:')
        if 'phs' in OPT:
            for p in range(8): a(f's_mov_b32 s{sST+2*p}, s{16+4*p}\ns_mov_b32 s{sST+2*p+1}, s{17+4*p}')
            a(f's_lshl_b32 s{sT0}, s2, 3\ns_add_u32 s{sT0}, s{sT0}, s{sWV}\ns_lshl_b32 s{sT0}, s{sT0}, 6\ns_add_u32 s{sT0}, s{sT0}, {WS_DBG + 0x100000:#x}')
            a('s_mov_b64 exec, 1')
            for i in range(16):
                a(f'v_mov_b32 v{vT}, s{sST+i}\nbuffer_store_dword v{vT}, off, s[{SWS}:{SWS+3}], s{sT0} offset:{4*i}')
            a('s_waitcnt vmcnt(0)\ns_endpgm')
        self.oproj_pre()
        self.stamp(6)
        self.publish(R, 0x8000, F_AY)
        if 'nosvc' in OPT or 'stop' in OPT: self.end()
        else: self.oproj()
        a('L_check6:')
        self.wait(F_S[9], sleep=1)
        a('s_branch L_checked6')
        a('L_check1:')
        self.wait(F_S[0], sleep=1)
        a(f'v_cmp_ne_u32 vcc, 1, v{vT}\ns_cbranch_vccz L_checked1')
        self.wait(F_S[9], sleep=1)
        a(f's_mov_b32 s{sXC}, 0')
        vL4, vW = vA8, vA16
        self.sig(F_SL[0]); self.wait(F_SL[0])
        a(f'v_lshrrev_b32 v{vL4}, 2, v{vL16}\ns_mov_b32 s{sT2}, 0\ns_lshl_b32 s{sT3}, s{sWV}, 11\nv_add_u32 v{vW}, s{sT3}, v{vL4}')
        a('L_slow_pre:')
        a(f's_lshl_b32 s{sT0}, s{sT2}, 10\nv_add_u32 v{vT}, s{sT0}, v{vL16}\nds_read_b128 {q4(Q)}, v{vT} offset:{L_QF}\ns_waitcnt lgkmcnt(0)')
        a(f'v_mov_b32 v{S0+20}, 0xff800000')
        for i in range(16):
            a(f'v_mfma_f32_32x32x16_bf16 {t16(S0)}, {q4(K+4*i)}, {q4(Q)}, 0')
            for r in range(0, 16, 2): a(f'v_max3_f32 v{S0+20}, v{S0+r}, v{S0+r+1}, v{S0+20}')
        a(f'v_mov_b32 v{S0+21}, v{S0+20}\nv_permlane32_swap_b32 v{S0+20}, v{S0+21}\nv_max_f32 v{S0+20}, v{S0+20}, v{S0+21}')
        a(f'ds_write_b32 v{vW}, v{S0+20} offset:{L_ACCD}\nv_add_u32 v{vW}, 256, v{vW}')
        a(f's_add_u32 s{sT2}, s{sT2}, 1\ns_cmp_lt_u32 s{sT2}, 8\ns_cbranch_scc1 L_slow_pre')
        self.sig(F_SL[1]); self.wait(F_SL[1])
        a(f's_lshl_b32 s{sT0}, s{sWV}, 8\nv_add_u32 v{vW}, s{sT0}, v{vL4}')
        for t in range(2):
            for w in range(4): a(f'ds_read_b32 v{S0+4*t+w}, v{vW} offset:{L_ACCD + 2048*w + 1024*t}')
        a(f'v_and_b32 v{vW}, 0x7c, v{vL4}\ns_lshl_b32 s{sT0}, s{sWV}, 7\ns_add_u32 s{sT0}, s{sT0}, {L_MX}\nv_add_u32 v{vW}, s{sT0}, v{vW}')
        a('s_waitcnt lgkmcnt(0)')
        for t in range(2):
            b = S0 + 4 * t
            a(f'v_max3_f32 v{b}, v{b}, v{b+1}, v{b+2}\nv_max_f32 v{b}, v{b}, v{b+3}\nds_write_b32 v{vW}, v{b} offset:{512*t}')
        init_state(16)
        a(f'v_mov_b32 v{S0}, 0\nv_mov_b32 v{S0+1}, 17\nds_write_b64 v{vA8}, {pr(S0)} offset:{L_ACCF+2048}')
        a(f'ds_write_b128 v{vA16}, {q4(O)} offset:{L_ACCD+8192}\nds_write_b128 v{vA16}, {q4(O)} offset:{L_ACCD+8192+1024}')
        self.sig(F_SL[2]); self.wait(F_SL[2])
        a(f'ds_read_b128 {q4(Q)}, v{vQA} offset:{L_QF}')
        self.attn_loop(R, True)
        a('s_branch L_attn_epi')

    QD = [r for i in range(16) for r in (4 * i, 64 + 8 * i, 68 + 8 * i)]
    def WF(self, st): return self.QD[st]
    def OF(self, q, n): return self.QD[16 + 4 * ((q + 3) % 4) + 16 * (q // 4) + n]
    def wo_read(self, st, vWO): return f'ds_read_b64_tr_b16 {pr(self.WF(st))}, v{vWO} offset:{2048*st}\nds_read_b64_tr_b16 {pr(self.WF(st)+2)}, v{vWO} offset:{2048*st+1024}'
    def o_load(self, q):
        t = f's_xor_b32 s{sT0}, s{sOB}, {4096*(q%4) + 0x8000*(q//4):#x}'
        for n in range(4): t += f'\nbuffer_load_dwordx4 {q4(self.OF(q, n))}, v{vL16}, s[{SWS}:{SWS+3}], s{sT0} offen offset:{1024*n} sc1'
        return t

    def kvload(self, R, i):
        K, V = R['K'], R['V']
        t = ''
        if i % 2 == 0 and i > 0: t += f's_xor_b32 s{sT4}, s{sT4}, {((i // 2) ^ (i // 2 - 1)) << 12:#x}\n'
        o = (i % 2) * 2048
        t += f'buffer_load_dwordx4 {q4(K+4*i)}, v{vL16}, s[{SWS}:{SWS+3}], s{sT4} offen offset:{o} sc1\n'
        if self.masked(i):
            t += f's_mov_b64 exec, s[{sM0}:{sM0+1}]\nbuffer_load_dwordx4 {q4(V+8*i)}, v{vL16}, s[{SWS}:{SWS+3}], s{sT4} offen offset:{o+1024} sc1\n'
            t += f'buffer_load_dwordx4 {q4(V+8*i+4)}, v{vL16}, s[{SWS}:{SWS+3}], s{sT4} offen offset:{o+1024+256} sc1\ns_mov_b64 exec, -1'
        else:
            t += f'buffer_load_dwordx4 {q4(V+8*i)}, v{vL16}, s[{SWS}:{SWS+3}], s{sT4} offen offset:{o+1024} sc1'
        return t

    def publish(self, R, off, flag):
        a = self.a; O = R['O']
        a(f'v_rcp_f32 v{O+8}, v{O+8}\ns_add_u32 s{sT0}, s{sOW}, {off}')
        for r in range(0, 8, 2): a(f'v_pk_mul_f32 {pr(O+r)}, {pr(O+8)}, {pr(O+r)} op_sel:[0,0] op_sel_hi:[0,1]')
        for r in range(4): a(f'v_cvt_pk_bf16_f32 v{O+r}, v{O+2*r}, v{O+2*r+1}')
        self.xstore([f'buffer_store_dwordx4 {q4(O)}, v{vL16}, s[{SWS}:{SWS+3}], s{sT0} offen'])
        if off: self.sig(flag)

    def attn_fast(self, R):
        a = self.a
        K, V, S0, O, Q = R['K'], R['V'], R['S0'], R['O'], R['Q']
        vIDX, vA16, vA8, vQA, vL8 = R['vIDX'], R['vA16'], R['vA8'], R['vQA'], R['vL8']
        NUP = opt('nup', 7)
        sK = [[50, 51, 80], [sT1, sT2, sT3], [sT5, sPH, sTJ]]
        for k in range(1, 4):
            a(f's_sub_u32 s{sT0}, s{sSW}, {k}\ns_and_b32 s{sT0}, s{sT0}, 3\ns_lshl_b32 s{sK[k-1][0]}, s{sT0}, 9\ns_lshl_b32 s{sK[k-1][1]}, s{sT0}, 10\ns_lshl_b32 s{sK[k-1][2]}, s{sT0}, 11')
        def Sb(i): return S0 + 16 * (i % 2)
        def E(i, r): return f'v_exp_f32 v{Sb(i)+r}, v{Sb(i)+r}'
        def QK(i): return f'v_mfma_f32_32x32x16_bf16 {t16(Sb(i))}, {q4(K+4*(i%16))}, {q4(Q)}, 0'
        def PV(i, h): return f'v_smfmac_f32_32x32x32_bf16 {t16(O)}, {q4(V+8*(i%16)+4*h)}, v[{Sb(i)+8*h}:{Sb(i)+8*h+7}], v{vIDX}'
        def rd(st): return [f'ds_read_b64 {pr(O+8)}, v{vA8} offset:{L_ACCF+2048*st}', f'ds_read_b128 {q4(O)}, v{vA16} offset:{L_ACCD+8192*st}', f'ds_read_b128 {q4(O+4)}, v{vA16} offset:{L_ACCD+8192*st+1024}']
        def wr(st): return [f'ds_write_b128 v{vA16}, {q4(O)} offset:{L_ACCD+8192*st}', f'ds_write_b128 v{vA16}, {q4(O+4)} offset:{L_ACCD+8192*st+1024}', f'ds_write_b64 v{vA8}, {pr(O+8)} offset:{L_ACCF+2048*st}']
        nl = lambda i: 3 if self.masked(i) else 2
        def plain(p, i):
            e = [E(i, r) for r in range(16)]
            w = []; sw = []; ld = []
            if p == 0:
                KR = opt('kr', 2)
                issued = sum(nl(t) for t in range(min(16, KR * i + NUP)))
                VW = opt('vw', 2)
                if i % VW == 0 or i < 2:
                    last = i if i < 2 else min(15, i + VW - 1)
                    needed = sum(nl(t) for t in range(last + 1)) + (1 if last < 15 else 0)
                    w = [f's_waitcnt vmcnt({issued - needed})']
                if not self.masked(i): sw = [f'v_permlane16_swap_b32 v{V+8*i+r}, v{V+8*i+4+r}' for r in range(4)]
                for t in range(KR * i + NUP, min(16, KR * (i + 1) + NUP)):
                    ld += [self.kvload(R, t)]
                    if t == 15: ld += [f'ds_write_b32 v{vS}, v{vONE} offset:{F_A1}']
            qk = [QK(i + 1)]
            if i == 15:
                if p < 7: w += ['s_waitcnt lgkmcnt(0)']
                else: qk = []
            if i == 14 and p < 7:
                if p % 2 == 1: ld += [f'v_add_u32 v{vQA}, s{sK[p//2][1]}, v{vL16}']
                ld += [f'ds_read_b128 {q4(Q)}, v{vQA} offset:{L_QF + 4096*((p+1)%2)}']
                if p in (1, 6): ld += [f'ds_read_b32 v{vT}, v{vF} offset:{F_S[0] if p == 1 else F_S[9]}']
                if p == 6: ld += [f'ds_read_b32 v{vEP}, v{vF} offset:{F_XC}']
            if i == 15 and p in (1, 6):
                sw = [f'v_cmp_ne_u32 vcc, 1, v{vT}'] + ([f'v_readfirstlane_b32 s{sXC}, v{vEP}'] if p == 6 else [])
                ld = [f's_cbranch_vccnz L_check{p}', f'L_checked{p}:']
            if p == 7 and opt('pre', 1) and 'nosvc' not in OPT and 'stop' not in OPT:
                P0 = opt('pre0', 5)
                if i == P0 - 1: ld += [f'ds_read_b32 v{vT}, v{vF} offset:{F_S[5]}']
                if i == P0: ld += [f's_waitcnt lgkmcnt(0)\nv_cmp_eq_u32 vcc, 0, v{vT}\ns_cmp_eq_u64 vcc, 0\ns_cselect_b32 s{sPRE}, 1, 0']
                if i == opt('rel', 15): ld += [f'ds_write_b32 v{vS}, v{vONE} offset:{F_AX}']
                grp = []
                k = i - P0 - 1
                if 0 <= k < 4: grp = [self.wo_read(st, vLN) for st in range(4 * k, 4 * k + 4)]; top = 4 * k + 3
                if 4 <= k < 8: grp = [self.o_load((k - 3) % 4)]; top = 16 + 4 * (k - 4) + 3
                if grp:
                    assert top // 3 < i, (top, i)
                    L = a.label('PF')
                    ld += [f's_cmp_eq_u32 s{sPRE}, 0\ns_cbranch_scc1 {L}'] + grp + [f'{L}:']
            seq = e[0:2] + ([] if (p == 0 and i == 0) else [PV(i - 1, 1)]) + e[2:5] + w + qk + sw + e[5:7] + ld + e[7:11] + [PV(i, 0)] + e[11:16]
            for x in seq: a(x)
        a(f's_setprio {opt("aprio", 1)}')
        a(f's_waitcnt vmcnt({sum(nl(t) for t in range(NUP)) - 1}) lgkmcnt(0)')
        a(QK(0))
        NW = opt('nw', 5)
        for p in range(8):
            if p == 0:
                plain(0, 0); plain(0, 1)
            else:
                e = [E(0, r) for r in range(16)]
                for x in e[0:2] + [PV(15, 1)] + e[2:5] + [QK(1)] + e[5:8]: a(x)
                so, si = (p - 1) % 2, p % 2
                if p < 7:
                    for x in [wr(so)[0], f'v_mov_b32 v{O+9}, {p+1}', wr(so)[1], wr(so)[2]]: a(x)
                else:
                    self.publish(R, 0, F_AX)
                if p % 2 == 0: a(f'v_add_u32 v{vA8}, s{sK[p//2-1][0]}, v{vL8}\nv_add_u32 v{vA16}, s{sK[p//2-1][2]}, v{vL16}')
                if p == 1:
                    for r in range(0, 8, 2): a(f'v_pk_mul_f32 {pr(O+r)}, {pr(O+10)}, {pr(O+10)}')
                    a(f'v_mov_b32 v{O+8}, 0')
                    for x in e[8:11] + [PV(0, 0)] + e[11:16]: a(x)
                    plain(p, 1)
                else:
                    for x in rd(si) + e[8:16]: a(x)
                    e = [E(1, r) for r in range(16)]
                    for x in e[0:NW]: a(x)
                    a(f's_waitcnt lgkmcnt(0)\nv_cmp_gt_u32 vcc, {p}, v{O+9}')
                    a(e[NW])
                    a(f's_cbranch_vccnz L_hw{p}')
                    a(f'L_hd{p}:')
                    n = NW + 1
                    for x in [PV(0, 0)] + e[n:n+3] + [PV(0, 1)] + e[n+3:n+6] + [QK(2)] + e[n+6:n+9] + [PV(1, 0)] + e[n+9:16]: a(x)
            for i in range(2, 16):
                plain(p, i)
            if p == 0: self.stamp(7)
            if 'phs' in OPT: a(f's_memtime s[98:99]\ns_memrealtime s[{16+4*p}:{17+4*p}]\ns_waitcnt lgkmcnt(0)\ns_mov_b32 s{17+4*p}, s98')
        a('s_nop 0')
        a(PV(15, 1))
        a(f's_branch L_attn_epi')
        for p in range(2, 8):
            a(f'L_hw{p}:')
            a(f's_mov_b32 s{sCNT}, {SPIN}')
            a(f'L_hl{p}:')
            a(f's_sleep 1')
            for x in rd(p % 2): a(x)
            a(f's_waitcnt lgkmcnt(0)\nv_cmp_gt_u32 vcc, {p}, v{O+9}\ns_cbranch_vccz L_hd{p}\ns_sub_u32 s{sCNT}, s{sCNT}, 1\ns_cbranch_scc0 L_hl{p}\ns_branch L_hd{p}')

    def attn_loop(self, R, slow):
        a = self.a
        K, V, S0, O, Q = R['K'], R['V'], R['S0'], R['O'], R['Q']
        vIDX, vA16, vA8, vQA, vL8, vM = R['vIDX'], R['vA16'], R['vA8'], R['vQA'], R['vL8'], R['vM']
        sf = '_s' if slow else '_f'
        PH0 = 16 if slow else 0
        NUP = opt('nup', 6)
        def Sb(i): return S0 + 16 * (i % 2)
        def E(i, r):
            s = Sb(i) + r
            return (f'v_sub_f32 v{s}, v{s}, v{vM}\n' if slow else '') + f'v_exp_f32 v{s}, v{s}'
        def QK(i): return f'v_mfma_f32_32x32x16_bf16 {t16(Sb(i))}, {q4(K+4*(i%16))}, {q4(Q)}, 0'
        def PV(i, h): return f'v_smfmac_f32_32x32x32_bf16 {t16(O)}, {q4(V+8*(i%16)+4*h)}, v[{Sb(i)+8*h}:{Sb(i)+8*h+7}], v{vIDX}'
        rd = [f'ds_read_b64 {pr(O+8)}, v{vA8} offset:{L_ACCF}', f'ds_read_b128 {q4(O)}, v{vA16} offset:{L_ACCD}', f'ds_read_b128 {q4(O+4)}, v{vA16} offset:{L_ACCD+1024}']
        wr = [f'ds_write_b128 v{vA16}, {q4(O)} offset:{L_ACCD}', f'ds_write_b128 v{vA16}, {q4(O+4)} offset:{L_ACCD+1024}', f'ds_write_b64 v{vA8}, {pr(O+8)} offset:{L_ACCF}']
        def getm():
            if slow:
                a(f'v_lshrrev_b32 v{vT}, 2, v{vL16}\nv_and_b32 v{vT}, 0x7c, v{vT}\ns_lshl_b32 s{sT0}, s{sTJ}, 7\ns_add_u32 s{sT0}, s{sT0}, {L_MX}\nv_add_u32 v{vT}, s{sT0}, v{vT}')
                a(f'ds_read_b32 v{vM}, v{vT}\ns_waitcnt lgkmcnt(0)')
        nl = lambda i: 3 if self.masked(i) else 2
        def plain(i, ph0=False):
            e = [E(i, r) for r in range(16)]
            w = []; sw = []; ld = []
            if ph0 and not slow:
                issued = sum(nl(t) for t in range(min(16, i + NUP)))
                needed = sum(nl(t) for t in range(i + 1)) + (1 if i < 15 else 0)
                w = [f's_waitcnt vmcnt({issued - needed})']
                if not self.masked(i): sw = [f'v_permlane16_swap_b32 v{V+8*i+r}, v{V+8*i+4+r}' for r in range(4)]
                if i + NUP < 16: ld = [self.kvload(R, i + NUP)]
                if i + NUP == 15: ld += [f'ds_write_b32 v{vS}, v{vONE} offset:{F_A1}']
            if i == 15: w += ['s_waitcnt lgkmcnt(0)']
            seq = e[0:2] + ([] if (ph0 and i == 0) else [PV(i - 1, 1)]) + e[2:5] + w + [QK(i + 1)] + sw
            if i == 14:
                seq += [f's_add_u32 s{sT1}, s{sPH}, 1\ns_lshr_b32 s{sT2}, s{sT1}, 1\ns_sub_u32 s{sT2}, s{sSW}, s{sT2}', e[5],
                        f's_and_b32 s{sT2}, s{sT2}, 3\ns_and_b32 s{sT1}, s{sT1}, 1\ns_lshl_b32 s{sT1}, s{sT1}, 2', e[6],
                        f's_add_u32 s{sT2}, s{sT2}, s{sT1}\ns_lshl_b32 s{sT0}, s{sT2}, 10', e[7], f'v_add_u32 v{vQA}, s{sT0}, v{vL16}', e[8],
                        f'ds_read_b128 {q4(Q)}, v{vQA} offset:{L_QF}'] + e[9:11]
            else:
                seq += e[5:11]
            seq += [PV(i, 0)] + e[11:13] + ld + e[13:16]
            for x in seq: a(x)
        a(f's_setprio {opt("aprio", 1)}')
        getm()
        a(f's_waitcnt vmcnt({sum(nl(t) for t in range(NUP)) - 1}) lgkmcnt(0)')
        a(QK(0))
        if slow:
            plain(0, True); plain(1)
            a(f's_branch L_mid{sf}')
        else:
            for i in range(16): plain(i, True)
            self.stamp(7)
        a('.p2align 6')
        a(f'L_loop{sf}:')
        a(f's_add_u32 s{sPH}, s{sPH}, 1\ns_mov_b32 s{sTJ}, s{sT2}')
        getm()
        e = [E(0, r) for r in range(16)]
        for x in e[0:2] + [PV(15, 1), e[2], f's_add_u32 s{sT1}, s{sPH}, 1', e[3], f's_lshl_b32 s{sT3}, s{sTJ}, 9', e[4], QK(1), f's_lshl_b32 s{sT4}, s{sTJ}, 11', e[5], e[6],
                           f's_cmp_eq_u32 s{sPH}, {PH0 + 7}', e[7], f's_cbranch_scc1 L_finx{sf}',
                           wr[0], f'v_mov_b32 v{O+9}, s{sT1}', e[8], wr[1], e[9], wr[2]]: a(x)
        a(f'L_finxd{sf}:')
        for x in [f'v_add_u32 v{vA8}, s{sT3}, v{vL8}', f'v_add_u32 v{vA16}, s{sT4}, v{vL16}', rd[0], e[10], rd[1], e[11], rd[2]] + e[12:16]: a(x)
        e0 = e
        e = [E(1, r) for r in range(16)]
        NW = opt('nw', 6)
        for x in e[0:NW]: a(x)
        a(f's_waitcnt lgkmcnt(0)\nv_cmp_gt_u32 vcc, s{sPH}, v{O+9}\ns_cbranch_vccnz L_hw{sf}')
        a(f'L_hd{sf}:')
        for x in [PV(0, 0)] + e[NW:NW+3] + [PV(0, 1)] + e[NW+3:NW+6] + [QK(2)] + e[NW+6:NW+9] + [PV(1, 0)] + e[NW+9:16]: a(x)
        a(f'L_mid{sf}:')
        for i in range(2, 16):
            plain(i)
        a(f's_cmp_lt_u32 s{sPH}, {PH0 + 7}\ns_cbranch_scc1 L_loop{sf}')
        a(PV(15, 1))
        a(f's_nop 10\ns_branch L_end{sf}')
        a(f'L_finx{sf}:')
        a(e0[8]); a(e0[9])
        self.publish(R, 0, F_AX)
        a(f's_branch L_finxd{sf}')
        a(f'L_hw{sf}:')
        a(f's_mov_b32 s{sCNT}, {SPIN}')
        a(f'L_hl{sf}:')
        a(f's_sleep 1')
        for x in rd: a(x)
        a(f's_waitcnt lgkmcnt(0)\nv_cmp_gt_u32 vcc, s{sPH}, v{O+9}\ns_cbranch_vccz L_hd{sf}\ns_sub_u32 s{sCNT}, s{sCNT}, 1\ns_cbranch_scc0 L_hl{sf}\ns_branch L_hd{sf}')
        a(f'L_end{sf}:')

    def oproj_pre(self):
        a = self.a
        a('s_setprio 3')
        self.sig(F_AX)
        a(f'v_lshrrev_b32 v241, 9, v{vL16}\nv_bfe_u32 v243, v{vL16}, 2, 7\nv_lshl_add_u32 v243, v241, 14, v243\nv_mov_b32 v240, 0\nv_mov_b32 v241, 0')
        a(f's_and_b32 s{sT0}, s{sOW}, 0xc00\ns_lshl_b32 s{sT0}, s{sT0}, 1\nv_add_u32 v242, s{sT0}, v{vL16}\ns_xor_b32 s{sT0}, s{sT0}, 0x1000\nv_add_u32 v245, s{sT0}, v{vL16}\nv_xor_b32 v246, 8, v{vS}')

    def oproj(self):
        a = self.a
        vZ, vOA, vXW, vXR, vP = 240, 243, 242, 245, 246
        OA = [192, 208]
        sPEND, sKH, sOUT = sT3, sT1, sT5
        order = (1, 2, 3, 0)
        for h in range(2): a(f'v_mfma_f32_32x32x8_bf16 {t16(OA[h])}, {pr(vZ)}, {pr(vZ)}, 0')
        loads = lambda q: a(self.o_load(q))
        def proc(q, lab):
            R_ = [self.OF(q, n) + r for n in range(4) for r in range(4)]
            a(f'v_max3_u32 v{vT}, v{R_[0]}, v{R_[1]}, v{R_[2]}')
            for r in range(3, 15, 2): a(f'v_max3_u32 v{vT}, v{R_[r]}, v{R_[r+1]}, v{vT}')
            a(f'v_max_u32 v{vT}, v{R_[15]}, v{vT}\nv_cmp_eq_u32 vcc, -1, v{vT}\ns_cbranch_vccnz {lab}')
            for n in range(4):
                a(f'v_mfma_f32_32x32x16_bf16 {t16(OA[q//4])}, {q4(self.OF(q, n))}, {q4(self.WF(4*(q%4)+n))}, {t16(OA[q//4])}')
            a(f's_bitset0_b32 s{sPEND}, {q}')
            a(f'{lab}:')
        a(f's_mov_b32 s{sPEND}, 0xff\ns_cmp_eq_u32 s{sPRE}, 0\ns_cbranch_scc1 L_nopre')
        a('s_waitcnt vmcnt(1) lgkmcnt(0)')
        proc(1, 'L_o0_1'); proc(2, 'L_o0_2')
        self.wait(F_AY, sleep=0)
        a('s_branch L_prej')
        a('L_nopre:')
        self.wait(F_S[5], sleep=1)
        self.wait(F_AY, sleep=0)
        for q in order: loads(q)
        for st in range(16): a(self.wo_read(st, vLN))
        a('s_waitcnt vmcnt(0) lgkmcnt(0)')
        proc(1, 'L_o0b_1'); proc(2, 'L_o0b_2')
        a('L_prej:')
        self.stamp(11)
        loads(5); loads(6)
        proc(3, 'L_o0_3')
        loads(7)
        proc(0, 'L_o0_0')
        loads(4)
        self.stamp(12)
        self.srd(SOUT, P(14), 2048 * 4096)
        a(f's_lshr_b32 s{sKH}, s{sSW}, 1\ns_mov_b32 s{sCNT}, 50000')
        a(f's_lshl_b32 s{sOUT}, s{sRB}, 18\ns_lshl_b32 s{sT0}, s{sCG}, 1\ns_and_b32 s{sT2}, s{sWV}, 1\ns_add_u32 s{sT0}, s{sT0}, s{sT2}\ns_lshl_b32 s{sT0}, s{sT0}, 7\ns_add_u32 s{sOUT}, s{sOUT}, s{sT0}\ns_lshl_b32 s{sT0}, s{sKH}, 17\ns_add_u32 s{sOUT}, s{sOUT}, s{sT0}')
        for k, q in enumerate(order):
            a(f's_waitcnt vmcnt({12 - 4*k})')
            proc(4 + q, f'L_o1_{q}')
        a('L_oretry:')
        a(f's_cmp_eq_u32 s{sPEND}, 0\ns_cbranch_scc1 L_odone\ns_sub_u32 s{sCNT}, s{sCNT}, 1\ns_cbranch_scc1 L_odone')
        for q in range(8):
            a(f's_bitcmp0_b32 s{sPEND}, {q}\ns_cbranch_scc1 L_ol_{q}')
            loads(q)
            a(f'L_ol_{q}:')
        a('s_waitcnt vmcnt(0)')
        for q in range(8):
            a(f's_bitcmp0_b32 s{sPEND}, {q}\ns_cbranch_scc1 L_o2_{q}')
            proc(q, f'L_o2_{q}')
        a('s_branch L_oretry')
        a('L_odone:')
        if self.stamps: a(f's_mov_b32 s{sST+14}, s{sCNT}')
        self.stamp(1)
        fl = {0: '', 1: ' sc1', 2: ' nt', 3: ' sc0 sc1', 4: ' sc1 nt', 5: ' sc0 nt', 6: ' sc0 sc1 nt'}[opt('ofl', 2)]
        a(f's_nop 7\ns_cmp_eq_u32 s{sKH}, 0\ns_cbranch_scc0 L_ohi')
        for kh in range(2):
            keep, send = OA[kh], OA[1 - kh]
            for q in range(4): a(f'ds_write_b128 v{vXW}, {q4(send+4*q)} offset:{L_ACCD + 8192*(q//2) + 1024*(q%2)}')
            self.sig(F_OX)
            self.wait(F_OX, sleep=0, va=vP)
            for q in range(4): a(f'ds_read_b128 {q4(4*q)}, v{vXR} offset:{L_ACCD + 8192*(q//2) + 1024*(q%2)}')
            for r in range(16):
                if r % 4 == 0: a(f's_waitcnt lgkmcnt({3 - r//4})')
                a(f'v_add_f32 v{r}, v{r}, v{keep+r}\ns_add_u32 s{sT0}, s{sOUT}, {((r % 4) + 8 * (r // 4)) * 4096}')
                a(f'buffer_store_dword v{r}, v{vOA}, s[{SOUT}:{SOUT+3}], s{sT0} offen{fl}')
            self.end()
            if kh == 0: a('L_ohi:')

    def kvproj(self):
        a = self.a
        vXA, vWA, vU, vO, vZ, D = 176, 177, 178, 179, 180, 184
        a(f's_lshr_b32 s{sT5}, s{sCG}, 1')
        a(f'v_and_b32 v{vT}, 15, v{vLN}\ns_lshl_b32 s{sT0}, s{sT5}, 4\nv_add_u32 v{vO}, s{sT0}, v{vT}\nv_mul_u32_u24 v{vXA}, 1040, v{vO}')
        a(f'v_lshrrev_b32 v{vU}, 4, v{vLN}\nv_lshl_add_u32 v{vXA}, v{vU}, 4, v{vXA}\nv_add_u32 v{vXA}, {L_A1}, v{vXA}')
        a(f'v_lshlrev_b32 v{vWA}, 3, v{vT}\nv_lshl_add_u32 v{vWA}, v{vU}, 8, v{vWA}\nv_and_b32 v181, 1, v{vU}\nv_lshl_add_u32 v{vWA}, v181, 7, v{vWA}\nv_xor_b32 v181, 128, v{vWA}\nv_add_u32 v{vWA}, {L_WKV}, v{vWA}\nv_add_u32 v181, {L_WKV}, v181')
        a(f's_and_b32 s{sT1}, s{sCG}, 1\ns_xor_b32 s{sT2}, s{sT1}, 1')
        a(f'v_lshrrev_b32 v{vO}, s{sT1}, v{vU}\nv_and_b32 v{vO}, 1, v{vO}\nv_lshlrev_b32 v{vO}, 9, v{vO}\nv_lshl_add_u32 v{vO}, v{vT}, 4, v{vO}')
        a(f'v_lshrrev_b32 v{vT}, s{sT2}, v{vU}\nv_and_b32 v{vT}, 1, v{vT}\nv_lshl_add_u32 v{vO}, v{vT}, 3, v{vO}')
        a(f's_lshl_b32 s{sT0}, s{sRB}, 1\ns_lshr_b32 s{sT2}, s{sT5}, 1\ns_add_u32 s{sT0}, s{sT0}, s{sT2}\ns_lshl_b32 s{sT0}, s{sT0}, 1\ns_add_u32 s{sT0}, s{sT0}, s{sT1}\ns_lshl_b32 s{sT0}, s{sT0}, 10')
        a(f's_and_b32 s{sT2}, s{sT5}, 1\ns_lshl_b32 s{sT2}, s{sT2}, 8\ns_add_u32 s{sT0}, s{sT0}, s{sT2}\ns_add_u32 s{sT3}, s{sT0}, {WS_KVIMG:#x}')
        a(f's_lshl_b32 s{sT4}, s{sRB}, 3\ns_add_u32 s{sT4}, s{sT4}, s{sCG}\ns_lshl_b32 s{sT4}, s{sT4}, {opt("fs", 7)}\ns_add_u32 s{sT4}, s{sT4}, {WS_KVFLAG:#x}')
        a(f'v_mov_b32 v{vZ}, 0')
        self.wait(F_L1, sleep=0)
        self.stamp(12)
        def rd(s):
            b = 128 + 8 * (s % 6)
            a(f'ds_read_b128 {q4(b)}, v{vXA} offset:{64*s}')
            a(f'ds_read_b64_tr_b16 {pr(b+4)}, v{vWA} offset:{1024*s}')
            a(f'ds_read_b64_tr_b16 {pr(b+6)}, v181 offset:{1024*s}')
        for s in range(4): rd(s)
        a(f's_bitcmp1_b32 s{sCG}, 0\ns_cbranch_scc1 L_kv_v')
        def chain(kind):
            for s in range(16):
                if s + 4 < 16: rd(s + 4)
                a(f's_waitcnt lgkmcnt({3 * min(4, 15 - s)})')
                b = 128 + 8 * (s % 6)
                A, B = (q4(b + 4), q4(b)) if kind == 'k' else (q4(b), q4(b + 4))
                a(f'v_mfma_f32_16x16x32_bf16 {q4(D)}, {A}, {B}, {"0" if s == 0 else q4(D)}')
            a(f'v_cvt_pk_bf16_f32 v188, v{D}, v{D+1}\nv_cvt_pk_bf16_f32 v189, v{D+2}, v{D+3}')
            a(f'buffer_store_dwordx2 v[188:189], v{vO}, s[{SWS}:{SWS+3}], s{sT3} offen sc1')
        chain('k')
        a(f'v_mul_f32 v190, v{D}, v{D}\nv_fmac_f32 v190, v{D+1}, v{D+1}\nv_fmac_f32 v190, v{D+2}, v{D+2}\nv_fmac_f32 v190, v{D+3}, v{D+3}')
        a('v_mov_b32 v191, v190\nv_permlane32_swap_b32 v190, v191\nv_add_f32 v190, v190, v191')
        a('v_mov_b32 v191, v190\nv_permlane16_swap_b32 v190, v191\nv_add_f32 v190, v190, v191')
        a('s_mov_b64 exec, 0xffff\ns_branch L_kv_fin')
        a('L_kv_v:')
        chain('v')
        a(f'v_max3_f32 v190, |v{D}|, |v{D+1}|, |v{D+2}|\nv_max_f32 v190, |v{D+3}|, v190')
        a(f's_mov_b32 s{sT1}, {f2u(2.0**50):#x}\nv_cmp_lt_f32 vcc, s{sT1}, v190\nv_mov_b32 v190, 0x7f800000\ns_mov_b64 exec, vcc')
        a('L_kv_fin:')
        a(f'ds_max_u32 v{vZ}, v190 offset:{F_KST}\ns_mov_b64 exec, -1\nds_read_b32 v183, v{vZ} offset:{F_KST}')
        a('s_waitcnt vmcnt(1)')
        self.get_tag()
        a(f's_getreg_b32 s{sT0}, hwreg(HW_REG_XCC_ID)\nv_mov_b32 v182, s{sTAG}\nv_mov_b32 v184, s{sT0}')
        self.stamp(13)

    def service(self):
        a = self.a
        self.cyc = False
        L1, L8, L16, L128, FF, WW, CC = 192, 194, 196, 198, 200, 202, 204
        DG = 206
        vXD, vXR, vXR2, vBD, vHA, vHB, vSX, vTW, vTR, vEA, vXS, vOA, vWI, vP8, vCK, vCS, vCK2, vCS2, vHF, vYW, vE0, vPF, vTG, vYR = range(214, 238)
        PRM = 238
        vC31, vHI, vU, vWA, vXA, vQ = 242, 243, 244, 245, 246, 247
        a('L_service:')
        a(f'v_mov_b32 v0, 0\nv_mov_b32 v1, 0\nv_mov_b32 v2, 0\nv_mov_b32 v3, 0')
        a(f's_lshl_b32 s{sT0}, s{sSW}, 10\nv_add_u32 v{vT}, s{sT0}, v{vL16}\nds_write_b128 v{vT}, v[0:3] offset:{L_ACCF}')
        a(f'v_lshlrev_b32 v{vT}, 3, v{vLN}\nds_write_b64 v{vT}, v[0:1]')
        a(f'v_and_b32 v{vC31}, 31, v{vLN}\nv_lshlrev_b32 v{vU}, 1, v{vC31}\nv_lshrrev_b32 v{vHI}, 5, v{vLN}')
        a('s_waitcnt lgkmcnt(0)')
        self.stamp(0)
        a('s_setprio 3')
        self.srd(SWS, P(16), WS_SIZE)
        a(f'buffer_load_dword v{vEP}, off, s[{SWS}:{SWS+3}], 0 sc1')
        a(f's_lshl_b32 s{sT0}, s{sPB}, 6')
        for k, p in enumerate((6, 7, 12)):
            self.srd(SA, P(p), 1024)
            a(f'buffer_load_ushort v{PRM+k}, v{vU}, s[{SA}:{SA+3}], s{sT0} offen')
        self.srd(SA, P(13), 1024)
        a(f's_lshl_b32 s{sT0}, s{sCG}, 7\ns_and_b32 s{sT1}, s{sWV}, 1\ns_lshl_b32 s{sT1}, s{sT1}, 6\ns_add_u32 s{sT0}, s{sT0}, s{sT1}')
        a(f'buffer_load_ushort v{PRM+3}, v{vU}, s[{SA}:{SA+3}], s{sT0} offen')
        a('s_barrier')
        self.common_regs()
        self.tr_parts(vTR, vU, vWA)
        a(f'v_lshl_add_u32 v{vTR}, v{vU}, 6, v{vTR}\nv_lshl_add_u32 v{vTR}, v{vHI}, 9, v{vTR}')
        a(f'v_lshl_add_u32 v{vWA}, v{vHI}, 10, v{vWA}\nv_add_u32 v{vWA}, {L_A2}, v{vWA}')
        a(f'v_mul_u32_u24 v{vCK}, 1040, v{vC31}\nv_lshl_add_u32 v{vCK}, v{vHI}, 4, v{vCK}\nv_add_u32 v{vCK}, {L_A1}, v{vCK}')
        a(f's_lshr_b32 s{sT0}, s{sSW}, 1\ns_mul_i32 s{sT0}, s{sT0}, {32*1040}\nv_add_u32 v{vXA}, s{sT0}, v{vCK}')
        a(f's_lshl_b32 s{sT0}, s{sSW}, 11\nv_add_u32 v{vQ}, s{sT0}, v{vL16}')
        sXB, sXL, sTP, sCT = 73, 74, 75, 80
        a(f's_lshl_b32 s{sXB}, s{sTB}, 2\ns_add_u32 s{sXB}, s{sXB}, s{sSW}\ns_lshl_b32 s{sXB}, s{sXB}, 15')
        a(f's_mul_i32 s{sXL}, s{sSW}, {XW}\ns_add_u32 s{sXL}, s{sXL}, {L_A2}')
        a(f's_lshl_b32 s{sTP}, s{sRB}, 1\ns_lshr_b32 s{sT0}, s{sSW}, 1\ns_add_u32 s{sTP}, s{sTP}, s{sT0}')
        a(f's_lshl_b32 s{sCT}, s{sCG}, 1\ns_and_b32 s{sT0}, s{sSW}, 1\ns_add_u32 s{sCT}, s{sCT}, s{sT0}')
        a(f'v_lshlrev_b32 v{vT}, 3, v{vHI}\nv_xor_b32 v{vT}, v{vC31}, v{vT}\nv_lshlrev_b32 v{vT}, 4, v{vT}\nv_lshl_add_u32 v{vXD}, v{vHI}, 13, v{vT}\nv_lshl_add_u32 v{vBD}, v{vHI}, 10, v{vT}')
        def tmap(i):
            r = 4 * (i >> 3) + (i & 3)
            return 16 * ((i >> 2) & 1) + (r >> 1) + 8 * (r & 1)
        def xdma(half, ms=range(16)):
            for m in ms:
                a(f's_xor_b32 s{sT0}, s{sXM}, {m}\ns_mul_i32 s{sT0}, s{sT0}, 1040\ns_add_u32 m0, s{sT0}, s{sXL}\ns_xor_b32 s{sT0}, s{sXG}, {tmap(2*m)*1024 + 512*half}')
                a(f'buffer_load_dwordx4 v{vXD}, s[{SA}:{SA+3}], s{sT0} offen lds')
        sXM, sXG, sHB = 50, 51, 81
        a(f's_and_b32 s{sXM}, s{sPB}, 14\ns_and_b32 s{sT0}, s{sPB}, 2\ns_lshl_b32 s{sT0}, s{sT0}, 3\ns_lshr_b32 s{sT1}, s{sPB}, 2\ns_lshl_b32 s{sT1}, s{sT1}, 1\ns_add_u32 s{sT0}, s{sT0}, s{sT1}\ns_lshl_b32 s{sT0}, s{sT0}, 10')
        a(f's_xor_b32 s{sHB}, s{sPB}, s{sTB}\ns_and_b32 s{sHB}, s{sHB}, 1\ns_lshl_b32 s{sHB}, s{sHB}, 9\ns_add_u32 s{sT0}, s{sT0}, s{sHB}\ns_add_u32 s{sXG}, s{sXB}, s{sT0}')
        a(f'v_lshrrev_b32 v{vU}, 1, v{vC31}\nv_mul_u32_u24 v{vU}, 1040, v{vU}\nv_lshl_add_u32 v{vU}, v{vHI}, 4, v{vU}\nv_and_b32 v{vT}, 1, v{vC31}')
        a(f'v_mul_u32_u24 v{vHA}, 640, v{vT}\nv_mul_u32_u24 v{vHB}, 384, v{vT}\nv_add_u32 v{vHA}, v{vHA}, v{vU}\nv_add_u32 v{vHB}, v{vHB}, v{vU}')
        a(f'v_add_u32 v{vXR}, s{sXL}, v{vHA}\nv_add_u32 v{vXR2}, s{sXL}, v{vHB}\nv_add_u32 v{vHA}, {L_A1}, v{vHA}\nv_add_u32 v{vHB}, {L_A1}, v{vHB}')
        a(f'v_lshlrev_b32 v{vSX}, 3, v{vLN}\nv_add_u32 v{vSX}, s{sXL}, v{vSX}')
        a(f'v_lshlrev_b32 v{vP8}, 3, v{vC31}\nv_add_u32 v{vP8}, {L_A2}, v{vP8}')
        a(f'v_lshlrev_b32 v{vTW}, 6, v{vC31}\nv_lshl_add_u32 v{vTW}, v{vHI}, 5, v{vTW}\nv_add_u32 v{vTW}, s{sXL}, v{vTW}\nv_add_u32 v{vTR}, s{sXL}, v{vTR}')
        a(f'v_lshlrev_b32 v{vEA}, 4, v{vC31}\nv_xor_b32 v{vT}, 1, v{vHI}\nv_lshl_add_u32 v{vEA}, v{vT}, 12, v{vEA}')
        a(f'v_lshlrev_b32 v{vXS}, 10, v{vC31}\nv_lshl_add_u32 v{vXS}, v{vHI}, 4, v{vXS}')
        a(f'v_lshlrev_b32 v{vOA}, 2, v{vC31}\nv_lshl_add_u32 v{vOA}, v{vHI}, 14, v{vOA}')
        self.wimg_lane_addr(vWI, vT)
        a(f's_and_b32 s{sT0}, s{sSW}, 1\ns_mul_i32 s{sT1}, s{sT0}, {512 - 32*1040}\ns_add_u32 s{sT1}, s{sT1}, {32*1040}\nv_add_u32 v{vCS}, s{sT1}, v{vCK}')
        a(f's_mul_i32 s{sT1}, s{sT0}, {32*1040 + 512}\nv_add_u32 v{vCK}, s{sT1}, v{vCK}\nv_add_u32 v{vCK2}, {L_A2 - L_A1}, v{vCK}\nv_add_u32 v{vCS2}, {L_A2 - L_A1}, v{vCS}')
        a(f'v_and_b32 v{vHF}, 15, v{vLN}\nv_lshlrev_b32 v{vHF}, 7, v{vHF}\nv_lshlrev_b32 v{vPF}, 6, v{vLN}')
        a(f'v_add_u32 v{vYW}, s{sXL}, v{vL16}\ns_xor_b32 s{sT0}, s{sSW}, 1\ns_mul_i32 s{sT0}, s{sT0}, {XW}\ns_add_u32 s{sT0}, s{sT0}, {L_A2}\nv_add_u32 v{vYR}, s{sT0}, v{vL16}')
        a(f's_cmp_lg_u32 s{sSW}, 0\ns_cbranch_scc1 L_nokv')
        self.kvproj()
        a('L_nokv:')
        a(f's_cmp_eq_u32 s{sSW}, 0\ns_cbranch_scc1 L_pw1\ns_waitcnt vmcnt(0)')
        self.get_tag()
        a('L_pw1:')
        a(f'v_mov_b32 v{vTG}, s{sTAG}')
        a(f'v_lshlrev_b32 v0, 16, v{PRM}\nv_lshlrev_b32 v1, 16, v{PRM+1}\nv_lshlrev_b32 v2, 16, v{PRM+2}')
        LOG2E = f2u(math.log2(math.e))
        a(f'v_mul_f32 v2, {LOG2E:#x}, v2\nv_exp_f32 v2, v2\nv_cvt_pk_bf16_f32 v2, v2, v2\nv_lshlrev_b32 v2, 16, v2')
        a(f'v_mul_f32 v4, v2, v0\nv_mul_f32 v5, v2, v1\nv_mul_f32 v4, {LOG2E:#x}, v4\nv_mul_f32 v5, {f2u(-1/(2*math.pi)):#x}, v5')
        def power(d, n):
            a(f'v_mul_f32 v6, {n}, v4\nv_mul_f32 v7, {n}, v5\nv_exp_f32 v6, v6\nv_fract_f32 v7, v7\nv_cos_f32 v8, v7\nv_sin_f32 v9, v7\nv_mul_f32 v{d}, v6, v8\nv_mul_f32 v{d+1}, v6, v9')
        power(L1, '1.0')
        power(L8, f'{f2u(8.0):#x}')
        power(L16, f'{f2u(16.0):#x}')
        power(L128, f'{f2u(128.0):#x}')
        a(f'v_cvt_f32_u32 v11, v{vHI}\nv_mul_f32 v11, {f2u(1024.0):#x}, v11')
        power(FF, 'v11')
        a(f's_lshl_b32 s{sT0}, s{sSW}, 1\nv_add_u32 v11, s{sT0}, v{vHI}\nv_cvt_f32_u32 v11, v11\nv_mul_f32 v11, {f2u(16.0):#x}, v11')
        power(WW, 'v11')
        a(f'v_add_f32 v6, -1.0, v{L1}\nv_mul_f32 v7, v0, v0\nv_fmac_f32 v7, v1, v1\nv_rcp_f32 v7, v7\nv_add_f32 v7, v7, v7')
        a(f'v_mul_f32 v8, v6, v0\nv_fma_f32 v8, -v{L1+1}, v1, v8\nv_mul_f32 v9, v6, v1\nv_fma_f32 v9, -v{L1+1}, v0, -v9\nv_mul_f32 v{CC}, v8, v7\nv_mul_f32 v{CC+1}, v9, v7')
        a(f'v_and_b32 v6, 1, v{vLN}\nv_lshlrev_b32 v6, 4, v6\nv_lshlrev_b32 v3, v6, v{PRM+3}')
        a(f'v_lshrrev_b32 v6, 1, v{vC31}\nv_lshlrev_b32 v7, 2, v{vHI}\nv_sub_u32 v6, v6, v7')
        for q in range(8):
            a(f'v_cmp_eq_u32 vcc, {8*(q//4) + q%4}, v6\nv_cndmask_b32 v{DG+q}, 0, v3, vcc')
        LC = PRM
        a(f'v_mov_b32 v{LC}, 0\nv_mov_b32 v{LC+1}, 0')
        WT, D = 128, 160
        def kvflag():
            a(f's_cmp_lg_u32 s{sSW}, 0\ns_cbranch_scc1 L_nokvf')
            a('s_waitcnt vmcnt(0)')
            a(f's_mov_b64 exec, {(1 << (1 << (opt("fs", 7) - 4))) - 1:#x}\nbuffer_store_dwordx4 v[182:185], v{vL16}, s[{SWS}:{SWS+3}], s{sT4} offen sc1\ns_mov_b64 exec, -1')
            self.sig(F_KVD, va=vF)
            self.stamp(14)
            a('L_nokvf:')
        FP = opt('fp', 16)
        if FP < 0:
            a('s_waitcnt lgkmcnt(0)'); kvflag()
        self.wait(F_L2, sleep=1)
        self.stamp(1)
        a(f's_and_b32 s{sT1}, s{sRB}, 3')
        for st in range(32):
            if st % 8 == 0: a(f's_xor_b32 s{sT0}, s{sT1}, {st//8}\ns_lshl_b32 s{sT0}, s{sT0}, 8\nv_add_u32 v{vU}, s{sT0}, v{vXA}')
            if st == FP: kvflag()
            a(f'ds_read_b128 {q4(4*st)}, v{vU} offset:{32*(st%8)}')
        if FP >= 32: kvflag()
        def wr(st):
            b = WT + 4 * (st % 8)
            a(f'ds_read_b64_tr_b16 {pr(b)}, v{vWA} offset:{2048*st}\nds_read_b64_tr_b16 {pr(b+2)}, v{vWA} offset:{2048*st+512}')
        for s0, s1, fl in ((0, 16, F_L4), (16, 32, F_L6)):
            self.wait(fl, sleep=0)
            if s0 == 0:
                self.stamp(2)
            for st in range(s0, s0 + 6): wr(st)
            for st in range(s0, s1):
                a(f's_waitcnt lgkmcnt({2 * min(5, s1 - 1 - st)})')
                a(f'v_mfma_f32_32x32x16_bf16 {t16(D)}, {q4(WT + 4*(st%8))}, {q4(4*st)}, {"0" if st == 0 else t16(D)}')
                if st + 6 < s1: wr(st + 6)
        QS = f2u(0.25 * math.log2(math.e))
        a(f'v_mov_b32 v24, {QS:#x}')
        for r in range(8):
            a(f'v_pk_mul_f32 {pr(D+2*r)}, v[24:25], {pr(D+2*r)} op_sel:[0,0] op_sel_hi:[0,1]')
            a(f'v_cvt_pk_bf16_f32 v{16+r}, v{D+2*r}, v{D+2*r+1}')
            if r == 3: a(f'ds_write_b128 v{vQ}, v[16:19] offset:{L_QF}')
        a(f'ds_write_b128 v{vQ}, v[20:23] offset:{L_QF+1024}')
        self.sig(F_QP)
        self.stamp(3)
        a(f'v_mul_f32 v8, v{D}, v{D}\nv_mul_f32 v9, v{D+8}, v{D+8}')
        for r in range(1, 8): a(f'v_fmac_f32 v8, v{D+r}, v{D+r}\nv_fmac_f32 v9, v{D+8+r}, v{D+8+r}')
        a('v_permlane32_swap_b32 v8, v9\nv_add_f32 v8, v8, v9')
        a(f'v_mov_b32 v{vQ}, v8')
        if 'nosvc' in OPT:
            self.sig(F_S[0]); self.sig(F_S[9]); self.end(); return
        SN = 180
        a(f'v_mov_b32 v{SN}, -1\nv_mov_b32 v{SN+1}, -1\nv_mov_b32 v{SN+2}, -1\nv_mov_b32 v{SN+3}, -1\nv_mov_b32 v{SN+4}, 0\nv_mov_b32 v{SN+5}, 0\nv_mov_b32 v{SN+6}, s{sTAG}\nv_mov_b32 v{SN+7}, 0')
        self.srd(SA, P(5), 2048 * 1024)
        self.srd(SB, P(8), 512 * 1024)
        self.srd(SC, P(9), 512 * 1024)
        self.stamp(11)
        def bdma(half, only=None):
            if half == 0: a(f's_mul_i32 s{sT1}, s{sSW}, {4*1040}\ns_lshl_b32 s{sT2}, s{sPB}, 15\ns_lshl_b32 s{sT3}, s{sSW}, 13\ns_add_u32 s{sT2}, s{sT2}, s{sT3}\ns_add_u32 s{sT2}, s{sT2}, s{sHB}')
            for pl, srd in ((0, SB), (1, SC)):
                for m in range(4):
                    if only is not None and only != 4 * pl + m: continue
                    a(f's_add_u32 m0, s{sT1}, {L_A1 + ((2*half + pl)*16 + m)*1040}\ns_xor_b32 s{sT0}, s{sT2}, {2048*m + 512*half}')
                    a(f'buffer_load_dwordx4 v{vBD}, s[{srd}:{srd+3}], s{sT0} offen lds')
        def xread(half):
            for s in range(16): a(f'ds_read_b128 {q4(64*half + 4*s)}, v{vXR2 if s & 4 else vXR} offset:{32*s}')
        def rowdma(srd, base, sg, n):
            for m in range(n):
                if m % 4 == 0: a(f's_add_u32 m0, s{sT1}, {base + m*1040}\ns_add_u32 s{sT0}, s{sg}, {1024*m}')
                else: a('s_add_u32 m0, m0, 16')
                a(f'buffer_load_dwordx4 v{vL16}, s[{srd}:{srd+3}], s{sT0} offen offset:{1024*(m%4)} lds')
        self.wait(F_A1, sleep=2)
        self.stamp(10)
        a(f'ds_read_b64 {pr(SN+8)}, v{SN+4} offset:{F_KMAX}')
        xdma(0, range(2)); a(f's_mov_b32 s{sT0}, {f2u(3400.0):#x}\ns_waitcnt lgkmcnt(0)')
        a(f'v_mul_f32 v{vT}, v{SN+8}, v{vQ}\nv_cmp_nge_f32 vcc, s{sT0}, v{vT}\nv_readfirstlane_b32 s{sXC}, v{SN+9}\ns_cmp_eq_u64 vcc, 0\ns_cselect_b32 s{sT0}, 1, 2\nv_mov_b32 v{vQ}, s{sT0}')
        a(f'ds_write_b32 v{vS}, v{vQ} offset:{F_S[0]}')
        bdma(0); xdma(0, range(2, 16))
        a('s_waitcnt vmcnt(0)')
        self.sig(F_S[1])
        self.stamp(4)
        xread(0)
        self.wait(F_S[1], sleep=1)
        self.stamp(5)
        GR, GI, BT = 128, 144, 160
        PD = opt('s1depth', 4)
        lq = []
        def bread(q):
            s, pl = q // 2, q % 2
            a(f'ds_read_b128 {q4(BT + 4*(q%5))}, v{vHB if s & 4 else vHA} offset:{((2*(s//16) + pl)*16)*1040 + 32*(s%16)}')
            lq.append(('b', q))
        a(f's_setprio {opt("gprio1", 0)}')
        for q in range(PD): bread(q)
        XQ = opt('xq', 20)
        for q in range(64):
            s, pl = q // 2, q % 2
            need = max([i for i, x in enumerate(lq) if x == ('b', q) or x == ('x', s)] + [-1])
            if need >= 0:
                a(f's_waitcnt lgkmcnt({len(lq) - 1 - need})')
                del lq[:need + 1]
            Gx = GI if pl else GR
            a(f'v_mfma_f32_32x32x16_bf16 {t16(Gx)}, {q4(4*s)}, {q4(BT + 4*(q%5))}, {"0" if s == 0 else t16(Gx)}')
            if q + PD == 32:
                a('s_setprio 3')
                self.wait(F_S[2], sleep=1); lq.clear()
                a(f's_setprio {opt("gprio1", 0)}')
                self.stamp(12)
            if q + PD < 64: bread(q + PD)
            if q < 4: bdma(1, 2 * q); bdma(1, 2 * q + 1)
            elif q < 12: xdma(1, [2 * q - 8, 2 * q - 7])
            elif pl == 1 and opt('pad1', 0): a(f's_nop {opt("pad1", 0) - 1}')
            if q == XQ:
                a('s_waitcnt vmcnt(0)')
                self.sig(F_S[2]); lq.append(('s', 0))
                a(f's_or_b32 s{sT0}, s2, s{sSW}\ns_cbranch_scc1 L_noep')
                a(f's_mov_b64 exec, 1\nbuffer_store_dword v{vTG}, off, s[{SWS}:{SWS+3}], 0 sc1\ns_mov_b64 exec, -1')
                a('L_noep:')
                a(f's_cmp_lg_u32 s{sTB}, 0\ns_cbranch_scc1 L_nozero')
                a(f's_lshl_b32 s{sT0}, s{sPB}, 14\ns_lshl_b32 s{sT1}, s{sSW}, 11\ns_add_u32 s{sT0}, s{sT0}, s{sT1}\ns_add_u32 s{sT0}, s{sT0}, {WS_EBUF:#x}')
                for n in range(2): a(f'buffer_store_dwordx4 {q4(SN+4)}, v{vL16}, s[{SWS}:{SWS+3}], s{sT0} offen offset:{1024*n} sc1')
                a('L_nozero:')
                a(f's_lshr_b32 s{sT0}, s{sSW}, 1\ns_and_b32 s{sT1}, s{sRB}, 1\ns_cmp_lg_u32 s{sT0}, s{sT1}\ns_cbranch_scc1 L_nosent')
                a(f's_lshl_b32 s{sT1}, s{sCG}, 12\ns_add_u32 s{sT0}, s{sXB}, s{sT1}\ns_add_u32 s{sT0}, s{sT0}, {WS_OBUF:#x}')
                self.xstore([f'buffer_store_dwordx4 {q4(SN)}, v{vL16}, s[{SWS}:{SWS+3}], s{sT0} offen offset:{1024*n}' for n in range(4)], 's')
                a('L_nosent:')
                if opt('pf', 1): self.prefetch((10, 11, 4), vPF)
            if XQ < q <= XQ + 16:
                sx = q - XQ - 1
                a(f'ds_read_b128 {q4(64 + 4*sx)}, v{vXR2 if sx & 4 else vXR} offset:{32*sx}'); lq.append(('x', 16 + sx))
        a('s_setprio 3')
        self.stamp(6)
        if opt('stop', 0) == 6: self.end(); return
        RE = 'op_sel:[0,0,0] op_sel_hi:[0,1,1]'
        IM = 'op_sel:[1,0,0] op_sel_hi:[1,1,1]'
        T0, T1 = 8, 10
        def pstep(dr, di, sr, si, l, ur, ui, ns=0, nu=0):
            a(f'v_pk_fma_f32 {pr(T0)}, {pr(l)}, {pr(si)}, {pr(ur)} {IM} neg_lo:[{1-ns},0,0] neg_hi:[{1-ns},0,0]')
            a(f'v_pk_fma_f32 {pr(T1)}, {pr(l)}, {pr(sr)}, {pr(ui)} {IM} neg_lo:[0,0,{nu}] neg_hi:[0,0,{nu}]')
            a(f'v_pk_fma_f32 {pr(dr)}, {pr(l)}, {pr(sr)}, {pr(T0)} {RE}')
            a(f'v_pk_fma_f32 {pr(di)}, {pr(l)}, {pr(si)}, {pr(T1)} {RE} neg_lo:[{ns},0,0] neg_hi:[{ns},0,0]')
        def cstep(dr, di, sr, si, l, ur, ui):
            a(f'v_fma_f32 v{T0}, -v{l+1}, v{si}, v{ur}\nv_fma_f32 v{T1}, v{l+1}, v{sr}, v{ui}\nv_fma_f32 v{dr}, v{l}, v{sr}, v{T0}\nv_fma_f32 v{di}, v{l}, v{si}, v{T1}')
        def zstep(d, s, l, u):
            a(f'v_pk_fma_f32 {pr(T0)}, {pr(l)}, {pr(s)}, {pr(u)} {RE}')
            a(f'v_pk_fma_f32 {pr(d)}, {pr(l)}, {pr(s)}, {pr(T0)} op_sel:[1,1,0] op_sel_hi:[1,0,1] neg_lo:[1,0,0]')
        def cmul(r, i, neg):
            a(f'v_pk_mul_f32 {pr(T0)}, {pr(CC)}, {pr(i)} op_sel:[1,0] op_sel_hi:[1,1]')
            a(f'v_pk_mul_f32 {pr(T1)}, {pr(CC)}, {pr(r)} op_sel:[1,0] op_sel_hi:[1,1]')
            a(f'v_pk_fma_f32 {pr(r)}, {pr(CC)}, {pr(r)}, {pr(T0)} {RE} neg_lo:[0,0,{neg}] neg_hi:[0,0,{neg}]')
            a(f'v_pk_fma_f32 {pr(i)}, {pr(CC)}, {pr(i)}, {pr(T1)} {RE} neg_lo:[{neg},0,1] neg_hi:[{neg},0,1]')
        ER, EI, EE = 12, 14, 16
        pstep(ER, EI, GR, GI, L1, GR + 2, GI + 2, 1, 1)
        for r in range(4, 16, 2): pstep(ER, EI, ER, EI, L1, GR + r, GI + r, 0, 1)
        cstep(EE, EE + 1, ER, EI, L8, ER + 1, EI + 1)
        a(f'ds_write_b64 v{vSX}, {pr(EE)} offset:{L_SXO}')
        self.sig(F_S[3])
        self.srd(SB, P(10), 512 * 1024)
        self.srd(SC, P(11), 512 * 1024)
        a(f's_lshl_b32 s{sT3}, s{sSW}, 1\ns_mov_b32 s{sM0}, 0\ns_mov_b32 s{sM0+1}, -1')
        a(f's_lshl_b32 s{sT4}, s{sPB}, 14\ns_lshl_b32 s{sT1}, s{sTB}, 9\ns_add_u32 s{sT4}, s{sT4}, s{sT1}\ns_add_u32 s{sT4}, s{sT4}, {WS_EBUF:#x}')
        self.wait(F_S[3], sleep=1)
        for c in range(7): a(f'ds_read_b64 {pr(20+2*c)}, v{vP8} offset:{(c//2)*XW + L_SXO + (c%2)*256}')
        a('s_waitcnt lgkmcnt(0)')
        for c in range(7):
            a(f's_cmp_lt_u32 s{sT3}, {c}\ns_cbranch_scc1 L_lh_done')
            a(f's_cmp_gt_u32 s{sT3}, {c}\ns_cselect_b64 exec, -1, s[{sM0}:{sM0+1}]')
            zstep(LC, LC, L16, 20 + 2 * c)
        zstep(vTG - 2, LC, L16, EE)
        a(f's_add_u32 s{sT0}, s{sT4}, {16*512 - 512}\nbuffer_store_dwordx4 v[{vTG-2}:{vTG+1}], v{vL16}, s[{SWS}:{SWS+3}], s{sT0} offen sc1')
        a('L_lh_done:\ns_mov_b64 exec, -1')
        self.stamp(7)
        def cdma(srd, base):
            a(f's_mul_i32 s{sT1}, s{sSW}, {16*1040}\ns_lshl_b32 s{sT2}, s{sCG}, 16\ns_lshl_b32 s{sT3}, s{sSW}, 14\ns_add_u32 s{sT2}, s{sT2}, s{sT3}')
            rowdma(srd, base, sT2, 16)
        cdma(SB, L_A1)
        for r in range(0, 16, 2): cmul(GR + r, GI + r, 1)
        a(f's_mov_b32 s{sCNT}, 100000')
        a('L_eg:')
        for q in range(8): a(f'buffer_load_dwordx3 v[{24+4*q}:{26+4*q}], v{vEA}, s[{SWS}:{SWS+3}], s{sT4} offen offset:{512*q} sc1')
        a('s_waitcnt vmcnt(0)')
        a(f'v_cmp_ne_u32 vcc, s{sTAG}, v26')
        for q in range(1, 8): a(f'v_cmp_ne_u32 s[{sM1}:{sM1+1}], s{sTAG}, v{26+4*q}\ns_or_b64 vcc, vcc, s[{sM1}:{sM1+1}]')
        a(f's_cbranch_scc0 L_egd\ns_sleep {opt("esleep", 4)}\ns_sub_u32 s{sCNT}, s{sCNT}, 1\ns_cbranch_scc0 L_eg')
        a('L_egd:')
        self.sig(F_S[9])
        self.stamp(8)
        for q in range(1, 8): zstep(24, 24, L128, 24 + 4 * q)
        a(f'v_pk_mul_f32 {pr(T0)}, {pr(FF)}, {pr(24)} op_sel:[0,0] op_sel_hi:[0,1]')
        a(f'v_pk_fma_f32 {pr(20)}, {pr(FF)}, {pr(24)}, {pr(T0)} op_sel:[1,1,0] op_sel_hi:[1,0,1] neg_lo:[1,0,0]')
        a(f'v_mov_b32 v22, v20\nv_mov_b32 v23, v21\nv_permlane32_swap_b32 v20, v22\nv_permlane32_swap_b32 v21, v23\nv_pk_add_f32 {pr(20)}, {pr(20)}, {pr(22)}')
        IR, II = 24, 26
        cstep(IR, II, 20, 21, WW, LC, LC + 1)
        cstep(IR + 1, II + 1, IR, II, L8, ER, EI)
        cmul(IR, II, 0)
        pstep(GR, GI, IR, II, L1, GR, GI)
        for r in range(2, 16, 2): pstep(GR + r, GI + r, GR + r - 2, GI + r - 2, L1, GR + r, GI + r)
        for pl, Gx in ((0, GR), (1, GI)):
            for j in range(8):
                r0 = 4 * (j % 4) + j // 4
                a(f'v_cvt_pk_bf16_f32 v{28+8*pl+j}, v{Gx+r0}, v{Gx+r0+2}')
            a(f'ds_write_b128 v{vTW}, {q4(28+8*pl)} offset:{L_TBO+2048*pl}\nds_write_b128 v{vTW}, {q4(32+8*pl)} offset:{L_TBO+2048*pl+16}')
        for pl in range(2):
            for f in range(2):
                d = 44 + 8 * pl + 4 * f
                a(f'ds_read_b64_tr_b16 {pr(d)}, v{vTR} offset:{L_TBO+2048*pl+1024*f}\nds_read_b64_tr_b16 {pr(d+2)}, v{vTR} offset:{L_TBO+2048*pl+1024*f+256}')
        a(f's_lshl_b32 s{sT0}, s{sXB}, 1\ns_lshl_b32 s{sT1}, s{sPB}, 11\ns_add_u32 s{sT0}, s{sT0}, s{sT1}\ns_add_u32 s{sT0}, s{sT0}, {WS_HBUF:#x}\ns_add_u32 s{sT1}, s{sT0}, 0x8000')
        hs = []
        for pl in range(2):
            for f in range(2):
                d = 44 + 8 * pl + 4 * f
                hs += [f's_waitcnt lgkmcnt({6 - 4*pl - 2*f})', f'buffer_store_dwordx4 {q4(d)}, v{vL16}, s[{SWS}:{SWS+3}], s{sT0 if pl == 0 else sT1} offen offset:{1024*f}']
        self.xstore(hs, 'h')
        YK, YS, XF, HR = 128, 144, 184, 160
        a(f's_lshl_b32 s{sT0}, s{sTP}, 15\ns_lshl_b32 s{sT1}, s{sCT}, 6\ns_add_u32 s{sT0}, s{sT0}, s{sT1}')
        a(f'buffer_load_dwordx4 {q4(XF)}, v{vXS}, s[{SA}:{SA+3}], s{sT0} offen\nbuffer_load_dwordx4 {q4(XF+4)}, v{vXS}, s[{SA}:{SA+3}], s{sT0} offen offset:32')
        a(f's_lshr_b32 s{sT4}, s{sXB}, 4\ns_lshl_b32 s{sT3}, s{sPB}, 7\ns_add_u32 s{sT4}, s{sT4}, s{sT3}\ns_add_u32 s{sT4}, s{sT4}, {WS_HFLAG:#x}')
        self.wait(F_S[9], sleep=1)
        a(f's_mov_b32 s{sM1}, -1\ns_mov_b32 s{sM1+1}, 0\ns_waitcnt vmcnt(2)')
        a(f's_mov_b64 exec, s[{sM1}:{sM1+1}]')
        self.xstore([f'buffer_store_dword v{vTG}, v{vOA}, s[{SWS}:{SWS+3}], s{sT4} offen'], 'h')
        a('s_mov_b64 exec, -1')
        self.stamp(9)
        if opt('stop', 0) == 9: self.end(); return
        cdma(SC, L_A2)
        for j in range(16): a(f'ds_read_b128 {q4(8*j)}, v{vCK} offset:{32*j}\nds_read_b128 {q4(8*j+4)}, v{vCS} offset:{32*j}')
        self.sig(F_S[6])
        a('s_waitcnt vmcnt(17)')
        a(f'v_mfma_f32_32x32x16_bf16 {t16(YK)}, {q4(XF)}, {q4(DG)}, 0')
        a(f'v_mfma_f32_32x32x16_bf16 {t16(YK)}, {q4(XF+4)}, {q4(DG+4)}, {t16(YK)}')
        self.srd(SB, P(4), 512 * 1024)
        a(f's_lshl_b32 s{sT4}, s{sSW}, 17\ns_lshl_b32 s{sT1}, s{sCG}, 7\ns_add_u32 s{sT4}, s{sT4}, s{sT1}\ns_and_b32 s{sT1}, s{sCG}, 3\ns_lshl_b32 s{sT1}, s{sT1}, 16\ns_xor_b32 s{sT4}, s{sT4}, s{sT1}\ns_lshl_b32 s{sT1}, s{sSW}, 14\ns_add_u32 m0, s{sT1}, {L_A1}')
        self.wait(F_S[6], sleep=1)
        for m in range(16):
            a(f's_xor_b32 s{sT0}, s{sT4}, {8192*m:#x}\nbuffer_load_dwordx4 v{vWI}, s[{SB}:{SB+3}], s{sT0} offen lds\ns_add_u32 m0, m0, 1024')
        a(f's_lshl_b32 s{sT0}, s{sTP}, 11\ns_add_u32 s{sT0}, s{sT0}, {WS_HFLAG:#x}\ns_mov_b64 exec, 0xffff')
        a(f's_mov_b32 s{sCNT}, 100000')
        a('L_gph:')
        a(f'buffer_load_dword v{vT}, v{vHF}, s[{SWS}:{SWS+3}], s{sT0} offen sc1\ns_waitcnt vmcnt(0)\nv_cmp_ne_u32 vcc, s{sTAG}, v{vT}\ns_cbranch_vccz L_gdh')
        a(f's_sleep {opt("hsleep", 4)}\ns_sub_u32 s{sCNT}, s{sCNT}, 1\ns_cbranch_scc0 L_gph')
        a('L_gdh:\ns_mov_b64 exec, -1')
        self.sig(F_S[5])
        self.stamp(13)
        if opt('stop', 0) == 10: self.end(); return
        a(f's_lshl_b32 s{sT3}, s{sTP}, 16\ns_and_b32 s{sT0}, s{sSW}, 1\ns_lshl_b32 s{sT0}, s{sT0}, 14\ns_add_u32 s{sT3}, s{sT3}, s{sT0}\ns_add_u32 s{sT3}, s{sT3}, {WS_HBUF:#x}')
        NR = 13
        vq = []
        def hload(j):
            if j % 4 == 0 and j > 0: a(f's_add_u32 s{sT3}, s{sT3}, {4096 if j != 16 else 4096 + 16384}')
            a(f'buffer_load_dwordx4 {q4(HR + 4*(j%NR))}, v{vL16}, s[{SWS}:{SWS+3}], s{sT3} offen offset:{1024*(j%4)} sc1')
            vq.append(('h', j))
        for j in range(NR - 1): hload(j)
        a(f's_setprio {opt("gprio4", 0)}')
        lq = []
        def cread(j):
            c = 8 * (j % 16)
            a(f'ds_read_b128 {q4(c)}, v{vCK2} offset:{32*(j%16)}\nds_read_b128 {q4(c+4)}, v{vCS2} offset:{32*(j%16)}')
            lq.extend([('c', j), ('c', j)])
        wosig = False
        for j in range(32):
            need = vq.index(('h', j))
            w = f's_waitcnt vmcnt({len(vq) - 1 - need})'
            del vq[:need + 1]
            ln = max([i for i, x in enumerate(lq) if x == ('c', j)] + [-1])
            if ln >= 0:
                w += f' lgkmcnt({len(lq) - 1 - ln})'; del lq[:ln + 1]
            a(w)
            c = 8 * (j % 16); h = q4(HR + 4 * (j % NR))
            a(f'v_mfma_f32_32x32x16_bf16 {t16(YK)}, {h}, {q4(c)}, {t16(YK)}')
            if j + NR - 1 < 32: hload(j + NR - 1)
            a(f'v_mfma_f32_32x32x16_bf16 {t16(YS)}, {h}, {q4(c+4)}, {"0" if j == 0 else t16(YS)}')
            if j == 11:
                a('s_setprio 3')
                self.wait(F_S[5], sleep=1); lq.clear()
                a(f's_setprio {opt("gprio4", 0)}')
            if 12 <= j < 28: cread(j + 4)
            HJ = opt('hj', 99)
            if opt('pad4', 0) and j < HJ: a(f's_nop {opt("pad4", 0) - 1}')
            if j == HJ - 1:
                a('s_setprio 3')
                self.wait(F_AX, sleep=opt('hjs', 4), va=vS); lq.clear()
                a(f's_setprio {opt("gprio5", 0)}')
        a('s_setprio 3')
        self.sig(F_S[7])
        self.srd(SOUT, P(14), 2048 * 4096)
        a(f's_lshl_b32 s{sT2}, s{sTP}, 17\ns_lshl_b32 s{sT1}, s{sCT}, 7\ns_add_u32 s{sT2}, s{sT2}, s{sT1}')
        self.wait(F_S[7], sleep=1)
        for q in range(4): a(f'ds_write_b128 v{vYW}, {q4(YS+4*q)} offset:{1024*q}')
        self.sig(F_S[8])
        self.wait(F_S[8], sleep=1)
        for q in range(4): a(f'ds_read_b128 {q4(YS+4*q)}, v{vYR} offset:{1024*q}')
        a('s_waitcnt lgkmcnt(0)')
        fl = {0: '', 1: ' sc1', 2: ' nt', 3: ' sc0 sc1', 4: ' sc1 nt', 5: ' sc0 nt', 6: ' sc0 sc1 nt'}[opt('yfl', 2)]
        for r in range(0, 16, 2): a(f'v_pk_add_f32 {pr(YS+r)}, {pr(YK+r)}, {pr(YS+r)}')
        for r in range(16):
            a(f's_add_u32 s{sT0}, s{sT2}, {((r % 4) + 8 * (r // 4)) * 4096}')
            a(f'buffer_store_dword v{YS+r}, v{vOA}, s[{SOUT}:{SOUT+3}], s{sT0} offen offset:2048{fl}')
        self.stamp(2)
        self.end()

HEADER = open('cdna_kernels/' + NAME + '.s.ref').read().split('; Override launch')[0]

def make(stamps=False):
    g = G(stamps)
    body = g.build()
    txt = HEADER + f'; @launch grid=(256,1,1) block=(512,1,1) lds={L_TOTAL}\n'
    txt += f'''.amdgcn_target "amdgcn-amd-amdhsa--gfx950"
.text
.globl {NAME}_kernel
.p2align 8
.type {NAME}_kernel,@function
{NAME}_kernel:
{body}.section .rodata,"a"
.p2align 6
.amdhsa_kernel {NAME}_kernel
  .amdhsa_next_free_vgpr 256
  .amdhsa_next_free_sgpr 102
  .amdhsa_accum_offset 256
  .amdhsa_group_segment_fixed_size 0
  .amdhsa_kernarg_size 136
  .amdhsa_user_sgpr_count 2
  .amdhsa_user_sgpr_kernarg_segment_ptr 1
  .amdhsa_system_sgpr_workgroup_id_x 1
.end_amdhsa_kernel
'''
    return txt, g.a.n_ins

if __name__ == '__main__':
    pos = [x for x in sys.argv[1:] if not x.startswith('--')]
    out = pos[0] if pos else 'cdna_kernels/' + NAME + '.s'
    txt, n = make(stamps='stamps' in OPT)
    open(out, 'w').write(txt)
    print('wrote', out, n, 'instructions')
```

```python
import sys, math, struct
from asm import Asm

NAME = 'concat_heads__grouped_kv_mqa__ssm_conv_s5__prompt'
OPT = dict((x[2:].split('=') + ['1'])[:2] for x in sys.argv if x.startswith('--'))
def opt(k, d): return int(OPT.get(k, d))
def f2u(x): return struct.unpack('<I', struct.pack('<f', x))[0]
def pr(r): return f'v[{r}:{r+1}]'
def q4(r): return f'v[{r}:{r+3}]'
def t16(r): return f'v[{r}:{r+15}]'

WS_KVFLAG = 0x8000
WS_KVIMG = 0x10000
WS_EBUF = 0x40000
WS_HFLAG = 0x80000
WS_OBUF = 0x100000
WS_HBUF = 0x400000
WS_DBG = 0x800000
WS_SIZE = 0x1000000
def FL(i): return 16 * i
F_L1, F_L2, F_L4, F_L6 = FL(0), FL(1), FL(2), FL(3)
F_QP, F_KVD = FL(4), FL(5)
F_A1, F_AX, F_AY = FL(6), FL(7), FL(8)
F_S = [FL(9 + i) for i in range(10)]
F_WO = FL(19)
F_OX = FL(20)
F_SL = [FL(22 + i) for i in range(3)]
F_KMAX, F_XC, F_KST = FL(25), FL(25) + 4, FL(25) + 8
F_TAG, F_QA = FL(26), FL(27)
L_QN = 512
L_ACCF = 1024
L_QF = 5120
L_ACCD = 13312
L_WKV = L_ACCD
L_A1 = 29696
L_A2 = 96256
L_MX = L_A2 + 66560
L_TOTAL = 163840
XW = 16640
L_SXO = 1024
L_TBO = 2048

sWV, sRB, sCG, sTB, sPB, sTAG = 3, 4, 5, 6, 7, 8
sT0, sT1, sT2, sT3, sT4, sT5 = 9, 10, 11, 12, 13, 14
sCNT = 15
P = lambda i: 16 + 2 * i
SA, SB, SC, SWS, SOUT = 52, 56, 60, 64, 68
sSW = 72
sPH, sTJ, sOW = 73, 74, 75
sM0, sM1 = 76, 78
sQH = 81
sOB, sPRE = 101, 81
sXC = 100
sST = 82
SPIN = 400000
vT, vLN, vL16, vEP, vF, vS, vONE = 249, 250, 251, 252, 253, 254, 255

class G:
    def __init__(self, stamps=False):
        self.a = Asm(); self.stamps = stamps; self.cyc = True
    def srd(self, d, p, size):
        self.a(f's_mov_b32 s{d}, s{p}\ns_mov_b32 s{d+1}, s{p+1}\ns_mov_b32 s{d+2}, {size:#x}\ns_mov_b32 s{d+3}, 0x20000')
    def stamp(self, i):
        if self.stamps:
            self.a(f's_memrealtime s[98:99]\ns_waitcnt lgkmcnt(0)\ns_mov_b32 s{sST+i}, s98')
            m = {5: 8, 6: 9}
            if self.cyc and i in m:
                self.a(f's_memtime s[98:99]\ns_waitcnt lgkmcnt(0)\ns_mov_b32 s{sST+m[i]}, s98')
    def end(self):
        a = self.a
        if self.stamps:
            a('s_waitcnt vmcnt(0)')
            self.stamp(15)
            if 'diag' in OPT and self.cyc != ('diagsv' in OPT):
                da, db = [int(x) for x in OPT['diag'].split(',')]
                L = a.label('DG')
                a(f's_sub_u32 s{sT1}, s{sST+db}, s{sST+da}')
                if 'diagcyc' in OPT: a(f's_lshr_b32 s{sT1}, s{sT1}, 1')
                else: a(f's_lshl_b32 s{sT1}, s{sT1}, 3')
                a(f's_min_u32 s{sT1}, s{sT1}, 100000\ns_add_u32 s{sT1}, s{sT1}, s{sST+15}')
                a(f'{L}:\ns_sleep 4\ns_memrealtime s[98:99]\ns_waitcnt lgkmcnt(0)\ns_cmp_lt_u32 s98, s{sT1}\ns_cbranch_scc1 {L}')
            a(f's_lshl_b32 s{sT0}, s2, 3\ns_add_u32 s{sT0}, s{sT0}, s{sWV}\ns_lshl_b32 s{sT0}, s{sT0}, 6\ns_add_u32 s{sT0}, s{sT0}, {WS_DBG:#x}')
            a('s_mov_b64 exec, 1')
            for i in range(16):
                a(f'v_mov_b32 v{vT}, s{sST+i}\nbuffer_store_dword v{vT}, off, s[{SWS}:{SWS+3}], s{sT0} offset:{4*i}')
            a('s_waitcnt vmcnt(0)')
        a('s_endpgm')
    def sig(self, off, va=vS):
        self.a(f'ds_write_b32 v{va}, v{vONE} offset:{off}')
    def wait(self, off, sleep=1, va=vF):
        a = self.a; L = a.label('W'); D = a.label('WD')
        a(f's_mov_b32 s{sCNT}, {SPIN}')
        a(f'{L}:')
        a(f'ds_read_b32 v{vT}, v{va} offset:{off}\ns_waitcnt lgkmcnt(0)\nv_cmp_eq_u32 vcc, 0, v{vT}\ns_cbranch_vccz {D}')
        a((f's_sleep {sleep}\n' if sleep else '') + f's_sub_u32 s{sCNT}, s{sCNT}, 1\ns_cbranch_scc0 {L}')
        a(f'{D}:')
    def xstore(self, lines, kind='o'):
        a = self.a
        if not opt('xc' + kind, 1 if kind == 'o' else 0):
            for x in lines: a(x + (' sc1' if x.startswith('buffer') else ''))
            return
        L = a.label('X'); D = a.label('XD')
        a(f's_cmp_eq_u32 s{sXC}, 1\ns_cbranch_scc0 {L}')
        for x in lines: a(x + (' nt' if x.startswith('buffer') and opt('xnt', 0) else ''))
        a(f's_branch {D}')
        a(f'{L}:')
        for x in lines: a(x + (' sc1' if x.startswith('buffer') else ''))
        a(f'{D}:')
    def get_tag(self):
        self.a(f'v_readfirstlane_b32 s{sTAG}, v{vEP}\ns_mul_i32 s{sTAG}, s{sTAG}, 0x9E3779B1\ns_add_u32 s{sTAG}, s{sTAG}, 0x7F4A7C15')

    def build(self):
        a = self.a
        a('s_cmp_ge_u32 s2, 256\ns_cbranch_scc1 L_exit')
        a('s_load_dwordx16 s[16:31], s[0:1], 0\ns_load_dwordx16 s[32:47], s[0:1], 64\ns_load_dwordx2 s[48:49], s[0:1], 128')
        if self.stamps:
            for i in range(16): a(f's_mov_b32 s{sST+i}, 0')
        a(f'v_and_b32 v{vLN}, 63, v0\nv_lshrrev_b32 v{vT}, 6, v0\nv_lshlrev_b32 v{vL16}, 4, v{vLN}\nv_readfirstlane_b32 s{sWV}, v{vT}')
        if opt('cpf', 1):
            a(f's_cmp_lt_u32 s{sWV}, 5\ns_cbranch_scc1 L_nocpf')
            a(f's_getpc_b64 s[{sM0}:{sM0+1}]')
            a('L_pc:')
            a(f's_lshr_b32 s{sT0}, s2, 3\ns_mul_i32 s{sT0}, s{sT0}, 3\ns_add_u32 s{sT0}, s{sT0}, s{sWV}\ns_sub_u32 s{sT0}, s{sT0}, 5\ns_lshl_b32 s{sT0}, s{sT0}, 9')
            a(f's_min_u32 s{sT0}, s{sT0}, L_exit-L_pc-512\ns_add_u32 s{sM0}, s{sM0}, s{sT0}\ns_addc_u32 s{sM0+1}, s{sM0+1}, 0')
            for k in range(8): a(f's_load_dword s{SOUT + k % 4}, s[{sM0}:{sM0+1}], {64*k}')
            a('L_nocpf:')
        a(f's_and_b32 s{sT0}, s2, 7\ns_lshr_b32 s{sT1}, s2, 3')
        a(f's_lshl_b32 s{sRB}, s{sT0}, 2\ns_lshr_b32 s{sT2}, s{sT1}, 3\ns_add_u32 s{sRB}, s{sRB}, s{sT2}\ns_and_b32 s{sCG}, s{sT1}, 7')
        a(f's_lshr_b32 s{sTB}, s{sRB}, 1\ns_and_b32 s{sPB}, s{sT1}, 15\ns_and_b32 s{sSW}, s{sWV}, 3')
        a(f's_cmp_ge_u32 s{sWV}, 4\ns_cbranch_scc1 L_service')
        a(f's_lshr_b32 s{sT5}, s{sCG}, 1\ns_lshl_b32 s{sT4}, s{sRB}, 16')
        def xa_rows(g):
            a(f's_add_u32 s{sT0}, s{sT5}, {g}\ns_and_b32 s{sT0}, s{sT0}, 3\ns_lshl_b32 s{sT0}, s{sT0}, 2\ns_add_u32 s{sT0}, s{sT0}, s{sSW}\ns_lshl_b32 s{sT0}, s{sT0}, 2')
            a(f's_mul_i32 s{sT1}, s{sT0}, 1040\ns_add_u32 m0, s{sT1}, {L_A1}\ns_lshl_b32 s{sT0}, s{sT0}, 10\ns_add_u32 s{sT0}, s{sT0}, s{sT4}')
            if g == 0:
                a('s_waitcnt lgkmcnt(0)')
                self.stamp(0)
                self.srd(SA, P(0), 2048 * 1024)
            for n in range(4):
                a(f'buffer_load_dwordx4 v{vL16}, s[{SA}:{SA+3}], s{sT0} offen offset:{1024*n} lds')
                if n < 3: a('s_add_u32 m0, m0, 16')
        xa_rows(0)
        a(f's_bitcmp1_b32 s{sCG}, 0\ns_cselect_b32 s{SB}, s{P(3)}, s{P(2)}\ns_cselect_b32 s{SB+1}, s{P(3)+1}, s{P(2)+1}\ns_mov_b32 s{SB+2}, 0x4000\ns_mov_b32 s{SB+3}, 0x20000')
        a(f's_lshl_b32 s{sT0}, s{sWV}, 12\ns_add_u32 m0, s{sT0}, {L_WKV}')
        a(f'v_lshrrev_b32 v2, 1, v{vL16}\nv_and_b32 v2, 128, v2\nv_xor_b32 v2, v2, v{vL16}')
        for n in range(4):
            a(f'buffer_load_dwordx4 v2, s[{SB}:{SB+3}], s{sT0} offen offset:{1024*n} lds')
        self.srd(SC, P(1), 512 * 1024)
        NPQ = 0
        if opt('pfq', 0):
            G = opt('pfg', 6)
            a(f'v_lshlrev_b32 v3, {G}, v{vLN}\ns_lshr_b32 s{sT0}, s2, 3\ns_lshl_b32 s{sT0}, s{sT0}, 2\ns_add_u32 s{sT0}, s{sT0}, s{sSW}\ns_lshl_b32 s{sT0}, s{sT0}, 12')
            if G == 7: a(f's_mov_b32 s{sM0}, -1\ns_mov_b32 s{sM0+1}, 0\ns_mov_b64 exec, s[{sM0}:{sM0+1}]')
            a(f'buffer_load_dword v4, v3, s[{SC}:{SC+3}], s{sT0} offen'); NPQ = 1
            if opt('pfq', 0) > 1:
                for p in (8, 9):
                    self.srd(SOUT, P(p), 512 * 1024)
                    a(f'buffer_load_dword v4, v3, s[{SOUT}:{SOUT+3}], s{sT0} offen'); NPQ += 1
                self.srd(SOUT, P(5), 2048 * 1024)
                a(f's_lshr_b32 s{sT0}, s{sT0}, 1\ns_and_b32 s{sT1}, s2, 7\ns_lshl_b32 s{sT1}, s{sT1}, 18\ns_add_u32 s{sT0}, s{sT0}, s{sT1}\nv_lshrrev_b32 v3, 1, v3')
                a(f'buffer_load_dword v4, v3, s[{SOUT}:{SOUT+3}], s{sT0} offen'); NPQ += 1
            a('s_mov_b64 exec, -1')
        self.wimg_lane_addr(0, 1)
        a(f's_lshl_b32 s{sT3}, s{sSW}, 13\ns_lshl_b32 s{sT1}, s{sCG}, 7\ns_add_u32 s{sT3}, s{sT3}, s{sT1}\ns_and_b32 s{sT1}, s{sRB}, 3\ns_lshl_b32 s{sT1}, s{sT1}, 17\ns_add_u32 s{sT3}, s{sT3}, s{sT1}')
        a(f's_lshl_b32 s{sT2}, s{sSW}, 10')
        def wq_rows(c):
            for n in range(4 * c, 4 * c + 4):
                a(f's_add_u32 m0, s{sT2}, {L_A2 + 4096*n}\ns_xor_b32 s{sT0}, s{sT3}, {0x8000*n:#x}')
                a(f'buffer_load_dwordx4 v0, s[{SC}:{SC+3}], s{sT0} offen lds')
        FO = opt('fo', 1)
        if FO == 0: wq_rows(0)
        else: xa_rows(1)
        self.common_regs()
        self.srd(SWS, P(16), WS_SIZE)
        a('s_barrier')
        self.stamp(1)
        a(f's_waitcnt vmcnt({4 + NPQ})')
        self.sig(F_L1)
        if FO == 0: xa_rows(1)
        xa_rows(2); xa_rows(3)
        if FO == 1: wq_rows(0)
        if FO == 0: wq_rows(1)
        a('s_waitcnt vmcnt(4)')
        self.sig(F_L2)
        if FO == 1: wq_rows(1)
        wq_rows(2); wq_rows(3)
        self.stamp(2)
        a('s_waitcnt vmcnt(8)')
        self.sig(F_L4)
        if opt('lay', 1):
            a('s_branch L_attn')
            self.service()
            self.cyc = True
            a('L_attn:')
            self.attention()
        else:
            self.attention()
            self.service()
        a('L_exit:\ns_endpgm')
        return a.finish()

    def common_regs(self):
        self.a(f'v_and_b32 v{vF}, 3, v{vLN}\nv_lshlrev_b32 v{vF}, 2, v{vF}\ns_lshl_b32 s{sT0}, s{sSW}, 2\nv_mov_b32 v{vS}, s{sT0}\nv_mov_b32 v{vONE}, 1')

    def wimg_lane_addr(self, vd, vt):
        a = self.a
        a(f'v_lshrrev_b32 v{vt}, 2, v{vLN}\nv_and_b32 v{vt}, 4, v{vt}\nv_and_b32 v{vd}, 7, v{vLN}\nv_xor_b32 v{vd}, v{vd}, v{vt}\nv_lshlrev_b32 v{vd}, 4, v{vd}')
        a(f'v_lshrrev_b32 v{vt}, 3, v{vLN}\nv_lshl_add_u32 v{vd}, v{vt}, 10, v{vd}')

    def tr_parts(self, c0, r, wpart):
        a = self.a
        a(f'v_bfe_u32 v{c0}, v{vLN}, 4, 1\nv_lshlrev_b32 v{c0}, 5, v{c0}\nv_and_b32 v{r}, 3, v{vLN}\nv_lshl_add_u32 v{c0}, v{r}, 3, v{c0}\nv_bfe_u32 v{r}, v{vLN}, 2, 2')
        a(f's_and_b32 s{sT0}, s{sSW}, 1\nv_lshrrev_b32 v{wpart}, 1, v{r}\nv_xor_b32 v{wpart}, s{sT0}, v{wpart}\nv_lshl_add_u32 v{wpart}, v{wpart}, 6, v{c0}\nv_lshl_add_u32 v{wpart}, v{r}, 7, v{wpart}')

    def prefetch(self, ptrs, vd):
        a = self.a
        a(f's_lshr_b32 s{sT0}, s2, 3\ns_lshl_b32 s{sT0}, s{sT0}, 2\ns_add_u32 s{sT0}, s{sT0}, s{sSW}\ns_lshl_b32 s{sT0}, s{sT0}, 12')
        for p in ptrs:
            self.srd(SOUT, P(p), 512 * 1024)
            a(f'buffer_load_dword v{vEP}, v{vd}, s[{SOUT}:{SOUT+3}], s{sT0} offen')

    def attention(self):
        a = self.a
        K, V, S0, O, Q = 0, 64, 192, 224, 240
        vIDX, vA16, vA8, vQA, vL8 = 244, 245, 246, 247, 248
        R = dict(K=K, V=V, S0=S0, O=O, Q=Q, vIDX=vIDX, vA16=vA16, vA8=vA8, vQA=vQA, vL8=vL8, vM=vEP)
        a(f'v_and_b32 v{Q}, 11, v{vLN}\nv_cmp_eq_u32 vcc, 0, v{Q}\nv_mov_b32 v{Q}, 0x3f803f80\nv_cndmask_b32 v{vT}, 0, v{Q}, vcc')
        MK = opt('mask', 0)
        self.masked = lambda i: (MK >> i) & 1
        for i in range(16):
            for r in range(0 if self.masked(i) else 4, 8): a(f'v_mov_b32 v{V+8*i+r}, v{vT}')
        a(f'v_lshlrev_b32 v{vL8}, 3, v{vLN}\nv_mov_b32 v{vIDX}, 0xdddd')
        def init_state(ph0):
            for i in range(16): a(f'v_mov_b32 v{O+i}, 0')
            a(f's_mov_b32 s{sTJ}, s{sSW}\ns_mov_b32 s{sPH}, {ph0}')
            a(f's_lshl_b32 s{sT0}, s{sTJ}, 10\nv_add_u32 v{vQA}, s{sT0}, v{vL16}')
            a(f's_lshl_b32 s{sT0}, s{sTJ}, 11\nv_add_u32 v{vA16}, s{sT0}, v{vL16}\ns_lshl_b32 s{sT0}, s{sTJ}, 9\nv_add_u32 v{vA8}, s{sT0}, v{vL8}')
        init_state(0)
        FS = opt('fs', 6)
        a(f'v_lshlrev_b32 v{S0+4}, {FS}, v{vLN}\nv_mov_b32 v{S0+3}, 0\ns_getreg_b32 s{sXC}, hwreg(HW_REG_XCC_ID)')
        a(f's_lshl_b32 s{sT3}, s{sWV}, {FS + 6}\ns_add_u32 s{sT3}, s{sT3}, {WS_KVFLAG:#x}')
        a(f's_lshl_b32 s{sT4}, s{sWV}, 15\ns_add_u32 s{sT4}, s{sT4}, {WS_KVIMG:#x}\ns_lshl_b32 s{sT0}, s{sCG}, 12\ns_add_u32 s{sT4}, s{sT4}, s{sT0}')
        a(f's_lshl_b32 s{sOW}, s{sRB}, 16\ns_lshl_b32 s{sT0}, s{sCG}, 12\ns_add_u32 s{sOW}, s{sOW}, s{sT0}\ns_add_u32 s{sOW}, s{sOW}, {WS_OBUF:#x}')
        a(f's_add_u32 s{sT0}, s{sSW}, 1\ns_and_b32 s{sT0}, s{sT0}, 3\ns_lshl_b32 s{sT0}, s{sT0}, 10\ns_add_u32 s{sOW}, s{sOW}, s{sT0}')
        a(f's_mov_b32 s{sM0}, 0xffff\ns_mov_b32 s{sM0+1}, 0xffff')
        a(f's_lshl_b32 s{sOB}, s{sRB}, 16\ns_lshr_b32 s{sT0}, s{sSW}, 1\ns_lshl_b32 s{sT0}, s{sT0}, 2\ns_and_b32 s{sT2}, s{sCG}, 3\ns_add_u32 s{sT0}, s{sT0}, s{sT2}\ns_lshl_b32 s{sT0}, s{sT0}, 12')
        a(f's_add_u32 s{sOB}, s{sOB}, s{sT0}\ns_add_u32 s{sOB}, s{sOB}, {WS_OBUF:#x}\ns_mov_b32 s{sPRE}, 0')
        self.tr_parts(0, 1, 2)
        a(f'v_lshrrev_b32 v1, 5, v{vLN}\nv_lshl_add_u32 v2, v1, 9, v2\ns_lshr_b32 s{sT0}, s{sSW}, 1\ns_lshl_b32 s{sT0}, s{sT0}, 15\ns_add_u32 s{sT0}, s{sT0}, {L_A1}\nv_add_u32 v{vLN}, s{sT0}, v2')
        a(f's_waitcnt vmcnt(0)')
        self.sig(F_L6)
        self.stamp(3)
        self.wait(F_QA if opt('pw', 0) == 0 else F_KVD, sleep=1)
        a(f'ds_read_b32 v{vEP}, v{vF} offset:{F_TAG}\ns_waitcnt lgkmcnt(0)\nv_readfirstlane_b32 s{sTAG}, v{vEP}')
        if opt('pf1', 0):
            a(f's_lshr_b32 s{sT0}, s2, 3\ns_lshl_b32 s{sT0}, s{sT0}, 2\ns_add_u32 s{sT0}, s{sT0}, s{sSW}\ns_lshl_b32 s{sT0}, s{sT0}, 12')
            for k, p in enumerate((8, 9)):
                self.srd(SB, P(p), 512 * 1024)
                for n in range(4): a(f'buffer_load_dwordx4 {q4(4 + 16*k + 4*n)}, v{vL16}, s[{SB}:{SB+3}], s{sT0} offen offset:{1024*n}')
            self.srd(SB, P(5), 2048 * 1024)
            a(f's_lshr_b32 s{sT0}, s{sT0}, 1\ns_and_b32 s{sT1}, s2, 7\ns_lshl_b32 s{sT1}, s{sT1}, 18\ns_add_u32 s{sT0}, s{sT0}, s{sT1}')
            for n in range(2): a(f'buffer_load_dwordx4 {q4(36 + 4*n)}, v{vL16}, s[{SB}:{SB+3}], s{sT0} offen offset:{1024*n}')
        if opt('pw', 0): a(f's_sleep {opt("pw", 0)}')
        a(f's_mov_b32 s{sCNT}, 100000')
        KW = opt('kw', 2)
        a(f's_lshr_b32 s{sT0}, s2, 3\ns_lshl_b32 s{sT0}, s{sT0}, 2\ns_add_u32 s{sT0}, s{sT0}, s{sSW}\ns_lshl_b32 s{sT0}, s{sT0}, 10\ns_add_u32 s{sT0}, s{sT0}, {WS_KVIMG:#x}')
        kwl = f'buffer_load_dwordx4 {q4(S0+8)}, v{vL16}, s[{SWS}:{SWS+3}], s{sT0} offen sc1'
        if KW == 2: a(kwl)
        a('L_kvp:')
        a(f'buffer_load_dwordx3 v[{S0}:{S0+2}], v{S0+4}, s[{SWS}:{SWS+3}], s{sT3} offen sc1')
        if KW == 1: a(kwl)
        a(f's_waitcnt vmcnt({1 if KW == 1 else 0})\nv_cmp_ne_u32 vcc, s{sTAG}, v{S0}\ns_cbranch_vccz L_kvpd')
        a(f's_sleep {opt("kvsleep", 4)}\ns_sub_u32 s{sCNT}, s{sCNT}, 1\ns_cbranch_scc0 L_kvp')
        a('L_kvpd:')
        if self.stamps: a(f's_mov_b32 s{sST+13}, s{sCNT}')
        self.stamp(4)
        for i in range(opt('nup', 7)): a(self.kvload(R, i))
        a(f'ds_max_u32 v{S0+3}, v{S0+1} offset:{F_KMAX}')
        a(f's_lshr_b32 s{sT0}, s{sRB}, 3\ns_cmp_eq_u32 s{sT0}, s{sSW}\ns_cbranch_scc0 L_noxc')
        a(f'v_cmp_ne_u32 vcc, s{sXC}, v{S0+2}\ns_bitcmp1_b32 s{sRB}, 2\ns_cselect_b32 s{sT0}, vcc_hi, vcc_lo\ns_cmp_eq_u32 s{sT0}, 0\ns_cselect_b32 s{sT0}, 1, 0')
        a(f'v_mov_b32 v{S0+2}, s{sT0}\nds_write_b32 v{S0+3}, v{S0+2} offset:{F_XC}')
        a('L_noxc:')
        self.wait(F_QP, sleep=0)
        a(f'ds_read_b128 {q4(Q)}, v{vQA} offset:{L_QF}')
        self.stamp(5)
        self.attn_fast(R)
        a('L_attn_epi:')
        if 'phs' in OPT:
            for p in range(8): a(f's_mov_b32 s{sST+2*p}, s{16+4*p}\ns_mov_b32 s{sST+2*p+1}, s{17+4*p}')
            a(f's_lshl_b32 s{sT0}, s2, 3\ns_add_u32 s{sT0}, s{sT0}, s{sWV}\ns_lshl_b32 s{sT0}, s{sT0}, 6\ns_add_u32 s{sT0}, s{sT0}, {WS_DBG + 0x100000:#x}')
            a('s_mov_b64 exec, 1')
            for i in range(16):
                a(f'v_mov_b32 v{vT}, s{sST+i}\nbuffer_store_dword v{vT}, off, s[{SWS}:{SWS+3}], s{sT0} offset:{4*i}')
            a('s_waitcnt vmcnt(0)\ns_endpgm')
        self.oproj_pre()
        self.stamp(6)
        self.publish(R, 0x8000, F_AY)
        if 'nosvc' in OPT or 'stop' in OPT: self.end()
        else: self.oproj()
        a('L_check6:')
        self.wait(F_S[9], sleep=1)
        a('s_branch L_checked6')
        a('L_check1:')
        self.wait(F_S[0], sleep=1)
        a(f'v_cmp_ne_u32 vcc, 1, v{vT}\ns_cbranch_vccz L_checked1')
        self.wait(F_S[9], sleep=1)
        a(f's_mov_b32 s{sXC}, 0')
        vL4, vW = vA8, vA16
        self.sig(F_SL[0]); self.wait(F_SL[0])
        a(f'v_lshrrev_b32 v{vL4}, 2, v{vL16}\ns_mov_b32 s{sT2}, 0\ns_lshl_b32 s{sT3}, s{sWV}, 11\nv_add_u32 v{vW}, s{sT3}, v{vL4}')
        a('L_slow_pre:')
        a(f's_lshl_b32 s{sT0}, s{sT2}, 10\nv_add_u32 v{vT}, s{sT0}, v{vL16}\nds_read_b128 {q4(Q)}, v{vT} offset:{L_QF}\ns_waitcnt lgkmcnt(0)')
        a(f'v_mov_b32 v{S0+20}, 0xff800000')
        for i in range(16):
            a(f'v_mfma_f32_32x32x16_bf16 {t16(S0)}, {q4(K+4*i)}, {q4(Q)}, 0')
            for r in range(0, 16, 2): a(f'v_max3_f32 v{S0+20}, v{S0+r}, v{S0+r+1}, v{S0+20}')
        a(f'v_mov_b32 v{S0+21}, v{S0+20}\nv_permlane32_swap_b32 v{S0+20}, v{S0+21}\nv_max_f32 v{S0+20}, v{S0+20}, v{S0+21}')
        a(f'ds_write_b32 v{vW}, v{S0+20} offset:{L_ACCD}\nv_add_u32 v{vW}, 256, v{vW}')
        a(f's_add_u32 s{sT2}, s{sT2}, 1\ns_cmp_lt_u32 s{sT2}, 8\ns_cbranch_scc1 L_slow_pre')
        self.sig(F_SL[1]); self.wait(F_SL[1])
        a(f's_lshl_b32 s{sT0}, s{sWV}, 8\nv_add_u32 v{vW}, s{sT0}, v{vL4}')
        for t in range(2):
            for w in range(4): a(f'ds_read_b32 v{S0+4*t+w}, v{vW} offset:{L_ACCD + 2048*w + 1024*t}')
        a(f'v_and_b32 v{vW}, 0x7c, v{vL4}\ns_lshl_b32 s{sT0}, s{sWV}, 7\ns_add_u32 s{sT0}, s{sT0}, {L_MX}\nv_add_u32 v{vW}, s{sT0}, v{vW}')
        a('s_waitcnt lgkmcnt(0)')
        for t in range(2):
            b = S0 + 4 * t
            a(f'v_max3_f32 v{b}, v{b}, v{b+1}, v{b+2}\nv_max_f32 v{b}, v{b}, v{b+3}\nds_write_b32 v{vW}, v{b} offset:{512*t}')
        init_state(16)
        a(f'v_mov_b32 v{S0}, 0\nv_mov_b32 v{S0+1}, 17\nds_write_b64 v{vA8}, {pr(S0)} offset:{L_ACCF+2048}')
        a(f'ds_write_b128 v{vA16}, {q4(O)} offset:{L_ACCD+8192}\nds_write_b128 v{vA16}, {q4(O)} offset:{L_ACCD+8192+1024}')
        self.sig(F_SL[2]); self.wait(F_SL[2])
        a(f'ds_read_b128 {q4(Q)}, v{vQA} offset:{L_QF}')
        self.attn_loop(R, True)
        a('s_branch L_attn_epi')

    QD = [r for i in range(16) for r in (4 * i, 64 + 8 * i, 68 + 8 * i)]
    def WF(self, st): return self.QD[st]
    def OF(self, q, n): return self.QD[16 + 4 * ((q + 3) % 4) + 16 * (q // 4) + n]
    def wo_read(self, st, vWO): return f'ds_read_b64_tr_b16 {pr(self.WF(st))}, v{vWO} offset:{2048*st}\nds_read_b64_tr_b16 {pr(self.WF(st)+2)}, v{vWO} offset:{2048*st+1024}'
    def o_load(self, q):
        t = f's_xor_b32 s{sT0}, s{sOB}, {4096*(q%4) + 0x8000*(q//4):#x}'
        for n in range(4): t += f'\nbuffer_load_dwordx4 {q4(self.OF(q, n))}, v{vL16}, s[{SWS}:{SWS+3}], s{sT0} offen offset:{1024*n} sc1'
        return t

    def kvload(self, R, i):
        K, V = R['K'], R['V']
        t = ''
        if i % 2 == 0 and i > 0: t += f's_xor_b32 s{sT4}, s{sT4}, {((i // 2) ^ (i // 2 - 1)) << 12:#x}\n'
        o = (i % 2) * 2048
        t += f'buffer_load_dwordx4 {q4(K+4*i)}, v{vL16}, s[{SWS}:{SWS+3}], s{sT4} offen offset:{o} sc1\n'
        if self.masked(i):
            t += f's_mov_b64 exec, s[{sM0}:{sM0+1}]\nbuffer_load_dwordx4 {q4(V+8*i)}, v{vL16}, s[{SWS}:{SWS+3}], s{sT4} offen offset:{o+1024} sc1\n'
            t += f'buffer_load_dwordx4 {q4(V+8*i+4)}, v{vL16}, s[{SWS}:{SWS+3}], s{sT4} offen offset:{o+1024+256} sc1\ns_mov_b64 exec, -1'
        else:
            t += f'buffer_load_dwordx4 {q4(V+8*i)}, v{vL16}, s[{SWS}:{SWS+3}], s{sT4} offen offset:{o+1024} sc1'
        return t

    def publish(self, R, off, flag):
        a = self.a; O = R['O']
        a(f'v_rcp_f32 v{O+8}, v{O+8}\ns_add_u32 s{sT0}, s{sOW}, {off}')
        for r in range(0, 8, 2): a(f'v_pk_mul_f32 {pr(O+r)}, {pr(O+8)}, {pr(O+r)} op_sel:[0,0] op_sel_hi:[0,1]')
        for r in range(4): a(f'v_cvt_pk_bf16_f32 v{O+r}, v{O+2*r}, v{O+2*r+1}')
        self.xstore([f'buffer_store_dwordx4 {q4(O)}, v{vL16}, s[{SWS}:{SWS+3}], s{sT0} offen'])
        if off: self.sig(flag)

    def attn_fast(self, R):
        a = self.a
        K, V, S0, O, Q = R['K'], R['V'], R['S0'], R['O'], R['Q']
        vIDX, vA16, vA8, vQA, vL8 = R['vIDX'], R['vA16'], R['vA8'], R['vQA'], R['vL8']
        NUP = opt('nup', 7)
        sK = [[50, 51, 80], [sT1, sT2, sT3], [sT5, sPH, sTJ]]
        for k in range(1, 4):
            a(f's_sub_u32 s{sT0}, s{sSW}, {k}\ns_and_b32 s{sT0}, s{sT0}, 3\ns_lshl_b32 s{sK[k-1][0]}, s{sT0}, 9\ns_lshl_b32 s{sK[k-1][1]}, s{sT0}, 10\ns_lshl_b32 s{sK[k-1][2]}, s{sT0}, 11')
        def Sb(i): return S0 + 16 * (i % 2)
        def E(i, r): return f'v_exp_f32 v{Sb(i)+r}, v{Sb(i)+r}'
        def QK(i): return f'v_mfma_f32_32x32x16_bf16 {t16(Sb(i))}, {q4(K+4*(i%16))}, {q4(Q)}, 0'
        def PV(i, h): return f'v_smfmac_f32_32x32x32_bf16 {t16(O)}, {q4(V+8*(i%16)+4*h)}, v[{Sb(i)+8*h}:{Sb(i)+8*h+7}], v{vIDX}'
        def rd(st): return [f'ds_read_b64 {pr(O+8)}, v{vA8} offset:{L_ACCF+2048*st}', f'ds_read_b128 {q4(O)}, v{vA16} offset:{L_ACCD+8192*st}', f'ds_read_b128 {q4(O+4)}, v{vA16} offset:{L_ACCD+8192*st+1024}']
        def wr(st): return [f'ds_write_b128 v{vA16}, {q4(O)} offset:{L_ACCD+8192*st}', f'ds_write_b128 v{vA16}, {q4(O+4)} offset:{L_ACCD+8192*st+1024}', f'ds_write_b64 v{vA8}, {pr(O+8)} offset:{L_ACCF+2048*st}']
        nl = lambda i: 3 if self.masked(i) else 2
        def plain(p, i):
            e = [E(i, r) for r in range(16)]
            w = []; sw = []; ld = []
            if p == 0:
                KR = opt('kr', 2)
                issued = sum(nl(t) for t in range(min(16, KR * i + NUP)))
                VW = opt('vw', 2)
                if i % VW == 0 or i < 2:
                    last = i if i < 2 else min(15, i + VW - 1)
                    needed = sum(nl(t) for t in range(last + 1)) + (1 if last < 15 else 0)
                    w = [f's_waitcnt vmcnt({issued - needed})']
                if not self.masked(i): sw = [f'v_permlane16_swap_b32 v{V+8*i+r}, v{V+8*i+4+r}' for r in range(4)]
                for t in range(KR * i + NUP, min(16, KR * (i + 1) + NUP)):
                    ld += [self.kvload(R, t)]
                    if t == 15: ld += [f'ds_write_b32 v{vS}, v{vONE} offset:{F_A1}']
            qk = [QK(i + 1)]
            if i == 15:
                if p < 7: w += ['s_waitcnt lgkmcnt(0)']
                else: qk = []
            if i == 14 and p < 7:
                if p % 2 == 1: ld += [f'v_add_u32 v{vQA}, s{sK[p//2][1]}, v{vL16}']
                ld += [f'ds_read_b128 {q4(Q)}, v{vQA} offset:{L_QF + 4096*((p+1)%2)}']
                if p in (1, 6): ld += [f'ds_read_b32 v{vT}, v{vF} offset:{F_S[0] if p == 1 else F_S[9]}']
                if p == 6: ld += [f'ds_read_b32 v{vEP}, v{vF} offset:{F_XC}']
            if i == 15 and p in (1, 6):
                sw = [f'v_cmp_ne_u32 vcc, 1, v{vT}'] + ([f'v_readfirstlane_b32 s{sXC}, v{vEP}'] if p == 6 else [])
                ld = [f's_cbranch_vccnz L_check{p}', f'L_checked{p}:']
            if p == 7 and opt('pre', 1) and 'nosvc' not in OPT and 'stop' not in OPT:
                P0 = opt('pre0', 6)
                if i == P0 - 1: ld += [f'ds_read_b32 v{vT}, v{vF} offset:{F_S[5]}']
                if i == P0: ld += [f's_waitcnt lgkmcnt(0)\nv_cmp_eq_u32 vcc, 0, v{vT}\ns_cmp_eq_u64 vcc, 0\ns_cselect_b32 s{sPRE}, 1, 0']
                if i == opt('rel', 15): ld += [f'ds_write_b32 v{vS}, v{vONE} offset:{F_AX}']
                grp = []
                k = i - P0 - 1
                if 0 <= k < 4: grp = [self.wo_read(st, vLN) for st in range(4 * k, 4 * k + 4)]; top = 4 * k + 3
                if 4 <= k < 8: grp = [self.o_load((k - 3) % 4)]; top = 16 + 4 * (k - 4) + 3
                if grp:
                    assert top // 3 < i, (top, i)
                    L = a.label('PF')
                    ld += [f's_cmp_eq_u32 s{sPRE}, 0\ns_cbranch_scc1 {L}'] + grp + [f'{L}:']
            seq = e[0:2] + ([] if (p == 0 and i == 0) else [PV(i - 1, 1)]) + e[2:5] + w + qk + sw + e[5:7] + ld + e[7:11] + [PV(i, 0)] + e[11:16]
            for x in seq: a(x)
        a(f's_setprio {opt("aprio", 1)}')
        a(f's_waitcnt vmcnt({sum(nl(t) for t in range(NUP)) - 1}) lgkmcnt(0)')
        a(QK(0))
        NW = opt('nw', 5)
        for p in range(8):
            if p == 0:
                plain(0, 0); plain(0, 1)
            else:
                e = [E(0, r) for r in range(16)]
                for x in e[0:2] + [PV(15, 1)] + e[2:5] + [QK(1)] + e[5:8]: a(x)
                so, si = (p - 1) % 2, p % 2
                if p < 7:
                    for x in [wr(so)[0], f'v_mov_b32 v{O+9}, {p+1}', wr(so)[1], wr(so)[2]]: a(x)
                else:
                    self.publish(R, 0, F_AX)
                if p % 2 == 0: a(f'v_add_u32 v{vA8}, s{sK[p//2-1][0]}, v{vL8}\nv_add_u32 v{vA16}, s{sK[p//2-1][2]}, v{vL16}')
                if p == 1:
                    for r in range(0, 8, 2): a(f'v_pk_mul_f32 {pr(O+r)}, {pr(O+10)}, {pr(O+10)}')
                    a(f'v_mov_b32 v{O+8}, 0')
                    for x in e[8:11] + [PV(0, 0)] + e[11:16]: a(x)
                    plain(p, 1)
                else:
                    for x in rd(si) + e[8:16]: a(x)
                    e = [E(1, r) for r in range(16)]
                    for x in e[0:NW]: a(x)
                    a(f's_waitcnt lgkmcnt(0)\nv_cmp_gt_u32 vcc, {p}, v{O+9}')
                    a(e[NW])
                    a(f's_cbranch_vccnz L_hw{p}')
                    a(f'L_hd{p}:')
                    n = NW + 1
                    for x in [PV(0, 0)] + e[n:n+3] + [PV(0, 1)] + e[n+3:n+6] + [QK(2)] + e[n+6:n+9] + [PV(1, 0)] + e[n+9:16]: a(x)
            for i in range(2, 16):
                plain(p, i)
            if p == 0: self.stamp(7)
            if 'phs' in OPT: a(f's_memtime s[98:99]\ns_memrealtime s[{16+4*p}:{17+4*p}]\ns_waitcnt lgkmcnt(0)\ns_mov_b32 s{17+4*p}, s98')
        a('s_nop 0')
        a(PV(15, 1))
        a(f's_branch L_attn_epi')
        for p in range(2, 8):
            a(f'L_hw{p}:')
            a(f's_mov_b32 s{sCNT}, {SPIN}')
            a(f'L_hl{p}:')
            a(f's_sleep 1')
            for x in rd(p % 2): a(x)
            a(f's_waitcnt lgkmcnt(0)\nv_cmp_gt_u32 vcc, {p}, v{O+9}\ns_cbranch_vccz L_hd{p}\ns_sub_u32 s{sCNT}, s{sCNT}, 1\ns_cbranch_scc0 L_hl{p}\ns_branch L_hd{p}')

    def attn_loop(self, R, slow):
        a = self.a
        K, V, S0, O, Q = R['K'], R['V'], R['S0'], R['O'], R['Q']
        vIDX, vA16, vA8, vQA, vL8, vM = R['vIDX'], R['vA16'], R['vA8'], R['vQA'], R['vL8'], R['vM']
        sf = '_s' if slow else '_f'
        PH0 = 16 if slow else 0
        NUP = opt('nup', 6)
        def Sb(i): return S0 + 16 * (i % 2)
        def E(i, r):
            s = Sb(i) + r
            return (f'v_sub_f32 v{s}, v{s}, v{vM}\n' if slow else '') + f'v_exp_f32 v{s}, v{s}'
        def QK(i): return f'v_mfma_f32_32x32x16_bf16 {t16(Sb(i))}, {q4(K+4*(i%16))}, {q4(Q)}, 0'
        def PV(i, h): return f'v_smfmac_f32_32x32x32_bf16 {t16(O)}, {q4(V+8*(i%16)+4*h)}, v[{Sb(i)+8*h}:{Sb(i)+8*h+7}], v{vIDX}'
        rd = [f'ds_read_b64 {pr(O+8)}, v{vA8} offset:{L_ACCF}', f'ds_read_b128 {q4(O)}, v{vA16} offset:{L_ACCD}', f'ds_read_b128 {q4(O+4)}, v{vA16} offset:{L_ACCD+1024}']
        wr = [f'ds_write_b128 v{vA16}, {q4(O)} offset:{L_ACCD}', f'ds_write_b128 v{vA16}, {q4(O+4)} offset:{L_ACCD+1024}', f'ds_write_b64 v{vA8}, {pr(O+8)} offset:{L_ACCF}']
        def getm():
            if slow:
                a(f'v_lshrrev_b32 v{vT}, 2, v{vL16}\nv_and_b32 v{vT}, 0x7c, v{vT}\ns_lshl_b32 s{sT0}, s{sTJ}, 7\ns_add_u32 s{sT0}, s{sT0}, {L_MX}\nv_add_u32 v{vT}, s{sT0}, v{vT}')
                a(f'ds_read_b32 v{vM}, v{vT}\ns_waitcnt lgkmcnt(0)')
        nl = lambda i: 3 if self.masked(i) else 2
        def plain(i, ph0=False):
            e = [E(i, r) for r in range(16)]
            w = []; sw = []; ld = []
            if ph0 and not slow:
                issued = sum(nl(t) for t in range(min(16, i + NUP)))
                needed = sum(nl(t) for t in range(i + 1)) + (1 if i < 15 else 0)
                w = [f's_waitcnt vmcnt({issued - needed})']
                if not self.masked(i): sw = [f'v_permlane16_swap_b32 v{V+8*i+r}, v{V+8*i+4+r}' for r in range(4)]
                if i + NUP < 16: ld = [self.kvload(R, i + NUP)]
                if i + NUP == 15: ld += [f'ds_write_b32 v{vS}, v{vONE} offset:{F_A1}']
            if i == 15: w += ['s_waitcnt lgkmcnt(0)']
            seq = e[0:2] + ([] if (ph0 and i == 0) else [PV(i - 1, 1)]) + e[2:5] + w + [QK(i + 1)] + sw
            if i == 14:
                seq += [f's_add_u32 s{sT1}, s{sPH}, 1\ns_lshr_b32 s{sT2}, s{sT1}, 1\ns_sub_u32 s{sT2}, s{sSW}, s{sT2}', e[5],
                        f's_and_b32 s{sT2}, s{sT2}, 3\ns_and_b32 s{sT1}, s{sT1}, 1\ns_lshl_b32 s{sT1}, s{sT1}, 2', e[6],
                        f's_add_u32 s{sT2}, s{sT2}, s{sT1}\ns_lshl_b32 s{sT0}, s{sT2}, 10', e[7], f'v_add_u32 v{vQA}, s{sT0}, v{vL16}', e[8],
                        f'ds_read_b128 {q4(Q)}, v{vQA} offset:{L_QF}'] + e[9:11]
            else:
                seq += e[5:11]
            seq += [PV(i, 0)] + e[11:13] + ld + e[13:16]
            for x in seq: a(x)
        a(f's_setprio {opt("aprio", 1)}')
        getm()
        a(f's_waitcnt vmcnt({sum(nl(t) for t in range(NUP)) - 1}) lgkmcnt(0)')
        a(QK(0))
        if slow:
            plain(0, True); plain(1)
            a(f's_branch L_mid{sf}')
        else:
            for i in range(16): plain(i, True)
            self.stamp(7)
        a('.p2align 6')
        a(f'L_loop{sf}:')
        a(f's_add_u32 s{sPH}, s{sPH}, 1\ns_mov_b32 s{sTJ}, s{sT2}')
        getm()
        e = [E(0, r) for r in range(16)]
        for x in e[0:2] + [PV(15, 1), e[2], f's_add_u32 s{sT1}, s{sPH}, 1', e[3], f's_lshl_b32 s{sT3}, s{sTJ}, 9', e[4], QK(1), f's_lshl_b32 s{sT4}, s{sTJ}, 11', e[5], e[6],
                           f's_cmp_eq_u32 s{sPH}, {PH0 + 7}', e[7], f's_cbranch_scc1 L_finx{sf}',
                           wr[0], f'v_mov_b32 v{O+9}, s{sT1}', e[8], wr[1], e[9], wr[2]]: a(x)
        a(f'L_finxd{sf}:')
        for x in [f'v_add_u32 v{vA8}, s{sT3}, v{vL8}', f'v_add_u32 v{vA16}, s{sT4}, v{vL16}', rd[0], e[10], rd[1], e[11], rd[2]] + e[12:16]: a(x)
        e0 = e
        e = [E(1, r) for r in range(16)]
        NW = opt('nw', 6)
        for x in e[0:NW]: a(x)
        a(f's_waitcnt lgkmcnt(0)\nv_cmp_gt_u32 vcc, s{sPH}, v{O+9}\ns_cbranch_vccnz L_hw{sf}')
        a(f'L_hd{sf}:')
        for x in [PV(0, 0)] + e[NW:NW+3] + [PV(0, 1)] + e[NW+3:NW+6] + [QK(2)] + e[NW+6:NW+9] + [PV(1, 0)] + e[NW+9:16]: a(x)
        a(f'L_mid{sf}:')
        for i in range(2, 16):
            plain(i)
        a(f's_cmp_lt_u32 s{sPH}, {PH0 + 7}\ns_cbranch_scc1 L_loop{sf}')
        a(PV(15, 1))
        a(f's_nop 10\ns_branch L_end{sf}')
        a(f'L_finx{sf}:')
        a(e0[8]); a(e0[9])
        self.publish(R, 0, F_AX)
        a(f's_branch L_finxd{sf}')
        a(f'L_hw{sf}:')
        a(f's_mov_b32 s{sCNT}, {SPIN}')
        a(f'L_hl{sf}:')
        a(f's_sleep 1')
        for x in rd: a(x)
        a(f's_waitcnt lgkmcnt(0)\nv_cmp_gt_u32 vcc, s{sPH}, v{O+9}\ns_cbranch_vccz L_hd{sf}\ns_sub_u32 s{sCNT}, s{sCNT}, 1\ns_cbranch_scc0 L_hl{sf}\ns_branch L_hd{sf}')
        a(f'L_end{sf}:')

    def oproj_pre(self):
        a = self.a
        a('s_setprio 3')
        self.sig(F_AX)
        a(f'v_lshrrev_b32 v241, 9, v{vL16}\nv_bfe_u32 v243, v{vL16}, 2, 7\nv_lshl_add_u32 v243, v241, 14, v243\nv_mov_b32 v240, 0\nv_mov_b32 v241, 0')
        a(f's_and_b32 s{sT0}, s{sOW}, 0xc00\ns_lshl_b32 s{sT0}, s{sT0}, 1\nv_add_u32 v242, s{sT0}, v{vL16}\ns_xor_b32 s{sT0}, s{sT0}, 0x1000\nv_add_u32 v245, s{sT0}, v{vL16}\nv_xor_b32 v246, 8, v{vS}')

    def oproj(self):
        a = self.a
        vZ, vOA, vXW, vXR, vP = 240, 243, 242, 245, 246
        OA = [192, 208]
        sPEND, sKH, sOUT = sT3, sT1, sT5
        order = (1, 2, 3, 0)
        for h in range(2): a(f'v_mfma_f32_32x32x8_bf16 {t16(OA[h])}, {pr(vZ)}, {pr(vZ)}, 0')
        loads = lambda q: a(self.o_load(q))
        def proc(q, lab):
            R_ = [self.OF(q, n) + r for n in range(4) for r in range(4)]
            a(f'v_max3_u32 v{vT}, v{R_[0]}, v{R_[1]}, v{R_[2]}')
            for r in range(3, 15, 2): a(f'v_max3_u32 v{vT}, v{R_[r]}, v{R_[r+1]}, v{vT}')
            a(f'v_max_u32 v{vT}, v{R_[15]}, v{vT}\nv_cmp_eq_u32 vcc, -1, v{vT}\ns_cbranch_vccnz {lab}')
            for n in range(4):
                a(f'v_mfma_f32_32x32x16_bf16 {t16(OA[q//4])}, {q4(self.OF(q, n))}, {q4(self.WF(4*(q%4)+n))}, {t16(OA[q//4])}')
            a(f's_bitset0_b32 s{sPEND}, {q}')
            a(f'{lab}:')
        a(f's_mov_b32 s{sPEND}, 0xff\ns_cmp_eq_u32 s{sPRE}, 0\ns_cbranch_scc1 L_nopre')
        a('s_waitcnt vmcnt(1) lgkmcnt(0)')
        proc(1, 'L_o0_1'); proc(2, 'L_o0_2')
        self.wait(F_AY, sleep=0)
        a('s_branch L_prej')
        a('L_nopre:')
        self.wait(F_S[5], sleep=1)
        self.wait(F_AY, sleep=0)
        for q in order: loads(q)
        for st in range(16): a(self.wo_read(st, vLN))
        a('s_waitcnt vmcnt(0) lgkmcnt(0)')
        proc(1, 'L_o0b_1'); proc(2, 'L_o0b_2')
        a('L_prej:')
        self.stamp(11)
        loads(5); loads(6)
        proc(3, 'L_o0_3')
        loads(7)
        proc(0, 'L_o0_0')
        loads(4)
        self.stamp(12)
        self.srd(SOUT, P(14), 2048 * 4096)
        a(f's_lshr_b32 s{sKH}, s{sSW}, 1\ns_mov_b32 s{sCNT}, 50000')
        a(f's_lshl_b32 s{sOUT}, s{sRB}, 18\ns_lshl_b32 s{sT0}, s{sCG}, 1\ns_and_b32 s{sT2}, s{sWV}, 1\ns_add_u32 s{sT0}, s{sT0}, s{sT2}\ns_lshl_b32 s{sT0}, s{sT0}, 7\ns_add_u32 s{sOUT}, s{sOUT}, s{sT0}\ns_lshl_b32 s{sT0}, s{sKH}, 17\ns_add_u32 s{sOUT}, s{sOUT}, s{sT0}')
        for k, q in enumerate(order):
            a(f's_waitcnt vmcnt({12 - 4*k})')
            proc(4 + q, f'L_o1_{q}')
        a('L_oretry:')
        a(f's_cmp_eq_u32 s{sPEND}, 0\ns_cbranch_scc1 L_odone\ns_sub_u32 s{sCNT}, s{sCNT}, 1\ns_cbranch_scc1 L_odone')
        for q in range(8):
            a(f's_bitcmp0_b32 s{sPEND}, {q}\ns_cbranch_scc1 L_ol_{q}')
            loads(q)
            a(f'L_ol_{q}:')
        a('s_waitcnt vmcnt(0)')
        for q in range(8):
            a(f's_bitcmp0_b32 s{sPEND}, {q}\ns_cbranch_scc1 L_o2_{q}')
            proc(q, f'L_o2_{q}')
        a('s_branch L_oretry')
        a('L_odone:')
        if self.stamps: a(f's_mov_b32 s{sST+14}, s{sCNT}')
        self.stamp(1)
        fl = {0: '', 1: ' sc1', 2: ' nt', 3: ' sc0 sc1', 4: ' sc1 nt', 5: ' sc0 nt', 6: ' sc0 sc1 nt'}[opt('ofl', 2)]
        a(f's_nop 7\ns_cmp_eq_u32 s{sKH}, 0\ns_cbranch_scc0 L_ohi')
        for kh in range(2):
            keep, send = OA[kh], OA[1 - kh]
            for q in range(4): a(f'ds_write_b128 v{vXW}, {q4(send+4*q)} offset:{L_ACCD + 8192*(q//2) + 1024*(q%2)}')
            self.sig(F_OX)
            self.wait(F_OX, sleep=0, va=vP)
            for q in range(4): a(f'ds_read_b128 {q4(4*q)}, v{vXR} offset:{L_ACCD + 8192*(q//2) + 1024*(q%2)}')
            for r in range(16):
                if r % 4 == 0: a(f's_waitcnt lgkmcnt({3 - r//4})')
                a(f'v_add_f32 v{r}, v{r}, v{keep+r}\ns_add_u32 s{sT0}, s{sOUT}, {((r % 4) + 8 * (r // 4)) * 4096}')
                a(f'buffer_store_dword v{r}, v{vOA}, s[{SOUT}:{SOUT+3}], s{sT0} offen{fl}')
            self.end()
            if kh == 0: a('L_ohi:')

    def kvproj(self):
        a = self.a
        vXA, vWA, vU, vO, vZ, D = 176, 177, 178, 179, 180, 184
        a(f's_lshr_b32 s{sT5}, s{sCG}, 1')
        a(f'v_and_b32 v{vT}, 15, v{vLN}\ns_lshl_b32 s{sT0}, s{sT5}, 4\nv_add_u32 v{vO}, s{sT0}, v{vT}\nv_mul_u32_u24 v{vXA}, 1040, v{vO}')
        a(f'v_lshrrev_b32 v{vU}, 4, v{vLN}\nv_lshl_add_u32 v{vXA}, v{vU}, 4, v{vXA}\nv_add_u32 v{vXA}, {L_A1}, v{vXA}')
        a(f'v_lshlrev_b32 v{vWA}, 3, v{vT}\nv_lshl_add_u32 v{vWA}, v{vU}, 8, v{vWA}\nv_and_b32 v181, 1, v{vU}\nv_lshl_add_u32 v{vWA}, v181, 7, v{vWA}\nv_xor_b32 v181, 128, v{vWA}\nv_add_u32 v{vWA}, {L_WKV}, v{vWA}\nv_add_u32 v181, {L_WKV}, v181')
        a(f's_and_b32 s{sT1}, s{sCG}, 1\ns_xor_b32 s{sT2}, s{sT1}, 1')
        a(f'v_lshrrev_b32 v{vO}, s{sT1}, v{vU}\nv_and_b32 v{vO}, 1, v{vO}\nv_lshlrev_b32 v{vO}, 9, v{vO}\nv_lshl_add_u32 v{vO}, v{vT}, 4, v{vO}')
        a(f'v_lshrrev_b32 v{vT}, s{sT2}, v{vU}\nv_and_b32 v{vT}, 1, v{vT}\nv_lshl_add_u32 v{vO}, v{vT}, 3, v{vO}')
        a(f's_lshl_b32 s{sT0}, s{sRB}, 1\ns_lshr_b32 s{sT2}, s{sT5}, 1\ns_add_u32 s{sT0}, s{sT0}, s{sT2}\ns_lshl_b32 s{sT0}, s{sT0}, 1\ns_add_u32 s{sT0}, s{sT0}, s{sT1}\ns_lshl_b32 s{sT0}, s{sT0}, 10')
        a(f's_and_b32 s{sT2}, s{sT5}, 1\ns_lshl_b32 s{sT2}, s{sT2}, 8\ns_add_u32 s{sT0}, s{sT0}, s{sT2}\ns_add_u32 s{sT3}, s{sT0}, {WS_KVIMG:#x}')
        a(f's_lshl_b32 s{sT4}, s{sRB}, 3\ns_add_u32 s{sT4}, s{sT4}, s{sCG}\ns_lshl_b32 s{sT4}, s{sT4}, {opt("fs", 6)}\ns_add_u32 s{sT4}, s{sT4}, {WS_KVFLAG:#x}')
        a(f'v_mov_b32 v{vZ}, 0')
        a(f's_lshl_b32 s{sT0}, s{sSW}, 8\nv_add_u32 v{vXA}, s{sT0}, v{vXA}\ns_lshl_b32 s{sT0}, s{sSW}, 12\nv_add_u32 v{vWA}, s{sT0}, v{vWA}\nv_add_u32 v181, s{sT0}, v181')
        a(f's_lshl_b32 s{sT0}, s{sSW}, 10\nv_add_u32 v{vU}, s{sT0}, v{vL16}')
        self.wait(F_L1, sleep=0)
        self.stamp(12)
        for s in range(4):
            b = 128 + 8 * s
            a(f'ds_read_b128 {q4(b)}, v{vXA} offset:{64*s}')
            a(f'ds_read_b64_tr_b16 {pr(b+4)}, v{vWA} offset:{1024*s}')
            a(f'ds_read_b64_tr_b16 {pr(b+6)}, v181 offset:{1024*s}')
        a(f's_bitcmp1_b32 s{sCG}, 0\ns_cbranch_scc1 L_kv_v')
        for kind in 'kv':
            for s in range(4):
                a(f's_waitcnt lgkmcnt({3 * (3 - s)})')
                b = 128 + 8 * s
                A, B = (q4(b + 4), q4(b)) if kind == 'k' else (q4(b), q4(b + 4))
                a(f'v_mfma_f32_16x16x32_bf16 {q4(D)}, {A}, {B}, {"0" if s == 0 else q4(D)}')
            if kind == 'k': a('s_branch L_kv_j\nL_kv_v:')
        a('L_kv_j:')
        a(f's_cmp_eq_u32 s{sSW}, 0\ns_cbranch_scc1 L_kv_0\ns_nop 5')
        a(f'ds_write_b128 v{vU}, {q4(D)} offset:{L_QF}')
        self.sig(F_S[4])
        a('s_branch L_nokv')
        a('L_kv_0:')
        self.sig(F_S[4])
        self.wait(F_S[4], sleep=0)
        for q in range(3): a(f'ds_read_b128 {q4(128+4*q)}, v{vL16} offset:{L_QF + 1024*(q+1)}')
        for q in range(3):
            a(f's_waitcnt lgkmcnt({2-q})\nv_pk_add_f32 {pr(D)}, {pr(D)}, {pr(128+4*q)}\nv_pk_add_f32 {pr(D+2)}, {pr(D+2)}, {pr(130+4*q)}')
        a(f'v_cvt_pk_bf16_f32 v188, v{D}, v{D+1}\nv_cvt_pk_bf16_f32 v189, v{D+2}, v{D+3}')
        a(f'buffer_store_dwordx2 v[188:189], v{vO}, s[{SWS}:{SWS+3}], s{sT3} offen sc1')
        a(f's_bitcmp1_b32 s{sCG}, 0\ns_cbranch_scc1 L_kv_v2')
        a(f'v_mul_f32 v190, v{D}, v{D}\nv_fmac_f32 v190, v{D+1}, v{D+1}\nv_fmac_f32 v190, v{D+2}, v{D+2}\nv_fmac_f32 v190, v{D+3}, v{D+3}')
        a('v_mov_b32 v191, v190\nv_permlane32_swap_b32 v190, v191\nv_add_f32 v190, v190, v191')
        a('v_mov_b32 v191, v190\nv_permlane16_swap_b32 v190, v191\nv_add_f32 v190, v190, v191')
        a('s_mov_b64 exec, 0xffff\ns_branch L_kv_fin')
        a('L_kv_v2:')
        a(f'v_max3_f32 v190, |v{D}|, |v{D+1}|, |v{D+2}|\nv_max_f32 v190, |v{D+3}|, v190')
        a(f's_mov_b32 s{sT1}, {f2u(2.0**50):#x}\nv_cmp_lt_f32 vcc, s{sT1}, v190\nv_mov_b32 v190, 0x7f800000\ns_mov_b64 exec, vcc')
        a('L_kv_fin:')
        a(f'ds_max_u32 v{vZ}, v190 offset:{F_KST}\ns_mov_b64 exec, -1\nds_read_b32 v183, v{vZ} offset:{F_KST}')
        a('s_waitcnt vmcnt(1)')
        self.get_tag()
        a(f's_getreg_b32 s{sT0}, hwreg(HW_REG_XCC_ID)\nv_mov_b32 v182, s{sTAG}\nv_mov_b32 v184, s{sT0}\nds_write_b32 v{vF}, v182 offset:{F_TAG}')
        self.stamp(13)

    def service(self):
        a = self.a
        self.cyc = False
        L1, L8, L16, L128, FF, WW, CC = 192, 194, 196, 198, 200, 202, 204
        DG = 206
        vXD, vXR, vXR2, vBD, vHA, vHB, vSX, vTW, vTR, vEA, vXS, vOA, vWI, vP8, vCK, vCS, vCK2, vCS2, vHF, vYW, vE0, vPF, vTG, vYR = range(214, 238)
        PRM = 238
        vC31, vHI, vU, vWA, vXA, vQ = 242, 243, 244, 245, 246, 247
        a('L_service:')
        a(f'v_mov_b32 v0, 0\nv_mov_b32 v1, 0\nv_mov_b32 v2, 0\nv_mov_b32 v3, 0')
        a(f's_lshl_b32 s{sT0}, s{sSW}, 10\nv_add_u32 v{vT}, s{sT0}, v{vL16}\nds_write_b128 v{vT}, v[0:3] offset:{L_ACCF}')
        a(f'v_lshlrev_b32 v{vT}, 3, v{vLN}\nds_write_b64 v{vT}, v[0:1]')
        a(f'v_and_b32 v{vC31}, 31, v{vLN}\nv_lshlrev_b32 v{vU}, 1, v{vC31}\nv_lshrrev_b32 v{vHI}, 5, v{vLN}')
        a('s_waitcnt lgkmcnt(0)')
        self.stamp(0)
        a('s_setprio 3')
        self.srd(SWS, P(16), WS_SIZE)
        a(f's_cmp_lg_u32 s{sSW}, 0\ns_cbranch_scc1 L_noepl')
        a(f'buffer_load_dword v{vEP}, off, s[{SWS}:{SWS+3}], 0 sc1')
        a('L_noepl:')
        a(f's_lshl_b32 s{sT0}, s{sPB}, 6')
        for k, p in enumerate((6, 7, 12)):
            self.srd(SA, P(p), 1024)
            a(f'buffer_load_ushort v{PRM+k}, v{vU}, s[{SA}:{SA+3}], s{sT0} offen')
        self.srd(SA, P(13), 1024)
        a(f's_lshl_b32 s{sT0}, s{sCG}, 7\ns_and_b32 s{sT1}, s{sWV}, 1\ns_lshl_b32 s{sT1}, s{sT1}, 6\ns_add_u32 s{sT0}, s{sT0}, s{sT1}')
        a(f'buffer_load_ushort v{PRM+3}, v{vU}, s[{SA}:{SA+3}], s{sT0} offen')
        a('s_barrier')
        self.common_regs()
        self.tr_parts(vTR, vU, vWA)
        a(f'v_lshl_add_u32 v{vTR}, v{vU}, 6, v{vTR}\nv_lshl_add_u32 v{vTR}, v{vHI}, 9, v{vTR}')
        a(f'v_lshl_add_u32 v{vWA}, v{vHI}, 10, v{vWA}\nv_add_u32 v{vWA}, {L_A2}, v{vWA}')
        a(f'v_mul_u32_u24 v{vCK}, 1040, v{vC31}\nv_lshl_add_u32 v{vCK}, v{vHI}, 4, v{vCK}\nv_add_u32 v{vCK}, {L_A1}, v{vCK}')
        a(f's_lshr_b32 s{sT0}, s{sSW}, 1\ns_mul_i32 s{sT0}, s{sT0}, {32*1040}\nv_add_u32 v{vXA}, s{sT0}, v{vCK}')
        a(f's_lshl_b32 s{sT0}, s{sSW}, 11\nv_add_u32 v{vQ}, s{sT0}, v{vL16}')
        sXB, sXL, sTP, sCT = 73, 74, 75, 80
        a(f's_lshl_b32 s{sXB}, s{sTB}, 2\ns_add_u32 s{sXB}, s{sXB}, s{sSW}\ns_lshl_b32 s{sXB}, s{sXB}, 15')
        a(f's_mul_i32 s{sXL}, s{sSW}, {XW}\ns_add_u32 s{sXL}, s{sXL}, {L_A2}')
        a(f's_lshl_b32 s{sTP}, s{sRB}, 1\ns_lshr_b32 s{sT0}, s{sSW}, 1\ns_add_u32 s{sTP}, s{sTP}, s{sT0}')
        a(f's_lshl_b32 s{sCT}, s{sCG}, 1\ns_and_b32 s{sT0}, s{sSW}, 1\ns_add_u32 s{sCT}, s{sCT}, s{sT0}')
        a(f'v_lshlrev_b32 v{vT}, 3, v{vHI}\nv_xor_b32 v{vT}, v{vC31}, v{vT}\nv_lshlrev_b32 v{vT}, 4, v{vT}\nv_lshl_add_u32 v{vXD}, v{vHI}, 13, v{vT}\nv_lshl_add_u32 v{vBD}, v{vHI}, 10, v{vT}')
        def tmap(i):
            r = 4 * (i >> 3) + (i & 3)
            return 16 * ((i >> 2) & 1) + (r >> 1) + 8 * (r & 1)
        def xdma(half, ms=range(16)):
            for m in ms:
                a(f's_xor_b32 s{sT0}, s{sXM}, {m}\ns_mul_i32 s{sT0}, s{sT0}, 1040\ns_add_u32 m0, s{sT0}, s{sXL}\ns_xor_b32 s{sT0}, s{sXG}, {tmap(2*m)*1024 + 512*half}')
                a(f'buffer_load_dwordx4 v{vXD}, s[{SA}:{SA+3}], s{sT0} offen lds')
        sXM, sXG, sHB = 50, 51, 81
        a(f's_and_b32 s{sXM}, s{sPB}, 14\ns_and_b32 s{sT0}, s{sPB}, 2\ns_lshl_b32 s{sT0}, s{sT0}, 3\ns_lshr_b32 s{sT1}, s{sPB}, 2\ns_lshl_b32 s{sT1}, s{sT1}, 1\ns_add_u32 s{sT0}, s{sT0}, s{sT1}\ns_lshl_b32 s{sT0}, s{sT0}, 10')
        a(f's_xor_b32 s{sHB}, s{sPB}, s{sTB}\ns_and_b32 s{sHB}, s{sHB}, 1\ns_lshl_b32 s{sHB}, s{sHB}, 9\ns_add_u32 s{sT0}, s{sT0}, s{sHB}\ns_add_u32 s{sXG}, s{sXB}, s{sT0}')
        a(f'v_lshrrev_b32 v{vU}, 1, v{vC31}\nv_mul_u32_u24 v{vU}, 1040, v{vU}\nv_lshl_add_u32 v{vU}, v{vHI}, 4, v{vU}\nv_and_b32 v{vT}, 1, v{vC31}')
        a(f'v_mul_u32_u24 v{vHA}, 640, v{vT}\nv_mul_u32_u24 v{vHB}, 384, v{vT}\nv_add_u32 v{vHA}, v{vHA}, v{vU}\nv_add_u32 v{vHB}, v{vHB}, v{vU}')
        a(f'v_add_u32 v{vXR}, s{sXL}, v{vHA}\nv_add_u32 v{vXR2}, s{sXL}, v{vHB}\nv_add_u32 v{vHA}, {L_A1}, v{vHA}\nv_add_u32 v{vHB}, {L_A1}, v{vHB}')
        a(f'v_lshlrev_b32 v{vSX}, 3, v{vLN}\nv_add_u32 v{vSX}, s{sXL}, v{vSX}')
        a(f'v_lshlrev_b32 v{vP8}, 3, v{vC31}\nv_add_u32 v{vP8}, {L_A2}, v{vP8}')
        a(f'v_lshlrev_b32 v{vTW}, 6, v{vC31}\nv_lshl_add_u32 v{vTW}, v{vHI}, 5, v{vTW}\nv_add_u32 v{vTW}, s{sXL}, v{vTW}\nv_add_u32 v{vTR}, s{sXL}, v{vTR}')
        a(f'v_lshlrev_b32 v{vEA}, 4, v{vC31}\nv_xor_b32 v{vT}, 1, v{vHI}\nv_lshl_add_u32 v{vEA}, v{vT}, 12, v{vEA}')
        a(f'v_lshlrev_b32 v{vXS}, 10, v{vC31}\nv_lshl_add_u32 v{vXS}, v{vHI}, 4, v{vXS}')
        a(f'v_lshlrev_b32 v{vOA}, 2, v{vC31}\nv_lshl_add_u32 v{vOA}, v{vHI}, 14, v{vOA}')
        self.wimg_lane_addr(vWI, vT)
        a(f's_and_b32 s{sT0}, s{sSW}, 1\ns_mul_i32 s{sT1}, s{sT0}, {512 - 32*1040}\ns_add_u32 s{sT1}, s{sT1}, {32*1040}\nv_add_u32 v{vCS}, s{sT1}, v{vCK}')
        a(f's_mul_i32 s{sT1}, s{sT0}, {32*1040 + 512}\nv_add_u32 v{vCK}, s{sT1}, v{vCK}\nv_add_u32 v{vCK2}, {L_A2 - L_A1}, v{vCK}\nv_add_u32 v{vCS2}, {L_A2 - L_A1}, v{vCS}')
        a(f'v_and_b32 v{vHF}, 15, v{vLN}\nv_lshlrev_b32 v{vHF}, 7, v{vHF}\nv_lshlrev_b32 v{vPF}, 6, v{vLN}')
        a(f'v_add_u32 v{vYW}, s{sXL}, v{vL16}\ns_xor_b32 s{sT0}, s{sSW}, 1\ns_mul_i32 s{sT0}, s{sT0}, {XW}\ns_add_u32 s{sT0}, s{sT0}, {L_A2}\nv_add_u32 v{vYR}, s{sT0}, v{vL16}')
        self.kvproj()
        a('L_nokv:')
        a(f's_cmp_eq_u32 s{sSW}, 0\ns_cbranch_scc1 L_pw1\ns_waitcnt vmcnt(0)')
        a('L_pw1:')
        a(f'v_lshlrev_b32 v0, 16, v{PRM}\nv_lshlrev_b32 v1, 16, v{PRM+1}\nv_lshlrev_b32 v2, 16, v{PRM+2}')
        LOG2E = f2u(math.log2(math.e))
        a(f'v_mul_f32 v2, {LOG2E:#x}, v2\nv_exp_f32 v2, v2\nv_cvt_pk_bf16_f32 v2, v2, v2\nv_lshlrev_b32 v2, 16, v2')
        a(f'v_mul_f32 v4, v2, v0\nv_mul_f32 v5, v2, v1\nv_mul_f32 v4, {LOG2E:#x}, v4\nv_mul_f32 v5, {f2u(-1/(2*math.pi)):#x}, v5')
        def power(d, n):
            a(f'v_mul_f32 v6, {n}, v4\nv_mul_f32 v7, {n}, v5\nv_exp_f32 v6, v6\nv_fract_f32 v7, v7\nv_cos_f32 v8, v7\nv_sin_f32 v9, v7\nv_mul_f32 v{d}, v6, v8\nv_mul_f32 v{d+1}, v6, v9')
        power(L1, '1.0')
        power(L8, f'{f2u(8.0):#x}')
        power(L16, f'{f2u(16.0):#x}')
        power(L128, f'{f2u(128.0):#x}')
        a(f'v_cvt_f32_u32 v11, v{vHI}\nv_mul_f32 v11, {f2u(1024.0):#x}, v11')
        power(FF, 'v11')
        a(f's_lshl_b32 s{sT0}, s{sSW}, 1\nv_add_u32 v11, s{sT0}, v{vHI}\nv_cvt_f32_u32 v11, v11\nv_mul_f32 v11, {f2u(16.0):#x}, v11')
        power(WW, 'v11')
        a(f'v_add_f32 v6, -1.0, v{L1}\nv_mul_f32 v7, v0, v0\nv_fmac_f32 v7, v1, v1\nv_rcp_f32 v7, v7\nv_add_f32 v7, v7, v7')
        a(f'v_mul_f32 v8, v6, v0\nv_fma_f32 v8, -v{L1+1}, v1, v8\nv_mul_f32 v9, v6, v1\nv_fma_f32 v9, -v{L1+1}, v0, -v9\nv_mul_f32 v{CC}, v8, v7\nv_mul_f32 v{CC+1}, v9, v7')
        a(f'v_and_b32 v6, 1, v{vLN}\nv_lshlrev_b32 v6, 4, v6\nv_lshlrev_b32 v3, v6, v{PRM+3}')
        a(f'v_lshrrev_b32 v6, 1, v{vC31}\nv_lshlrev_b32 v7, 2, v{vHI}\nv_sub_u32 v6, v6, v7')
        for q in range(8):
            a(f'v_cmp_eq_u32 vcc, {8*(q//4) + q%4}, v6\nv_cndmask_b32 v{DG+q}, 0, v3, vcc')
        LC = PRM
        a(f'v_mov_b32 v{LC}, 0\nv_mov_b32 v{LC+1}, 0')
        WT, D = 128, 160
        def kvflag():
            a(f's_cmp_lg_u32 s{sSW}, 0\ns_cbranch_scc1 L_nokvf')
            a('s_waitcnt vmcnt(0)')
            a(f's_mov_b64 exec, {(1 << (1 << (opt("fs", 6) - 4))) - 1:#x}\nbuffer_store_dwordx4 v[182:185], v{vL16}, s[{SWS}:{SWS+3}], s{sT4} offen sc1\ns_mov_b64 exec, -1')
            self.sig(F_KVD, va=vF)
            self.stamp(14)
            a('L_nokvf:')
        FP = opt('fp', 16)
        if FP < 0:
            a('s_waitcnt lgkmcnt(0)'); kvflag()
        self.wait(F_L2, sleep=1)
        self.stamp(1)
        vXQ = [vU, 186, 187, 191]
        a(f's_and_b32 s{sT1}, s{sRB}, 3')
        for c in range(4): a(f's_xor_b32 s{sT0}, s{sT1}, {c}\ns_lshl_b32 s{sT0}, s{sT0}, 8\nv_add_u32 v{vXQ[c]}, s{sT0}, v{vXA}')
        def xr(st): a(f'ds_read_b128 {q4(4*st)}, v{vXQ[st//8]} offset:{32*(st%8)}')
        NPR = opt('npr', 16)
        if FP == 0: kvflag()
        for st in range(32 - NPR, 32): xr(st)
        if FP == 16: kvflag()
        lq = []
        def wr(st):
            b = WT + 4 * (st % 8)
            if st < 32 - NPR: xr(st); lq.append(st)
            a(f'ds_read_b64_tr_b16 {pr(b)}, v{vWA} offset:{2048*st}\nds_read_b64_tr_b16 {pr(b+2)}, v{vWA} offset:{2048*st+512}')
            lq.extend([st, st])
        for s0, s1, fl in ((0, 16, F_L4), (16, 32, F_L6)):
            self.wait(fl, sleep=0)
            if s0 == 0:
                self.stamp(2)
            dp = 4 if s0 < 32 - NPR else 6
            for st in range(s0, s0 + dp): wr(st)
            for st in range(s0, s1):
                lq[:] = [x for x in lq if x > st]
                a(f's_waitcnt lgkmcnt({len(lq)})')
                a(f'v_mfma_f32_32x32x16_bf16 {t16(D)}, {q4(WT + 4*(st%8))}, {q4(4*st)}, {"0" if st == 0 else t16(D)}')
                if st + dp < s1: wr(st + dp)
            if s0 == 0:
                if FP == 32: kvflag()
                self.wait(F_KVD, sleep=0)
                self.sig(F_QA)
                a(f'ds_read_b32 v{vTG}, v{vF} offset:{F_TAG}')
        QS = f2u(0.25 * math.log2(math.e))
        a(f'v_mov_b32 v24, {QS:#x}')
        for r in range(8):
            a(f'v_pk_mul_f32 {pr(D+2*r)}, v[24:25], {pr(D+2*r)} op_sel:[0,0] op_sel_hi:[0,1]')
            a(f'v_cvt_pk_bf16_f32 v{16+r}, v{D+2*r}, v{D+2*r+1}')
            if r == 3: a(f'ds_write_b128 v{vQ}, v[16:19] offset:{L_QF}')
        a(f'ds_write_b128 v{vQ}, v[20:23] offset:{L_QF+1024}')
        self.sig(F_QP)
        self.stamp(3)
        a(f'v_mul_f32 v8, v{D}, v{D}\nv_mul_f32 v9, v{D+8}, v{D+8}')
        for r in range(1, 8): a(f'v_fmac_f32 v8, v{D+r}, v{D+r}\nv_fmac_f32 v9, v{D+8+r}, v{D+8+r}')
        a('v_permlane32_swap_b32 v8, v9\nv_add_f32 v8, v8, v9')
        a(f'v_mov_b32 v{vQ}, v8')
        if 'nosvc' in OPT:
            self.sig(F_S[0]); self.sig(F_S[9]); self.end(); return
        SN = 180
        a(f'v_readfirstlane_b32 s{sTAG}, v{vTG}')
        a(f'v_mov_b32 v{SN}, -1\nv_mov_b32 v{SN+1}, -1\nv_mov_b32 v{SN+2}, -1\nv_mov_b32 v{SN+3}, -1\nv_mov_b32 v{SN+4}, 0\nv_mov_b32 v{SN+5}, 0\nv_mov_b32 v{SN+6}, v{vTG}\nv_mov_b32 v{SN+7}, 0')
        self.srd(SA, P(5), 2048 * 1024)
        self.srd(SB, P(8), 512 * 1024)
        self.srd(SC, P(9), 512 * 1024)
        self.stamp(11)
        def bdma(half, only=None):
            if half == 0: a(f's_mul_i32 s{sT1}, s{sSW}, {4*1040}\ns_lshl_b32 s{sT2}, s{sPB}, 15\ns_lshl_b32 s{sT3}, s{sSW}, 13\ns_add_u32 s{sT2}, s{sT2}, s{sT3}\ns_add_u32 s{sT2}, s{sT2}, s{sHB}')
            for pl, srd in ((0, SB), (1, SC)):
                for m in range(4):
                    if only is not None and only != 4 * pl + m: continue
                    a(f's_add_u32 m0, s{sT1}, {L_A1 + ((2*half + pl)*16 + m)*1040}\ns_xor_b32 s{sT0}, s{sT2}, {2048*m + 512*half}')
                    a(f'buffer_load_dwordx4 v{vBD}, s[{srd}:{srd+3}], s{sT0} offen lds')
        def xread(half):
            for s in range(16): a(f'ds_read_b128 {q4(64*half + 4*s)}, v{vXR2 if s & 4 else vXR} offset:{32*s}')
        def rowdma(srd, base, sg, n):
            for m in range(n):
                if m % 4 == 0: a(f's_add_u32 m0, s{sT1}, {base + m*1040}\ns_add_u32 s{sT0}, s{sg}, {1024*m}')
                else: a('s_add_u32 m0, m0, 16')
                a(f'buffer_load_dwordx4 v{vL16}, s[{srd}:{srd+3}], s{sT0} offen offset:{1024*(m%4)} lds')
        self.wait(F_A1, sleep=opt('a1s', 4))
        self.stamp(10)
        a(f'ds_read_b64 {pr(SN+8)}, v{SN+4} offset:{F_KMAX}')
        xdma(0, range(2)); a(f's_mov_b32 s{sT0}, {f2u(3400.0):#x}\ns_waitcnt lgkmcnt(0)')
        a(f'v_mul_f32 v{vT}, v{SN+8}, v{vQ}\nv_cmp_nge_f32 vcc, s{sT0}, v{vT}\nv_readfirstlane_b32 s{sXC}, v{SN+9}\ns_cmp_eq_u64 vcc, 0\ns_cselect_b32 s{sT0}, 1, 2\nv_mov_b32 v{vQ}, s{sT0}')
        a(f'ds_write_b32 v{vS}, v{vQ} offset:{F_S[0]}')
        bdma(0); xdma(0, range(2, 16))
        a('s_waitcnt vmcnt(0)')
        self.sig(F_S[1])
        self.stamp(4)
        xread(0)
        self.wait(F_S[1], sleep=1)
        self.stamp(5)
        GR, GI, BT = 128, 144, 160
        PD = opt('s1depth', 4)
        lq = []
        def bread(q):
            s, pl = q // 2, q % 2
            a(f'ds_read_b128 {q4(BT + 4*(q%5))}, v{vHB if s & 4 else vHA} offset:{((2*(s//16) + pl)*16)*1040 + 32*(s%16)}')
            lq.append(('b', q))
        a(f's_setprio {opt("gprio1", 0)}')
        for q in range(PD): bread(q)
        XQ = opt('xq', 20)
        for q in range(64):
            s, pl = q // 2, q % 2
            need = max([i for i, x in enumerate(lq) if x == ('b', q) or x == ('x', s)] + [-1])
            if need >= 0:
                a(f's_waitcnt lgkmcnt({len(lq) - 1 - need})')
                del lq[:need + 1]
            Gx = GI if pl else GR
            a(f'v_mfma_f32_32x32x16_bf16 {t16(Gx)}, {q4(4*s)}, {q4(BT + 4*(q%5))}, {"0" if s == 0 else t16(Gx)}')
            if q + PD == 32:
                a('s_setprio 3')
                self.wait(F_S[2], sleep=1); lq.clear()
                a(f's_setprio {opt("gprio1", 0)}')
                self.stamp(12)
            if q + PD < 64: bread(q + PD)
            if q < 4: bdma(1, 2 * q); bdma(1, 2 * q + 1)
            elif q < 12: xdma(1, [2 * q - 8, 2 * q - 7])
            elif pl == 1 and opt('pad1', 0): a(f's_nop {opt("pad1", 0) - 1}')
            if q == XQ:
                a('s_waitcnt vmcnt(0)')
                self.sig(F_S[2]); lq.append(('s', 0))
                a(f's_or_b32 s{sT0}, s2, s{sSW}\ns_cbranch_scc1 L_noep')
                a(f's_mov_b64 exec, 1\nbuffer_store_dword v{vTG}, off, s[{SWS}:{SWS+3}], 0 sc1\ns_mov_b64 exec, -1')
                a('L_noep:')
                a(f's_cmp_lg_u32 s{sTB}, 0\ns_cbranch_scc1 L_nozero')
                a(f's_lshl_b32 s{sT0}, s{sPB}, 14\ns_lshl_b32 s{sT1}, s{sSW}, 11\ns_add_u32 s{sT0}, s{sT0}, s{sT1}\ns_add_u32 s{sT0}, s{sT0}, {WS_EBUF:#x}')
                for n in range(2): a(f'buffer_store_dwordx4 {q4(SN+4)}, v{vL16}, s[{SWS}:{SWS+3}], s{sT0} offen offset:{1024*n} sc1')
                a('L_nozero:')
                a(f's_lshr_b32 s{sT0}, s{sSW}, 1\ns_and_b32 s{sT1}, s{sRB}, 1\ns_cmp_lg_u32 s{sT0}, s{sT1}\ns_cbranch_scc1 L_nosent')
                a(f's_lshl_b32 s{sT1}, s{sCG}, 12\ns_add_u32 s{sT0}, s{sXB}, s{sT1}\ns_add_u32 s{sT0}, s{sT0}, {WS_OBUF:#x}')
                self.xstore([f'buffer_store_dwordx4 {q4(SN)}, v{vL16}, s[{SWS}:{SWS+3}], s{sT0} offen offset:{1024*n}' for n in range(4)], 's')
                a('L_nosent:')
                if opt('pf', 1): self.prefetch((10, 11, 4), vPF)
            if XQ < q <= XQ + 16:
                sx = q - XQ - 1
                a(f'ds_read_b128 {q4(64 + 4*sx)}, v{vXR2 if sx & 4 else vXR} offset:{32*sx}'); lq.append(('x', 16 + sx))
        a('s_setprio 3')
        self.stamp(6)
        if opt('stop', 0) == 6: self.end(); return
        RE = 'op_sel:[0,0,0] op_sel_hi:[0,1,1]'
        IM = 'op_sel:[1,0,0] op_sel_hi:[1,1,1]'
        T0, T1 = 8, 10
        def pstep(dr, di, sr, si, l, ur, ui, ns=0, nu=0):
            a(f'v_pk_fma_f32 {pr(T0)}, {pr(l)}, {pr(si)}, {pr(ur)} {IM} neg_lo:[{1-ns},0,0] neg_hi:[{1-ns},0,0]')
            a(f'v_pk_fma_f32 {pr(T1)}, {pr(l)}, {pr(sr)}, {pr(ui)} {IM} neg_lo:[0,0,{nu}] neg_hi:[0,0,{nu}]')
            a(f'v_pk_fma_f32 {pr(dr)}, {pr(l)}, {pr(sr)}, {pr(T0)} {RE}')
            a(f'v_pk_fma_f32 {pr(di)}, {pr(l)}, {pr(si)}, {pr(T1)} {RE} neg_lo:[{ns},0,0] neg_hi:[{ns},0,0]')
        def cstep(dr, di, sr, si, l, ur, ui):
            a(f'v_fma_f32 v{T0}, -v{l+1}, v{si}, v{ur}\nv_fma_f32 v{T1}, v{l+1}, v{sr}, v{ui}\nv_fma_f32 v{dr}, v{l}, v{sr}, v{T0}\nv_fma_f32 v{di}, v{l}, v{si}, v{T1}')
        def zstep(d, s, l, u):
            a(f'v_pk_fma_f32 {pr(T0)}, {pr(l)}, {pr(s)}, {pr(u)} {RE}')
            a(f'v_pk_fma_f32 {pr(d)}, {pr(l)}, {pr(s)}, {pr(T0)} op_sel:[1,1,0] op_sel_hi:[1,0,1] neg_lo:[1,0,0]')
        def cmul(r, i, neg):
            a(f'v_pk_mul_f32 {pr(T0)}, {pr(CC)}, {pr(i)} op_sel:[1,0] op_sel_hi:[1,1]')
            a(f'v_pk_mul_f32 {pr(T1)}, {pr(CC)}, {pr(r)} op_sel:[1,0] op_sel_hi:[1,1]')
            a(f'v_pk_fma_f32 {pr(r)}, {pr(CC)}, {pr(r)}, {pr(T0)} {RE} neg_lo:[0,0,{neg}] neg_hi:[0,0,{neg}]')
            a(f'v_pk_fma_f32 {pr(i)}, {pr(CC)}, {pr(i)}, {pr(T1)} {RE} neg_lo:[{neg},0,1] neg_hi:[{neg},0,1]')
        ER, EI, EE = 12, 14, 16
        pstep(ER, EI, GR, GI, L1, GR + 2, GI + 2, 1, 1)
        for r in range(4, 16, 2): pstep(ER, EI, ER, EI, L1, GR + r, GI + r, 0, 1)
        cstep(EE, EE + 1, ER, EI, L8, ER + 1, EI + 1)
        a(f'ds_write_b64 v{vSX}, {pr(EE)} offset:{L_SXO}')
        self.sig(F_S[3])
        self.srd(SB, P(10), 512 * 1024)
        self.srd(SC, P(11), 512 * 1024)
        a(f's_lshl_b32 s{sT3}, s{sSW}, 1\ns_mov_b32 s{sM0}, 0\ns_mov_b32 s{sM0+1}, -1')
        a(f's_lshl_b32 s{sT4}, s{sPB}, 14\ns_lshl_b32 s{sT1}, s{sTB}, 9\ns_add_u32 s{sT4}, s{sT4}, s{sT1}\ns_add_u32 s{sT4}, s{sT4}, {WS_EBUF:#x}')
        self.wait(F_S[3], sleep=1)
        for c in range(7): a(f'ds_read_b64 {pr(20+2*c)}, v{vP8} offset:{(c//2)*XW + L_SXO + (c%2)*256}')
        a('s_waitcnt lgkmcnt(0)')
        for c in range(7):
            a(f's_cmp_lt_u32 s{sT3}, {c}\ns_cbranch_scc1 L_lh_done')
            a(f's_cmp_gt_u32 s{sT3}, {c}\ns_cselect_b64 exec, -1, s[{sM0}:{sM0+1}]')
            zstep(LC, LC, L16, 20 + 2 * c)
        zstep(vTG - 2, LC, L16, EE)
        a(f's_add_u32 s{sT0}, s{sT4}, {16*512 - 512}\nbuffer_store_dwordx4 v[{vTG-2}:{vTG+1}], v{vL16}, s[{SWS}:{SWS+3}], s{sT0} offen sc1')
        a('L_lh_done:\ns_mov_b64 exec, -1')
        self.stamp(7)
        def cdma(srd, base):
            a(f's_mul_i32 s{sT1}, s{sSW}, {16*1040}\ns_lshl_b32 s{sT2}, s{sCG}, 16\ns_lshl_b32 s{sT3}, s{sSW}, 14\ns_add_u32 s{sT2}, s{sT2}, s{sT3}')
            rowdma(srd, base, sT2, 16)
        cdma(SB, L_A1)
        for r in range(0, 16, 2): cmul(GR + r, GI + r, 1)
        a(f's_mov_b32 s{sCNT}, 100000')
        a('L_eg:')
        for q in range(8): a(f'buffer_load_dwordx3 v[{24+4*q}:{26+4*q}], v{vEA}, s[{SWS}:{SWS+3}], s{sT4} offen offset:{512*q} sc1')
        a('s_waitcnt vmcnt(0)')
        a(f'v_cmp_ne_u32 vcc, s{sTAG}, v26')
        for q in range(1, 8): a(f'v_cmp_ne_u32 s[{sM1}:{sM1+1}], s{sTAG}, v{26+4*q}\ns_or_b64 vcc, vcc, s[{sM1}:{sM1+1}]')
        a(f's_cbranch_scc0 L_egd\ns_sleep {opt("esleep", 4)}\ns_sub_u32 s{sCNT}, s{sCNT}, 1\ns_cbranch_scc0 L_eg')
        a('L_egd:')
        self.sig(F_S[9])
        self.stamp(8)
        for q in range(1, 8): zstep(24, 24, L128, 24 + 4 * q)
        a(f'v_pk_mul_f32 {pr(T0)}, {pr(FF)}, {pr(24)} op_sel:[0,0] op_sel_hi:[0,1]')
        a(f'v_pk_fma_f32 {pr(20)}, {pr(FF)}, {pr(24)}, {pr(T0)} op_sel:[1,1,0] op_sel_hi:[1,0,1] neg_lo:[1,0,0]')
        a(f'v_mov_b32 v22, v20\nv_mov_b32 v23, v21\nv_permlane32_swap_b32 v20, v22\nv_permlane32_swap_b32 v21, v23\nv_pk_add_f32 {pr(20)}, {pr(20)}, {pr(22)}')
        IR, II = 24, 26
        cstep(IR, II, 20, 21, WW, LC, LC + 1)
        cstep(IR + 1, II + 1, IR, II, L8, ER, EI)
        cmul(IR, II, 0)
        pstep(GR, GI, IR, II, L1, GR, GI)
        for r in range(2, 16, 2): pstep(GR + r, GI + r, GR + r - 2, GI + r - 2, L1, GR + r, GI + r)
        for pl, Gx in ((0, GR), (1, GI)):
            for j in range(8):
                r0 = 4 * (j % 4) + j // 4
                a(f'v_cvt_pk_bf16_f32 v{28+8*pl+j}, v{Gx+r0}, v{Gx+r0+2}')
            a(f'ds_write_b128 v{vTW}, {q4(28+8*pl)} offset:{L_TBO+2048*pl}\nds_write_b128 v{vTW}, {q4(32+8*pl)} offset:{L_TBO+2048*pl+16}')
        for pl in range(2):
            for f in range(2):
                d = 44 + 8 * pl + 4 * f
                a(f'ds_read_b64_tr_b16 {pr(d)}, v{vTR} offset:{L_TBO+2048*pl+1024*f}\nds_read_b64_tr_b16 {pr(d+2)}, v{vTR} offset:{L_TBO+2048*pl+1024*f+256}')
        a(f's_lshl_b32 s{sT0}, s{sXB}, 1\ns_lshl_b32 s{sT1}, s{sPB}, 11\ns_add_u32 s{sT0}, s{sT0}, s{sT1}\ns_add_u32 s{sT0}, s{sT0}, {WS_HBUF:#x}\ns_add_u32 s{sT1}, s{sT0}, 0x8000')
        hs = []
        for pl in range(2):
            for f in range(2):
                d = 44 + 8 * pl + 4 * f
                hs += [f's_waitcnt lgkmcnt({6 - 4*pl - 2*f})', f'buffer_store_dwordx4 {q4(d)}, v{vL16}, s[{SWS}:{SWS+3}], s{sT0 if pl == 0 else sT1} offen offset:{1024*f}']
        self.xstore(hs, 'h')
        YK, YS, XF, HR = 128, 144, 184, 160
        a(f's_lshl_b32 s{sT0}, s{sTP}, 15\ns_lshl_b32 s{sT1}, s{sCT}, 6\ns_add_u32 s{sT0}, s{sT0}, s{sT1}')
        a(f'buffer_load_dwordx4 {q4(XF)}, v{vXS}, s[{SA}:{SA+3}], s{sT0} offen\nbuffer_load_dwordx4 {q4(XF+4)}, v{vXS}, s[{SA}:{SA+3}], s{sT0} offen offset:32')
        a(f's_lshr_b32 s{sT4}, s{sXB}, 4\ns_lshl_b32 s{sT3}, s{sPB}, 7\ns_add_u32 s{sT4}, s{sT4}, s{sT3}\ns_add_u32 s{sT4}, s{sT4}, {WS_HFLAG:#x}')
        self.wait(F_S[9], sleep=1)
        a(f's_mov_b32 s{sM1}, -1\ns_mov_b32 s{sM1+1}, 0\ns_waitcnt vmcnt(2)')
        a(f's_mov_b64 exec, s[{sM1}:{sM1+1}]')
        self.xstore([f'buffer_store_dword v{vTG}, v{vOA}, s[{SWS}:{SWS+3}], s{sT4} offen'], 'h')
        a('s_mov_b64 exec, -1')
        self.stamp(9)
        if opt('stop', 0) == 9: self.end(); return
        cdma(SC, L_A2)
        for j in range(16): a(f'ds_read_b128 {q4(8*j)}, v{vCK} offset:{32*j}\nds_read_b128 {q4(8*j+4)}, v{vCS} offset:{32*j}')
        self.sig(F_S[6])
        a('s_waitcnt vmcnt(17)')
        a(f'v_mfma_f32_32x32x16_bf16 {t16(YK)}, {q4(XF)}, {q4(DG)}, 0')
        a(f'v_mfma_f32_32x32x16_bf16 {t16(YK)}, {q4(XF+4)}, {q4(DG+4)}, {t16(YK)}')
        self.srd(SB, P(4), 512 * 1024)
        a(f's_lshl_b32 s{sT4}, s{sSW}, 17\ns_lshl_b32 s{sT1}, s{sCG}, 7\ns_add_u32 s{sT4}, s{sT4}, s{sT1}\ns_and_b32 s{sT1}, s{sCG}, 3\ns_lshl_b32 s{sT1}, s{sT1}, 16\ns_xor_b32 s{sT4}, s{sT4}, s{sT1}\ns_lshl_b32 s{sT1}, s{sSW}, 14\ns_add_u32 m0, s{sT1}, {L_A1}')
        self.wait(F_S[6], sleep=1)
        for m in range(16):
            a(f's_xor_b32 s{sT0}, s{sT4}, {8192*m:#x}\nbuffer_load_dwordx4 v{vWI}, s[{SB}:{SB+3}], s{sT0} offen lds\ns_add_u32 m0, m0, 1024')
        a(f's_lshl_b32 s{sT0}, s{sTP}, 11\ns_add_u32 s{sT0}, s{sT0}, {WS_HFLAG:#x}\ns_mov_b64 exec, 0xffff')
        a(f's_mov_b32 s{sCNT}, 100000')
        a('L_gph:')
        a(f'buffer_load_dword v{vT}, v{vHF}, s[{SWS}:{SWS+3}], s{sT0} offen sc1\ns_waitcnt vmcnt(0)\nv_cmp_ne_u32 vcc, s{sTAG}, v{vT}\ns_cbranch_vccz L_gdh')
        a(f's_sleep {opt("hsleep", 4)}\ns_sub_u32 s{sCNT}, s{sCNT}, 1\ns_cbranch_scc0 L_gph')
        a('L_gdh:\ns_mov_b64 exec, -1')
        self.sig(F_S[5])
        self.stamp(13)
        if opt('stop', 0) == 10: self.end(); return
        a(f's_lshl_b32 s{sT3}, s{sTP}, 16\ns_and_b32 s{sT0}, s{sSW}, 1\ns_lshl_b32 s{sT0}, s{sT0}, 14\ns_add_u32 s{sT3}, s{sT3}, s{sT0}\ns_add_u32 s{sT3}, s{sT3}, {WS_HBUF:#x}')
        NR = 13
        vq = []
        def hload(j):
            if j % 4 == 0 and j > 0: a(f's_add_u32 s{sT3}, s{sT3}, {4096 if j != 16 else 4096 + 16384}')
            a(f'buffer_load_dwordx4 {q4(HR + 4*(j%NR))}, v{vL16}, s[{SWS}:{SWS+3}], s{sT3} offen offset:{1024*(j%4)} sc1')
            vq.append(('h', j))
        for j in range(NR - 1): hload(j)
        a(f's_setprio {opt("gprio4", 0)}')
        lq = []
        def cread(j):
            c = 8 * (j % 16)
            a(f'ds_read_b128 {q4(c)}, v{vCK2} offset:{32*(j%16)}\nds_read_b128 {q4(c+4)}, v{vCS2} offset:{32*(j%16)}')
            lq.extend([('c', j), ('c', j)])
        wosig = False
        for j in range(32):
            need = vq.index(('h', j))
            w = f's_waitcnt vmcnt({len(vq) - 1 - need})'
            del vq[:need + 1]
            ln = max([i for i, x in enumerate(lq) if x == ('c', j)] + [-1])
            if ln >= 0:
                w += f' lgkmcnt({len(lq) - 1 - ln})'; del lq[:ln + 1]
            a(w)
            c = 8 * (j % 16); h = q4(HR + 4 * (j % NR))
            a(f'v_mfma_f32_32x32x16_bf16 {t16(YK)}, {h}, {q4(c)}, {t16(YK)}')
            if j + NR - 1 < 32: hload(j + NR - 1)
            a(f'v_mfma_f32_32x32x16_bf16 {t16(YS)}, {h}, {q4(c+4)}, {"0" if j == 0 else t16(YS)}')
            if j == 11:
                a('s_setprio 3')
                self.wait(F_S[5], sleep=1); lq.clear()
                a(f's_setprio {opt("gprio4", 0)}')
            if 12 <= j < 28: cread(j + 4)
            HJ = opt('hj', 99)
            if opt('pad4', 0) and j < HJ: a(f's_nop {opt("pad4", 0) - 1}')
            if j == HJ - 1:
                a('s_setprio 3')
                self.wait(F_AX, sleep=opt('hjs', 4), va=vS); lq.clear()
                a(f's_setprio {opt("gprio5", 0)}')
        a('s_setprio 3')
        self.sig(F_S[7])
        self.srd(SOUT, P(14), 2048 * 4096)
        a(f's_lshl_b32 s{sT2}, s{sTP}, 17\ns_lshl_b32 s{sT1}, s{sCT}, 7\ns_add_u32 s{sT2}, s{sT2}, s{sT1}')
        self.wait(F_S[7], sleep=1)
        for q in range(4): a(f'ds_write_b128 v{vYW}, {q4(YS+4*q)} offset:{1024*q}')
        self.sig(F_S[8])
        self.wait(F_S[8], sleep=1)
        for q in range(4): a(f'ds_read_b128 {q4(YS+4*q)}, v{vYR} offset:{1024*q}')
        a('s_waitcnt lgkmcnt(0)')
        fl = {0: '', 1: ' sc1', 2: ' nt', 3: ' sc0 sc1', 4: ' sc1 nt', 5: ' sc0 nt', 6: ' sc0 sc1 nt'}[opt('yfl', 2)]
        for r in range(0, 16, 2): a(f'v_pk_add_f32 {pr(YS+r)}, {pr(YK+r)}, {pr(YS+r)}')
        for r in range(16):
            a(f's_add_u32 s{sT0}, s{sT2}, {((r % 4) + 8 * (r // 4)) * 4096}')
            a(f'buffer_store_dword v{YS+r}, v{vOA}, s[{SOUT}:{SOUT+3}], s{sT0} offen offset:2048{fl}')
        self.stamp(2)
        self.end()

HEADER = open('cdna_kernels/' + NAME + '.s.ref').read().split('; Override launch')[0]

def make(stamps=False):
    g = G(stamps)
    body = g.build()
    txt = HEADER + f'; @launch grid=(256,1,1) block=(512,1,1) lds={L_TOTAL}\n'
    txt += f'''.amdgcn_target "amdgcn-amd-amdhsa--gfx950"
.text
.globl {NAME}_kernel
.p2align 8
.type {NAME}_kernel,@function
{NAME}_kernel:
{body}.section .rodata,"a"
.p2align 6
.amdhsa_kernel {NAME}_kernel
  .amdhsa_next_free_vgpr 256
  .amdhsa_next_free_sgpr 102
  .amdhsa_accum_offset 256
  .amdhsa_group_segment_fixed_size 0
  .amdhsa_kernarg_size 136
  .amdhsa_user_sgpr_count 2
  .amdhsa_user_sgpr_kernarg_segment_ptr 1
  .amdhsa_system_sgpr_workgroup_id_x 1
.end_amdhsa_kernel
'''
    return txt, g.a.n_ins

if __name__ == '__main__':
    pos = [x for x in sys.argv[1:] if not x.startswith('--')]
    out = pos[0] if pos else 'cdna_kernels/' + NAME + '.s'
    txt, n = make(stamps='stamps' in OPT)
    open(out, 'w').write(txt)
    print('wrote', out, n, 'instructions')
```

```python
import sys, math, struct
from asm import Asm

NAME = 'concat_heads__grouped_kv_mqa__ssm_conv_s5__prompt'
OPT = dict((x[2:].split('=') + ['1'])[:2] for x in sys.argv if x.startswith('--'))
def opt(k, d): return int(OPT.get(k, d))
def f2u(x): return struct.unpack('<I', struct.pack('<f', x))[0]
def pr(r): return f'v[{r}:{r+1}]'
def q4(r): return f'v[{r}:{r+3}]'
def t16(r): return f'v[{r}:{r+15}]'

WS_KVFLAG = 0x8000
WS_KVIMG = 0x10000
WS_EBUF = 0x40000
WS_HFLAG = 0x80000
WS_OBUF = 0x100000
WS_HBUF = 0x400000
WS_DBG = 0x800000
WS_SIZE = 0x1000000
def FL(i): return 16 * i
F_L1, F_L2, F_L4, F_L6 = FL(0), FL(1), FL(2), FL(3)
F_QP, F_KVD = FL(4), FL(5)
F_A1, F_AX, F_AY = FL(6), FL(7), FL(8)
F_S = [FL(9 + i) for i in range(10)]
F_WO = FL(19)
F_OX = FL(20)
F_SL = [FL(22 + i) for i in range(3)]
F_KMAX, F_XC, F_KST = FL(25), FL(25) + 4, FL(25) + 8
F_TAG, F_QA = FL(26), FL(27)
L_QN = 512
L_ACCF = 1024
L_QF = 5120
L_ACCD = 13312
L_WKV = L_ACCD
L_A1 = 29696
L_A2 = 96256
L_MX = L_A2 + 66560
L_TOTAL = 163840
XW = 16640
L_SXO = 1024
L_TBO = 2048

sWV, sRB, sCG, sTB, sPB, sTAG = 3, 4, 5, 6, 7, 8
sT0, sT1, sT2, sT3, sT4, sT5 = 9, 10, 11, 12, 13, 14
sCNT = 15
P = lambda i: 16 + 2 * i
SA, SB, SC, SWS, SOUT = 52, 56, 60, 64, 68
sSW = 72
sPH, sTJ, sOW = 73, 74, 75
sM0, sM1 = 76, 78
sQH = 81
sOB, sPRE = 101, 81
sXC = 100
sST = 82
SPIN = 400000
vT, vLN, vL16, vEP, vF, vS, vONE = 249, 250, 251, 252, 253, 254, 255

class G:
    def __init__(self, stamps=False):
        self.a = Asm(); self.stamps = stamps; self.cyc = True
    def srd(self, d, p, size):
        self.a(f's_mov_b32 s{d}, s{p}\ns_mov_b32 s{d+1}, s{p+1}\ns_mov_b32 s{d+2}, {size:#x}\ns_mov_b32 s{d+3}, 0x20000')
    def stamp(self, i):
        if self.stamps:
            self.a(f's_memrealtime s[98:99]\ns_waitcnt lgkmcnt(0)\ns_mov_b32 s{sST+i}, s98')
            m = {5: 8, 6: 9}
            if self.cyc and i in m:
                self.a(f's_memtime s[98:99]\ns_waitcnt lgkmcnt(0)\ns_mov_b32 s{sST+m[i]}, s98')
    def end(self):
        a = self.a
        if self.stamps:
            a('s_waitcnt vmcnt(0)')
            self.stamp(15)
            if 'diag' in OPT and self.cyc != ('diagsv' in OPT):
                da, db = [int(x) for x in OPT['diag'].split(',')]
                L = a.label('DG')
                a(f's_sub_u32 s{sT1}, s{sST+db}, s{sST+da}')
                if 'diagcyc' in OPT: a(f's_lshr_b32 s{sT1}, s{sT1}, 1')
                else: a(f's_lshl_b32 s{sT1}, s{sT1}, 3')
                a(f's_min_u32 s{sT1}, s{sT1}, 100000\ns_add_u32 s{sT1}, s{sT1}, s{sST+15}')
                a(f'{L}:\ns_sleep 4\ns_memrealtime s[98:99]\ns_waitcnt lgkmcnt(0)\ns_cmp_lt_u32 s98, s{sT1}\ns_cbranch_scc1 {L}')
            a(f's_lshl_b32 s{sT0}, s2, 3\ns_add_u32 s{sT0}, s{sT0}, s{sWV}\ns_lshl_b32 s{sT0}, s{sT0}, 6\ns_add_u32 s{sT0}, s{sT0}, {WS_DBG:#x}')
            a('s_mov_b64 exec, 1')
            for i in range(16):
                a(f'v_mov_b32 v{vT}, s{sST+i}\nbuffer_store_dword v{vT}, off, s[{SWS}:{SWS+3}], s{sT0} offset:{4*i}')
            a('s_waitcnt vmcnt(0)')
        a('s_endpgm')
    def sig(self, off, va=vS):
        self.a(f'ds_write_b32 v{va}, v{vONE} offset:{off}')
    def wait(self, off, sleep=1, va=vF):
        a = self.a; L = a.label('W'); D = a.label('WD')
        a(f's_mov_b32 s{sCNT}, {SPIN}')
        a(f'{L}:')
        a(f'ds_read_b32 v{vT}, v{va} offset:{off}\ns_waitcnt lgkmcnt(0)\nv_cmp_eq_u32 vcc, 0, v{vT}\ns_cbranch_vccz {D}')
        a((f's_sleep {sleep}\n' if sleep else '') + f's_sub_u32 s{sCNT}, s{sCNT}, 1\ns_cbranch_scc0 {L}')
        a(f'{D}:')
    def xstore(self, lines, kind='o'):
        a = self.a
        if not opt('xc' + kind, 1 if kind == 'o' else 0):
            for x in lines: a(x + (' sc1' if x.startswith('buffer') else ''))
            return
        L = a.label('X'); D = a.label('XD')
        a(f's_cmp_eq_u32 s{sXC}, 1\ns_cbranch_scc0 {L}')
        for x in lines: a(x + (' nt' if x.startswith('buffer') and opt('xnt', 0) else ''))
        a(f's_branch {D}')
        a(f'{L}:')
        for x in lines: a(x + (' sc1' if x.startswith('buffer') else ''))
        a(f'{D}:')
    def get_tag(self):
        self.a(f'v_readfirstlane_b32 s{sTAG}, v{vEP}\ns_mul_i32 s{sTAG}, s{sTAG}, 0x9E3779B1\ns_add_u32 s{sTAG}, s{sTAG}, 0x7F4A7C15')

    def build(self):
        a = self.a
        a('s_cmp_ge_u32 s2, 256\ns_cbranch_scc1 L_exit')
        a('s_load_dwordx16 s[16:31], s[0:1], 0\ns_load_dwordx16 s[32:47], s[0:1], 64\ns_load_dwordx2 s[48:49], s[0:1], 128')
        if self.stamps:
            for i in range(16): a(f's_mov_b32 s{sST+i}, 0')
        a(f'v_and_b32 v{vLN}, 63, v0\nv_lshrrev_b32 v{vT}, 6, v0\nv_lshlrev_b32 v{vL16}, 4, v{vLN}\nv_readfirstlane_b32 s{sWV}, v{vT}')
        if opt('cpf', 1):
            a(f's_cmp_lt_u32 s{sWV}, 5\ns_cbranch_scc1 L_nocpf')
            a(f's_getpc_b64 s[{sM0}:{sM0+1}]')
            a('L_pc:')
            a(f's_lshr_b32 s{sT0}, s2, 3\ns_mul_i32 s{sT0}, s{sT0}, 3\ns_add_u32 s{sT0}, s{sT0}, s{sWV}\ns_sub_u32 s{sT0}, s{sT0}, 5\ns_lshl_b32 s{sT0}, s{sT0}, 9')
            a(f's_min_u32 s{sT0}, s{sT0}, L_exit-L_pc-512\ns_add_u32 s{sM0}, s{sM0}, s{sT0}\ns_addc_u32 s{sM0+1}, s{sM0+1}, 0')
            for k in range(8): a(f's_load_dword s{SOUT + k % 4}, s[{sM0}:{sM0+1}], {64*k}')
            a('L_nocpf:')
        a(f's_and_b32 s{sT0}, s2, 7\ns_lshr_b32 s{sT1}, s2, 3')
        a(f's_lshl_b32 s{sRB}, s{sT0}, 2\ns_lshr_b32 s{sT2}, s{sT1}, 3\ns_add_u32 s{sRB}, s{sRB}, s{sT2}\ns_and_b32 s{sCG}, s{sT1}, 7')
        a(f's_lshr_b32 s{sTB}, s{sRB}, 1\ns_and_b32 s{sPB}, s{sT1}, 15\ns_and_b32 s{sSW}, s{sWV}, 3')
        a(f's_cmp_ge_u32 s{sWV}, 4\ns_cbranch_scc1 L_service')
        a(f's_lshr_b32 s{sT5}, s{sCG}, 1\ns_lshl_b32 s{sT4}, s{sRB}, 16')
        def xa_rows(g):
            a(f's_add_u32 s{sT0}, s{sT5}, {g}\ns_and_b32 s{sT0}, s{sT0}, 3\ns_lshl_b32 s{sT0}, s{sT0}, 2\ns_add_u32 s{sT0}, s{sT0}, s{sSW}\ns_lshl_b32 s{sT0}, s{sT0}, 2')
            a(f's_mul_i32 s{sT1}, s{sT0}, 1040\ns_add_u32 m0, s{sT1}, {L_A1}\ns_lshl_b32 s{sT0}, s{sT0}, 10\ns_add_u32 s{sT0}, s{sT0}, s{sT4}')
            if g == 0:
                a('s_waitcnt lgkmcnt(0)')
                self.stamp(0)
                self.srd(SA, P(0), 2048 * 1024)
            for n in range(4):
                a(f'buffer_load_dwordx4 v{vL16}, s[{SA}:{SA+3}], s{sT0} offen offset:{1024*n} lds')
                if n < 3: a('s_add_u32 m0, m0, 16')
        xa_rows(0)
        a(f's_bitcmp1_b32 s{sCG}, 0\ns_cselect_b32 s{SB}, s{P(3)}, s{P(2)}\ns_cselect_b32 s{SB+1}, s{P(3)+1}, s{P(2)+1}\ns_mov_b32 s{SB+2}, 0x4000\ns_mov_b32 s{SB+3}, 0x20000')
        a(f's_lshl_b32 s{sT0}, s{sWV}, 12\ns_add_u32 m0, s{sT0}, {L_WKV}')
        a(f'v_lshrrev_b32 v2, 1, v{vL16}\nv_and_b32 v2, 128, v2\nv_xor_b32 v2, v2, v{vL16}')
        for n in range(4):
            a(f'buffer_load_dwordx4 v2, s[{SB}:{SB+3}], s{sT0} offen offset:{1024*n} lds')
        self.srd(SC, P(1), 512 * 1024)
        NPQ = 0
        if opt('pfq', 0):
            G = opt('pfg', 6)
            a(f'v_lshlrev_b32 v3, {G}, v{vLN}\ns_lshr_b32 s{sT0}, s2, 3\ns_lshl_b32 s{sT0}, s{sT0}, 2\ns_add_u32 s{sT0}, s{sT0}, s{sSW}\ns_lshl_b32 s{sT0}, s{sT0}, 12')
            if G == 7: a(f's_mov_b32 s{sM0}, -1\ns_mov_b32 s{sM0+1}, 0\ns_mov_b64 exec, s[{sM0}:{sM0+1}]')
            a(f'buffer_load_dword v4, v3, s[{SC}:{SC+3}], s{sT0} offen'); NPQ = 1
            if opt('pfq', 0) > 1:
                for p in (8, 9):
                    self.srd(SOUT, P(p), 512 * 1024)
                    a(f'buffer_load_dword v4, v3, s[{SOUT}:{SOUT+3}], s{sT0} offen'); NPQ += 1
                self.srd(SOUT, P(5), 2048 * 1024)
                a(f's_lshr_b32 s{sT0}, s{sT0}, 1\ns_and_b32 s{sT1}, s2, 7\ns_lshl_b32 s{sT1}, s{sT1}, 18\ns_add_u32 s{sT0}, s{sT0}, s{sT1}\nv_lshrrev_b32 v3, 1, v3')
                a(f'buffer_load_dword v4, v3, s[{SOUT}:{SOUT+3}], s{sT0} offen'); NPQ += 1
            a('s_mov_b64 exec, -1')
        self.wimg_lane_addr(0, 1)
        a(f's_lshl_b32 s{sT3}, s{sSW}, 13\ns_lshl_b32 s{sT1}, s{sCG}, 7\ns_add_u32 s{sT3}, s{sT3}, s{sT1}\ns_and_b32 s{sT1}, s{sRB}, 3\ns_lshl_b32 s{sT1}, s{sT1}, 17\ns_add_u32 s{sT3}, s{sT3}, s{sT1}')
        a(f's_lshl_b32 s{sT2}, s{sSW}, 10')
        def wq_rows(c):
            for n in range(4 * c, 4 * c + 4):
                a(f's_add_u32 m0, s{sT2}, {L_A2 + 4096*n}\ns_xor_b32 s{sT0}, s{sT3}, {0x8000*n:#x}')
                a(f'buffer_load_dwordx4 v0, s[{SC}:{SC+3}], s{sT0} offen lds')
        FO = opt('fo', 1)
        if FO == 0: wq_rows(0)
        else: xa_rows(1)
        self.common_regs()
        self.srd(SWS, P(16), WS_SIZE)
        a('s_barrier')
        self.stamp(1)
        a(f's_waitcnt vmcnt({4 + NPQ})')
        self.sig(F_L1)
        if FO == 0: xa_rows(1)
        xa_rows(2); xa_rows(3)
        if FO == 1: wq_rows(0)
        if FO == 0: wq_rows(1)
        a('s_waitcnt vmcnt(4)')
        self.sig(F_L2)
        if FO == 1: wq_rows(1)
        wq_rows(2); wq_rows(3)
        self.stamp(2)
        a('s_waitcnt vmcnt(8)')
        self.sig(F_L4)
        if opt('lay', 1):
            a('s_branch L_attn')
            self.service()
            self.cyc = True
            a('L_attn:')
            self.attention()
        else:
            self.attention()
            self.service()
        a('L_exit:\ns_endpgm')
        return a.finish()

    def common_regs(self):
        self.a(f'v_and_b32 v{vF}, 3, v{vLN}\nv_lshlrev_b32 v{vF}, 2, v{vF}\ns_lshl_b32 s{sT0}, s{sSW}, 2\nv_mov_b32 v{vS}, s{sT0}\nv_mov_b32 v{vONE}, 1')

    def wimg_lane_addr(self, vd, vt):
        a = self.a
        a(f'v_lshrrev_b32 v{vt}, 2, v{vLN}\nv_and_b32 v{vt}, 4, v{vt}\nv_and_b32 v{vd}, 7, v{vLN}\nv_xor_b32 v{vd}, v{vd}, v{vt}\nv_lshlrev_b32 v{vd}, 4, v{vd}')
        a(f'v_lshrrev_b32 v{vt}, 3, v{vLN}\nv_lshl_add_u32 v{vd}, v{vt}, 10, v{vd}')

    def tr_parts(self, c0, r, wpart):
        a = self.a
        a(f'v_bfe_u32 v{c0}, v{vLN}, 4, 1\nv_lshlrev_b32 v{c0}, 5, v{c0}\nv_and_b32 v{r}, 3, v{vLN}\nv_lshl_add_u32 v{c0}, v{r}, 3, v{c0}\nv_bfe_u32 v{r}, v{vLN}, 2, 2')
        a(f's_and_b32 s{sT0}, s{sSW}, 1\nv_lshrrev_b32 v{wpart}, 1, v{r}\nv_xor_b32 v{wpart}, s{sT0}, v{wpart}\nv_lshl_add_u32 v{wpart}, v{wpart}, 6, v{c0}\nv_lshl_add_u32 v{wpart}, v{r}, 7, v{wpart}')

    def prefetch(self, ptrs, vd):
        a = self.a
        a(f's_lshr_b32 s{sT0}, s2, 3\ns_lshl_b32 s{sT0}, s{sT0}, 2\ns_add_u32 s{sT0}, s{sT0}, s{sSW}\ns_lshl_b32 s{sT0}, s{sT0}, 12')
        for p in ptrs:
            self.srd(SOUT, P(p), 512 * 1024)
            a(f'buffer_load_dword v{vEP}, v{vd}, s[{SOUT}:{SOUT+3}], s{sT0} offen')

    def attention(self):
        a = self.a
        K, V, S0, O, Q = 0, 64, 192, 224, 240
        vIDX, vA16, vA8, vQA, vL8 = 244, 245, 246, 247, 248
        R = dict(K=K, V=V, S0=S0, O=O, Q=Q, vIDX=vIDX, vA16=vA16, vA8=vA8, vQA=vQA, vL8=vL8, vM=vEP)
        a(f'v_and_b32 v{Q}, 11, v{vLN}\nv_cmp_eq_u32 vcc, 0, v{Q}\nv_mov_b32 v{Q}, 0x3f803f80\nv_cndmask_b32 v{vT}, 0, v{Q}, vcc')
        MK = opt('mask', 0)
        self.masked = lambda i: (MK >> i) & 1
        for i in range(16):
            for r in range(0 if self.masked(i) else 4, 8): a(f'v_mov_b32 v{V+8*i+r}, v{vT}')
        a(f'v_lshlrev_b32 v{vL8}, 3, v{vLN}\nv_mov_b32 v{vIDX}, 0xdddd')
        def init_state(ph0):
            for i in range(16): a(f'v_mov_b32 v{O+i}, 0')
            a(f's_mov_b32 s{sTJ}, s{sSW}\ns_mov_b32 s{sPH}, {ph0}')
            a(f's_lshl_b32 s{sT0}, s{sTJ}, 10\nv_add_u32 v{vQA}, s{sT0}, v{vL16}')
            a(f's_lshl_b32 s{sT0}, s{sTJ}, 11\nv_add_u32 v{vA16}, s{sT0}, v{vL16}\ns_lshl_b32 s{sT0}, s{sTJ}, 9\nv_add_u32 v{vA8}, s{sT0}, v{vL8}')
        init_state(0)
        FS = opt('fs', 6)
        a(f'v_lshlrev_b32 v{S0+4}, {FS}, v{vLN}\nv_mov_b32 v{S0+3}, 0\ns_getreg_b32 s{sXC}, hwreg(HW_REG_XCC_ID)')
        a(f's_lshl_b32 s{sT3}, s{sWV}, {FS + 6}\ns_add_u32 s{sT3}, s{sT3}, {WS_KVFLAG:#x}')
        a(f's_lshl_b32 s{sT4}, s{sWV}, 15\ns_add_u32 s{sT4}, s{sT4}, {WS_KVIMG:#x}\ns_lshl_b32 s{sT0}, s{sCG}, 12\ns_add_u32 s{sT4}, s{sT4}, s{sT0}')
        a(f's_lshl_b32 s{sOW}, s{sRB}, 16\ns_lshl_b32 s{sT0}, s{sCG}, 12\ns_add_u32 s{sOW}, s{sOW}, s{sT0}\ns_add_u32 s{sOW}, s{sOW}, {WS_OBUF:#x}')
        a(f's_add_u32 s{sT0}, s{sSW}, 1\ns_and_b32 s{sT0}, s{sT0}, 3\ns_lshl_b32 s{sT0}, s{sT0}, 10\ns_add_u32 s{sOW}, s{sOW}, s{sT0}')
        a(f's_mov_b32 s{sM0}, 0xffff\ns_mov_b32 s{sM0+1}, 0xffff')
        a(f's_lshl_b32 s{sOB}, s{sRB}, 16\ns_lshr_b32 s{sT0}, s{sSW}, 1\ns_lshl_b32 s{sT0}, s{sT0}, 2\ns_and_b32 s{sT2}, s{sCG}, 3\ns_add_u32 s{sT0}, s{sT0}, s{sT2}\ns_lshl_b32 s{sT0}, s{sT0}, 12')
        a(f's_add_u32 s{sOB}, s{sOB}, s{sT0}\ns_add_u32 s{sOB}, s{sOB}, {WS_OBUF:#x}\ns_mov_b32 s{sPRE}, 0')
        self.tr_parts(0, 1, 2)
        a(f'v_lshrrev_b32 v1, 5, v{vLN}\nv_lshl_add_u32 v2, v1, 9, v2\ns_lshr_b32 s{sT0}, s{sSW}, 1\ns_lshl_b32 s{sT0}, s{sT0}, 15\ns_add_u32 s{sT0}, s{sT0}, {L_A1}\nv_add_u32 v{vLN}, s{sT0}, v2')
        a(f's_waitcnt vmcnt(0)')
        self.sig(F_L6)
        self.stamp(3)
        self.wait(F_QA if opt('pw', 0) == 0 else F_KVD, sleep=1)
        a(f'ds_read_b32 v{vEP}, v{vF} offset:{F_TAG}\ns_waitcnt lgkmcnt(0)\nv_readfirstlane_b32 s{sTAG}, v{vEP}')
        if opt('pf1', 0):
            a(f's_lshr_b32 s{sT0}, s2, 3\ns_lshl_b32 s{sT0}, s{sT0}, 2\ns_add_u32 s{sT0}, s{sT0}, s{sSW}\ns_lshl_b32 s{sT0}, s{sT0}, 12')
            for k, p in enumerate((8, 9)):
                self.srd(SB, P(p), 512 * 1024)
                for n in range(4): a(f'buffer_load_dwordx4 {q4(4 + 16*k + 4*n)}, v{vL16}, s[{SB}:{SB+3}], s{sT0} offen offset:{1024*n}')
            self.srd(SB, P(5), 2048 * 1024)
            a(f's_lshr_b32 s{sT0}, s{sT0}, 1\ns_and_b32 s{sT1}, s2, 7\ns_lshl_b32 s{sT1}, s{sT1}, 18\ns_add_u32 s{sT0}, s{sT0}, s{sT1}')
            for n in range(2): a(f'buffer_load_dwordx4 {q4(36 + 4*n)}, v{vL16}, s[{SB}:{SB+3}], s{sT0} offen offset:{1024*n}')
        if opt('pw', 0): a(f's_sleep {opt("pw", 0)}')
        a(f's_mov_b32 s{sCNT}, 100000')
        KW = opt('kw', 2)
        a(f's_lshr_b32 s{sT0}, s2, 3\ns_lshl_b32 s{sT0}, s{sT0}, 2\ns_add_u32 s{sT0}, s{sT0}, s{sSW}\ns_lshl_b32 s{sT0}, s{sT0}, 10\ns_add_u32 s{sT0}, s{sT0}, {WS_KVIMG:#x}')
        kwl = f'buffer_load_dwordx4 {q4(S0+8)}, v{vL16}, s[{SWS}:{SWS+3}], s{sT0} offen sc1'
        if KW == 2: a(kwl)
        a('L_kvp:')
        a(f'buffer_load_dwordx3 v[{S0}:{S0+2}], v{S0+4}, s[{SWS}:{SWS+3}], s{sT3} offen sc1')
        if KW == 1: a(kwl)
        a(f's_waitcnt vmcnt({1 if KW == 1 else 0})\nv_cmp_ne_u32 vcc, s{sTAG}, v{S0}\ns_cbranch_vccz L_kvpd')
        a(f's_sleep {opt("kvsleep", 4)}\ns_sub_u32 s{sCNT}, s{sCNT}, 1\ns_cbranch_scc0 L_kvp')
        a('L_kvpd:')
        if self.stamps: a(f's_mov_b32 s{sST+13}, s{sCNT}')
        self.stamp(4)
        for i in range(opt('nup', 7)): a(self.kvload(R, i))
        a(f'ds_max_u32 v{S0+3}, v{S0+1} offset:{F_KMAX}')
        a(f's_lshr_b32 s{sT0}, s{sRB}, 3\ns_cmp_eq_u32 s{sT0}, s{sSW}\ns_cbranch_scc0 L_noxc')
        a(f'v_cmp_ne_u32 vcc, s{sXC}, v{S0+2}\ns_bitcmp1_b32 s{sRB}, 2\ns_cselect_b32 s{sT0}, vcc_hi, vcc_lo\ns_cmp_eq_u32 s{sT0}, 0\ns_cselect_b32 s{sT0}, 1, 0')
        a(f'v_mov_b32 v{S0+2}, s{sT0}\nds_write_b32 v{S0+3}, v{S0+2} offset:{F_XC}')
        a('L_noxc:')
        self.wait(F_QP, sleep=0)
        a(f'ds_read_b128 {q4(Q)}, v{vQA} offset:{L_QF}')
        self.stamp(5)
        self.attn_fast(R)
        a('L_attn_epi:')
        if 'phs' in OPT:
            for p in range(8): a(f's_mov_b32 s{sST+2*p}, s{16+4*p}\ns_mov_b32 s{sST+2*p+1}, s{17+4*p}')
            a(f's_lshl_b32 s{sT0}, s2, 3\ns_add_u32 s{sT0}, s{sT0}, s{sWV}\ns_lshl_b32 s{sT0}, s{sT0}, 6\ns_add_u32 s{sT0}, s{sT0}, {WS_DBG + 0x100000:#x}')
            a('s_mov_b64 exec, 1')
            for i in range(16):
                a(f'v_mov_b32 v{vT}, s{sST+i}\nbuffer_store_dword v{vT}, off, s[{SWS}:{SWS+3}], s{sT0} offset:{4*i}')
            a('s_waitcnt vmcnt(0)\ns_endpgm')
        self.oproj_pre()
        self.stamp(6)
        self.publish(R, 0x8000, F_AY)
        if 'nosvc' in OPT or 'stop' in OPT: self.end()
        else: self.oproj()
        a('L_check6:')
        self.wait(F_S[9], sleep=1)
        a('s_branch L_checked6')
        a('L_check1:')
        self.wait(F_S[0], sleep=1)
        a(f'v_cmp_ne_u32 vcc, 1, v{vT}\ns_cbranch_vccz L_checked1')
        self.wait(F_S[9], sleep=1)
        a(f's_mov_b32 s{sXC}, 0')
        vL4, vW = vA8, vA16
        self.sig(F_SL[0]); self.wait(F_SL[0])
        a(f'v_lshrrev_b32 v{vL4}, 2, v{vL16}\ns_mov_b32 s{sT2}, 0\ns_lshl_b32 s{sT3}, s{sWV}, 11\nv_add_u32 v{vW}, s{sT3}, v{vL4}')
        a('L_slow_pre:')
        a(f's_lshl_b32 s{sT0}, s{sT2}, 10\nv_add_u32 v{vT}, s{sT0}, v{vL16}\nds_read_b128 {q4(Q)}, v{vT} offset:{L_QF}\ns_waitcnt lgkmcnt(0)')
        a(f'v_mov_b32 v{S0+20}, 0xff800000')
        for i in range(16):
            a(f'v_mfma_f32_32x32x16_bf16 {t16(S0)}, {q4(K+4*i)}, {q4(Q)}, 0')
            for r in range(0, 16, 2): a(f'v_max3_f32 v{S0+20}, v{S0+r}, v{S0+r+1}, v{S0+20}')
        a(f'v_mov_b32 v{S0+21}, v{S0+20}\nv_permlane32_swap_b32 v{S0+20}, v{S0+21}\nv_max_f32 v{S0+20}, v{S0+20}, v{S0+21}')
        a(f'ds_write_b32 v{vW}, v{S0+20} offset:{L_ACCD}\nv_add_u32 v{vW}, 256, v{vW}')
        a(f's_add_u32 s{sT2}, s{sT2}, 1\ns_cmp_lt_u32 s{sT2}, 8\ns_cbranch_scc1 L_slow_pre')
        self.sig(F_SL[1]); self.wait(F_SL[1])
        a(f's_lshl_b32 s{sT0}, s{sWV}, 8\nv_add_u32 v{vW}, s{sT0}, v{vL4}')
        for t in range(2):
            for w in range(4): a(f'ds_read_b32 v{S0+4*t+w}, v{vW} offset:{L_ACCD + 2048*w + 1024*t}')
        a(f'v_and_b32 v{vW}, 0x7c, v{vL4}\ns_lshl_b32 s{sT0}, s{sWV}, 7\ns_add_u32 s{sT0}, s{sT0}, {L_MX}\nv_add_u32 v{vW}, s{sT0}, v{vW}')
        a('s_waitcnt lgkmcnt(0)')
        for t in range(2):
            b = S0 + 4 * t
            a(f'v_max3_f32 v{b}, v{b}, v{b+1}, v{b+2}\nv_max_f32 v{b}, v{b}, v{b+3}\nds_write_b32 v{vW}, v{b} offset:{512*t}')
        init_state(16)
        a(f'v_mov_b32 v{S0}, 0\nv_mov_b32 v{S0+1}, 17\nds_write_b64 v{vA8}, {pr(S0)} offset:{L_ACCF+2048}')
        a(f'ds_write_b128 v{vA16}, {q4(O)} offset:{L_ACCD+8192}\nds_write_b128 v{vA16}, {q4(O)} offset:{L_ACCD+8192+1024}')
        self.sig(F_SL[2]); self.wait(F_SL[2])
        a(f'ds_read_b128 {q4(Q)}, v{vQA} offset:{L_QF}')
        self.attn_loop(R, True)
        a('s_branch L_attn_epi')

    QD = [r for i in range(16) for r in (4 * i, 64 + 8 * i, 68 + 8 * i)]
    def WF(self, st): return self.QD[st]
    def OF(self, q, n): return self.QD[16 + 4 * ((q + 3) % 4) + 16 * (q // 4) + n]
    def wo_read(self, st, vWO): return f'ds_read_b64_tr_b16 {pr(self.WF(st))}, v{vWO} offset:{2048*st}\nds_read_b64_tr_b16 {pr(self.WF(st)+2)}, v{vWO} offset:{2048*st+1024}'
    def o_load(self, q):
        t = f's_xor_b32 s{sT0}, s{sOB}, {4096*(q%4) + 0x8000*(q//4):#x}'
        for n in range(4): t += f'\nbuffer_load_dwordx4 {q4(self.OF(q, n))}, v{vL16}, s[{SWS}:{SWS+3}], s{sT0} offen offset:{1024*n} sc1'
        return t

    def kvload(self, R, i):
        K, V = R['K'], R['V']
        t = ''
        if i % 2 == 0 and i > 0: t += f's_xor_b32 s{sT4}, s{sT4}, {((i // 2) ^ (i // 2 - 1)) << 12:#x}\n'
        o = (i % 2) * 2048
        t += f'buffer_load_dwordx4 {q4(K+4*i)}, v{vL16}, s[{SWS}:{SWS+3}], s{sT4} offen offset:{o} sc1\n'
        if self.masked(i):
            t += f's_mov_b64 exec, s[{sM0}:{sM0+1}]\nbuffer_load_dwordx4 {q4(V+8*i)}, v{vL16}, s[{SWS}:{SWS+3}], s{sT4} offen offset:{o+1024} sc1\n'
            t += f'buffer_load_dwordx4 {q4(V+8*i+4)}, v{vL16}, s[{SWS}:{SWS+3}], s{sT4} offen offset:{o+1024+256} sc1\ns_mov_b64 exec, -1'
        else:
            t += f'buffer_load_dwordx4 {q4(V+8*i)}, v{vL16}, s[{SWS}:{SWS+3}], s{sT4} offen offset:{o+1024} sc1'
        return t

    def publish(self, R, off, flag):
        a = self.a; O = R['O']
        a(f'v_rcp_f32 v{O+8}, v{O+8}\ns_add_u32 s{sT0}, s{sOW}, {off}')
        for r in range(0, 8, 2): a(f'v_pk_mul_f32 {pr(O+r)}, {pr(O+8)}, {pr(O+r)} op_sel:[0,0] op_sel_hi:[0,1]')
        for r in range(4): a(f'v_cvt_pk_bf16_f32 v{O+r}, v{O+2*r}, v{O+2*r+1}')
        self.xstore([f'buffer_store_dwordx4 {q4(O)}, v{vL16}, s[{SWS}:{SWS+3}], s{sT0} offen'])
        if off: self.sig(flag)

    def attn_fast(self, R):
        a = self.a
        K, V, S0, O, Q = R['K'], R['V'], R['S0'], R['O'], R['Q']
        vIDX, vA16, vA8, vQA, vL8 = R['vIDX'], R['vA16'], R['vA8'], R['vQA'], R['vL8']
        NUP = opt('nup', 7)
        sK = [[50, 51, 80], [sT1, sT2, sT3], [sT5, sPH, sTJ]]
        for k in range(1, 4):
            a(f's_sub_u32 s{sT0}, s{sSW}, {k}\ns_and_b32 s{sT0}, s{sT0}, 3\ns_lshl_b32 s{sK[k-1][0]}, s{sT0}, 9\ns_lshl_b32 s{sK[k-1][1]}, s{sT0}, 10\ns_lshl_b32 s{sK[k-1][2]}, s{sT0}, 11')
        def Sb(i): return S0 + 16 * (i % 2)
        def E(i, r): return f'v_exp_f32 v{Sb(i)+r}, v{Sb(i)+r}'
        CM = '-4.0' if opt('cm', 1) else '0'
        PP = opt('pp', 15)
        def QK(i): return f'v_mfma_f32_32x32x16_bf16 {t16(Sb(i))}, {q4(K+4*(i%16))}, {q4(Q)}, {CM}'
        def PV(i, h): return f'v_smfmac_f32_32x32x32_bf16 {t16(O)}, {q4(V+8*(i%16)+4*h)}, v[{Sb(i)+8*h}:{Sb(i)+8*h+7}], v{vIDX}'
        def rd(st): return [f'ds_read_b64 {pr(O+8)}, v{vA8} offset:{L_ACCF+2048*st}', f'ds_read_b128 {q4(O)}, v{vA16} offset:{L_ACCD+8192*st}', f'ds_read_b128 {q4(O+4)}, v{vA16} offset:{L_ACCD+8192*st+1024}']
        def wr(st): return [f'ds_write_b128 v{vA16}, {q4(O)} offset:{L_ACCD+8192*st}', f'ds_write_b128 v{vA16}, {q4(O+4)} offset:{L_ACCD+8192*st+1024}', f'ds_write_b64 v{vA8}, {pr(O+8)} offset:{L_ACCF+2048*st}']
        nl = lambda i: 3 if self.masked(i) else 2
        def plain(p, i):
            e = [E(i, r) for r in range(16)]
            w = []; sw = []; ld = []
            if p == 0:
                KR = opt('kr', 2)
                issued = sum(nl(t) for t in range(min(16, KR * i + NUP)))
                VW = opt('vw', 2)
                if i % VW == 0 or i < 2:
                    last = i if i < 2 else min(15, i + VW - 1)
                    needed = sum(nl(t) for t in range(last + 1)) + (1 if last < 15 else 0)
                    w = [f's_waitcnt vmcnt({issued - needed})']
                if not self.masked(i): sw = [f'v_permlane16_swap_b32 v{V+8*i+r}, v{V+8*i+4+r}' for r in range(4)]
                for t in range(KR * i + NUP, min(16, KR * (i + 1) + NUP)):
                    ld += [self.kvload(R, t)]
                    if t == 15: ld += [f'ds_write_b32 v{vS}, v{vONE} offset:{F_A1}']
            qk = [QK(i + 1)]
            if i == 15:
                if p < 7: w += ['s_waitcnt lgkmcnt(0)']
                else: qk = []
            if i == 14 and p < 7:
                if p % 2 == 1: ld += [f'v_add_u32 v{vQA}, s{sK[p//2][1]}, v{vL16}']
                ld += [f'ds_read_b128 {q4(Q)}, v{vQA} offset:{L_QF + 4096*((p+1)%2)}']
                if p in (1, 6): ld += [f'ds_read_b32 v{vT}, v{vF} offset:{F_S[0] if p == 1 else F_S[9]}']
                if p == 6: ld += [f'ds_read_b32 v{vEP}, v{vF} offset:{F_XC}']
            if i == 15 and p in (1, 6):
                sw = [f'v_cmp_ne_u32 vcc, 1, v{vT}'] + ([f'v_readfirstlane_b32 s{sXC}, v{vEP}'] if p == 6 else [])
                ld = [f's_cbranch_vccnz L_check{p}', f'L_checked{p}:']
            if p == 7 and opt('pre', 1) and 'nosvc' not in OPT and 'stop' not in OPT:
                P0 = opt('pre0', 6)
                if i == P0 - 1: ld += [f'ds_read_b32 v{vT}, v{vF} offset:{F_S[5]}']
                if i == P0: ld += [f's_waitcnt lgkmcnt(0)\nv_cmp_eq_u32 vcc, 0, v{vT}\ns_cmp_eq_u64 vcc, 0\ns_cselect_b32 s{sPRE}, 1, 0']
                if i == opt('rel', 15): ld += [f'ds_write_b32 v{vS}, v{vONE} offset:{F_AX}']
                grp = []
                k = i - P0 - 1
                if 0 <= k < 4: grp = [self.wo_read(st, vLN) for st in range(4 * k, 4 * k + 4)]; top = 4 * k + 3
                if 4 <= k < 8: grp = [self.o_load((k - 3) % 4)]; top = 16 + 4 * (k - 4) + 3
                if grp:
                    assert top // 3 < i, (top, i)
                    L = a.label('PF')
                    ld += [f's_cmp_eq_u32 s{sPRE}, 0\ns_cbranch_scc1 {L}'] + grp + [f'{L}:']
            seq = e[0:2] + ([] if (p == 0 and i == 0) else [PV(i - 1, 1)]) + e[2:5] + w + qk + sw + e[5:7] + ld + e[7:PP] + [PV(i, 0)] + e[PP:16]
            for x in seq: a(x)
        a(f's_setprio {opt("aprio", 1)}')
        a(f's_waitcnt vmcnt({sum(nl(t) for t in range(NUP)) - 1}) lgkmcnt(0)')
        a(QK(0))
        NW = opt('nw', 5)
        for p in range(8):
            if p == 0:
                plain(0, 0); plain(0, 1)
            else:
                e = [E(0, r) for r in range(16)]
                for x in e[0:2] + [PV(15, 1)] + e[2:5] + [QK(1)] + e[5:8]: a(x)
                so, si = (p - 1) % 2, p % 2
                if p < 7:
                    for x in [wr(so)[0], f'v_mov_b32 v{O+9}, {p+1}', wr(so)[1], wr(so)[2]]: a(x)
                else:
                    self.publish(R, 0, F_AX)
                if p % 2 == 0: a(f'v_add_u32 v{vA8}, s{sK[p//2-1][0]}, v{vL8}\nv_add_u32 v{vA16}, s{sK[p//2-1][2]}, v{vL16}')
                if p == 1:
                    for r in range(0, 8, 2): a(f'v_pk_mul_f32 {pr(O+r)}, {pr(O+10)}, {pr(O+10)}')
                    a(f'v_mov_b32 v{O+8}, 0')
                    for x in e[8:PP] + [PV(0, 0)] + e[PP:16]: a(x)
                    plain(p, 1)
                else:
                    for x in rd(si) + e[8:16]: a(x)
                    e = [E(1, r) for r in range(16)]
                    for x in e[0:NW]: a(x)
                    a(f's_waitcnt lgkmcnt(0)\nv_cmp_gt_u32 vcc, {p}, v{O+9}')
                    a(e[NW])
                    a(f's_cbranch_vccnz L_hw{p}')
                    a(f'L_hd{p}:')
                    n = NW + 1
                    for x in [PV(0, 0)] + e[n:n+3] + [PV(0, 1)] + e[n+3:n+6] + [QK(2)] + e[n+6:n+9] + [PV(1, 0)] + e[n+9:16]: a(x)
            for i in range(2, 16):
                plain(p, i)
            if p == 0: self.stamp(7)
            if 'phs' in OPT: a(f's_memtime s[98:99]\ns_memrealtime s[{16+4*p}:{17+4*p}]\ns_waitcnt lgkmcnt(0)\ns_mov_b32 s{17+4*p}, s98')
        a('s_nop 0')
        a(PV(15, 1))
        a(f's_branch L_attn_epi')
        for p in range(2, 8):
            a(f'L_hw{p}:')
            a(f's_mov_b32 s{sCNT}, {SPIN}')
            a(f'L_hl{p}:')
            a(f's_sleep 1')
            for x in rd(p % 2): a(x)
            a(f's_waitcnt lgkmcnt(0)\nv_cmp_gt_u32 vcc, {p}, v{O+9}\ns_cbranch_vccz L_hd{p}\ns_sub_u32 s{sCNT}, s{sCNT}, 1\ns_cbranch_scc0 L_hl{p}\ns_branch L_hd{p}')

    def attn_loop(self, R, slow):
        a = self.a
        K, V, S0, O, Q = R['K'], R['V'], R['S0'], R['O'], R['Q']
        vIDX, vA16, vA8, vQA, vL8, vM = R['vIDX'], R['vA16'], R['vA8'], R['vQA'], R['vL8'], R['vM']
        sf = '_s' if slow else '_f'
        PH0 = 16 if slow else 0
        NUP = opt('nup', 6)
        def Sb(i): return S0 + 16 * (i % 2)
        def E(i, r):
            s = Sb(i) + r
            return (f'v_sub_f32 v{s}, v{s}, v{vM}\n' if slow else '') + f'v_exp_f32 v{s}, v{s}'
        def QK(i): return f'v_mfma_f32_32x32x16_bf16 {t16(Sb(i))}, {q4(K+4*(i%16))}, {q4(Q)}, 0'
        def PV(i, h): return f'v_smfmac_f32_32x32x32_bf16 {t16(O)}, {q4(V+8*(i%16)+4*h)}, v[{Sb(i)+8*h}:{Sb(i)+8*h+7}], v{vIDX}'
        rd = [f'ds_read_b64 {pr(O+8)}, v{vA8} offset:{L_ACCF}', f'ds_read_b128 {q4(O)}, v{vA16} offset:{L_ACCD}', f'ds_read_b128 {q4(O+4)}, v{vA16} offset:{L_ACCD+1024}']
        wr = [f'ds_write_b128 v{vA16}, {q4(O)} offset:{L_ACCD}', f'ds_write_b128 v{vA16}, {q4(O+4)} offset:{L_ACCD+1024}', f'ds_write_b64 v{vA8}, {pr(O+8)} offset:{L_ACCF}']
        def getm():
            if slow:
                a(f'v_lshrrev_b32 v{vT}, 2, v{vL16}\nv_and_b32 v{vT}, 0x7c, v{vT}\ns_lshl_b32 s{sT0}, s{sTJ}, 7\ns_add_u32 s{sT0}, s{sT0}, {L_MX}\nv_add_u32 v{vT}, s{sT0}, v{vT}')
                a(f'ds_read_b32 v{vM}, v{vT}\ns_waitcnt lgkmcnt(0)')
        nl = lambda i: 3 if self.masked(i) else 2
        def plain(i, ph0=False):
            e = [E(i, r) for r in range(16)]
            w = []; sw = []; ld = []
            if ph0 and not slow:
                issued = sum(nl(t) for t in range(min(16, i + NUP)))
                needed = sum(nl(t) for t in range(i + 1)) + (1 if i < 15 else 0)
                w = [f's_waitcnt vmcnt({issued - needed})']
                if not self.masked(i): sw = [f'v_permlane16_swap_b32 v{V+8*i+r}, v{V+8*i+4+r}' for r in range(4)]
                if i + NUP < 16: ld = [self.kvload(R, i + NUP)]
                if i + NUP == 15: ld += [f'ds_write_b32 v{vS}, v{vONE} offset:{F_A1}']
            if i == 15: w += ['s_waitcnt lgkmcnt(0)']
            seq = e[0:2] + ([] if (ph0 and i == 0) else [PV(i - 1, 1)]) + e[2:5] + w + [QK(i + 1)] + sw
            if i == 14:
                seq += [f's_add_u32 s{sT1}, s{sPH}, 1\ns_lshr_b32 s{sT2}, s{sT1}, 1\ns_sub_u32 s{sT2}, s{sSW}, s{sT2}', e[5],
                        f's_and_b32 s{sT2}, s{sT2}, 3\ns_and_b32 s{sT1}, s{sT1}, 1\ns_lshl_b32 s{sT1}, s{sT1}, 2', e[6],
                        f's_add_u32 s{sT2}, s{sT2}, s{sT1}\ns_lshl_b32 s{sT0}, s{sT2}, 10', e[7], f'v_add_u32 v{vQA}, s{sT0}, v{vL16}', e[8],
                        f'ds_read_b128 {q4(Q)}, v{vQA} offset:{L_QF}'] + e[9:11]
            else:
                seq += e[5:11]
            seq += [PV(i, 0)] + e[11:13] + ld + e[13:16]
            for x in seq: a(x)
        a(f's_setprio {opt("aprio", 1)}')
        getm()
        a(f's_waitcnt vmcnt({sum(nl(t) for t in range(NUP)) - 1}) lgkmcnt(0)')
        a(QK(0))
        if slow:
            plain(0, True); plain(1)
            a(f's_branch L_mid{sf}')
        else:
            for i in range(16): plain(i, True)
            self.stamp(7)
        a('.p2align 6')
        a(f'L_loop{sf}:')
        a(f's_add_u32 s{sPH}, s{sPH}, 1\ns_mov_b32 s{sTJ}, s{sT2}')
        getm()
        e = [E(0, r) for r in range(16)]
        for x in e[0:2] + [PV(15, 1), e[2], f's_add_u32 s{sT1}, s{sPH}, 1', e[3], f's_lshl_b32 s{sT3}, s{sTJ}, 9', e[4], QK(1), f's_lshl_b32 s{sT4}, s{sTJ}, 11', e[5], e[6],
                           f's_cmp_eq_u32 s{sPH}, {PH0 + 7}', e[7], f's_cbranch_scc1 L_finx{sf}',
                           wr[0], f'v_mov_b32 v{O+9}, s{sT1}', e[8], wr[1], e[9], wr[2]]: a(x)
        a(f'L_finxd{sf}:')
        for x in [f'v_add_u32 v{vA8}, s{sT3}, v{vL8}', f'v_add_u32 v{vA16}, s{sT4}, v{vL16}', rd[0], e[10], rd[1], e[11], rd[2]] + e[12:16]: a(x)
        e0 = e
        e = [E(1, r) for r in range(16)]
        NW = opt('nw', 6)
        for x in e[0:NW]: a(x)
        a(f's_waitcnt lgkmcnt(0)\nv_cmp_gt_u32 vcc, s{sPH}, v{O+9}\ns_cbranch_vccnz L_hw{sf}')
        a(f'L_hd{sf}:')
        for x in [PV(0, 0)] + e[NW:NW+3] + [PV(0, 1)] + e[NW+3:NW+6] + [QK(2)] + e[NW+6:NW+9] + [PV(1, 0)] + e[NW+9:16]: a(x)
        a(f'L_mid{sf}:')
        for i in range(2, 16):
            plain(i)
        a(f's_cmp_lt_u32 s{sPH}, {PH0 + 7}\ns_cbranch_scc1 L_loop{sf}')
        a(PV(15, 1))
        a(f's_nop 10\ns_branch L_end{sf}')
        a(f'L_finx{sf}:')
        a(e0[8]); a(e0[9])
        self.publish(R, 0, F_AX)
        a(f's_branch L_finxd{sf}')
        a(f'L_hw{sf}:')
        a(f's_mov_b32 s{sCNT}, {SPIN}')
        a(f'L_hl{sf}:')
        a(f's_sleep 1')
        for x in rd: a(x)
        a(f's_waitcnt lgkmcnt(0)\nv_cmp_gt_u32 vcc, s{sPH}, v{O+9}\ns_cbranch_vccz L_hd{sf}\ns_sub_u32 s{sCNT}, s{sCNT}, 1\ns_cbranch_scc0 L_hl{sf}\ns_branch L_hd{sf}')
        a(f'L_end{sf}:')

    def oproj_pre(self):
        a = self.a
        a('s_setprio 3')
        self.sig(F_AX)
        a(f'v_lshrrev_b32 v241, 9, v{vL16}\nv_bfe_u32 v243, v{vL16}, 2, 7\nv_lshl_add_u32 v243, v241, 14, v243\nv_mov_b32 v240, 0\nv_mov_b32 v241, 0')
        a(f's_and_b32 s{sT0}, s{sOW}, 0xc00\ns_lshl_b32 s{sT0}, s{sT0}, 1\nv_add_u32 v242, s{sT0}, v{vL16}\ns_xor_b32 s{sT0}, s{sT0}, 0x1000\nv_add_u32 v245, s{sT0}, v{vL16}\nv_xor_b32 v246, 8, v{vS}')

    def oproj(self):
        a = self.a
        vZ, vOA, vXW, vXR, vP = 240, 243, 242, 245, 246
        OA = [192, 208]
        sPEND, sKH, sOUT = sT3, sT1, sT5
        order = (1, 2, 3, 0)
        for h in range(2): a(f'v_mfma_f32_32x32x8_bf16 {t16(OA[h])}, {pr(vZ)}, {pr(vZ)}, 0')
        loads = lambda q: a(self.o_load(q))
        def proc(q, lab):
            R_ = [self.OF(q, n) + r for n in range(4) for r in range(4)]
            a(f'v_max3_u32 v{vT}, v{R_[0]}, v{R_[1]}, v{R_[2]}')
            for r in range(3, 15, 2): a(f'v_max3_u32 v{vT}, v{R_[r]}, v{R_[r+1]}, v{vT}')
            a(f'v_max_u32 v{vT}, v{R_[15]}, v{vT}\nv_cmp_eq_u32 vcc, -1, v{vT}\ns_cbranch_vccnz {lab}')
            for n in range(4):
                a(f'v_mfma_f32_32x32x16_bf16 {t16(OA[q//4])}, {q4(self.OF(q, n))}, {q4(self.WF(4*(q%4)+n))}, {t16(OA[q//4])}')
            a(f's_bitset0_b32 s{sPEND}, {q}')
            a(f'{lab}:')
        a(f's_mov_b32 s{sPEND}, 0xff\ns_cmp_eq_u32 s{sPRE}, 0\ns_cbranch_scc1 L_nopre')
        a('s_waitcnt vmcnt(1) lgkmcnt(0)')
        proc(1, 'L_o0_1'); proc(2, 'L_o0_2')
        self.wait(F_AY, sleep=0)
        a('s_branch L_prej')
        a('L_nopre:')
        self.wait(F_S[5], sleep=1)
        self.wait(F_AY, sleep=0)
        for q in order: loads(q)
        for st in range(16): a(self.wo_read(st, vLN))
        a('s_waitcnt vmcnt(0) lgkmcnt(0)')
        proc(1, 'L_o0b_1'); proc(2, 'L_o0b_2')
        a('L_prej:')
        self.stamp(11)
        loads(5); loads(6)
        proc(3, 'L_o0_3')
        loads(7)
        proc(0, 'L_o0_0')
        loads(4)
        self.stamp(12)
        self.srd(SOUT, P(14), 2048 * 4096)
        a(f's_lshr_b32 s{sKH}, s{sSW}, 1\ns_mov_b32 s{sCNT}, 50000')
        a(f's_lshl_b32 s{sOUT}, s{sRB}, 18\ns_lshl_b32 s{sT0}, s{sCG}, 1\ns_and_b32 s{sT2}, s{sWV}, 1\ns_add_u32 s{sT0}, s{sT0}, s{sT2}\ns_lshl_b32 s{sT0}, s{sT0}, 7\ns_add_u32 s{sOUT}, s{sOUT}, s{sT0}\ns_lshl_b32 s{sT0}, s{sKH}, 17\ns_add_u32 s{sOUT}, s{sOUT}, s{sT0}')
        for k, q in enumerate(order):
            a(f's_waitcnt vmcnt({12 - 4*k})')
            proc(4 + q, f'L_o1_{q}')
        a('L_oretry:')
        a(f's_cmp_eq_u32 s{sPEND}, 0\ns_cbranch_scc1 L_odone\ns_sub_u32 s{sCNT}, s{sCNT}, 1\ns_cbranch_scc1 L_odone')
        for q in range(8):
            a(f's_bitcmp0_b32 s{sPEND}, {q}\ns_cbranch_scc1 L_ol_{q}')
            loads(q)
            a(f'L_ol_{q}:')
        a('s_waitcnt vmcnt(0)')
        for q in range(8):
            a(f's_bitcmp0_b32 s{sPEND}, {q}\ns_cbranch_scc1 L_o2_{q}')
            proc(q, f'L_o2_{q}')
        a('s_branch L_oretry')
        a('L_odone:')
        if self.stamps: a(f's_mov_b32 s{sST+14}, s{sCNT}')
        self.stamp(1)
        fl = {0: '', 1: ' sc1', 2: ' nt', 3: ' sc0 sc1', 4: ' sc1 nt', 5: ' sc0 nt', 6: ' sc0 sc1 nt'}[opt('ofl', 2)]
        a(f's_nop 7\ns_cmp_eq_u32 s{sKH}, 0\ns_cbranch_scc0 L_ohi')
        for kh in range(2):
            keep, send = OA[kh], OA[1 - kh]
            for q in range(4): a(f'ds_write_b128 v{vXW}, {q4(send+4*q)} offset:{L_ACCD + 8192*(q//2) + 1024*(q%2)}')
            self.sig(F_OX)
            self.wait(F_OX, sleep=0, va=vP)
            for q in range(4): a(f'ds_read_b128 {q4(4*q)}, v{vXR} offset:{L_ACCD + 8192*(q//2) + 1024*(q%2)}')
            for r in range(16):
                if r % 4 == 0: a(f's_waitcnt lgkmcnt({3 - r//4})')
                a(f'v_add_f32 v{r}, v{r}, v{keep+r}\ns_add_u32 s{sT0}, s{sOUT}, {((r % 4) + 8 * (r // 4)) * 4096}')
                a(f'buffer_store_dword v{r}, v{vOA}, s[{SOUT}:{SOUT+3}], s{sT0} offen{fl}')
            self.end()
            if kh == 0: a('L_ohi:')

    def kvproj(self):
        a = self.a
        vXA, vWA, vU, vO, vZ, D = 176, 177, 178, 179, 180, 184
        a(f's_lshr_b32 s{sT5}, s{sCG}, 1')
        a(f'v_and_b32 v{vT}, 15, v{vLN}\ns_lshl_b32 s{sT0}, s{sT5}, 4\nv_add_u32 v{vO}, s{sT0}, v{vT}\nv_mul_u32_u24 v{vXA}, 1040, v{vO}')
        a(f'v_lshrrev_b32 v{vU}, 4, v{vLN}\nv_lshl_add_u32 v{vXA}, v{vU}, 4, v{vXA}\nv_add_u32 v{vXA}, {L_A1}, v{vXA}')
        a(f'v_lshlrev_b32 v{vWA}, 3, v{vT}\nv_lshl_add_u32 v{vWA}, v{vU}, 8, v{vWA}\nv_and_b32 v181, 1, v{vU}\nv_lshl_add_u32 v{vWA}, v181, 7, v{vWA}\nv_xor_b32 v181, 128, v{vWA}\nv_add_u32 v{vWA}, {L_WKV}, v{vWA}\nv_add_u32 v181, {L_WKV}, v181')
        a(f's_and_b32 s{sT1}, s{sCG}, 1\ns_xor_b32 s{sT2}, s{sT1}, 1')
        a(f'v_lshrrev_b32 v{vO}, s{sT1}, v{vU}\nv_and_b32 v{vO}, 1, v{vO}\nv_lshlrev_b32 v{vO}, 9, v{vO}\nv_lshl_add_u32 v{vO}, v{vT}, 4, v{vO}')
        a(f'v_lshrrev_b32 v{vT}, s{sT2}, v{vU}\nv_and_b32 v{vT}, 1, v{vT}\nv_lshl_add_u32 v{vO}, v{vT}, 3, v{vO}')
        a(f's_lshl_b32 s{sT0}, s{sRB}, 1\ns_lshr_b32 s{sT2}, s{sT5}, 1\ns_add_u32 s{sT0}, s{sT0}, s{sT2}\ns_lshl_b32 s{sT0}, s{sT0}, 1\ns_add_u32 s{sT0}, s{sT0}, s{sT1}\ns_lshl_b32 s{sT0}, s{sT0}, 10')
        a(f's_and_b32 s{sT2}, s{sT5}, 1\ns_lshl_b32 s{sT2}, s{sT2}, 8\ns_add_u32 s{sT0}, s{sT0}, s{sT2}\ns_add_u32 s{sT3}, s{sT0}, {WS_KVIMG:#x}')
        a(f's_lshl_b32 s{sT4}, s{sRB}, 3\ns_add_u32 s{sT4}, s{sT4}, s{sCG}\ns_lshl_b32 s{sT4}, s{sT4}, {opt("fs", 6)}\ns_add_u32 s{sT4}, s{sT4}, {WS_KVFLAG:#x}')
        a(f'v_mov_b32 v{vZ}, 0')
        a(f's_lshl_b32 s{sT0}, s{sSW}, 8\nv_add_u32 v{vXA}, s{sT0}, v{vXA}\ns_lshl_b32 s{sT0}, s{sSW}, 12\nv_add_u32 v{vWA}, s{sT0}, v{vWA}\nv_add_u32 v181, s{sT0}, v181')
        a(f's_lshl_b32 s{sT0}, s{sSW}, 10\nv_add_u32 v{vU}, s{sT0}, v{vL16}')
        self.wait(F_L1, sleep=0)
        self.stamp(12)
        for s in range(4):
            b = 128 + 8 * s
            a(f'ds_read_b128 {q4(b)}, v{vXA} offset:{64*s}')
            a(f'ds_read_b64_tr_b16 {pr(b+4)}, v{vWA} offset:{1024*s}')
            a(f'ds_read_b64_tr_b16 {pr(b+6)}, v181 offset:{1024*s}')
        a(f's_bitcmp1_b32 s{sCG}, 0\ns_cbranch_scc1 L_kv_v')
        for kind in 'kv':
            for s in range(4):
                a(f's_waitcnt lgkmcnt({3 * (3 - s)})')
                b = 128 + 8 * s
                A, B = (q4(b + 4), q4(b)) if kind == 'k' else (q4(b), q4(b + 4))
                a(f'v_mfma_f32_16x16x32_bf16 {q4(D)}, {A}, {B}, {"0" if s == 0 else q4(D)}')
            if kind == 'k': a('s_branch L_kv_j\nL_kv_v:')
        a('L_kv_j:')
        a(f's_cmp_eq_u32 s{sSW}, 0\ns_cbranch_scc1 L_kv_0\ns_nop 5')
        a(f'ds_write_b128 v{vU}, {q4(D)} offset:{L_QF}')
        self.sig(F_S[4])
        a('s_branch L_nokv')
        a('L_kv_0:')
        self.sig(F_S[4])
        self.wait(F_S[4], sleep=0)
        for q in range(3): a(f'ds_read_b128 {q4(128+4*q)}, v{vL16} offset:{L_QF + 1024*(q+1)}')
        for q in range(3):
            a(f's_waitcnt lgkmcnt({2-q})\nv_pk_add_f32 {pr(D)}, {pr(D)}, {pr(128+4*q)}\nv_pk_add_f32 {pr(D+2)}, {pr(D+2)}, {pr(130+4*q)}')
        a(f'v_cvt_pk_bf16_f32 v188, v{D}, v{D+1}\nv_cvt_pk_bf16_f32 v189, v{D+2}, v{D+3}')
        a(f'buffer_store_dwordx2 v[188:189], v{vO}, s[{SWS}:{SWS+3}], s{sT3} offen sc1')
        a(f's_bitcmp1_b32 s{sCG}, 0\ns_cbranch_scc1 L_kv_v2')
        a(f'v_mul_f32 v190, v{D}, v{D}\nv_fmac_f32 v190, v{D+1}, v{D+1}\nv_fmac_f32 v190, v{D+2}, v{D+2}\nv_fmac_f32 v190, v{D+3}, v{D+3}')
        a('v_mov_b32 v191, v190\nv_permlane32_swap_b32 v190, v191\nv_add_f32 v190, v190, v191')
        a('v_mov_b32 v191, v190\nv_permlane16_swap_b32 v190, v191\nv_add_f32 v190, v190, v191')
        a('s_mov_b64 exec, 0xffff\ns_branch L_kv_fin')
        a('L_kv_v2:')
        a(f'v_max3_f32 v190, |v{D}|, |v{D+1}|, |v{D+2}|\nv_max_f32 v190, |v{D+3}|, v190')
        a(f's_mov_b32 s{sT1}, {f2u(2.0**50):#x}\nv_cmp_lt_f32 vcc, s{sT1}, v190\nv_mov_b32 v190, 0x7f800000\ns_mov_b64 exec, vcc')
        a('L_kv_fin:')
        a(f'ds_max_u32 v{vZ}, v190 offset:{F_KST}\ns_mov_b64 exec, -1\nds_read_b32 v183, v{vZ} offset:{F_KST}')
        a('s_waitcnt vmcnt(1)')
        self.get_tag()
        a(f's_getreg_b32 s{sT0}, hwreg(HW_REG_XCC_ID)\nv_mov_b32 v182, s{sTAG}\nv_mov_b32 v184, s{sT0}\nds_write_b32 v{vF}, v182 offset:{F_TAG}')
        self.stamp(13)

    def service(self):
        a = self.a
        self.cyc = False
        L1, L8, L16, L128, FF, WW, CC = 192, 194, 196, 198, 200, 202, 204
        DG = 206
        vXD, vXR, vXR2, vBD, vHA, vHB, vSX, vTW, vTR, vEA, vXS, vOA, vWI, vP8, vCK, vCS, vCK2, vCS2, vHF, vYW, vE0, vPF, vTG, vYR = range(214, 238)
        PRM = 238
        vC31, vHI, vU, vWA, vXA, vQ = 242, 243, 244, 245, 246, 247
        a('L_service:')
        a(f'v_mov_b32 v0, 0\nv_mov_b32 v1, 0\nv_mov_b32 v2, 0\nv_mov_b32 v3, 0')
        a(f's_lshl_b32 s{sT0}, s{sSW}, 10\nv_add_u32 v{vT}, s{sT0}, v{vL16}\nds_write_b128 v{vT}, v[0:3] offset:{L_ACCF}')
        a(f'v_lshlrev_b32 v{vT}, 3, v{vLN}\nds_write_b64 v{vT}, v[0:1]')
        a(f'v_and_b32 v{vC31}, 31, v{vLN}\nv_lshlrev_b32 v{vU}, 1, v{vC31}\nv_lshrrev_b32 v{vHI}, 5, v{vLN}')
        a('s_waitcnt lgkmcnt(0)')
        self.stamp(0)
        a('s_setprio 3')
        self.srd(SWS, P(16), WS_SIZE)
        a(f's_cmp_lg_u32 s{sSW}, 0\ns_cbranch_scc1 L_noepl')
        a(f'buffer_load_dword v{vEP}, off, s[{SWS}:{SWS+3}], 0 sc1')
        a('L_noepl:')
        a(f's_lshl_b32 s{sT0}, s{sPB}, 6')
        for k, p in enumerate((6, 7, 12)):
            self.srd(SA, P(p), 1024)
            a(f'buffer_load_ushort v{PRM+k}, v{vU}, s[{SA}:{SA+3}], s{sT0} offen')
        self.srd(SA, P(13), 1024)
        a(f's_lshl_b32 s{sT0}, s{sCG}, 7\ns_and_b32 s{sT1}, s{sWV}, 1\ns_lshl_b32 s{sT1}, s{sT1}, 6\ns_add_u32 s{sT0}, s{sT0}, s{sT1}')
        a(f'buffer_load_ushort v{PRM+3}, v{vU}, s[{SA}:{SA+3}], s{sT0} offen')
        a('s_barrier')
        self.common_regs()
        self.tr_parts(vTR, vU, vWA)
        a(f'v_lshl_add_u32 v{vTR}, v{vU}, 6, v{vTR}\nv_lshl_add_u32 v{vTR}, v{vHI}, 9, v{vTR}')
        a(f'v_lshl_add_u32 v{vWA}, v{vHI}, 10, v{vWA}\nv_add_u32 v{vWA}, {L_A2}, v{vWA}')
        a(f'v_mul_u32_u24 v{vCK}, 1040, v{vC31}\nv_lshl_add_u32 v{vCK}, v{vHI}, 4, v{vCK}\nv_add_u32 v{vCK}, {L_A1}, v{vCK}')
        a(f's_lshr_b32 s{sT0}, s{sSW}, 1\ns_mul_i32 s{sT0}, s{sT0}, {32*1040}\nv_add_u32 v{vXA}, s{sT0}, v{vCK}')
        a(f's_lshl_b32 s{sT0}, s{sSW}, 11\nv_add_u32 v{vQ}, s{sT0}, v{vL16}')
        sXB, sXL, sTP, sCT = 73, 74, 75, 80
        a(f's_lshl_b32 s{sXB}, s{sTB}, 2\ns_add_u32 s{sXB}, s{sXB}, s{sSW}\ns_lshl_b32 s{sXB}, s{sXB}, 15')
        a(f's_mul_i32 s{sXL}, s{sSW}, {XW}\ns_add_u32 s{sXL}, s{sXL}, {L_A2}')
        a(f's_lshl_b32 s{sTP}, s{sRB}, 1\ns_lshr_b32 s{sT0}, s{sSW}, 1\ns_add_u32 s{sTP}, s{sTP}, s{sT0}')
        a(f's_lshl_b32 s{sCT}, s{sCG}, 1\ns_and_b32 s{sT0}, s{sSW}, 1\ns_add_u32 s{sCT}, s{sCT}, s{sT0}')
        a(f'v_lshlrev_b32 v{vT}, 3, v{vHI}\nv_xor_b32 v{vT}, v{vC31}, v{vT}\nv_lshlrev_b32 v{vT}, 4, v{vT}\nv_lshl_add_u32 v{vXD}, v{vHI}, 13, v{vT}\nv_lshl_add_u32 v{vBD}, v{vHI}, 10, v{vT}')
        def tmap(i):
            r = 4 * (i >> 3) + (i & 3)
            return 16 * ((i >> 2) & 1) + (r >> 1) + 8 * (r & 1)
        def xdma(half, ms=range(16)):
            for m in ms:
                a(f's_xor_b32 s{sT0}, s{sXM}, {m}\ns_mul_i32 s{sT0}, s{sT0}, 1040\ns_add_u32 m0, s{sT0}, s{sXL}\ns_xor_b32 s{sT0}, s{sXG}, {tmap(2*m)*1024 + 512*half}')
                a(f'buffer_load_dwordx4 v{vXD}, s[{SA}:{SA+3}], s{sT0} offen lds')
        sXM, sXG, sHB = 50, 51, 81
        a(f's_and_b32 s{sXM}, s{sPB}, 14\ns_and_b32 s{sT0}, s{sPB}, 2\ns_lshl_b32 s{sT0}, s{sT0}, 3\ns_lshr_b32 s{sT1}, s{sPB}, 2\ns_lshl_b32 s{sT1}, s{sT1}, 1\ns_add_u32 s{sT0}, s{sT0}, s{sT1}\ns_lshl_b32 s{sT0}, s{sT0}, 10')
        a(f's_xor_b32 s{sHB}, s{sPB}, s{sTB}\ns_and_b32 s{sHB}, s{sHB}, 1\ns_lshl_b32 s{sHB}, s{sHB}, 9\ns_add_u32 s{sT0}, s{sT0}, s{sHB}\ns_add_u32 s{sXG}, s{sXB}, s{sT0}')
        a(f'v_lshrrev_b32 v{vU}, 1, v{vC31}\nv_mul_u32_u24 v{vU}, 1040, v{vU}\nv_lshl_add_u32 v{vU}, v{vHI}, 4, v{vU}\nv_and_b32 v{vT}, 1, v{vC31}')
        a(f'v_mul_u32_u24 v{vHA}, 640, v{vT}\nv_mul_u32_u24 v{vHB}, 384, v{vT}\nv_add_u32 v{vHA}, v{vHA}, v{vU}\nv_add_u32 v{vHB}, v{vHB}, v{vU}')
        a(f'v_add_u32 v{vXR}, s{sXL}, v{vHA}\nv_add_u32 v{vXR2}, s{sXL}, v{vHB}\nv_add_u32 v{vHA}, {L_A1}, v{vHA}\nv_add_u32 v{vHB}, {L_A1}, v{vHB}')
        a(f'v_lshlrev_b32 v{vSX}, 3, v{vLN}\nv_add_u32 v{vSX}, s{sXL}, v{vSX}')
        a(f'v_lshlrev_b32 v{vP8}, 3, v{vC31}\nv_add_u32 v{vP8}, {L_A2}, v{vP8}')
        a(f'v_lshlrev_b32 v{vTW}, 6, v{vC31}\nv_lshl_add_u32 v{vTW}, v{vHI}, 5, v{vTW}\nv_add_u32 v{vTW}, s{sXL}, v{vTW}\nv_add_u32 v{vTR}, s{sXL}, v{vTR}')
        a(f'v_lshlrev_b32 v{vEA}, 4, v{vC31}\nv_xor_b32 v{vT}, 1, v{vHI}\nv_lshl_add_u32 v{vEA}, v{vT}, 12, v{vEA}')
        a(f'v_lshlrev_b32 v{vXS}, 10, v{vC31}\nv_lshl_add_u32 v{vXS}, v{vHI}, 4, v{vXS}')
        a(f'v_lshlrev_b32 v{vOA}, 2, v{vC31}\nv_lshl_add_u32 v{vOA}, v{vHI}, 14, v{vOA}')
        self.wimg_lane_addr(vWI, vT)
        a(f's_and_b32 s{sT0}, s{sSW}, 1\ns_mul_i32 s{sT1}, s{sT0}, {512 - 32*1040}\ns_add_u32 s{sT1}, s{sT1}, {32*1040}\nv_add_u32 v{vCS}, s{sT1}, v{vCK}')
        a(f's_mul_i32 s{sT1}, s{sT0}, {32*1040 + 512}\nv_add_u32 v{vCK}, s{sT1}, v{vCK}\nv_add_u32 v{vCK2}, {L_A2 - L_A1}, v{vCK}\nv_add_u32 v{vCS2}, {L_A2 - L_A1}, v{vCS}')
        a(f'v_and_b32 v{vHF}, 15, v{vLN}\nv_lshlrev_b32 v{vHF}, 7, v{vHF}\nv_lshlrev_b32 v{vPF}, 6, v{vLN}')
        a(f'v_add_u32 v{vYW}, s{sXL}, v{vL16}\ns_xor_b32 s{sT0}, s{sSW}, 1\ns_mul_i32 s{sT0}, s{sT0}, {XW}\ns_add_u32 s{sT0}, s{sT0}, {L_A2}\nv_add_u32 v{vYR}, s{sT0}, v{vL16}')
        self.kvproj()
        a('L_nokv:')
        a(f's_cmp_eq_u32 s{sSW}, 0\ns_cbranch_scc1 L_pw1\ns_waitcnt vmcnt(0)')
        a('L_pw1:')
        a(f'v_lshlrev_b32 v0, 16, v{PRM}\nv_lshlrev_b32 v1, 16, v{PRM+1}\nv_lshlrev_b32 v2, 16, v{PRM+2}')
        LOG2E = f2u(math.log2(math.e))
        a(f'v_mul_f32 v2, {LOG2E:#x}, v2\nv_exp_f32 v2, v2\nv_cvt_pk_bf16_f32 v2, v2, v2\nv_lshlrev_b32 v2, 16, v2')
        a(f'v_mul_f32 v4, v2, v0\nv_mul_f32 v5, v2, v1\nv_mul_f32 v4, {LOG2E:#x}, v4\nv_mul_f32 v5, {f2u(-1/(2*math.pi)):#x}, v5')
        def power(d, n):
            a(f'v_mul_f32 v6, {n}, v4\nv_mul_f32 v7, {n}, v5\nv_exp_f32 v6, v6\nv_fract_f32 v7, v7\nv_cos_f32 v8, v7\nv_sin_f32 v9, v7\nv_mul_f32 v{d}, v6, v8\nv_mul_f32 v{d+1}, v6, v9')
        power(L1, '1.0')
        power(L8, f'{f2u(8.0):#x}')
        power(L16, f'{f2u(16.0):#x}')
        power(L128, f'{f2u(128.0):#x}')
        a(f'v_cvt_f32_u32 v11, v{vHI}\nv_mul_f32 v11, {f2u(1024.0):#x}, v11')
        power(FF, 'v11')
        a(f's_lshl_b32 s{sT0}, s{sSW}, 1\nv_add_u32 v11, s{sT0}, v{vHI}\nv_cvt_f32_u32 v11, v11\nv_mul_f32 v11, {f2u(16.0):#x}, v11')
        power(WW, 'v11')
        a(f'v_add_f32 v6, -1.0, v{L1}\nv_mul_f32 v7, v0, v0\nv_fmac_f32 v7, v1, v1\nv_rcp_f32 v7, v7\nv_add_f32 v7, v7, v7')
        a(f'v_mul_f32 v8, v6, v0\nv_fma_f32 v8, -v{L1+1}, v1, v8\nv_mul_f32 v9, v6, v1\nv_fma_f32 v9, -v{L1+1}, v0, -v9\nv_mul_f32 v{CC}, v8, v7\nv_mul_f32 v{CC+1}, v9, v7')
        a(f'v_and_b32 v6, 1, v{vLN}\nv_lshlrev_b32 v6, 4, v6\nv_lshlrev_b32 v3, v6, v{PRM+3}')
        a(f'v_lshrrev_b32 v6, 1, v{vC31}\nv_lshlrev_b32 v7, 2, v{vHI}\nv_sub_u32 v6, v6, v7')
        for q in range(8):
            a(f'v_cmp_eq_u32 vcc, {8*(q//4) + q%4}, v6\nv_cndmask_b32 v{DG+q}, 0, v3, vcc')
        LC = PRM
        a(f'v_mov_b32 v{LC}, 0\nv_mov_b32 v{LC+1}, 0')
        WT, D = 128, 160
        def kvflag():
            a(f's_cmp_lg_u32 s{sSW}, 0\ns_cbranch_scc1 L_nokvf')
            a('s_waitcnt vmcnt(0)')
            a(f's_mov_b64 exec, {(1 << (1 << (opt("fs", 6) - 4))) - 1:#x}\nbuffer_store_dwordx4 v[182:185], v{vL16}, s[{SWS}:{SWS+3}], s{sT4} offen sc1\ns_mov_b64 exec, -1')
            self.sig(F_KVD, va=vF)
            self.stamp(14)
            a('L_nokvf:')
        FP = opt('fp', 16)
        if FP < 0:
            a('s_waitcnt lgkmcnt(0)'); kvflag()
        self.wait(F_L2, sleep=1)
        self.stamp(1)
        vXQ = [vU, 186, 187, 191]
        a(f's_and_b32 s{sT1}, s{sRB}, 3')
        for c in range(4): a(f's_xor_b32 s{sT0}, s{sT1}, {c}\ns_lshl_b32 s{sT0}, s{sT0}, 8\nv_add_u32 v{vXQ[c]}, s{sT0}, v{vXA}')
        def xr(st): a(f'ds_read_b128 {q4(4*st)}, v{vXQ[st//8]} offset:{32*(st%8)}')
        NPR = opt('npr', 16)
        if FP == 0: kvflag()
        for st in range(32 - NPR, 32): xr(st)
        if FP == 16: kvflag()
        lq = []
        def wr(st):
            b = WT + 4 * (st % 8)
            if st < 32 - NPR: xr(st); lq.append(st)
            a(f'ds_read_b64_tr_b16 {pr(b)}, v{vWA} offset:{2048*st}\nds_read_b64_tr_b16 {pr(b+2)}, v{vWA} offset:{2048*st+512}')
            lq.extend([st, st])
        for s0, s1, fl in ((0, 16, F_L4), (16, 32, F_L6)):
            self.wait(fl, sleep=0)
            if s0 == 0:
                self.stamp(2)
            dp = 4 if s0 < 32 - NPR else 6
            for st in range(s0, s0 + dp): wr(st)
            for st in range(s0, s1):
                lq[:] = [x for x in lq if x > st]
                a(f's_waitcnt lgkmcnt({len(lq)})')
                a(f'v_mfma_f32_32x32x16_bf16 {t16(D)}, {q4(WT + 4*(st%8))}, {q4(4*st)}, {"0" if st == 0 else t16(D)}')
                if st + dp < s1: wr(st + dp)
            if s0 == 0:
                if FP == 32: kvflag()
                self.wait(F_KVD, sleep=0)
                self.sig(F_QA)
                a(f'ds_read_b32 v{vTG}, v{vF} offset:{F_TAG}')
        QS = f2u(0.25 * math.log2(math.e))
        a(f'v_mov_b32 v24, {QS:#x}')
        for r in range(8):
            a(f'v_pk_mul_f32 {pr(D+2*r)}, v[24:25], {pr(D+2*r)} op_sel:[0,0] op_sel_hi:[0,1]')
            a(f'v_cvt_pk_bf16_f32 v{16+r}, v{D+2*r}, v{D+2*r+1}')
            if r == 3: a(f'ds_write_b128 v{vQ}, v[16:19] offset:{L_QF}')
        a(f'ds_write_b128 v{vQ}, v[20:23] offset:{L_QF+1024}')
        self.sig(F_QP)
        self.stamp(3)
        a(f'v_mul_f32 v8, v{D}, v{D}\nv_mul_f32 v9, v{D+8}, v{D+8}')
        for r in range(1, 8): a(f'v_fmac_f32 v8, v{D+r}, v{D+r}\nv_fmac_f32 v9, v{D+8+r}, v{D+8+r}')
        a('v_permlane32_swap_b32 v8, v9\nv_add_f32 v8, v8, v9')
        a(f'v_mov_b32 v{vQ}, v8')
        if 'nosvc' in OPT:
            self.sig(F_S[0]); self.sig(F_S[9]); self.end(); return
        SN = 180
        a(f'v_readfirstlane_b32 s{sTAG}, v{vTG}')
        a(f'v_mov_b32 v{SN}, -1\nv_mov_b32 v{SN+1}, -1\nv_mov_b32 v{SN+2}, -1\nv_mov_b32 v{SN+3}, -1\nv_mov_b32 v{SN+4}, 0\nv_mov_b32 v{SN+5}, 0\nv_mov_b32 v{SN+6}, v{vTG}\nv_mov_b32 v{SN+7}, 0')
        self.srd(SA, P(5), 2048 * 1024)
        self.srd(SB, P(8), 512 * 1024)
        self.srd(SC, P(9), 512 * 1024)
        self.stamp(11)
        def bdma(half, only=None):
            if half == 0: a(f's_mul_i32 s{sT1}, s{sSW}, {4*1040}\ns_lshl_b32 s{sT2}, s{sPB}, 15\ns_lshl_b32 s{sT3}, s{sSW}, 13\ns_add_u32 s{sT2}, s{sT2}, s{sT3}\ns_add_u32 s{sT2}, s{sT2}, s{sHB}')
            for pl, srd in ((0, SB), (1, SC)):
                for m in range(4):
                    if only is not None and only != 4 * pl + m: continue
                    a(f's_add_u32 m0, s{sT1}, {L_A1 + ((2*half + pl)*16 + m)*1040}\ns_xor_b32 s{sT0}, s{sT2}, {2048*m + 512*half}')
                    a(f'buffer_load_dwordx4 v{vBD}, s[{srd}:{srd+3}], s{sT0} offen lds')
        def xread(half):
            for s in range(16): a(f'ds_read_b128 {q4(64*half + 4*s)}, v{vXR2 if s & 4 else vXR} offset:{32*s}')
        def rowdma(srd, base, sg, n):
            for m in range(n):
                if m % 4 == 0: a(f's_add_u32 m0, s{sT1}, {base + m*1040}\ns_add_u32 s{sT0}, s{sg}, {1024*m}')
                else: a('s_add_u32 m0, m0, 16')
                a(f'buffer_load_dwordx4 v{vL16}, s[{srd}:{srd+3}], s{sT0} offen offset:{1024*(m%4)} lds')
        self.wait(F_A1, sleep=opt('a1s', 4))
        self.stamp(10)
        a(f'ds_read_b64 {pr(SN+8)}, v{SN+4} offset:{F_KMAX}')
        xdma(0, range(2)); a(f's_mov_b32 s{sT0}, {f2u(3400.0):#x}\ns_waitcnt lgkmcnt(0)')
        a(f'v_mul_f32 v{vT}, v{SN+8}, v{vQ}\nv_cmp_nge_f32 vcc, s{sT0}, v{vT}\nv_readfirstlane_b32 s{sXC}, v{SN+9}\ns_cmp_eq_u64 vcc, 0\ns_cselect_b32 s{sT0}, 1, 2\nv_mov_b32 v{vQ}, s{sT0}')
        a(f'ds_write_b32 v{vS}, v{vQ} offset:{F_S[0]}')
        bdma(0); xdma(0, range(2, 16))
        a('s_waitcnt vmcnt(0)')
        self.sig(F_S[1])
        self.stamp(4)
        xread(0)
        self.wait(F_S[1], sleep=1)
        self.stamp(5)
        GR, GI, BT = 128, 144, 160
        PD = opt('s1depth', 4)
        lq = []
        def bread(q):
            s, pl = q // 2, q % 2
            a(f'ds_read_b128 {q4(BT + 4*(q%5))}, v{vHB if s & 4 else vHA} offset:{((2*(s//16) + pl)*16)*1040 + 32*(s%16)}')
            lq.append(('b', q))
        a(f's_setprio {opt("gprio1", 0)}')
        for q in range(PD): bread(q)
        XQ = opt('xq', 20)
        for q in range(64):
            s, pl = q // 2, q % 2
            need = max([i for i, x in enumerate(lq) if x == ('b', q) or x == ('x', s)] + [-1])
            if need >= 0:
                a(f's_waitcnt lgkmcnt({len(lq) - 1 - need})')
                del lq[:need + 1]
            Gx = GI if pl else GR
            a(f'v_mfma_f32_32x32x16_bf16 {t16(Gx)}, {q4(4*s)}, {q4(BT + 4*(q%5))}, {"0" if s == 0 else t16(Gx)}')
            if q + PD == 32:
                a('s_setprio 3')
                self.wait(F_S[2], sleep=1); lq.clear()
                a(f's_setprio {opt("gprio1", 0)}')
                self.stamp(12)
            if q + PD < 64: bread(q + PD)
            if q < 4: bdma(1, 2 * q); bdma(1, 2 * q + 1)
            elif q < 12: xdma(1, [2 * q - 8, 2 * q - 7])
            elif pl == 1 and opt('pad1', 0): a(f's_nop {opt("pad1", 0) - 1}')
            if q == XQ:
                a('s_waitcnt vmcnt(0)')
                self.sig(F_S[2]); lq.append(('s', 0))
                a(f's_or_b32 s{sT0}, s2, s{sSW}\ns_cbranch_scc1 L_noep')
                a(f's_mov_b64 exec, 1\nbuffer_store_dword v{vTG}, off, s[{SWS}:{SWS+3}], 0 sc1\ns_mov_b64 exec, -1')
                a('L_noep:')
                a(f's_cmp_lg_u32 s{sTB}, 0\ns_cbranch_scc1 L_nozero')
                a(f's_lshl_b32 s{sT0}, s{sPB}, 14\ns_lshl_b32 s{sT1}, s{sSW}, 11\ns_add_u32 s{sT0}, s{sT0}, s{sT1}\ns_add_u32 s{sT0}, s{sT0}, {WS_EBUF:#x}')
                for n in range(2): a(f'buffer_store_dwordx4 {q4(SN+4)}, v{vL16}, s[{SWS}:{SWS+3}], s{sT0} offen offset:{1024*n} sc1')
                a('L_nozero:')
                a(f's_lshr_b32 s{sT0}, s{sSW}, 1\ns_and_b32 s{sT1}, s{sRB}, 1\ns_cmp_lg_u32 s{sT0}, s{sT1}\ns_cbranch_scc1 L_nosent')
                a(f's_lshl_b32 s{sT1}, s{sCG}, 12\ns_add_u32 s{sT0}, s{sXB}, s{sT1}\ns_add_u32 s{sT0}, s{sT0}, {WS_OBUF:#x}')
                self.xstore([f'buffer_store_dwordx4 {q4(SN)}, v{vL16}, s[{SWS}:{SWS+3}], s{sT0} offen offset:{1024*n}' for n in range(4)], 's')
                a('L_nosent:')
                if opt('pf', 1): self.prefetch((10, 11, 4), vPF)
            if XQ < q <= XQ + 16:
                sx = q - XQ - 1
                a(f'ds_read_b128 {q4(64 + 4*sx)}, v{vXR2 if sx & 4 else vXR} offset:{32*sx}'); lq.append(('x', 16 + sx))
        a('s_setprio 3')
        self.stamp(6)
        if opt('stop', 0) == 6: self.end(); return
        RE = 'op_sel:[0,0,0] op_sel_hi:[0,1,1]'
        IM = 'op_sel:[1,0,0] op_sel_hi:[1,1,1]'
        T0, T1 = 8, 10
        def pstep(dr, di, sr, si, l, ur, ui, ns=0, nu=0):
            a(f'v_pk_fma_f32 {pr(T0)}, {pr(l)}, {pr(si)}, {pr(ur)} {IM} neg_lo:[{1-ns},0,0] neg_hi:[{1-ns},0,0]')
            a(f'v_pk_fma_f32 {pr(T1)}, {pr(l)}, {pr(sr)}, {pr(ui)} {IM} neg_lo:[0,0,{nu}] neg_hi:[0,0,{nu}]')
            a(f'v_pk_fma_f32 {pr(dr)}, {pr(l)}, {pr(sr)}, {pr(T0)} {RE}')
            a(f'v_pk_fma_f32 {pr(di)}, {pr(l)}, {pr(si)}, {pr(T1)} {RE} neg_lo:[{ns},0,0] neg_hi:[{ns},0,0]')
        def cstep(dr, di, sr, si, l, ur, ui):
            a(f'v_fma_f32 v{T0}, -v{l+1}, v{si}, v{ur}\nv_fma_f32 v{T1}, v{l+1}, v{sr}, v{ui}\nv_fma_f32 v{dr}, v{l}, v{sr}, v{T0}\nv_fma_f32 v{di}, v{l}, v{si}, v{T1}')
        def zstep(d, s, l, u):
            a(f'v_pk_fma_f32 {pr(T0)}, {pr(l)}, {pr(s)}, {pr(u)} {RE}')
            a(f'v_pk_fma_f32 {pr(d)}, {pr(l)}, {pr(s)}, {pr(T0)} op_sel:[1,1,0] op_sel_hi:[1,0,1] neg_lo:[1,0,0]')
        def cmul(r, i, neg):
            a(f'v_pk_mul_f32 {pr(T0)}, {pr(CC)}, {pr(i)} op_sel:[1,0] op_sel_hi:[1,1]')
            a(f'v_pk_mul_f32 {pr(T1)}, {pr(CC)}, {pr(r)} op_sel:[1,0] op_sel_hi:[1,1]')
            a(f'v_pk_fma_f32 {pr(r)}, {pr(CC)}, {pr(r)}, {pr(T0)} {RE} neg_lo:[0,0,{neg}] neg_hi:[0,0,{neg}]')
            a(f'v_pk_fma_f32 {pr(i)}, {pr(CC)}, {pr(i)}, {pr(T1)} {RE} neg_lo:[{neg},0,1] neg_hi:[{neg},0,1]')
        ER, EI, EE = 12, 14, 16
        pstep(ER, EI, GR, GI, L1, GR + 2, GI + 2, 1, 1)
        for r in range(4, 16, 2): pstep(ER, EI, ER, EI, L1, GR + r, GI + r, 0, 1)
        cstep(EE, EE + 1, ER, EI, L8, ER + 1, EI + 1)
        a(f'ds_write_b64 v{vSX}, {pr(EE)} offset:{L_SXO}')
        self.sig(F_S[3])
        self.srd(SB, P(10), 512 * 1024)
        self.srd(SC, P(11), 512 * 1024)
        a(f's_lshl_b32 s{sT3}, s{sSW}, 1\ns_mov_b32 s{sM0}, 0\ns_mov_b32 s{sM0+1}, -1')
        a(f's_lshl_b32 s{sT4}, s{sPB}, 14\ns_lshl_b32 s{sT1}, s{sTB}, 9\ns_add_u32 s{sT4}, s{sT4}, s{sT1}\ns_add_u32 s{sT4}, s{sT4}, {WS_EBUF:#x}')
        self.wait(F_S[3], sleep=1)
        for c in range(7): a(f'ds_read_b64 {pr(20+2*c)}, v{vP8} offset:{(c//2)*XW + L_SXO + (c%2)*256}')
        a('s_waitcnt lgkmcnt(0)')
        for c in range(7):
            a(f's_cmp_lt_u32 s{sT3}, {c}\ns_cbranch_scc1 L_lh_done')
            a(f's_cmp_gt_u32 s{sT3}, {c}\ns_cselect_b64 exec, -1, s[{sM0}:{sM0+1}]')
            zstep(LC, LC, L16, 20 + 2 * c)
        zstep(vTG - 2, LC, L16, EE)
        a(f's_add_u32 s{sT0}, s{sT4}, {16*512 - 512}\nbuffer_store_dwordx4 v[{vTG-2}:{vTG+1}], v{vL16}, s[{SWS}:{SWS+3}], s{sT0} offen sc1')
        a('L_lh_done:\ns_mov_b64 exec, -1')
        self.stamp(7)
        def cdma(srd, base):
            a(f's_mul_i32 s{sT1}, s{sSW}, {16*1040}\ns_lshl_b32 s{sT2}, s{sCG}, 16\ns_lshl_b32 s{sT3}, s{sSW}, 14\ns_add_u32 s{sT2}, s{sT2}, s{sT3}')
            rowdma(srd, base, sT2, 16)
        cdma(SB, L_A1)
        for r in range(0, 16, 2): cmul(GR + r, GI + r, 1)
        a(f's_mov_b32 s{sCNT}, 100000')
        a('L_eg:')
        for q in range(8): a(f'buffer_load_dwordx3 v[{24+4*q}:{26+4*q}], v{vEA}, s[{SWS}:{SWS+3}], s{sT4} offen offset:{512*q} sc1')
        a('s_waitcnt vmcnt(0)')
        a(f'v_cmp_ne_u32 vcc, s{sTAG}, v26')
        for q in range(1, 8): a(f'v_cmp_ne_u32 s[{sM1}:{sM1+1}], s{sTAG}, v{26+4*q}\ns_or_b64 vcc, vcc, s[{sM1}:{sM1+1}]')
        a(f's_cbranch_scc0 L_egd\ns_sleep {opt("esleep", 4)}\ns_sub_u32 s{sCNT}, s{sCNT}, 1\ns_cbranch_scc0 L_eg')
        a('L_egd:')
        self.sig(F_S[9])
        self.stamp(8)
        for q in range(1, 8): zstep(24, 24, L128, 24 + 4 * q)
        a(f'v_pk_mul_f32 {pr(T0)}, {pr(FF)}, {pr(24)} op_sel:[0,0] op_sel_hi:[0,1]')
        a(f'v_pk_fma_f32 {pr(20)}, {pr(FF)}, {pr(24)}, {pr(T0)} op_sel:[1,1,0] op_sel_hi:[1,0,1] neg_lo:[1,0,0]')
        a(f'v_mov_b32 v22, v20\nv_mov_b32 v23, v21\nv_permlane32_swap_b32 v20, v22\nv_permlane32_swap_b32 v21, v23\nv_pk_add_f32 {pr(20)}, {pr(20)}, {pr(22)}')
        IR, II = 24, 26
        cstep(IR, II, 20, 21, WW, LC, LC + 1)
        cstep(IR + 1, II + 1, IR, II, L8, ER, EI)
        cmul(IR, II, 0)
        pstep(GR, GI, IR, II, L1, GR, GI)
        for r in range(2, 16, 2): pstep(GR + r, GI + r, GR + r - 2, GI + r - 2, L1, GR + r, GI + r)
        for pl, Gx in ((0, GR), (1, GI)):
            for j in range(8):
                r0 = 4 * (j % 4) + j // 4
                a(f'v_cvt_pk_bf16_f32 v{28+8*pl+j}, v{Gx+r0}, v{Gx+r0+2}')
            a(f'ds_write_b128 v{vTW}, {q4(28+8*pl)} offset:{L_TBO+2048*pl}\nds_write_b128 v{vTW}, {q4(32+8*pl)} offset:{L_TBO+2048*pl+16}')
        for pl in range(2):
            for f in range(2):
                d = 44 + 8 * pl + 4 * f
                a(f'ds_read_b64_tr_b16 {pr(d)}, v{vTR} offset:{L_TBO+2048*pl+1024*f}\nds_read_b64_tr_b16 {pr(d+2)}, v{vTR} offset:{L_TBO+2048*pl+1024*f+256}')
        a(f's_lshl_b32 s{sT0}, s{sXB}, 1\ns_lshl_b32 s{sT1}, s{sPB}, 11\ns_add_u32 s{sT0}, s{sT0}, s{sT1}\ns_add_u32 s{sT0}, s{sT0}, {WS_HBUF:#x}\ns_add_u32 s{sT1}, s{sT0}, 0x8000')
        hs = []
        for pl in range(2):
            for f in range(2):
                d = 44 + 8 * pl + 4 * f
                hs += [f's_waitcnt lgkmcnt({6 - 4*pl - 2*f})', f'buffer_store_dwordx4 {q4(d)}, v{vL16}, s[{SWS}:{SWS+3}], s{sT0 if pl == 0 else sT1} offen offset:{1024*f}']
        self.xstore(hs, 'h')
        YK, YS, XF, HR = 128, 144, 184, 160
        a(f's_lshl_b32 s{sT0}, s{sTP}, 15\ns_lshl_b32 s{sT1}, s{sCT}, 6\ns_add_u32 s{sT0}, s{sT0}, s{sT1}')
        a(f'buffer_load_dwordx4 {q4(XF)}, v{vXS}, s[{SA}:{SA+3}], s{sT0} offen\nbuffer_load_dwordx4 {q4(XF+4)}, v{vXS}, s[{SA}:{SA+3}], s{sT0} offen offset:32')
        a(f's_lshr_b32 s{sT4}, s{sXB}, 4\ns_lshl_b32 s{sT3}, s{sPB}, 7\ns_add_u32 s{sT4}, s{sT4}, s{sT3}\ns_add_u32 s{sT4}, s{sT4}, {WS_HFLAG:#x}')
        self.wait(F_S[9], sleep=1)
        a(f's_mov_b32 s{sM1}, -1\ns_mov_b32 s{sM1+1}, 0\ns_waitcnt vmcnt(2)')
        a(f's_mov_b64 exec, s[{sM1}:{sM1+1}]')
        self.xstore([f'buffer_store_dword v{vTG}, v{vOA}, s[{SWS}:{SWS+3}], s{sT4} offen'], 'h')
        a('s_mov_b64 exec, -1')
        self.stamp(9)
        if opt('stop', 0) == 9: self.end(); return
        cdma(SC, L_A2)
        for j in range(16): a(f'ds_read_b128 {q4(8*j)}, v{vCK} offset:{32*j}\nds_read_b128 {q4(8*j+4)}, v{vCS} offset:{32*j}')
        self.sig(F_S[6])
        a('s_waitcnt vmcnt(17)')
        a(f'v_mfma_f32_32x32x16_bf16 {t16(YK)}, {q4(XF)}, {q4(DG)}, 0')
        a(f'v_mfma_f32_32x32x16_bf16 {t16(YK)}, {q4(XF+4)}, {q4(DG+4)}, {t16(YK)}')
        self.srd(SB, P(4), 512 * 1024)
        a(f's_lshl_b32 s{sT4}, s{sSW}, 17\ns_lshl_b32 s{sT1}, s{sCG}, 7\ns_add_u32 s{sT4}, s{sT4}, s{sT1}\ns_and_b32 s{sT1}, s{sCG}, 3\ns_lshl_b32 s{sT1}, s{sT1}, 16\ns_xor_b32 s{sT4}, s{sT4}, s{sT1}\ns_lshl_b32 s{sT1}, s{sSW}, 14\ns_add_u32 m0, s{sT1}, {L_A1}')
        self.wait(F_S[6], sleep=1)
        for m in range(16):
            a(f's_xor_b32 s{sT0}, s{sT4}, {8192*m:#x}\nbuffer_load_dwordx4 v{vWI}, s[{SB}:{SB+3}], s{sT0} offen lds\ns_add_u32 m0, m0, 1024')
        a(f's_lshl_b32 s{sT0}, s{sTP}, 11\ns_add_u32 s{sT0}, s{sT0}, {WS_HFLAG:#x}\ns_mov_b64 exec, 0xffff')
        a(f's_mov_b32 s{sCNT}, 100000')
        a('L_gph:')
        a(f'buffer_load_dword v{vT}, v{vHF}, s[{SWS}:{SWS+3}], s{sT0} offen sc1\ns_waitcnt vmcnt(0)\nv_cmp_ne_u32 vcc, s{sTAG}, v{vT}\ns_cbranch_vccz L_gdh')
        a(f's_sleep {opt("hsleep", 4)}\ns_sub_u32 s{sCNT}, s{sCNT}, 1\ns_cbranch_scc0 L_gph')
        a('L_gdh:\ns_mov_b64 exec, -1')
        self.sig(F_S[5])
        self.stamp(13)
        if opt('stop', 0) == 10: self.end(); return
        a(f's_lshl_b32 s{sT3}, s{sTP}, 16\ns_and_b32 s{sT0}, s{sSW}, 1\ns_lshl_b32 s{sT0}, s{sT0}, 14\ns_add_u32 s{sT3}, s{sT3}, s{sT0}\ns_add_u32 s{sT3}, s{sT3}, {WS_HBUF:#x}')
        NR = 13
        vq = []
        def hload(j):
            if j % 4 == 0 and j > 0: a(f's_add_u32 s{sT3}, s{sT3}, {4096 if j != 16 else 4096 + 16384}')
            a(f'buffer_load_dwordx4 {q4(HR + 4*(j%NR))}, v{vL16}, s[{SWS}:{SWS+3}], s{sT3} offen offset:{1024*(j%4)} sc1')
            vq.append(('h', j))
        for j in range(NR - 1): hload(j)
        a(f's_setprio {opt("gprio4", 0)}')
        lq = []
        def cread(j):
            c = 8 * (j % 16)
            a(f'ds_read_b128 {q4(c)}, v{vCK2} offset:{32*(j%16)}\nds_read_b128 {q4(c+4)}, v{vCS2} offset:{32*(j%16)}')
            lq.extend([('c', j), ('c', j)])
        wosig = False
        for j in range(32):
            need = vq.index(('h', j))
            w = f's_waitcnt vmcnt({len(vq) - 1 - need})'
            del vq[:need + 1]
            ln = max([i for i, x in enumerate(lq) if x == ('c', j)] + [-1])
            if ln >= 0:
                w += f' lgkmcnt({len(lq) - 1 - ln})'; del lq[:ln + 1]
            a(w)
            c = 8 * (j % 16); h = q4(HR + 4 * (j % NR))
            a(f'v_mfma_f32_32x32x16_bf16 {t16(YK)}, {h}, {q4(c)}, {t16(YK)}')
            if j + NR - 1 < 32: hload(j + NR - 1)
            a(f'v_mfma_f32_32x32x16_bf16 {t16(YS)}, {h}, {q4(c+4)}, {"0" if j == 0 else t16(YS)}')
            if j == 11:
                a('s_setprio 3')
                self.wait(F_S[5], sleep=1); lq.clear()
                a(f's_setprio {opt("gprio4", 0)}')
            if 12 <= j < 28: cread(j + 4)
            HJ = opt('hj', 99)
            if opt('pad4', 0) and j < HJ: a(f's_nop {opt("pad4", 0) - 1}')
            if j == HJ - 1:
                a('s_setprio 3')
                self.wait(F_AX, sleep=opt('hjs', 4), va=vS); lq.clear()
                a(f's_setprio {opt("gprio5", 0)}')
        a('s_setprio 3')
        self.sig(F_S[7])
        self.srd(SOUT, P(14), 2048 * 4096)
        a(f's_lshl_b32 s{sT2}, s{sTP}, 17\ns_lshl_b32 s{sT1}, s{sCT}, 7\ns_add_u32 s{sT2}, s{sT2}, s{sT1}')
        self.wait(F_S[7], sleep=1)
        for q in range(4): a(f'ds_write_b128 v{vYW}, {q4(YS+4*q)} offset:{1024*q}')
        self.sig(F_S[8])
        self.wait(F_S[8], sleep=1)
        for q in range(4): a(f'ds_read_b128 {q4(YS+4*q)}, v{vYR} offset:{1024*q}')
        a('s_waitcnt lgkmcnt(0)')
        fl = {0: '', 1: ' sc1', 2: ' nt', 3: ' sc0 sc1', 4: ' sc1 nt', 5: ' sc0 nt', 6: ' sc0 sc1 nt'}[opt('yfl', 2)]
        for r in range(0, 16, 2): a(f'v_pk_add_f32 {pr(YS+r)}, {pr(YK+r)}, {pr(YS+r)}')
        for r in range(16):
            a(f's_add_u32 s{sT0}, s{sT2}, {((r % 4) + 8 * (r // 4)) * 4096}')
            a(f'buffer_store_dword v{YS+r}, v{vOA}, s[{SOUT}:{SOUT+3}], s{sT0} offen offset:2048{fl}')
        self.stamp(2)
        self.end()

HEADER = open('cdna_kernels/' + NAME + '.s.ref').read().split('; Override launch')[0]

def make(stamps=False):
    g = G(stamps)
    body = g.build()
    txt = HEADER + f'; @launch grid=(256,1,1) block=(512,1,1) lds={L_TOTAL}\n'
    txt += f'''.amdgcn_target "amdgcn-amd-amdhsa--gfx950"
.text
.globl {NAME}_kernel
.p2align 8
.type {NAME}_kernel,@function
{NAME}_kernel:
{body}.section .rodata,"a"
.p2align 6
.amdhsa_kernel {NAME}_kernel
  .amdhsa_next_free_vgpr 256
  .amdhsa_next_free_sgpr 102
  .amdhsa_accum_offset 256
  .amdhsa_group_segment_fixed_size 0
  .amdhsa_kernarg_size 136
  .amdhsa_user_sgpr_count 2
  .amdhsa_user_sgpr_kernarg_segment_ptr 1
  .amdhsa_system_sgpr_workgroup_id_x 1
.end_amdhsa_kernel
'''
    return txt, g.a.n_ins

if __name__ == '__main__':
    pos = [x for x in sys.argv[1:] if not x.startswith('--')]
    out = pos[0] if pos else 'cdna_kernels/' + NAME + '.s'
    txt, n = make(stamps='stamps' in OPT)
    open(out, 'w').write(txt)
    print('wrote', out, n, 'instructions')
```

```python
import sys, math, struct
from asm import Asm

NAME = 'concat_heads__grouped_kv_mqa__ssm_conv_s5__prompt'
OPT = dict((x[2:].split('=') + ['1'])[:2] for x in sys.argv if x.startswith('--'))
def opt(k, d): return int(OPT.get(k, d))
def f2u(x): return struct.unpack('<I', struct.pack('<f', x))[0]
def pr(r): return f'v[{r}:{r+1}]'
def q4(r): return f'v[{r}:{r+3}]'
def t16(r): return f'v[{r}:{r+15}]'

WS_KVFLAG = 0x8000
WS_KVIMG = 0x10000
WS_EBUF = 0x40000
WS_HFLAG = 0x80000
WS_OBUF = 0x100000
WS_HBUF = 0x400000
WS_DBG = 0x800000
WS_SIZE = 0x1000000
def FL(i): return 16 * i
F_L1, F_L2, F_L4, F_L6 = FL(0), FL(1), FL(2), FL(3)
F_QP, F_KVD = FL(4), FL(5)
F_A1, F_AX, F_AY = FL(6), FL(7), FL(8)
F_S = [FL(9 + i) for i in range(10)]
F_WO = FL(19)
F_OX = FL(20)
F_SL = [FL(22 + i) for i in range(3)]
F_KMAX, F_XC, F_KST = FL(25), FL(25) + 4, FL(25) + 8
F_TAG, F_QA = FL(26), FL(27)
L_QN = 512
L_ACCF = 1024
L_QF = 5120
L_ACCD = 13312
L_WKV = L_ACCD
L_A1 = 29696
L_A2 = 96256
L_MX = L_A2 + 66560
L_TOTAL = 163840
XW = 16640
L_SXO = 1024
L_TBO = 2048

sWV, sRB, sCG, sTB, sPB, sTAG = 3, 4, 5, 6, 7, 8
sT0, sT1, sT2, sT3, sT4, sT5 = 9, 10, 11, 12, 13, 14
sCNT = 15
P = lambda i: 16 + 2 * i
SA, SB, SC, SWS, SOUT = 52, 56, 60, 64, 68
sSW = 72
sPH, sTJ, sOW = 73, 74, 75
sM0, sM1 = 76, 78
sQH = 81
sOB, sPRE = 101, 81
sXC = 100
sST = 82
SPIN = 400000
vT, vLN, vL16, vEP, vF, vS, vONE = 249, 250, 251, 252, 253, 254, 255

class G:
    def __init__(self, stamps=False):
        self.a = Asm(); self.stamps = stamps; self.cyc = True
    def srd(self, d, p, size):
        self.a(f's_mov_b32 s{d}, s{p}\ns_mov_b32 s{d+1}, s{p+1}\ns_mov_b32 s{d+2}, {size:#x}\ns_mov_b32 s{d+3}, 0x20000')
    def stamp(self, i):
        if self.stamps:
            self.a(f's_memrealtime s[98:99]\ns_waitcnt lgkmcnt(0)\ns_mov_b32 s{sST+i}, s98')
            m = {5: 8, 6: 9}
            if self.cyc and i in m:
                self.a(f's_memtime s[98:99]\ns_waitcnt lgkmcnt(0)\ns_mov_b32 s{sST+m[i]}, s98')
    def end(self):
        a = self.a
        if self.stamps:
            a('s_waitcnt vmcnt(0)')
            self.stamp(15)
            if 'diag' in OPT and self.cyc != ('diagsv' in OPT):
                da, db = [int(x) for x in OPT['diag'].split(',')]
                L = a.label('DG')
                a(f's_sub_u32 s{sT1}, s{sST+db}, s{sST+da}')
                if 'diagcyc' in OPT: a(f's_lshr_b32 s{sT1}, s{sT1}, 1')
                else: a(f's_lshl_b32 s{sT1}, s{sT1}, 3')
                a(f's_min_u32 s{sT1}, s{sT1}, 100000\ns_add_u32 s{sT1}, s{sT1}, s{sST+15}')
                a(f'{L}:\ns_sleep 4\ns_memrealtime s[98:99]\ns_waitcnt lgkmcnt(0)\ns_cmp_lt_u32 s98, s{sT1}\ns_cbranch_scc1 {L}')
            a(f's_lshl_b32 s{sT0}, s2, 3\ns_add_u32 s{sT0}, s{sT0}, s{sWV}\ns_lshl_b32 s{sT0}, s{sT0}, 6\ns_add_u32 s{sT0}, s{sT0}, {WS_DBG:#x}')
            a('s_mov_b64 exec, 1')
            for i in range(16):
                a(f'v_mov_b32 v{vT}, s{sST+i}\nbuffer_store_dword v{vT}, off, s[{SWS}:{SWS+3}], s{sT0} offset:{4*i}')
            a('s_waitcnt vmcnt(0)')
        a('s_endpgm')
    def sig(self, off, va=vS):
        self.a(f'ds_write_b32 v{va}, v{vONE} offset:{off}')
    def wait(self, off, sleep=1, va=vF):
        a = self.a; L = a.label('W'); D = a.label('WD')
        a(f's_mov_b32 s{sCNT}, {SPIN}')
        a(f'{L}:')
        a(f'ds_read_b32 v{vT}, v{va} offset:{off}\ns_waitcnt lgkmcnt(0)\nv_cmp_eq_u32 vcc, 0, v{vT}\ns_cbranch_vccz {D}')
        a((f's_sleep {sleep}\n' if sleep else '') + f's_sub_u32 s{sCNT}, s{sCNT}, 1\ns_cbranch_scc0 {L}')
        a(f'{D}:')
    def xstore(self, lines, kind='o'):
        a = self.a
        if not opt('xc' + kind, 1 if kind == 'o' else 0):
            for x in lines: a(x + (' sc1' if x.startswith('buffer') else ''))
            return
        L = a.label('X'); D = a.label('XD')
        a(f's_cmp_eq_u32 s{sXC}, 1\ns_cbranch_scc0 {L}')
        for x in lines: a(x + (' nt' if x.startswith('buffer') and opt('xnt', 0) else ''))
        a(f's_branch {D}')
        a(f'{L}:')
        for x in lines: a(x + (' sc1' if x.startswith('buffer') else ''))
        a(f'{D}:')
    def get_tag(self):
        self.a(f'v_readfirstlane_b32 s{sTAG}, v{vEP}\ns_mul_i32 s{sTAG}, s{sTAG}, 0x9E3779B1\ns_add_u32 s{sTAG}, s{sTAG}, 0x7F4A7C15')

    def build(self):
        a = self.a
        a('s_cmp_ge_u32 s2, 256\ns_cbranch_scc1 L_exit')
        a('s_load_dwordx16 s[16:31], s[0:1], 0\ns_load_dwordx16 s[32:47], s[0:1], 64\ns_load_dwordx2 s[48:49], s[0:1], 128')
        if self.stamps:
            for i in range(16): a(f's_mov_b32 s{sST+i}, 0')
        a(f'v_and_b32 v{vLN}, 63, v0\nv_lshrrev_b32 v{vT}, 6, v0\nv_lshlrev_b32 v{vL16}, 4, v{vLN}\nv_readfirstlane_b32 s{sWV}, v{vT}')
        if opt('cpf', 1):
            a(f's_cmp_lt_u32 s{sWV}, 5\ns_cbranch_scc1 L_nocpf')
            a(f's_getpc_b64 s[{sM0}:{sM0+1}]')
            a('L_pc:')
            a(f's_lshr_b32 s{sT0}, s2, 3\ns_mul_i32 s{sT0}, s{sT0}, 3\ns_add_u32 s{sT0}, s{sT0}, s{sWV}\ns_sub_u32 s{sT0}, s{sT0}, 5\ns_lshl_b32 s{sT0}, s{sT0}, 9')
            a(f's_min_u32 s{sT0}, s{sT0}, L_exit-L_pc-512\ns_add_u32 s{sM0}, s{sM0}, s{sT0}\ns_addc_u32 s{sM0+1}, s{sM0+1}, 0')
            for k in range(8): a(f's_load_dword s{SOUT + k % 4}, s[{sM0}:{sM0+1}], {64*k}')
            a('L_nocpf:')
        a(f's_and_b32 s{sT0}, s2, 7\ns_lshr_b32 s{sT1}, s2, 3')
        a(f's_lshl_b32 s{sRB}, s{sT0}, 2\ns_lshr_b32 s{sT2}, s{sT1}, 3\ns_add_u32 s{sRB}, s{sRB}, s{sT2}\ns_and_b32 s{sCG}, s{sT1}, 7')
        a(f's_lshr_b32 s{sTB}, s{sRB}, 1\ns_and_b32 s{sPB}, s{sT1}, 15\ns_and_b32 s{sSW}, s{sWV}, 3')
        a(f's_cmp_ge_u32 s{sWV}, 4\ns_cbranch_scc1 L_service')
        a(f's_lshr_b32 s{sT5}, s{sCG}, 1\ns_lshl_b32 s{sT4}, s{sRB}, 16')
        def xa_rows(g):
            a(f's_add_u32 s{sT0}, s{sT5}, {g}\ns_and_b32 s{sT0}, s{sT0}, 3\ns_lshl_b32 s{sT0}, s{sT0}, 2\ns_add_u32 s{sT0}, s{sT0}, s{sSW}\ns_lshl_b32 s{sT0}, s{sT0}, 2')
            a(f's_mul_i32 s{sT1}, s{sT0}, 1040\ns_add_u32 m0, s{sT1}, {L_A1}\ns_lshl_b32 s{sT0}, s{sT0}, 10\ns_add_u32 s{sT0}, s{sT0}, s{sT4}')
            if g == 0:
                a('s_waitcnt lgkmcnt(0)')
                self.stamp(0)
                self.srd(SA, P(0), 2048 * 1024)
            for n in range(4):
                a(f'buffer_load_dwordx4 v{vL16}, s[{SA}:{SA+3}], s{sT0} offen offset:{1024*n} lds')
                if n < 3: a('s_add_u32 m0, m0, 16')
        xa_rows(0)
        a(f's_bitcmp1_b32 s{sCG}, 0\ns_cselect_b32 s{SB}, s{P(3)}, s{P(2)}\ns_cselect_b32 s{SB+1}, s{P(3)+1}, s{P(2)+1}\ns_mov_b32 s{SB+2}, 0x4000\ns_mov_b32 s{SB+3}, 0x20000')
        a(f's_lshl_b32 s{sT0}, s{sWV}, 12\ns_add_u32 m0, s{sT0}, {L_WKV}')
        a(f'v_lshrrev_b32 v2, 1, v{vL16}\nv_and_b32 v2, 128, v2\nv_xor_b32 v2, v2, v{vL16}')
        for n in range(4):
            a(f'buffer_load_dwordx4 v2, s[{SB}:{SB+3}], s{sT0} offen offset:{1024*n} lds')
        self.srd(SC, P(1), 512 * 1024)
        NPQ = 0
        if opt('pfq', 0):
            G = opt('pfg', 6)
            a(f'v_lshlrev_b32 v3, {G}, v{vLN}\ns_lshr_b32 s{sT0}, s2, 3\ns_lshl_b32 s{sT0}, s{sT0}, 2\ns_add_u32 s{sT0}, s{sT0}, s{sSW}\ns_lshl_b32 s{sT0}, s{sT0}, 12')
            if G == 7: a(f's_mov_b32 s{sM0}, -1\ns_mov_b32 s{sM0+1}, 0\ns_mov_b64 exec, s[{sM0}:{sM0+1}]')
            a(f'buffer_load_dword v4, v3, s[{SC}:{SC+3}], s{sT0} offen'); NPQ = 1
            if opt('pfq', 0) > 1:
                for p in (8, 9):
                    self.srd(SOUT, P(p), 512 * 1024)
                    a(f'buffer_load_dword v4, v3, s[{SOUT}:{SOUT+3}], s{sT0} offen'); NPQ += 1
                self.srd(SOUT, P(5), 2048 * 1024)
                a(f's_lshr_b32 s{sT0}, s{sT0}, 1\ns_and_b32 s{sT1}, s2, 7\ns_lshl_b32 s{sT1}, s{sT1}, 18\ns_add_u32 s{sT0}, s{sT0}, s{sT1}\nv_lshrrev_b32 v3, 1, v3')
                a(f'buffer_load_dword v4, v3, s[{SOUT}:{SOUT+3}], s{sT0} offen'); NPQ += 1
            a('s_mov_b64 exec, -1')
        self.wimg_lane_addr(0, 1)
        a(f's_lshl_b32 s{sT3}, s{sSW}, 13\ns_lshl_b32 s{sT1}, s{sCG}, 7\ns_add_u32 s{sT3}, s{sT3}, s{sT1}\ns_and_b32 s{sT1}, s{sRB}, 3\ns_lshl_b32 s{sT1}, s{sT1}, 17\ns_add_u32 s{sT3}, s{sT3}, s{sT1}')
        a(f's_lshl_b32 s{sT2}, s{sSW}, 10')
        def wq_rows(c):
            for n in range(4 * c, 4 * c + 4):
                a(f's_add_u32 m0, s{sT2}, {L_A2 + 4096*n}\ns_xor_b32 s{sT0}, s{sT3}, {0x8000*n:#x}')
                a(f'buffer_load_dwordx4 v0, s[{SC}:{SC+3}], s{sT0} offen lds')
        FO = opt('fo', 1)
        if FO == 0: wq_rows(0)
        else: xa_rows(1)
        self.common_regs()
        self.srd(SWS, P(16), WS_SIZE)
        a('s_barrier')
        self.stamp(1)
        a(f's_waitcnt vmcnt({4 + NPQ})')
        self.sig(F_L1)
        if FO == 0: xa_rows(1)
        xa_rows(2); xa_rows(3)
        if FO == 1: wq_rows(0)
        if FO == 0: wq_rows(1)
        a('s_waitcnt vmcnt(4)')
        self.sig(F_L2)
        if FO == 1: wq_rows(1)
        wq_rows(2); wq_rows(3)
        self.stamp(2)
        a('s_waitcnt vmcnt(8)')
        self.sig(F_L4)
        if opt('lay', 1):
            a('s_branch L_attn')
            self.service()
            self.cyc = True
            a('L_attn:')
            self.attention()
        else:
            self.attention()
            self.service()
        a('L_exit:\ns_endpgm')
        return a.finish()

    def common_regs(self):
        self.a(f'v_and_b32 v{vF}, 3, v{vLN}\nv_lshlrev_b32 v{vF}, 2, v{vF}\ns_lshl_b32 s{sT0}, s{sSW}, 2\nv_mov_b32 v{vS}, s{sT0}\nv_mov_b32 v{vONE}, 1')

    def wimg_lane_addr(self, vd, vt):
        a = self.a
        a(f'v_lshrrev_b32 v{vt}, 2, v{vLN}\nv_and_b32 v{vt}, 4, v{vt}\nv_and_b32 v{vd}, 7, v{vLN}\nv_xor_b32 v{vd}, v{vd}, v{vt}\nv_lshlrev_b32 v{vd}, 4, v{vd}')
        a(f'v_lshrrev_b32 v{vt}, 3, v{vLN}\nv_lshl_add_u32 v{vd}, v{vt}, 10, v{vd}')

    def tr_parts(self, c0, r, wpart):
        a = self.a
        a(f'v_bfe_u32 v{c0}, v{vLN}, 4, 1\nv_lshlrev_b32 v{c0}, 5, v{c0}\nv_and_b32 v{r}, 3, v{vLN}\nv_lshl_add_u32 v{c0}, v{r}, 3, v{c0}\nv_bfe_u32 v{r}, v{vLN}, 2, 2')
        a(f's_and_b32 s{sT0}, s{sSW}, 1\nv_lshrrev_b32 v{wpart}, 1, v{r}\nv_xor_b32 v{wpart}, s{sT0}, v{wpart}\nv_lshl_add_u32 v{wpart}, v{wpart}, 6, v{c0}\nv_lshl_add_u32 v{wpart}, v{r}, 7, v{wpart}')

    def prefetch(self, ptrs, vd):
        a = self.a
        a(f's_lshr_b32 s{sT0}, s2, 3\ns_lshl_b32 s{sT0}, s{sT0}, 2\ns_add_u32 s{sT0}, s{sT0}, s{sSW}\ns_lshl_b32 s{sT0}, s{sT0}, 12')
        for p in ptrs:
            self.srd(SOUT, P(p), 512 * 1024)
            a(f'buffer_load_dword v{vEP}, v{vd}, s[{SOUT}:{SOUT+3}], s{sT0} offen')

    def attention(self):
        a = self.a
        K, V, S0, O, Q = 0, 64, 192, 224, 240
        vIDX, vA16, vA8, vQA, vL8 = 244, 245, 246, 247, 248
        R = dict(K=K, V=V, S0=S0, O=O, Q=Q, vIDX=vIDX, vA16=vA16, vA8=vA8, vQA=vQA, vL8=vL8, vM=vEP)
        a(f'v_and_b32 v{Q}, 11, v{vLN}\nv_cmp_eq_u32 vcc, 0, v{Q}\nv_mov_b32 v{Q}, 0x3f803f80\nv_cndmask_b32 v{vT}, 0, v{Q}, vcc')
        MK = opt('mask', 0)
        self.masked = lambda i: (MK >> i) & 1
        for i in range(16):
            for r in range(0 if self.masked(i) else 4, 8): a(f'v_mov_b32 v{V+8*i+r}, v{vT}')
        a(f'v_lshlrev_b32 v{vL8}, 3, v{vLN}\nv_mov_b32 v{vIDX}, 0xdddd')
        def init_state(ph0):
            for i in range(16): a(f'v_mov_b32 v{O+i}, 0')
            a(f's_mov_b32 s{sTJ}, s{sSW}\ns_mov_b32 s{sPH}, {ph0}')
            a(f's_lshl_b32 s{sT0}, s{sTJ}, 10\nv_add_u32 v{vQA}, s{sT0}, v{vL16}')
            a(f's_lshl_b32 s{sT0}, s{sTJ}, 11\nv_add_u32 v{vA16}, s{sT0}, v{vL16}\ns_lshl_b32 s{sT0}, s{sTJ}, 9\nv_add_u32 v{vA8}, s{sT0}, v{vL8}')
        init_state(0)
        FS = opt('fs', 6)
        a(f'v_lshlrev_b32 v{S0+4}, {FS}, v{vLN}\nv_mov_b32 v{S0+3}, 0\ns_getreg_b32 s{sXC}, hwreg(HW_REG_XCC_ID)')
        a(f's_lshl_b32 s{sT3}, s{sWV}, {FS + 6}\ns_add_u32 s{sT3}, s{sT3}, {WS_KVFLAG:#x}')
        a(f's_lshl_b32 s{sT4}, s{sWV}, 15\ns_add_u32 s{sT4}, s{sT4}, {WS_KVIMG:#x}\ns_lshl_b32 s{sT0}, s{sCG}, 12\ns_add_u32 s{sT4}, s{sT4}, s{sT0}')
        a(f's_lshl_b32 s{sOW}, s{sRB}, 16\ns_lshl_b32 s{sT0}, s{sCG}, 12\ns_add_u32 s{sOW}, s{sOW}, s{sT0}\ns_add_u32 s{sOW}, s{sOW}, {WS_OBUF:#x}')
        a(f's_add_u32 s{sT0}, s{sSW}, 1\ns_and_b32 s{sT0}, s{sT0}, 3\ns_lshl_b32 s{sT0}, s{sT0}, 10\ns_add_u32 s{sOW}, s{sOW}, s{sT0}')
        a(f's_mov_b32 s{sM0}, 0xffff\ns_mov_b32 s{sM0+1}, 0xffff')
        a(f's_lshl_b32 s{sOB}, s{sRB}, 16\ns_lshr_b32 s{sT0}, s{sSW}, 1\ns_lshl_b32 s{sT0}, s{sT0}, 2\ns_and_b32 s{sT2}, s{sCG}, 3\ns_add_u32 s{sT0}, s{sT0}, s{sT2}\ns_lshl_b32 s{sT0}, s{sT0}, 12')
        a(f's_add_u32 s{sOB}, s{sOB}, s{sT0}\ns_add_u32 s{sOB}, s{sOB}, {WS_OBUF:#x}\ns_mov_b32 s{sPRE}, 0')
        self.tr_parts(0, 1, 2)
        a(f'v_lshrrev_b32 v1, 5, v{vLN}\nv_lshl_add_u32 v2, v1, 9, v2\ns_lshr_b32 s{sT0}, s{sSW}, 1\ns_lshl_b32 s{sT0}, s{sT0}, 15\ns_add_u32 s{sT0}, s{sT0}, {L_A1}\nv_add_u32 v{vLN}, s{sT0}, v2')
        a(f's_waitcnt vmcnt(0)')
        self.sig(F_L6)
        self.stamp(3)
        self.wait(F_QA if opt('pw', 0) == 0 else F_KVD, sleep=1)
        a(f'ds_read_b32 v{vEP}, v{vF} offset:{F_TAG}\ns_waitcnt lgkmcnt(0)\nv_readfirstlane_b32 s{sTAG}, v{vEP}')
        if opt('pf1', 0):
            a(f's_lshr_b32 s{sT0}, s2, 3\ns_lshl_b32 s{sT0}, s{sT0}, 2\ns_add_u32 s{sT0}, s{sT0}, s{sSW}\ns_lshl_b32 s{sT0}, s{sT0}, 12')
            for k, p in enumerate((8, 9)):
                self.srd(SB, P(p), 512 * 1024)
                for n in range(4): a(f'buffer_load_dwordx4 {q4(4 + 16*k + 4*n)}, v{vL16}, s[{SB}:{SB+3}], s{sT0} offen offset:{1024*n}')
            self.srd(SB, P(5), 2048 * 1024)
            a(f's_lshr_b32 s{sT0}, s{sT0}, 1\ns_and_b32 s{sT1}, s2, 7\ns_lshl_b32 s{sT1}, s{sT1}, 18\ns_add_u32 s{sT0}, s{sT0}, s{sT1}')
            for n in range(2): a(f'buffer_load_dwordx4 {q4(36 + 4*n)}, v{vL16}, s[{SB}:{SB+3}], s{sT0} offen offset:{1024*n}')
        if opt('pw', 0): a(f's_sleep {opt("pw", 0)}')
        a(f's_mov_b32 s{sCNT}, 100000')
        KW = opt('kw', 2)
        a(f's_lshr_b32 s{sT0}, s2, 3\ns_lshl_b32 s{sT0}, s{sT0}, 2\ns_add_u32 s{sT0}, s{sT0}, s{sSW}\ns_lshl_b32 s{sT0}, s{sT0}, 10\ns_add_u32 s{sT0}, s{sT0}, {WS_KVIMG:#x}')
        kwl = f'buffer_load_dwordx4 {q4(S0+8)}, v{vL16}, s[{SWS}:{SWS+3}], s{sT0} offen sc1'
        if KW == 2: a(kwl)
        a('L_kvp:')
        a(f'buffer_load_dwordx3 v[{S0}:{S0+2}], v{S0+4}, s[{SWS}:{SWS+3}], s{sT3} offen sc1')
        if KW == 1: a(kwl)
        a(f's_waitcnt vmcnt({1 if KW == 1 else 0})\nv_cmp_ne_u32 vcc, s{sTAG}, v{S0}\ns_cbranch_vccz L_kvpd')
        a(f's_sleep {opt("kvsleep", 4)}\ns_sub_u32 s{sCNT}, s{sCNT}, 1\ns_cbranch_scc0 L_kvp')
        a('L_kvpd:')
        if self.stamps: a(f's_mov_b32 s{sST+13}, s{sCNT}')
        self.stamp(4)
        for i in range(opt('nup', 7)): a(self.kvload(R, i))
        a(f'ds_max_u32 v{S0+3}, v{S0+1} offset:{F_KMAX}')
        a(f's_lshr_b32 s{sT0}, s{sRB}, 3\ns_cmp_eq_u32 s{sT0}, s{sSW}\ns_cbranch_scc0 L_noxc')
        a(f'v_cmp_ne_u32 vcc, s{sXC}, v{S0+2}\ns_bitcmp1_b32 s{sRB}, 2\ns_cselect_b32 s{sT0}, vcc_hi, vcc_lo\ns_cmp_eq_u32 s{sT0}, 0\ns_cselect_b32 s{sT0}, 1, 0')
        a(f'v_mov_b32 v{S0+2}, s{sT0}\nds_write_b32 v{S0+3}, v{S0+2} offset:{F_XC}')
        a('L_noxc:')
        self.wait(F_QP, sleep=0)
        a(f'ds_read_b128 {q4(Q)}, v{vQA} offset:{L_QF}')
        self.stamp(5)
        self.attn_fast(R)
        a('L_attn_epi:')
        if 'phs' in OPT:
            for p in range(8): a(f's_mov_b32 s{sST+2*p}, s{16+4*p}\ns_mov_b32 s{sST+2*p+1}, s{17+4*p}')
            a(f's_lshl_b32 s{sT0}, s2, 3\ns_add_u32 s{sT0}, s{sT0}, s{sWV}\ns_lshl_b32 s{sT0}, s{sT0}, 6\ns_add_u32 s{sT0}, s{sT0}, {WS_DBG + 0x100000:#x}')
            a('s_mov_b64 exec, 1')
            for i in range(16):
                a(f'v_mov_b32 v{vT}, s{sST+i}\nbuffer_store_dword v{vT}, off, s[{SWS}:{SWS+3}], s{sT0} offset:{4*i}')
            a('s_waitcnt vmcnt(0)\ns_endpgm')
        self.oproj_pre()
        self.stamp(6)
        self.publish(R, 0x8000, F_AY)
        if 'nosvc' in OPT or 'stop' in OPT: self.end()
        else: self.oproj()
        a('L_check6:')
        self.wait(F_S[9], sleep=1)
        a('s_branch L_checked6')
        a('L_check1:')
        self.wait(F_S[0], sleep=1)
        a(f'v_cmp_ne_u32 vcc, 1, v{vT}\ns_cbranch_vccz L_checked1')
        self.wait(F_S[9], sleep=1)
        a(f's_mov_b32 s{sXC}, 0')
        vL4, vW = vA8, vA16
        self.sig(F_SL[0]); self.wait(F_SL[0])
        a(f'v_lshrrev_b32 v{vL4}, 2, v{vL16}\ns_mov_b32 s{sT2}, 0\ns_lshl_b32 s{sT3}, s{sWV}, 11\nv_add_u32 v{vW}, s{sT3}, v{vL4}')
        a('L_slow_pre:')
        a(f's_lshl_b32 s{sT0}, s{sT2}, 10\nv_add_u32 v{vT}, s{sT0}, v{vL16}\nds_read_b128 {q4(Q)}, v{vT} offset:{L_QF}\ns_waitcnt lgkmcnt(0)')
        a(f'v_mov_b32 v{S0+20}, 0xff800000')
        for i in range(16):
            a(f'v_mfma_f32_32x32x16_bf16 {t16(S0)}, {q4(K+4*i)}, {q4(Q)}, 0')
            for r in range(0, 16, 2): a(f'v_max3_f32 v{S0+20}, v{S0+r}, v{S0+r+1}, v{S0+20}')
        a(f'v_mov_b32 v{S0+21}, v{S0+20}\nv_permlane32_swap_b32 v{S0+20}, v{S0+21}\nv_max_f32 v{S0+20}, v{S0+20}, v{S0+21}')
        a(f'ds_write_b32 v{vW}, v{S0+20} offset:{L_ACCD}\nv_add_u32 v{vW}, 256, v{vW}')
        a(f's_add_u32 s{sT2}, s{sT2}, 1\ns_cmp_lt_u32 s{sT2}, 8\ns_cbranch_scc1 L_slow_pre')
        self.sig(F_SL[1]); self.wait(F_SL[1])
        a(f's_lshl_b32 s{sT0}, s{sWV}, 8\nv_add_u32 v{vW}, s{sT0}, v{vL4}')
        for t in range(2):
            for w in range(4): a(f'ds_read_b32 v{S0+4*t+w}, v{vW} offset:{L_ACCD + 2048*w + 1024*t}')
        a(f'v_and_b32 v{vW}, 0x7c, v{vL4}\ns_lshl_b32 s{sT0}, s{sWV}, 7\ns_add_u32 s{sT0}, s{sT0}, {L_MX}\nv_add_u32 v{vW}, s{sT0}, v{vW}')
        a('s_waitcnt lgkmcnt(0)')
        for t in range(2):
            b = S0 + 4 * t
            a(f'v_max3_f32 v{b}, v{b}, v{b+1}, v{b+2}\nv_max_f32 v{b}, v{b}, v{b+3}\nds_write_b32 v{vW}, v{b} offset:{512*t}')
        init_state(16)
        a(f'v_mov_b32 v{S0}, 0\nv_mov_b32 v{S0+1}, 17\nds_write_b64 v{vA8}, {pr(S0)} offset:{L_ACCF+2048}')
        a(f'ds_write_b128 v{vA16}, {q4(O)} offset:{L_ACCD+8192}\nds_write_b128 v{vA16}, {q4(O)} offset:{L_ACCD+8192+1024}')
        self.sig(F_SL[2]); self.wait(F_SL[2])
        a(f'ds_read_b128 {q4(Q)}, v{vQA} offset:{L_QF}')
        self.attn_loop(R, True)
        a('s_branch L_attn_epi')

    QD = [r for i in range(16) for r in (4 * i, 64 + 8 * i, 68 + 8 * i)]
    def WF(self, st): return self.QD[st]
    def OF(self, q, n): return self.QD[16 + 4 * ((q + 3) % 4) + 16 * (q // 4) + n]
    def wo_read(self, st, vWO): return f'ds_read_b64_tr_b16 {pr(self.WF(st))}, v{vWO} offset:{2048*st}\nds_read_b64_tr_b16 {pr(self.WF(st)+2)}, v{vWO} offset:{2048*st+1024}'
    def o_load(self, q):
        t = f's_xor_b32 s{sT0}, s{sOB}, {4096*(q%4) + 0x8000*(q//4):#x}'
        for n in range(4): t += f'\nbuffer_load_dwordx4 {q4(self.OF(q, n))}, v{vL16}, s[{SWS}:{SWS+3}], s{sT0} offen offset:{1024*n} sc1'
        return t

    def kvload(self, R, i):
        K, V = R['K'], R['V']
        t = ''
        if i % 2 == 0 and i > 0: t += f's_xor_b32 s{sT4}, s{sT4}, {((i // 2) ^ (i // 2 - 1)) << 12:#x}\n'
        o = (i % 2) * 2048
        t += f'buffer_load_dwordx4 {q4(K+4*i)}, v{vL16}, s[{SWS}:{SWS+3}], s{sT4} offen offset:{o} sc1\n'
        if self.masked(i):
            t += f's_mov_b64 exec, s[{sM0}:{sM0+1}]\nbuffer_load_dwordx4 {q4(V+8*i)}, v{vL16}, s[{SWS}:{SWS+3}], s{sT4} offen offset:{o+1024} sc1\n'
            t += f'buffer_load_dwordx4 {q4(V+8*i+4)}, v{vL16}, s[{SWS}:{SWS+3}], s{sT4} offen offset:{o+1024+256} sc1\ns_mov_b64 exec, -1'
        else:
            t += f'buffer_load_dwordx4 {q4(V+8*i)}, v{vL16}, s[{SWS}:{SWS+3}], s{sT4} offen offset:{o+1024} sc1'
        return t

    def publish(self, R, off, flag):
        a = self.a; O = R['O']
        a(f'v_rcp_f32 v{O+8}, v{O+8}\ns_add_u32 s{sT0}, s{sOW}, {off}')
        for r in range(0, 8, 2): a(f'v_pk_mul_f32 {pr(O+r)}, {pr(O+8)}, {pr(O+r)} op_sel:[0,0] op_sel_hi:[0,1]')
        for r in range(4): a(f'v_cvt_pk_bf16_f32 v{O+r}, v{O+2*r}, v{O+2*r+1}')
        self.xstore([f'buffer_store_dwordx4 {q4(O)}, v{vL16}, s[{SWS}:{SWS+3}], s{sT0} offen'])
        if off: self.sig(flag)

    def attn_fast(self, R):
        a = self.a
        K, V, S0, O, Q = R['K'], R['V'], R['S0'], R['O'], R['Q']
        vIDX, vA16, vA8, vQA, vL8 = R['vIDX'], R['vA16'], R['vA8'], R['vQA'], R['vL8']
        NUP = opt('nup', 7)
        sK = [[50, 51, 80], [sT1, sT2, sT3], [sT5, sPH, sTJ]]
        for k in range(1, 4):
            a(f's_sub_u32 s{sT0}, s{sSW}, {k}\ns_and_b32 s{sT0}, s{sT0}, 3\ns_lshl_b32 s{sK[k-1][0]}, s{sT0}, 9\ns_lshl_b32 s{sK[k-1][1]}, s{sT0}, 10\ns_lshl_b32 s{sK[k-1][2]}, s{sT0}, 11')
        def Sb(i): return S0 + 16 * (i % 2)
        def E(i, r): return f'v_exp_f32 v{Sb(i)+r}, v{Sb(i)+r}'
        CM = '-4.0' if opt('cm', 1) else '0'
        PP = opt('pp', 15)
        def QK(i): return f'v_mfma_f32_32x32x16_bf16 {t16(Sb(i))}, {q4(K+4*(i%16))}, {q4(Q)}, {CM}'
        def PV(i, h): return f'v_smfmac_f32_32x32x32_bf16 {t16(O)}, {q4(V+8*(i%16)+4*h)}, v[{Sb(i)+8*h}:{Sb(i)+8*h+7}], v{vIDX}'
        def rd(st): return [f'ds_read_b64 {pr(O+8)}, v{vA8} offset:{L_ACCF+2048*st}', f'ds_read_b128 {q4(O)}, v{vA16} offset:{L_ACCD+8192*st}', f'ds_read_b128 {q4(O+4)}, v{vA16} offset:{L_ACCD+8192*st+1024}']
        def wr(st): return [f'ds_write_b128 v{vA16}, {q4(O)} offset:{L_ACCD+8192*st}', f'ds_write_b128 v{vA16}, {q4(O+4)} offset:{L_ACCD+8192*st+1024}', f'ds_write_b64 v{vA8}, {pr(O+8)} offset:{L_ACCF+2048*st}']
        nl = lambda i: 3 if self.masked(i) else 2
        def plain(p, i):
            e = [E(i, r) for r in range(16)]
            w = []; sw = []; ld = []
            if p == 0:
                KR = opt('kr', 2)
                issued = sum(nl(t) for t in range(min(16, KR * i + NUP)))
                VW = opt('vw', 2)
                if i % VW == 0 or i < 2:
                    last = i if i < 2 else min(15, i + VW - 1)
                    needed = sum(nl(t) for t in range(last + 1)) + (1 if last < 15 else 0)
                    w = [f's_waitcnt vmcnt({issued - needed})']
                if not self.masked(i): sw = [f'v_permlane16_swap_b32 v{V+8*i+r}, v{V+8*i+4+r}' for r in range(4)]
                for t in range(KR * i + NUP, min(16, KR * (i + 1) + NUP)):
                    ld += [self.kvload(R, t)]
                    if t == 15: ld += [f'ds_write_b32 v{vS}, v{vONE} offset:{F_A1}']
            qk = [QK(i + 1)]
            if i == 15:
                if p < 7: w += ['s_waitcnt lgkmcnt(0)']
                else: qk = []
            if i == 14 and p < 7:
                if p % 2 == 1: ld += [f'v_add_u32 v{vQA}, s{sK[p//2][1]}, v{vL16}']
                ld += [f'ds_read_b128 {q4(Q)}, v{vQA} offset:{L_QF + 4096*((p+1)%2)}']
                if p in (1, 6): ld += [f'ds_read_b32 v{vT}, v{vF} offset:{F_S[0] if p == 1 else F_S[9]}']
                if p == 6: ld += [f'ds_read_b32 v{vEP}, v{vF} offset:{F_XC}']
            if i == 15 and p in (1, 6):
                sw = [f'v_cmp_ne_u32 vcc, 1, v{vT}'] + ([f'v_readfirstlane_b32 s{sXC}, v{vEP}'] if p == 6 else [])
                ld = [f's_cbranch_vccnz L_check{p}', f'L_checked{p}:']
            if p == 7 and opt('pre', 1) and 'nosvc' not in OPT and 'stop' not in OPT:
                P0 = opt('pre0', 6)
                if i == P0 - 1: ld += [f'ds_read_b32 v{vT}, v{vF} offset:{F_S[5]}']
                if i == P0: ld += [f's_waitcnt lgkmcnt(0)\nv_cmp_eq_u32 vcc, 0, v{vT}\ns_cmp_eq_u64 vcc, 0\ns_cselect_b32 s{sPRE}, 1, 0']
                if i == opt('rel', 15): ld += [f'ds_write_b32 v{vS}, v{vONE} offset:{F_AX}']
                grp = []
                k = i - P0 - 1
                if 0 <= k < 4: grp = [self.wo_read(st, vLN) for st in range(4 * k, 4 * k + 4)]; top = 4 * k + 3
                if 4 <= k < 8: grp = [self.o_load((k - 3) % 4)]; top = 16 + 4 * (k - 4) + 3
                if grp:
                    assert top // 3 < i, (top, i)
                    L = a.label('PF')
                    ld += [f's_cmp_eq_u32 s{sPRE}, 0\ns_cbranch_scc1 {L}'] + grp + [f'{L}:']
            seq = e[0:2] + ([] if (p == 0 and i == 0) else [PV(i - 1, 1)]) + e[2:5] + w + qk + sw + e[5:7] + ld + e[7:PP] + [PV(i, 0)] + e[PP:16]
            for x in seq: a(x)
        a(f's_setprio {opt("aprio", 1)}')
        a(f's_waitcnt vmcnt({sum(nl(t) for t in range(NUP)) - 1}) lgkmcnt(0)')
        a(QK(0))
        NW = opt('nw', 5)
        for p in range(8):
            if p == 0:
                plain(0, 0); plain(0, 1)
            else:
                e = [E(0, r) for r in range(16)]
                for x in e[0:2] + [PV(15, 1)] + e[2:5] + [QK(1)] + e[5:8]: a(x)
                so, si = (p - 1) % 2, p % 2
                if p < 7:
                    for x in [wr(so)[0], f'v_mov_b32 v{O+9}, {p+1}', wr(so)[1], wr(so)[2]]: a(x)
                else:
                    self.publish(R, 0, F_AX)
                if p % 2 == 0: a(f'v_add_u32 v{vA8}, s{sK[p//2-1][0]}, v{vL8}\nv_add_u32 v{vA16}, s{sK[p//2-1][2]}, v{vL16}')
                if p == 1:
                    for r in range(0, 8, 2): a(f'v_pk_mul_f32 {pr(O+r)}, {pr(O+10)}, {pr(O+10)}')
                    a(f'v_mov_b32 v{O+8}, 0')
                    for x in e[8:PP] + [PV(0, 0)] + e[PP:16]: a(x)
                    plain(p, 1)
                else:
                    for x in rd(si) + e[8:16]: a(x)
                    e = [E(1, r) for r in range(16)]
                    for x in e[0:NW]: a(x)
                    a(f's_waitcnt lgkmcnt(0)\nv_cmp_gt_u32 vcc, {p}, v{O+9}')
                    a(e[NW])
                    a(f's_cbranch_vccnz L_hw{p}')
                    a(f'L_hd{p}:')
                    n = NW + 1
                    for x in [PV(0, 0)] + e[n:n+3] + [PV(0, 1)] + e[n+3:n+6] + [QK(2)] + e[n+6:n+9] + [PV(1, 0)] + e[n+9:16]: a(x)
            for i in range(2, 16):
                plain(p, i)
            if p == 0: self.stamp(7)
            if 'phs' in OPT: a(f's_memtime s[98:99]\ns_memrealtime s[{16+4*p}:{17+4*p}]\ns_waitcnt lgkmcnt(0)\ns_mov_b32 s{17+4*p}, s98')
        a('s_nop 0')
        a(PV(15, 1))
        a(f's_branch L_attn_epi')
        for p in range(2, 8):
            a(f'L_hw{p}:')
            a(f's_mov_b32 s{sCNT}, {SPIN}')
            a(f'L_hl{p}:')
            a(f's_sleep 1')
            for x in rd(p % 2): a(x)
            a(f's_waitcnt lgkmcnt(0)\nv_cmp_gt_u32 vcc, {p}, v{O+9}\ns_cbranch_vccz L_hd{p}\ns_sub_u32 s{sCNT}, s{sCNT}, 1\ns_cbranch_scc0 L_hl{p}\ns_branch L_hd{p}')

    def attn_loop(self, R, slow):
        a = self.a
        K, V, S0, O, Q = R['K'], R['V'], R['S0'], R['O'], R['Q']
        vIDX, vA16, vA8, vQA, vL8, vM = R['vIDX'], R['vA16'], R['vA8'], R['vQA'], R['vL8'], R['vM']
        sf = '_s' if slow else '_f'
        PH0 = 16 if slow else 0
        NUP = opt('nup', 6)
        def Sb(i): return S0 + 16 * (i % 2)
        def E(i, r):
            s = Sb(i) + r
            return (f'v_sub_f32 v{s}, v{s}, v{vM}\n' if slow else '') + f'v_exp_f32 v{s}, v{s}'
        def QK(i): return f'v_mfma_f32_32x32x16_bf16 {t16(Sb(i))}, {q4(K+4*(i%16))}, {q4(Q)}, 0'
        def PV(i, h): return f'v_smfmac_f32_32x32x32_bf16 {t16(O)}, {q4(V+8*(i%16)+4*h)}, v[{Sb(i)+8*h}:{Sb(i)+8*h+7}], v{vIDX}'
        rd = [f'ds_read_b64 {pr(O+8)}, v{vA8} offset:{L_ACCF}', f'ds_read_b128 {q4(O)}, v{vA16} offset:{L_ACCD}', f'ds_read_b128 {q4(O+4)}, v{vA16} offset:{L_ACCD+1024}']
        wr = [f'ds_write_b128 v{vA16}, {q4(O)} offset:{L_ACCD}', f'ds_write_b128 v{vA16}, {q4(O+4)} offset:{L_ACCD+1024}', f'ds_write_b64 v{vA8}, {pr(O+8)} offset:{L_ACCF}']
        def getm():
            if slow:
                a(f'v_lshrrev_b32 v{vT}, 2, v{vL16}\nv_and_b32 v{vT}, 0x7c, v{vT}\ns_lshl_b32 s{sT0}, s{sTJ}, 7\ns_add_u32 s{sT0}, s{sT0}, {L_MX}\nv_add_u32 v{vT}, s{sT0}, v{vT}')
                a(f'ds_read_b32 v{vM}, v{vT}\ns_waitcnt lgkmcnt(0)')
        nl = lambda i: 3 if self.masked(i) else 2
        def plain(i, ph0=False):
            e = [E(i, r) for r in range(16)]
            w = []; sw = []; ld = []
            if ph0 and not slow:
                issued = sum(nl(t) for t in range(min(16, i + NUP)))
                needed = sum(nl(t) for t in range(i + 1)) + (1 if i < 15 else 0)
                w = [f's_waitcnt vmcnt({issued - needed})']
                if not self.masked(i): sw = [f'v_permlane16_swap_b32 v{V+8*i+r}, v{V+8*i+4+r}' for r in range(4)]
                if i + NUP < 16: ld = [self.kvload(R, i + NUP)]
                if i + NUP == 15: ld += [f'ds_write_b32 v{vS}, v{vONE} offset:{F_A1}']
            if i == 15: w += ['s_waitcnt lgkmcnt(0)']
            seq = e[0:2] + ([] if (ph0 and i == 0) else [PV(i - 1, 1)]) + e[2:5] + w + [QK(i + 1)] + sw
            if i == 14:
                seq += [f's_add_u32 s{sT1}, s{sPH}, 1\ns_lshr_b32 s{sT2}, s{sT1}, 1\ns_sub_u32 s{sT2}, s{sSW}, s{sT2}', e[5],
                        f's_and_b32 s{sT2}, s{sT2}, 3\ns_and_b32 s{sT1}, s{sT1}, 1\ns_lshl_b32 s{sT1}, s{sT1}, 2', e[6],
                        f's_add_u32 s{sT2}, s{sT2}, s{sT1}\ns_lshl_b32 s{sT0}, s{sT2}, 10', e[7], f'v_add_u32 v{vQA}, s{sT0}, v{vL16}', e[8],
                        f'ds_read_b128 {q4(Q)}, v{vQA} offset:{L_QF}'] + e[9:11]
            else:
                seq += e[5:11]
            seq += [PV(i, 0)] + e[11:13] + ld + e[13:16]
            for x in seq: a(x)
        a(f's_setprio {opt("aprio", 1)}')
        getm()
        a(f's_waitcnt vmcnt({sum(nl(t) for t in range(NUP)) - 1}) lgkmcnt(0)')
        a(QK(0))
        if slow:
            plain(0, True); plain(1)
            a(f's_branch L_mid{sf}')
        else:
            for i in range(16): plain(i, True)
            self.stamp(7)
        a('.p2align 6')
        a(f'L_loop{sf}:')
        a(f's_add_u32 s{sPH}, s{sPH}, 1\ns_mov_b32 s{sTJ}, s{sT2}')
        getm()
        e = [E(0, r) for r in range(16)]
        for x in e[0:2] + [PV(15, 1), e[2], f's_add_u32 s{sT1}, s{sPH}, 1', e[3], f's_lshl_b32 s{sT3}, s{sTJ}, 9', e[4], QK(1), f's_lshl_b32 s{sT4}, s{sTJ}, 11', e[5], e[6],
                           f's_cmp_eq_u32 s{sPH}, {PH0 + 7}', e[7], f's_cbranch_scc1 L_finx{sf}',
                           wr[0], f'v_mov_b32 v{O+9}, s{sT1}', e[8], wr[1], e[9], wr[2]]: a(x)
        a(f'L_finxd{sf}:')
        for x in [f'v_add_u32 v{vA8}, s{sT3}, v{vL8}', f'v_add_u32 v{vA16}, s{sT4}, v{vL16}', rd[0], e[10], rd[1], e[11], rd[2]] + e[12:16]: a(x)
        e0 = e
        e = [E(1, r) for r in range(16)]
        NW = opt('nw', 6)
        for x in e[0:NW]: a(x)
        a(f's_waitcnt lgkmcnt(0)\nv_cmp_gt_u32 vcc, s{sPH}, v{O+9}\ns_cbranch_vccnz L_hw{sf}')
        a(f'L_hd{sf}:')
        for x in [PV(0, 0)] + e[NW:NW+3] + [PV(0, 1)] + e[NW+3:NW+6] + [QK(2)] + e[NW+6:NW+9] + [PV(1, 0)] + e[NW+9:16]: a(x)
        a(f'L_mid{sf}:')
        for i in range(2, 16):
            plain(i)
        a(f's_cmp_lt_u32 s{sPH}, {PH0 + 7}\ns_cbranch_scc1 L_loop{sf}')
        a(PV(15, 1))
        a(f's_nop 10\ns_branch L_end{sf}')
        a(f'L_finx{sf}:')
        a(e0[8]); a(e0[9])
        self.publish(R, 0, F_AX)
        a(f's_branch L_finxd{sf}')
        a(f'L_hw{sf}:')
        a(f's_mov_b32 s{sCNT}, {SPIN}')
        a(f'L_hl{sf}:')
        a(f's_sleep 1')
        for x in rd: a(x)
        a(f's_waitcnt lgkmcnt(0)\nv_cmp_gt_u32 vcc, s{sPH}, v{O+9}\ns_cbranch_vccz L_hd{sf}\ns_sub_u32 s{sCNT}, s{sCNT}, 1\ns_cbranch_scc0 L_hl{sf}\ns_branch L_hd{sf}')
        a(f'L_end{sf}:')

    def oproj_pre(self):
        a = self.a
        a('s_setprio 3')
        self.sig(F_AX)
        a(f'v_lshrrev_b32 v241, 9, v{vL16}\nv_bfe_u32 v243, v{vL16}, 2, 7\nv_lshl_add_u32 v243, v241, 14, v243\nv_mov_b32 v240, 0\nv_mov_b32 v241, 0')
        a(f's_and_b32 s{sT0}, s{sOW}, 0xc00\ns_lshl_b32 s{sT0}, s{sT0}, 1\nv_add_u32 v242, s{sT0}, v{vL16}\ns_xor_b32 s{sT0}, s{sT0}, 0x1000\nv_add_u32 v245, s{sT0}, v{vL16}\nv_xor_b32 v246, 8, v{vS}')

    def oproj(self):
        a = self.a
        vZ, vOA, vXW, vXR, vP = 240, 243, 242, 245, 246
        OA = [192, 208]
        sPEND, sKH, sOUT = sT3, sT1, sT5
        order = (1, 2, 3, 0)
        for h in range(2): a(f'v_mfma_f32_32x32x8_bf16 {t16(OA[h])}, {pr(vZ)}, {pr(vZ)}, 0')
        loads = lambda q: a(self.o_load(q))
        def proc(q, lab):
            R_ = [self.OF(q, n) + r for n in range(4) for r in range(4)]
            a(f'v_max3_u32 v{vT}, v{R_[0]}, v{R_[1]}, v{R_[2]}')
            for r in range(3, 15, 2): a(f'v_max3_u32 v{vT}, v{R_[r]}, v{R_[r+1]}, v{vT}')
            a(f'v_max_u32 v{vT}, v{R_[15]}, v{vT}\nv_cmp_eq_u32 vcc, -1, v{vT}\ns_cbranch_vccnz {lab}')
            for n in range(4):
                a(f'v_mfma_f32_32x32x16_bf16 {t16(OA[q//4])}, {q4(self.OF(q, n))}, {q4(self.WF(4*(q%4)+n))}, {t16(OA[q//4])}')
            a(f's_bitset0_b32 s{sPEND}, {q}')
            a(f'{lab}:')
        a(f's_mov_b32 s{sPEND}, 0xff\ns_cmp_eq_u32 s{sPRE}, 0\ns_cbranch_scc1 L_nopre')
        a('s_waitcnt vmcnt(1) lgkmcnt(0)')
        proc(1, 'L_o0_1'); proc(2, 'L_o0_2')
        self.wait(F_AY, sleep=0)
        a('s_branch L_prej')
        a('L_nopre:')
        self.wait(F_S[5], sleep=1)
        self.wait(F_AY, sleep=0)
        for q in order: loads(q)
        for st in range(16): a(self.wo_read(st, vLN))
        a('s_waitcnt vmcnt(0) lgkmcnt(0)')
        proc(1, 'L_o0b_1'); proc(2, 'L_o0b_2')
        a('L_prej:')
        self.stamp(11)
        loads(5); loads(6)
        proc(3, 'L_o0_3')
        loads(7)
        proc(0, 'L_o0_0')
        loads(4)
        self.stamp(12)
        self.srd(SOUT, P(14), 2048 * 4096)
        a(f's_lshr_b32 s{sKH}, s{sSW}, 1\ns_mov_b32 s{sCNT}, 50000')
        a(f's_lshl_b32 s{sOUT}, s{sRB}, 18\ns_lshl_b32 s{sT0}, s{sCG}, 1\ns_and_b32 s{sT2}, s{sWV}, 1\ns_add_u32 s{sT0}, s{sT0}, s{sT2}\ns_lshl_b32 s{sT0}, s{sT0}, 7\ns_add_u32 s{sOUT}, s{sOUT}, s{sT0}\ns_lshl_b32 s{sT0}, s{sKH}, 17\ns_add_u32 s{sOUT}, s{sOUT}, s{sT0}')
        for k, q in enumerate(order):
            a(f's_waitcnt vmcnt({12 - 4*k})')
            proc(4 + q, f'L_o1_{q}')
        a('L_oretry:')
        a(f's_cmp_eq_u32 s{sPEND}, 0\ns_cbranch_scc1 L_odone\ns_sub_u32 s{sCNT}, s{sCNT}, 1\ns_cbranch_scc1 L_odone')
        for q in range(8):
            a(f's_bitcmp0_b32 s{sPEND}, {q}\ns_cbranch_scc1 L_ol_{q}')
            loads(q)
            a(f'L_ol_{q}:')
        a('s_waitcnt vmcnt(0)')
        for q in range(8):
            a(f's_bitcmp0_b32 s{sPEND}, {q}\ns_cbranch_scc1 L_o2_{q}')
            proc(q, f'L_o2_{q}')
        a('s_branch L_oretry')
        a('L_odone:')
        if self.stamps: a(f's_mov_b32 s{sST+14}, s{sCNT}')
        self.stamp(1)
        fl = {0: '', 1: ' sc1', 2: ' nt', 3: ' sc0 sc1', 4: ' sc1 nt', 5: ' sc0 nt', 6: ' sc0 sc1 nt'}[opt('ofl', 2)]
        a(f's_nop 7\ns_cmp_eq_u32 s{sKH}, 0\ns_cbranch_scc0 L_ohi')
        for kh in range(2):
            keep, send = OA[kh], OA[1 - kh]
            for q in range(4): a(f'ds_write_b128 v{vXW}, {q4(send+4*q)} offset:{L_ACCD + 8192*(q//2) + 1024*(q%2)}')
            self.sig(F_OX)
            self.wait(F_OX, sleep=0, va=vP)
            for q in range(4): a(f'ds_read_b128 {q4(4*q)}, v{vXR} offset:{L_ACCD + 8192*(q//2) + 1024*(q%2)}')
            for r in range(16):
                if r % 4 == 0: a(f's_waitcnt lgkmcnt({3 - r//4})')
                a(f'v_add_f32 v{r}, v{r}, v{keep+r}\ns_add_u32 s{sT0}, s{sOUT}, {((r % 4) + 8 * (r // 4)) * 4096}')
                a(f'buffer_store_dword v{r}, v{vOA}, s[{SOUT}:{SOUT+3}], s{sT0} offen{fl}')
            self.end()
            if kh == 0: a('L_ohi:')

    def kvproj(self):
        a = self.a
        vXA, vWA, vU, vO, vZ, D = 176, 177, 178, 179, 180, 184
        a(f's_lshr_b32 s{sT5}, s{sCG}, 1')
        a(f'v_and_b32 v{vT}, 15, v{vLN}\ns_lshl_b32 s{sT0}, s{sT5}, 4\nv_add_u32 v{vO}, s{sT0}, v{vT}\nv_mul_u32_u24 v{vXA}, 1040, v{vO}')
        a(f'v_lshrrev_b32 v{vU}, 4, v{vLN}\nv_lshl_add_u32 v{vXA}, v{vU}, 4, v{vXA}\nv_add_u32 v{vXA}, {L_A1}, v{vXA}')
        a(f'v_lshlrev_b32 v{vWA}, 3, v{vT}\nv_lshl_add_u32 v{vWA}, v{vU}, 8, v{vWA}\nv_and_b32 v181, 1, v{vU}\nv_lshl_add_u32 v{vWA}, v181, 7, v{vWA}\nv_xor_b32 v181, 128, v{vWA}\nv_add_u32 v{vWA}, {L_WKV}, v{vWA}\nv_add_u32 v181, {L_WKV}, v181')
        a(f's_and_b32 s{sT1}, s{sCG}, 1\ns_xor_b32 s{sT2}, s{sT1}, 1')
        a(f'v_lshrrev_b32 v{vO}, s{sT1}, v{vU}\nv_and_b32 v{vO}, 1, v{vO}\nv_lshlrev_b32 v{vO}, 9, v{vO}\nv_lshl_add_u32 v{vO}, v{vT}, 4, v{vO}')
        a(f'v_lshrrev_b32 v{vT}, s{sT2}, v{vU}\nv_and_b32 v{vT}, 1, v{vT}\nv_lshl_add_u32 v{vO}, v{vT}, 3, v{vO}')
        a(f's_lshl_b32 s{sT0}, s{sRB}, 1\ns_lshr_b32 s{sT2}, s{sT5}, 1\ns_add_u32 s{sT0}, s{sT0}, s{sT2}\ns_lshl_b32 s{sT0}, s{sT0}, 1\ns_add_u32 s{sT0}, s{sT0}, s{sT1}\ns_lshl_b32 s{sT0}, s{sT0}, 10')
        a(f's_and_b32 s{sT2}, s{sT5}, 1\ns_lshl_b32 s{sT2}, s{sT2}, 8\ns_add_u32 s{sT0}, s{sT0}, s{sT2}\ns_add_u32 s{sT3}, s{sT0}, {WS_KVIMG:#x}')
        a(f's_lshl_b32 s{sT4}, s{sRB}, 3\ns_add_u32 s{sT4}, s{sT4}, s{sCG}\ns_lshl_b32 s{sT4}, s{sT4}, {opt("fs", 6)}\ns_add_u32 s{sT4}, s{sT4}, {WS_KVFLAG:#x}')
        a(f'v_mov_b32 v{vZ}, 0')
        a(f's_lshl_b32 s{sT0}, s{sSW}, 8\nv_add_u32 v{vXA}, s{sT0}, v{vXA}\ns_lshl_b32 s{sT0}, s{sSW}, 12\nv_add_u32 v{vWA}, s{sT0}, v{vWA}\nv_add_u32 v181, s{sT0}, v181')
        a(f's_lshl_b32 s{sT0}, s{sSW}, 10\nv_add_u32 v{vU}, s{sT0}, v{vL16}')
        self.wait(F_L1, sleep=0)
        self.stamp(12)
        for s in range(4):
            b = 128 + 8 * s
            a(f'ds_read_b128 {q4(b)}, v{vXA} offset:{64*s}')
            a(f'ds_read_b64_tr_b16 {pr(b+4)}, v{vWA} offset:{1024*s}')
            a(f'ds_read_b64_tr_b16 {pr(b+6)}, v181 offset:{1024*s}')
        a(f's_bitcmp1_b32 s{sCG}, 0\ns_cbranch_scc1 L_kv_v')
        for kind in 'kv':
            for s in range(4):
                a(f's_waitcnt lgkmcnt({3 * (3 - s)})')
                b = 128 + 8 * s
                A, B = (q4(b + 4), q4(b)) if kind == 'k' else (q4(b), q4(b + 4))
                a(f'v_mfma_f32_16x16x32_bf16 {q4(D)}, {A}, {B}, {"0" if s == 0 else q4(D)}')
            if kind == 'k': a('s_branch L_kv_j\nL_kv_v:')
        a('L_kv_j:')
        a(f's_cmp_eq_u32 s{sSW}, 0\ns_cbranch_scc1 L_kv_0\ns_nop 5')
        a(f'ds_write_b128 v{vU}, {q4(D)} offset:{L_QF}')
        self.sig(F_S[4])
        a('s_branch L_nokv')
        a('L_kv_0:')
        self.sig(F_S[4])
        self.wait(F_S[4], sleep=0)
        for q in range(3): a(f'ds_read_b128 {q4(128+4*q)}, v{vL16} offset:{L_QF + 1024*(q+1)}')
        for q in range(3):
            a(f's_waitcnt lgkmcnt({2-q})\nv_pk_add_f32 {pr(D)}, {pr(D)}, {pr(128+4*q)}\nv_pk_add_f32 {pr(D+2)}, {pr(D+2)}, {pr(130+4*q)}')
        a(f'v_cvt_pk_bf16_f32 v188, v{D}, v{D+1}\nv_cvt_pk_bf16_f32 v189, v{D+2}, v{D+3}')
        a(f'buffer_store_dwordx2 v[188:189], v{vO}, s[{SWS}:{SWS+3}], s{sT3} offen sc1')
        a(f's_bitcmp1_b32 s{sCG}, 0\ns_cbranch_scc1 L_kv_v2')
        a(f'v_mul_f32 v190, v{D}, v{D}\nv_fmac_f32 v190, v{D+1}, v{D+1}\nv_fmac_f32 v190, v{D+2}, v{D+2}\nv_fmac_f32 v190, v{D+3}, v{D+3}')
        a('v_mov_b32 v191, v190\nv_permlane32_swap_b32 v190, v191\nv_add_f32 v190, v190, v191')
        a('v_mov_b32 v191, v190\nv_permlane16_swap_b32 v190, v191\nv_add_f32 v190, v190, v191')
        a('s_mov_b64 exec, 0xffff\ns_branch L_kv_fin')
        a('L_kv_v2:')
        a(f'v_max3_f32 v190, |v{D}|, |v{D+1}|, |v{D+2}|\nv_max_f32 v190, |v{D+3}|, v190')
        a(f's_mov_b32 s{sT1}, {f2u(2.0**50):#x}\nv_cmp_lt_f32 vcc, s{sT1}, v190\nv_mov_b32 v190, 0x7f800000\ns_mov_b64 exec, vcc')
        a('L_kv_fin:')
        a(f'ds_max_u32 v{vZ}, v190 offset:{F_KST}\ns_mov_b64 exec, -1\nds_read_b32 v183, v{vZ} offset:{F_KST}')
        a('s_waitcnt vmcnt(1)')
        self.get_tag()
        a(f's_getreg_b32 s{sT0}, hwreg(HW_REG_XCC_ID)\nv_mov_b32 v182, s{sTAG}\nv_mov_b32 v184, s{sT0}\nds_write_b32 v{vF}, v182 offset:{F_TAG}')
        self.stamp(13)

    def service(self):
        a = self.a
        self.cyc = False
        L1, L8, L16, L128, FF, WW, CC = 192, 194, 196, 198, 200, 202, 204
        DG = 206
        vXD, vXR, vXR2, vBD, vHA, vHB, vSX, vTW, vTR, vEA, vXS, vOA, vWI, vP8, vCK, vCS, vCK2, vCS2, vHF, vYW, vE0, vPF, vTG, vYR = range(214, 238)
        PRM = 238
        vC31, vHI, vU, vWA, vXA, vQ = 242, 243, 244, 245, 246, 247
        a('L_service:')
        a(f'v_mov_b32 v0, 0\nv_mov_b32 v1, 0\nv_mov_b32 v2, 0\nv_mov_b32 v3, 0')
        a(f's_lshl_b32 s{sT0}, s{sSW}, 10\nv_add_u32 v{vT}, s{sT0}, v{vL16}\nds_write_b128 v{vT}, v[0:3] offset:{L_ACCF}')
        a(f'v_lshlrev_b32 v{vT}, 3, v{vLN}\nds_write_b64 v{vT}, v[0:1]')
        a(f'v_and_b32 v{vC31}, 31, v{vLN}\nv_lshlrev_b32 v{vU}, 1, v{vC31}\nv_lshrrev_b32 v{vHI}, 5, v{vLN}')
        a('s_waitcnt lgkmcnt(0)')
        self.stamp(0)
        a('s_setprio 3')
        self.srd(SWS, P(16), WS_SIZE)
        a(f's_cmp_lg_u32 s{sSW}, 0\ns_cbranch_scc1 L_noepl')
        a(f'buffer_load_dword v{vEP}, off, s[{SWS}:{SWS+3}], 0 sc1')
        a('L_noepl:')
        a(f's_lshl_b32 s{sT0}, s{sPB}, 6')
        for k, p in enumerate((6, 7, 12)):
            self.srd(SA, P(p), 1024)
            a(f'buffer_load_ushort v{PRM+k}, v{vU}, s[{SA}:{SA+3}], s{sT0} offen')
        self.srd(SA, P(13), 1024)
        a(f's_lshl_b32 s{sT0}, s{sCG}, 7\ns_and_b32 s{sT1}, s{sWV}, 1\ns_lshl_b32 s{sT1}, s{sT1}, 6\ns_add_u32 s{sT0}, s{sT0}, s{sT1}')
        a(f'buffer_load_ushort v{PRM+3}, v{vU}, s[{SA}:{SA+3}], s{sT0} offen')
        a('s_barrier')
        self.common_regs()
        self.tr_parts(vTR, vU, vWA)
        a(f'v_lshl_add_u32 v{vTR}, v{vU}, 6, v{vTR}\nv_lshl_add_u32 v{vTR}, v{vHI}, 9, v{vTR}')
        a(f'v_lshl_add_u32 v{vWA}, v{vHI}, 10, v{vWA}\nv_add_u32 v{vWA}, {L_A2}, v{vWA}')
        a(f'v_mul_u32_u24 v{vCK}, 1040, v{vC31}\nv_lshl_add_u32 v{vCK}, v{vHI}, 4, v{vCK}\nv_add_u32 v{vCK}, {L_A1}, v{vCK}')
        a(f's_lshr_b32 s{sT0}, s{sSW}, 1\ns_mul_i32 s{sT0}, s{sT0}, {32*1040}\nv_add_u32 v{vXA}, s{sT0}, v{vCK}')
        a(f's_lshl_b32 s{sT0}, s{sSW}, 11\nv_add_u32 v{vQ}, s{sT0}, v{vL16}')
        sXB, sXL, sTP, sCT = 73, 74, 75, 80
        a(f's_lshl_b32 s{sXB}, s{sTB}, 2\ns_add_u32 s{sXB}, s{sXB}, s{sSW}\ns_lshl_b32 s{sXB}, s{sXB}, 15')
        a(f's_mul_i32 s{sXL}, s{sSW}, {XW}\ns_add_u32 s{sXL}, s{sXL}, {L_A2}')
        a(f's_lshl_b32 s{sTP}, s{sRB}, 1\ns_lshr_b32 s{sT0}, s{sSW}, 1\ns_add_u32 s{sTP}, s{sTP}, s{sT0}')
        a(f's_lshl_b32 s{sCT}, s{sCG}, 1\ns_and_b32 s{sT0}, s{sSW}, 1\ns_add_u32 s{sCT}, s{sCT}, s{sT0}')
        a(f'v_lshlrev_b32 v{vT}, 3, v{vHI}\nv_xor_b32 v{vT}, v{vC31}, v{vT}\nv_lshlrev_b32 v{vT}, 4, v{vT}\nv_lshl_add_u32 v{vXD}, v{vHI}, 13, v{vT}\nv_lshl_add_u32 v{vBD}, v{vHI}, 10, v{vT}')
        def tmap(i):
            r = 4 * (i >> 3) + (i & 3)
            return 16 * ((i >> 2) & 1) + (r >> 1) + 8 * (r & 1)
        def xdma(half, ms=range(16)):
            for m in ms:
                a(f's_xor_b32 s{sT0}, s{sXM}, {m}\ns_mul_i32 s{sT0}, s{sT0}, 1040\ns_add_u32 m0, s{sT0}, s{sXL}\ns_xor_b32 s{sT0}, s{sXG}, {tmap(2*m)*1024 + 512*half}')
                a(f'buffer_load_dwordx4 v{vXD}, s[{SA}:{SA+3}], s{sT0} offen lds')
        sXM, sXG, sHB = 50, 51, 81
        a(f's_and_b32 s{sXM}, s{sPB}, 14\ns_and_b32 s{sT0}, s{sPB}, 2\ns_lshl_b32 s{sT0}, s{sT0}, 3\ns_lshr_b32 s{sT1}, s{sPB}, 2\ns_lshl_b32 s{sT1}, s{sT1}, 1\ns_add_u32 s{sT0}, s{sT0}, s{sT1}\ns_lshl_b32 s{sT0}, s{sT0}, 10')
        a(f's_xor_b32 s{sHB}, s{sPB}, s{sTB}\ns_and_b32 s{sHB}, s{sHB}, 1\ns_lshl_b32 s{sHB}, s{sHB}, 9\ns_add_u32 s{sT0}, s{sT0}, s{sHB}\ns_add_u32 s{sXG}, s{sXB}, s{sT0}')
        a(f'v_lshrrev_b32 v{vU}, 1, v{vC31}\nv_mul_u32_u24 v{vU}, 1040, v{vU}\nv_lshl_add_u32 v{vU}, v{vHI}, 4, v{vU}\nv_and_b32 v{vT}, 1, v{vC31}')
        a(f'v_mul_u32_u24 v{vHA}, 640, v{vT}\nv_mul_u32_u24 v{vHB}, 384, v{vT}\nv_add_u32 v{vHA}, v{vHA}, v{vU}\nv_add_u32 v{vHB}, v{vHB}, v{vU}')
        a(f'v_add_u32 v{vXR}, s{sXL}, v{vHA}\nv_add_u32 v{vXR2}, s{sXL}, v{vHB}\nv_add_u32 v{vHA}, {L_A1}, v{vHA}\nv_add_u32 v{vHB}, {L_A1}, v{vHB}')
        a(f'v_lshlrev_b32 v{vSX}, 3, v{vLN}\nv_add_u32 v{vSX}, s{sXL}, v{vSX}')
        a(f'v_lshlrev_b32 v{vP8}, 3, v{vC31}\nv_add_u32 v{vP8}, {L_A2}, v{vP8}')
        a(f'v_lshlrev_b32 v{vTW}, 6, v{vC31}\nv_lshl_add_u32 v{vTW}, v{vHI}, 5, v{vTW}\nv_add_u32 v{vTW}, s{sXL}, v{vTW}\nv_add_u32 v{vTR}, s{sXL}, v{vTR}')
        a(f'v_lshlrev_b32 v{vEA}, 4, v{vC31}\nv_xor_b32 v{vT}, 1, v{vHI}\nv_lshl_add_u32 v{vEA}, v{vT}, 12, v{vEA}')
        a(f'v_lshlrev_b32 v{vXS}, 10, v{vC31}\nv_lshl_add_u32 v{vXS}, v{vHI}, 4, v{vXS}')
        a(f'v_lshlrev_b32 v{vOA}, 2, v{vC31}\nv_lshl_add_u32 v{vOA}, v{vHI}, 14, v{vOA}')
        self.wimg_lane_addr(vWI, vT)
        a(f's_and_b32 s{sT0}, s{sSW}, 1\ns_mul_i32 s{sT1}, s{sT0}, {512 - 32*1040}\ns_add_u32 s{sT1}, s{sT1}, {32*1040}\nv_add_u32 v{vCS}, s{sT1}, v{vCK}')
        a(f's_mul_i32 s{sT1}, s{sT0}, {32*1040 + 512}\nv_add_u32 v{vCK}, s{sT1}, v{vCK}\nv_add_u32 v{vCK2}, {L_A2 - L_A1}, v{vCK}\nv_add_u32 v{vCS2}, {L_A2 - L_A1}, v{vCS}')
        a(f'v_and_b32 v{vHF}, 15, v{vLN}\nv_lshlrev_b32 v{vHF}, 7, v{vHF}\nv_lshlrev_b32 v{vPF}, 6, v{vLN}')
        a(f'v_add_u32 v{vYW}, s{sXL}, v{vL16}\ns_xor_b32 s{sT0}, s{sSW}, 1\ns_mul_i32 s{sT0}, s{sT0}, {XW}\ns_add_u32 s{sT0}, s{sT0}, {L_A2}\nv_add_u32 v{vYR}, s{sT0}, v{vL16}')
        self.kvproj()
        a('L_nokv:')
        a(f's_cmp_eq_u32 s{sSW}, 0\ns_cbranch_scc1 L_pw1\ns_waitcnt vmcnt(0)')
        a('L_pw1:')
        a(f'v_lshlrev_b32 v0, 16, v{PRM}\nv_lshlrev_b32 v1, 16, v{PRM+1}\nv_lshlrev_b32 v2, 16, v{PRM+2}')
        LOG2E = f2u(math.log2(math.e))
        a(f'v_mul_f32 v2, {LOG2E:#x}, v2\nv_exp_f32 v2, v2\nv_cvt_pk_bf16_f32 v2, v2, v2\nv_lshlrev_b32 v2, 16, v2')
        a(f'v_mul_f32 v4, v2, v0\nv_mul_f32 v5, v2, v1\nv_mul_f32 v4, {LOG2E:#x}, v4\nv_mul_f32 v5, {f2u(-1/(2*math.pi)):#x}, v5')
        def power(d, n):
            a(f'v_mul_f32 v6, {n}, v4\nv_mul_f32 v7, {n}, v5\nv_exp_f32 v6, v6\nv_fract_f32 v7, v7\nv_cos_f32 v8, v7\nv_sin_f32 v9, v7\nv_mul_f32 v{d}, v6, v8\nv_mul_f32 v{d+1}, v6, v9')
        power(L1, '1.0')
        power(L8, f'{f2u(8.0):#x}')
        power(L16, f'{f2u(16.0):#x}')
        power(L128, f'{f2u(128.0):#x}')
        a(f'v_cvt_f32_u32 v11, v{vHI}\nv_mul_f32 v11, {f2u(1024.0):#x}, v11')
        power(FF, 'v11')
        a(f's_lshl_b32 s{sT0}, s{sSW}, 1\nv_add_u32 v11, s{sT0}, v{vHI}\nv_cvt_f32_u32 v11, v11\nv_mul_f32 v11, {f2u(16.0):#x}, v11')
        power(WW, 'v11')
        a(f'v_add_f32 v6, -1.0, v{L1}\nv_mul_f32 v7, v0, v0\nv_fmac_f32 v7, v1, v1\nv_rcp_f32 v7, v7\nv_add_f32 v7, v7, v7')
        a(f'v_mul_f32 v8, v6, v0\nv_fma_f32 v8, -v{L1+1}, v1, v8\nv_mul_f32 v9, v6, v1\nv_fma_f32 v9, -v{L1+1}, v0, -v9\nv_mul_f32 v{CC}, v8, v7\nv_mul_f32 v{CC+1}, v9, v7')
        a(f'v_and_b32 v6, 1, v{vLN}\nv_lshlrev_b32 v6, 4, v6\nv_lshlrev_b32 v3, v6, v{PRM+3}')
        a(f'v_lshrrev_b32 v6, 1, v{vC31}\nv_lshlrev_b32 v7, 2, v{vHI}\nv_sub_u32 v6, v6, v7')
        for q in range(8):
            a(f'v_cmp_eq_u32 vcc, {8*(q//4) + q%4}, v6\nv_cndmask_b32 v{DG+q}, 0, v3, vcc')
        LC = PRM
        a(f'v_mov_b32 v{LC}, 0\nv_mov_b32 v{LC+1}, 0')
        WT, D = 128, 160
        def kvflag():
            a(f's_cmp_lg_u32 s{sSW}, 0\ns_cbranch_scc1 L_nokvf')
            a('s_waitcnt vmcnt(0)')
            a(f's_mov_b64 exec, {(1 << (1 << (opt("fs", 6) - 4))) - 1:#x}\nbuffer_store_dwordx4 v[182:185], v{vL16}, s[{SWS}:{SWS+3}], s{sT4} offen sc1\ns_mov_b64 exec, -1')
            self.sig(F_KVD, va=vF)
            self.stamp(14)
            a('L_nokvf:')
        FP = opt('fp', 16)
        if FP < 0:
            a('s_waitcnt lgkmcnt(0)'); kvflag()
        self.wait(F_L2, sleep=1)
        self.stamp(1)
        vXQ = [vU, 186, 187, 191]
        a(f's_and_b32 s{sT1}, s{sRB}, 3')
        for c in range(4): a(f's_xor_b32 s{sT0}, s{sT1}, {c}\ns_lshl_b32 s{sT0}, s{sT0}, 8\nv_add_u32 v{vXQ[c]}, s{sT0}, v{vXA}')
        def xr(st): a(f'ds_read_b128 {q4(4*st)}, v{vXQ[st//8]} offset:{32*(st%8)}')
        NPR = opt('npr', 16)
        if FP == 0: kvflag()
        for st in range(32 - NPR, 32): xr(st)
        if FP == 16: kvflag()
        lq = []
        def wr(st):
            b = WT + 4 * (st % 8)
            if st < 32 - NPR: xr(st); lq.append(st)
            a(f'ds_read_b64_tr_b16 {pr(b)}, v{vWA} offset:{2048*st}\nds_read_b64_tr_b16 {pr(b+2)}, v{vWA} offset:{2048*st+512}')
            lq.extend([st, st])
        for s0, s1, fl in ((0, 16, F_L4), (16, 32, F_L6)):
            self.wait(fl, sleep=0)
            if s0 == 0:
                self.stamp(2)
            dp = 4 if s0 < 32 - NPR else 6
            for st in range(s0, s0 + dp): wr(st)
            for st in range(s0, s1):
                lq[:] = [x for x in lq if x > st]
                a(f's_waitcnt lgkmcnt({len(lq)})')
                a(f'v_mfma_f32_32x32x16_bf16 {t16(D)}, {q4(WT + 4*(st%8))}, {q4(4*st)}, {"0" if st == 0 else t16(D)}')
                if st + dp < s1: wr(st + dp)
            if s0 == 0:
                if FP == 32: kvflag()
                self.wait(F_KVD, sleep=0)
                self.sig(F_QA)
                a(f'ds_read_b32 v{vTG}, v{vF} offset:{F_TAG}')
        QS = f2u(0.25 * math.log2(math.e))
        a(f'v_mov_b32 v24, {QS:#x}')
        for r in range(8):
            a(f'v_pk_mul_f32 {pr(D+2*r)}, v[24:25], {pr(D+2*r)} op_sel:[0,0] op_sel_hi:[0,1]')
            a(f'v_cvt_pk_bf16_f32 v{16+r}, v{D+2*r}, v{D+2*r+1}')
            if r == 3: a(f'ds_write_b128 v{vQ}, v[16:19] offset:{L_QF}')
        a(f'ds_write_b128 v{vQ}, v[20:23] offset:{L_QF+1024}')
        self.sig(F_QP)
        self.stamp(3)
        a(f'v_mul_f32 v8, v{D}, v{D}\nv_mul_f32 v9, v{D+8}, v{D+8}')
        for r in range(1, 8): a(f'v_fmac_f32 v8, v{D+r}, v{D+r}\nv_fmac_f32 v9, v{D+8+r}, v{D+8+r}')
        a('v_permlane32_swap_b32 v8, v9\nv_add_f32 v8, v8, v9')
        a(f'v_mov_b32 v{vQ}, v8')
        if 'nosvc' in OPT:
            self.sig(F_S[0]); self.sig(F_S[9]); self.end(); return
        SN = 180
        a(f'v_readfirstlane_b32 s{sTAG}, v{vTG}')
        a(f'v_mov_b32 v{SN}, -1\nv_mov_b32 v{SN+1}, -1\nv_mov_b32 v{SN+2}, -1\nv_mov_b32 v{SN+3}, -1\nv_mov_b32 v{SN+4}, 0\nv_mov_b32 v{SN+5}, 0\nv_mov_b32 v{SN+6}, v{vTG}\nv_mov_b32 v{SN+7}, 0')
        self.srd(SA, P(5), 2048 * 1024)
        self.srd(SB, P(8), 512 * 1024)
        self.srd(SC, P(9), 512 * 1024)
        self.stamp(11)
        def bdma(half, only=None):
            if half == 0: a(f's_mul_i32 s{sT1}, s{sSW}, {4*1040}\ns_lshl_b32 s{sT2}, s{sPB}, 15\ns_lshl_b32 s{sT3}, s{sSW}, 13\ns_add_u32 s{sT2}, s{sT2}, s{sT3}\ns_add_u32 s{sT2}, s{sT2}, s{sHB}')
            for pl, srd in ((0, SB), (1, SC)):
                for m in range(4):
                    if only is not None and only != 4 * pl + m: continue
                    a(f's_add_u32 m0, s{sT1}, {L_A1 + ((2*half + pl)*16 + m)*1040}\ns_xor_b32 s{sT0}, s{sT2}, {2048*m + 512*half}')
                    a(f'buffer_load_dwordx4 v{vBD}, s[{srd}:{srd+3}], s{sT0} offen lds')
        def xread(half):
            for s in range(16): a(f'ds_read_b128 {q4(64*half + 4*s)}, v{vXR2 if s & 4 else vXR} offset:{32*s}')
        def rowdma(srd, base, sg, n):
            for m in range(n):
                if m % 4 == 0: a(f's_add_u32 m0, s{sT1}, {base + m*1040}\ns_add_u32 s{sT0}, s{sg}, {1024*m}')
                else: a('s_add_u32 m0, m0, 16')
                a(f'buffer_load_dwordx4 v{vL16}, s[{srd}:{srd+3}], s{sT0} offen offset:{1024*(m%4)} lds')
        self.wait(F_A1, sleep=opt('a1s', 4))
        self.stamp(10)
        a(f'ds_read_b64 {pr(SN+8)}, v{SN+4} offset:{F_KMAX}')
        xdma(0, range(2)); a(f's_mov_b32 s{sT0}, {f2u(3400.0):#x}\ns_waitcnt lgkmcnt(0)')
        a(f'v_mul_f32 v{vT}, v{SN+8}, v{vQ}\nv_cmp_nge_f32 vcc, s{sT0}, v{vT}\nv_readfirstlane_b32 s{sXC}, v{SN+9}\ns_cmp_eq_u64 vcc, 0\ns_cselect_b32 s{sT0}, 1, 2\nv_mov_b32 v{vQ}, s{sT0}')
        a(f'ds_write_b32 v{vS}, v{vQ} offset:{F_S[0]}')
        bdma(0); xdma(0, range(2, 16))
        a('s_waitcnt vmcnt(0)')
        self.sig(F_S[1])
        self.stamp(4)
        xread(0)
        self.wait(F_S[1], sleep=1)
        self.stamp(5)
        GR, GI, BT = 128, 144, 160
        PD = 2 * opt('s1depth', 1)
        lq = []
        def bread(q):
            s, pl = q // 2, q % 2
            a(f'ds_read_b128 {q4(BT + 4*(q%4))}, v{vHB if s & 4 else vHA} offset:{((2*(s//16) + pl)*16)*1040 + 32*(s%16)}')
            lq.append(('b', q))
        a(f's_setprio {opt("gprio1", 0)}')
        for q in range(PD): bread(q)
        XQ = opt('xq', 21)
        for q in range(1, 64, 2):
            s = q // 2
            need = max([i for i, x in enumerate(lq) if x == ('b', q) or x == ('x', s)] + [-1])
            if need >= 0:
                a(f's_waitcnt lgkmcnt({len(lq) - 1 - need})')
                del lq[:need + 1]
            for pl, Gx in ((0, GR), (1, GI)):
                a(f'v_mfma_f32_32x32x16_bf16 {t16(Gx)}, {q4(4*s)}, {q4(BT + 4*((q-1+pl)%4))}, {"0" if s == 0 else t16(Gx)}')
            if q - 1 + PD == 32:
                a('s_setprio 3')
                self.wait(F_S[2], sleep=1); lq.clear()
                a(f's_setprio {opt("gprio1", 0)}')
                self.stamp(12)
            if XQ < q <= XQ + 32:
                sx = (q - XQ) // 2 - 1
                a(f'ds_read_b128 {q4(64 + 4*sx)}, v{vXR2 if sx & 4 else vXR} offset:{32*sx}'); lq.append(('x', 16 + sx))
            if q + PD < 64: bread(q - 1 + PD); bread(q + PD)
            if s < 2:
                for m in range(4): bdma(1, 4 * s + m)
            elif s < 6: xdma(1, range(4 * s - 8, 4 * s - 4))
            elif opt('pad1', 0): a(f's_nop {opt("pad1", 0) - 1}')
            if q == XQ:
                a('s_waitcnt vmcnt(0)')
                self.sig(F_S[2]); lq.append(('s', 0))
                a(f's_or_b32 s{sT0}, s2, s{sSW}\ns_cbranch_scc1 L_noep')
                a(f's_mov_b64 exec, 1\nbuffer_store_dword v{vTG}, off, s[{SWS}:{SWS+3}], 0 sc1\ns_mov_b64 exec, -1')
                a('L_noep:')
                a(f's_cmp_lg_u32 s{sTB}, 0\ns_cbranch_scc1 L_nozero')
                a(f's_lshl_b32 s{sT0}, s{sPB}, 14\ns_lshl_b32 s{sT1}, s{sSW}, 11\ns_add_u32 s{sT0}, s{sT0}, s{sT1}\ns_add_u32 s{sT0}, s{sT0}, {WS_EBUF:#x}')
                for n in range(2): a(f'buffer_store_dwordx4 {q4(SN+4)}, v{vL16}, s[{SWS}:{SWS+3}], s{sT0} offen offset:{1024*n} sc1')
                a('L_nozero:')
                a(f's_lshr_b32 s{sT0}, s{sSW}, 1\ns_and_b32 s{sT1}, s{sRB}, 1\ns_cmp_lg_u32 s{sT0}, s{sT1}\ns_cbranch_scc1 L_nosent')
                a(f's_lshl_b32 s{sT1}, s{sCG}, 12\ns_add_u32 s{sT0}, s{sXB}, s{sT1}\ns_add_u32 s{sT0}, s{sT0}, {WS_OBUF:#x}')
                self.xstore([f'buffer_store_dwordx4 {q4(SN)}, v{vL16}, s[{SWS}:{SWS+3}], s{sT0} offen offset:{1024*n}' for n in range(4)], 's')
                a('L_nosent:')
                if opt('pf', 1): self.prefetch((10, 11, 4), vPF)
        a('s_setprio 3')
        self.stamp(6)
        if opt('stop', 0) == 6: self.end(); return
        RE = 'op_sel:[0,0,0] op_sel_hi:[0,1,1]'
        IM = 'op_sel:[1,0,0] op_sel_hi:[1,1,1]'
        T0, T1 = 8, 10
        def pstep(dr, di, sr, si, l, ur, ui, ns=0, nu=0):
            a(f'v_pk_fma_f32 {pr(T0)}, {pr(l)}, {pr(si)}, {pr(ur)} {IM} neg_lo:[{1-ns},0,0] neg_hi:[{1-ns},0,0]')
            a(f'v_pk_fma_f32 {pr(T1)}, {pr(l)}, {pr(sr)}, {pr(ui)} {IM} neg_lo:[0,0,{nu}] neg_hi:[0,0,{nu}]')
            a(f'v_pk_fma_f32 {pr(dr)}, {pr(l)}, {pr(sr)}, {pr(T0)} {RE}')
            a(f'v_pk_fma_f32 {pr(di)}, {pr(l)}, {pr(si)}, {pr(T1)} {RE} neg_lo:[{ns},0,0] neg_hi:[{ns},0,0]')
        def cstep(dr, di, sr, si, l, ur, ui):
            a(f'v_fma_f32 v{T0}, -v{l+1}, v{si}, v{ur}\nv_fma_f32 v{T1}, v{l+1}, v{sr}, v{ui}\nv_fma_f32 v{dr}, v{l}, v{sr}, v{T0}\nv_fma_f32 v{di}, v{l}, v{si}, v{T1}')
        def zstep(d, s, l, u):
            a(f'v_pk_fma_f32 {pr(T0)}, {pr(l)}, {pr(s)}, {pr(u)} {RE}')
            a(f'v_pk_fma_f32 {pr(d)}, {pr(l)}, {pr(s)}, {pr(T0)} op_sel:[1,1,0] op_sel_hi:[1,0,1] neg_lo:[1,0,0]')
        def cmul(r, i, neg):
            a(f'v_pk_mul_f32 {pr(T0)}, {pr(CC)}, {pr(i)} op_sel:[1,0] op_sel_hi:[1,1]')
            a(f'v_pk_mul_f32 {pr(T1)}, {pr(CC)}, {pr(r)} op_sel:[1,0] op_sel_hi:[1,1]')
            a(f'v_pk_fma_f32 {pr(r)}, {pr(CC)}, {pr(r)}, {pr(T0)} {RE} neg_lo:[0,0,{neg}] neg_hi:[0,0,{neg}]')
            a(f'v_pk_fma_f32 {pr(i)}, {pr(CC)}, {pr(i)}, {pr(T1)} {RE} neg_lo:[{neg},0,1] neg_hi:[{neg},0,1]')
        ER, EI, EE = 12, 14, 16
        pstep(ER, EI, GR, GI, L1, GR + 2, GI + 2, 1, 1)
        for r in range(4, 16, 2): pstep(ER, EI, ER, EI, L1, GR + r, GI + r, 0, 1)
        cstep(EE, EE + 1, ER, EI, L8, ER + 1, EI + 1)
        a(f'ds_write_b64 v{vSX}, {pr(EE)} offset:{L_SXO}')
        self.sig(F_S[3])
        self.srd(SB, P(10), 512 * 1024)
        self.srd(SC, P(11), 512 * 1024)
        a(f's_lshl_b32 s{sT3}, s{sSW}, 1\ns_mov_b32 s{sM0}, 0\ns_mov_b32 s{sM0+1}, -1')
        a(f's_lshl_b32 s{sT4}, s{sPB}, 14\ns_lshl_b32 s{sT1}, s{sTB}, 9\ns_add_u32 s{sT4}, s{sT4}, s{sT1}\ns_add_u32 s{sT4}, s{sT4}, {WS_EBUF:#x}')
        self.wait(F_S[3], sleep=1)
        for c in range(7): a(f'ds_read_b64 {pr(20+2*c)}, v{vP8} offset:{(c//2)*XW + L_SXO + (c%2)*256}')
        a('s_waitcnt lgkmcnt(0)')
        for c in range(7):
            a(f's_cmp_lt_u32 s{sT3}, {c}\ns_cbranch_scc1 L_lh_done')
            a(f's_cmp_gt_u32 s{sT3}, {c}\ns_cselect_b64 exec, -1, s[{sM0}:{sM0+1}]')
            zstep(LC, LC, L16, 20 + 2 * c)
        zstep(vTG - 2, LC, L16, EE)
        a(f's_add_u32 s{sT0}, s{sT4}, {16*512 - 512}\nbuffer_store_dwordx4 v[{vTG-2}:{vTG+1}], v{vL16}, s[{SWS}:{SWS+3}], s{sT0} offen sc1')
        a('L_lh_done:\ns_mov_b64 exec, -1')
        self.stamp(7)
        def cdma(srd, base):
            a(f's_mul_i32 s{sT1}, s{sSW}, {16*1040}\ns_lshl_b32 s{sT2}, s{sCG}, 16\ns_lshl_b32 s{sT3}, s{sSW}, 14\ns_add_u32 s{sT2}, s{sT2}, s{sT3}')
            rowdma(srd, base, sT2, 16)
        cdma(SB, L_A1)
        for r in range(0, 16, 2): cmul(GR + r, GI + r, 1)
        a(f's_mov_b32 s{sCNT}, 100000')
        a('L_eg:')
        for q in range(8): a(f'buffer_load_dwordx3 v[{24+4*q}:{26+4*q}], v{vEA}, s[{SWS}:{SWS+3}], s{sT4} offen offset:{512*q} sc1')
        a('s_waitcnt vmcnt(0)')
        a(f'v_cmp_ne_u32 vcc, s{sTAG}, v26')
        for q in range(1, 8): a(f'v_cmp_ne_u32 s[{sM1}:{sM1+1}], s{sTAG}, v{26+4*q}\ns_or_b64 vcc, vcc, s[{sM1}:{sM1+1}]')
        a(f's_cbranch_scc0 L_egd\ns_sleep {opt("esleep", 4)}\ns_sub_u32 s{sCNT}, s{sCNT}, 1\ns_cbranch_scc0 L_eg')
        a('L_egd:')
        self.sig(F_S[9])
        self.stamp(8)
        for q in range(1, 8): zstep(24, 24, L128, 24 + 4 * q)
        a(f'v_pk_mul_f32 {pr(T0)}, {pr(FF)}, {pr(24)} op_sel:[0,0] op_sel_hi:[0,1]')
        a(f'v_pk_fma_f32 {pr(20)}, {pr(FF)}, {pr(24)}, {pr(T0)} op_sel:[1,1,0] op_sel_hi:[1,0,1] neg_lo:[1,0,0]')
        a(f'v_mov_b32 v22, v20\nv_mov_b32 v23, v21\nv_permlane32_swap_b32 v20, v22\nv_permlane32_swap_b32 v21, v23\nv_pk_add_f32 {pr(20)}, {pr(20)}, {pr(22)}')
        IR, II = 24, 26
        cstep(IR, II, 20, 21, WW, LC, LC + 1)
        cstep(IR + 1, II + 1, IR, II, L8, ER, EI)
        cmul(IR, II, 0)
        pstep(GR, GI, IR, II, L1, GR, GI)
        for r in range(2, 16, 2): pstep(GR + r, GI + r, GR + r - 2, GI + r - 2, L1, GR + r, GI + r)
        for pl, Gx in ((0, GR), (1, GI)):
            for j in range(8):
                r0 = 4 * (j % 4) + j // 4
                a(f'v_cvt_pk_bf16_f32 v{28+8*pl+j}, v{Gx+r0}, v{Gx+r0+2}')
            a(f'ds_write_b128 v{vTW}, {q4(28+8*pl)} offset:{L_TBO+2048*pl}\nds_write_b128 v{vTW}, {q4(32+8*pl)} offset:{L_TBO+2048*pl+16}')
        for pl in range(2):
            for f in range(2):
                d = 44 + 8 * pl + 4 * f
                a(f'ds_read_b64_tr_b16 {pr(d)}, v{vTR} offset:{L_TBO+2048*pl+1024*f}\nds_read_b64_tr_b16 {pr(d+2)}, v{vTR} offset:{L_TBO+2048*pl+1024*f+256}')
        a(f's_lshl_b32 s{sT0}, s{sXB}, 1\ns_lshl_b32 s{sT1}, s{sPB}, 11\ns_add_u32 s{sT0}, s{sT0}, s{sT1}\ns_add_u32 s{sT0}, s{sT0}, {WS_HBUF:#x}\ns_add_u32 s{sT1}, s{sT0}, 0x8000')
        hs = []
        for pl in range(2):
            for f in range(2):
                d = 44 + 8 * pl + 4 * f
                hs += [f's_waitcnt lgkmcnt({6 - 4*pl - 2*f})', f'buffer_store_dwordx4 {q4(d)}, v{vL16}, s[{SWS}:{SWS+3}], s{sT0 if pl == 0 else sT1} offen offset:{1024*f}']
        self.xstore(hs, 'h')
        YK, YS, XF, HR = 128, 144, 184, 160
        a(f's_lshl_b32 s{sT0}, s{sTP}, 15\ns_lshl_b32 s{sT1}, s{sCT}, 6\ns_add_u32 s{sT0}, s{sT0}, s{sT1}')
        a(f'buffer_load_dwordx4 {q4(XF)}, v{vXS}, s[{SA}:{SA+3}], s{sT0} offen\nbuffer_load_dwordx4 {q4(XF+4)}, v{vXS}, s[{SA}:{SA+3}], s{sT0} offen offset:32')
        a(f's_lshr_b32 s{sT4}, s{sXB}, 4\ns_lshl_b32 s{sT3}, s{sPB}, 7\ns_add_u32 s{sT4}, s{sT4}, s{sT3}\ns_add_u32 s{sT4}, s{sT4}, {WS_HFLAG:#x}')
        self.wait(F_S[9], sleep=1)
        a(f's_mov_b32 s{sM1}, -1\ns_mov_b32 s{sM1+1}, 0\ns_waitcnt vmcnt(2)')
        a(f's_mov_b64 exec, s[{sM1}:{sM1+1}]')
        self.xstore([f'buffer_store_dword v{vTG}, v{vOA}, s[{SWS}:{SWS+3}], s{sT4} offen'], 'h')
        a('s_mov_b64 exec, -1')
        self.stamp(9)
        if opt('stop', 0) == 9: self.end(); return
        cdma(SC, L_A2)
        for j in range(16): a(f'ds_read_b128 {q4(8*j)}, v{vCK} offset:{32*j}\nds_read_b128 {q4(8*j+4)}, v{vCS} offset:{32*j}')
        self.sig(F_S[6])
        a('s_waitcnt vmcnt(17)')
        a(f'v_mfma_f32_32x32x16_bf16 {t16(YK)}, {q4(XF)}, {q4(DG)}, 0')
        a(f'v_mfma_f32_32x32x16_bf16 {t16(YK)}, {q4(XF+4)}, {q4(DG+4)}, {t16(YK)}')
        self.srd(SB, P(4), 512 * 1024)
        a(f's_lshl_b32 s{sT4}, s{sSW}, 17\ns_lshl_b32 s{sT1}, s{sCG}, 7\ns_add_u32 s{sT4}, s{sT4}, s{sT1}\ns_and_b32 s{sT1}, s{sCG}, 3\ns_lshl_b32 s{sT1}, s{sT1}, 16\ns_xor_b32 s{sT4}, s{sT4}, s{sT1}\ns_lshl_b32 s{sT1}, s{sSW}, 14\ns_add_u32 m0, s{sT1}, {L_A1}')
        self.wait(F_S[6], sleep=1)
        for m in range(16):
            a(f's_xor_b32 s{sT0}, s{sT4}, {8192*m:#x}\nbuffer_load_dwordx4 v{vWI}, s[{SB}:{SB+3}], s{sT0} offen lds\ns_add_u32 m0, m0, 1024')
        a(f's_lshl_b32 s{sT0}, s{sTP}, 11\ns_add_u32 s{sT0}, s{sT0}, {WS_HFLAG:#x}\ns_mov_b64 exec, 0xffff')
        a(f's_mov_b32 s{sCNT}, 100000')
        a('L_gph:')
        a(f'buffer_load_dword v{vT}, v{vHF}, s[{SWS}:{SWS+3}], s{sT0} offen sc1\ns_waitcnt vmcnt(0)\nv_cmp_ne_u32 vcc, s{sTAG}, v{vT}\ns_cbranch_vccz L_gdh')
        a(f's_sleep {opt("hsleep", 4)}\ns_sub_u32 s{sCNT}, s{sCNT}, 1\ns_cbranch_scc0 L_gph')
        a('L_gdh:\ns_mov_b64 exec, -1')
        self.sig(F_S[5])
        self.stamp(13)
        if opt('stop', 0) == 10: self.end(); return
        a(f's_lshl_b32 s{sT3}, s{sTP}, 16\ns_and_b32 s{sT0}, s{sSW}, 1\ns_lshl_b32 s{sT0}, s{sT0}, 14\ns_add_u32 s{sT3}, s{sT3}, s{sT0}\ns_add_u32 s{sT3}, s{sT3}, {WS_HBUF:#x}')
        NR = 13
        vq = []
        def hload(j):
            if j % 4 == 0 and j > 0: a(f's_add_u32 s{sT3}, s{sT3}, {4096 if j != 16 else 4096 + 16384}')
            a(f'buffer_load_dwordx4 {q4(HR + 4*(j%NR))}, v{vL16}, s[{SWS}:{SWS+3}], s{sT3} offen offset:{1024*(j%4)} sc1')
            vq.append(('h', j))
        for j in range(NR - 1): hload(j)
        a(f's_setprio {opt("gprio4", 0)}')
        lq = []
        def cread(j, k):
            a(f'ds_read_b128 {q4(8*(j%16) + 4*k)}, v{vCS2 if k else vCK2} offset:{32*(j%16)}')
        a('s_setprio 3')
        self.wait(F_S[5], sleep=1)
        a(f's_setprio {opt("gprio4", 0)}')
        for j in range(32):
            need = vq.index(('h', j))
            a(f's_waitcnt vmcnt({len(vq) - 1 - need}) lgkmcnt(0)')
            del vq[:need + 1]
            c = 8 * (j % 16); h = q4(HR + 4 * (j % NR))
            a(f'v_mfma_f32_32x32x16_bf16 {t16(YK)}, {h}, {q4(c)}, {t16(YK)}')
            a(f'v_mfma_f32_32x32x16_bf16 {t16(YS)}, {h}, {q4(c+4)}, {"0" if j == 0 else t16(YS)}')
            if j < 16: cread(16 + j, 0)
            FJ = opt('fj', 22)
            if 15 <= j < min(31, FJ): cread(j + 1, 1)
            if j == FJ:
                for jj in range(j + 1, 32): cread(jj, 1)
            if j + NR - 1 < 32: hload(j + NR - 1)
            HJ = opt('hj', 99)
            if opt('pad4', 0) and j < HJ: a(f's_nop {opt("pad4", 0) - 1}')
            if j == HJ - 1:
                a('s_setprio 3')
                self.wait(F_AX, sleep=opt('hjs', 4), va=vS); lq.clear()
                a(f's_setprio {opt("gprio5", 0)}')
        a('s_setprio 3')
        self.sig(F_S[7])
        self.srd(SOUT, P(14), 2048 * 4096)
        a(f's_lshl_b32 s{sT2}, s{sTP}, 17\ns_lshl_b32 s{sT1}, s{sCT}, 7\ns_add_u32 s{sT2}, s{sT2}, s{sT1}')
        self.wait(F_S[7], sleep=1)
        for q in range(4): a(f'ds_write_b128 v{vYW}, {q4(YS+4*q)} offset:{1024*q}')
        self.sig(F_S[8])
        self.wait(F_S[8], sleep=1)
        for q in range(4): a(f'ds_read_b128 {q4(YS+4*q)}, v{vYR} offset:{1024*q}')
        a('s_waitcnt lgkmcnt(0)')
        fl = {0: '', 1: ' sc1', 2: ' nt', 3: ' sc0 sc1', 4: ' sc1 nt', 5: ' sc0 nt', 6: ' sc0 sc1 nt'}[opt('yfl', 2)]
        for r in range(0, 16, 2): a(f'v_pk_add_f32 {pr(YS+r)}, {pr(YK+r)}, {pr(YS+r)}')
        for r in range(16):
            a(f's_add_u32 s{sT0}, s{sT2}, {((r % 4) + 8 * (r // 4)) * 4096}')
            a(f'buffer_store_dword v{YS+r}, v{vOA}, s[{SOUT}:{SOUT+3}], s{sT0} offen offset:2048{fl}')
        self.stamp(2)
        self.end()

HEADER = open('cdna_kernels/' + NAME + '.s.ref').read().split('; Override launch')[0]

def make(stamps=False):
    g = G(stamps)
    body = g.build()
    txt = HEADER + f'; @launch grid=(256,1,1) block=(512,1,1) lds={L_TOTAL}\n'
    txt += f'''.amdgcn_target "amdgcn-amd-amdhsa--gfx950"
.text
.globl {NAME}_kernel
.p2align 8
.type {NAME}_kernel,@function
{NAME}_kernel:
{body}.section .rodata,"a"
.p2align 6
.amdhsa_kernel {NAME}_kernel
  .amdhsa_next_free_vgpr 256
  .amdhsa_next_free_sgpr 102
  .amdhsa_accum_offset 256
  .amdhsa_group_segment_fixed_size 0
  .amdhsa_kernarg_size 136
  .amdhsa_user_sgpr_count 2
  .amdhsa_user_sgpr_kernarg_segment_ptr 1
  .amdhsa_system_sgpr_workgroup_id_x 1
.end_amdhsa_kernel
'''
    return txt, g.a.n_ins

if __name__ == '__main__':
    pos = [x for x in sys.argv[1:] if not x.startswith('--')]
    out = pos[0] if pos else 'cdna_kernels/' + NAME + '.s'
    txt, n = make(stamps='stamps' in OPT)
    open(out, 'w').write(txt)
    print('wrote', out, n, 'instructions')
```

```python
import sys, math, struct
from asm import Asm

NAME = 'concat_heads__grouped_kv_mqa__ssm_conv_s5__prompt'
OPT = dict((x[2:].split('=') + ['1'])[:2] for x in sys.argv if x.startswith('--'))
def opt(k, d): return int(OPT.get(k, d))
def f2u(x): return struct.unpack('<I', struct.pack('<f', x))[0]
def pr(r): return f'v[{r}:{r+1}]'
def q4(r): return f'v[{r}:{r+3}]'
def t16(r): return f'v[{r}:{r+15}]'

WS_KVFLAG = 0x8000
WS_KVIMG = 0x10000
WS_EBUF = 0x40000
WS_HFLAG = 0x80000
WS_OBUF = 0x100000
WS_HBUF = 0x400000
WS_DBG = 0x800000
WS_SIZE = 0x1000000
def FL(i): return 16 * i
F_L1, F_L2, F_L4, F_L6 = FL(0), FL(1), FL(2), FL(3)
F_QP, F_KVD = FL(4), FL(5)
F_A1, F_AX, F_AY = FL(6), FL(7), FL(8)
F_S = [FL(9 + i) for i in range(10)]
F_WO = FL(19)
F_OX = FL(20)
F_SL = [FL(22 + i) for i in range(3)]
F_KMAX, F_XC, F_KST = FL(25), FL(25) + 4, FL(25) + 8
F_TAG, F_QA = FL(26), FL(27)
L_QN = 512
L_ACCF = 1024
L_QF = 5120
L_ACCD = 13312
L_WKV = L_ACCD
L_A1 = 29696
L_A2 = 96256
L_MX = L_A2 + 66560
L_TOTAL = 163840
XW = 16640
L_SXO = 1024
L_TBO = 2048

sWV, sRB, sCG, sTB, sPB, sTAG = 3, 4, 5, 6, 7, 8
sT0, sT1, sT2, sT3, sT4, sT5 = 9, 10, 11, 12, 13, 14
sCNT = 15
P = lambda i: 16 + 2 * i
SA, SB, SC, SWS, SOUT = 52, 56, 60, 64, 68
sSW = 72
sPH, sTJ, sOW = 73, 74, 75
sM0, sM1 = 76, 78
sQH = 81
sOB, sPRE = 101, 81
sXC = 100
sST = 82
SPIN = 400000
vT, vLN, vL16, vEP, vF, vS, vONE = 249, 250, 251, 252, 253, 254, 255

class G:
    def __init__(self, stamps=False):
        self.a = Asm(); self.stamps = stamps; self.cyc = True
    def srd(self, d, p, size):
        self.a(f's_mov_b32 s{d}, s{p}\ns_mov_b32 s{d+1}, s{p+1}\ns_mov_b32 s{d+2}, {size:#x}\ns_mov_b32 s{d+3}, 0x20000')
    def stamp(self, i):
        if self.stamps:
            self.a(f's_memrealtime s[98:99]\ns_waitcnt lgkmcnt(0)\ns_mov_b32 s{sST+i}, s98')
            m = {5: 8, 6: 9}
            if self.cyc and i in m:
                self.a(f's_memtime s[98:99]\ns_waitcnt lgkmcnt(0)\ns_mov_b32 s{sST+m[i]}, s98')
    def end(self):
        a = self.a
        if self.stamps:
            a('s_waitcnt vmcnt(0)')
            self.stamp(15)
            if 'diag' in OPT and self.cyc != ('diagsv' in OPT):
                da, db = [int(x) for x in OPT['diag'].split(',')]
                L = a.label('DG')
                a(f's_sub_u32 s{sT1}, s{sST+db}, s{sST+da}')
                if 'diagxc' in OPT: a(f's_xor_b32 s{sT1}, s{sXC}, {opt("diagxc", 0) - 1}\ns_mul_i32 s{sT1}, s{sT1}, 1000')
                if 'diagcyc' in OPT: a(f's_lshr_b32 s{sT1}, s{sT1}, 1')
                else: a(f's_lshl_b32 s{sT1}, s{sT1}, 3')
                a(f's_min_u32 s{sT1}, s{sT1}, 100000\ns_add_u32 s{sT1}, s{sT1}, s{sST+15}')
                a(f'{L}:\ns_sleep 4\ns_memrealtime s[98:99]\ns_waitcnt lgkmcnt(0)\ns_cmp_lt_u32 s98, s{sT1}\ns_cbranch_scc1 {L}')
            a(f's_lshl_b32 s{sT0}, s2, 3\ns_add_u32 s{sT0}, s{sT0}, s{sWV}\ns_lshl_b32 s{sT0}, s{sT0}, 6\ns_add_u32 s{sT0}, s{sT0}, {WS_DBG:#x}')
            a('s_mov_b64 exec, 1')
            for i in range(16):
                a(f'v_mov_b32 v{vT}, s{sST+i}\nbuffer_store_dword v{vT}, off, s[{SWS}:{SWS+3}], s{sT0} offset:{4*i}')
            a('s_waitcnt vmcnt(0)')
        a('s_endpgm')
    def sig(self, off, va=vS):
        self.a(f'ds_write_b32 v{va}, v{vONE} offset:{off}')
    def wait(self, off, sleep=1, va=vF):
        a = self.a; L = a.label('W'); D = a.label('WD')
        a(f's_mov_b32 s{sCNT}, {SPIN}')
        a(f'{L}:')
        a(f'ds_read_b32 v{vT}, v{va} offset:{off}\ns_waitcnt lgkmcnt(0)\nv_cmp_eq_u32 vcc, 0, v{vT}\ns_cbranch_vccz {D}')
        a((f's_sleep {sleep}\n' if sleep else '') + f's_sub_u32 s{sCNT}, s{sCNT}, 1\ns_cbranch_scc0 {L}')
        a(f'{D}:')
    def xstore(self, lines, kind='o'):
        a = self.a
        if not opt('xc' + kind, 1 if kind == 'o' else 0):
            for x in lines: a(x + (' sc1' if x.startswith('buffer') else ''))
            return
        L = a.label('X'); D = a.label('XD')
        a(f's_cmp_eq_u32 s{sXC}, 1\ns_cbranch_scc0 {L}')
        for x in lines: a(x + (' nt' if x.startswith('buffer') and opt('xnt', 0) else ''))
        a(f's_branch {D}')
        a(f'{L}:')
        for x in lines: a(x + (' sc1' if x.startswith('buffer') else ''))
        a(f'{D}:')
    def get_tag(self):
        self.a(f'v_readfirstlane_b32 s{sTAG}, v{vEP}\ns_mul_i32 s{sTAG}, s{sTAG}, 0x9E3779B1\ns_add_u32 s{sTAG}, s{sTAG}, 0x7F4A7C15')

    def build(self):
        a = self.a
        a('s_cmp_ge_u32 s2, 256\ns_cbranch_scc1 L_exit')
        a('s_load_dwordx16 s[16:31], s[0:1], 0\ns_load_dwordx16 s[32:47], s[0:1], 64\ns_load_dwordx2 s[48:49], s[0:1], 128')
        if self.stamps:
            for i in range(16): a(f's_mov_b32 s{sST+i}, 0')
        a(f'v_and_b32 v{vLN}, 63, v0\nv_lshrrev_b32 v{vT}, 6, v0\nv_lshlrev_b32 v{vL16}, 4, v{vLN}\nv_readfirstlane_b32 s{sWV}, v{vT}')
        if opt('cpf', 1):
            a(f's_cmp_lt_u32 s{sWV}, 5\ns_cbranch_scc1 L_nocpf')
            a(f's_getpc_b64 s[{sM0}:{sM0+1}]')
            a('L_pc:')
            a(f's_lshr_b32 s{sT0}, s2, 3\ns_mul_i32 s{sT0}, s{sT0}, 3\ns_add_u32 s{sT0}, s{sT0}, s{sWV}\ns_sub_u32 s{sT0}, s{sT0}, 5\ns_lshl_b32 s{sT0}, s{sT0}, 9')
            a(f's_min_u32 s{sT0}, s{sT0}, L_exit-L_pc-512\ns_add_u32 s{sM0}, s{sM0}, s{sT0}\ns_addc_u32 s{sM0+1}, s{sM0+1}, 0')
            for k in range(8): a(f's_load_dword s{SOUT + k % 4}, s[{sM0}:{sM0+1}], {64*k}')
            a('L_nocpf:')
        a(f's_and_b32 s{sT0}, s2, 7\ns_lshr_b32 s{sT1}, s2, 3')
        a(f's_lshl_b32 s{sRB}, s{sT0}, 2\ns_lshr_b32 s{sT2}, s{sT1}, 3\ns_add_u32 s{sRB}, s{sRB}, s{sT2}\ns_and_b32 s{sCG}, s{sT1}, 7')
        a(f's_lshr_b32 s{sTB}, s{sRB}, 1\ns_and_b32 s{sPB}, s{sT1}, 15\ns_and_b32 s{sSW}, s{sWV}, 3')
        a(f's_cmp_ge_u32 s{sWV}, 4\ns_cbranch_scc1 L_service')
        a(f's_lshr_b32 s{sT5}, s{sCG}, 1\ns_lshl_b32 s{sT4}, s{sRB}, 16')
        def xa_rows(g):
            a(f's_add_u32 s{sT0}, s{sT5}, {g}\ns_and_b32 s{sT0}, s{sT0}, 3\ns_lshl_b32 s{sT0}, s{sT0}, 2\ns_add_u32 s{sT0}, s{sT0}, s{sSW}\ns_lshl_b32 s{sT0}, s{sT0}, 2')
            a(f's_mul_i32 s{sT1}, s{sT0}, 1040\ns_add_u32 m0, s{sT1}, {L_A1}\ns_lshl_b32 s{sT0}, s{sT0}, 10\ns_add_u32 s{sT0}, s{sT0}, s{sT4}')
            if g == 0:
                a('s_waitcnt lgkmcnt(0)')
                self.stamp(0)
                self.srd(SA, P(0), 2048 * 1024)
            for n in range(4):
                a(f'buffer_load_dwordx4 v{vL16}, s[{SA}:{SA+3}], s{sT0} offen offset:{1024*n} lds')
                if n < 3: a('s_add_u32 m0, m0, 16')
        xa_rows(0)
        a(f's_bitcmp1_b32 s{sCG}, 0\ns_cselect_b32 s{SB}, s{P(3)}, s{P(2)}\ns_cselect_b32 s{SB+1}, s{P(3)+1}, s{P(2)+1}\ns_mov_b32 s{SB+2}, 0x4000\ns_mov_b32 s{SB+3}, 0x20000')
        a(f's_lshl_b32 s{sT0}, s{sWV}, 12\ns_add_u32 m0, s{sT0}, {L_WKV}')
        a(f'v_lshrrev_b32 v2, 1, v{vL16}\nv_and_b32 v2, 128, v2\nv_xor_b32 v2, v2, v{vL16}')
        for n in range(4):
            a(f'buffer_load_dwordx4 v2, s[{SB}:{SB+3}], s{sT0} offen offset:{1024*n} lds')
        self.srd(SC, P(1), 512 * 1024)
        NPQ = 0
        if opt('pfq', 0):
            G = opt('pfg', 6)
            a(f'v_lshlrev_b32 v3, {G}, v{vLN}\ns_lshr_b32 s{sT0}, s2, 3\ns_lshl_b32 s{sT0}, s{sT0}, 2\ns_add_u32 s{sT0}, s{sT0}, s{sSW}\ns_lshl_b32 s{sT0}, s{sT0}, 12')
            if G == 7: a(f's_mov_b32 s{sM0}, -1\ns_mov_b32 s{sM0+1}, 0\ns_mov_b64 exec, s[{sM0}:{sM0+1}]')
            a(f'buffer_load_dword v4, v3, s[{SC}:{SC+3}], s{sT0} offen'); NPQ = 1
            if opt('pfq', 0) > 1:
                for p in (8, 9):
                    self.srd(SOUT, P(p), 512 * 1024)
                    a(f'buffer_load_dword v4, v3, s[{SOUT}:{SOUT+3}], s{sT0} offen'); NPQ += 1
                self.srd(SOUT, P(5), 2048 * 1024)
                a(f's_lshr_b32 s{sT0}, s{sT0}, 1\ns_and_b32 s{sT1}, s2, 7\ns_lshl_b32 s{sT1}, s{sT1}, 18\ns_add_u32 s{sT0}, s{sT0}, s{sT1}\nv_lshrrev_b32 v3, 1, v3')
                a(f'buffer_load_dword v4, v3, s[{SOUT}:{SOUT+3}], s{sT0} offen'); NPQ += 1
            a('s_mov_b64 exec, -1')
        self.wimg_lane_addr(0, 1)
        a(f's_lshl_b32 s{sT3}, s{sSW}, 13\ns_lshl_b32 s{sT1}, s{sCG}, 7\ns_add_u32 s{sT3}, s{sT3}, s{sT1}\ns_and_b32 s{sT1}, s{sRB}, 3\ns_lshl_b32 s{sT1}, s{sT1}, 17\ns_add_u32 s{sT3}, s{sT3}, s{sT1}')
        a(f's_lshl_b32 s{sT2}, s{sSW}, 10')
        def wq_rows(c):
            for n in range(4 * c, 4 * c + 4):
                a(f's_add_u32 m0, s{sT2}, {L_A2 + 4096*n}\ns_xor_b32 s{sT0}, s{sT3}, {0x8000*n:#x}')
                a(f'buffer_load_dwordx4 v0, s[{SC}:{SC+3}], s{sT0} offen lds')
        FO = opt('fo', 1)
        if FO == 0: wq_rows(0)
        else: xa_rows(1)
        self.common_regs()
        self.srd(SWS, P(16), WS_SIZE)
        a('s_barrier')
        self.stamp(1)
        a(f's_waitcnt vmcnt({4 + NPQ})')
        self.sig(F_L1)
        if FO == 0: xa_rows(1)
        xa_rows(2); xa_rows(3)
        if FO == 1: wq_rows(0)
        if FO == 0: wq_rows(1)
        a('s_waitcnt vmcnt(4)')
        self.sig(F_L2)
        if FO == 1: wq_rows(1)
        wq_rows(2); wq_rows(3)
        self.stamp(2)
        a('s_waitcnt vmcnt(8)')
        self.sig(F_L4)
        if opt('lay', 1):
            a('s_branch L_attn')
            self.service()
            self.cyc = True
            a('L_attn:')
            self.attention()
        else:
            self.attention()
            self.service()
        a('L_exit:\ns_endpgm')
        return a.finish()

    def common_regs(self):
        self.a(f'v_and_b32 v{vF}, 3, v{vLN}\nv_lshlrev_b32 v{vF}, 2, v{vF}\ns_lshl_b32 s{sT0}, s{sSW}, 2\nv_mov_b32 v{vS}, s{sT0}\nv_mov_b32 v{vONE}, 1')

    def wimg_lane_addr(self, vd, vt):
        a = self.a
        a(f'v_lshrrev_b32 v{vt}, 2, v{vLN}\nv_and_b32 v{vt}, 4, v{vt}\nv_and_b32 v{vd}, 7, v{vLN}\nv_xor_b32 v{vd}, v{vd}, v{vt}\nv_lshlrev_b32 v{vd}, 4, v{vd}')
        a(f'v_lshrrev_b32 v{vt}, 3, v{vLN}\nv_lshl_add_u32 v{vd}, v{vt}, 10, v{vd}')

    def tr_parts(self, c0, r, wpart):
        a = self.a
        a(f'v_bfe_u32 v{c0}, v{vLN}, 4, 1\nv_lshlrev_b32 v{c0}, 5, v{c0}\nv_and_b32 v{r}, 3, v{vLN}\nv_lshl_add_u32 v{c0}, v{r}, 3, v{c0}\nv_bfe_u32 v{r}, v{vLN}, 2, 2')
        a(f's_and_b32 s{sT0}, s{sSW}, 1\nv_lshrrev_b32 v{wpart}, 1, v{r}\nv_xor_b32 v{wpart}, s{sT0}, v{wpart}\nv_lshl_add_u32 v{wpart}, v{wpart}, 6, v{c0}\nv_lshl_add_u32 v{wpart}, v{r}, 7, v{wpart}')

    def prefetch(self, ptrs, vd):
        a = self.a
        a(f's_lshr_b32 s{sT0}, s2, 3\ns_lshl_b32 s{sT0}, s{sT0}, 2\ns_add_u32 s{sT0}, s{sT0}, s{sSW}\ns_lshl_b32 s{sT0}, s{sT0}, 12')
        for p in ptrs:
            self.srd(SOUT, P(p), 512 * 1024)
            a(f'buffer_load_dword v{vEP}, v{vd}, s[{SOUT}:{SOUT+3}], s{sT0} offen')

    def attention(self):
        a = self.a
        K, V, S0, O, Q = 0, 64, 192, 224, 240
        vIDX, vA16, vA8, vQA, vL8 = 244, 245, 246, 247, 248
        R = dict(K=K, V=V, S0=S0, O=O, Q=Q, vIDX=vIDX, vA16=vA16, vA8=vA8, vQA=vQA, vL8=vL8, vM=vEP)
        a(f'v_and_b32 v{Q}, 11, v{vLN}\nv_cmp_eq_u32 vcc, 0, v{Q}\nv_mov_b32 v{Q}, 0x3f803f80\nv_cndmask_b32 v{vT}, 0, v{Q}, vcc')
        MK = opt('mask', 0)
        self.masked = lambda i: (MK >> i) & 1
        for i in range(16):
            for r in range(0 if self.masked(i) else 4, 8): a(f'v_mov_b32 v{V+8*i+r}, v{vT}')
        a(f'v_lshlrev_b32 v{vL8}, 3, v{vLN}\nv_mov_b32 v{vIDX}, 0xdddd')
        def init_state(ph0):
            for i in range(16): a(f'v_mov_b32 v{O+i}, 0')
            a(f's_mov_b32 s{sTJ}, s{sSW}\ns_mov_b32 s{sPH}, {ph0}')
            a(f's_lshl_b32 s{sT0}, s{sTJ}, 10\nv_add_u32 v{vQA}, s{sT0}, v{vL16}')
            a(f's_lshl_b32 s{sT0}, s{sTJ}, 11\nv_add_u32 v{vA16}, s{sT0}, v{vL16}\ns_lshl_b32 s{sT0}, s{sTJ}, 9\nv_add_u32 v{vA8}, s{sT0}, v{vL8}')
        init_state(0)
        FS = opt('fs', 6)
        a(f'v_lshlrev_b32 v{S0+4}, {FS}, v{vLN}\nv_mov_b32 v{S0+3}, 0\ns_getreg_b32 s{sXC}, hwreg(HW_REG_XCC_ID)')
        a(f's_lshl_b32 s{sT3}, s{sWV}, {FS + 6}\ns_add_u32 s{sT3}, s{sT3}, {WS_KVFLAG:#x}')
        a(f's_lshl_b32 s{sT4}, s{sWV}, 15\ns_add_u32 s{sT4}, s{sT4}, {WS_KVIMG:#x}\ns_lshl_b32 s{sT0}, s{sCG}, 12\ns_add_u32 s{sT4}, s{sT4}, s{sT0}')
        a(f's_lshl_b32 s{sOW}, s{sRB}, 16\ns_lshl_b32 s{sT0}, s{sCG}, 12\ns_add_u32 s{sOW}, s{sOW}, s{sT0}\ns_add_u32 s{sOW}, s{sOW}, {WS_OBUF:#x}')
        a(f's_add_u32 s{sT0}, s{sSW}, 1\ns_and_b32 s{sT0}, s{sT0}, 3\ns_lshl_b32 s{sT0}, s{sT0}, 10\ns_add_u32 s{sOW}, s{sOW}, s{sT0}')
        a(f's_mov_b32 s{sM0}, 0xffff\ns_mov_b32 s{sM0+1}, 0xffff')
        a(f's_lshl_b32 s{sOB}, s{sRB}, 16\ns_lshr_b32 s{sT0}, s{sSW}, 1\ns_lshl_b32 s{sT0}, s{sT0}, 2\ns_and_b32 s{sT2}, s{sCG}, 3\ns_add_u32 s{sT0}, s{sT0}, s{sT2}\ns_lshl_b32 s{sT0}, s{sT0}, 12')
        a(f's_add_u32 s{sOB}, s{sOB}, s{sT0}\ns_add_u32 s{sOB}, s{sOB}, {WS_OBUF:#x}\ns_mov_b32 s{sPRE}, 0')
        self.tr_parts(0, 1, 2)
        a(f'v_lshrrev_b32 v1, 5, v{vLN}\nv_lshl_add_u32 v2, v1, 9, v2\ns_lshr_b32 s{sT0}, s{sSW}, 1\ns_lshl_b32 s{sT0}, s{sT0}, 15\ns_add_u32 s{sT0}, s{sT0}, {L_A1}\nv_add_u32 v{vLN}, s{sT0}, v2')
        a(f's_waitcnt vmcnt(0)')
        self.sig(F_L6)
        self.stamp(3)
        self.wait(F_QA if opt('pw', 0) == 0 else F_KVD, sleep=1)
        a(f'ds_read_b32 v{vEP}, v{vF} offset:{F_TAG}\ns_waitcnt lgkmcnt(0)\nv_readfirstlane_b32 s{sTAG}, v{vEP}')
        if opt('pf1', 0):
            a(f's_lshr_b32 s{sT0}, s2, 3\ns_lshl_b32 s{sT0}, s{sT0}, 2\ns_add_u32 s{sT0}, s{sT0}, s{sSW}\ns_lshl_b32 s{sT0}, s{sT0}, 12')
            for k, p in enumerate((8, 9)):
                self.srd(SB, P(p), 512 * 1024)
                for n in range(4): a(f'buffer_load_dwordx4 {q4(4 + 16*k + 4*n)}, v{vL16}, s[{SB}:{SB+3}], s{sT0} offen offset:{1024*n}')
            self.srd(SB, P(5), 2048 * 1024)
            a(f's_lshr_b32 s{sT0}, s{sT0}, 1\ns_and_b32 s{sT1}, s2, 7\ns_lshl_b32 s{sT1}, s{sT1}, 18\ns_add_u32 s{sT0}, s{sT0}, s{sT1}')
            for n in range(2): a(f'buffer_load_dwordx4 {q4(36 + 4*n)}, v{vL16}, s[{SB}:{SB+3}], s{sT0} offen offset:{1024*n}')
        if opt('pw', 0): a(f's_sleep {opt("pw", 0)}')
        a(f's_mov_b32 s{sCNT}, 100000')
        KW = opt('kw', 0)
        a(f's_lshr_b32 s{sT0}, s2, 3\ns_lshl_b32 s{sT0}, s{sT0}, 2\ns_add_u32 s{sT0}, s{sT0}, s{sSW}\ns_lshl_b32 s{sT0}, s{sT0}, 10\ns_add_u32 s{sT0}, s{sT0}, {WS_KVIMG:#x}')
        kwl = f'buffer_load_dwordx4 {q4(S0+8)}, v{vL16}, s[{SWS}:{SWS+3}], s{sT0} offen sc1'
        if KW == 2: a(kwl)
        a('L_kvp:')
        a(f'buffer_load_dwordx3 v[{S0}:{S0+2}], v{S0+4}, s[{SWS}:{SWS+3}], s{sT3} offen sc1')
        if KW == 1: a(kwl)
        a(f's_waitcnt vmcnt({1 if KW == 1 else 0})\nv_cmp_ne_u32 vcc, s{sTAG}, v{S0}\ns_cbranch_vccz L_kvpd')
        if opt('pm', 1): a('s_mov_b64 exec, vcc')
        a((f's_sleep {opt("kvsleep", 1)}\n' if opt("kvsleep", 1) else '') + f's_sub_u32 s{sCNT}, s{sCNT}, 1\ns_cbranch_scc0 L_kvp')
        a('L_kvpd:\ns_mov_b64 exec, -1')
        if self.stamps: a(f's_mov_b32 s{sST+13}, s{sCNT}')
        self.stamp(4)
        for i in range(opt('nup', 7)): a(self.kvload(R, i))
        a(f'ds_max_u32 v{S0+3}, v{S0+1} offset:{F_KMAX}')
        a(f's_lshr_b32 s{sT0}, s{sRB}, 3\ns_cmp_eq_u32 s{sT0}, s{sSW}\ns_cbranch_scc0 L_noxc')
        a(f'v_cmp_ne_u32 vcc, s{sXC}, v{S0+2}\ns_bitcmp1_b32 s{sRB}, 2\ns_cselect_b32 s{sT0}, vcc_hi, vcc_lo\ns_cmp_eq_u32 s{sT0}, 0\ns_cselect_b32 s{sT0}, 1, 0')
        a(f'v_mov_b32 v{S0+2}, s{sT0}\nds_write_b32 v{S0+3}, v{S0+2} offset:{F_XC}')
        a('L_noxc:')
        self.wait(F_QP, sleep=0)
        a(f'ds_read_b128 {q4(Q)}, v{vQA} offset:{L_QF}')
        self.stamp(5)
        self.attn_fast(R)
        a('L_attn_epi:')
        if 'phs' in OPT:
            for p in range(8): a(f's_mov_b32 s{sST+2*p}, s{16+4*p}\ns_mov_b32 s{sST+2*p+1}, s{17+4*p}')
            a(f's_lshl_b32 s{sT0}, s2, 3\ns_add_u32 s{sT0}, s{sT0}, s{sWV}\ns_lshl_b32 s{sT0}, s{sT0}, 6\ns_add_u32 s{sT0}, s{sT0}, {WS_DBG + 0x100000:#x}')
            a('s_mov_b64 exec, 1')
            for i in range(16):
                a(f'v_mov_b32 v{vT}, s{sST+i}\nbuffer_store_dword v{vT}, off, s[{SWS}:{SWS+3}], s{sT0} offset:{4*i}')
            a('s_waitcnt vmcnt(0)\ns_endpgm')
        self.oproj_pre()
        self.stamp(6)
        self.publish(R, 0x8000, F_AY)
        if 'nosvc' in OPT or 'stop' in OPT: self.end()
        else: self.oproj()
        a('L_check6:')
        self.wait(F_S[9], sleep=1)
        a('s_branch L_checked6')
        a('L_check1:')
        self.wait(F_S[0], sleep=1)
        a(f'v_cmp_ne_u32 vcc, 1, v{vT}\ns_cbranch_vccz L_checked1')
        self.wait(F_S[9], sleep=1)
        a(f's_mov_b32 s{sXC}, 0')
        vL4, vW = vA8, vA16
        self.sig(F_SL[0]); self.wait(F_SL[0])
        a(f'v_lshrrev_b32 v{vL4}, 2, v{vL16}\ns_mov_b32 s{sT2}, 0\ns_lshl_b32 s{sT3}, s{sWV}, 11\nv_add_u32 v{vW}, s{sT3}, v{vL4}')
        a('L_slow_pre:')
        a(f's_lshl_b32 s{sT0}, s{sT2}, 10\nv_add_u32 v{vT}, s{sT0}, v{vL16}\nds_read_b128 {q4(Q)}, v{vT} offset:{L_QF}\ns_waitcnt lgkmcnt(0)')
        a(f'v_mov_b32 v{S0+20}, 0xff800000')
        for i in range(16):
            a(f'v_mfma_f32_32x32x16_bf16 {t16(S0)}, {q4(K+4*i)}, {q4(Q)}, 0')
            for r in range(0, 16, 2): a(f'v_max3_f32 v{S0+20}, v{S0+r}, v{S0+r+1}, v{S0+20}')
        a(f'v_mov_b32 v{S0+21}, v{S0+20}\nv_permlane32_swap_b32 v{S0+20}, v{S0+21}\nv_max_f32 v{S0+20}, v{S0+20}, v{S0+21}')
        a(f'ds_write_b32 v{vW}, v{S0+20} offset:{L_ACCD}\nv_add_u32 v{vW}, 256, v{vW}')
        a(f's_add_u32 s{sT2}, s{sT2}, 1\ns_cmp_lt_u32 s{sT2}, 8\ns_cbranch_scc1 L_slow_pre')
        self.sig(F_SL[1]); self.wait(F_SL[1])
        a(f's_lshl_b32 s{sT0}, s{sWV}, 8\nv_add_u32 v{vW}, s{sT0}, v{vL4}')
        for t in range(2):
            for w in range(4): a(f'ds_read_b32 v{S0+4*t+w}, v{vW} offset:{L_ACCD + 2048*w + 1024*t}')
        a(f'v_and_b32 v{vW}, 0x7c, v{vL4}\ns_lshl_b32 s{sT0}, s{sWV}, 7\ns_add_u32 s{sT0}, s{sT0}, {L_MX}\nv_add_u32 v{vW}, s{sT0}, v{vW}')
        a('s_waitcnt lgkmcnt(0)')
        for t in range(2):
            b = S0 + 4 * t
            a(f'v_max3_f32 v{b}, v{b}, v{b+1}, v{b+2}\nv_max_f32 v{b}, v{b}, v{b+3}\nds_write_b32 v{vW}, v{b} offset:{512*t}')
        init_state(16)
        a(f'v_mov_b32 v{S0}, 0\nv_mov_b32 v{S0+1}, 17\nds_write_b64 v{vA8}, {pr(S0)} offset:{L_ACCF+2048}')
        a(f'ds_write_b128 v{vA16}, {q4(O)} offset:{L_ACCD+8192}\nds_write_b128 v{vA16}, {q4(O)} offset:{L_ACCD+8192+1024}')
        self.sig(F_SL[2]); self.wait(F_SL[2])
        a(f'ds_read_b128 {q4(Q)}, v{vQA} offset:{L_QF}')
        self.attn_loop(R, True)
        a('s_branch L_attn_epi')

    QD = [r for i in range(16) for r in (4 * i, 64 + 8 * i, 68 + 8 * i)]
    def WF(self, st): return self.QD[st]
    def OF(self, q, n): return self.QD[16 + 4 * ((q + 3) % 4) + 16 * (q // 4) + n]
    def wo_read(self, st, vWO): return f'ds_read_b64_tr_b16 {pr(self.WF(st))}, v{vWO} offset:{2048*st}\nds_read_b64_tr_b16 {pr(self.WF(st)+2)}, v{vWO} offset:{2048*st+1024}'
    def o_load(self, q):
        t = f's_xor_b32 s{sT0}, s{sOB}, {4096*(q%4) + 0x8000*(q//4):#x}'
        for n in range(4): t += f'\nbuffer_load_dwordx4 {q4(self.OF(q, n))}, v{vL16}, s[{SWS}:{SWS+3}], s{sT0} offen offset:{1024*n} sc1'
        return t

    def kvload(self, R, i):
        K, V = R['K'], R['V']
        t = ''
        if i % 2 == 0 and i > 0: t += f's_xor_b32 s{sT4}, s{sT4}, {((i // 2) ^ (i // 2 - 1)) << 12:#x}\n'
        o = (i % 2) * 2048
        t += f'buffer_load_dwordx4 {q4(K+4*i)}, v{vL16}, s[{SWS}:{SWS+3}], s{sT4} offen offset:{o} sc1\n'
        if self.masked(i):
            t += f's_mov_b64 exec, s[{sM0}:{sM0+1}]\nbuffer_load_dwordx4 {q4(V+8*i)}, v{vL16}, s[{SWS}:{SWS+3}], s{sT4} offen offset:{o+1024} sc1\n'
            t += f'buffer_load_dwordx4 {q4(V+8*i+4)}, v{vL16}, s[{SWS}:{SWS+3}], s{sT4} offen offset:{o+1024+256} sc1\ns_mov_b64 exec, -1'
        else:
            t += f'buffer_load_dwordx4 {q4(V+8*i)}, v{vL16}, s[{SWS}:{SWS+3}], s{sT4} offen offset:{o+1024} sc1'
        return t

    def publish(self, R, off, flag):
        a = self.a; O = R['O']
        a(f'v_rcp_f32 v{O+8}, v{O+8}\ns_add_u32 s{sT0}, s{sOW}, {off}')
        for r in range(0, 8, 2): a(f'v_pk_mul_f32 {pr(O+r)}, {pr(O+8)}, {pr(O+r)} op_sel:[0,0] op_sel_hi:[0,1]')
        for r in range(4): a(f'v_cvt_pk_bf16_f32 v{O+r}, v{O+2*r}, v{O+2*r+1}')
        self.xstore([f'buffer_store_dwordx4 {q4(O)}, v{vL16}, s[{SWS}:{SWS+3}], s{sT0} offen'])
        if off: self.sig(flag)

    def attn_fast(self, R):
        a = self.a
        K, V, S0, O, Q = R['K'], R['V'], R['S0'], R['O'], R['Q']
        vIDX, vA16, vA8, vQA, vL8 = R['vIDX'], R['vA16'], R['vA8'], R['vQA'], R['vL8']
        NUP = opt('nup', 7)
        sK = [[50, 51, 80], [sT1, sT2, sT3], [sT5, sPH, sTJ]]
        for k in range(1, 4):
            a(f's_sub_u32 s{sT0}, s{sSW}, {k}\ns_and_b32 s{sT0}, s{sT0}, 3\ns_lshl_b32 s{sK[k-1][0]}, s{sT0}, 9\ns_lshl_b32 s{sK[k-1][1]}, s{sT0}, 10\ns_lshl_b32 s{sK[k-1][2]}, s{sT0}, 11')
        def Sb(i): return S0 + 16 * (i % 2)
        def E(i, r): return f'v_exp_f32 v{Sb(i)+r}, v{Sb(i)+r}'
        CM = '-4.0' if opt('cm', 1) else '0'
        PP = opt('pp', 15)
        def QK(i): return f'v_mfma_f32_32x32x16_bf16 {t16(Sb(i))}, {q4(K+4*(i%16))}, {q4(Q)}, {CM}'
        def PV(i, h): return f'v_smfmac_f32_32x32x32_bf16 {t16(O)}, {q4(V+8*(i%16)+4*h)}, v[{Sb(i)+8*h}:{Sb(i)+8*h+7}], v{vIDX}'
        def rd(st): return [f'ds_read_b64 {pr(O+8)}, v{vA8} offset:{L_ACCF+2048*st}', f'ds_read_b128 {q4(O)}, v{vA16} offset:{L_ACCD+8192*st}', f'ds_read_b128 {q4(O+4)}, v{vA16} offset:{L_ACCD+8192*st+1024}']
        def wr(st): return [f'ds_write_b128 v{vA16}, {q4(O)} offset:{L_ACCD+8192*st}', f'ds_write_b128 v{vA16}, {q4(O+4)} offset:{L_ACCD+8192*st+1024}', f'ds_write_b64 v{vA8}, {pr(O+8)} offset:{L_ACCF+2048*st}']
        nl = lambda i: 3 if self.masked(i) else 2
        cov = [-1]
        def plain(p, i):
            e = [E(i, r) for r in range(16)]
            w = []; sw = []; ld = []
            if p == 0:
                KR = opt('kr', 3)
                issued = sum(nl(t) for t in range(min(16, KR * i + NUP)))
                VW = opt('vw', 4)
                if i > cov[0]:
                    last = i if i < opt('vw1', 2) else min(15, i + VW - 1)
                    cov[0] = last
                    needed = sum(nl(t) for t in range(last + 1)) + (1 if last < 15 else 0)
                    assert issued >= needed
                    w = [f's_waitcnt vmcnt({issued - needed})']
                if not self.masked(i): sw = [f'v_permlane16_swap_b32 v{V+8*i+r}, v{V+8*i+4+r}' for r in range(4)]
                for t in range(KR * i + NUP, min(16, KR * (i + 1) + NUP)):
                    ld += [self.kvload(R, t)]
                    if t == 15: ld += [f'ds_write_b32 v{vS}, v{vONE} offset:{F_A1}']
            qk = [QK(i + 1)]
            if i == 15:
                if p < 7: w += ['s_waitcnt lgkmcnt(0)']
                else: qk = []
            if i == 14 and p < 7:
                if p % 2 == 1: ld += [f'v_add_u32 v{vQA}, s{sK[p//2][1]}, v{vL16}']
                ld += [f'ds_read_b128 {q4(Q)}, v{vQA} offset:{L_QF + 4096*((p+1)%2)}']
                if p in (1, 6): ld += [f'ds_read_b32 v{vT}, v{vF} offset:{F_S[0] if p == 1 else F_S[9]}']
                if p == 6: ld += [f'ds_read_b32 v{vEP}, v{vF} offset:{F_XC}']
            if i == 15 and p in (1, 6):
                sw = [f'v_cmp_ne_u32 vcc, 1, v{vT}'] + ([f'v_readfirstlane_b32 s{sXC}, v{vEP}'] if p == 6 else [])
                ld = [f's_cbranch_vccnz L_check{p}', f'L_checked{p}:']
            if p == 7 and opt('pre', 1) and 'nosvc' not in OPT and 'stop' not in OPT:
                P0 = opt('pre0', 6)
                if i == P0 - 1: ld += [f'ds_read_b32 v{vT}, v{vF} offset:{F_S[5]}']
                if i == P0: ld += [f's_waitcnt lgkmcnt(0)\nv_cmp_eq_u32 vcc, 0, v{vT}\ns_cmp_eq_u64 vcc, 0\ns_cselect_b32 s{sPRE}, 1, 0']
                if i == opt('rel', 15): ld += [f'ds_write_b32 v{vS}, v{vONE} offset:{F_AX}']
                grp = []
                k = i - P0 - 1
                if 0 <= k < 4: grp = [self.wo_read(st, vLN) for st in range(4 * k, 4 * k + 4)]; top = 4 * k + 3
                if 4 <= k < 8: grp = [self.o_load((k - 3) % 4)]; top = 16 + 4 * (k - 4) + 3
                if grp:
                    assert top // 3 < i, (top, i)
                    L = a.label('PF')
                    ld += [f's_cmp_eq_u32 s{sPRE}, 0\ns_cbranch_scc1 {L}'] + grp + [f'{L}:']
            seq = e[0:2] + ([] if (p == 0 and i == 0) else [PV(i - 1, 1)]) + e[2:5] + w + qk + sw + e[5:7] + ld + e[7:PP] + [PV(i, 0)] + e[PP:16]
            for x in seq: a(x)
        a(f's_setprio {opt("aprio", 1)}')
        a(f's_waitcnt vmcnt({sum(nl(t) for t in range(NUP)) - 1}) lgkmcnt(0)')
        a(QK(0))
        NW = opt('nw', 3)
        for p in range(8):
            if p == 0:
                plain(0, 0); plain(0, 1)
            else:
                e = [E(0, r) for r in range(16)]
                for x in e[0:2] + [PV(15, 1)] + e[2:5] + [QK(1)] + e[5:8]: a(x)
                so, si = (p - 1) % 2, p % 2
                if p < 7:
                    for x in [wr(so)[0], f'v_mov_b32 v{O+9}, {p+1}', wr(so)[1], wr(so)[2]]: a(x)
                else:
                    self.publish(R, 0, F_AX)
                if p % 2 == 0: a(f'v_add_u32 v{vA8}, s{sK[p//2-1][0]}, v{vL8}\nv_add_u32 v{vA16}, s{sK[p//2-1][2]}, v{vL16}')
                if p == 1:
                    for r in range(0, 8, 2): a(f'v_pk_mul_f32 {pr(O+r)}, {pr(O+10)}, {pr(O+10)}')
                    a(f'v_mov_b32 v{O+8}, 0')
                    for x in e[8:PP] + [PV(0, 0)] + e[PP:16]: a(x)
                    plain(p, 1)
                else:
                    for x in rd(si) + e[8:16]: a(x)
                    e = [E(1, r) for r in range(16)]
                    for x in e[0:NW]: a(x)
                    a(f's_waitcnt lgkmcnt(0)\nv_cmp_gt_u32 vcc, {p}, v{O+9}')
                    a(e[NW])
                    a(f's_cbranch_vccnz L_hw{p}')
                    a(f'L_hd{p}:')
                    n = NW + 1
                    for x in [PV(0, 0)] + e[n:n+3] + [PV(0, 1)] + e[n+3:n+6] + [QK(2)] + e[n+6:n+9] + [PV(1, 0)] + e[n+9:16]: a(x)
            for i in range(2, 16):
                plain(p, i)
            if p == 0: self.stamp(7)
            if 'phs' in OPT: a(f's_memtime s[98:99]\ns_memrealtime s[{16+4*p}:{17+4*p}]\ns_waitcnt lgkmcnt(0)\ns_mov_b32 s{17+4*p}, s98')
        a('s_nop 0')
        a(PV(15, 1))
        a(f's_branch L_attn_epi')
        for p in range(2, 8):
            a(f'L_hw{p}:')
            a(f's_mov_b32 s{sCNT}, {SPIN}')
            a(f'L_hl{p}:')
            a(f's_sleep 1')
            for x in rd(p % 2): a(x)
            a(f's_waitcnt lgkmcnt(0)\nv_cmp_gt_u32 vcc, {p}, v{O+9}\ns_cbranch_vccz L_hd{p}\ns_sub_u32 s{sCNT}, s{sCNT}, 1\ns_cbranch_scc0 L_hl{p}\ns_branch L_hd{p}')

    def attn_loop(self, R, slow):
        a = self.a
        K, V, S0, O, Q = R['K'], R['V'], R['S0'], R['O'], R['Q']
        vIDX, vA16, vA8, vQA, vL8, vM = R['vIDX'], R['vA16'], R['vA8'], R['vQA'], R['vL8'], R['vM']
        sf = '_s' if slow else '_f'
        PH0 = 16 if slow else 0
        NUP = opt('nup', 6)
        def Sb(i): return S0 + 16 * (i % 2)
        def E(i, r):
            s = Sb(i) + r
            return (f'v_sub_f32 v{s}, v{s}, v{vM}\n' if slow else '') + f'v_exp_f32 v{s}, v{s}'
        def QK(i): return f'v_mfma_f32_32x32x16_bf16 {t16(Sb(i))}, {q4(K+4*(i%16))}, {q4(Q)}, 0'
        def PV(i, h): return f'v_smfmac_f32_32x32x32_bf16 {t16(O)}, {q4(V+8*(i%16)+4*h)}, v[{Sb(i)+8*h}:{Sb(i)+8*h+7}], v{vIDX}'
        rd = [f'ds_read_b64 {pr(O+8)}, v{vA8} offset:{L_ACCF}', f'ds_read_b128 {q4(O)}, v{vA16} offset:{L_ACCD}', f'ds_read_b128 {q4(O+4)}, v{vA16} offset:{L_ACCD+1024}']
        wr = [f'ds_write_b128 v{vA16}, {q4(O)} offset:{L_ACCD}', f'ds_write_b128 v{vA16}, {q4(O+4)} offset:{L_ACCD+1024}', f'ds_write_b64 v{vA8}, {pr(O+8)} offset:{L_ACCF}']
        def getm():
            if slow:
                a(f'v_lshrrev_b32 v{vT}, 2, v{vL16}\nv_and_b32 v{vT}, 0x7c, v{vT}\ns_lshl_b32 s{sT0}, s{sTJ}, 7\ns_add_u32 s{sT0}, s{sT0}, {L_MX}\nv_add_u32 v{vT}, s{sT0}, v{vT}')
                a(f'ds_read_b32 v{vM}, v{vT}\ns_waitcnt lgkmcnt(0)')
        nl = lambda i: 3 if self.masked(i) else 2
        def plain(i, ph0=False):
            e = [E(i, r) for r in range(16)]
            w = []; sw = []; ld = []
            if ph0 and not slow:
                issued = sum(nl(t) for t in range(min(16, i + NUP)))
                needed = sum(nl(t) for t in range(i + 1)) + (1 if i < 15 else 0)
                w = [f's_waitcnt vmcnt({issued - needed})']
                if not self.masked(i): sw = [f'v_permlane16_swap_b32 v{V+8*i+r}, v{V+8*i+4+r}' for r in range(4)]
                if i + NUP < 16: ld = [self.kvload(R, i + NUP)]
                if i + NUP == 15: ld += [f'ds_write_b32 v{vS}, v{vONE} offset:{F_A1}']
            if i == 15: w += ['s_waitcnt lgkmcnt(0)']
            seq = e[0:2] + ([] if (ph0 and i == 0) else [PV(i - 1, 1)]) + e[2:5] + w + [QK(i + 1)] + sw
            if i == 14:
                seq += [f's_add_u32 s{sT1}, s{sPH}, 1\ns_lshr_b32 s{sT2}, s{sT1}, 1\ns_sub_u32 s{sT2}, s{sSW}, s{sT2}', e[5],
                        f's_and_b32 s{sT2}, s{sT2}, 3\ns_and_b32 s{sT1}, s{sT1}, 1\ns_lshl_b32 s{sT1}, s{sT1}, 2', e[6],
                        f's_add_u32 s{sT2}, s{sT2}, s{sT1}\ns_lshl_b32 s{sT0}, s{sT2}, 10', e[7], f'v_add_u32 v{vQA}, s{sT0}, v{vL16}', e[8],
                        f'ds_read_b128 {q4(Q)}, v{vQA} offset:{L_QF}'] + e[9:11]
            else:
                seq += e[5:11]
            seq += [PV(i, 0)] + e[11:13] + ld + e[13:16]
            for x in seq: a(x)
        a(f's_setprio {opt("aprio", 1)}')
        getm()
        a(f's_waitcnt vmcnt({sum(nl(t) for t in range(NUP)) - 1}) lgkmcnt(0)')
        a(QK(0))
        if slow:
            plain(0, True); plain(1)
            a(f's_branch L_mid{sf}')
        else:
            for i in range(16): plain(i, True)
            self.stamp(7)
        a('.p2align 6')
        a(f'L_loop{sf}:')
        a(f's_add_u32 s{sPH}, s{sPH}, 1\ns_mov_b32 s{sTJ}, s{sT2}')
        getm()
        e = [E(0, r) for r in range(16)]
        for x in e[0:2] + [PV(15, 1), e[2], f's_add_u32 s{sT1}, s{sPH}, 1', e[3], f's_lshl_b32 s{sT3}, s{sTJ}, 9', e[4], QK(1), f's_lshl_b32 s{sT4}, s{sTJ}, 11', e[5], e[6],
                           f's_cmp_eq_u32 s{sPH}, {PH0 + 7}', e[7], f's_cbranch_scc1 L_finx{sf}',
                           wr[0], f'v_mov_b32 v{O+9}, s{sT1}', e[8], wr[1], e[9], wr[2]]: a(x)
        a(f'L_finxd{sf}:')
        for x in [f'v_add_u32 v{vA8}, s{sT3}, v{vL8}', f'v_add_u32 v{vA16}, s{sT4}, v{vL16}', rd[0], e[10], rd[1], e[11], rd[2]] + e[12:16]: a(x)
        e0 = e
        e = [E(1, r) for r in range(16)]
        NW = opt('nw', 6)
        for x in e[0:NW]: a(x)
        a(f's_waitcnt lgkmcnt(0)\nv_cmp_gt_u32 vcc, s{sPH}, v{O+9}\ns_cbranch_vccnz L_hw{sf}')
        a(f'L_hd{sf}:')
        for x in [PV(0, 0)] + e[NW:NW+3] + [PV(0, 1)] + e[NW+3:NW+6] + [QK(2)] + e[NW+6:NW+9] + [PV(1, 0)] + e[NW+9:16]: a(x)
        a(f'L_mid{sf}:')
        for i in range(2, 16):
            plain(i)
        a(f's_cmp_lt_u32 s{sPH}, {PH0 + 7}\ns_cbranch_scc1 L_loop{sf}')
        a(PV(15, 1))
        a(f's_nop 10\ns_branch L_end{sf}')
        a(f'L_finx{sf}:')
        a(e0[8]); a(e0[9])
        self.publish(R, 0, F_AX)
        a(f's_branch L_finxd{sf}')
        a(f'L_hw{sf}:')
        a(f's_mov_b32 s{sCNT}, {SPIN}')
        a(f'L_hl{sf}:')
        a(f's_sleep 1')
        for x in rd: a(x)
        a(f's_waitcnt lgkmcnt(0)\nv_cmp_gt_u32 vcc, s{sPH}, v{O+9}\ns_cbranch_vccz L_hd{sf}\ns_sub_u32 s{sCNT}, s{sCNT}, 1\ns_cbranch_scc0 L_hl{sf}\ns_branch L_hd{sf}')
        a(f'L_end{sf}:')

    def oproj_pre(self):
        a = self.a
        a('s_setprio 3')
        self.sig(F_AX)
        a(f'v_lshrrev_b32 v241, 9, v{vL16}\nv_bfe_u32 v243, v{vL16}, 2, 7\nv_lshl_add_u32 v243, v241, 14, v243\nv_mov_b32 v240, 0\nv_mov_b32 v241, 0')
        a(f's_and_b32 s{sT0}, s{sOW}, 0xc00\ns_lshl_b32 s{sT0}, s{sT0}, 1\nv_add_u32 v242, s{sT0}, v{vL16}\ns_xor_b32 s{sT0}, s{sT0}, 0x1000\nv_add_u32 v245, s{sT0}, v{vL16}\nv_xor_b32 v246, 8, v{vS}')

    def oproj(self):
        a = self.a
        vZ, vOA, vXW, vXR, vP = 240, 243, 242, 245, 246
        OA = [192, 208]
        sPEND, sKH, sOUT = sT3, sT1, sT5
        order = (1, 2, 3, 0)
        for h in range(2): a(f'v_mfma_f32_32x32x8_bf16 {t16(OA[h])}, {pr(vZ)}, {pr(vZ)}, 0')
        loads = lambda q: a(self.o_load(q))
        def proc(q, lab):
            R_ = [self.OF(q, n) + r for n in range(4) for r in range(4)]
            a(f'v_max3_u32 v{vT}, v{R_[0]}, v{R_[1]}, v{R_[2]}')
            for r in range(3, 15, 2): a(f'v_max3_u32 v{vT}, v{R_[r]}, v{R_[r+1]}, v{vT}')
            a(f'v_max_u32 v{vT}, v{R_[15]}, v{vT}\nv_cmp_eq_u32 vcc, -1, v{vT}\ns_cbranch_vccnz {lab}')
            for n in range(4):
                a(f'v_mfma_f32_32x32x16_bf16 {t16(OA[q//4])}, {q4(self.OF(q, n))}, {q4(self.WF(4*(q%4)+n))}, {t16(OA[q//4])}')
            a(f's_bitset0_b32 s{sPEND}, {q}')
            a(f'{lab}:')
        if opt('tail2', 0):
            def retry(h):
                a(f'L_oretry{h}:')
                a(f's_and_b32 s{sT0}, s{sPEND}, {15 << (4*h)}\ns_cbranch_scc0 L_odone{h}\ns_sub_u32 s{sCNT}, s{sCNT}, 1\ns_cbranch_scc1 L_odone{h}')
                for q in range(4 * h, 4 * h + 4):
                    a(f's_bitcmp0_b32 s{sPEND}, {q}\ns_cbranch_scc1 L_ol_{q}')
                    loads(q)
                    a(f'L_ol_{q}:')
                a('s_waitcnt vmcnt(0)')
                for q in range(4 * h, 4 * h + 4):
                    a(f's_bitcmp0_b32 s{sPEND}, {q}\ns_cbranch_scc1 L_o2_{q}')
                    proc(q, f'L_o2_{q}')
                a(f's_branch L_oretry{h}')
                a(f'L_odone{h}:')
            fl = {0: '', 1: ' sc1', 2: ' nt'}[opt('ofl', 2)]
            def send(h):
                a(f's_nop 7\ns_bitcmp1_b32 s{sSW}, 1\ns_cbranch_scc1 L_sh{h}')
                for kh in range(2):
                    sd = OA[h] + 8 - 8 * kh
                    a(f'ds_write_b128 v{vXW}, {q4(sd)} offset:{L_ACCD+8192*h}\nds_write_b128 v{vXW}, {q4(sd+4)} offset:{L_ACCD+8192*h+1024}')
                    self.sig(F_OX + 16 * h)
                    if kh == 0: a(f's_branch L_sd{h}\nL_sh{h}:')
                    else:
                        for r in range(0, 8, 2): a(f'v_pk_mov_b32 {pr(OA[h]+r)}, {pr(OA[h]+8+r)}, {pr(OA[h]+8+r)} op_sel:[0,1]')
                a(f'L_sd{h}:')
            def finish(h):
                self.wait(F_OX + 16 * h, sleep=0, va=vP)
                t = OA[h] + 8
                a(f'ds_read_b128 {q4(t)}, v{vXR} offset:{L_ACCD+8192*h}\nds_read_b128 {q4(t+4)}, v{vXR} offset:{L_ACCD+8192*h+1024}')
                for r in range(8):
                    if r % 4 == 0: a(f's_waitcnt lgkmcnt({1 - r//4})')
                    a(f'v_add_f32 v{t+r}, v{t+r}, v{OA[h]+r}\ns_add_u32 s{sT0}, s{sOUT}, {((r % 4) + 8 * (r // 4) + 32 * h) * 4096}')
                    if 'noo' not in OPT: a(f'buffer_store_dword v{t+r}, v{vOA}, s[{SOUT}:{SOUT+3}], s{sT0} offen{fl}')
            def verify(q):
                R_ = [self.OF(q, n) + r for n in range(4) for r in range(4)]
                if opt('vlite', 0): return [f'v_max3_u32 v{vT}, v{R_[3]}, v{R_[7]}, v{R_[11]}', f'v_max_u32 v{vT}, v{R_[15]}, v{vT}', f'v_cmp_eq_u32 vcc, -1, v{vT}']
                return [f'v_max3_u32 v{vT}, v{R_[0]}, v{R_[1]}, v{R_[2]}'] + [f'v_max3_u32 v{vT}, v{R_[r]}, v{R_[r+1]}, v{vT}' for r in range(3, 15, 2)] + [f'v_max_u32 v{vT}, v{R_[15]}, v{vT}', f'v_cmp_eq_u32 vcc, -1, v{vT}']
            tails = []
            def pproc(q, nxt, wait=None):
                v = ([wait] if wait else []) + (verify(nxt) if nxt is not None else [])
                a(f's_cbranch_vccnz L_ps{q}')
                k = (len(v) + 2) // 3
                for n in range(4):
                    a(f'v_mfma_f32_32x32x16_bf16 {t16(OA[q//4])}, {q4(self.OF(q, n))}, {q4(self.WF(4*(q%4)+n))}, {t16(OA[q//4])}')
                    if n == 0: a(f's_bitset0_b32 s{sPEND}, {q}')
                    else:
                        for x in v[(n - 1) * k:n * k]: a(x)
                a(f'L_pj{q}:')
                tails.append((q, v))
            a(f's_mov_b32 s{sPEND}, 0xff\ns_cmp_eq_u32 s{sPRE}, 1\ns_cbranch_scc1 L_prej')
            self.wait(F_S[5], sleep=1)
            self.wait(F_AY, sleep=0)
            for q in order: loads(q)
            for st in range(16): a(self.wo_read(st, vLN))
            a('s_waitcnt vmcnt(0)')
            a('L_prej:')
            a('s_waitcnt vmcnt(1) lgkmcnt(0)')
            NX = opt('nx', 2)
            for x in verify(1): a(x)
            for k in range(NX): pproc(order[k], order[k + 1] if k + 1 < NX else None)
            self.wait(F_AY, sleep=0)
            self.stamp(11)
            loads(5); loads(6)
            if NX < 4:
                for x in verify(order[NX]): a(x)
            rest = [7, 4]
            for k in range(NX, 4):
                pproc(order[k], order[k + 1] if k < 3 else None)
                if rest: loads(rest.pop(0))
            for q in rest: loads(q)
            self.srd(SOUT, P(14), 2048 * 4096)
            a(f's_lshr_b32 s{sKH}, s{sSW}, 1\ns_mov_b32 s{sCNT}, 50000')
            a(f's_lshl_b32 s{sOUT}, s{sRB}, 18\ns_lshl_b32 s{sT0}, s{sCG}, 1\ns_and_b32 s{sT2}, s{sWV}, 1\ns_add_u32 s{sT0}, s{sT0}, s{sT2}\ns_lshl_b32 s{sT0}, s{sT0}, 7\ns_add_u32 s{sOUT}, s{sOUT}, s{sT0}\ns_lshl_b32 s{sT0}, s{sKH}, 16\ns_add_u32 s{sOUT}, s{sOUT}, s{sT0}')
            retry(0)
            send(0)
            self.stamp(12)
            a('s_waitcnt vmcnt(12)')
            for x in verify(5): a(x)
            for k, q in enumerate(order):
                pproc(4 + q, 4 + order[k + 1] if k < 3 else None, f's_waitcnt vmcnt({8 - 4*k})' if k < 3 else None)
            a(f's_cmp_eq_u32 s{sPEND}, 0\ns_cbranch_scc1 L_ofast')
            finish(0)
            a(f's_mov_b32 s{sCNT}, 50000')
            retry(1)
            send(1)
            a('s_branch L_olast')
            a('L_ofast:')
            OA.append(OA[1])
            a(f's_nop 7\ns_bitcmp1_b32 s{sSW}, 1\ns_cbranch_scc1 L_shf')
            for kh in range(2):
                sd = OA[1] + 8 - 8 * kh
                a(f'ds_write_b128 v{vXW}, {q4(sd)} offset:{L_ACCD+8192}\nds_write_b128 v{vXW}, {q4(sd+4)} offset:{L_ACCD+8192+1024}')
                self.sig(F_OX + 16)
                if kh == 0: a('s_branch L_sdf\nL_shf:')
                else:
                    for r in range(0, 8, 2): a(f'v_pk_mov_b32 {pr(OA[1]+r)}, {pr(OA[1]+8+r)}, {pr(OA[1]+8+r)} op_sel:[0,1]')
            a('L_sdf:')
            finish(0)
            a('L_olast:')
            self.stamp(1)
            finish(1)
            self.end()
            for q, v in tails:
                a(f'L_ps{q}:')
                for x in v: a(x)
                a(f's_nop 0\ns_branch L_pj{q}')
            return
        a(f's_mov_b32 s{sPEND}, 0xff\ns_cmp_eq_u32 s{sPRE}, 0\ns_cbranch_scc1 L_nopre')
        a('s_waitcnt vmcnt(1) lgkmcnt(0)')
        proc(1, 'L_o0_1'); proc(2, 'L_o0_2')
        self.wait(F_AY, sleep=0)
        a('s_branch L_prej')
        a('L_nopre:')
        self.wait(F_S[5], sleep=1)
        self.wait(F_AY, sleep=0)
        for q in order: loads(q)
        for st in range(16): a(self.wo_read(st, vLN))
        a('s_waitcnt vmcnt(0) lgkmcnt(0)')
        proc(1, 'L_o0b_1'); proc(2, 'L_o0b_2')
        a('L_prej:')
        self.stamp(11)
        loads(5); loads(6)
        proc(3, 'L_o0_3')
        loads(7)
        proc(0, 'L_o0_0')
        loads(4)
        self.stamp(12)
        self.srd(SOUT, P(14), 2048 * 4096)
        a(f's_lshr_b32 s{sKH}, s{sSW}, 1\ns_mov_b32 s{sCNT}, 50000')
        a(f's_lshl_b32 s{sOUT}, s{sRB}, 18\ns_lshl_b32 s{sT0}, s{sCG}, 1\ns_and_b32 s{sT2}, s{sWV}, 1\ns_add_u32 s{sT0}, s{sT0}, s{sT2}\ns_lshl_b32 s{sT0}, s{sT0}, 7\ns_add_u32 s{sOUT}, s{sOUT}, s{sT0}\ns_lshl_b32 s{sT0}, s{sKH}, 17\ns_add_u32 s{sOUT}, s{sOUT}, s{sT0}')
        for k, q in enumerate(order):
            a(f's_waitcnt vmcnt({12 - 4*k})')
            proc(4 + q, f'L_o1_{q}')
        a('L_oretry:')
        a(f's_cmp_eq_u32 s{sPEND}, 0\ns_cbranch_scc1 L_odone\ns_sub_u32 s{sCNT}, s{sCNT}, 1\ns_cbranch_scc1 L_odone')
        for q in range(8):
            a(f's_bitcmp0_b32 s{sPEND}, {q}\ns_cbranch_scc1 L_ol_{q}')
            loads(q)
            a(f'L_ol_{q}:')
        a('s_waitcnt vmcnt(0)')
        for q in range(8):
            a(f's_bitcmp0_b32 s{sPEND}, {q}\ns_cbranch_scc1 L_o2_{q}')
            proc(q, f'L_o2_{q}')
        a('s_branch L_oretry')
        a('L_odone:')
        if self.stamps: a(f's_mov_b32 s{sST+14}, s{sCNT}')
        self.stamp(1)
        fl = {0: '', 1: ' sc1', 2: ' nt', 3: ' sc0 sc1', 4: ' sc1 nt', 5: ' sc0 nt', 6: ' sc0 sc1 nt'}[opt('ofl', 2)]
        a(f's_nop 7\ns_cmp_eq_u32 s{sKH}, 0\ns_cbranch_scc0 L_ohi')
        for kh in range(2):
            keep, send = OA[kh], OA[1 - kh]
            for q in range(4): a(f'ds_write_b128 v{vXW}, {q4(send+4*q)} offset:{L_ACCD + 8192*(q//2) + 1024*(q%2)}')
            self.sig(F_OX)
            self.wait(F_OX, sleep=0, va=vP)
            for q in range(4): a(f'ds_read_b128 {q4(4*q)}, v{vXR} offset:{L_ACCD + 8192*(q//2) + 1024*(q%2)}')
            for r in range(16):
                if r % 4 == 0: a(f's_waitcnt lgkmcnt({3 - r//4})')
                a(f'v_add_f32 v{r}, v{r}, v{keep+r}\ns_add_u32 s{sT0}, s{sOUT}, {((r % 4) + 8 * (r // 4)) * 4096}')
                if 'noo' not in OPT: a(f'buffer_store_dword v{r}, v{vOA}, s[{SOUT}:{SOUT+3}], s{sT0} offen{fl}')
            self.end()
            if kh == 0: a('L_ohi:')

    def kvproj(self):
        a = self.a
        vXA, vWA, vU, vO, vZ, D = 176, 177, 178, 179, 180, 184
        a(f's_lshr_b32 s{sT5}, s{sCG}, 1')
        a(f'v_and_b32 v{vT}, 15, v{vLN}\ns_lshl_b32 s{sT0}, s{sT5}, 4\nv_add_u32 v{vO}, s{sT0}, v{vT}\nv_mul_u32_u24 v{vXA}, 1040, v{vO}')
        a(f'v_lshrrev_b32 v{vU}, 4, v{vLN}\nv_lshl_add_u32 v{vXA}, v{vU}, 4, v{vXA}\nv_add_u32 v{vXA}, {L_A1}, v{vXA}')
        a(f'v_lshlrev_b32 v{vWA}, 3, v{vT}\nv_lshl_add_u32 v{vWA}, v{vU}, 8, v{vWA}\nv_and_b32 v181, 1, v{vU}\nv_lshl_add_u32 v{vWA}, v181, 7, v{vWA}\nv_xor_b32 v181, 128, v{vWA}\nv_add_u32 v{vWA}, {L_WKV}, v{vWA}\nv_add_u32 v181, {L_WKV}, v181')
        a(f's_and_b32 s{sT1}, s{sCG}, 1\ns_xor_b32 s{sT2}, s{sT1}, 1')
        a(f'v_lshrrev_b32 v{vO}, s{sT1}, v{vU}\nv_and_b32 v{vO}, 1, v{vO}\nv_lshlrev_b32 v{vO}, 9, v{vO}\nv_lshl_add_u32 v{vO}, v{vT}, 4, v{vO}')
        a(f'v_lshrrev_b32 v{vT}, s{sT2}, v{vU}\nv_and_b32 v{vT}, 1, v{vT}\nv_lshl_add_u32 v{vO}, v{vT}, 3, v{vO}')
        a(f's_lshl_b32 s{sT0}, s{sRB}, 1\ns_lshr_b32 s{sT2}, s{sT5}, 1\ns_add_u32 s{sT0}, s{sT0}, s{sT2}\ns_lshl_b32 s{sT0}, s{sT0}, 1\ns_add_u32 s{sT0}, s{sT0}, s{sT1}\ns_lshl_b32 s{sT0}, s{sT0}, 10')
        a(f's_and_b32 s{sT2}, s{sT5}, 1\ns_lshl_b32 s{sT2}, s{sT2}, 8\ns_add_u32 s{sT0}, s{sT0}, s{sT2}\ns_add_u32 s{sT3}, s{sT0}, {WS_KVIMG:#x}')
        a(f's_lshl_b32 s{sT4}, s{sRB}, 3\ns_add_u32 s{sT4}, s{sT4}, s{sCG}\ns_lshl_b32 s{sT4}, s{sT4}, {opt("fs", 6)}\ns_add_u32 s{sT4}, s{sT4}, {WS_KVFLAG:#x}')
        a(f'v_mov_b32 v{vZ}, 0')
        a(f's_lshl_b32 s{sT0}, s{sSW}, 8\nv_add_u32 v{vXA}, s{sT0}, v{vXA}\ns_lshl_b32 s{sT0}, s{sSW}, 12\nv_add_u32 v{vWA}, s{sT0}, v{vWA}\nv_add_u32 v181, s{sT0}, v181')
        a(f's_lshl_b32 s{sT0}, s{sSW}, 10\nv_add_u32 v{vU}, s{sT0}, v{vL16}')
        self.wait(F_L1, sleep=0)
        self.stamp(12)
        for s in range(4):
            b = 128 + 8 * s
            a(f'ds_read_b128 {q4(b)}, v{vXA} offset:{64*s}')
            a(f'ds_read_b64_tr_b16 {pr(b+4)}, v{vWA} offset:{1024*s}')
            a(f'ds_read_b64_tr_b16 {pr(b+6)}, v181 offset:{1024*s}')
        a(f's_bitcmp1_b32 s{sCG}, 0\ns_cbranch_scc1 L_kv_v')
        for kind in 'kv':
            for s in range(4):
                a(f's_waitcnt lgkmcnt({3 * (3 - s)})')
                b = 128 + 8 * s
                A, B = (q4(b + 4), q4(b)) if kind == 'k' else (q4(b), q4(b + 4))
                a(f'v_mfma_f32_16x16x32_bf16 {q4(D)}, {A}, {B}, {"0" if s == 0 else q4(D)}')
            if kind == 'k': a('s_branch L_kv_j\nL_kv_v:')
        a('L_kv_j:')
        a(f's_cmp_eq_u32 s{sSW}, 0\ns_cbranch_scc1 L_kv_0\ns_nop 5')
        a(f'ds_write_b128 v{vU}, {q4(D)} offset:{L_QF}')
        self.sig(F_S[4])
        a('s_branch L_nokv')
        a('L_kv_0:')
        self.sig(F_S[4])
        self.wait(F_S[4], sleep=0)
        for q in range(3): a(f'ds_read_b128 {q4(128+4*q)}, v{vL16} offset:{L_QF + 1024*(q+1)}')
        for q in range(3):
            a(f's_waitcnt lgkmcnt({2-q})\nv_pk_add_f32 {pr(D)}, {pr(D)}, {pr(128+4*q)}\nv_pk_add_f32 {pr(D+2)}, {pr(D+2)}, {pr(130+4*q)}')
        a(f'v_cvt_pk_bf16_f32 v188, v{D}, v{D+1}\nv_cvt_pk_bf16_f32 v189, v{D+2}, v{D+3}')
        a(f'buffer_store_dwordx2 v[188:189], v{vO}, s[{SWS}:{SWS+3}], s{sT3} offen sc1')
        a(f's_bitcmp1_b32 s{sCG}, 0\ns_cbranch_scc1 L_kv_v2')
        a(f'v_mul_f32 v190, v{D}, v{D}\nv_fmac_f32 v190, v{D+1}, v{D+1}\nv_fmac_f32 v190, v{D+2}, v{D+2}\nv_fmac_f32 v190, v{D+3}, v{D+3}')
        a('v_mov_b32 v191, v190\nv_permlane32_swap_b32 v190, v191\nv_add_f32 v190, v190, v191')
        a('v_mov_b32 v191, v190\nv_permlane16_swap_b32 v190, v191\nv_add_f32 v190, v190, v191')
        a('s_mov_b64 exec, 0xffff\ns_branch L_kv_fin')
        a('L_kv_v2:')
        a(f'v_max3_f32 v190, |v{D}|, |v{D+1}|, |v{D+2}|\nv_max_f32 v190, |v{D+3}|, v190')
        a(f's_mov_b32 s{sT1}, {f2u(2.0**50):#x}\nv_cmp_lt_f32 vcc, s{sT1}, v190\nv_mov_b32 v190, 0x7f800000\ns_mov_b64 exec, vcc')
        a('L_kv_fin:')
        a(f'ds_max_u32 v{vZ}, v190 offset:{F_KST}\ns_mov_b64 exec, -1\nds_read_b32 v183, v{vZ} offset:{F_KST}')
        a('s_waitcnt vmcnt(1)')
        self.get_tag()
        a(f's_getreg_b32 s{sT0}, hwreg(HW_REG_XCC_ID)\nv_mov_b32 v182, s{sTAG}\nv_mov_b32 v184, s{sT0}\nds_write_b32 v{vF}, v182 offset:{F_TAG}')
        self.stamp(13)

    def service(self):
        a = self.a
        self.cyc = False
        L1, L8, L16, L128, FF, WW, CC = 192, 194, 196, 198, 200, 202, 204
        DG = 206
        vXD, vXR, vXR2, vBD, vHA, vHB, vSX, vTW, vTR, vEA, vXS, vOA, vWI, vP8, vCK, vCS, vCK2, vCS2, vHF, vYW, vE0, vPF, vTG, vYR = range(214, 238)
        PRM = 238
        vC31, vHI, vU, vWA, vXA, vQ = 242, 243, 244, 245, 246, 247
        a('L_service:')
        a(f'v_mov_b32 v0, 0\nv_mov_b32 v1, 0\nv_mov_b32 v2, 0\nv_mov_b32 v3, 0')
        a(f's_lshl_b32 s{sT0}, s{sSW}, 10\nv_add_u32 v{vT}, s{sT0}, v{vL16}\nds_write_b128 v{vT}, v[0:3] offset:{L_ACCF}')
        a(f'v_lshlrev_b32 v{vT}, 3, v{vLN}\nds_write_b64 v{vT}, v[0:1]')
        a(f'v_and_b32 v{vC31}, 31, v{vLN}\nv_lshlrev_b32 v{vU}, 1, v{vC31}\nv_lshrrev_b32 v{vHI}, 5, v{vLN}')
        a('s_waitcnt lgkmcnt(0)')
        self.stamp(0)
        a('s_setprio 3')
        self.srd(SWS, P(16), WS_SIZE)
        a(f's_cmp_lg_u32 s{sSW}, 0\ns_cbranch_scc1 L_noepl')
        a(f'buffer_load_dword v{vEP}, off, s[{SWS}:{SWS+3}], 0 sc1')
        a('L_noepl:')
        a(f's_lshl_b32 s{sT0}, s{sPB}, 6')
        for k, p in enumerate((6, 7, 12)):
            self.srd(SA, P(p), 1024)
            a(f'buffer_load_ushort v{PRM+k}, v{vU}, s[{SA}:{SA+3}], s{sT0} offen')
        self.srd(SA, P(13), 1024)
        a(f's_lshl_b32 s{sT0}, s{sCG}, 7\ns_and_b32 s{sT1}, s{sWV}, 1\ns_lshl_b32 s{sT1}, s{sT1}, 6\ns_add_u32 s{sT0}, s{sT0}, s{sT1}')
        a(f'buffer_load_ushort v{PRM+3}, v{vU}, s[{SA}:{SA+3}], s{sT0} offen')
        a('s_barrier')
        self.common_regs()
        self.tr_parts(vTR, vU, vWA)
        a(f'v_lshl_add_u32 v{vTR}, v{vU}, 6, v{vTR}\nv_lshl_add_u32 v{vTR}, v{vHI}, 9, v{vTR}')
        a(f'v_lshl_add_u32 v{vWA}, v{vHI}, 10, v{vWA}\nv_add_u32 v{vWA}, {L_A2}, v{vWA}')
        a(f'v_mul_u32_u24 v{vCK}, 1040, v{vC31}\nv_lshl_add_u32 v{vCK}, v{vHI}, 4, v{vCK}\nv_add_u32 v{vCK}, {L_A1}, v{vCK}')
        a(f's_lshr_b32 s{sT0}, s{sSW}, 1\ns_mul_i32 s{sT0}, s{sT0}, {32*1040}\nv_add_u32 v{vXA}, s{sT0}, v{vCK}')
        a(f's_lshl_b32 s{sT0}, s{sSW}, 11\nv_add_u32 v{vQ}, s{sT0}, v{vL16}')
        sXB, sXL, sTP, sCT = 73, 74, 75, 80
        a(f's_lshl_b32 s{sXB}, s{sTB}, 2\ns_add_u32 s{sXB}, s{sXB}, s{sSW}\ns_lshl_b32 s{sXB}, s{sXB}, 15')
        a(f's_mul_i32 s{sXL}, s{sSW}, {XW}\ns_add_u32 s{sXL}, s{sXL}, {L_A2}')
        a(f's_lshl_b32 s{sTP}, s{sRB}, 1\ns_lshr_b32 s{sT0}, s{sSW}, 1\ns_add_u32 s{sTP}, s{sTP}, s{sT0}')
        a(f's_lshl_b32 s{sCT}, s{sCG}, 1\ns_and_b32 s{sT0}, s{sSW}, 1\ns_add_u32 s{sCT}, s{sCT}, s{sT0}')
        a(f'v_lshlrev_b32 v{vT}, 3, v{vHI}\nv_xor_b32 v{vT}, v{vC31}, v{vT}\nv_lshlrev_b32 v{vT}, 4, v{vT}\nv_lshl_add_u32 v{vXD}, v{vHI}, 13, v{vT}\nv_lshl_add_u32 v{vBD}, v{vHI}, 10, v{vT}')
        def tmap(i):
            r = 4 * (i >> 3) + (i & 3)
            return 16 * ((i >> 2) & 1) + (r >> 1) + 8 * (r & 1)
        def xdma(half, ms=range(16)):
            for m in ms:
                a(f's_xor_b32 s{sT0}, s{sXM}, {m}\ns_mul_i32 s{sT0}, s{sT0}, 1040\ns_add_u32 m0, s{sT0}, s{sXL}\ns_xor_b32 s{sT0}, s{sXG}, {tmap(2*m)*1024 + 512*half}')
                a(f'buffer_load_dwordx4 v{vXD}, s[{SA}:{SA+3}], s{sT0} offen lds')
        sXM, sXG, sHB = 50, 51, 81
        a(f's_and_b32 s{sXM}, s{sPB}, 14\ns_and_b32 s{sT0}, s{sPB}, 2\ns_lshl_b32 s{sT0}, s{sT0}, 3\ns_lshr_b32 s{sT1}, s{sPB}, 2\ns_lshl_b32 s{sT1}, s{sT1}, 1\ns_add_u32 s{sT0}, s{sT0}, s{sT1}\ns_lshl_b32 s{sT0}, s{sT0}, 10')
        a(f's_xor_b32 s{sHB}, s{sPB}, s{sTB}\ns_and_b32 s{sHB}, s{sHB}, {opt("hrot", 1)}\ns_lshl_b32 s{sHB}, s{sHB}, 9\ns_add_u32 s{sT0}, s{sT0}, s{sHB}\ns_add_u32 s{sXG}, s{sXB}, s{sT0}')
        a(f'v_lshrrev_b32 v{vU}, 1, v{vC31}\nv_mul_u32_u24 v{vU}, 1040, v{vU}\nv_lshl_add_u32 v{vU}, v{vHI}, 4, v{vU}\nv_and_b32 v{vT}, 1, v{vC31}')
        a(f'v_mul_u32_u24 v{vHA}, 640, v{vT}\nv_mul_u32_u24 v{vHB}, 384, v{vT}\nv_add_u32 v{vHA}, v{vHA}, v{vU}\nv_add_u32 v{vHB}, v{vHB}, v{vU}')
        a(f'v_add_u32 v{vXR}, s{sXL}, v{vHA}\nv_add_u32 v{vXR2}, s{sXL}, v{vHB}\nv_add_u32 v{vHA}, {L_A1}, v{vHA}\nv_add_u32 v{vHB}, {L_A1}, v{vHB}')
        a(f'v_lshlrev_b32 v{vSX}, 3, v{vLN}\nv_add_u32 v{vSX}, s{sXL}, v{vSX}')
        a(f'v_lshlrev_b32 v{vP8}, 3, v{vC31}\nv_add_u32 v{vP8}, {L_A2}, v{vP8}')
        a(f'v_lshlrev_b32 v{vTW}, 6, v{vC31}\nv_lshl_add_u32 v{vTW}, v{vHI}, 5, v{vTW}\nv_add_u32 v{vTW}, s{sXL}, v{vTW}\nv_add_u32 v{vTR}, s{sXL}, v{vTR}')
        a(f'v_lshlrev_b32 v{vEA}, 4, v{vC31}\nv_xor_b32 v{vT}, 1, v{vHI}\nv_lshl_add_u32 v{vEA}, v{vT}, 12, v{vEA}')
        a(f'v_lshlrev_b32 v{vXS}, 10, v{vC31}\nv_lshl_add_u32 v{vXS}, v{vHI}, 4, v{vXS}')
        a(f'v_lshlrev_b32 v{vOA}, 2, v{vC31}\nv_lshl_add_u32 v{vOA}, v{vHI}, 14, v{vOA}')
        self.wimg_lane_addr(vWI, vT)
        a(f's_and_b32 s{sT0}, s{sSW}, 1\ns_mul_i32 s{sT1}, s{sT0}, {512 - 32*1040}\ns_add_u32 s{sT1}, s{sT1}, {32*1040}\nv_add_u32 v{vCS}, s{sT1}, v{vCK}')
        a(f's_mul_i32 s{sT1}, s{sT0}, {32*1040 + 512}\nv_add_u32 v{vCK}, s{sT1}, v{vCK}\nv_add_u32 v{vCK2}, {L_A2 - L_A1}, v{vCK}\nv_add_u32 v{vCS2}, {L_A2 - L_A1}, v{vCS}')
        a(f'v_and_b32 v{vHF}, 15, v{vLN}\nv_lshlrev_b32 v{vHF}, 7, v{vHF}\nv_lshlrev_b32 v{vPF}, 6, v{vLN}')
        a(f'v_add_u32 v{vYW}, s{sXL}, v{vL16}\ns_xor_b32 s{sT0}, s{sSW}, 1\ns_mul_i32 s{sT0}, s{sT0}, {XW}\ns_add_u32 s{sT0}, s{sT0}, {L_A2}\nv_add_u32 v{vYR}, s{sT0}, v{vL16}')
        self.kvproj()
        a('L_nokv:')
        a(f's_cmp_eq_u32 s{sSW}, 0\ns_cbranch_scc1 L_pw1\ns_waitcnt vmcnt(0)')
        a('L_pw1:')
        a(f'v_lshlrev_b32 v0, 16, v{PRM}\nv_lshlrev_b32 v1, 16, v{PRM+1}\nv_lshlrev_b32 v2, 16, v{PRM+2}')
        LOG2E = f2u(math.log2(math.e))
        a(f'v_mul_f32 v2, {LOG2E:#x}, v2\nv_exp_f32 v2, v2\nv_cvt_pk_bf16_f32 v2, v2, v2\nv_lshlrev_b32 v2, 16, v2')
        a(f'v_mul_f32 v4, v2, v0\nv_mul_f32 v5, v2, v1\nv_mul_f32 v4, {LOG2E:#x}, v4\nv_mul_f32 v5, {f2u(-1/(2*math.pi)):#x}, v5')
        def power(d, n):
            a(f'v_mul_f32 v6, {n}, v4\nv_mul_f32 v7, {n}, v5\nv_exp_f32 v6, v6\nv_fract_f32 v7, v7\nv_cos_f32 v8, v7\nv_sin_f32 v9, v7\nv_mul_f32 v{d}, v6, v8\nv_mul_f32 v{d+1}, v6, v9')
        power(L1, '1.0')
        power(L8, f'{f2u(8.0):#x}')
        power(L16, f'{f2u(16.0):#x}')
        power(L128, f'{f2u(128.0):#x}')
        a(f'v_cvt_f32_u32 v11, v{vHI}\nv_mul_f32 v11, {f2u(1024.0):#x}, v11')
        power(FF, 'v11')
        a(f's_lshl_b32 s{sT0}, s{sSW}, 1\nv_add_u32 v11, s{sT0}, v{vHI}\nv_cvt_f32_u32 v11, v11\nv_mul_f32 v11, {f2u(16.0):#x}, v11')
        power(WW, 'v11')
        a(f'v_add_f32 v6, -1.0, v{L1}\nv_mul_f32 v7, v0, v0\nv_fmac_f32 v7, v1, v1\nv_rcp_f32 v7, v7\nv_add_f32 v7, v7, v7')
        a(f'v_mul_f32 v8, v6, v0\nv_fma_f32 v8, -v{L1+1}, v1, v8\nv_mul_f32 v9, v6, v1\nv_fma_f32 v9, -v{L1+1}, v0, -v9\nv_mul_f32 v{CC}, v8, v7\nv_mul_f32 v{CC+1}, v9, v7')
        a(f'v_and_b32 v6, 1, v{vLN}\nv_lshlrev_b32 v6, 4, v6\nv_lshlrev_b32 v3, v6, v{PRM+3}')
        a(f'v_lshrrev_b32 v6, 1, v{vC31}\nv_lshlrev_b32 v7, 2, v{vHI}\nv_sub_u32 v6, v6, v7')
        for q in range(8):
            a(f'v_cmp_eq_u32 vcc, {8*(q//4) + q%4}, v6\nv_cndmask_b32 v{DG+q}, 0, v3, vcc')
        LC = PRM
        a(f'v_mov_b32 v{LC}, 0\nv_mov_b32 v{LC+1}, 0')
        WT, D = 128, 160
        def kvflag():
            a(f's_cmp_lg_u32 s{sSW}, 0\ns_cbranch_scc1 L_nokvf')
            a('s_waitcnt vmcnt(0)')
            a(f's_mov_b64 exec, {(1 << (1 << (opt("fs", 6) - 4))) - 1:#x}\nbuffer_store_dwordx4 v[182:185], v{vL16}, s[{SWS}:{SWS+3}], s{sT4} offen sc1\ns_mov_b64 exec, -1')
            self.sig(F_KVD, va=vF)
            self.stamp(14)
            a('L_nokvf:')
        FP = opt('fp', 16)
        if FP < 0:
            a('s_waitcnt lgkmcnt(0)'); kvflag()
        self.wait(F_L2, sleep=1)
        self.stamp(1)
        vXQ = [vU, 186, 187, 191]
        a(f's_and_b32 s{sT1}, s{sRB}, 3')
        for c in range(4): a(f's_xor_b32 s{sT0}, s{sT1}, {c}\ns_lshl_b32 s{sT0}, s{sT0}, 8\nv_add_u32 v{vXQ[c]}, s{sT0}, v{vXA}')
        def xr(st): a(f'ds_read_b128 {q4(4*st)}, v{vXQ[st//8]} offset:{32*(st%8)}')
        NPR = opt('npr', 16)
        if FP == 0: kvflag()
        for st in range(32 - NPR, 32): xr(st)
        if FP == 16: kvflag()
        lq = []
        def wr(st):
            b = WT + 4 * (st % 8)
            if st < 32 - NPR: xr(st); lq.append(st)
            a(f'ds_read_b64_tr_b16 {pr(b)}, v{vWA} offset:{2048*st}\nds_read_b64_tr_b16 {pr(b+2)}, v{vWA} offset:{2048*st+512}')
            lq.extend([st, st])
        for s0, s1, fl in ((0, 16, F_L4), (16, 32, F_L6)):
            self.wait(fl, sleep=0)
            if s0 == 0:
                self.stamp(2)
            dp = 4 if s0 < 32 - NPR else 6
            for st in range(s0, s0 + dp): wr(st)
            for st in range(s0, s1):
                lq[:] = [x for x in lq if x > st]
                a(f's_waitcnt lgkmcnt({len(lq)})')
                a(f'v_mfma_f32_32x32x16_bf16 {t16(D)}, {q4(WT + 4*(st%8))}, {q4(4*st)}, {"0" if st == 0 else t16(D)}')
                if st + dp < s1: wr(st + dp)
            if s0 == 0:
                if FP == 32: kvflag()
                self.wait(F_KVD, sleep=0)
                self.sig(F_QA)
                a(f'ds_read_b32 v{vTG}, v{vF} offset:{F_TAG}')
        QS = f2u(0.25 * math.log2(math.e))
        a(f'v_mov_b32 v24, {QS:#x}')
        for r in range(8):
            a(f'v_pk_mul_f32 {pr(D+2*r)}, v[24:25], {pr(D+2*r)} op_sel:[0,0] op_sel_hi:[0,1]')
            a(f'v_cvt_pk_bf16_f32 v{16+r}, v{D+2*r}, v{D+2*r+1}')
            if r == 3: a(f'ds_write_b128 v{vQ}, v[16:19] offset:{L_QF}')
        a(f'ds_write_b128 v{vQ}, v[20:23] offset:{L_QF+1024}')
        self.sig(F_QP)
        self.stamp(3)
        a(f'v_mul_f32 v8, v{D}, v{D}\nv_mul_f32 v9, v{D+8}, v{D+8}')
        for r in range(1, 8): a(f'v_fmac_f32 v8, v{D+r}, v{D+r}\nv_fmac_f32 v9, v{D+8+r}, v{D+8+r}')
        a('v_permlane32_swap_b32 v8, v9\nv_add_f32 v8, v8, v9')
        a(f'v_mov_b32 v{vQ}, v8')
        if 'nosvc' in OPT:
            self.sig(F_S[0]); self.sig(F_S[9]); self.end(); return
        vCL = vXA
        HR_ = opt('hr', 0)
        a(f's_and_b32 s{sT0}, s{sCG}, {3 if HR_ else 0}\ns_lshl_b32 s{sT0}, s{sT0}, 7\nv_xor_b32 v{vCL}, s{sT0}, v{vL16}')
        SN = 180
        a(f'v_readfirstlane_b32 s{sTAG}, v{vTG}')
        a(f'v_mov_b32 v{SN}, -1\nv_mov_b32 v{SN+1}, -1\nv_mov_b32 v{SN+2}, -1\nv_mov_b32 v{SN+3}, -1\nv_mov_b32 v{SN+4}, 0\nv_mov_b32 v{SN+5}, 0\nv_mov_b32 v{SN+6}, v{vTG}\nv_mov_b32 v{SN+7}, 0')
        self.srd(SA, P(5), 2048 * 1024)
        self.srd(SB, P(8), 512 * 1024)
        self.srd(SC, P(9), 512 * 1024)
        self.stamp(11)
        def bdma(half, only=None):
            if half == 0: a(f's_mul_i32 s{sT1}, s{sSW}, {4*1040}\ns_lshl_b32 s{sT2}, s{sPB}, 15\ns_lshl_b32 s{sT3}, s{sSW}, 13\ns_add_u32 s{sT2}, s{sT2}, s{sT3}\ns_add_u32 s{sT2}, s{sT2}, s{sHB}')
            for pl, srd in ((0, SB), (1, SC)):
                for m in range(4):
                    if only is not None and only != 4 * pl + m: continue
                    a(f's_add_u32 m0, s{sT1}, {L_A1 + ((2*half + pl)*16 + m)*1040}\ns_xor_b32 s{sT0}, s{sT2}, {2048*m + 512*half}')
                    a(f'buffer_load_dwordx4 v{vBD}, s[{srd}:{srd+3}], s{sT0} offen lds')
        def xread(half):
            for s in range(16): a(f'ds_read_b128 {q4(64*half + 4*s)}, v{vXR2 if s & 4 else vXR} offset:{32*s}')
        def rowdma(srd, base, sg, n):
            for m in range(n):
                if m % 4 == 0: a(f's_add_u32 m0, s{sT1}, {base + m*1040}\ns_add_u32 s{sT0}, s{sg}, {1024*m}')
                else: a('s_add_u32 m0, m0, 16')
                a(f'buffer_load_dwordx4 v{vCL}, s[{srd}:{srd+3}], s{sT0} offen offset:{1024*(m%4)} lds')
        self.wait(F_A1, sleep=opt('a1s', 4))
        self.stamp(10)
        a(f'ds_read_b64 {pr(SN+8)}, v{SN+4} offset:{F_KMAX}')
        xdma(0, range(2)); a(f's_mov_b32 s{sT0}, {f2u(3400.0):#x}\ns_waitcnt lgkmcnt(0)')
        a(f'v_mul_f32 v{vT}, v{SN+8}, v{vQ}\nv_cmp_nge_f32 vcc, s{sT0}, v{vT}\nv_readfirstlane_b32 s{sXC}, v{SN+9}\ns_cmp_eq_u64 vcc, 0\ns_cselect_b32 s{sT0}, 1, 2\nv_mov_b32 v{vQ}, s{sT0}')
        a(f'ds_write_b32 v{vS}, v{vQ} offset:{F_S[0]}')
        bdma(0); xdma(0, range(2, 16))
        a('s_waitcnt vmcnt(0)')
        self.sig(F_S[1])
        self.stamp(4)
        xread(0)
        self.wait(F_S[1], sleep=1)
        self.stamp(5)
        GR, GI, BT = 128, 144, 160
        PD = 2 * opt('s1depth', 1)
        lq = []
        def bread(q):
            s, pl = q // 2, q % 2
            a(f'ds_read_b128 {q4(BT + 4*(q%4))}, v{vHB if s & 4 else vHA} offset:{((2*(s//16) + pl)*16)*1040 + 32*(s%16)}')
            lq.append(('b', q))
        a(f's_setprio {opt("gprio1", 0)}')
        for q in range(PD): bread(q)
        XQ = opt('xq', 21)
        for q in range(1, 64, 2):
            s = q // 2
            need = max([i for i, x in enumerate(lq) if x == ('b', q) or x == ('x', s)] + [-1])
            if need >= 0:
                a(f's_waitcnt lgkmcnt({len(lq) - 1 - need})')
                del lq[:need + 1]
            for pl, Gx in ((0, GR), (1, GI)):
                a(f'v_mfma_f32_32x32x16_bf16 {t16(Gx)}, {q4(4*s)}, {q4(BT + 4*((q-1+pl)%4))}, {"0" if s == 0 else t16(Gx)}')
            if q - 1 + PD == 32:
                a('s_setprio 3')
                self.wait(F_S[2], sleep=1); lq.clear()
                a(f's_setprio {opt("gprio1", 0)}')
                self.stamp(12)
            if XQ < q <= XQ + 32:
                sx = (q - XQ) // 2 - 1
                a(f'ds_read_b128 {q4(64 + 4*sx)}, v{vXR2 if sx & 4 else vXR} offset:{32*sx}'); lq.append(('x', 16 + sx))
            if q + PD < 64: bread(q - 1 + PD); bread(q + PD)
            if s < 2:
                for m in range(4): bdma(1, 4 * s + m)
            elif s < 6: xdma(1, range(4 * s - 8, 4 * s - 4))
            elif opt('pad1', 0): a(f's_nop {opt("pad1", 0) - 1}')
            if q == XQ:
                a('s_waitcnt vmcnt(0)')
                self.sig(F_S[2]); lq.append(('s', 0))
                a(f's_or_b32 s{sT0}, s2, s{sSW}\ns_cbranch_scc1 L_noep')
                a(f's_mov_b64 exec, 1\nbuffer_store_dword v{vTG}, off, s[{SWS}:{SWS+3}], 0 sc1\ns_mov_b64 exec, -1')
                a('L_noep:')
                a(f's_cmp_lg_u32 s{sTB}, 0\ns_cbranch_scc1 L_nozero')
                a(f's_lshl_b32 s{sT0}, s{sPB}, 14\ns_lshl_b32 s{sT1}, s{sSW}, 11\ns_add_u32 s{sT0}, s{sT0}, s{sT1}\ns_add_u32 s{sT0}, s{sT0}, {WS_EBUF:#x}')
                for n in range(2): a(f'buffer_store_dwordx4 {q4(SN+4)}, v{vL16}, s[{SWS}:{SWS+3}], s{sT0} offen offset:{1024*n} sc1')
                a('L_nozero:')
                a(f's_lshr_b32 s{sT0}, s{sSW}, 1\ns_and_b32 s{sT1}, s{sRB}, 1\ns_cmp_lg_u32 s{sT0}, s{sT1}\ns_cbranch_scc1 L_nosent')
                a(f's_lshl_b32 s{sT1}, s{sCG}, 12\ns_add_u32 s{sT0}, s{sXB}, s{sT1}\ns_add_u32 s{sT0}, s{sT0}, {WS_OBUF:#x}')
                self.xstore([f'buffer_store_dwordx4 {q4(SN)}, v{vL16}, s[{SWS}:{SWS+3}], s{sT0} offen offset:{1024*n}' for n in range(4)], 's')
                a('L_nosent:')
                if opt('pf', 1): self.prefetch((10, 11, 4), vPF)
        a('s_setprio 3')
        self.stamp(6)
        if opt('stop', 0) == 6: self.end(); return
        RE = 'op_sel:[0,0,0] op_sel_hi:[0,1,1]'
        IM = 'op_sel:[1,0,0] op_sel_hi:[1,1,1]'
        T0, T1 = 8, 10
        def pstep(dr, di, sr, si, l, ur, ui, ns=0, nu=0):
            a(f'v_pk_fma_f32 {pr(T0)}, {pr(l)}, {pr(si)}, {pr(ur)} {IM} neg_lo:[{1-ns},0,0] neg_hi:[{1-ns},0,0]')
            a(f'v_pk_fma_f32 {pr(T1)}, {pr(l)}, {pr(sr)}, {pr(ui)} {IM} neg_lo:[0,0,{nu}] neg_hi:[0,0,{nu}]')
            a(f'v_pk_fma_f32 {pr(dr)}, {pr(l)}, {pr(sr)}, {pr(T0)} {RE}')
            a(f'v_pk_fma_f32 {pr(di)}, {pr(l)}, {pr(si)}, {pr(T1)} {RE} neg_lo:[{ns},0,0] neg_hi:[{ns},0,0]')
        def cstep(dr, di, sr, si, l, ur, ui):
            a(f'v_fma_f32 v{T0}, -v{l+1}, v{si}, v{ur}\nv_fma_f32 v{T1}, v{l+1}, v{sr}, v{ui}\nv_fma_f32 v{dr}, v{l}, v{sr}, v{T0}\nv_fma_f32 v{di}, v{l}, v{si}, v{T1}')
        def zstep(d, s, l, u):
            a(f'v_pk_fma_f32 {pr(T0)}, {pr(l)}, {pr(s)}, {pr(u)} {RE}')
            a(f'v_pk_fma_f32 {pr(d)}, {pr(l)}, {pr(s)}, {pr(T0)} op_sel:[1,1,0] op_sel_hi:[1,0,1] neg_lo:[1,0,0]')
        def cmul(r, i, neg):
            a(f'v_pk_mul_f32 {pr(T0)}, {pr(CC)}, {pr(i)} op_sel:[1,0] op_sel_hi:[1,1]')
            a(f'v_pk_mul_f32 {pr(T1)}, {pr(CC)}, {pr(r)} op_sel:[1,0] op_sel_hi:[1,1]')
            a(f'v_pk_fma_f32 {pr(r)}, {pr(CC)}, {pr(r)}, {pr(T0)} {RE} neg_lo:[0,0,{neg}] neg_hi:[0,0,{neg}]')
            a(f'v_pk_fma_f32 {pr(i)}, {pr(CC)}, {pr(i)}, {pr(T1)} {RE} neg_lo:[{neg},0,1] neg_hi:[{neg},0,1]')
        ER, EI, EE = 12, 14, 16
        pstep(ER, EI, GR, GI, L1, GR + 2, GI + 2, 1, 1)
        for r in range(4, 16, 2): pstep(ER, EI, ER, EI, L1, GR + r, GI + r, 0, 1)
        cstep(EE, EE + 1, ER, EI, L8, ER + 1, EI + 1)
        a(f'ds_write_b64 v{vSX}, {pr(EE)} offset:{L_SXO}')
        self.sig(F_S[3])
        self.srd(SB, P(10), 512 * 1024)
        self.srd(SC, P(11), 512 * 1024)
        if HR_:
            a(f's_bitcmp1_b32 s{sCG}, 2\ns_cselect_b32 s{SB}, s{P(11)}, s{P(10)}\ns_cselect_b32 s{SB+1}, s{P(11)+1}, s{P(10)+1}\ns_cselect_b32 s{SC}, s{P(10)}, s{P(11)}\ns_cselect_b32 s{SC+1}, s{P(10)+1}, s{P(11)+1}')
        a(f's_lshl_b32 s{sT3}, s{sSW}, 1\ns_mov_b32 s{sM0}, 0\ns_mov_b32 s{sM0+1}, -1')
        a(f's_lshl_b32 s{sT4}, s{sPB}, 14\ns_lshl_b32 s{sT1}, s{sTB}, 9\ns_add_u32 s{sT4}, s{sT4}, s{sT1}\ns_add_u32 s{sT4}, s{sT4}, {WS_EBUF:#x}')
        self.wait(F_S[3], sleep=1)
        for c in range(7): a(f'ds_read_b64 {pr(20+2*c)}, v{vP8} offset:{(c//2)*XW + L_SXO + (c%2)*256}')
        a('s_waitcnt lgkmcnt(0)')
        for c in range(7):
            a(f's_cmp_lt_u32 s{sT3}, {c}\ns_cbranch_scc1 L_lh_done')
            a(f's_cmp_gt_u32 s{sT3}, {c}\ns_cselect_b64 exec, -1, s[{sM0}:{sM0+1}]')
            zstep(LC, LC, L16, 20 + 2 * c)
        zstep(vTG - 2, LC, L16, EE)
        a(f's_add_u32 s{sT0}, s{sT4}, {16*512 - 512}\nbuffer_store_dwordx4 v[{vTG-2}:{vTG+1}], v{vL16}, s[{SWS}:{SWS+3}], s{sT0} offen sc1')
        a('L_lh_done:\ns_mov_b64 exec, -1')
        self.stamp(7)
        def cdma(srd, base):
            a(f's_mul_i32 s{sT1}, s{sSW}, {16*1040}\ns_lshl_b32 s{sT2}, s{sCG}, 16\ns_lshl_b32 s{sT3}, s{sSW}, 14\ns_add_u32 s{sT2}, s{sT2}, s{sT3}')
            rowdma(srd, base, sT2, 16)
        if not opt('cmf', 1): cdma(SB, L_A1)
        for r in range(0, 16, 2): cmul(GR + r, GI + r, 1)
        if opt('cmf', 1): cdma(SB, L_A1)
        a(f's_mov_b32 s{sCNT}, 100000')
        a('L_eg:')
        for q in range(8): a(f'buffer_load_dwordx3 v[{24+4*q}:{26+4*q}], v{vEA}, s[{SWS}:{SWS+3}], s{sT4} offen offset:{512*q} sc1')
        a('s_waitcnt vmcnt(0)')
        a(f'v_cmp_ne_u32 vcc, s{sTAG}, v26')
        for q in range(1, 8): a(f'v_cmp_ne_u32 s[{sM1}:{sM1+1}], s{sTAG}, v{26+4*q}\ns_or_b64 vcc, vcc, s[{sM1}:{sM1+1}]')
        a(f's_cbranch_scc0 L_egd\ns_sleep {opt("esleep", 10)}\ns_sub_u32 s{sCNT}, s{sCNT}, 1\ns_cbranch_scc0 L_eg')
        a('L_egd:')
        self.sig(F_S[9])
        self.stamp(8)
        for q in range(1, 8): zstep(24, 24, L128, 24 + 4 * q)
        a(f'v_pk_mul_f32 {pr(T0)}, {pr(FF)}, {pr(24)} op_sel:[0,0] op_sel_hi:[0,1]')
        a(f'v_pk_fma_f32 {pr(20)}, {pr(FF)}, {pr(24)}, {pr(T0)} op_sel:[1,1,0] op_sel_hi:[1,0,1] neg_lo:[1,0,0]')
        a(f'v_mov_b32 v22, v20\nv_mov_b32 v23, v21\nv_permlane32_swap_b32 v20, v22\nv_permlane32_swap_b32 v21, v23\nv_pk_add_f32 {pr(20)}, {pr(20)}, {pr(22)}')
        IR, II = 24, 26
        cstep(IR, II, 20, 21, WW, LC, LC + 1)
        cstep(IR + 1, II + 1, IR, II, L8, ER, EI)
        cmul(IR, II, 0)
        pstep(GR, GI, IR, II, L1, GR, GI)
        for r in range(2, 16, 2): pstep(GR + r, GI + r, GR + r - 2, GI + r - 2, L1, GR + r, GI + r)
        for pl, Gx in ((0, GR), (1, GI)):
            for j in range(8):
                r0 = 4 * (j % 4) + j // 4
                a(f'v_cvt_pk_bf16_f32 v{28+8*pl+j}, v{Gx+r0}, v{Gx+r0+2}')
            a(f'ds_write_b128 v{vTW}, {q4(28+8*pl)} offset:{L_TBO+2048*pl}\nds_write_b128 v{vTW}, {q4(32+8*pl)} offset:{L_TBO+2048*pl+16}')
        for pl in range(2):
            for f in range(2):
                d = 44 + 8 * pl + 4 * f
                a(f'ds_read_b64_tr_b16 {pr(d)}, v{vTR} offset:{L_TBO+2048*pl+1024*f}\nds_read_b64_tr_b16 {pr(d+2)}, v{vTR} offset:{L_TBO+2048*pl+1024*f+256}')
        a(f's_lshl_b32 s{sT0}, s{sXB}, 1\ns_lshl_b32 s{sT1}, s{sPB}, 11\ns_add_u32 s{sT0}, s{sT0}, s{sT1}\ns_add_u32 s{sT0}, s{sT0}, {WS_HBUF:#x}\ns_add_u32 s{sT1}, s{sT0}, 0x8000')
        hs = []
        for pl in range(2):
            for f in range(2):
                d = 44 + 8 * pl + 4 * f
                hs += [f's_waitcnt lgkmcnt({6 - 4*pl - 2*f})', f'buffer_store_dwordx4 {q4(d)}, v{vL16}, s[{SWS}:{SWS+3}], s{sT0 if pl == 0 else sT1} offen offset:{1024*f}']
        self.xstore(hs, 'h')
        YK, YS, XF, HR = 128, 144, 184, 160
        a(f's_lshl_b32 s{sT0}, s{sTP}, 15\ns_lshl_b32 s{sT1}, s{sCT}, 6\ns_add_u32 s{sT0}, s{sT0}, s{sT1}')
        a(f'buffer_load_dwordx4 {q4(XF)}, v{vXS}, s[{SA}:{SA+3}], s{sT0} offen\nbuffer_load_dwordx4 {q4(XF+4)}, v{vXS}, s[{SA}:{SA+3}], s{sT0} offen offset:32')
        a(f's_lshr_b32 s{sT4}, s{sXB}, 4\ns_lshl_b32 s{sT3}, s{sPB}, 7\ns_add_u32 s{sT4}, s{sT4}, s{sT3}\ns_add_u32 s{sT4}, s{sT4}, {WS_HFLAG:#x}')
        self.wait(F_S[9], sleep=1)
        if opt('cearly', 1):
            for j in range(16): a(f'ds_read_b128 {q4(8*j)}, v{vCK} offset:{32*j}\nds_read_b128 {q4(8*j+4)}, v{vCS} offset:{32*j}')
            self.sig(F_S[6])
        a(f's_mov_b32 s{sM1}, -1\ns_mov_b32 s{sM1+1}, 0\ns_waitcnt vmcnt(2)')
        a(f's_mov_b64 exec, s[{sM1}:{sM1+1}]')
        self.xstore([f'buffer_store_dword v{vTG}, v{vOA}, s[{SWS}:{SWS+3}], s{sT4} offen'], 'h')
        a('s_mov_b64 exec, -1')
        self.stamp(9)
        if opt('stop', 0) == 9: self.end(); return
        LATE = opt('late', 1)
        if not LATE: cdma(SC, L_A2)
        if not opt('cearly', 1):
            for j in range(16): a(f'ds_read_b128 {q4(8*j)}, v{vCK} offset:{32*j}\nds_read_b128 {q4(8*j+4)}, v{vCS} offset:{32*j}')
            self.sig(F_S[6])
        a(f's_waitcnt vmcnt({1 if LATE else 17})')
        a(f'v_mfma_f32_32x32x16_bf16 {t16(YK)}, {q4(XF)}, {q4(DG)}, 0')
        a(f'v_mfma_f32_32x32x16_bf16 {t16(YK)}, {q4(XF+4)}, {q4(DG+4)}, {t16(YK)}')
        self.srd(SB, P(4), 512 * 1024)
        a(f's_lshl_b32 s{sT4}, s{sSW}, 17\ns_lshl_b32 s{sT1}, s{sCG}, 7\ns_add_u32 s{sT4}, s{sT4}, s{sT1}\ns_and_b32 s{sT1}, s{sCG}, 3\ns_lshl_b32 s{sT1}, s{sT1}, 16\ns_xor_b32 s{sT4}, s{sT4}, s{sT1}\ns_lshl_b32 s{sT1}, s{sSW}, 14\ns_add_u32 m0, s{sT1}, {L_A1}')
        self.wait(F_S[6], sleep=1)
        for m in range(16):
            a(f's_xor_b32 s{sT0}, s{sT4}, {8192*m:#x}\nbuffer_load_dwordx4 v{vWI}, s[{SB}:{SB+3}], s{sT0} offen lds\ns_add_u32 m0, m0, 1024')
        a(f's_lshl_b32 s{sT0}, s{sTP}, 11\ns_add_u32 s{sT0}, s{sT0}, {WS_HFLAG:#x}\ns_mov_b64 exec, 0xffff')
        a(f's_mov_b32 s{sCNT}, 100000')
        a('L_gph:')
        a(f'buffer_load_dword v{vT}, v{vHF}, s[{SWS}:{SWS+3}], s{sT0} offen sc1\ns_waitcnt vmcnt(0)\nv_cmp_ne_u32 vcc, s{sTAG}, v{vT}\ns_cbranch_vccz L_gdh')
        a(f's_sleep {opt("hsleep", 10)}\ns_sub_u32 s{sCNT}, s{sCNT}, 1\ns_cbranch_scc0 L_gph')
        a('L_gdh:\ns_mov_b64 exec, -1')
        self.sig(F_S[5])
        self.stamp(13)
        if opt('stop', 0) == 10: self.end(); return
        a(f's_lshl_b32 s{sT3}, s{sTP}, 16\ns_and_b32 s{sT0}, s{sSW}, 1\ns_lshl_b32 s{sT0}, s{sT0}, 14\ns_add_u32 s{sT3}, s{sT3}, s{sT0}\ns_add_u32 s{sT3}, s{sT3}, {WS_HBUF:#x}')
        if HR_: a(f's_and_b32 s{sT0}, s{sCG}, 3\ns_lshl_b32 s{sT0}, s{sT0}, 12\ns_add_u32 s{sT3}, s{sT3}, s{sT0}\ns_and_b32 s{sT0}, s{sCG}, 4\ns_lshl_b32 s{sT0}, s{sT0}, 13\ns_add_u32 s{sT3}, s{sT3}, s{sT0}')
        NR = 13
        vq = []
        def hload(j):
            go = lambda g: ((g % 4) << 12) | ((g // 4) << 15)
            if j % 4 == 0 and j > 0: a(f's_xor_b32 s{sT3}, s{sT3}, {go(j // 4) ^ go(j // 4 - 1):#x}')
            a(f'buffer_load_dwordx4 {q4(HR + 4*(j%NR))}, v{vL16}, s[{SWS}:{SWS+3}], s{sT3} offen offset:{1024*(j%4)} sc1')
            vq.append(('h', j))
        for j in range(NR - 1): hload(j)
        a(f's_setprio {opt("gprio4", 0)}')
        lq = []
        def cread(j, k):
            a(f'ds_read_b128 {q4(8*(j%16) + 4*k)}, v{vCS2 if k else vCK2} offset:{32*(j%16)}')
        if not LATE:
            a('s_setprio 3')
            self.wait(F_S[5], sleep=1)
            a(f's_setprio {opt("gprio4", 0)}')
        else:
            a(f's_mul_i32 s{sT1}, s{sSW}, {16*1040}\ns_lshl_b32 s{sT2}, s{sCG}, 16\ns_lshl_b32 s{sT4}, s{sSW}, 14\ns_add_u32 s{sT2}, s{sT2}, s{sT4}')
        FJ = opt('fj', 22); CS = opt('cs', 9); CW = opt('cw', 11)
        pend = [(jj, k) for jj in range(16, 32) for k in range(2)]
        SF = opt('sf', 0)
        for j in range(FJ + 1 if SF else 32):
            w = 's_waitcnt lgkmcnt(0)'
            if ('h', j) in vq:
                need = vq.index(('h', j))
                w = f's_waitcnt vmcnt({len(vq) - 1 - need}) lgkmcnt(0)'
                del vq[:need + 1]
            a(w)
            c = 8 * (j % 16); h = q4(HR + 4 * (j % NR))
            a(f'v_mfma_f32_32x32x16_bf16 {t16(YK)}, {h}, {q4(c)}, {t16(YK)}')
            a(f'v_mfma_f32_32x32x16_bf16 {t16(YS)}, {h}, {q4(c+4)}, {"0" if j == 0 else t16(YS)}')
            if not LATE:
                if j < 16: cread(16 + j, 0)
                if 15 <= j < min(31, FJ): cread(j + 1, 1)
                if j == FJ:
                    for jj in range(j + 1, 32): cread(jj, 1)
            else:
                if j < 4:
                    for m in range(4 * j, 4 * j + 4):
                        if m % 4 == 0: a(f's_add_u32 m0, s{sT1}, {L_A2 + m*1040}\ns_add_u32 s{sT0}, s{sT2}, {1024*m}')
                        else: a('s_add_u32 m0, m0, 16')
                        a(f'buffer_load_dwordx4 v{vCL}, s[{SC}:{SC+3}], s{sT0} offen offset:{1024*(m%4)} lds')
                        vq.append(('c', m))
                if j == CS:
                    need = vq.index(('c', 15))
                    a(f's_waitcnt vmcnt({len(vq) - 1 - need})'); del vq[:need + 1]
                    self.sig(F_WO)
                if j == CW:
                    a('s_setprio 3')
                    self.wait(F_WO, sleep=1)
                    a(f's_setprio {opt("gprio4", 0)}')
                if j >= CW:
                    n = len(pend) if j >= FJ else 2
                    for _ in range(n):
                        if pend and pend[0][0] - 16 <= j: cread(*pend.pop(0))
                    assert not pend or pend[0][0] > j + 1
            if j + NR - 1 < 32: hload(j + NR - 1)
            if 's4st' in OPT and j in (0, 4, 10, 16, 22, 31): self.stamp({0: 1, 4: 3, 10: 4, 16: 5, 22: 10, 31: 11}[j])
            HJ = opt('hj', 99)
            if opt('pad4', 0) and j < HJ: a(f's_nop {opt("pad4", 0) - 1}')
            if j == HJ - 1:
                a('s_setprio 3')
                self.wait(F_AX, sleep=opt('hjs', 4), va=vS); lq.clear()
                a(f's_setprio {opt("gprio5", 0)}')
        if SF:
            assert LATE and not pend and FJ + NR - 1 >= 31
            self.sig(F_S[7])
            a('s_waitcnt vmcnt(0) lgkmcnt(0)')
            for j in range(FJ + 1, 32): a(f'v_mfma_f32_32x32x16_bf16 {t16(YS)}, {q4(HR + 4*(j%NR))}, {q4(8*(j%16)+4)}, {t16(YS)}')
            ky = [f'v_mfma_f32_32x32x16_bf16 {t16(YK)}, {q4(HR + 4*(j%NR))}, {q4(8*(j%16))}, {t16(YK)}' for j in range(FJ + 1, 32)]
            a(ky.pop(0)); a(ky.pop(0))
        a('s_setprio 3')
        if not SF: self.sig(F_S[7])
        self.srd(SOUT, P(14), 2048 * 4096)
        a(f's_lshl_b32 s{sT2}, s{sTP}, 17\ns_lshl_b32 s{sT1}, s{sCT}, 7\ns_add_u32 s{sT2}, s{sT2}, s{sT1}')
        self.wait(F_S[7], sleep=1)
        for q in range(4):
            a(f'ds_write_b128 v{vYW}, {q4(YS+4*q)} offset:{1024*q}')
            if SF and ky and q < 3: a(ky.pop(0))
        self.sig(F_S[8])
        if SF:
            for x in ky: a(x)
            a('s_nop 0')
        if 's4st' in OPT: self.stamp(12)
        self.wait(F_S[8], sleep=1)
        for q in range(4): a(f'ds_read_b128 {q4(YS+4*q)}, v{vYR} offset:{1024*q}')
        a('s_waitcnt lgkmcnt(0)')
        fl = {0: '', 1: ' sc1', 2: ' nt', 3: ' sc0 sc1', 4: ' sc1 nt', 5: ' sc0 nt', 6: ' sc0 sc1 nt'}[opt('yfl', 2)]
        for r in range(0, 16, 2): a(f'v_pk_add_f32 {pr(YS+r)}, {pr(YK+r)}, {pr(YS+r)}')
        for r in range(16):
            a(f's_add_u32 s{sT0}, s{sT2}, {((r % 4) + 8 * (r // 4)) * 4096}')
            if 'noy' not in OPT: a(f'buffer_store_dword v{YS+r}, v{vOA}, s[{SOUT}:{SOUT+3}], s{sT0} offen offset:2048{fl}')
        self.stamp(2)
        self.end()

HEADER = open('cdna_kernels/' + NAME + '.s.ref').read().split('; Override launch')[0]

DOC = '''; ---------------------------------------------------------------------------------------------
; ---------------------------------------------------------------------------------------------
'''

def make(stamps=False):
    g = G(stamps)
    body = g.build()
    txt = HEADER + f'; @launch grid=(256,1,1) block=(512,1,1) lds={L_TOTAL}\n' + DOC
    txt += f'''.amdgcn_target "amdgcn-amd-amdhsa--gfx950"
.text
.globl {NAME}_kernel
.p2align 8
.type {NAME}_kernel,@function
{NAME}_kernel:
{body}.section .rodata,"a"
.p2align 6
.amdhsa_kernel {NAME}_kernel
  .amdhsa_next_free_vgpr 256
  .amdhsa_next_free_sgpr 102
  .amdhsa_accum_offset 256
  .amdhsa_group_segment_fixed_size 0
  .amdhsa_kernarg_size 136
  .amdhsa_user_sgpr_count 2
  .amdhsa_user_sgpr_kernarg_segment_ptr 1
  .amdhsa_system_sgpr_workgroup_id_x 1
.end_amdhsa_kernel
'''
    return txt, g.a.n_ins

if __name__ == '__main__':
    pos = [x for x in sys.argv[1:] if not x.startswith('--')]
    out = pos[0] if pos else 'cdna_kernels/' + NAME + '.s'
    txt, n = make(stamps='stamps' in OPT)
    open(out, 'w').write(txt)
    print('wrote', out, n, 'instructions')
```

```python
import sys, math, struct
from asm import Asm

NAME = 'concat_heads__grouped_kv_mqa__ssm_conv_s5__prompt'
OPT = dict((x[2:].split('=') + ['1'])[:2] for x in sys.argv if x.startswith('--'))
def opt(k, d): return int(OPT.get(k, d))
XC = opt('xco', 0) or opt('xch', 0) or opt('xcs', 0)
def f2u(x): return struct.unpack('<I', struct.pack('<f', x))[0]
def pr(r): return f'v[{r}:{r+1}]'
def q4(r): return f'v[{r}:{r+3}]'
def t16(r): return f'v[{r}:{r+15}]'

WS_KVFLAG = 0x8000
WS_KVIMG = 0x10000
WS_EBUF = 0x40000
WS_HFLAG = 0x80000
WS_OBUF = 0x100000
WS_HBUF = 0x400000
WS_DBG = 0x800000
WS_SIZE = 0x1000000
def FL(i): return 16 * i
F_L1, F_L2, F_L4, F_L6 = FL(0), FL(1), FL(2), FL(3)
F_QP, F_KVD = FL(4), FL(5)
F_A1, F_AX, F_AY = FL(6), FL(7), FL(8)
F_S = [FL(9 + i) for i in range(10)]
F_WO = FL(19)
F_OX = FL(20)
F_SL = [FL(22 + i) for i in range(3)]
F_KMAX, F_XC, F_KST = FL(25), FL(25) + 4, FL(25) + 8
F_TAG, F_QA = FL(26), FL(27)
L_QN = 512
L_ACCF = 1024
L_QF = 5120
L_ACCD = 13312
L_WKV = L_ACCD
L_A1 = 29696
L_A2 = 96256
L_MX = L_A2 + 66560
L_TOTAL = 163840
XW = 16640
L_SXO = 1024
L_TBO = 2048

sWV, sRB, sCG, sTB, sPB, sTAG = 3, 4, 5, 6, 7, 8
sT0, sT1, sT2, sT3, sT4, sT5 = 9, 10, 11, 12, 13, 14
sCNT = 15
P = lambda i: 16 + 2 * i
SA, SB, SC, SWS, SOUT = 52, 56, 60, 64, 68
sSW = 72
sPH, sTJ, sOW = 73, 74, 75
sM0, sM1 = 76, 78
sQH = 81
sOB, sPRE = 101, 81
sXC = 100
sST = 82
SPIN = 400000
vT, vLN, vL16, vEP, vF, vS, vONE = 249, 250, 251, 252, 253, 254, 255

class G:
    def __init__(self, stamps=False):
        self.a = Asm(); self.stamps = stamps; self.cyc = True
    def srd(self, d, p, size):
        self.a(f's_mov_b32 s{d}, s{p}\ns_mov_b32 s{d+1}, s{p+1}\ns_mov_b32 s{d+2}, {size:#x}\ns_mov_b32 s{d+3}, 0x20000')
    def stamp(self, i):
        if self.stamps:
            self.a(f's_memrealtime s[98:99]\ns_waitcnt lgkmcnt(0)\ns_mov_b32 s{sST+i}, s98')
            m = {5: 8, 6: 9}
            if self.cyc and i in m:
                self.a(f's_memtime s[98:99]\ns_waitcnt lgkmcnt(0)\ns_mov_b32 s{sST+m[i]}, s98')
    def end(self):
        a = self.a
        if self.stamps:
            a('s_waitcnt vmcnt(0)')
            self.stamp(15)
            if 'diag' in OPT and self.cyc != ('diagsv' in OPT):
                da, db = [int(x) for x in OPT['diag'].split(',')]
                L = a.label('DG')
                a(f's_sub_u32 s{sT1}, s{sST+db}, s{sST+da}')
                if 'diagxc' in OPT: a(f's_xor_b32 s{sT1}, s{sXC}, {opt("diagxc", 0) - 1}\ns_mul_i32 s{sT1}, s{sT1}, 1000')
                if 'diagcyc' in OPT: a(f's_lshr_b32 s{sT1}, s{sT1}, 1')
                else: a(f's_lshl_b32 s{sT1}, s{sT1}, 3')
                a(f's_min_u32 s{sT1}, s{sT1}, 100000\ns_add_u32 s{sT1}, s{sT1}, s{sST+15}')
                a(f'{L}:\ns_sleep 4\ns_memrealtime s[98:99]\ns_waitcnt lgkmcnt(0)\ns_cmp_lt_u32 s98, s{sT1}\ns_cbranch_scc1 {L}')
            a(f's_lshl_b32 s{sT0}, s2, 3\ns_add_u32 s{sT0}, s{sT0}, s{sWV}\ns_lshl_b32 s{sT0}, s{sT0}, 6\ns_add_u32 s{sT0}, s{sT0}, {WS_DBG:#x}')
            a('s_mov_b64 exec, 1')
            for i in range(16):
                a(f'v_mov_b32 v{vT}, s{sST+i}\nbuffer_store_dword v{vT}, off, s[{SWS}:{SWS+3}], s{sT0} offset:{4*i}')
            a('s_waitcnt vmcnt(0)')
        a('s_endpgm')
    def sig(self, off, va=vS):
        self.a(f'ds_write_b32 v{va}, v{vONE} offset:{off}')
    def wait(self, off, sleep=1, va=vF):
        a = self.a; L = a.label('W'); D = a.label('WD')
        a(f's_mov_b32 s{sCNT}, {SPIN}')
        a(f'{L}:')
        a(f'ds_read_b32 v{vT}, v{va} offset:{off}\ns_waitcnt lgkmcnt(0)\nv_cmp_eq_u32 vcc, 0, v{vT}\ns_cbranch_vccz {D}')
        a((f's_sleep {sleep}\n' if sleep else '') + f's_sub_u32 s{sCNT}, s{sCNT}, 1\ns_cbranch_scc0 {L}')
        a(f'{D}:')
    def xstore(self, lines, kind='o'):
        a = self.a
        if not opt('xc' + kind, 0):
            for x in lines: a(x + (' sc1' if x.startswith('buffer') else ''))
            return
        L = a.label('X'); D = a.label('XD')
        a(f's_cmp_eq_u32 s{sXC}, 1\ns_cbranch_scc0 {L}')
        for x in lines: a(x + (' nt' if x.startswith('buffer') and opt('xnt', 0) else ''))
        a(f's_branch {D}')
        a(f'{L}:')
        for x in lines: a(x + (' sc1' if x.startswith('buffer') else ''))
        a(f'{D}:')
    def get_tag(self):
        self.a(f'v_readfirstlane_b32 s{sTAG}, v{vEP}\ns_mul_i32 s{sTAG}, s{sTAG}, 0x9E3779B1\ns_add_u32 s{sTAG}, s{sTAG}, 0x7F4A7C15')

    def build(self):
        a = self.a
        a('s_cmp_ge_u32 s2, 256\ns_cbranch_scc1 L_exit')
        a('s_load_dwordx16 s[16:31], s[0:1], 0\ns_load_dwordx16 s[32:47], s[0:1], 64\ns_load_dwordx2 s[48:49], s[0:1], 128')
        if self.stamps:
            for i in range(16): a(f's_mov_b32 s{sST+i}, 0')
        a(f'v_and_b32 v{vLN}, 63, v0\nv_lshrrev_b32 v{vT}, 6, v0\nv_lshlrev_b32 v{vL16}, 4, v{vLN}\nv_readfirstlane_b32 s{sWV}, v{vT}')
        if opt('cpf', 1):
            a(f's_cmp_lt_u32 s{sWV}, 5\ns_cbranch_scc1 L_nocpf')
            a(f's_getpc_b64 s[{sM0}:{sM0+1}]')
            a('L_pc:')
            a(f's_lshr_b32 s{sT0}, s2, 3\ns_mul_i32 s{sT0}, s{sT0}, 3\ns_add_u32 s{sT0}, s{sT0}, s{sWV}\ns_sub_u32 s{sT0}, s{sT0}, 5\ns_lshl_b32 s{sT0}, s{sT0}, 9')
            a(f's_min_u32 s{sT0}, s{sT0}, L_exit-L_pc-512\ns_add_u32 s{sM0}, s{sM0}, s{sT0}\ns_addc_u32 s{sM0+1}, s{sM0+1}, 0')
            for k in range(8): a(f's_load_dword s{SOUT + k % 4}, s[{sM0}:{sM0+1}], {64*k}')
            a('L_nocpf:')
        a(f's_and_b32 s{sT0}, s2, 7\ns_lshr_b32 s{sT1}, s2, 3')
        a(f's_lshl_b32 s{sRB}, s{sT0}, 2\ns_lshr_b32 s{sT2}, s{sT1}, 3\ns_add_u32 s{sRB}, s{sRB}, s{sT2}\ns_and_b32 s{sCG}, s{sT1}, 7')
        a(f's_lshr_b32 s{sTB}, s{sRB}, 1\ns_and_b32 s{sPB}, s{sT1}, 15\ns_and_b32 s{sSW}, s{sWV}, 3')
        a(f's_cmp_ge_u32 s{sWV}, 4\ns_cbranch_scc1 L_service')
        a(f's_lshr_b32 s{sT5}, s{sCG}, 1\ns_lshl_b32 s{sT4}, s{sRB}, 16')
        def xa_rows(g):
            a(f's_add_u32 s{sT0}, s{sT5}, {g}\ns_and_b32 s{sT0}, s{sT0}, 3\ns_lshl_b32 s{sT0}, s{sT0}, 2\ns_add_u32 s{sT0}, s{sT0}, s{sSW}\ns_lshl_b32 s{sT0}, s{sT0}, 2')
            a(f's_mul_i32 s{sT1}, s{sT0}, 1040\ns_add_u32 m0, s{sT1}, {L_A1}\ns_lshl_b32 s{sT0}, s{sT0}, 10\ns_add_u32 s{sT0}, s{sT0}, s{sT4}')
            if g == 0:
                a('s_waitcnt lgkmcnt(0)')
                self.stamp(0)
                self.srd(SA, P(0), 2048 * 1024)
            for n in range(4):
                a(f'buffer_load_dwordx4 v{vL16}, s[{SA}:{SA+3}], s{sT0} offen offset:{1024*n} lds')
                if n < 3: a('s_add_u32 m0, m0, 16')
        xa_rows(0)
        a(f's_bitcmp1_b32 s{sCG}, 0\ns_cselect_b32 s{SB}, s{P(3)}, s{P(2)}\ns_cselect_b32 s{SB+1}, s{P(3)+1}, s{P(2)+1}\ns_mov_b32 s{SB+2}, 0x4000\ns_mov_b32 s{SB+3}, 0x20000')
        a(f's_lshl_b32 s{sT0}, s{sWV}, 12\ns_add_u32 m0, s{sT0}, {L_WKV}')
        a(f'v_lshrrev_b32 v2, 1, v{vL16}\nv_and_b32 v2, 128, v2\nv_xor_b32 v2, v2, v{vL16}')
        for n in range(4):
            a(f'buffer_load_dwordx4 v2, s[{SB}:{SB+3}], s{sT0} offen offset:{1024*n} lds')
        self.srd(SC, P(1), 512 * 1024)
        NPQ = 0
        if opt('pfq', 0):
            G = opt('pfg', 6)
            a(f'v_lshlrev_b32 v3, {G}, v{vLN}\ns_lshr_b32 s{sT0}, s2, 3\ns_lshl_b32 s{sT0}, s{sT0}, 2\ns_add_u32 s{sT0}, s{sT0}, s{sSW}\ns_lshl_b32 s{sT0}, s{sT0}, 12')
            if G == 7: a(f's_mov_b32 s{sM0}, -1\ns_mov_b32 s{sM0+1}, 0\ns_mov_b64 exec, s[{sM0}:{sM0+1}]')
            a(f'buffer_load_dword v4, v3, s[{SC}:{SC+3}], s{sT0} offen'); NPQ = 1
            if opt('pfq', 0) > 1:
                for p in (8, 9):
                    self.srd(SOUT, P(p), 512 * 1024)
                    a(f'buffer_load_dword v4, v3, s[{SOUT}:{SOUT+3}], s{sT0} offen'); NPQ += 1
                self.srd(SOUT, P(5), 2048 * 1024)
                a(f's_lshr_b32 s{sT0}, s{sT0}, 1\ns_and_b32 s{sT1}, s2, 7\ns_lshl_b32 s{sT1}, s{sT1}, 18\ns_add_u32 s{sT0}, s{sT0}, s{sT1}\nv_lshrrev_b32 v3, 1, v3')
                a(f'buffer_load_dword v4, v3, s[{SOUT}:{SOUT+3}], s{sT0} offen'); NPQ += 1
            a('s_mov_b64 exec, -1')
        self.wimg_lane_addr(0, 1)
        a(f's_lshl_b32 s{sT3}, s{sSW}, 13\ns_lshl_b32 s{sT1}, s{sCG}, 7\ns_add_u32 s{sT3}, s{sT3}, s{sT1}\ns_and_b32 s{sT1}, s{sRB}, 3\ns_lshl_b32 s{sT1}, s{sT1}, 17\ns_add_u32 s{sT3}, s{sT3}, s{sT1}')
        a(f's_lshl_b32 s{sT2}, s{sSW}, 10')
        def wq_rows(c):
            for n in range(4 * c, 4 * c + 4):
                a(f's_add_u32 m0, s{sT2}, {L_A2 + 4096*n}\ns_xor_b32 s{sT0}, s{sT3}, {0x8000*n:#x}')
                a(f'buffer_load_dwordx4 v0, s[{SC}:{SC+3}], s{sT0} offen lds')
        FO = opt('fo', 1)
        if FO == 0: wq_rows(0)
        else: xa_rows(1)
        self.common_regs()
        self.srd(SWS, P(16), WS_SIZE)
        a('s_barrier')
        self.stamp(1)
        a(f's_waitcnt vmcnt({4 + NPQ})')
        self.sig(F_L1)
        if FO == 0: xa_rows(1)
        xa_rows(2); xa_rows(3)
        if FO == 1: wq_rows(0)
        if FO == 0: wq_rows(1)
        a('s_waitcnt vmcnt(4)')
        self.sig(F_L2)
        if FO == 1: wq_rows(1)
        wq_rows(2); wq_rows(3)
        self.stamp(2)
        a('s_waitcnt vmcnt(8)')
        self.sig(F_L4)
        if opt('lay', 1):
            a('s_branch L_attn')
            self.service()
            self.cyc = True
            a('L_attn:')
            self.attention()
        else:
            self.attention()
            self.service()
        a('L_exit:\ns_endpgm')
        return a.finish()

    def common_regs(self):
        self.a(f'v_and_b32 v{vF}, 3, v{vLN}\nv_lshlrev_b32 v{vF}, 2, v{vF}\ns_lshl_b32 s{sT0}, s{sSW}, 2\nv_mov_b32 v{vS}, s{sT0}\nv_mov_b32 v{vONE}, 1')

    def wimg_lane_addr(self, vd, vt):
        a = self.a
        a(f'v_lshrrev_b32 v{vt}, 2, v{vLN}\nv_and_b32 v{vt}, 4, v{vt}\nv_and_b32 v{vd}, 7, v{vLN}\nv_xor_b32 v{vd}, v{vd}, v{vt}\nv_lshlrev_b32 v{vd}, 4, v{vd}')
        a(f'v_lshrrev_b32 v{vt}, 3, v{vLN}\nv_lshl_add_u32 v{vd}, v{vt}, 10, v{vd}')

    def tr_parts(self, c0, r, wpart):
        a = self.a
        a(f'v_bfe_u32 v{c0}, v{vLN}, 4, 1\nv_lshlrev_b32 v{c0}, 5, v{c0}\nv_and_b32 v{r}, 3, v{vLN}\nv_lshl_add_u32 v{c0}, v{r}, 3, v{c0}\nv_bfe_u32 v{r}, v{vLN}, 2, 2')
        a(f's_and_b32 s{sT0}, s{sSW}, 1\nv_lshrrev_b32 v{wpart}, 1, v{r}\nv_xor_b32 v{wpart}, s{sT0}, v{wpart}\nv_lshl_add_u32 v{wpart}, v{wpart}, 6, v{c0}\nv_lshl_add_u32 v{wpart}, v{r}, 7, v{wpart}')

    def prefetch(self, ptrs, vd):
        a = self.a
        a(f's_lshr_b32 s{sT0}, s2, 3\ns_lshl_b32 s{sT0}, s{sT0}, 2\ns_add_u32 s{sT0}, s{sT0}, s{sSW}\ns_lshl_b32 s{sT0}, s{sT0}, 12')
        for p in ptrs:
            self.srd(SOUT, P(p), 512 * 1024)
            a(f'buffer_load_dword v{vEP}, v{vd}, s[{SOUT}:{SOUT+3}], s{sT0} offen')

    def attention(self):
        a = self.a
        K, V, S0, O, Q = 0, 64, 192, 224, 240
        vIDX, vA16, vA8, vQA, vL8 = 244, 245, 246, 247, 248
        R = dict(K=K, V=V, S0=S0, O=O, Q=Q, vIDX=vIDX, vA16=vA16, vA8=vA8, vQA=vQA, vL8=vL8, vM=vEP)
        a(f'v_and_b32 v{Q}, 11, v{vLN}\nv_cmp_eq_u32 vcc, 0, v{Q}\nv_mov_b32 v{Q}, 0x3f803f80\nv_cndmask_b32 v{vT}, 0, v{Q}, vcc')
        MK = opt('mask', 0)
        self.masked = lambda i: (MK >> i) & 1
        for i in range(16):
            for r in range(0 if self.masked(i) else 4, 8): a(f'v_mov_b32 v{V+8*i+r}, v{vT}')
        a(f'v_lshlrev_b32 v{vL8}, 3, v{vLN}\nv_mov_b32 v{vIDX}, 0xdddd')
        def init_state(ph0):
            for i in range(16): a(f'v_mov_b32 v{O+i}, 0')
            a(f's_mov_b32 s{sTJ}, s{sSW}\ns_mov_b32 s{sPH}, {ph0}')
            a(f's_lshl_b32 s{sT0}, s{sTJ}, 10\nv_add_u32 v{vQA}, s{sT0}, v{vL16}')
            a(f's_lshl_b32 s{sT0}, s{sTJ}, 11\nv_add_u32 v{vA16}, s{sT0}, v{vL16}\ns_lshl_b32 s{sT0}, s{sTJ}, 9\nv_add_u32 v{vA8}, s{sT0}, v{vL8}')
        init_state(0)
        FS = opt('fs', 6)
        a(f'v_lshlrev_b32 v{S0+4}, {FS}, v{vLN}\nv_mov_b32 v{S0+3}, 0')
        if XC: a(f's_getreg_b32 s{sXC}, hwreg(HW_REG_XCC_ID)')
        a(f's_lshl_b32 s{sT3}, s{sWV}, {FS + 6}\ns_add_u32 s{sT3}, s{sT3}, {WS_KVFLAG:#x}')
        a(f's_lshl_b32 s{sT4}, s{sWV}, 15\ns_add_u32 s{sT4}, s{sT4}, {WS_KVIMG:#x}\ns_lshl_b32 s{sT0}, s{sCG}, 12\ns_add_u32 s{sT4}, s{sT4}, s{sT0}')
        a(f's_lshl_b32 s{sOW}, s{sRB}, 16\ns_lshl_b32 s{sT0}, s{sCG}, 12\ns_add_u32 s{sOW}, s{sOW}, s{sT0}\ns_add_u32 s{sOW}, s{sOW}, {WS_OBUF:#x}')
        a(f's_add_u32 s{sT0}, s{sSW}, 1\ns_and_b32 s{sT0}, s{sT0}, 3\ns_lshl_b32 s{sT0}, s{sT0}, 10\ns_add_u32 s{sOW}, s{sOW}, s{sT0}')
        a(f's_mov_b32 s{sM0}, 0xffff\ns_mov_b32 s{sM0+1}, 0xffff')
        a(f's_lshl_b32 s{sOB}, s{sRB}, 16\ns_lshr_b32 s{sT0}, s{sSW}, 1\ns_lshl_b32 s{sT0}, s{sT0}, 2\ns_and_b32 s{sT2}, s{sCG}, 3\ns_add_u32 s{sT0}, s{sT0}, s{sT2}\ns_lshl_b32 s{sT0}, s{sT0}, 12')
        a(f's_add_u32 s{sOB}, s{sOB}, s{sT0}\ns_add_u32 s{sOB}, s{sOB}, {WS_OBUF:#x}\ns_mov_b32 s{sPRE}, 0')
        self.tr_parts(0, 1, 2)
        a(f'v_lshrrev_b32 v1, 5, v{vLN}\nv_lshl_add_u32 v2, v1, 9, v2\ns_lshr_b32 s{sT0}, s{sSW}, 1\ns_lshl_b32 s{sT0}, s{sT0}, 15\ns_add_u32 s{sT0}, s{sT0}, {L_A1}\nv_add_u32 v{vLN}, s{sT0}, v2')
        a(f's_waitcnt vmcnt(0)')
        self.sig(F_L6)
        self.stamp(3)
        self.wait(F_QA if opt('pw', 0) == 0 else F_KVD, sleep=1)
        a(f'ds_read_b32 v{vEP}, v{vF} offset:{F_TAG}\ns_waitcnt lgkmcnt(0)\nv_readfirstlane_b32 s{sTAG}, v{vEP}')
        if opt('pf1', 0):
            a(f's_lshr_b32 s{sT0}, s2, 3\ns_lshl_b32 s{sT0}, s{sT0}, 2\ns_add_u32 s{sT0}, s{sT0}, s{sSW}\ns_lshl_b32 s{sT0}, s{sT0}, 12')
            for k, p in enumerate((8, 9)):
                self.srd(SB, P(p), 512 * 1024)
                for n in range(4): a(f'buffer_load_dwordx4 {q4(4 + 16*k + 4*n)}, v{vL16}, s[{SB}:{SB+3}], s{sT0} offen offset:{1024*n}')
            self.srd(SB, P(5), 2048 * 1024)
            a(f's_lshr_b32 s{sT0}, s{sT0}, 1\ns_and_b32 s{sT1}, s2, 7\ns_lshl_b32 s{sT1}, s{sT1}, 18\ns_add_u32 s{sT0}, s{sT0}, s{sT1}')
            for n in range(2): a(f'buffer_load_dwordx4 {q4(36 + 4*n)}, v{vL16}, s[{SB}:{SB+3}], s{sT0} offen offset:{1024*n}')
        if opt('pw', 0): a(f's_sleep {opt("pw", 0)}')
        a(f's_mov_b32 s{sCNT}, 100000')
        KW = opt('kw', 0)
        a(f's_lshr_b32 s{sT0}, s2, 3\ns_lshl_b32 s{sT0}, s{sT0}, 2\ns_add_u32 s{sT0}, s{sT0}, s{sSW}\ns_lshl_b32 s{sT0}, s{sT0}, 10\ns_add_u32 s{sT0}, s{sT0}, {WS_KVIMG:#x}')
        kwl = f'buffer_load_dwordx4 {q4(S0+8)}, v{vL16}, s[{SWS}:{SWS+3}], s{sT0} offen sc1'
        if KW == 2: a(kwl)
        a('L_kvp:')
        a(f'buffer_load_dwordx3 v[{S0}:{S0+2}], v{S0+4}, s[{SWS}:{SWS+3}], s{sT3} offen sc1')
        if KW == 1: a(kwl)
        a(f's_waitcnt vmcnt({1 if KW == 1 else 0})\nv_cmp_ne_u32 vcc, s{sTAG}, v{S0}\ns_cbranch_vccz L_kvpd')
        if opt('pm', 1): a('s_mov_b64 exec, vcc')
        a((f's_sleep {opt("kvsleep", 1)}\n' if opt("kvsleep", 1) else '') + f's_sub_u32 s{sCNT}, s{sCNT}, 1\ns_cbranch_scc0 L_kvp')
        a('L_kvpd:\ns_mov_b64 exec, -1')
        if self.stamps: a(f's_mov_b32 s{sST+13}, s{sCNT}')
        self.stamp(4)
        for i in range(opt('nup', 7)): a(self.kvload(R, i))
        a(f'ds_max_u32 v{S0+3}, v{S0+1} offset:{F_KMAX}')
        if XC:
            a(f's_lshr_b32 s{sT0}, s{sRB}, 3\ns_cmp_eq_u32 s{sT0}, s{sSW}\ns_cbranch_scc0 L_noxc')
            a(f'v_cmp_ne_u32 vcc, s{sXC}, v{S0+2}\ns_bitcmp1_b32 s{sRB}, 2\ns_cselect_b32 s{sT0}, vcc_hi, vcc_lo\ns_cmp_eq_u32 s{sT0}, 0\ns_cselect_b32 s{sT0}, 1, 0')
            a(f'v_mov_b32 v{S0+2}, s{sT0}\nds_write_b32 v{S0+3}, v{S0+2} offset:{F_XC}')
            a('L_noxc:')
        self.wait(F_QP, sleep=0)
        a(f'ds_read_b128 {q4(Q)}, v{vQA} offset:{L_QF}')
        self.stamp(5)
        self.attn_fast(R)
        a('L_attn_epi:')
        if 'phs' in OPT:
            for p in range(8): a(f's_mov_b32 s{sST+2*p}, s{16+4*p}\ns_mov_b32 s{sST+2*p+1}, s{17+4*p}')
            a(f's_lshl_b32 s{sT0}, s2, 3\ns_add_u32 s{sT0}, s{sT0}, s{sWV}\ns_lshl_b32 s{sT0}, s{sT0}, 6\ns_add_u32 s{sT0}, s{sT0}, {WS_DBG + 0x100000:#x}')
            a('s_mov_b64 exec, 1')
            for i in range(16):
                a(f'v_mov_b32 v{vT}, s{sST+i}\nbuffer_store_dword v{vT}, off, s[{SWS}:{SWS+3}], s{sT0} offset:{4*i}')
            a('s_waitcnt vmcnt(0)\ns_endpgm')
        self.oproj_pre()
        self.stamp(6)
        self.publish(R, 0x8000, F_AY)
        if 'nosvc' in OPT or 'stop' in OPT: self.end()
        else: self.oproj()
        a('L_check6:')
        self.wait(F_S[9], sleep=1)
        a('s_branch L_checked6')
        a('L_check1:')
        self.wait(F_S[0], sleep=1)
        a(f'v_cmp_ne_u32 vcc, 1, v{vT}\ns_cbranch_vccz L_checked1')
        self.wait(F_S[9], sleep=1)
        if XC: a(f's_mov_b32 s{sXC}, 0')
        vL4, vW = vA8, vA16
        self.sig(F_SL[0]); self.wait(F_SL[0])
        a(f'v_lshrrev_b32 v{vL4}, 2, v{vL16}\ns_mov_b32 s{sT2}, 0\ns_lshl_b32 s{sT3}, s{sWV}, 11\nv_add_u32 v{vW}, s{sT3}, v{vL4}')
        a('L_slow_pre:')
        a(f's_lshl_b32 s{sT0}, s{sT2}, 10\nv_add_u32 v{vT}, s{sT0}, v{vL16}\nds_read_b128 {q4(Q)}, v{vT} offset:{L_QF}\ns_waitcnt lgkmcnt(0)')
        a(f'v_mov_b32 v{S0+20}, 0xff800000')
        for i in range(16):
            a(f'v_mfma_f32_32x32x16_bf16 {t16(S0)}, {q4(K+4*i)}, {q4(Q)}, 0')
            for r in range(0, 16, 2): a(f'v_max3_f32 v{S0+20}, v{S0+r}, v{S0+r+1}, v{S0+20}')
        a(f'v_mov_b32 v{S0+21}, v{S0+20}\nv_permlane32_swap_b32 v{S0+20}, v{S0+21}\nv_max_f32 v{S0+20}, v{S0+20}, v{S0+21}')
        a(f'ds_write_b32 v{vW}, v{S0+20} offset:{L_ACCD}\nv_add_u32 v{vW}, 256, v{vW}')
        a(f's_add_u32 s{sT2}, s{sT2}, 1\ns_cmp_lt_u32 s{sT2}, 8\ns_cbranch_scc1 L_slow_pre')
        self.sig(F_SL[1]); self.wait(F_SL[1])
        a(f's_lshl_b32 s{sT0}, s{sWV}, 8\nv_add_u32 v{vW}, s{sT0}, v{vL4}')
        for t in range(2):
            for w in range(4): a(f'ds_read_b32 v{S0+4*t+w}, v{vW} offset:{L_ACCD + 2048*w + 1024*t}')
        a(f'v_and_b32 v{vW}, 0x7c, v{vL4}\ns_lshl_b32 s{sT0}, s{sWV}, 7\ns_add_u32 s{sT0}, s{sT0}, {L_MX}\nv_add_u32 v{vW}, s{sT0}, v{vW}')
        a('s_waitcnt lgkmcnt(0)')
        for t in range(2):
            b = S0 + 4 * t
            a(f'v_max3_f32 v{b}, v{b}, v{b+1}, v{b+2}\nv_max_f32 v{b}, v{b}, v{b+3}\nds_write_b32 v{vW}, v{b} offset:{512*t}')
        init_state(16)
        a(f'v_mov_b32 v{S0}, 0\nv_mov_b32 v{S0+1}, 17\nds_write_b64 v{vA8}, {pr(S0)} offset:{L_ACCF+2048}')
        a(f'ds_write_b128 v{vA16}, {q4(O)} offset:{L_ACCD+8192}\nds_write_b128 v{vA16}, {q4(O)} offset:{L_ACCD+8192+1024}')
        self.sig(F_SL[2]); self.wait(F_SL[2])
        a(f'ds_read_b128 {q4(Q)}, v{vQA} offset:{L_QF}')
        self.attn_loop(R, True)
        a('s_branch L_attn_epi')

    QD = [r for i in range(16) for r in (4 * i, 64 + 8 * i, 68 + 8 * i)]
    def WF(self, st): return self.QD[st]
    def OF(self, q, n): return self.QD[16 + 4 * ((q + 3) % 4) + 16 * (q // 4) + n]
    def wo_read(self, st, vWO): return f'ds_read_b64_tr_b16 {pr(self.WF(st))}, v{vWO} offset:{2048*st}\nds_read_b64_tr_b16 {pr(self.WF(st)+2)}, v{vWO} offset:{2048*st+1024}'
    def o_load(self, q):
        t = f's_xor_b32 s{sT0}, s{sOB}, {4096*(q%4) + 0x8000*(q//4):#x}'
        for n in range(4): t += f'\nbuffer_load_dwordx4 {q4(self.OF(q, n))}, v{vL16}, s[{SWS}:{SWS+3}], s{sT0} offen offset:{1024*n} sc1'
        return t

    def kvload(self, R, i):
        K, V = R['K'], R['V']
        t = ''
        if i % 2 == 0 and i > 0: t += f's_xor_b32 s{sT4}, s{sT4}, {((i // 2) ^ (i // 2 - 1)) << 12:#x}\n'
        o = (i % 2) * 2048
        t += f'buffer_load_dwordx4 {q4(K+4*i)}, v{vL16}, s[{SWS}:{SWS+3}], s{sT4} offen offset:{o} sc1\n'
        if self.masked(i):
            t += f's_mov_b64 exec, s[{sM0}:{sM0+1}]\nbuffer_load_dwordx4 {q4(V+8*i)}, v{vL16}, s[{SWS}:{SWS+3}], s{sT4} offen offset:{o+1024} sc1\n'
            t += f'buffer_load_dwordx4 {q4(V+8*i+4)}, v{vL16}, s[{SWS}:{SWS+3}], s{sT4} offen offset:{o+1024+256} sc1\ns_mov_b64 exec, -1'
        else:
            t += f'buffer_load_dwordx4 {q4(V+8*i)}, v{vL16}, s[{SWS}:{SWS+3}], s{sT4} offen offset:{o+1024} sc1'
        return t

    def publish(self, R, off, flag):
        a = self.a; O = R['O']
        a(f'v_rcp_f32 v{O+8}, v{O+8}\ns_add_u32 s{sT0}, s{sOW}, {off}')
        for r in range(0, 8, 2): a(f'v_pk_mul_f32 {pr(O+r)}, {pr(O+8)}, {pr(O+r)} op_sel:[0,0] op_sel_hi:[0,1]')
        for r in range(4): a(f'v_cvt_pk_bf16_f32 v{O+r}, v{O+2*r}, v{O+2*r+1}')
        self.xstore([f'buffer_store_dwordx4 {q4(O)}, v{vL16}, s[{SWS}:{SWS+3}], s{sT0} offen'])
        if off: self.sig(flag)

    def attn_fast(self, R):
        a = self.a
        K, V, S0, O, Q = R['K'], R['V'], R['S0'], R['O'], R['Q']
        vIDX, vA16, vA8, vQA, vL8 = R['vIDX'], R['vA16'], R['vA8'], R['vQA'], R['vL8']
        NUP = opt('nup', 7)
        sK = [[50, 51, 80], [sT1, sT2, sT3], [sT5, sPH, sTJ]]
        for k in range(1, 4):
            a(f's_sub_u32 s{sT0}, s{sSW}, {k}\ns_and_b32 s{sT0}, s{sT0}, 3\ns_lshl_b32 s{sK[k-1][0]}, s{sT0}, 9\ns_lshl_b32 s{sK[k-1][1]}, s{sT0}, 10\ns_lshl_b32 s{sK[k-1][2]}, s{sT0}, 11')
        def Sb(i): return S0 + 16 * (i % 2)
        def E(i, r): return f'v_exp_f32 v{Sb(i)+r}, v{Sb(i)+r}'
        CM = '-4.0' if opt('cm', 1) else '0'
        PP = opt('pp', 15)
        def QK(i): return f'v_mfma_f32_32x32x16_bf16 {t16(Sb(i))}, {q4(K+4*(i%16))}, {q4(Q)}, {CM}'
        def PV(i, h): return f'v_smfmac_f32_32x32x32_bf16 {t16(O)}, {q4(V+8*(i%16)+4*h)}, v[{Sb(i)+8*h}:{Sb(i)+8*h+7}], v{vIDX}'
        def rd(st): return [f'ds_read_b64 {pr(O+8)}, v{vA8} offset:{L_ACCF+2048*st}', f'ds_read_b128 {q4(O)}, v{vA16} offset:{L_ACCD+8192*st}', f'ds_read_b128 {q4(O+4)}, v{vA16} offset:{L_ACCD+8192*st+1024}']
        def wr(st): return [f'ds_write_b128 v{vA16}, {q4(O)} offset:{L_ACCD+8192*st}', f'ds_write_b128 v{vA16}, {q4(O+4)} offset:{L_ACCD+8192*st+1024}', f'ds_write_b64 v{vA8}, {pr(O+8)} offset:{L_ACCF+2048*st}']
        nl = lambda i: 3 if self.masked(i) else 2
        cov = [-1]
        def plain(p, i):
            e = [E(i, r) for r in range(16)]
            w = []; sw = []; ld = []
            if p == 0:
                KR = opt('kr', 3)
                issued = sum(nl(t) for t in range(min(16, KR * i + NUP)))
                VW = opt('vw', 4)
                if i > cov[0]:
                    last = i if i < opt('vw1', 2) else min(15, i + VW - 1)
                    cov[0] = last
                    needed = sum(nl(t) for t in range(last + 1)) + (1 if last < 15 else 0)
                    assert issued >= needed
                    w = [f's_waitcnt vmcnt({issued - needed})']
                if not self.masked(i): sw = [f'v_permlane16_swap_b32 v{V+8*i+r}, v{V+8*i+4+r}' for r in range(4)]
                for t in range(KR * i + NUP, min(16, KR * (i + 1) + NUP)):
                    ld += [self.kvload(R, t)]
                    if t == 15: ld += [f'ds_write_b32 v{vS}, v{vONE} offset:{F_A1}']
            qk = [QK(i + 1)]
            if i == 15:
                if p < 7: w += ['s_waitcnt lgkmcnt(0)']
                else: qk = []
            if i == 14 and p < 7:
                if p % 2 == 1: ld += [f'v_add_u32 v{vQA}, s{sK[p//2][1]}, v{vL16}']
                ld += [f'ds_read_b128 {q4(Q)}, v{vQA} offset:{L_QF + 4096*((p+1)%2)}']
                if p in (1, 6): ld += [f'ds_read_b32 v{vT}, v{vF} offset:{F_S[0] if p == 1 else F_S[9]}']
                if p == 6 and XC: ld += [f'ds_read_b32 v{vEP}, v{vF} offset:{F_XC}']
            if i == 15 and p in (1, 6):
                sw = [f'v_cmp_ne_u32 vcc, 1, v{vT}'] + ([f'v_readfirstlane_b32 s{sXC}, v{vEP}'] if p == 6 and XC else [])
                ld = [f's_cbranch_vccnz L_check{p}', f'L_checked{p}:']
            if p == 7 and i == opt('rel', 99): ld += [f'ds_write_b32 v{vS}, v{vONE} offset:{F_AX}']
            if p == 7 and opt('pre', 0) and 'nosvc' not in OPT and 'stop' not in OPT:
                P0 = opt('pre0', 6)
                if i == P0 - 1: ld += [f'ds_read_b32 v{vT}, v{vF} offset:{F_S[5]}']
                if i == P0: ld += [f's_waitcnt lgkmcnt(0)\nv_cmp_eq_u32 vcc, 0, v{vT}\ns_cmp_eq_u64 vcc, 0\ns_cselect_b32 s{sPRE}, 1, 0']
                grp = []
                k = i - P0 - 1
                if 0 <= k < 4: grp = [self.wo_read(st, vLN) for st in range(4 * k, 4 * k + 4)]; top = 4 * k + 3
                if 4 <= k < 8: grp = [self.o_load((k - 3) % 4)]; top = 16 + 4 * (k - 4) + 3
                if grp:
                    assert top // 3 < i, (top, i)
                    L = a.label('PF')
                    ld += [f's_cmp_eq_u32 s{sPRE}, 0\ns_cbranch_scc1 {L}'] + grp + [f'{L}:']
            seq = e[0:2] + ([] if (p == 0 and i == 0) else [PV(i - 1, 1)]) + e[2:5] + w + qk + sw + e[5:7] + ld + e[7:PP] + [PV(i, 0)] + e[PP:16]
            for x in seq: a(x)
        a(f's_setprio {opt("aprio", 1)}')
        a(f's_waitcnt vmcnt({sum(nl(t) for t in range(NUP)) - 1}) lgkmcnt(0)')
        a(QK(0))
        NW = opt('nw', 3)
        for p in range(8):
            if p == 0:
                plain(0, 0); plain(0, 1)
            else:
                e = [E(0, r) for r in range(16)]
                for x in e[0:2] + [PV(15, 1)] + e[2:5] + [QK(1)] + e[5:8]: a(x)
                so, si = (p - 1) % 2, p % 2
                if p < 7:
                    for x in [wr(so)[0], f'v_mov_b32 v{O+9}, {p+1}', wr(so)[1], wr(so)[2]]: a(x)
                else:
                    self.publish(R, 0, F_AX)
                if p % 2 == 0: a(f'v_add_u32 v{vA8}, s{sK[p//2-1][0]}, v{vL8}\nv_add_u32 v{vA16}, s{sK[p//2-1][2]}, v{vL16}')
                if p == 1:
                    for r in range(0, 8, 2): a(f'v_pk_mul_f32 {pr(O+r)}, {pr(O+10)}, {pr(O+10)}')
                    a(f'v_mov_b32 v{O+8}, 0')
                    for x in e[8:PP] + [PV(0, 0)] + e[PP:16]: a(x)
                    plain(p, 1)
                else:
                    for x in rd(si) + e[8:16]: a(x)
                    e = [E(1, r) for r in range(16)]
                    for x in e[0:NW]: a(x)
                    a(f's_waitcnt lgkmcnt(0)\nv_cmp_gt_u32 vcc, {p}, v{O+9}')
                    a(e[NW])
                    a(f's_cbranch_vccnz L_hw{p}')
                    a(f'L_hd{p}:')
                    n = NW + 1
                    for x in [PV(0, 0)] + e[n:n+3] + [PV(0, 1)] + e[n+3:n+6] + [QK(2)] + e[n+6:n+9] + [PV(1, 0)] + e[n+9:16]: a(x)
            for i in range(2, 16):
                plain(p, i)
            if p == 0: self.stamp(7)
            if 'phs' in OPT: a(f's_memtime s[98:99]\ns_memrealtime s[{16+4*p}:{17+4*p}]\ns_waitcnt lgkmcnt(0)\ns_mov_b32 s{17+4*p}, s98')
        a('s_nop 0')
        a(PV(15, 1))
        a(f's_branch L_attn_epi')
        for p in range(2, 8):
            a(f'L_hw{p}:')
            a(f's_mov_b32 s{sCNT}, {SPIN}')
            a(f'L_hl{p}:')
            a(f's_sleep 1')
            for x in rd(p % 2): a(x)
            a(f's_waitcnt lgkmcnt(0)\nv_cmp_gt_u32 vcc, {p}, v{O+9}\ns_cbranch_vccz L_hd{p}\ns_sub_u32 s{sCNT}, s{sCNT}, 1\ns_cbranch_scc0 L_hl{p}\ns_branch L_hd{p}')

    def attn_loop(self, R, slow):
        a = self.a
        K, V, S0, O, Q = R['K'], R['V'], R['S0'], R['O'], R['Q']
        vIDX, vA16, vA8, vQA, vL8, vM = R['vIDX'], R['vA16'], R['vA8'], R['vQA'], R['vL8'], R['vM']
        sf = '_s' if slow else '_f'
        PH0 = 16 if slow else 0
        NUP = opt('nup', 6)
        def Sb(i): return S0 + 16 * (i % 2)
        def E(i, r):
            s = Sb(i) + r
            return (f'v_sub_f32 v{s}, v{s}, v{vM}\n' if slow else '') + f'v_exp_f32 v{s}, v{s}'
        def QK(i): return f'v_mfma_f32_32x32x16_bf16 {t16(Sb(i))}, {q4(K+4*(i%16))}, {q4(Q)}, 0'
        def PV(i, h): return f'v_smfmac_f32_32x32x32_bf16 {t16(O)}, {q4(V+8*(i%16)+4*h)}, v[{Sb(i)+8*h}:{Sb(i)+8*h+7}], v{vIDX}'
        rd = [f'ds_read_b64 {pr(O+8)}, v{vA8} offset:{L_ACCF}', f'ds_read_b128 {q4(O)}, v{vA16} offset:{L_ACCD}', f'ds_read_b128 {q4(O+4)}, v{vA16} offset:{L_ACCD+1024}']
        wr = [f'ds_write_b128 v{vA16}, {q4(O)} offset:{L_ACCD}', f'ds_write_b128 v{vA16}, {q4(O+4)} offset:{L_ACCD+1024}', f'ds_write_b64 v{vA8}, {pr(O+8)} offset:{L_ACCF}']
        def getm():
            if slow:
                a(f'v_lshrrev_b32 v{vT}, 2, v{vL16}\nv_and_b32 v{vT}, 0x7c, v{vT}\ns_lshl_b32 s{sT0}, s{sTJ}, 7\ns_add_u32 s{sT0}, s{sT0}, {L_MX}\nv_add_u32 v{vT}, s{sT0}, v{vT}')
                a(f'ds_read_b32 v{vM}, v{vT}\ns_waitcnt lgkmcnt(0)')
        nl = lambda i: 3 if self.masked(i) else 2
        def plain(i, ph0=False):
            e = [E(i, r) for r in range(16)]
            w = []; sw = []; ld = []
            if ph0 and not slow:
                issued = sum(nl(t) for t in range(min(16, i + NUP)))
                needed = sum(nl(t) for t in range(i + 1)) + (1 if i < 15 else 0)
                w = [f's_waitcnt vmcnt({issued - needed})']
                if not self.masked(i): sw = [f'v_permlane16_swap_b32 v{V+8*i+r}, v{V+8*i+4+r}' for r in range(4)]
                if i + NUP < 16: ld = [self.kvload(R, i + NUP)]
                if i + NUP == 15: ld += [f'ds_write_b32 v{vS}, v{vONE} offset:{F_A1}']
            if i == 15: w += ['s_waitcnt lgkmcnt(0)']
            seq = e[0:2] + ([] if (ph0 and i == 0) else [PV(i - 1, 1)]) + e[2:5] + w + [QK(i + 1)] + sw
            if i == 14:
                seq += [f's_add_u32 s{sT1}, s{sPH}, 1\ns_lshr_b32 s{sT2}, s{sT1}, 1\ns_sub_u32 s{sT2}, s{sSW}, s{sT2}', e[5],
                        f's_and_b32 s{sT2}, s{sT2}, 3\ns_and_b32 s{sT1}, s{sT1}, 1\ns_lshl_b32 s{sT1}, s{sT1}, 2', e[6],
                        f's_add_u32 s{sT2}, s{sT2}, s{sT1}\ns_lshl_b32 s{sT0}, s{sT2}, 10', e[7], f'v_add_u32 v{vQA}, s{sT0}, v{vL16}', e[8],
                        f'ds_read_b128 {q4(Q)}, v{vQA} offset:{L_QF}'] + e[9:11]
            else:
                seq += e[5:11]
            seq += [PV(i, 0)] + e[11:13] + ld + e[13:16]
            for x in seq: a(x)
        a(f's_setprio {opt("aprio", 1)}')
        getm()
        a(f's_waitcnt vmcnt({sum(nl(t) for t in range(NUP)) - 1}) lgkmcnt(0)')
        a(QK(0))
        if slow:
            plain(0, True); plain(1)
            a(f's_branch L_mid{sf}')
        else:
            for i in range(16): plain(i, True)
            self.stamp(7)
        a('.p2align 6')
        a(f'L_loop{sf}:')
        a(f's_add_u32 s{sPH}, s{sPH}, 1\ns_mov_b32 s{sTJ}, s{sT2}')
        getm()
        e = [E(0, r) for r in range(16)]
        for x in e[0:2] + [PV(15, 1), e[2], f's_add_u32 s{sT1}, s{sPH}, 1', e[3], f's_lshl_b32 s{sT3}, s{sTJ}, 9', e[4], QK(1), f's_lshl_b32 s{sT4}, s{sTJ}, 11', e[5], e[6],
                           f's_cmp_eq_u32 s{sPH}, {PH0 + 7}', e[7], f's_cbranch_scc1 L_finx{sf}',
                           wr[0], f'v_mov_b32 v{O+9}, s{sT1}', e[8], wr[1], e[9], wr[2]]: a(x)
        a(f'L_finxd{sf}:')
        for x in [f'v_add_u32 v{vA8}, s{sT3}, v{vL8}', f'v_add_u32 v{vA16}, s{sT4}, v{vL16}', rd[0], e[10], rd[1], e[11], rd[2]] + e[12:16]: a(x)
        e0 = e
        e = [E(1, r) for r in range(16)]
        NW = opt('nw', 6)
        for x in e[0:NW]: a(x)
        a(f's_waitcnt lgkmcnt(0)\nv_cmp_gt_u32 vcc, s{sPH}, v{O+9}\ns_cbranch_vccnz L_hw{sf}')
        a(f'L_hd{sf}:')
        for x in [PV(0, 0)] + e[NW:NW+3] + [PV(0, 1)] + e[NW+3:NW+6] + [QK(2)] + e[NW+6:NW+9] + [PV(1, 0)] + e[NW+9:16]: a(x)
        a(f'L_mid{sf}:')
        for i in range(2, 16):
            plain(i)
        a(f's_cmp_lt_u32 s{sPH}, {PH0 + 7}\ns_cbranch_scc1 L_loop{sf}')
        a(PV(15, 1))
        a(f's_nop 10\ns_branch L_end{sf}')
        a(f'L_finx{sf}:')
        a(e0[8]); a(e0[9])
        self.publish(R, 0, F_AX)
        a(f's_branch L_finxd{sf}')
        a(f'L_hw{sf}:')
        a(f's_mov_b32 s{sCNT}, {SPIN}')
        a(f'L_hl{sf}:')
        a(f's_sleep 1')
        for x in rd: a(x)
        a(f's_waitcnt lgkmcnt(0)\nv_cmp_gt_u32 vcc, s{sPH}, v{O+9}\ns_cbranch_vccz L_hd{sf}\ns_sub_u32 s{sCNT}, s{sCNT}, 1\ns_cbranch_scc0 L_hl{sf}\ns_branch L_hd{sf}')
        a(f'L_end{sf}:')

    def oproj_pre(self):
        a = self.a
        a('s_setprio 3')
        self.sig(F_AX)
        a(f'v_lshrrev_b32 v241, 9, v{vL16}\nv_bfe_u32 v243, v{vL16}, 2, 7\nv_lshl_add_u32 v243, v241, 14, v243\nv_mov_b32 v240, 0\nv_mov_b32 v241, 0')
        a(f's_and_b32 s{sT0}, s{sOW}, 0xc00\ns_lshl_b32 s{sT0}, s{sT0}, 1\nv_add_u32 v242, s{sT0}, v{vL16}\ns_xor_b32 s{sT0}, s{sT0}, 0x1000\nv_add_u32 v245, s{sT0}, v{vL16}\nv_xor_b32 v246, 8, v{vS}')

    def oproj(self):
        a = self.a
        vZ, vOA, vXW, vXR, vP = 240, 243, 242, 245, 246
        OA = [192, 208]
        sPEND, sKH, sOUT = sT3, sT1, sT5
        order = (1, 2, 3, 0)
        for h in range(2): a(f'v_mfma_f32_32x32x8_bf16 {t16(OA[h])}, {pr(vZ)}, {pr(vZ)}, 0')
        loads = lambda q: a(self.o_load(q))
        def proc(q, lab):
            R_ = [self.OF(q, n) + r for n in range(4) for r in range(4)]
            a(f'v_max3_u32 v{vT}, v{R_[0]}, v{R_[1]}, v{R_[2]}')
            for r in range(3, 15, 2): a(f'v_max3_u32 v{vT}, v{R_[r]}, v{R_[r+1]}, v{vT}')
            a(f'v_max_u32 v{vT}, v{R_[15]}, v{vT}\nv_cmp_eq_u32 vcc, -1, v{vT}\ns_cbranch_vccnz {lab}')
            for n in range(4):
                a(f'v_mfma_f32_32x32x16_bf16 {t16(OA[q//4])}, {q4(self.OF(q, n))}, {q4(self.WF(4*(q%4)+n))}, {t16(OA[q//4])}')
            a(f's_bitset0_b32 s{sPEND}, {q}')
            a(f'{lab}:')
        if opt('tail2', 0):
            def retry(h):
                a(f'L_oretry{h}:')
                a(f's_and_b32 s{sT0}, s{sPEND}, {15 << (4*h)}\ns_cbranch_scc0 L_odone{h}\ns_sub_u32 s{sCNT}, s{sCNT}, 1\ns_cbranch_scc1 L_odone{h}')
                for q in range(4 * h, 4 * h + 4):
                    a(f's_bitcmp0_b32 s{sPEND}, {q}\ns_cbranch_scc1 L_ol_{q}')
                    loads(q)
                    a(f'L_ol_{q}:')
                a('s_waitcnt vmcnt(0)')
                for q in range(4 * h, 4 * h + 4):
                    a(f's_bitcmp0_b32 s{sPEND}, {q}\ns_cbranch_scc1 L_o2_{q}')
                    proc(q, f'L_o2_{q}')
                a(f's_branch L_oretry{h}')
                a(f'L_odone{h}:')
            fl = {0: '', 1: ' sc1', 2: ' nt'}[opt('ofl', 2)]
            def send(h):
                a(f's_nop 7\ns_bitcmp1_b32 s{sSW}, 1\ns_cbranch_scc1 L_sh{h}')
                for kh in range(2):
                    sd = OA[h] + 8 - 8 * kh
                    a(f'ds_write_b128 v{vXW}, {q4(sd)} offset:{L_ACCD+8192*h}\nds_write_b128 v{vXW}, {q4(sd+4)} offset:{L_ACCD+8192*h+1024}')
                    self.sig(F_OX + 16 * h)
                    if kh == 0: a(f's_branch L_sd{h}\nL_sh{h}:')
                    else:
                        for r in range(0, 8, 2): a(f'v_pk_mov_b32 {pr(OA[h]+r)}, {pr(OA[h]+8+r)}, {pr(OA[h]+8+r)} op_sel:[0,1]')
                a(f'L_sd{h}:')
            def finish(h):
                self.wait(F_OX + 16 * h, sleep=0, va=vP)
                t = OA[h] + 8
                a(f'ds_read_b128 {q4(t)}, v{vXR} offset:{L_ACCD+8192*h}\nds_read_b128 {q4(t+4)}, v{vXR} offset:{L_ACCD+8192*h+1024}')
                for r in range(8):
                    if r % 4 == 0: a(f's_waitcnt lgkmcnt({1 - r//4})')
                    a(f'v_add_f32 v{t+r}, v{t+r}, v{OA[h]+r}\ns_add_u32 s{sT0}, s{sOUT}, {((r % 4) + 8 * (r // 4) + 32 * h) * 4096}')
                    if 'noo' not in OPT: a(f'buffer_store_dword v{t+r}, v{vOA}, s[{SOUT}:{SOUT+3}], s{sT0} offen{fl}')
            def verify(q):
                R_ = [self.OF(q, n) + r for n in range(4) for r in range(4)]
                if opt('vlite', 0): return [f'v_max3_u32 v{vT}, v{R_[3]}, v{R_[7]}, v{R_[11]}', f'v_max_u32 v{vT}, v{R_[15]}, v{vT}', f'v_cmp_eq_u32 vcc, -1, v{vT}']
                return [f'v_max3_u32 v{vT}, v{R_[0]}, v{R_[1]}, v{R_[2]}'] + [f'v_max3_u32 v{vT}, v{R_[r]}, v{R_[r+1]}, v{vT}' for r in range(3, 15, 2)] + [f'v_max_u32 v{vT}, v{R_[15]}, v{vT}', f'v_cmp_eq_u32 vcc, -1, v{vT}']
            tails = []
            def pproc(q, nxt, wait=None):
                v = ([wait] if wait else []) + (verify(nxt) if nxt is not None else [])
                a(f's_cbranch_vccnz L_ps{q}')
                k = (len(v) + 2) // 3
                for n in range(4):
                    a(f'v_mfma_f32_32x32x16_bf16 {t16(OA[q//4])}, {q4(self.OF(q, n))}, {q4(self.WF(4*(q%4)+n))}, {t16(OA[q//4])}')
                    if n == 0: a(f's_bitset0_b32 s{sPEND}, {q}')
                    else:
                        for x in v[(n - 1) * k:n * k]: a(x)
                a(f'L_pj{q}:')
                tails.append((q, v))
            a(f's_mov_b32 s{sPEND}, 0xff\ns_cmp_eq_u32 s{sPRE}, 1\ns_cbranch_scc1 L_prej')
            self.wait(F_S[5], sleep=1)
            self.wait(F_AY, sleep=0)
            for q in order: loads(q)
            for st in range(16): a(self.wo_read(st, vLN))
            a('s_waitcnt vmcnt(0)')
            a('L_prej:')
            a('s_waitcnt vmcnt(1) lgkmcnt(0)')
            NX = opt('nx', 2)
            for x in verify(1): a(x)
            for k in range(NX): pproc(order[k], order[k + 1] if k + 1 < NX else None)
            self.wait(F_AY, sleep=0)
            self.stamp(11)
            loads(5); loads(6)
            if NX < 4:
                for x in verify(order[NX]): a(x)
            rest = [7, 4]
            for k in range(NX, 4):
                pproc(order[k], order[k + 1] if k < 3 else None)
                if rest: loads(rest.pop(0))
            for q in rest: loads(q)
            self.srd(SOUT, P(14), 2048 * 4096)
            a(f's_lshr_b32 s{sKH}, s{sSW}, 1\ns_mov_b32 s{sCNT}, 50000')
            a(f's_lshl_b32 s{sOUT}, s{sRB}, 18\ns_lshl_b32 s{sT0}, s{sCG}, 1\ns_and_b32 s{sT2}, s{sWV}, 1\ns_add_u32 s{sT0}, s{sT0}, s{sT2}\ns_lshl_b32 s{sT0}, s{sT0}, 7\ns_add_u32 s{sOUT}, s{sOUT}, s{sT0}\ns_lshl_b32 s{sT0}, s{sKH}, 16\ns_add_u32 s{sOUT}, s{sOUT}, s{sT0}')
            retry(0)
            send(0)
            self.stamp(12)
            a('s_waitcnt vmcnt(12)')
            for x in verify(5): a(x)
            for k, q in enumerate(order):
                pproc(4 + q, 4 + order[k + 1] if k < 3 else None, f's_waitcnt vmcnt({8 - 4*k})' if k < 3 else None)
            a(f's_cmp_eq_u32 s{sPEND}, 0\ns_cbranch_scc1 L_ofast')
            finish(0)
            a(f's_mov_b32 s{sCNT}, 50000')
            retry(1)
            send(1)
            a('s_branch L_olast')
            a('L_ofast:')
            OA.append(OA[1])
            a(f's_nop 7\ns_bitcmp1_b32 s{sSW}, 1\ns_cbranch_scc1 L_shf')
            for kh in range(2):
                sd = OA[1] + 8 - 8 * kh
                a(f'ds_write_b128 v{vXW}, {q4(sd)} offset:{L_ACCD+8192}\nds_write_b128 v{vXW}, {q4(sd+4)} offset:{L_ACCD+8192+1024}')
                self.sig(F_OX + 16)
                if kh == 0: a('s_branch L_sdf\nL_shf:')
                else:
                    for r in range(0, 8, 2): a(f'v_pk_mov_b32 {pr(OA[1]+r)}, {pr(OA[1]+8+r)}, {pr(OA[1]+8+r)} op_sel:[0,1]')
            a('L_sdf:')
            finish(0)
            a('L_olast:')
            self.stamp(1)
            finish(1)
            self.end()
            for q, v in tails:
                a(f'L_ps{q}:')
                for x in v: a(x)
                a(f's_nop 0\ns_branch L_pj{q}')
            return
        a(f's_mov_b32 s{sPEND}, 0xff')
        if opt('pre', 0):
            a(f's_cmp_eq_u32 s{sPRE}, 0\ns_cbranch_scc1 L_nopre')
            a('s_waitcnt vmcnt(1) lgkmcnt(0)')
            proc(1, 'L_o0_1'); proc(2, 'L_o0_2')
            self.wait(F_AY, sleep=0)
            a('s_branch L_prej')
            a('L_nopre:')
        TV = opt('tv', 2)
        if TV == 0:
            self.wait(F_S[5], sleep=1)
            self.wait(F_AY, sleep=0)
            for q in order: loads(q)
            for st in range(16): a(self.wo_read(st, vLN))
            a('s_waitcnt vmcnt(0) lgkmcnt(0)')
            proc(1, 'L_o0b_1'); proc(2, 'L_o0b_2')
            a('L_prej:')
            self.stamp(11)
            loads(5); loads(6)
            proc(3, 'L_o0_3')
            loads(7)
            proc(0, 'L_o0_0')
            loads(4)
        else:
            self.wait(F_S[5], sleep=1)
            if TV >= 2:
                loads(1); loads(2)
            for st in range(16): a(self.wo_read(st, vLN))
            self.wait(F_AY, sleep=0)
            self.stamp(11)
            for q in (order[2:] if TV >= 2 else order): loads(q)
            YD = opt('yd', 3)
            iss = 0
            for k, q in enumerate(order):
                while iss < min(4, k + 1 - YD): loads(4 + order[iss]); iss += 1
                a(f's_waitcnt vmcnt({12 - 4*k + 4*iss})')
                proc(q, f'L_o0_{q}')
            while iss < 4: loads(4 + order[iss]); iss += 1
        self.stamp(12)
        self.srd(SOUT, P(14), 2048 * 4096)
        a(f's_lshr_b32 s{sKH}, s{sSW}, 1\ns_mov_b32 s{sCNT}, 50000')
        a(f's_lshl_b32 s{sOUT}, s{sRB}, 18\ns_lshl_b32 s{sT0}, s{sCG}, 1\ns_and_b32 s{sT2}, s{sWV}, 1\ns_add_u32 s{sT0}, s{sT0}, s{sT2}\ns_lshl_b32 s{sT0}, s{sT0}, 7\ns_add_u32 s{sOUT}, s{sOUT}, s{sT0}\ns_lshl_b32 s{sT0}, s{sKH}, 17\ns_add_u32 s{sOUT}, s{sOUT}, s{sT0}')
        for k, q in enumerate(order):
            a(f's_waitcnt vmcnt({12 - 4*k})')
            proc(4 + q, f'L_o1_{q}')
        a('L_oretry:')
        a(f's_cmp_eq_u32 s{sPEND}, 0\ns_cbranch_scc1 L_odone\ns_sub_u32 s{sCNT}, s{sCNT}, 1\ns_cbranch_scc1 L_odone')
        for q in range(8):
            a(f's_bitcmp0_b32 s{sPEND}, {q}\ns_cbranch_scc1 L_ol_{q}')
            loads(q)
            a(f'L_ol_{q}:')
        a('s_waitcnt vmcnt(0)')
        for q in range(8):
            a(f's_bitcmp0_b32 s{sPEND}, {q}\ns_cbranch_scc1 L_o2_{q}')
            proc(q, f'L_o2_{q}')
        a('s_branch L_oretry')
        a('L_odone:')
        if self.stamps: a(f's_mov_b32 s{sST+14}, s{sCNT}')
        self.stamp(1)
        fl = {0: '', 1: ' sc1', 2: ' nt', 3: ' sc0 sc1', 4: ' sc1 nt', 5: ' sc0 nt', 6: ' sc0 sc1 nt'}[opt('ofl', 2)]
        a(f's_nop 7\ns_cmp_eq_u32 s{sKH}, 0\ns_cbranch_scc0 L_ohi')
        for kh in range(2):
            keep, send = OA[kh], OA[1 - kh]
            for q in range(4): a(f'ds_write_b128 v{vXW}, {q4(send+4*q)} offset:{L_ACCD + 8192*(q//2) + 1024*(q%2)}')
            self.sig(F_OX)
            self.wait(F_OX, sleep=0, va=vP)
            for q in range(4): a(f'ds_read_b128 {q4(4*q)}, v{vXR} offset:{L_ACCD + 8192*(q//2) + 1024*(q%2)}')
            for r in range(16):
                if r % 4 == 0: a(f's_waitcnt lgkmcnt({3 - r//4})')
                a(f'v_add_f32 v{r}, v{r}, v{keep+r}\ns_add_u32 s{sT0}, s{sOUT}, {((r % 4) + 8 * (r // 4)) * 4096}')
                if 'noo' not in OPT: a(f'buffer_store_dword v{r}, v{vOA}, s[{SOUT}:{SOUT+3}], s{sT0} offen{fl}')
            self.end()
            if kh == 0: a('L_ohi:')

    def kvproj(self):
        a = self.a
        vXA, vWA, vU, vO, vZ, D = 176, 177, 178, 179, 180, 184
        a(f's_lshr_b32 s{sT5}, s{sCG}, 1')
        a(f'v_and_b32 v{vT}, 15, v{vLN}\ns_lshl_b32 s{sT0}, s{sT5}, 4\nv_add_u32 v{vO}, s{sT0}, v{vT}\nv_mul_u32_u24 v{vXA}, 1040, v{vO}')
        a(f'v_lshrrev_b32 v{vU}, 4, v{vLN}\nv_lshl_add_u32 v{vXA}, v{vU}, 4, v{vXA}\nv_add_u32 v{vXA}, {L_A1}, v{vXA}')
        a(f'v_lshlrev_b32 v{vWA}, 3, v{vT}\nv_lshl_add_u32 v{vWA}, v{vU}, 8, v{vWA}\nv_and_b32 v181, 1, v{vU}\nv_lshl_add_u32 v{vWA}, v181, 7, v{vWA}\nv_xor_b32 v181, 128, v{vWA}\nv_add_u32 v{vWA}, {L_WKV}, v{vWA}\nv_add_u32 v181, {L_WKV}, v181')
        a(f's_and_b32 s{sT1}, s{sCG}, 1\ns_xor_b32 s{sT2}, s{sT1}, 1')
        a(f'v_lshrrev_b32 v{vO}, s{sT1}, v{vU}\nv_and_b32 v{vO}, 1, v{vO}\nv_lshlrev_b32 v{vO}, 9, v{vO}\nv_lshl_add_u32 v{vO}, v{vT}, 4, v{vO}')
        a(f'v_lshrrev_b32 v{vT}, s{sT2}, v{vU}\nv_and_b32 v{vT}, 1, v{vT}\nv_lshl_add_u32 v{vO}, v{vT}, 3, v{vO}')
        a(f's_lshl_b32 s{sT0}, s{sRB}, 1\ns_lshr_b32 s{sT2}, s{sT5}, 1\ns_add_u32 s{sT0}, s{sT0}, s{sT2}\ns_lshl_b32 s{sT0}, s{sT0}, 1\ns_add_u32 s{sT0}, s{sT0}, s{sT1}\ns_lshl_b32 s{sT0}, s{sT0}, 10')
        a(f's_and_b32 s{sT2}, s{sT5}, 1\ns_lshl_b32 s{sT2}, s{sT2}, 8\ns_add_u32 s{sT0}, s{sT0}, s{sT2}\ns_add_u32 s{sT3}, s{sT0}, {WS_KVIMG:#x}')
        a(f's_lshl_b32 s{sT4}, s{sRB}, 3\ns_add_u32 s{sT4}, s{sT4}, s{sCG}\ns_lshl_b32 s{sT4}, s{sT4}, {opt("fs", 6)}\ns_add_u32 s{sT4}, s{sT4}, {WS_KVFLAG:#x}')
        a(f'v_mov_b32 v{vZ}, 0')
        a(f's_lshl_b32 s{sT0}, s{sSW}, 8\nv_add_u32 v{vXA}, s{sT0}, v{vXA}\ns_lshl_b32 s{sT0}, s{sSW}, 12\nv_add_u32 v{vWA}, s{sT0}, v{vWA}\nv_add_u32 v181, s{sT0}, v181')
        a(f's_lshl_b32 s{sT0}, s{sSW}, 10\nv_add_u32 v{vU}, s{sT0}, v{vL16}')
        self.wait(F_L1, sleep=0)
        self.stamp(12)
        for s in range(4):
            b = 128 + 8 * s
            a(f'ds_read_b128 {q4(b)}, v{vXA} offset:{64*s}')
            a(f'ds_read_b64_tr_b16 {pr(b+4)}, v{vWA} offset:{1024*s}')
            a(f'ds_read_b64_tr_b16 {pr(b+6)}, v181 offset:{1024*s}')
        a(f's_bitcmp1_b32 s{sCG}, 0\ns_cbranch_scc1 L_kv_v')
        for kind in 'kv':
            for s in range(4):
                a(f's_waitcnt lgkmcnt({3 * (3 - s)})')
                b = 128 + 8 * s
                A, B = (q4(b + 4), q4(b)) if kind == 'k' else (q4(b), q4(b + 4))
                a(f'v_mfma_f32_16x16x32_bf16 {q4(D)}, {A}, {B}, {"0" if s == 0 else q4(D)}')
            if kind == 'k': a('s_branch L_kv_j\nL_kv_v:')
        a('L_kv_j:')
        a(f's_cmp_eq_u32 s{sSW}, 0\ns_cbranch_scc1 L_kv_0\ns_nop 5')
        a(f'ds_write_b128 v{vU}, {q4(D)} offset:{L_QF}')
        self.sig(F_S[4])
        a('s_branch L_nokv')
        a('L_kv_0:')
        self.sig(F_S[4])
        self.wait(F_S[4], sleep=0)
        for q in range(3): a(f'ds_read_b128 {q4(128+4*q)}, v{vL16} offset:{L_QF + 1024*(q+1)}')
        for q in range(3):
            a(f's_waitcnt lgkmcnt({2-q})\nv_pk_add_f32 {pr(D)}, {pr(D)}, {pr(128+4*q)}\nv_pk_add_f32 {pr(D+2)}, {pr(D+2)}, {pr(130+4*q)}')
        a(f'v_cvt_pk_bf16_f32 v188, v{D}, v{D+1}\nv_cvt_pk_bf16_f32 v189, v{D+2}, v{D+3}')
        a(f'buffer_store_dwordx2 v[188:189], v{vO}, s[{SWS}:{SWS+3}], s{sT3} offen sc1')
        a(f's_bitcmp1_b32 s{sCG}, 0\ns_cbranch_scc1 L_kv_v2')
        a(f'v_mul_f32 v190, v{D}, v{D}\nv_fmac_f32 v190, v{D+1}, v{D+1}\nv_fmac_f32 v190, v{D+2}, v{D+2}\nv_fmac_f32 v190, v{D+3}, v{D+3}')
        a('v_mov_b32 v191, v190\nv_permlane32_swap_b32 v190, v191\nv_add_f32 v190, v190, v191')
        a('v_mov_b32 v191, v190\nv_permlane16_swap_b32 v190, v191\nv_add_f32 v190, v190, v191')
        a('s_mov_b64 exec, 0xffff\ns_branch L_kv_fin')
        a('L_kv_v2:')
        a(f'v_max3_f32 v190, |v{D}|, |v{D+1}|, |v{D+2}|\nv_max_f32 v190, |v{D+3}|, v190')
        a(f's_mov_b32 s{sT1}, {f2u(2.0**50):#x}\nv_cmp_lt_f32 vcc, s{sT1}, v190\nv_mov_b32 v190, 0x7f800000\ns_mov_b64 exec, vcc')
        a('L_kv_fin:')
        a(f'ds_max_u32 v{vZ}, v190 offset:{F_KST}\ns_mov_b64 exec, -1\nds_read_b32 v183, v{vZ} offset:{F_KST}')
        a('s_waitcnt vmcnt(1)')
        self.get_tag()
        if XC: a(f's_getreg_b32 s{sT0}, hwreg(HW_REG_XCC_ID)\nv_mov_b32 v184, s{sT0}')
        a(f'v_mov_b32 v182, s{sTAG}\nds_write_b32 v{vF}, v182 offset:{F_TAG}')
        self.stamp(13)

    def service(self):
        a = self.a
        self.cyc = False
        L1, L8, L16, L128, FF, WW, CC = 192, 194, 196, 198, 200, 202, 204
        DG = 206
        vXD, vXR, vXR2, vBD, vHA, vHB, vSX, vTW, vTR, vEA, vXS, vOA, vWI, vP8, vCK, vCS, vCK2, vCS2, vHF, vYW, vE0, vPF, vTG, vYR = range(214, 238)
        PRM = 238
        vC31, vHI, vU, vWA, vXA, vQ = 242, 243, 244, 245, 246, 247
        a('L_service:')
        a(f'v_mov_b32 v0, 0\nv_mov_b32 v1, 0\nv_mov_b32 v2, 0\nv_mov_b32 v3, 0')
        a(f's_lshl_b32 s{sT0}, s{sSW}, 10\nv_add_u32 v{vT}, s{sT0}, v{vL16}\nds_write_b128 v{vT}, v[0:3] offset:{L_ACCF}')
        a(f'v_lshlrev_b32 v{vT}, 3, v{vLN}\nds_write_b64 v{vT}, v[0:1]')
        a(f'v_and_b32 v{vC31}, 31, v{vLN}\nv_lshlrev_b32 v{vU}, 1, v{vC31}\nv_lshrrev_b32 v{vHI}, 5, v{vLN}')
        a('s_waitcnt lgkmcnt(0)')
        self.stamp(0)
        a('s_setprio 3')
        self.srd(SWS, P(16), WS_SIZE)
        a(f's_cmp_lg_u32 s{sSW}, 0\ns_cbranch_scc1 L_noepl')
        a(f'buffer_load_dword v{vEP}, off, s[{SWS}:{SWS+3}], 0 sc1')
        a('L_noepl:')
        a(f's_lshl_b32 s{sT0}, s{sPB}, 6')
        for k, p in enumerate((6, 7, 12)):
            self.srd(SA, P(p), 1024)
            a(f'buffer_load_ushort v{PRM+k}, v{vU}, s[{SA}:{SA+3}], s{sT0} offen')
        self.srd(SA, P(13), 1024)
        a(f's_lshl_b32 s{sT0}, s{sCG}, 7\ns_and_b32 s{sT1}, s{sWV}, 1\ns_lshl_b32 s{sT1}, s{sT1}, 6\ns_add_u32 s{sT0}, s{sT0}, s{sT1}')
        a(f'buffer_load_ushort v{PRM+3}, v{vU}, s[{SA}:{SA+3}], s{sT0} offen')
        a('s_barrier')
        self.common_regs()
        self.tr_parts(vTR, vU, vWA)
        a(f'v_lshl_add_u32 v{vTR}, v{vU}, 6, v{vTR}\nv_lshl_add_u32 v{vTR}, v{vHI}, 9, v{vTR}')
        a(f'v_lshl_add_u32 v{vWA}, v{vHI}, 10, v{vWA}\nv_add_u32 v{vWA}, {L_A2}, v{vWA}')
        a(f'v_mul_u32_u24 v{vCK}, 1040, v{vC31}\nv_lshl_add_u32 v{vCK}, v{vHI}, 4, v{vCK}\nv_add_u32 v{vCK}, {L_A1}, v{vCK}')
        a(f's_lshr_b32 s{sT0}, s{sSW}, 1\ns_mul_i32 s{sT0}, s{sT0}, {32*1040}\nv_add_u32 v{vXA}, s{sT0}, v{vCK}')
        a(f's_lshl_b32 s{sT0}, s{sSW}, 11\nv_add_u32 v{vQ}, s{sT0}, v{vL16}')
        sXB, sXL, sTP, sCT = 73, 74, 75, 80
        a(f's_lshl_b32 s{sXB}, s{sTB}, 2\ns_add_u32 s{sXB}, s{sXB}, s{sSW}\ns_lshl_b32 s{sXB}, s{sXB}, 15')
        a(f's_mul_i32 s{sXL}, s{sSW}, {XW}\ns_add_u32 s{sXL}, s{sXL}, {L_A2}')
        a(f's_lshl_b32 s{sTP}, s{sRB}, 1\ns_lshr_b32 s{sT0}, s{sSW}, 1\ns_add_u32 s{sTP}, s{sTP}, s{sT0}')
        a(f's_lshl_b32 s{sCT}, s{sCG}, 1\ns_and_b32 s{sT0}, s{sSW}, 1\ns_add_u32 s{sCT}, s{sCT}, s{sT0}')
        a(f'v_lshlrev_b32 v{vT}, 3, v{vHI}\nv_xor_b32 v{vT}, v{vC31}, v{vT}\nv_lshlrev_b32 v{vT}, 4, v{vT}\nv_lshl_add_u32 v{vXD}, v{vHI}, 13, v{vT}\nv_lshl_add_u32 v{vBD}, v{vHI}, 10, v{vT}')
        def tmap(i):
            r = 4 * (i >> 3) + (i & 3)
            return 16 * ((i >> 2) & 1) + (r >> 1) + 8 * (r & 1)
        def xdma(half, ms=range(16)):
            for m in ms:
                a(f's_xor_b32 s{sT0}, s{sXM}, {m}\ns_mul_i32 s{sT0}, s{sT0}, 1040\ns_add_u32 m0, s{sT0}, s{sXL}\ns_xor_b32 s{sT0}, s{sXG}, {tmap(2*m)*1024 + 512*half}')
                a(f'buffer_load_dwordx4 v{vXD}, s[{SA}:{SA+3}], s{sT0} offen lds')
        sXM, sXG, sHB = 50, 51, 81
        a(f's_and_b32 s{sXM}, s{sPB}, 14\ns_and_b32 s{sT0}, s{sPB}, 2\ns_lshl_b32 s{sT0}, s{sT0}, 3\ns_lshr_b32 s{sT1}, s{sPB}, 2\ns_lshl_b32 s{sT1}, s{sT1}, 1\ns_add_u32 s{sT0}, s{sT0}, s{sT1}\ns_lshl_b32 s{sT0}, s{sT0}, 10')
        a(f's_xor_b32 s{sHB}, s{sPB}, s{sTB}\ns_and_b32 s{sHB}, s{sHB}, {opt("hrot", 1)}\ns_lshl_b32 s{sHB}, s{sHB}, 9\ns_add_u32 s{sT0}, s{sT0}, s{sHB}\ns_add_u32 s{sXG}, s{sXB}, s{sT0}')
        a(f'v_lshrrev_b32 v{vU}, 1, v{vC31}\nv_mul_u32_u24 v{vU}, 1040, v{vU}\nv_lshl_add_u32 v{vU}, v{vHI}, 4, v{vU}\nv_and_b32 v{vT}, 1, v{vC31}')
        a(f'v_mul_u32_u24 v{vHA}, 640, v{vT}\nv_mul_u32_u24 v{vHB}, 384, v{vT}\nv_add_u32 v{vHA}, v{vHA}, v{vU}\nv_add_u32 v{vHB}, v{vHB}, v{vU}')
        a(f'v_add_u32 v{vXR}, s{sXL}, v{vHA}\nv_add_u32 v{vXR2}, s{sXL}, v{vHB}\nv_add_u32 v{vHA}, {L_A1}, v{vHA}\nv_add_u32 v{vHB}, {L_A1}, v{vHB}')
        a(f'v_lshlrev_b32 v{vSX}, 3, v{vLN}\nv_add_u32 v{vSX}, s{sXL}, v{vSX}')
        a(f'v_lshlrev_b32 v{vP8}, 3, v{vC31}\nv_add_u32 v{vP8}, {L_A2}, v{vP8}')
        a(f'v_lshlrev_b32 v{vTW}, 6, v{vC31}\nv_lshl_add_u32 v{vTW}, v{vHI}, 5, v{vTW}\nv_add_u32 v{vTW}, s{sXL}, v{vTW}\nv_add_u32 v{vTR}, s{sXL}, v{vTR}')
        a(f'v_lshlrev_b32 v{vEA}, 4, v{vC31}\nv_xor_b32 v{vT}, 1, v{vHI}\nv_lshl_add_u32 v{vEA}, v{vT}, 12, v{vEA}')
        a(f'v_lshlrev_b32 v{vXS}, 10, v{vC31}\nv_lshl_add_u32 v{vXS}, v{vHI}, 4, v{vXS}')
        a(f'v_lshlrev_b32 v{vOA}, 2, v{vC31}\nv_lshl_add_u32 v{vOA}, v{vHI}, 14, v{vOA}')
        self.wimg_lane_addr(vWI, vT)
        a(f's_and_b32 s{sT0}, s{sSW}, 1\ns_mul_i32 s{sT1}, s{sT0}, {512 - 32*1040}\ns_add_u32 s{sT1}, s{sT1}, {32*1040}\nv_add_u32 v{vCS}, s{sT1}, v{vCK}')
        a(f's_mul_i32 s{sT1}, s{sT0}, {32*1040 + 512}\nv_add_u32 v{vCK}, s{sT1}, v{vCK}\nv_add_u32 v{vCK2}, {L_A2 - L_A1}, v{vCK}\nv_add_u32 v{vCS2}, {L_A2 - L_A1}, v{vCS}')
        a(f'v_and_b32 v{vHF}, 15, v{vLN}\nv_lshlrev_b32 v{vHF}, 7, v{vHF}\nv_lshlrev_b32 v{vPF}, 6, v{vLN}')
        a(f'v_add_u32 v{vYW}, s{sXL}, v{vL16}\ns_xor_b32 s{sT0}, s{sSW}, 1\ns_mul_i32 s{sT0}, s{sT0}, {XW}\ns_add_u32 s{sT0}, s{sT0}, {L_A2}\nv_add_u32 v{vYR}, s{sT0}, v{vL16}')
        self.kvproj()
        a('L_nokv:')
        a(f's_cmp_eq_u32 s{sSW}, 0\ns_cbranch_scc1 L_pw1\ns_waitcnt vmcnt(0)')
        a('L_pw1:')
        a(f'v_lshlrev_b32 v0, 16, v{PRM}\nv_lshlrev_b32 v1, 16, v{PRM+1}\nv_lshlrev_b32 v2, 16, v{PRM+2}')
        LOG2E = f2u(math.log2(math.e))
        a(f'v_mul_f32 v2, {LOG2E:#x}, v2\nv_exp_f32 v2, v2\nv_cvt_pk_bf16_f32 v2, v2, v2\nv_lshlrev_b32 v2, 16, v2')
        a(f'v_mul_f32 v4, v2, v0\nv_mul_f32 v5, v2, v1\nv_mul_f32 v4, {LOG2E:#x}, v4\nv_mul_f32 v5, {f2u(-1/(2*math.pi)):#x}, v5')
        def power(d, n):
            a(f'v_mul_f32 v6, {n}, v4\nv_mul_f32 v7, {n}, v5\nv_exp_f32 v6, v6\nv_fract_f32 v7, v7\nv_cos_f32 v8, v7\nv_sin_f32 v9, v7\nv_mul_f32 v{d}, v6, v8\nv_mul_f32 v{d+1}, v6, v9')
        power(L1, '1.0')
        power(L8, f'{f2u(8.0):#x}')
        power(L16, f'{f2u(16.0):#x}')
        power(L128, f'{f2u(128.0):#x}')
        a(f'v_cvt_f32_u32 v11, v{vHI}\nv_mul_f32 v11, {f2u(1024.0):#x}, v11')
        power(FF, 'v11')
        a(f's_lshl_b32 s{sT0}, s{sSW}, 1\nv_add_u32 v11, s{sT0}, v{vHI}\nv_cvt_f32_u32 v11, v11\nv_mul_f32 v11, {f2u(16.0):#x}, v11')
        power(WW, 'v11')
        a(f'v_add_f32 v6, -1.0, v{L1}\nv_mul_f32 v7, v0, v0\nv_fmac_f32 v7, v1, v1\nv_rcp_f32 v7, v7\nv_add_f32 v7, v7, v7')
        a(f'v_mul_f32 v8, v6, v0\nv_fma_f32 v8, -v{L1+1}, v1, v8\nv_mul_f32 v9, v6, v1\nv_fma_f32 v9, -v{L1+1}, v0, -v9\nv_mul_f32 v{CC}, v8, v7\nv_mul_f32 v{CC+1}, v9, v7')
        a(f'v_and_b32 v6, 1, v{vLN}\nv_lshlrev_b32 v6, 4, v6\nv_lshlrev_b32 v3, v6, v{PRM+3}')
        a(f'v_lshrrev_b32 v6, 1, v{vC31}\nv_lshlrev_b32 v7, 2, v{vHI}\nv_sub_u32 v6, v6, v7')
        for q in range(8):
            a(f'v_cmp_eq_u32 vcc, {8*(q//4) + q%4}, v6\nv_cndmask_b32 v{DG+q}, 0, v3, vcc')
        LC = PRM
        a(f'v_mov_b32 v{LC}, 0\nv_mov_b32 v{LC+1}, 0')
        WT, D = 128, 160
        def kvflag():
            a(f's_cmp_lg_u32 s{sSW}, 0\ns_cbranch_scc1 L_nokvf')
            a('s_waitcnt vmcnt(0)')
            a(f's_mov_b64 exec, {(1 << (1 << (opt("fs", 6) - 4))) - 1:#x}\nbuffer_store_dwordx4 v[182:185], v{vL16}, s[{SWS}:{SWS+3}], s{sT4} offen sc1\ns_mov_b64 exec, -1')
            self.sig(F_KVD, va=vF)
            self.stamp(14)
            a('L_nokvf:')
        FP = opt('fp', 16)
        if FP < 0:
            a('s_waitcnt lgkmcnt(0)'); kvflag()
        self.wait(F_L2, sleep=1)
        self.stamp(1)
        vXQ = [vU, 186, 187, 191]
        a(f's_and_b32 s{sT1}, s{sRB}, 3')
        for c in range(4): a(f's_xor_b32 s{sT0}, s{sT1}, {c}\ns_lshl_b32 s{sT0}, s{sT0}, 8\nv_add_u32 v{vXQ[c]}, s{sT0}, v{vXA}')
        def xr(st): a(f'ds_read_b128 {q4(4*st)}, v{vXQ[st//8]} offset:{32*(st%8)}')
        NPR = opt('npr', 16)
        if FP == 0: kvflag()
        for st in range(32 - NPR, 32): xr(st)
        if FP == 16: kvflag()
        lq = []
        def wr(st):
            b = WT + 4 * (st % 8)
            if st < 32 - NPR: xr(st); lq.append(st)
            a(f'ds_read_b64_tr_b16 {pr(b)}, v{vWA} offset:{2048*st}\nds_read_b64_tr_b16 {pr(b+2)}, v{vWA} offset:{2048*st+512}')
            lq.extend([st, st])
        for s0, s1, fl in ((0, 16, F_L4), (16, 32, F_L6)):
            self.wait(fl, sleep=0)
            if s0 == 0:
                self.stamp(2)
            dp = 4 if s0 < 32 - NPR else 6
            for st in range(s0, s0 + dp): wr(st)
            for st in range(s0, s1):
                lq[:] = [x for x in lq if x > st]
                a(f's_waitcnt lgkmcnt({len(lq)})')
                a(f'v_mfma_f32_32x32x16_bf16 {t16(D)}, {q4(WT + 4*(st%8))}, {q4(4*st)}, {"0" if st == 0 else t16(D)}')
                if st + dp < s1: wr(st + dp)
            if s0 == 0:
                if FP == 32: kvflag()
                self.wait(F_KVD, sleep=0)
                self.sig(F_QA)
                a(f'ds_read_b32 v{vTG}, v{vF} offset:{F_TAG}')
        QS = f2u(0.25 * math.log2(math.e))
        a(f'v_mov_b32 v24, {QS:#x}')
        for r in range(8):
            a(f'v_pk_mul_f32 {pr(D+2*r)}, v[24:25], {pr(D+2*r)} op_sel:[0,0] op_sel_hi:[0,1]')
            a(f'v_cvt_pk_bf16_f32 v{16+r}, v{D+2*r}, v{D+2*r+1}')
            if r == 3: a(f'ds_write_b128 v{vQ}, v[16:19] offset:{L_QF}')
        a(f'ds_write_b128 v{vQ}, v[20:23] offset:{L_QF+1024}')
        self.sig(F_QP)
        self.stamp(3)
        a(f'v_mul_f32 v8, v{D}, v{D}\nv_mul_f32 v9, v{D+8}, v{D+8}')
        for r in range(1, 8): a(f'v_fmac_f32 v8, v{D+r}, v{D+r}\nv_fmac_f32 v9, v{D+8+r}, v{D+8+r}')
        a('v_permlane32_swap_b32 v8, v9\nv_add_f32 v8, v8, v9')
        a(f'v_mov_b32 v{vQ}, v8')
        if 'nosvc' in OPT:
            self.sig(F_S[0]); self.sig(F_S[9]); self.end(); return
        vCL = vXA
        HR_ = opt('hr', 0)
        a(f's_and_b32 s{sT0}, s{sCG}, {3 if HR_ else 0}\ns_lshl_b32 s{sT0}, s{sT0}, 7\nv_xor_b32 v{vCL}, s{sT0}, v{vL16}')
        SN = 180
        a(f'v_readfirstlane_b32 s{sTAG}, v{vTG}')
        a(f'v_mov_b32 v{SN}, -1\nv_mov_b32 v{SN+1}, -1\nv_mov_b32 v{SN+2}, -1\nv_mov_b32 v{SN+3}, -1\nv_mov_b32 v{SN+4}, 0\nv_mov_b32 v{SN+5}, 0\nv_mov_b32 v{SN+6}, v{vTG}\nv_mov_b32 v{SN+7}, 0')
        self.srd(SA, P(5), 2048 * 1024)
        self.srd(SB, P(8), 512 * 1024)
        self.srd(SC, P(9), 512 * 1024)
        self.stamp(11)
        def bdma(half, only=None):
            if half == 0: a(f's_mul_i32 s{sT1}, s{sSW}, {4*1040}\ns_lshl_b32 s{sT2}, s{sPB}, 15\ns_lshl_b32 s{sT3}, s{sSW}, 13\ns_add_u32 s{sT2}, s{sT2}, s{sT3}\ns_add_u32 s{sT2}, s{sT2}, s{sHB}')
            for pl, srd in ((0, SB), (1, SC)):
                for m in range(4):
                    if only is not None and only != 4 * pl + m: continue
                    a(f's_add_u32 m0, s{sT1}, {L_A1 + ((2*half + pl)*16 + m)*1040}\ns_xor_b32 s{sT0}, s{sT2}, {2048*m + 512*half}')
                    a(f'buffer_load_dwordx4 v{vBD}, s[{srd}:{srd+3}], s{sT0} offen lds')
        def xread(half):
            for s in range(16): a(f'ds_read_b128 {q4(64*half + 4*s)}, v{vXR2 if s & 4 else vXR} offset:{32*s}')
        def rowdma(srd, base, sg, n):
            for m in range(n):
                if m % 4 == 0: a(f's_add_u32 m0, s{sT1}, {base + m*1040}\ns_add_u32 s{sT0}, s{sg}, {1024*m}')
                else: a('s_add_u32 m0, m0, 16')
                a(f'buffer_load_dwordx4 v{vCL}, s[{srd}:{srd+3}], s{sT0} offen offset:{1024*(m%4)} lds')
        self.wait(F_A1, sleep=opt('a1s', 4))
        self.stamp(10)
        a(f'ds_read_b64 {pr(SN+8)}, v{SN+4} offset:{F_KMAX}')
        xdma(0, range(2)); a(f's_mov_b32 s{sT0}, {f2u(3400.0):#x}\ns_waitcnt lgkmcnt(0)')
        a(f'v_mul_f32 v{vT}, v{SN+8}, v{vQ}\nv_cmp_nge_f32 vcc, s{sT0}, v{vT}' + (f'\nv_readfirstlane_b32 s{sXC}, v{SN+9}' if XC else '') + f'\ns_cmp_eq_u64 vcc, 0\ns_cselect_b32 s{sT0}, 1, 2\nv_mov_b32 v{vQ}, s{sT0}')
        a(f'ds_write_b32 v{vS}, v{vQ} offset:{F_S[0]}')
        bdma(0); xdma(0, range(2, 16))
        a('s_waitcnt vmcnt(0)')
        self.sig(F_S[1])
        self.stamp(4)
        xread(0)
        self.wait(F_S[1], sleep=1)
        self.stamp(5)
        GR, GI, BT = 128, 144, 160
        PD = 2 * opt('s1depth', 1)
        lq = []
        def bread(q):
            s, pl = q // 2, q % 2
            a(f'ds_read_b128 {q4(BT + 4*(q%4))}, v{vHB if s & 4 else vHA} offset:{((2*(s//16) + pl)*16)*1040 + 32*(s%16)}')
            lq.append(('b', q))
        a(f's_setprio {opt("gprio1", 0)}')
        for q in range(PD): bread(q)
        XQ = opt('xq', 21)
        for q in range(1, 64, 2):
            s = q // 2
            need = max([i for i, x in enumerate(lq) if x == ('b', q) or x == ('x', s)] + [-1])
            if need >= 0:
                a(f's_waitcnt lgkmcnt({len(lq) - 1 - need})')
                del lq[:need + 1]
            for pl, Gx in ((0, GR), (1, GI)):
                a(f'v_mfma_f32_32x32x16_bf16 {t16(Gx)}, {q4(4*s)}, {q4(BT + 4*((q-1+pl)%4))}, {"0" if s == 0 else t16(Gx)}')
            if q - 1 + PD == 32:
                a('s_setprio 3')
                self.wait(F_S[2], sleep=1); lq.clear()
                a(f's_setprio {opt("gprio1", 0)}')
                self.stamp(12)
            if XQ < q <= XQ + 32:
                sx = (q - XQ) // 2 - 1
                a(f'ds_read_b128 {q4(64 + 4*sx)}, v{vXR2 if sx & 4 else vXR} offset:{32*sx}'); lq.append(('x', 16 + sx))
            if q + PD < 64: bread(q - 1 + PD); bread(q + PD)
            if s < 2:
                for m in range(4): bdma(1, 4 * s + m)
            elif s < 6: xdma(1, range(4 * s - 8, 4 * s - 4))
            elif opt('pad1', 0): a(f's_nop {opt("pad1", 0) - 1}')
            if q == XQ:
                a('s_waitcnt vmcnt(0)')
                self.sig(F_S[2]); lq.append(('s', 0))
                a(f's_or_b32 s{sT0}, s2, s{sSW}\ns_cbranch_scc1 L_noep')
                a(f's_mov_b64 exec, 1\nbuffer_store_dword v{vTG}, off, s[{SWS}:{SWS+3}], 0 sc1\ns_mov_b64 exec, -1')
                a('L_noep:')
                a(f's_cmp_lg_u32 s{sTB}, 0\ns_cbranch_scc1 L_nozero')
                a(f's_lshl_b32 s{sT0}, s{sPB}, 14\ns_lshl_b32 s{sT1}, s{sSW}, 11\ns_add_u32 s{sT0}, s{sT0}, s{sT1}\ns_add_u32 s{sT0}, s{sT0}, {WS_EBUF:#x}')
                for n in range(2): a(f'buffer_store_dwordx4 {q4(SN+4)}, v{vL16}, s[{SWS}:{SWS+3}], s{sT0} offen offset:{1024*n} sc1')
                a('L_nozero:')
                a(f's_lshr_b32 s{sT0}, s{sSW}, 1\ns_and_b32 s{sT1}, s{sRB}, 1\ns_cmp_lg_u32 s{sT0}, s{sT1}\ns_cbranch_scc1 L_nosent')
                a(f's_lshl_b32 s{sT1}, s{sCG}, 12\ns_add_u32 s{sT0}, s{sXB}, s{sT1}\ns_add_u32 s{sT0}, s{sT0}, {WS_OBUF:#x}')
                self.xstore([f'buffer_store_dwordx4 {q4(SN)}, v{vL16}, s[{SWS}:{SWS+3}], s{sT0} offen offset:{1024*n}' for n in range(4)], 's')
                a('L_nosent:')
                if opt('pf', 1): self.prefetch((10, 11, 4), vPF)
        a('s_setprio 3')
        self.stamp(6)
        if opt('stop', 0) == 6: self.end(); return
        RE = 'op_sel:[0,0,0] op_sel_hi:[0,1,1]'
        IM = 'op_sel:[1,0,0] op_sel_hi:[1,1,1]'
        T0, T1 = 8, 10
        def pstep(dr, di, sr, si, l, ur, ui, ns=0, nu=0):
            a(f'v_pk_fma_f32 {pr(T0)}, {pr(l)}, {pr(si)}, {pr(ur)} {IM} neg_lo:[{1-ns},0,0] neg_hi:[{1-ns},0,0]')
            a(f'v_pk_fma_f32 {pr(T1)}, {pr(l)}, {pr(sr)}, {pr(ui)} {IM} neg_lo:[0,0,{nu}] neg_hi:[0,0,{nu}]')
            a(f'v_pk_fma_f32 {pr(dr)}, {pr(l)}, {pr(sr)}, {pr(T0)} {RE}')
            a(f'v_pk_fma_f32 {pr(di)}, {pr(l)}, {pr(si)}, {pr(T1)} {RE} neg_lo:[{ns},0,0] neg_hi:[{ns},0,0]')
        def cstep(dr, di, sr, si, l, ur, ui):
            a(f'v_fma_f32 v{T0}, -v{l+1}, v{si}, v{ur}\nv_fma_f32 v{T1}, v{l+1}, v{sr}, v{ui}\nv_fma_f32 v{dr}, v{l}, v{sr}, v{T0}\nv_fma_f32 v{di}, v{l}, v{si}, v{T1}')
        def zstep(d, s, l, u):
            a(f'v_pk_fma_f32 {pr(T0)}, {pr(l)}, {pr(s)}, {pr(u)} {RE}')
            a(f'v_pk_fma_f32 {pr(d)}, {pr(l)}, {pr(s)}, {pr(T0)} op_sel:[1,1,0] op_sel_hi:[1,0,1] neg_lo:[1,0,0]')
        def cmul(r, i, neg):
            a(f'v_pk_mul_f32 {pr(T0)}, {pr(CC)}, {pr(i)} op_sel:[1,0] op_sel_hi:[1,1]')
            a(f'v_pk_mul_f32 {pr(T1)}, {pr(CC)}, {pr(r)} op_sel:[1,0] op_sel_hi:[1,1]')
            a(f'v_pk_fma_f32 {pr(r)}, {pr(CC)}, {pr(r)}, {pr(T0)} {RE} neg_lo:[0,0,{neg}] neg_hi:[0,0,{neg}]')
            a(f'v_pk_fma_f32 {pr(i)}, {pr(CC)}, {pr(i)}, {pr(T1)} {RE} neg_lo:[{neg},0,1] neg_hi:[{neg},0,1]')
        ER, EI, EE = 12, 14, 16
        pstep(ER, EI, GR, GI, L1, GR + 2, GI + 2, 1, 1)
        for r in range(4, 16, 2): pstep(ER, EI, ER, EI, L1, GR + r, GI + r, 0, 1)
        cstep(EE, EE + 1, ER, EI, L8, ER + 1, EI + 1)
        a(f'ds_write_b64 v{vSX}, {pr(EE)} offset:{L_SXO}')
        self.sig(F_S[3])
        self.srd(SB, P(10), 512 * 1024)
        self.srd(SC, P(11), 512 * 1024)
        if HR_:
            a(f's_bitcmp1_b32 s{sCG}, 2\ns_cselect_b32 s{SB}, s{P(11)}, s{P(10)}\ns_cselect_b32 s{SB+1}, s{P(11)+1}, s{P(10)+1}\ns_cselect_b32 s{SC}, s{P(10)}, s{P(11)}\ns_cselect_b32 s{SC+1}, s{P(10)+1}, s{P(11)+1}')
        a(f's_lshl_b32 s{sT3}, s{sSW}, 1\ns_mov_b32 s{sM0}, 0\ns_mov_b32 s{sM0+1}, -1')
        a(f's_lshl_b32 s{sT4}, s{sPB}, 14\ns_lshl_b32 s{sT1}, s{sTB}, 9\ns_add_u32 s{sT4}, s{sT4}, s{sT1}\ns_add_u32 s{sT4}, s{sT4}, {WS_EBUF:#x}')
        self.wait(F_S[3], sleep=1)
        for c in range(7): a(f'ds_read_b64 {pr(20+2*c)}, v{vP8} offset:{(c//2)*XW + L_SXO + (c%2)*256}')
        a('s_waitcnt lgkmcnt(0)')
        for c in range(7):
            a(f's_cmp_lt_u32 s{sT3}, {c}\ns_cbranch_scc1 L_lh_done')
            a(f's_cmp_gt_u32 s{sT3}, {c}\ns_cselect_b64 exec, -1, s[{sM0}:{sM0+1}]')
            zstep(LC, LC, L16, 20 + 2 * c)
        zstep(vTG - 2, LC, L16, EE)
        a(f's_add_u32 s{sT0}, s{sT4}, {16*512 - 512}\nbuffer_store_dwordx4 v[{vTG-2}:{vTG+1}], v{vL16}, s[{SWS}:{SWS+3}], s{sT0} offen sc1')
        a('L_lh_done:\ns_mov_b64 exec, -1')
        self.stamp(7)
        def cdma(srd, base):
            a(f's_mul_i32 s{sT1}, s{sSW}, {16*1040}\ns_lshl_b32 s{sT2}, s{sCG}, 16\ns_lshl_b32 s{sT3}, s{sSW}, 14\ns_add_u32 s{sT2}, s{sT2}, s{sT3}')
            rowdma(srd, base, sT2, 16)
        if not opt('cmf', 1): cdma(SB, L_A1)
        for r in range(0, 16, 2): cmul(GR + r, GI + r, 1)
        if opt('cmf', 1): cdma(SB, L_A1)
        a(f's_mov_b32 s{sCNT}, 100000')
        a('L_eg:')
        for q in range(8): a(f'buffer_load_dwordx3 v[{24+4*q}:{26+4*q}], v{vEA}, s[{SWS}:{SWS+3}], s{sT4} offen offset:{512*q} sc1')
        a('s_waitcnt vmcnt(0)')
        a(f'v_cmp_ne_u32 vcc, s{sTAG}, v26')
        for q in range(1, 8): a(f'v_cmp_ne_u32 s[{sM1}:{sM1+1}], s{sTAG}, v{26+4*q}\ns_or_b64 vcc, vcc, s[{sM1}:{sM1+1}]')
        a(f's_cbranch_scc0 L_egd\ns_sleep {opt("esleep", 10)}\ns_sub_u32 s{sCNT}, s{sCNT}, 1\ns_cbranch_scc0 L_eg')
        a('L_egd:')
        self.sig(F_S[9])
        self.stamp(8)
        for q in range(1, 8): zstep(24, 24, L128, 24 + 4 * q)
        a(f'v_pk_mul_f32 {pr(T0)}, {pr(FF)}, {pr(24)} op_sel:[0,0] op_sel_hi:[0,1]')
        a(f'v_pk_fma_f32 {pr(20)}, {pr(FF)}, {pr(24)}, {pr(T0)} op_sel:[1,1,0] op_sel_hi:[1,0,1] neg_lo:[1,0,0]')
        a(f'v_mov_b32 v22, v20\nv_mov_b32 v23, v21\nv_permlane32_swap_b32 v20, v22\nv_permlane32_swap_b32 v21, v23\nv_pk_add_f32 {pr(20)}, {pr(20)}, {pr(22)}')
        IR, II = 24, 26
        cstep(IR, II, 20, 21, WW, LC, LC + 1)
        cstep(IR + 1, II + 1, IR, II, L8, ER, EI)
        cmul(IR, II, 0)
        pstep(GR, GI, IR, II, L1, GR, GI)
        for r in range(2, 16, 2): pstep(GR + r, GI + r, GR + r - 2, GI + r - 2, L1, GR + r, GI + r)
        for pl, Gx in ((0, GR), (1, GI)):
            for j in range(8):
                r0 = 4 * (j % 4) + j // 4
                a(f'v_cvt_pk_bf16_f32 v{28+8*pl+j}, v{Gx+r0}, v{Gx+r0+2}')
            a(f'ds_write_b128 v{vTW}, {q4(28+8*pl)} offset:{L_TBO+2048*pl}\nds_write_b128 v{vTW}, {q4(32+8*pl)} offset:{L_TBO+2048*pl+16}')
        for pl in range(2):
            for f in range(2):
                d = 44 + 8 * pl + 4 * f
                a(f'ds_read_b64_tr_b16 {pr(d)}, v{vTR} offset:{L_TBO+2048*pl+1024*f}\nds_read_b64_tr_b16 {pr(d+2)}, v{vTR} offset:{L_TBO+2048*pl+1024*f+256}')
        a(f's_lshl_b32 s{sT0}, s{sXB}, 1\ns_lshl_b32 s{sT1}, s{sPB}, 11\ns_add_u32 s{sT0}, s{sT0}, s{sT1}\ns_add_u32 s{sT0}, s{sT0}, {WS_HBUF:#x}\ns_add_u32 s{sT1}, s{sT0}, 0x8000')
        hs = []
        for pl in range(2):
            for f in range(2):
                d = 44 + 8 * pl + 4 * f
                hs += [f's_waitcnt lgkmcnt({6 - 4*pl - 2*f})', f'buffer_store_dwordx4 {q4(d)}, v{vL16}, s[{SWS}:{SWS+3}], s{sT0 if pl == 0 else sT1} offen offset:{1024*f}']
        self.xstore(hs, 'h')
        YK, YS, XF, HR = 128, 144, 184, 160
        a(f's_lshl_b32 s{sT0}, s{sTP}, 15\ns_lshl_b32 s{sT1}, s{sCT}, 6\ns_add_u32 s{sT0}, s{sT0}, s{sT1}')
        a(f'buffer_load_dwordx4 {q4(XF)}, v{vXS}, s[{SA}:{SA+3}], s{sT0} offen\nbuffer_load_dwordx4 {q4(XF+4)}, v{vXS}, s[{SA}:{SA+3}], s{sT0} offen offset:32')
        a(f's_lshr_b32 s{sT4}, s{sXB}, 4\ns_lshl_b32 s{sT3}, s{sPB}, 7\ns_add_u32 s{sT4}, s{sT4}, s{sT3}\ns_add_u32 s{sT4}, s{sT4}, {WS_HFLAG:#x}')
        self.wait(F_S[9], sleep=1)
        if opt('cearly', 1):
            for j in range(16): a(f'ds_read_b128 {q4(8*j)}, v{vCK} offset:{32*j}\nds_read_b128 {q4(8*j+4)}, v{vCS} offset:{32*j}')
            self.sig(F_S[6])
        a(f's_mov_b32 s{sM1}, -1\ns_mov_b32 s{sM1+1}, 0\ns_waitcnt vmcnt(2)')
        a(f's_mov_b64 exec, s[{sM1}:{sM1+1}]')
        self.xstore([f'buffer_store_dword v{vTG}, v{vOA}, s[{SWS}:{SWS+3}], s{sT4} offen'], 'h')
        a('s_mov_b64 exec, -1')
        self.stamp(9)
        if opt('stop', 0) == 9: self.end(); return
        LATE = opt('late', 1)
        if not LATE: cdma(SC, L_A2)
        if not opt('cearly', 1):
            for j in range(16): a(f'ds_read_b128 {q4(8*j)}, v{vCK} offset:{32*j}\nds_read_b128 {q4(8*j+4)}, v{vCS} offset:{32*j}')
            self.sig(F_S[6])
        a(f's_waitcnt vmcnt({1 if LATE else 17})')
        a(f'v_mfma_f32_32x32x16_bf16 {t16(YK)}, {q4(XF)}, {q4(DG)}, 0')
        a(f'v_mfma_f32_32x32x16_bf16 {t16(YK)}, {q4(XF+4)}, {q4(DG+4)}, {t16(YK)}')
        self.srd(SB, P(4), 512 * 1024)
        a(f's_lshl_b32 s{sT4}, s{sSW}, 17\ns_lshl_b32 s{sT1}, s{sCG}, 7\ns_add_u32 s{sT4}, s{sT4}, s{sT1}\ns_and_b32 s{sT1}, s{sCG}, 3\ns_lshl_b32 s{sT1}, s{sT1}, 16\ns_xor_b32 s{sT4}, s{sT4}, s{sT1}\ns_lshl_b32 s{sT1}, s{sSW}, 14\ns_add_u32 m0, s{sT1}, {L_A1}')
        self.wait(F_S[6], sleep=1)
        for m in range(16):
            a(f's_xor_b32 s{sT0}, s{sT4}, {8192*m:#x}\nbuffer_load_dwordx4 v{vWI}, s[{SB}:{SB+3}], s{sT0} offen lds\ns_add_u32 m0, m0, 1024')
        a(f's_lshl_b32 s{sT0}, s{sTP}, 11\ns_add_u32 s{sT0}, s{sT0}, {WS_HFLAG:#x}\ns_mov_b64 exec, 0xffff')
        a(f's_mov_b32 s{sCNT}, 100000')
        a('L_gph:')
        a(f'buffer_load_dword v{vT}, v{vHF}, s[{SWS}:{SWS+3}], s{sT0} offen sc1\ns_waitcnt vmcnt(0)\nv_cmp_ne_u32 vcc, s{sTAG}, v{vT}\ns_cbranch_vccz L_gdh')
        a(f's_sleep {opt("hsleep", 10)}\ns_sub_u32 s{sCNT}, s{sCNT}, 1\ns_cbranch_scc0 L_gph')
        a('L_gdh:\ns_mov_b64 exec, -1')
        self.sig(F_S[5])
        self.stamp(13)
        if opt('stop', 0) == 10: self.end(); return
        a(f's_lshl_b32 s{sT3}, s{sTP}, 16\ns_and_b32 s{sT0}, s{sSW}, 1\ns_lshl_b32 s{sT0}, s{sT0}, 14\ns_add_u32 s{sT3}, s{sT3}, s{sT0}\ns_add_u32 s{sT3}, s{sT3}, {WS_HBUF:#x}')
        if HR_: a(f's_and_b32 s{sT0}, s{sCG}, 3\ns_lshl_b32 s{sT0}, s{sT0}, 12\ns_add_u32 s{sT3}, s{sT3}, s{sT0}\ns_and_b32 s{sT0}, s{sCG}, 4\ns_lshl_b32 s{sT0}, s{sT0}, 13\ns_add_u32 s{sT3}, s{sT3}, s{sT0}')
        NR = 13
        vq = []
        def hload(j):
            go = lambda g: ((g % 4) << 12) | ((g // 4) << 15)
            if j % 4 == 0 and j > 0: a(f's_xor_b32 s{sT3}, s{sT3}, {go(j // 4) ^ go(j // 4 - 1):#x}')
            a(f'buffer_load_dwordx4 {q4(HR + 4*(j%NR))}, v{vL16}, s[{SWS}:{SWS+3}], s{sT3} offen offset:{1024*(j%4)} sc1')
            vq.append(('h', j))
        for j in range(NR - 1): hload(j)
        a(f's_setprio {opt("gprio4", 0)}')
        lq = []
        def cread(j, k):
            a(f'ds_read_b128 {q4(8*(j%16) + 4*k)}, v{vCS2 if k else vCK2} offset:{32*(j%16)}')
        if not LATE:
            a('s_setprio 3')
            self.wait(F_S[5], sleep=1)
            a(f's_setprio {opt("gprio4", 0)}')
        else:
            a(f's_mul_i32 s{sT1}, s{sSW}, {16*1040}\ns_lshl_b32 s{sT2}, s{sCG}, 16\ns_lshl_b32 s{sT4}, s{sSW}, 14\ns_add_u32 s{sT2}, s{sT2}, s{sT4}')
        FJ = opt('fj', 22); CS = opt('cs', 9); CW = opt('cw', 11)
        pend = [(jj, k) for jj in range(16, 32) for k in range(2)]
        SF = opt('sf', 1)
        for j in range(FJ + 1 if SF else 32):
            w = 's_waitcnt lgkmcnt(0)'
            if ('h', j) in vq:
                need = vq.index(('h', j))
                w = f's_waitcnt vmcnt({len(vq) - 1 - need}) lgkmcnt(0)'
                del vq[:need + 1]
            a(w)
            c = 8 * (j % 16); h = q4(HR + 4 * (j % NR))
            a(f'v_mfma_f32_32x32x16_bf16 {t16(YK)}, {h}, {q4(c)}, {t16(YK)}')
            a(f'v_mfma_f32_32x32x16_bf16 {t16(YS)}, {h}, {q4(c+4)}, {"0" if j == 0 else t16(YS)}')
            if not LATE:
                if j < 16: cread(16 + j, 0)
                if 15 <= j < min(31, FJ): cread(j + 1, 1)
                if j == FJ:
                    for jj in range(j + 1, 32): cread(jj, 1)
            else:
                if j < 4:
                    for m in range(4 * j, 4 * j + 4):
                        if m % 4 == 0: a(f's_add_u32 m0, s{sT1}, {L_A2 + m*1040}\ns_add_u32 s{sT0}, s{sT2}, {1024*m}')
                        else: a('s_add_u32 m0, m0, 16')
                        a(f'buffer_load_dwordx4 v{vCL}, s[{SC}:{SC+3}], s{sT0} offen offset:{1024*(m%4)} lds')
                        vq.append(('c', m))
                if j == CS:
                    need = vq.index(('c', 15))
                    a(f's_waitcnt vmcnt({len(vq) - 1 - need})'); del vq[:need + 1]
                    self.sig(F_WO)
                if j == CW:
                    a('s_setprio 3')
                    self.wait(F_WO, sleep=1)
                    a(f's_setprio {opt("gprio4", 0)}')
                if j >= CW:
                    n = len(pend) if j >= FJ else 2
                    for _ in range(n):
                        if pend and pend[0][0] - 16 <= j: cread(*pend.pop(0))
                    assert not pend or pend[0][0] > j + 1
            if j + NR - 1 < 32: hload(j + NR - 1)
            if 's4st' in OPT and j in (0, 4, 10, 16, 22, 31): self.stamp({0: 1, 4: 3, 10: 4, 16: 5, 22: 10, 31: 11}[j])
            HJ = opt('hj', 20)
            if opt('pad4', 0) and j < HJ: a(f's_nop {opt("pad4", 0) - 1}')
            if j == HJ - 1:
                a('s_setprio 3')
                self.wait(F_AX, sleep=opt('hjs', 4), va=vS); lq.clear()
                a(f's_setprio {opt("gprio5", 0)}')
        if SF:
            assert LATE and not pend and FJ + NR - 1 >= 31
            self.sig(F_S[7])
            a('s_waitcnt vmcnt(0) lgkmcnt(0)')
            for j in range(FJ + 1, 32): a(f'v_mfma_f32_32x32x16_bf16 {t16(YS)}, {q4(HR + 4*(j%NR))}, {q4(8*(j%16)+4)}, {t16(YS)}')
            ky = [f'v_mfma_f32_32x32x16_bf16 {t16(YK)}, {q4(HR + 4*(j%NR))}, {q4(8*(j%16))}, {t16(YK)}' for j in range(FJ + 1, 32)]
            a(ky.pop(0)); a(ky.pop(0))
        a('s_setprio 3')
        if not SF: self.sig(F_S[7])
        self.srd(SOUT, P(14), 2048 * 4096)
        a(f's_lshl_b32 s{sT2}, s{sTP}, 17\ns_lshl_b32 s{sT1}, s{sCT}, 7\ns_add_u32 s{sT2}, s{sT2}, s{sT1}')
        self.wait(F_S[7], sleep=1)
        for q in range(4):
            a(f'ds_write_b128 v{vYW}, {q4(YS+4*q)} offset:{1024*q}')
            if SF and ky and q < 3: a(ky.pop(0))
        self.sig(F_S[8])
        if SF:
            for x in ky: a(x)
            a('s_nop 0')
        if 's4st' in OPT: self.stamp(12)
        self.wait(F_S[8], sleep=1)
        for q in range(4): a(f'ds_read_b128 {q4(YS+4*q)}, v{vYR} offset:{1024*q}')
        a('s_waitcnt lgkmcnt(0)')
        fl = {0: '', 1: ' sc1', 2: ' nt', 3: ' sc0 sc1', 4: ' sc1 nt', 5: ' sc0 nt', 6: ' sc0 sc1 nt'}[opt('yfl', 2)]
        for r in range(0, 16, 2): a(f'v_pk_add_f32 {pr(YS+r)}, {pr(YK+r)}, {pr(YS+r)}')
        for r in range(16):
            a(f's_add_u32 s{sT0}, s{sT2}, {((r % 4) + 8 * (r // 4)) * 4096}')
            if 'noy' not in OPT: a(f'buffer_store_dword v{YS+r}, v{vOA}, s[{SOUT}:{SOUT+3}], s{sT0} offen offset:2048{fl}')
        self.stamp(2)
        self.end()

HEADER = open('cdna_kernels/' + NAME + '.s.ref').read().split('; Override launch')[0]

DOC = '''; ---------------------------------------------------------------------------------------------
; ---------------------------------------------------------------------------------------------
'''

def make(stamps=False):
    g = G(stamps)
    body = g.build()
    txt = HEADER + f'; @launch grid=(256,1,1) block=(512,1,1) lds={L_TOTAL}\n' + DOC
    txt += f'''.amdgcn_target "amdgcn-amd-amdhsa--gfx950"
.text
.globl {NAME}_kernel
.p2align 8
.type {NAME}_kernel,@function
{NAME}_kernel:
{body}.section .rodata,"a"
.p2align 6
.amdhsa_kernel {NAME}_kernel
  .amdhsa_next_free_vgpr 256
  .amdhsa_next_free_sgpr 102
  .amdhsa_accum_offset 256
  .amdhsa_group_segment_fixed_size 0
  .amdhsa_kernarg_size 136
  .amdhsa_user_sgpr_count 2
  .amdhsa_user_sgpr_kernarg_segment_ptr 1
  .amdhsa_system_sgpr_workgroup_id_x 1
.end_amdhsa_kernel
'''
    return txt, g.a.n_ins

if __name__ == '__main__':
    pos = [x for x in sys.argv[1:] if not x.startswith('--')]
    out = pos[0] if pos else 'cdna_kernels/' + NAME + '.s'
    txt, n = make(stamps='stamps' in OPT)
    open(out, 'w').write(txt)
    print('wrote', out, n, 'instructions')
```

```python
import sys, math, struct
from asm import Asm

NAME = 'concat_heads__grouped_kv_mqa__ssm_conv_s5__prompt'
OPT = dict((x[2:].split('=') + ['1'])[:2] for x in sys.argv if x.startswith('--'))
def opt(k, d): return int(OPT.get(k, d))
XC = opt('xco', 0) or opt('xch', 0) or opt('xcs', 0)
def f2u(x): return struct.unpack('<I', struct.pack('<f', x))[0]
def pr(r): return f'v[{r}:{r+1}]'
def q4(r): return f'v[{r}:{r+3}]'
def t16(r): return f'v[{r}:{r+15}]'

WS_KVFLAG = 0x8000
WS_KVIMG = 0x10000
WS_EBUF = 0x40000
WS_HFLAG = 0x80000
WS_OBUF = 0x100000
WS_HBUF = 0x400000
WS_DBG = 0x800000
WS_SIZE = 0x1000000
def FL(i): return 16 * i
F_L1, F_L2, F_L4, F_L6 = FL(0), FL(1), FL(2), FL(3)
F_QP, F_KVD = FL(4), FL(5)
F_A1, F_AX, F_AY = FL(6), FL(7), FL(8)
F_S = [FL(9 + i) for i in range(10)]
F_WO = FL(19)
F_OX = FL(20)
F_SL = [FL(22 + i) for i in range(3)]
F_KMAX, F_XC, F_KST = FL(25), FL(25) + 4, FL(25) + 8
F_TAG, F_QA = FL(26), FL(27)
L_QN = 512
L_ACCF = 1024
L_QF = 5120
L_ACCD = 13312
L_WKV = L_ACCD
L_A1 = 29696
L_A2 = 96256
L_MX = L_A2 + 66560
L_TOTAL = 163840
XW = 16640
L_SXO = 1024
L_TBO = 2048

sWV, sRB, sCG, sTB, sPB, sTAG = 3, 4, 5, 6, 7, 8
sT0, sT1, sT2, sT3, sT4, sT5 = 9, 10, 11, 12, 13, 14
sCNT = 15
P = lambda i: 16 + 2 * i
SA, SB, SC, SWS, SOUT = 52, 56, 60, 64, 68
sSW = 72
sPH, sTJ, sOW = 73, 74, 75
sM0, sM1 = 76, 78
sQH = 81
sOB, sPRE = 101, 81
sXC = 100
sST = 82
SPIN = 400000
vT, vLN, vL16, vEP, vF, vS, vONE = 249, 250, 251, 252, 253, 254, 255

class G:
    def __init__(self, stamps=False):
        self.a = Asm(); self.stamps = stamps; self.cyc = True
    def srd(self, d, p, size):
        self.a(f's_mov_b32 s{d}, s{p}\ns_mov_b32 s{d+1}, s{p+1}\ns_mov_b32 s{d+2}, {size:#x}\ns_mov_b32 s{d+3}, 0x20000')
    def stamp(self, i):
        if self.stamps:
            self.a(f's_memrealtime s[98:99]\ns_waitcnt lgkmcnt(0)\ns_mov_b32 s{sST+i}, s98')
            m = {5: 8, 6: 9}
            if self.cyc and i in m:
                self.a(f's_memtime s[98:99]\ns_waitcnt lgkmcnt(0)\ns_mov_b32 s{sST+m[i]}, s98')
    def end(self):
        a = self.a
        if self.stamps:
            a('s_waitcnt vmcnt(0)')
            self.stamp(15)
            if 'diag' in OPT and self.cyc != ('diagsv' in OPT):
                da, db = [int(x) for x in OPT['diag'].split(',')]
                L = a.label('DG')
                a(f's_sub_u32 s{sT1}, s{sST+db}, s{sST+da}')
                if 'diagxc' in OPT: a(f's_xor_b32 s{sT1}, s{sXC}, {opt("diagxc", 0) - 1}\ns_mul_i32 s{sT1}, s{sT1}, 1000')
                if 'diagcyc' in OPT: a(f's_lshr_b32 s{sT1}, s{sT1}, 1')
                else: a(f's_lshl_b32 s{sT1}, s{sT1}, 3')
                a(f's_min_u32 s{sT1}, s{sT1}, 100000\ns_add_u32 s{sT1}, s{sT1}, s{sST+15}')
                a(f'{L}:\ns_sleep 4\ns_memrealtime s[98:99]\ns_waitcnt lgkmcnt(0)\ns_cmp_lt_u32 s98, s{sT1}\ns_cbranch_scc1 {L}')
            a(f's_lshl_b32 s{sT0}, s2, 3\ns_add_u32 s{sT0}, s{sT0}, s{sWV}\ns_lshl_b32 s{sT0}, s{sT0}, 6\ns_add_u32 s{sT0}, s{sT0}, {WS_DBG:#x}')
            a('s_mov_b64 exec, 1')
            for i in range(16):
                a(f'v_mov_b32 v{vT}, s{sST+i}\nbuffer_store_dword v{vT}, off, s[{SWS}:{SWS+3}], s{sT0} offset:{4*i}')
            a('s_waitcnt vmcnt(0)')
        a('s_endpgm')
    def sig(self, off, va=vS):
        self.a(f'ds_write_b32 v{va}, v{vONE} offset:{off}')
    def wait(self, off, sleep=1, va=vF):
        a = self.a; L = a.label('W'); D = a.label('WD')
        a(f's_mov_b32 s{sCNT}, {SPIN}')
        a(f'{L}:')
        a(f'ds_read_b32 v{vT}, v{va} offset:{off}\ns_waitcnt lgkmcnt(0)\nv_cmp_eq_u32 vcc, 0, v{vT}\ns_cbranch_vccz {D}')
        a((f's_sleep {sleep}\n' if sleep else '') + f's_sub_u32 s{sCNT}, s{sCNT}, 1\ns_cbranch_scc0 {L}')
        a(f'{D}:')
    def xstore(self, lines, kind='o'):
        a = self.a
        if not opt('xc' + kind, 0):
            for x in lines: a(x + (' sc1' if x.startswith('buffer') else ''))
            return
        L = a.label('X'); D = a.label('XD')
        a(f's_cmp_eq_u32 s{sXC}, 1\ns_cbranch_scc0 {L}')
        for x in lines: a(x + (' nt' if x.startswith('buffer') and opt('xnt', 0) else ''))
        a(f's_branch {D}')
        a(f'{L}:')
        for x in lines: a(x + (' sc1' if x.startswith('buffer') else ''))
        a(f'{D}:')
    def get_tag(self):
        self.a(f'v_readfirstlane_b32 s{sTAG}, v{vEP}\ns_mul_i32 s{sTAG}, s{sTAG}, 0x9E3779B1\ns_add_u32 s{sTAG}, s{sTAG}, 0x7F4A7C15')

    def build(self):
        a = self.a
        a('s_cmp_ge_u32 s2, 256\ns_cbranch_scc1 L_exit')
        a('s_load_dwordx16 s[16:31], s[0:1], 0\ns_load_dwordx16 s[32:47], s[0:1], 64\ns_load_dwordx2 s[48:49], s[0:1], 128')
        if self.stamps:
            for i in range(16): a(f's_mov_b32 s{sST+i}, 0')
        a(f'v_and_b32 v{vLN}, 63, v0\nv_lshrrev_b32 v{vT}, 6, v0\nv_lshlrev_b32 v{vL16}, 4, v{vLN}\nv_readfirstlane_b32 s{sWV}, v{vT}')
        if opt('cpf', 1):
            a(f's_cmp_lt_u32 s{sWV}, 5\ns_cbranch_scc1 L_nocpf')
            a(f's_getpc_b64 s[{sM0}:{sM0+1}]')
            a('L_pc:')
            a(f's_lshr_b32 s{sT0}, s2, 3\ns_mul_i32 s{sT0}, s{sT0}, 3\ns_add_u32 s{sT0}, s{sT0}, s{sWV}\ns_sub_u32 s{sT0}, s{sT0}, 5\ns_lshl_b32 s{sT0}, s{sT0}, 9')
            a(f's_min_u32 s{sT0}, s{sT0}, L_exit-L_pc-512\ns_add_u32 s{sM0}, s{sM0}, s{sT0}\ns_addc_u32 s{sM0+1}, s{sM0+1}, 0')
            for k in range(8): a(f's_load_dword s{SOUT + k % 4}, s[{sM0}:{sM0+1}], {64*k}')
            a('L_nocpf:')
        a(f's_and_b32 s{sT0}, s2, 7\ns_lshr_b32 s{sT1}, s2, 3')
        a(f's_lshl_b32 s{sRB}, s{sT0}, 2\ns_lshr_b32 s{sT2}, s{sT1}, 3\ns_add_u32 s{sRB}, s{sRB}, s{sT2}\ns_and_b32 s{sCG}, s{sT1}, 7')
        a(f's_lshr_b32 s{sTB}, s{sRB}, 1\ns_and_b32 s{sPB}, s{sT1}, 15\ns_and_b32 s{sSW}, s{sWV}, 3')
        a(f's_cmp_ge_u32 s{sWV}, 4\ns_cbranch_scc1 L_service')
        a(f's_lshr_b32 s{sT5}, s{sCG}, 1\ns_lshl_b32 s{sT4}, s{sRB}, 16')
        def xa_rows(g):
            a(f's_add_u32 s{sT0}, s{sT5}, {g}\ns_and_b32 s{sT0}, s{sT0}, 3\ns_lshl_b32 s{sT0}, s{sT0}, 2\ns_add_u32 s{sT0}, s{sT0}, s{sSW}\ns_lshl_b32 s{sT0}, s{sT0}, 2')
            a(f's_mul_i32 s{sT1}, s{sT0}, 1040\ns_add_u32 m0, s{sT1}, {L_A1}\ns_lshl_b32 s{sT0}, s{sT0}, 10\ns_add_u32 s{sT0}, s{sT0}, s{sT4}')
            if g == 0:
                a('s_waitcnt lgkmcnt(0)')
                self.stamp(0)
                self.srd(SA, P(0), 2048 * 1024)
            for n in range(4):
                a(f'buffer_load_dwordx4 v{vL16}, s[{SA}:{SA+3}], s{sT0} offen offset:{1024*n} lds')
                if n < 3: a('s_add_u32 m0, m0, 16')
        xa_rows(0)
        a(f's_bitcmp1_b32 s{sCG}, 0\ns_cselect_b32 s{SB}, s{P(3)}, s{P(2)}\ns_cselect_b32 s{SB+1}, s{P(3)+1}, s{P(2)+1}\ns_mov_b32 s{SB+2}, 0x4000\ns_mov_b32 s{SB+3}, 0x20000')
        a(f's_lshl_b32 s{sT0}, s{sWV}, 12\ns_add_u32 m0, s{sT0}, {L_WKV}')
        a(f'v_lshrrev_b32 v2, 1, v{vL16}\nv_and_b32 v2, 128, v2\nv_xor_b32 v2, v2, v{vL16}')
        for n in range(4):
            a(f'buffer_load_dwordx4 v2, s[{SB}:{SB+3}], s{sT0} offen offset:{1024*n} lds')
        self.srd(SC, P(1), 512 * 1024)
        NPQ = 0
        if opt('pfq', 0):
            G = opt('pfg', 6)
            a(f'v_lshlrev_b32 v3, {G}, v{vLN}\ns_lshr_b32 s{sT0}, s2, 3\ns_lshl_b32 s{sT0}, s{sT0}, 2\ns_add_u32 s{sT0}, s{sT0}, s{sSW}\ns_lshl_b32 s{sT0}, s{sT0}, 12')
            if G == 7: a(f's_mov_b32 s{sM0}, -1\ns_mov_b32 s{sM0+1}, 0\ns_mov_b64 exec, s[{sM0}:{sM0+1}]')
            a(f'buffer_load_dword v4, v3, s[{SC}:{SC+3}], s{sT0} offen'); NPQ = 1
            if opt('pfq', 0) > 1:
                for p in (8, 9):
                    self.srd(SOUT, P(p), 512 * 1024)
                    a(f'buffer_load_dword v4, v3, s[{SOUT}:{SOUT+3}], s{sT0} offen'); NPQ += 1
                self.srd(SOUT, P(5), 2048 * 1024)
                a(f's_lshr_b32 s{sT0}, s{sT0}, 1\ns_and_b32 s{sT1}, s2, 7\ns_lshl_b32 s{sT1}, s{sT1}, 18\ns_add_u32 s{sT0}, s{sT0}, s{sT1}\nv_lshrrev_b32 v3, 1, v3')
                a(f'buffer_load_dword v4, v3, s[{SOUT}:{SOUT+3}], s{sT0} offen'); NPQ += 1
            a('s_mov_b64 exec, -1')
        self.wimg_lane_addr(0, 1)
        a(f's_lshl_b32 s{sT3}, s{sSW}, 13\ns_lshl_b32 s{sT1}, s{sCG}, 7\ns_add_u32 s{sT3}, s{sT3}, s{sT1}\ns_and_b32 s{sT1}, s{sRB}, 3\ns_lshl_b32 s{sT1}, s{sT1}, 17\ns_add_u32 s{sT3}, s{sT3}, s{sT1}')
        a(f's_lshl_b32 s{sT2}, s{sSW}, 10')
        def wq_rows(c):
            for n in range(4 * c, 4 * c + 4):
                a(f's_add_u32 m0, s{sT2}, {L_A2 + 4096*n}\ns_xor_b32 s{sT0}, s{sT3}, {0x8000*n:#x}')
                a(f'buffer_load_dwordx4 v0, s[{SC}:{SC+3}], s{sT0} offen lds')
        FO = opt('fo', 1)
        if FO == 0: wq_rows(0)
        else: xa_rows(1)
        self.common_regs()
        self.srd(SWS, P(16), WS_SIZE)
        a('s_barrier')
        self.stamp(1)
        a(f's_waitcnt vmcnt({4 + NPQ})')
        self.sig(F_L1)
        if FO == 0: xa_rows(1)
        xa_rows(2); xa_rows(3)
        if FO == 1: wq_rows(0)
        if FO == 0: wq_rows(1)
        a('s_waitcnt vmcnt(4)')
        self.sig(F_L2)
        if FO == 1: wq_rows(1)
        wq_rows(2); wq_rows(3)
        self.stamp(2)
        a('s_waitcnt vmcnt(8)')
        self.sig(F_L4)
        if opt('lay', 1):
            a('s_branch L_attn')
            self.service()
            self.cyc = True
            a('L_attn:')
            self.attention()
        else:
            self.attention()
            self.service()
        a('L_exit:\ns_endpgm')
        return a.finish()

    def common_regs(self):
        self.a(f'v_and_b32 v{vF}, 3, v{vLN}\nv_lshlrev_b32 v{vF}, 2, v{vF}\ns_lshl_b32 s{sT0}, s{sSW}, 2\nv_mov_b32 v{vS}, s{sT0}\nv_mov_b32 v{vONE}, 1')

    def wimg_lane_addr(self, vd, vt):
        a = self.a
        a(f'v_lshrrev_b32 v{vt}, 2, v{vLN}\nv_and_b32 v{vt}, 4, v{vt}\nv_and_b32 v{vd}, 7, v{vLN}\nv_xor_b32 v{vd}, v{vd}, v{vt}\nv_lshlrev_b32 v{vd}, 4, v{vd}')
        a(f'v_lshrrev_b32 v{vt}, 3, v{vLN}\nv_lshl_add_u32 v{vd}, v{vt}, 10, v{vd}')

    def tr_parts(self, c0, r, wpart):
        a = self.a
        a(f'v_bfe_u32 v{c0}, v{vLN}, 4, 1\nv_lshlrev_b32 v{c0}, 5, v{c0}\nv_and_b32 v{r}, 3, v{vLN}\nv_lshl_add_u32 v{c0}, v{r}, 3, v{c0}\nv_bfe_u32 v{r}, v{vLN}, 2, 2')
        a(f's_and_b32 s{sT0}, s{sSW}, 1\nv_lshrrev_b32 v{wpart}, 1, v{r}\nv_xor_b32 v{wpart}, s{sT0}, v{wpart}\nv_lshl_add_u32 v{wpart}, v{wpart}, 6, v{c0}\nv_lshl_add_u32 v{wpart}, v{r}, 7, v{wpart}')

    def prefetch(self, ptrs, vd):
        a = self.a
        a(f's_lshr_b32 s{sT0}, s2, 3\ns_lshl_b32 s{sT0}, s{sT0}, 2\ns_add_u32 s{sT0}, s{sT0}, s{sSW}\ns_lshl_b32 s{sT0}, s{sT0}, 12')
        for p in ptrs:
            self.srd(SOUT, P(p), 512 * 1024)
            a(f'buffer_load_dword v{vEP}, v{vd}, s[{SOUT}:{SOUT+3}], s{sT0} offen')

    def attention(self):
        a = self.a
        K, V, S0, O, Q = 0, 64, 192, 224, 240
        vIDX, vA16, vA8, vQA, vL8 = 244, 245, 246, 247, 248
        R = dict(K=K, V=V, S0=S0, O=O, Q=Q, vIDX=vIDX, vA16=vA16, vA8=vA8, vQA=vQA, vL8=vL8, vM=vEP)
        a(f'v_and_b32 v{Q}, 11, v{vLN}\nv_cmp_eq_u32 vcc, 0, v{Q}\nv_mov_b32 v{Q}, 0x3f803f80\nv_cndmask_b32 v{vT}, 0, v{Q}, vcc')
        MK = opt('mask', 0)
        self.masked = lambda i: (MK >> i) & 1
        for i in range(16):
            for r in range(0 if self.masked(i) else 4, 8): a(f'v_mov_b32 v{V+8*i+r}, v{vT}')
        a(f'v_lshlrev_b32 v{vL8}, 3, v{vLN}\nv_mov_b32 v{vIDX}, 0xdddd')
        def init_state(ph0):
            for i in range(16): a(f'v_mov_b32 v{O+i}, 0')
            a(f's_mov_b32 s{sTJ}, s{sSW}\ns_mov_b32 s{sPH}, {ph0}')
            a(f's_lshl_b32 s{sT0}, s{sTJ}, 10\nv_add_u32 v{vQA}, s{sT0}, v{vL16}')
            a(f's_lshl_b32 s{sT0}, s{sTJ}, 11\nv_add_u32 v{vA16}, s{sT0}, v{vL16}\ns_lshl_b32 s{sT0}, s{sTJ}, 9\nv_add_u32 v{vA8}, s{sT0}, v{vL8}')
        init_state(0)
        FS = opt('fs', 6)
        a(f'v_lshlrev_b32 v{S0+4}, {FS}, v{vLN}\nv_mov_b32 v{S0+3}, 0')
        if XC: a(f's_getreg_b32 s{sXC}, hwreg(HW_REG_XCC_ID)')
        a(f's_lshl_b32 s{sT3}, s{sWV}, {FS + 6}\ns_add_u32 s{sT3}, s{sT3}, {WS_KVFLAG:#x}')
        a(f's_lshl_b32 s{sT4}, s{sWV}, 15\ns_add_u32 s{sT4}, s{sT4}, {WS_KVIMG:#x}\ns_lshl_b32 s{sT0}, s{sCG}, 12\ns_add_u32 s{sT4}, s{sT4}, s{sT0}')
        a(f's_lshl_b32 s{sOW}, s{sRB}, 16\ns_lshl_b32 s{sT0}, s{sCG}, 12\ns_add_u32 s{sOW}, s{sOW}, s{sT0}\ns_add_u32 s{sOW}, s{sOW}, {WS_OBUF:#x}')
        a(f's_add_u32 s{sT0}, s{sSW}, 1\ns_and_b32 s{sT0}, s{sT0}, 3\ns_lshl_b32 s{sT0}, s{sT0}, 10\ns_add_u32 s{sOW}, s{sOW}, s{sT0}')
        a(f's_mov_b32 s{sM0}, 0xffff\ns_mov_b32 s{sM0+1}, 0xffff')
        a(f's_lshl_b32 s{sOB}, s{sRB}, 16\ns_lshr_b32 s{sT0}, s{sSW}, 1\ns_lshl_b32 s{sT0}, s{sT0}, 2\ns_and_b32 s{sT2}, s{sCG}, 3\ns_add_u32 s{sT0}, s{sT0}, s{sT2}\ns_lshl_b32 s{sT0}, s{sT0}, 12')
        a(f's_add_u32 s{sOB}, s{sOB}, s{sT0}\ns_add_u32 s{sOB}, s{sOB}, {WS_OBUF:#x}\ns_mov_b32 s{sPRE}, 0')
        self.tr_parts(0, 1, 2)
        a(f'v_lshrrev_b32 v1, 5, v{vLN}\nv_lshl_add_u32 v2, v1, 9, v2\ns_lshr_b32 s{sT0}, s{sSW}, 1\ns_lshl_b32 s{sT0}, s{sT0}, 15\ns_add_u32 s{sT0}, s{sT0}, {L_A1}\nv_add_u32 v{vLN}, s{sT0}, v2')
        a(f's_waitcnt vmcnt(0)')
        self.sig(F_L6)
        self.stamp(3)
        self.wait(F_QA if opt('pw', 0) == 0 else F_KVD, sleep=1)
        a(f'ds_read_b32 v{vEP}, v{vF} offset:{F_TAG}\ns_waitcnt lgkmcnt(0)\nv_readfirstlane_b32 s{sTAG}, v{vEP}')
        if opt('pf1', 0):
            a(f's_lshr_b32 s{sT0}, s2, 3\ns_lshl_b32 s{sT0}, s{sT0}, 2\ns_add_u32 s{sT0}, s{sT0}, s{sSW}\ns_lshl_b32 s{sT0}, s{sT0}, 12')
            for k, p in enumerate((8, 9)):
                self.srd(SB, P(p), 512 * 1024)
                for n in range(4): a(f'buffer_load_dwordx4 {q4(4 + 16*k + 4*n)}, v{vL16}, s[{SB}:{SB+3}], s{sT0} offen offset:{1024*n}')
            self.srd(SB, P(5), 2048 * 1024)
            a(f's_lshr_b32 s{sT0}, s{sT0}, 1\ns_and_b32 s{sT1}, s2, 7\ns_lshl_b32 s{sT1}, s{sT1}, 18\ns_add_u32 s{sT0}, s{sT0}, s{sT1}')
            for n in range(2): a(f'buffer_load_dwordx4 {q4(36 + 4*n)}, v{vL16}, s[{SB}:{SB+3}], s{sT0} offen offset:{1024*n}')
        if opt('pw', 0): a(f's_sleep {opt("pw", 0)}')
        a(f's_mov_b32 s{sCNT}, 100000')
        KW = opt('kw', 0)
        a(f's_lshr_b32 s{sT0}, s2, 3\ns_lshl_b32 s{sT0}, s{sT0}, 2\ns_add_u32 s{sT0}, s{sT0}, s{sSW}\ns_lshl_b32 s{sT0}, s{sT0}, 10\ns_add_u32 s{sT0}, s{sT0}, {WS_KVIMG:#x}')
        kwl = f'buffer_load_dwordx4 {q4(S0+8)}, v{vL16}, s[{SWS}:{SWS+3}], s{sT0} offen sc1'
        if KW == 2: a(kwl)
        a('L_kvp:')
        a(f'buffer_load_dwordx3 v[{S0}:{S0+2}], v{S0+4}, s[{SWS}:{SWS+3}], s{sT3} offen sc1')
        if KW == 1: a(kwl)
        a(f's_waitcnt vmcnt({1 if KW == 1 else 0})\nv_cmp_ne_u32 vcc, s{sTAG}, v{S0}\ns_cbranch_vccz L_kvpd')
        if opt('pm', 1): a('s_mov_b64 exec, vcc')
        a((f's_sleep {opt("kvsleep", 1)}\n' if opt("kvsleep", 1) else '') + f's_sub_u32 s{sCNT}, s{sCNT}, 1\ns_cbranch_scc0 L_kvp')
        a('L_kvpd:\ns_mov_b64 exec, -1')
        if self.stamps: a(f's_mov_b32 s{sST+13}, s{sCNT}')
        self.stamp(4)
        for i in range(opt('nup', 7)): a(self.kvload(R, i))
        a(f'ds_max_u32 v{S0+3}, v{S0+1} offset:{F_KMAX}')
        if XC:
            a(f's_lshr_b32 s{sT0}, s{sRB}, 3\ns_cmp_eq_u32 s{sT0}, s{sSW}\ns_cbranch_scc0 L_noxc')
            a(f'v_cmp_ne_u32 vcc, s{sXC}, v{S0+2}\ns_bitcmp1_b32 s{sRB}, 2\ns_cselect_b32 s{sT0}, vcc_hi, vcc_lo\ns_cmp_eq_u32 s{sT0}, 0\ns_cselect_b32 s{sT0}, 1, 0')
            a(f'v_mov_b32 v{S0+2}, s{sT0}\nds_write_b32 v{S0+3}, v{S0+2} offset:{F_XC}')
            a('L_noxc:')
        self.wait(F_QP, sleep=0)
        a(f'ds_read_b128 {q4(Q)}, v{vQA} offset:{L_QF}')
        self.stamp(5)
        self.attn_fast(R)
        a('L_attn_epi:')
        if 'phs' in OPT:
            for p in range(8): a(f's_mov_b32 s{sST+2*p}, s{16+4*p}\ns_mov_b32 s{sST+2*p+1}, s{17+4*p}')
            a(f's_lshl_b32 s{sT0}, s2, 3\ns_add_u32 s{sT0}, s{sT0}, s{sWV}\ns_lshl_b32 s{sT0}, s{sT0}, 6\ns_add_u32 s{sT0}, s{sT0}, {WS_DBG + 0x100000:#x}')
            a('s_mov_b64 exec, 1')
            for i in range(16):
                a(f'v_mov_b32 v{vT}, s{sST+i}\nbuffer_store_dword v{vT}, off, s[{SWS}:{SWS+3}], s{sT0} offset:{4*i}')
            a('s_waitcnt vmcnt(0)\ns_endpgm')
        self.oproj_pre()
        self.stamp(6)
        self.publish(R, 0x8000, F_AY)
        if 'nosvc' in OPT or 'stop' in OPT: self.end()
        else: self.oproj()
        a('L_check6:')
        self.wait(F_S[9], sleep=1)
        a('s_branch L_checked6')
        a('L_check1:')
        self.wait(F_S[0], sleep=1)
        a(f'v_cmp_ne_u32 vcc, 1, v{vT}\ns_cbranch_vccz L_checked1')
        self.wait(F_S[9], sleep=1)
        if XC: a(f's_mov_b32 s{sXC}, 0')
        vL4, vW = vA8, vA16
        self.sig(F_SL[0]); self.wait(F_SL[0])
        a(f'v_lshrrev_b32 v{vL4}, 2, v{vL16}\ns_mov_b32 s{sT2}, 0\ns_lshl_b32 s{sT3}, s{sWV}, 11\nv_add_u32 v{vW}, s{sT3}, v{vL4}')
        a('L_slow_pre:')
        a(f's_lshl_b32 s{sT0}, s{sT2}, 10\nv_add_u32 v{vT}, s{sT0}, v{vL16}\nds_read_b128 {q4(Q)}, v{vT} offset:{L_QF}\ns_waitcnt lgkmcnt(0)')
        a(f'v_mov_b32 v{S0+20}, 0xff800000')
        for i in range(16):
            a(f'v_mfma_f32_32x32x16_bf16 {t16(S0)}, {q4(K+4*i)}, {q4(Q)}, 0')
            for r in range(0, 16, 2): a(f'v_max3_f32 v{S0+20}, v{S0+r}, v{S0+r+1}, v{S0+20}')
        a(f'v_mov_b32 v{S0+21}, v{S0+20}\nv_permlane32_swap_b32 v{S0+20}, v{S0+21}\nv_max_f32 v{S0+20}, v{S0+20}, v{S0+21}')
        a(f'ds_write_b32 v{vW}, v{S0+20} offset:{L_ACCD}\nv_add_u32 v{vW}, 256, v{vW}')
        a(f's_add_u32 s{sT2}, s{sT2}, 1\ns_cmp_lt_u32 s{sT2}, 8\ns_cbranch_scc1 L_slow_pre')
        self.sig(F_SL[1]); self.wait(F_SL[1])
        a(f's_lshl_b32 s{sT0}, s{sWV}, 8\nv_add_u32 v{vW}, s{sT0}, v{vL4}')
        for t in range(2):
            for w in range(4): a(f'ds_read_b32 v{S0+4*t+w}, v{vW} offset:{L_ACCD + 2048*w + 1024*t}')
        a(f'v_and_b32 v{vW}, 0x7c, v{vL4}\ns_lshl_b32 s{sT0}, s{sWV}, 7\ns_add_u32 s{sT0}, s{sT0}, {L_MX}\nv_add_u32 v{vW}, s{sT0}, v{vW}')
        a('s_waitcnt lgkmcnt(0)')
        for t in range(2):
            b = S0 + 4 * t
            a(f'v_max3_f32 v{b}, v{b}, v{b+1}, v{b+2}\nv_max_f32 v{b}, v{b}, v{b+3}\nds_write_b32 v{vW}, v{b} offset:{512*t}')
        init_state(16)
        a(f'v_mov_b32 v{S0}, 0\nv_mov_b32 v{S0+1}, 17\nds_write_b64 v{vA8}, {pr(S0)} offset:{L_ACCF+2048}')
        a(f'ds_write_b128 v{vA16}, {q4(O)} offset:{L_ACCD+8192}\nds_write_b128 v{vA16}, {q4(O)} offset:{L_ACCD+8192+1024}')
        self.sig(F_SL[2]); self.wait(F_SL[2])
        a(f'ds_read_b128 {q4(Q)}, v{vQA} offset:{L_QF}')
        self.attn_loop(R, True)
        a('s_branch L_attn_epi')

    QD = [r for i in range(16) for r in (4 * i, 64 + 8 * i, 68 + 8 * i)]
    def WF(self, st): return self.QD[st]
    def OF(self, q, n): return self.QD[16 + 4 * ((q + 3) % 4) + 16 * (q // 4) + n]
    def wo_read(self, st, vWO): return f'ds_read_b64_tr_b16 {pr(self.WF(st))}, v{vWO} offset:{2048*st}\nds_read_b64_tr_b16 {pr(self.WF(st)+2)}, v{vWO} offset:{2048*st+1024}'
    def o_load(self, q):
        t = f's_xor_b32 s{sT0}, s{sOB}, {4096*(q%4) + 0x8000*(q//4):#x}'
        for n in range(4): t += f'\nbuffer_load_dwordx4 {q4(self.OF(q, n))}, v{vL16}, s[{SWS}:{SWS+3}], s{sT0} offen offset:{1024*n} sc1'
        return t

    def kvload(self, R, i):
        K, V = R['K'], R['V']
        t = ''
        if i % 2 == 0 and i > 0: t += f's_xor_b32 s{sT4}, s{sT4}, {((i // 2) ^ (i // 2 - 1)) << 12:#x}\n'
        o = (i % 2) * 2048
        t += f'buffer_load_dwordx4 {q4(K+4*i)}, v{vL16}, s[{SWS}:{SWS+3}], s{sT4} offen offset:{o} sc1\n'
        if self.masked(i):
            t += f's_mov_b64 exec, s[{sM0}:{sM0+1}]\nbuffer_load_dwordx4 {q4(V+8*i)}, v{vL16}, s[{SWS}:{SWS+3}], s{sT4} offen offset:{o+1024} sc1\n'
            t += f'buffer_load_dwordx4 {q4(V+8*i+4)}, v{vL16}, s[{SWS}:{SWS+3}], s{sT4} offen offset:{o+1024+256} sc1\ns_mov_b64 exec, -1'
        else:
            t += f'buffer_load_dwordx4 {q4(V+8*i)}, v{vL16}, s[{SWS}:{SWS+3}], s{sT4} offen offset:{o+1024} sc1'
        return t

    def publish(self, R, off, flag):
        a = self.a; O = R['O']
        a(f'v_rcp_f32 v{O+8}, v{O+8}\ns_add_u32 s{sT0}, s{sOW}, {off}')
        for r in range(0, 8, 2): a(f'v_pk_mul_f32 {pr(O+r)}, {pr(O+8)}, {pr(O+r)} op_sel:[0,0] op_sel_hi:[0,1]')
        for r in range(4): a(f'v_cvt_pk_bf16_f32 v{O+r}, v{O+2*r}, v{O+2*r+1}')
        self.xstore([f'buffer_store_dwordx4 {q4(O)}, v{vL16}, s[{SWS}:{SWS+3}], s{sT0} offen'])
        if off: self.sig(flag)

    def attn_fast(self, R):
        a = self.a
        K, V, S0, O, Q = R['K'], R['V'], R['S0'], R['O'], R['Q']
        vIDX, vA16, vA8, vQA, vL8 = R['vIDX'], R['vA16'], R['vA8'], R['vQA'], R['vL8']
        NUP = opt('nup', 7)
        sK = [[50, 51, 80], [sT1, sT2, sT3], [sT5, sPH, sTJ]]
        for k in range(1, 4):
            a(f's_sub_u32 s{sT0}, s{sSW}, {k}\ns_and_b32 s{sT0}, s{sT0}, 3\ns_lshl_b32 s{sK[k-1][0]}, s{sT0}, 9\ns_lshl_b32 s{sK[k-1][1]}, s{sT0}, 10\ns_lshl_b32 s{sK[k-1][2]}, s{sT0}, 11')
        def Sb(i): return S0 + 16 * (i % 2)
        def E(i, r): return f'v_exp_f32 v{Sb(i)+r}, v{Sb(i)+r}'
        CM = '-4.0' if opt('cm', 1) else '0'
        PP = opt('pp', 15)
        def QK(i): return f'v_mfma_f32_32x32x16_bf16 {t16(Sb(i))}, {q4(K+4*(i%16))}, {q4(Q)}, {CM}'
        def PV(i, h): return f'v_smfmac_f32_32x32x32_bf16 {t16(O)}, {q4(V+8*(i%16)+4*h)}, v[{Sb(i)+8*h}:{Sb(i)+8*h+7}], v{vIDX}'
        def rd(st): return [f'ds_read_b64 {pr(O+8)}, v{vA8} offset:{L_ACCF+2048*st}', f'ds_read_b128 {q4(O)}, v{vA16} offset:{L_ACCD+8192*st}', f'ds_read_b128 {q4(O+4)}, v{vA16} offset:{L_ACCD+8192*st+1024}']
        def wr(st): return [f'ds_write_b128 v{vA16}, {q4(O)} offset:{L_ACCD+8192*st}', f'ds_write_b128 v{vA16}, {q4(O+4)} offset:{L_ACCD+8192*st+1024}', f'ds_write_b64 v{vA8}, {pr(O+8)} offset:{L_ACCF+2048*st}']
        nl = lambda i: 3 if self.masked(i) else 2
        cov = [-1]
        def plain(p, i):
            e = [E(i, r) for r in range(16)]
            w = []; sw = []; ld = []
            if p == 0:
                KR = opt('kr', 3)
                issued = sum(nl(t) for t in range(min(16, KR * i + NUP)))
                VW = opt('vw', 4)
                if i > cov[0]:
                    last = i if i < opt('vw1', 2) else min(15, i + VW - 1)
                    cov[0] = last
                    needed = sum(nl(t) for t in range(last + 1)) + (1 if last < 15 else 0)
                    assert issued >= needed
                    w = [f's_waitcnt vmcnt({issued - needed})']
                if not self.masked(i): sw = [f'v_permlane16_swap_b32 v{V+8*i+r}, v{V+8*i+4+r}' for r in range(4)]
                for t in range(KR * i + NUP, min(16, KR * (i + 1) + NUP)):
                    ld += [self.kvload(R, t)]
                    if t == 15: ld += [f'ds_write_b32 v{vS}, v{vONE} offset:{F_A1}']
            qk = [QK(i + 1)]
            if i == 15:
                if p < 7: w += ['s_waitcnt lgkmcnt(0)']
                else: qk = []
            if i == 14 and p < 7:
                if p % 2 == 1: ld += [f'v_add_u32 v{vQA}, s{sK[p//2][1]}, v{vL16}']
                ld += [f'ds_read_b128 {q4(Q)}, v{vQA} offset:{L_QF + 4096*((p+1)%2)}']
                if p in (1, 6): ld += [f'ds_read_b32 v{vT}, v{vF} offset:{F_S[0] if p == 1 else F_S[9]}']
                if p == 6 and XC: ld += [f'ds_read_b32 v{vEP}, v{vF} offset:{F_XC}']
            if i == 15 and p in (1, 6):
                sw = [f'v_cmp_ne_u32 vcc, 1, v{vT}'] + ([f'v_readfirstlane_b32 s{sXC}, v{vEP}'] if p == 6 and XC else [])
                ld = [f's_cbranch_vccnz L_check{p}', f'L_checked{p}:']
            if p == 7 and opt('xl', 0) and 'nosvc' not in OPT and 'stop' not in OPT:
                X0 = opt('xl0', 16 - opt('xl', 0))
                if i == X0 - 2: ld += [f'ds_read_b32 v{vT}, v{vF} offset:{F_S[5]}']
                if i == X0 - 1: ld += [f's_waitcnt lgkmcnt(0)\nv_cmp_eq_u32 vcc, 0, v{vT}\ns_cmp_eq_u64 vcc, 0\ns_cselect_b32 s{sPRE}, 1, 0']
                k = i - X0
                if 0 <= k < opt('xl', 0):
                    assert (16 + 4 * k + 3) // 3 < i
                    L = a.label('PF')
                    ld += [f's_cmp_eq_u32 s{sPRE}, 0\ns_cbranch_scc1 {L}', self.o_load((k + 1) % 4), f'{L}:']
            if p == 7 and i == opt('rel', 99): ld += [f'ds_write_b32 v{vS}, v{vONE} offset:{F_AX}']
            if p == 7 and opt('pre', 0) and 'nosvc' not in OPT and 'stop' not in OPT:
                P0 = opt('pre0', 6)
                if i == P0 - 1: ld += [f'ds_read_b32 v{vT}, v{vF} offset:{F_S[5]}']
                if i == P0: ld += [f's_waitcnt lgkmcnt(0)\nv_cmp_eq_u32 vcc, 0, v{vT}\ns_cmp_eq_u64 vcc, 0\ns_cselect_b32 s{sPRE}, 1, 0']
                grp = []
                k = i - P0 - 1
                if 0 <= k < 4: grp = [self.wo_read(st, vLN) for st in range(4 * k, 4 * k + 4)]; top = 4 * k + 3
                if 4 <= k < 8: grp = [self.o_load((k - 3) % 4)]; top = 16 + 4 * (k - 4) + 3
                if grp:
                    assert top // 3 < i, (top, i)
                    L = a.label('PF')
                    ld += [f's_cmp_eq_u32 s{sPRE}, 0\ns_cbranch_scc1 {L}'] + grp + [f'{L}:']
            seq = e[0:2] + ([] if (p == 0 and i == 0) else [PV(i - 1, 1)]) + e[2:5] + w + qk + sw + e[5:7] + ld + e[7:PP] + [PV(i, 0)] + e[PP:16]
            for x in seq: a(x)
        a(f's_setprio {opt("aprio", 1)}')
        a(f's_waitcnt vmcnt({sum(nl(t) for t in range(NUP)) - 1}) lgkmcnt(0)')
        a(QK(0))
        NW = opt('nw', 3)
        for p in range(8):
            if p == 0:
                plain(0, 0); plain(0, 1)
            else:
                e = [E(0, r) for r in range(16)]
                for x in e[0:2] + [PV(15, 1)] + e[2:5] + [QK(1)] + e[5:8]: a(x)
                so, si = (p - 1) % 2, p % 2
                if p < 7:
                    for x in [wr(so)[0], f'v_mov_b32 v{O+9}, {p+1}', wr(so)[1], wr(so)[2]]: a(x)
                else:
                    self.publish(R, 0, F_AX)
                if p % 2 == 0: a(f'v_add_u32 v{vA8}, s{sK[p//2-1][0]}, v{vL8}\nv_add_u32 v{vA16}, s{sK[p//2-1][2]}, v{vL16}')
                if p == 1:
                    for r in range(0, 8, 2): a(f'v_pk_mul_f32 {pr(O+r)}, {pr(O+10)}, {pr(O+10)}')
                    a(f'v_mov_b32 v{O+8}, 0')
                    for x in e[8:PP] + [PV(0, 0)] + e[PP:16]: a(x)
                    plain(p, 1)
                else:
                    for x in rd(si) + e[8:16]: a(x)
                    e = [E(1, r) for r in range(16)]
                    for x in e[0:NW]: a(x)
                    a(f's_waitcnt lgkmcnt(0)\nv_cmp_gt_u32 vcc, {p}, v{O+9}')
                    a(e[NW])
                    a(f's_cbranch_vccnz L_hw{p}')
                    a(f'L_hd{p}:')
                    n = NW + 1
                    for x in [PV(0, 0)] + e[n:n+3] + [PV(0, 1)] + e[n+3:n+6] + [QK(2)] + e[n+6:n+9] + [PV(1, 0)] + e[n+9:16]: a(x)
            for i in range(2, 16):
                plain(p, i)
            if p == 0: self.stamp(7)
            if 'phs' in OPT: a(f's_memtime s[98:99]\ns_memrealtime s[{16+4*p}:{17+4*p}]\ns_waitcnt lgkmcnt(0)\ns_mov_b32 s{17+4*p}, s98')
        a('s_nop 0')
        a(PV(15, 1))
        a(f's_branch L_attn_epi')
        for p in range(2, 8):
            a(f'L_hw{p}:')
            a(f's_mov_b32 s{sCNT}, {SPIN}')
            a(f'L_hl{p}:')
            a(f's_sleep 1')
            for x in rd(p % 2): a(x)
            a(f's_waitcnt lgkmcnt(0)\nv_cmp_gt_u32 vcc, {p}, v{O+9}\ns_cbranch_vccz L_hd{p}\ns_sub_u32 s{sCNT}, s{sCNT}, 1\ns_cbranch_scc0 L_hl{p}\ns_branch L_hd{p}')

    def attn_loop(self, R, slow):
        a = self.a
        K, V, S0, O, Q = R['K'], R['V'], R['S0'], R['O'], R['Q']
        vIDX, vA16, vA8, vQA, vL8, vM = R['vIDX'], R['vA16'], R['vA8'], R['vQA'], R['vL8'], R['vM']
        sf = '_s' if slow else '_f'
        PH0 = 16 if slow else 0
        NUP = opt('nup', 6)
        def Sb(i): return S0 + 16 * (i % 2)
        def E(i, r):
            s = Sb(i) + r
            return (f'v_sub_f32 v{s}, v{s}, v{vM}\n' if slow else '') + f'v_exp_f32 v{s}, v{s}'
        def QK(i): return f'v_mfma_f32_32x32x16_bf16 {t16(Sb(i))}, {q4(K+4*(i%16))}, {q4(Q)}, 0'
        def PV(i, h): return f'v_smfmac_f32_32x32x32_bf16 {t16(O)}, {q4(V+8*(i%16)+4*h)}, v[{Sb(i)+8*h}:{Sb(i)+8*h+7}], v{vIDX}'
        rd = [f'ds_read_b64 {pr(O+8)}, v{vA8} offset:{L_ACCF}', f'ds_read_b128 {q4(O)}, v{vA16} offset:{L_ACCD}', f'ds_read_b128 {q4(O+4)}, v{vA16} offset:{L_ACCD+1024}']
        wr = [f'ds_write_b128 v{vA16}, {q4(O)} offset:{L_ACCD}', f'ds_write_b128 v{vA16}, {q4(O+4)} offset:{L_ACCD+1024}', f'ds_write_b64 v{vA8}, {pr(O+8)} offset:{L_ACCF}']
        def getm():
            if slow:
                a(f'v_lshrrev_b32 v{vT}, 2, v{vL16}\nv_and_b32 v{vT}, 0x7c, v{vT}\ns_lshl_b32 s{sT0}, s{sTJ}, 7\ns_add_u32 s{sT0}, s{sT0}, {L_MX}\nv_add_u32 v{vT}, s{sT0}, v{vT}')
                a(f'ds_read_b32 v{vM}, v{vT}\ns_waitcnt lgkmcnt(0)')
        nl = lambda i: 3 if self.masked(i) else 2
        def plain(i, ph0=False):
            e = [E(i, r) for r in range(16)]
            w = []; sw = []; ld = []
            if ph0 and not slow:
                issued = sum(nl(t) for t in range(min(16, i + NUP)))
                needed = sum(nl(t) for t in range(i + 1)) + (1 if i < 15 else 0)
                w = [f's_waitcnt vmcnt({issued - needed})']
                if not self.masked(i): sw = [f'v_permlane16_swap_b32 v{V+8*i+r}, v{V+8*i+4+r}' for r in range(4)]
                if i + NUP < 16: ld = [self.kvload(R, i + NUP)]
                if i + NUP == 15: ld += [f'ds_write_b32 v{vS}, v{vONE} offset:{F_A1}']
            if i == 15: w += ['s_waitcnt lgkmcnt(0)']
            seq = e[0:2] + ([] if (ph0 and i == 0) else [PV(i - 1, 1)]) + e[2:5] + w + [QK(i + 1)] + sw
            if i == 14:
                seq += [f's_add_u32 s{sT1}, s{sPH}, 1\ns_lshr_b32 s{sT2}, s{sT1}, 1\ns_sub_u32 s{sT2}, s{sSW}, s{sT2}', e[5],
                        f's_and_b32 s{sT2}, s{sT2}, 3\ns_and_b32 s{sT1}, s{sT1}, 1\ns_lshl_b32 s{sT1}, s{sT1}, 2', e[6],
                        f's_add_u32 s{sT2}, s{sT2}, s{sT1}\ns_lshl_b32 s{sT0}, s{sT2}, 10', e[7], f'v_add_u32 v{vQA}, s{sT0}, v{vL16}', e[8],
                        f'ds_read_b128 {q4(Q)}, v{vQA} offset:{L_QF}'] + e[9:11]
            else:
                seq += e[5:11]
            seq += [PV(i, 0)] + e[11:13] + ld + e[13:16]
            for x in seq: a(x)
        a(f's_setprio {opt("aprio", 1)}')
        getm()
        a(f's_waitcnt vmcnt({sum(nl(t) for t in range(NUP)) - 1}) lgkmcnt(0)')
        a(QK(0))
        if slow:
            plain(0, True); plain(1)
            a(f's_branch L_mid{sf}')
        else:
            for i in range(16): plain(i, True)
            self.stamp(7)
        a('.p2align 6')
        a(f'L_loop{sf}:')
        a(f's_add_u32 s{sPH}, s{sPH}, 1\ns_mov_b32 s{sTJ}, s{sT2}')
        getm()
        e = [E(0, r) for r in range(16)]
        for x in e[0:2] + [PV(15, 1), e[2], f's_add_u32 s{sT1}, s{sPH}, 1', e[3], f's_lshl_b32 s{sT3}, s{sTJ}, 9', e[4], QK(1), f's_lshl_b32 s{sT4}, s{sTJ}, 11', e[5], e[6],
                           f's_cmp_eq_u32 s{sPH}, {PH0 + 7}', e[7], f's_cbranch_scc1 L_finx{sf}',
                           wr[0], f'v_mov_b32 v{O+9}, s{sT1}', e[8], wr[1], e[9], wr[2]]: a(x)
        a(f'L_finxd{sf}:')
        for x in [f'v_add_u32 v{vA8}, s{sT3}, v{vL8}', f'v_add_u32 v{vA16}, s{sT4}, v{vL16}', rd[0], e[10], rd[1], e[11], rd[2]] + e[12:16]: a(x)
        e0 = e
        e = [E(1, r) for r in range(16)]
        NW = opt('nw', 6)
        for x in e[0:NW]: a(x)
        a(f's_waitcnt lgkmcnt(0)\nv_cmp_gt_u32 vcc, s{sPH}, v{O+9}\ns_cbranch_vccnz L_hw{sf}')
        a(f'L_hd{sf}:')
        for x in [PV(0, 0)] + e[NW:NW+3] + [PV(0, 1)] + e[NW+3:NW+6] + [QK(2)] + e[NW+6:NW+9] + [PV(1, 0)] + e[NW+9:16]: a(x)
        a(f'L_mid{sf}:')
        for i in range(2, 16):
            plain(i)
        a(f's_cmp_lt_u32 s{sPH}, {PH0 + 7}\ns_cbranch_scc1 L_loop{sf}')
        a(PV(15, 1))
        a(f's_nop 10\ns_branch L_end{sf}')
        a(f'L_finx{sf}:')
        a(e0[8]); a(e0[9])
        self.publish(R, 0, F_AX)
        a(f's_branch L_finxd{sf}')
        a(f'L_hw{sf}:')
        a(f's_mov_b32 s{sCNT}, {SPIN}')
        a(f'L_hl{sf}:')
        a(f's_sleep 1')
        for x in rd: a(x)
        a(f's_waitcnt lgkmcnt(0)\nv_cmp_gt_u32 vcc, s{sPH}, v{O+9}\ns_cbranch_vccz L_hd{sf}\ns_sub_u32 s{sCNT}, s{sCNT}, 1\ns_cbranch_scc0 L_hl{sf}\ns_branch L_hd{sf}')
        a(f'L_end{sf}:')

    def oproj_pre(self):
        a = self.a
        a('s_setprio 3')
        self.sig(F_AX)
        a(f'ds_read_b32 v{vEP}, v{vF} offset:{F_S[5]}')
        a(f'v_lshrrev_b32 v241, 9, v{vL16}\nv_bfe_u32 v243, v{vL16}, 2, 7\nv_lshl_add_u32 v243, v241, 14, v243\nv_mov_b32 v240, 0\nv_mov_b32 v241, 0')
        a(f's_and_b32 s{sT0}, s{sOW}, 0xc00\ns_lshl_b32 s{sT0}, s{sT0}, 1\nv_add_u32 v242, s{sT0}, v{vL16}\ns_xor_b32 s{sT0}, s{sT0}, 0x1000\nv_add_u32 v245, s{sT0}, v{vL16}\nv_xor_b32 v246, 8, v{vS}')

    def oproj(self):
        a = self.a
        vZ, vOA, vXW, vXR, vP = 240, 243, 242, 245, 246
        OA = [192, 208]
        sPEND, sKH, sOUT = sT3, sT1, sT5
        order = (1, 2, 3, 0)
        for h in range(2): a(f'v_mfma_f32_32x32x8_bf16 {t16(OA[h])}, {pr(vZ)}, {pr(vZ)}, 0')
        loads = lambda q: a(self.o_load(q))
        def proc(q, lab):
            R_ = [self.OF(q, n) + r for n in range(4) for r in range(4)]
            a(f'v_max3_u32 v{vT}, v{R_[0]}, v{R_[1]}, v{R_[2]}')
            for r in range(3, 15, 2): a(f'v_max3_u32 v{vT}, v{R_[r]}, v{R_[r+1]}, v{vT}')
            a(f'v_max_u32 v{vT}, v{R_[15]}, v{vT}\nv_cmp_eq_u32 vcc, -1, v{vT}\ns_cbranch_vccnz {lab}')
            for n in range(4):
                a(f'v_mfma_f32_32x32x16_bf16 {t16(OA[q//4])}, {q4(self.OF(q, n))}, {q4(self.WF(4*(q%4)+n))}, {t16(OA[q//4])}')
            a(f's_bitset0_b32 s{sPEND}, {q}')
            a(f'{lab}:')
        if opt('tail2', 0):
            def retry(h):
                a(f'L_oretry{h}:')
                a(f's_and_b32 s{sT0}, s{sPEND}, {15 << (4*h)}\ns_cbranch_scc0 L_odone{h}\ns_sub_u32 s{sCNT}, s{sCNT}, 1\ns_cbranch_scc1 L_odone{h}')
                for q in range(4 * h, 4 * h + 4):
                    a(f's_bitcmp0_b32 s{sPEND}, {q}\ns_cbranch_scc1 L_ol_{q}')
                    loads(q)
                    a(f'L_ol_{q}:')
                a('s_waitcnt vmcnt(0)')
                for q in range(4 * h, 4 * h + 4):
                    a(f's_bitcmp0_b32 s{sPEND}, {q}\ns_cbranch_scc1 L_o2_{q}')
                    proc(q, f'L_o2_{q}')
                a(f's_branch L_oretry{h}')
                a(f'L_odone{h}:')
            fl = {0: '', 1: ' sc1', 2: ' nt'}[opt('ofl', 2)]
            def send(h):
                a(f's_nop 7\ns_bitcmp1_b32 s{sSW}, 1\ns_cbranch_scc1 L_sh{h}')
                for kh in range(2):
                    sd = OA[h] + 8 - 8 * kh
                    a(f'ds_write_b128 v{vXW}, {q4(sd)} offset:{L_ACCD+8192*h}\nds_write_b128 v{vXW}, {q4(sd+4)} offset:{L_ACCD+8192*h+1024}')
                    self.sig(F_OX + 16 * h)
                    if kh == 0: a(f's_branch L_sd{h}\nL_sh{h}:')
                    else:
                        for r in range(0, 8, 2): a(f'v_pk_mov_b32 {pr(OA[h]+r)}, {pr(OA[h]+8+r)}, {pr(OA[h]+8+r)} op_sel:[0,1]')
                a(f'L_sd{h}:')
            def finish(h):
                self.wait(F_OX + 16 * h, sleep=0, va=vP)
                t = OA[h] + 8
                a(f'ds_read_b128 {q4(t)}, v{vXR} offset:{L_ACCD+8192*h}\nds_read_b128 {q4(t+4)}, v{vXR} offset:{L_ACCD+8192*h+1024}')
                for r in range(8):
                    if r % 4 == 0: a(f's_waitcnt lgkmcnt({1 - r//4})')
                    a(f'v_add_f32 v{t+r}, v{t+r}, v{OA[h]+r}\ns_add_u32 s{sT0}, s{sOUT}, {((r % 4) + 8 * (r // 4) + 32 * h) * 4096}')
                    if 'noo' not in OPT: a(f'buffer_store_dword v{t+r}, v{vOA}, s[{SOUT}:{SOUT+3}], s{sT0} offen{fl}')
            def verify(q):
                R_ = [self.OF(q, n) + r for n in range(4) for r in range(4)]
                if opt('vlite', 0): return [f'v_max3_u32 v{vT}, v{R_[3]}, v{R_[7]}, v{R_[11]}', f'v_max_u32 v{vT}, v{R_[15]}, v{vT}', f'v_cmp_eq_u32 vcc, -1, v{vT}']
                return [f'v_max3_u32 v{vT}, v{R_[0]}, v{R_[1]}, v{R_[2]}'] + [f'v_max3_u32 v{vT}, v{R_[r]}, v{R_[r+1]}, v{vT}' for r in range(3, 15, 2)] + [f'v_max_u32 v{vT}, v{R_[15]}, v{vT}', f'v_cmp_eq_u32 vcc, -1, v{vT}']
            tails = []
            def pproc(q, nxt, wait=None):
                v = ([wait] if wait else []) + (verify(nxt) if nxt is not None else [])
                a(f's_cbranch_vccnz L_ps{q}')
                k = (len(v) + 2) // 3
                for n in range(4):
                    a(f'v_mfma_f32_32x32x16_bf16 {t16(OA[q//4])}, {q4(self.OF(q, n))}, {q4(self.WF(4*(q%4)+n))}, {t16(OA[q//4])}')
                    if n == 0: a(f's_bitset0_b32 s{sPEND}, {q}')
                    else:
                        for x in v[(n - 1) * k:n * k]: a(x)
                a(f'L_pj{q}:')
                tails.append((q, v))
            a(f's_mov_b32 s{sPEND}, 0xff\ns_cmp_eq_u32 s{sPRE}, 1\ns_cbranch_scc1 L_prej')
            self.wait(F_S[5], sleep=1)
            self.wait(F_AY, sleep=0)
            for q in order: loads(q)
            for st in range(16): a(self.wo_read(st, vLN))
            a('s_waitcnt vmcnt(0)')
            a('L_prej:')
            a('s_waitcnt vmcnt(1) lgkmcnt(0)')
            NX = opt('nx', 2)
            for x in verify(1): a(x)
            for k in range(NX): pproc(order[k], order[k + 1] if k + 1 < NX else None)
            self.wait(F_AY, sleep=0)
            self.stamp(11)
            loads(5); loads(6)
            if NX < 4:
                for x in verify(order[NX]): a(x)
            rest = [7, 4]
            for k in range(NX, 4):
                pproc(order[k], order[k + 1] if k < 3 else None)
                if rest: loads(rest.pop(0))
            for q in rest: loads(q)
            self.srd(SOUT, P(14), 2048 * 4096)
            a(f's_lshr_b32 s{sKH}, s{sSW}, 1\ns_mov_b32 s{sCNT}, 50000')
            a(f's_lshl_b32 s{sOUT}, s{sRB}, 18\ns_lshl_b32 s{sT0}, s{sCG}, 1\ns_and_b32 s{sT2}, s{sWV}, 1\ns_add_u32 s{sT0}, s{sT0}, s{sT2}\ns_lshl_b32 s{sT0}, s{sT0}, 7\ns_add_u32 s{sOUT}, s{sOUT}, s{sT0}\ns_lshl_b32 s{sT0}, s{sKH}, 16\ns_add_u32 s{sOUT}, s{sOUT}, s{sT0}')
            retry(0)
            send(0)
            self.stamp(12)
            a('s_waitcnt vmcnt(12)')
            for x in verify(5): a(x)
            for k, q in enumerate(order):
                pproc(4 + q, 4 + order[k + 1] if k < 3 else None, f's_waitcnt vmcnt({8 - 4*k})' if k < 3 else None)
            a(f's_cmp_eq_u32 s{sPEND}, 0\ns_cbranch_scc1 L_ofast')
            finish(0)
            a(f's_mov_b32 s{sCNT}, 50000')
            retry(1)
            send(1)
            a('s_branch L_olast')
            a('L_ofast:')
            OA.append(OA[1])
            a(f's_nop 7\ns_bitcmp1_b32 s{sSW}, 1\ns_cbranch_scc1 L_shf')
            for kh in range(2):
                sd = OA[1] + 8 - 8 * kh
                a(f'ds_write_b128 v{vXW}, {q4(sd)} offset:{L_ACCD+8192}\nds_write_b128 v{vXW}, {q4(sd+4)} offset:{L_ACCD+8192+1024}')
                self.sig(F_OX + 16)
                if kh == 0: a('s_branch L_sdf\nL_shf:')
                else:
                    for r in range(0, 8, 2): a(f'v_pk_mov_b32 {pr(OA[1]+r)}, {pr(OA[1]+8+r)}, {pr(OA[1]+8+r)} op_sel:[0,1]')
            a('L_sdf:')
            finish(0)
            a('L_olast:')
            self.stamp(1)
            finish(1)
            self.end()
            for q, v in tails:
                a(f'L_ps{q}:')
                for x in v: a(x)
                a(f's_nop 0\ns_branch L_pj{q}')
            return
        a(f's_mov_b32 s{sPEND}, 0xff')
        if opt('pre', 0):
            a(f's_cmp_eq_u32 s{sPRE}, 0\ns_cbranch_scc1 L_nopre')
            a('s_waitcnt vmcnt(1) lgkmcnt(0)')
            proc(1, 'L_o0_1'); proc(2, 'L_o0_2')
            self.wait(F_AY, sleep=0)
            a('s_branch L_prej')
            a('L_nopre:')
        TV = opt('tv', 2)
        if TV == 0:
            self.wait(F_S[5], sleep=1)
            self.wait(F_AY, sleep=0)
            for q in order: loads(q)
            for st in range(16): a(self.wo_read(st, vLN))
            a('s_waitcnt vmcnt(0) lgkmcnt(0)')
            proc(1, 'L_o0b_1'); proc(2, 'L_o0b_2')
            a('L_prej:')
            self.stamp(11)
            loads(5); loads(6)
            proc(3, 'L_o0_3')
            loads(7)
            proc(0, 'L_o0_0')
            loads(4)
        else:
            NE = {1: 0, 2: 2, 3: 4, 4: 3}[TV]
            XL = opt('xl', 0)
            if XL:
                a(f's_cmp_eq_u32 s{sPRE}, 1\ns_cbranch_scc1 L_xl')
            if opt('s5p', 1):
                a(f's_waitcnt lgkmcnt(0)\nv_cmp_eq_u32 vcc, 0, v{vEP}\ns_cbranch_vccz L_s5ok')
            self.wait(F_S[5], sleep=1)
            a('L_s5ok:')
            for q in order[:XL]: loads(q)
            a('L_xl:')
            for q in order[XL:max(XL, NE)]: loads(q)
            for st in range(16): a(self.wo_read(st, vLN))
            self.wait(F_AY, sleep=0)
            self.stamp(11)
            for q in order[max(XL, NE):]: loads(q)
            YD = opt('yd', 3)
            iss = 0
            for k, q in enumerate(order):
                while iss < min(4, k + 1 - YD): loads(4 + order[iss]); iss += 1
                a(f's_waitcnt vmcnt({12 - 4*k + 4*iss})')
                proc(q, f'L_o0_{q}')
            while iss < 4: loads(4 + order[iss]); iss += 1
        self.stamp(12)
        self.srd(SOUT, P(14), 2048 * 4096)
        a(f's_lshr_b32 s{sKH}, s{sSW}, 1\ns_mov_b32 s{sCNT}, 50000')
        a(f's_lshl_b32 s{sOUT}, s{sRB}, 18\ns_lshl_b32 s{sT0}, s{sCG}, 1\ns_and_b32 s{sT2}, s{sWV}, 1\ns_add_u32 s{sT0}, s{sT0}, s{sT2}\ns_lshl_b32 s{sT0}, s{sT0}, 7\ns_add_u32 s{sOUT}, s{sOUT}, s{sT0}\ns_lshl_b32 s{sT0}, s{sKH}, 17\ns_add_u32 s{sOUT}, s{sOUT}, s{sT0}')
        for k, q in enumerate(order):
            a(f's_waitcnt vmcnt({12 - 4*k})')
            proc(4 + q, f'L_o1_{q}')
        a('L_oretry:')
        a(f's_cmp_eq_u32 s{sPEND}, 0\ns_cbranch_scc1 L_odone\ns_sub_u32 s{sCNT}, s{sCNT}, 1\ns_cbranch_scc1 L_odone')
        for q in range(8):
            a(f's_bitcmp0_b32 s{sPEND}, {q}\ns_cbranch_scc1 L_ol_{q}')
            loads(q)
            a(f'L_ol_{q}:')
        a('s_waitcnt vmcnt(0)')
        for q in range(8):
            a(f's_bitcmp0_b32 s{sPEND}, {q}\ns_cbranch_scc1 L_o2_{q}')
            proc(q, f'L_o2_{q}')
        a('s_branch L_oretry')
        a('L_odone:')
        if self.stamps: a(f's_mov_b32 s{sST+14}, s{sCNT}')
        self.stamp(1)
        fl = {0: '', 1: ' sc1', 2: ' nt', 3: ' sc0 sc1', 4: ' sc1 nt', 5: ' sc0 nt', 6: ' sc0 sc1 nt'}[opt('ofl', 2)]
        a(f's_nop 7\ns_cmp_eq_u32 s{sKH}, 0\ns_cbranch_scc0 L_ohi')
        for kh in range(2):
            keep, send = OA[kh], OA[1 - kh]
            for q in range(4): a(f'ds_write_b128 v{vXW}, {q4(send+4*q)} offset:{L_ACCD + 8192*(q//2) + 1024*(q%2)}')
            self.sig(F_OX)
            self.wait(F_OX, sleep=0, va=vP)
            for q in range(4): a(f'ds_read_b128 {q4(4*q)}, v{vXR} offset:{L_ACCD + 8192*(q//2) + 1024*(q%2)}')
            for r in range(16):
                if r % 4 == 0: a(f's_waitcnt lgkmcnt({3 - r//4})')
                a(f'v_add_f32 v{r}, v{r}, v{keep+r}\ns_add_u32 s{sT0}, s{sOUT}, {((r % 4) + 8 * (r // 4)) * 4096}')
                if 'noo' not in OPT: a(f'buffer_store_dword v{r}, v{vOA}, s[{SOUT}:{SOUT+3}], s{sT0} offen{fl}')
            self.end()
            if kh == 0: a('L_ohi:')

    def kvproj(self):
        a = self.a
        vXA, vWA, vU, vO, vZ, D = 176, 177, 178, 179, 180, 184
        a(f's_lshr_b32 s{sT5}, s{sCG}, 1')
        a(f'v_and_b32 v{vT}, 15, v{vLN}\ns_lshl_b32 s{sT0}, s{sT5}, 4\nv_add_u32 v{vO}, s{sT0}, v{vT}\nv_mul_u32_u24 v{vXA}, 1040, v{vO}')
        a(f'v_lshrrev_b32 v{vU}, 4, v{vLN}\nv_lshl_add_u32 v{vXA}, v{vU}, 4, v{vXA}\nv_add_u32 v{vXA}, {L_A1}, v{vXA}')
        a(f'v_lshlrev_b32 v{vWA}, 3, v{vT}\nv_lshl_add_u32 v{vWA}, v{vU}, 8, v{vWA}\nv_and_b32 v181, 1, v{vU}\nv_lshl_add_u32 v{vWA}, v181, 7, v{vWA}\nv_xor_b32 v181, 128, v{vWA}\nv_add_u32 v{vWA}, {L_WKV}, v{vWA}\nv_add_u32 v181, {L_WKV}, v181')
        a(f's_and_b32 s{sT1}, s{sCG}, 1\ns_xor_b32 s{sT2}, s{sT1}, 1')
        a(f'v_lshrrev_b32 v{vO}, s{sT1}, v{vU}\nv_and_b32 v{vO}, 1, v{vO}\nv_lshlrev_b32 v{vO}, 9, v{vO}\nv_lshl_add_u32 v{vO}, v{vT}, 4, v{vO}')
        a(f'v_lshrrev_b32 v{vT}, s{sT2}, v{vU}\nv_and_b32 v{vT}, 1, v{vT}\nv_lshl_add_u32 v{vO}, v{vT}, 3, v{vO}')
        a(f's_lshl_b32 s{sT0}, s{sRB}, 1\ns_lshr_b32 s{sT2}, s{sT5}, 1\ns_add_u32 s{sT0}, s{sT0}, s{sT2}\ns_lshl_b32 s{sT0}, s{sT0}, 1\ns_add_u32 s{sT0}, s{sT0}, s{sT1}\ns_lshl_b32 s{sT0}, s{sT0}, 10')
        a(f's_and_b32 s{sT2}, s{sT5}, 1\ns_lshl_b32 s{sT2}, s{sT2}, 8\ns_add_u32 s{sT0}, s{sT0}, s{sT2}\ns_add_u32 s{sT3}, s{sT0}, {WS_KVIMG:#x}')
        a(f's_lshl_b32 s{sT4}, s{sRB}, 3\ns_add_u32 s{sT4}, s{sT4}, s{sCG}\ns_lshl_b32 s{sT4}, s{sT4}, {opt("fs", 6)}\ns_add_u32 s{sT4}, s{sT4}, {WS_KVFLAG:#x}')
        a(f'v_mov_b32 v{vZ}, 0')
        a(f's_lshl_b32 s{sT0}, s{sSW}, 8\nv_add_u32 v{vXA}, s{sT0}, v{vXA}\ns_lshl_b32 s{sT0}, s{sSW}, 12\nv_add_u32 v{vWA}, s{sT0}, v{vWA}\nv_add_u32 v181, s{sT0}, v181')
        a(f's_lshl_b32 s{sT0}, s{sSW}, 10\nv_add_u32 v{vU}, s{sT0}, v{vL16}')
        self.wait(F_L1, sleep=0)
        self.stamp(12)
        for s in range(4):
            b = 128 + 8 * s
            a(f'ds_read_b128 {q4(b)}, v{vXA} offset:{64*s}')
            a(f'ds_read_b64_tr_b16 {pr(b+4)}, v{vWA} offset:{1024*s}')
            a(f'ds_read_b64_tr_b16 {pr(b+6)}, v181 offset:{1024*s}')
        a(f's_bitcmp1_b32 s{sCG}, 0\ns_cbranch_scc1 L_kv_v')
        for kind in 'kv':
            for s in range(4):
                a(f's_waitcnt lgkmcnt({3 * (3 - s)})')
                b = 128 + 8 * s
                A, B = (q4(b + 4), q4(b)) if kind == 'k' else (q4(b), q4(b + 4))
                a(f'v_mfma_f32_16x16x32_bf16 {q4(D)}, {A}, {B}, {"0" if s == 0 else q4(D)}')
            if kind == 'k': a('s_branch L_kv_j\nL_kv_v:')
        a('L_kv_j:')
        a(f's_cmp_eq_u32 s{sSW}, 0\ns_cbranch_scc1 L_kv_0\ns_nop 5')
        a(f'ds_write_b128 v{vU}, {q4(D)} offset:{L_QF}')
        self.sig(F_S[4])
        a('s_branch L_nokv')
        a('L_kv_0:')
        self.sig(F_S[4])
        self.wait(F_S[4], sleep=0)
        for q in range(3): a(f'ds_read_b128 {q4(128+4*q)}, v{vL16} offset:{L_QF + 1024*(q+1)}')
        for q in range(3):
            a(f's_waitcnt lgkmcnt({2-q})\nv_pk_add_f32 {pr(D)}, {pr(D)}, {pr(128+4*q)}\nv_pk_add_f32 {pr(D+2)}, {pr(D+2)}, {pr(130+4*q)}')
        a(f'v_cvt_pk_bf16_f32 v188, v{D}, v{D+1}\nv_cvt_pk_bf16_f32 v189, v{D+2}, v{D+3}')
        a(f'buffer_store_dwordx2 v[188:189], v{vO}, s[{SWS}:{SWS+3}], s{sT3} offen sc1')
        a(f's_bitcmp1_b32 s{sCG}, 0\ns_cbranch_scc1 L_kv_v2')
        a(f'v_mul_f32 v190, v{D}, v{D}\nv_fmac_f32 v190, v{D+1}, v{D+1}\nv_fmac_f32 v190, v{D+2}, v{D+2}\nv_fmac_f32 v190, v{D+3}, v{D+3}')
        a('v_mov_b32 v191, v190\nv_permlane32_swap_b32 v190, v191\nv_add_f32 v190, v190, v191')
        a('v_mov_b32 v191, v190\nv_permlane16_swap_b32 v190, v191\nv_add_f32 v190, v190, v191')
        a('s_mov_b64 exec, 0xffff\ns_branch L_kv_fin')
        a('L_kv_v2:')
        a(f'v_max3_f32 v190, |v{D}|, |v{D+1}|, |v{D+2}|\nv_max_f32 v190, |v{D+3}|, v190')
        a(f's_mov_b32 s{sT1}, {f2u(2.0**50):#x}\nv_cmp_lt_f32 vcc, s{sT1}, v190\nv_mov_b32 v190, 0x7f800000\ns_mov_b64 exec, vcc')
        a('L_kv_fin:')
        a(f'ds_max_u32 v{vZ}, v190 offset:{F_KST}\ns_mov_b64 exec, -1\nds_read_b32 v183, v{vZ} offset:{F_KST}')
        a('s_waitcnt vmcnt(1)')
        self.get_tag()
        if XC: a(f's_getreg_b32 s{sT0}, hwreg(HW_REG_XCC_ID)\nv_mov_b32 v184, s{sT0}')
        a(f'v_mov_b32 v182, s{sTAG}\nds_write_b32 v{vF}, v182 offset:{F_TAG}')
        self.stamp(13)

    def service(self):
        a = self.a
        self.cyc = False
        L1, L8, L16, L128, FF, WW, CC = 192, 194, 196, 198, 200, 202, 204
        DG = 206
        vXD, vXR, vXR2, vBD, vHA, vHB, vSX, vTW, vTR, vEA, vXS, vOA, vWI, vP8, vCK, vCS, vCK2, vCS2, vHF, vYW, vE0, vPF, vTG, vYR = range(214, 238)
        PRM = 238
        vC31, vHI, vU, vWA, vXA, vQ = 242, 243, 244, 245, 246, 247
        a('L_service:')
        a(f'v_mov_b32 v0, 0\nv_mov_b32 v1, 0\nv_mov_b32 v2, 0\nv_mov_b32 v3, 0')
        a(f's_lshl_b32 s{sT0}, s{sSW}, 10\nv_add_u32 v{vT}, s{sT0}, v{vL16}\nds_write_b128 v{vT}, v[0:3] offset:{L_ACCF}')
        a(f'v_lshlrev_b32 v{vT}, 3, v{vLN}\nds_write_b64 v{vT}, v[0:1]')
        a(f'v_and_b32 v{vC31}, 31, v{vLN}\nv_lshlrev_b32 v{vU}, 1, v{vC31}\nv_lshrrev_b32 v{vHI}, 5, v{vLN}')
        a('s_waitcnt lgkmcnt(0)')
        self.stamp(0)
        a('s_setprio 3')
        self.srd(SWS, P(16), WS_SIZE)
        a(f's_cmp_lg_u32 s{sSW}, 0\ns_cbranch_scc1 L_noepl')
        a(f'buffer_load_dword v{vEP}, off, s[{SWS}:{SWS+3}], 0 sc1')
        a('L_noepl:')
        a(f's_lshl_b32 s{sT0}, s{sPB}, 6')
        for k, p in enumerate((6, 7, 12)):
            self.srd(SA, P(p), 1024)
            a(f'buffer_load_ushort v{PRM+k}, v{vU}, s[{SA}:{SA+3}], s{sT0} offen')
        self.srd(SA, P(13), 1024)
        a(f's_lshl_b32 s{sT0}, s{sCG}, 7\ns_and_b32 s{sT1}, s{sWV}, 1\ns_lshl_b32 s{sT1}, s{sT1}, 6\ns_add_u32 s{sT0}, s{sT0}, s{sT1}')
        a(f'buffer_load_ushort v{PRM+3}, v{vU}, s[{SA}:{SA+3}], s{sT0} offen')
        a('s_barrier')
        self.common_regs()
        self.tr_parts(vTR, vU, vWA)
        a(f'v_lshl_add_u32 v{vTR}, v{vU}, 6, v{vTR}\nv_lshl_add_u32 v{vTR}, v{vHI}, 9, v{vTR}')
        a(f'v_lshl_add_u32 v{vWA}, v{vHI}, 10, v{vWA}\nv_add_u32 v{vWA}, {L_A2}, v{vWA}')
        a(f'v_mul_u32_u24 v{vCK}, 1040, v{vC31}\nv_lshl_add_u32 v{vCK}, v{vHI}, 4, v{vCK}\nv_add_u32 v{vCK}, {L_A1}, v{vCK}')
        a(f's_lshr_b32 s{sT0}, s{sSW}, 1\ns_mul_i32 s{sT0}, s{sT0}, {32*1040}\nv_add_u32 v{vXA}, s{sT0}, v{vCK}')
        a(f's_lshl_b32 s{sT0}, s{sSW}, 11\nv_add_u32 v{vQ}, s{sT0}, v{vL16}')
        sXB, sXL, sTP, sCT = 73, 74, 75, 80
        a(f's_lshl_b32 s{sXB}, s{sTB}, 2\ns_add_u32 s{sXB}, s{sXB}, s{sSW}\ns_lshl_b32 s{sXB}, s{sXB}, 15')
        a(f's_mul_i32 s{sXL}, s{sSW}, {XW}\ns_add_u32 s{sXL}, s{sXL}, {L_A2}')
        a(f's_lshl_b32 s{sTP}, s{sRB}, 1\ns_lshr_b32 s{sT0}, s{sSW}, 1\ns_add_u32 s{sTP}, s{sTP}, s{sT0}')
        a(f's_lshl_b32 s{sCT}, s{sCG}, 1\ns_and_b32 s{sT0}, s{sSW}, 1\ns_add_u32 s{sCT}, s{sCT}, s{sT0}')
        a(f'v_lshlrev_b32 v{vT}, 3, v{vHI}\nv_xor_b32 v{vT}, v{vC31}, v{vT}\nv_lshlrev_b32 v{vT}, 4, v{vT}\nv_lshl_add_u32 v{vXD}, v{vHI}, 13, v{vT}\nv_lshl_add_u32 v{vBD}, v{vHI}, 10, v{vT}')
        def tmap(i):
            r = 4 * (i >> 3) + (i & 3)
            return 16 * ((i >> 2) & 1) + (r >> 1) + 8 * (r & 1)
        def xdma(half, ms=range(16)):
            for m in ms:
                a(f's_xor_b32 s{sT0}, s{sXM}, {m}\ns_mul_i32 s{sT0}, s{sT0}, 1040\ns_add_u32 m0, s{sT0}, s{sXL}\ns_xor_b32 s{sT0}, s{sXG}, {tmap(2*m)*1024 + 512*half}')
                a(f'buffer_load_dwordx4 v{vXD}, s[{SA}:{SA+3}], s{sT0} offen lds')
        sXM, sXG, sHB = 50, 51, 81
        a(f's_and_b32 s{sXM}, s{sPB}, 14\ns_and_b32 s{sT0}, s{sPB}, 2\ns_lshl_b32 s{sT0}, s{sT0}, 3\ns_lshr_b32 s{sT1}, s{sPB}, 2\ns_lshl_b32 s{sT1}, s{sT1}, 1\ns_add_u32 s{sT0}, s{sT0}, s{sT1}\ns_lshl_b32 s{sT0}, s{sT0}, 10')
        a(f's_xor_b32 s{sHB}, s{sPB}, s{sTB}\ns_and_b32 s{sHB}, s{sHB}, {opt("hrot", 1)}\ns_lshl_b32 s{sHB}, s{sHB}, 9\ns_add_u32 s{sT0}, s{sT0}, s{sHB}\ns_add_u32 s{sXG}, s{sXB}, s{sT0}')
        a(f'v_lshrrev_b32 v{vU}, 1, v{vC31}\nv_mul_u32_u24 v{vU}, 1040, v{vU}\nv_lshl_add_u32 v{vU}, v{vHI}, 4, v{vU}\nv_and_b32 v{vT}, 1, v{vC31}')
        a(f'v_mul_u32_u24 v{vHA}, 640, v{vT}\nv_mul_u32_u24 v{vHB}, 384, v{vT}\nv_add_u32 v{vHA}, v{vHA}, v{vU}\nv_add_u32 v{vHB}, v{vHB}, v{vU}')
        a(f'v_add_u32 v{vXR}, s{sXL}, v{vHA}\nv_add_u32 v{vXR2}, s{sXL}, v{vHB}\nv_add_u32 v{vHA}, {L_A1}, v{vHA}\nv_add_u32 v{vHB}, {L_A1}, v{vHB}')
        a(f'v_lshlrev_b32 v{vSX}, 3, v{vLN}\nv_add_u32 v{vSX}, s{sXL}, v{vSX}')
        a(f'v_lshlrev_b32 v{vP8}, 3, v{vC31}\nv_add_u32 v{vP8}, {L_A2}, v{vP8}')
        a(f'v_lshlrev_b32 v{vTW}, 6, v{vC31}\nv_lshl_add_u32 v{vTW}, v{vHI}, 5, v{vTW}\nv_add_u32 v{vTW}, s{sXL}, v{vTW}\nv_add_u32 v{vTR}, s{sXL}, v{vTR}')
        a(f'v_lshlrev_b32 v{vEA}, 4, v{vC31}\nv_xor_b32 v{vT}, 1, v{vHI}\nv_lshl_add_u32 v{vEA}, v{vT}, 12, v{vEA}')
        a(f'v_lshlrev_b32 v{vXS}, 10, v{vC31}\nv_lshl_add_u32 v{vXS}, v{vHI}, 4, v{vXS}')
        a(f'v_lshlrev_b32 v{vOA}, 2, v{vC31}\nv_lshl_add_u32 v{vOA}, v{vHI}, 14, v{vOA}')
        self.wimg_lane_addr(vWI, vT)
        a(f's_and_b32 s{sT0}, s{sSW}, 1\ns_mul_i32 s{sT1}, s{sT0}, {512 - 32*1040}\ns_add_u32 s{sT1}, s{sT1}, {32*1040}\nv_add_u32 v{vCS}, s{sT1}, v{vCK}')
        a(f's_mul_i32 s{sT1}, s{sT0}, {32*1040 + 512}\nv_add_u32 v{vCK}, s{sT1}, v{vCK}\nv_add_u32 v{vCK2}, {L_A2 - L_A1}, v{vCK}\nv_add_u32 v{vCS2}, {L_A2 - L_A1}, v{vCS}')
        a(f'v_and_b32 v{vHF}, 15, v{vLN}\nv_lshlrev_b32 v{vHF}, 7, v{vHF}\nv_lshlrev_b32 v{vPF}, 6, v{vLN}')
        a(f'v_add_u32 v{vYW}, s{sXL}, v{vL16}\ns_xor_b32 s{sT0}, s{sSW}, 1\ns_mul_i32 s{sT0}, s{sT0}, {XW}\ns_add_u32 s{sT0}, s{sT0}, {L_A2}\nv_add_u32 v{vYR}, s{sT0}, v{vL16}')
        self.kvproj()
        a('L_nokv:')
        a(f's_cmp_eq_u32 s{sSW}, 0\ns_cbranch_scc1 L_pw1\ns_waitcnt vmcnt(0)')
        a('L_pw1:')
        a(f'v_lshlrev_b32 v0, 16, v{PRM}\nv_lshlrev_b32 v1, 16, v{PRM+1}\nv_lshlrev_b32 v2, 16, v{PRM+2}')
        LOG2E = f2u(math.log2(math.e))
        a(f'v_mul_f32 v2, {LOG2E:#x}, v2\nv_exp_f32 v2, v2\nv_cvt_pk_bf16_f32 v2, v2, v2\nv_lshlrev_b32 v2, 16, v2')
        a(f'v_mul_f32 v4, v2, v0\nv_mul_f32 v5, v2, v1\nv_mul_f32 v4, {LOG2E:#x}, v4\nv_mul_f32 v5, {f2u(-1/(2*math.pi)):#x}, v5')
        def power(d, n):
            a(f'v_mul_f32 v6, {n}, v4\nv_mul_f32 v7, {n}, v5\nv_exp_f32 v6, v6\nv_fract_f32 v7, v7\nv_cos_f32 v8, v7\nv_sin_f32 v9, v7\nv_mul_f32 v{d}, v6, v8\nv_mul_f32 v{d+1}, v6, v9')
        power(L1, '1.0')
        power(L8, f'{f2u(8.0):#x}')
        power(L16, f'{f2u(16.0):#x}')
        power(L128, f'{f2u(128.0):#x}')
        a(f'v_cvt_f32_u32 v11, v{vHI}\nv_mul_f32 v11, {f2u(1024.0):#x}, v11')
        power(FF, 'v11')
        a(f's_lshl_b32 s{sT0}, s{sSW}, 1\nv_add_u32 v11, s{sT0}, v{vHI}\nv_cvt_f32_u32 v11, v11\nv_mul_f32 v11, {f2u(16.0):#x}, v11')
        power(WW, 'v11')
        a(f'v_add_f32 v6, -1.0, v{L1}\nv_mul_f32 v7, v0, v0\nv_fmac_f32 v7, v1, v1\nv_rcp_f32 v7, v7\nv_add_f32 v7, v7, v7')
        a(f'v_mul_f32 v8, v6, v0\nv_fma_f32 v8, -v{L1+1}, v1, v8\nv_mul_f32 v9, v6, v1\nv_fma_f32 v9, -v{L1+1}, v0, -v9\nv_mul_f32 v{CC}, v8, v7\nv_mul_f32 v{CC+1}, v9, v7')
        a(f'v_and_b32 v6, 1, v{vLN}\nv_lshlrev_b32 v6, 4, v6\nv_lshlrev_b32 v3, v6, v{PRM+3}')
        a(f'v_lshrrev_b32 v6, 1, v{vC31}\nv_lshlrev_b32 v7, 2, v{vHI}\nv_sub_u32 v6, v6, v7')
        for q in range(8):
            a(f'v_cmp_eq_u32 vcc, {8*(q//4) + q%4}, v6\nv_cndmask_b32 v{DG+q}, 0, v3, vcc')
        LC = PRM
        a(f'v_mov_b32 v{LC}, 0\nv_mov_b32 v{LC+1}, 0')
        WT, D = 128, 160
        def kvflag():
            a(f's_cmp_lg_u32 s{sSW}, 0\ns_cbranch_scc1 L_nokvf')
            a('s_waitcnt vmcnt(0)')
            a(f's_mov_b64 exec, {(1 << (1 << (opt("fs", 6) - 4))) - 1:#x}\nbuffer_store_dwordx4 v[182:185], v{vL16}, s[{SWS}:{SWS+3}], s{sT4} offen sc1\ns_mov_b64 exec, -1')
            self.sig(F_KVD, va=vF)
            self.stamp(14)
            a('L_nokvf:')
        FP = opt('fp', 16)
        if FP < 0:
            a('s_waitcnt lgkmcnt(0)'); kvflag()
        self.wait(F_L2, sleep=1)
        self.stamp(1)
        vXQ = [vU, 186, 187, 191]
        a(f's_and_b32 s{sT1}, s{sRB}, 3')
        for c in range(4): a(f's_xor_b32 s{sT0}, s{sT1}, {c}\ns_lshl_b32 s{sT0}, s{sT0}, 8\nv_add_u32 v{vXQ[c]}, s{sT0}, v{vXA}')
        def xr(st): a(f'ds_read_b128 {q4(4*st)}, v{vXQ[st//8]} offset:{32*(st%8)}')
        NPR = opt('npr', 16)
        if FP == 0: kvflag()
        for st in range(32 - NPR, 32): xr(st)
        if FP == 16: kvflag()
        lq = []
        def wr(st):
            b = WT + 4 * (st % 8)
            if st < 32 - NPR: xr(st); lq.append(st)
            a(f'ds_read_b64_tr_b16 {pr(b)}, v{vWA} offset:{2048*st}\nds_read_b64_tr_b16 {pr(b+2)}, v{vWA} offset:{2048*st+512}')
            lq.extend([st, st])
        for s0, s1, fl in ((0, 16, F_L4), (16, 32, F_L6)):
            self.wait(fl, sleep=0)
            if s0 == 0:
                self.stamp(2)
            dp = 4 if s0 < 32 - NPR else 6
            for st in range(s0, s0 + dp): wr(st)
            for st in range(s0, s1):
                lq[:] = [x for x in lq if x > st]
                a(f's_waitcnt lgkmcnt({len(lq)})')
                a(f'v_mfma_f32_32x32x16_bf16 {t16(D)}, {q4(WT + 4*(st%8))}, {q4(4*st)}, {"0" if st == 0 else t16(D)}')
                if st + dp < s1: wr(st + dp)
            if s0 == 0:
                if FP == 32: kvflag()
                self.wait(F_KVD, sleep=0)
                self.sig(F_QA)
                a(f'ds_read_b32 v{vTG}, v{vF} offset:{F_TAG}')
        QS = f2u(0.25 * math.log2(math.e))
        a(f'v_mov_b32 v24, {QS:#x}')
        for r in range(8):
            a(f'v_pk_mul_f32 {pr(D+2*r)}, v[24:25], {pr(D+2*r)} op_sel:[0,0] op_sel_hi:[0,1]')
            a(f'v_cvt_pk_bf16_f32 v{16+r}, v{D+2*r}, v{D+2*r+1}')
            if r == 3: a(f'ds_write_b128 v{vQ}, v[16:19] offset:{L_QF}')
        a(f'ds_write_b128 v{vQ}, v[20:23] offset:{L_QF+1024}')
        self.sig(F_QP)
        self.stamp(3)
        a(f'v_mul_f32 v8, v{D}, v{D}\nv_mul_f32 v9, v{D+8}, v{D+8}')
        for r in range(1, 8): a(f'v_fmac_f32 v8, v{D+r}, v{D+r}\nv_fmac_f32 v9, v{D+8+r}, v{D+8+r}')
        a('v_permlane32_swap_b32 v8, v9\nv_add_f32 v8, v8, v9')
        a(f'v_mov_b32 v{vQ}, v8')
        if 'nosvc' in OPT:
            self.sig(F_S[0]); self.sig(F_S[9]); self.end(); return
        vCL = vXA
        HR_ = opt('hr', 0)
        a(f's_and_b32 s{sT0}, s{sCG}, {3 if HR_ else 0}\ns_lshl_b32 s{sT0}, s{sT0}, 7\nv_xor_b32 v{vCL}, s{sT0}, v{vL16}')
        SN = 180
        a(f'v_readfirstlane_b32 s{sTAG}, v{vTG}')
        a(f'v_mov_b32 v{SN}, -1\nv_mov_b32 v{SN+1}, -1\nv_mov_b32 v{SN+2}, -1\nv_mov_b32 v{SN+3}, -1\nv_mov_b32 v{SN+4}, 0\nv_mov_b32 v{SN+5}, 0\nv_mov_b32 v{SN+6}, v{vTG}\nv_mov_b32 v{SN+7}, 0')
        self.srd(SA, P(5), 2048 * 1024)
        self.srd(SB, P(8), 512 * 1024)
        self.srd(SC, P(9), 512 * 1024)
        self.stamp(11)
        def bdma(half, only=None):
            if half == 0: a(f's_mul_i32 s{sT1}, s{sSW}, {4*1040}\ns_lshl_b32 s{sT2}, s{sPB}, 15\ns_lshl_b32 s{sT3}, s{sSW}, 13\ns_add_u32 s{sT2}, s{sT2}, s{sT3}\ns_add_u32 s{sT2}, s{sT2}, s{sHB}')
            for pl, srd in ((0, SB), (1, SC)):
                for m in range(4):
                    if only is not None and only != 4 * pl + m: continue
                    a(f's_add_u32 m0, s{sT1}, {L_A1 + ((2*half + pl)*16 + m)*1040}\ns_xor_b32 s{sT0}, s{sT2}, {2048*m + 512*half}')
                    a(f'buffer_load_dwordx4 v{vBD}, s[{srd}:{srd+3}], s{sT0} offen lds')
        def xread(half):
            for s in range(16): a(f'ds_read_b128 {q4(64*half + 4*s)}, v{vXR2 if s & 4 else vXR} offset:{32*s}')
        def rowdma(srd, base, sg, n):
            for m in range(n):
                if m % 4 == 0: a(f's_add_u32 m0, s{sT1}, {base + m*1040}\ns_add_u32 s{sT0}, s{sg}, {1024*m}')
                else: a('s_add_u32 m0, m0, 16')
                a(f'buffer_load_dwordx4 v{vCL}, s[{srd}:{srd+3}], s{sT0} offen offset:{1024*(m%4)} lds')
        self.wait(F_A1, sleep=opt('a1s', 4))
        self.stamp(10)
        a(f'ds_read_b64 {pr(SN+8)}, v{SN+4} offset:{F_KMAX}')
        xdma(0, range(2)); a(f's_mov_b32 s{sT0}, {f2u(3400.0):#x}\ns_waitcnt lgkmcnt(0)')
        a(f'v_mul_f32 v{vT}, v{SN+8}, v{vQ}\nv_cmp_nge_f32 vcc, s{sT0}, v{vT}' + (f'\nv_readfirstlane_b32 s{sXC}, v{SN+9}' if XC else '') + f'\ns_cmp_eq_u64 vcc, 0\ns_cselect_b32 s{sT0}, 1, 2\nv_mov_b32 v{vQ}, s{sT0}')
        a(f'ds_write_b32 v{vS}, v{vQ} offset:{F_S[0]}')
        bdma(0); xdma(0, range(2, 16))
        a('s_waitcnt vmcnt(0)')
        self.sig(F_S[1])
        self.stamp(4)
        xread(0)
        self.wait(F_S[1], sleep=1)
        self.stamp(5)
        GR, GI, BT = 128, 144, 160
        PD = 2 * opt('s1depth', 1)
        lq = []
        def bread(q):
            s, pl = q // 2, q % 2
            a(f'ds_read_b128 {q4(BT + 4*(q%4))}, v{vHB if s & 4 else vHA} offset:{((2*(s//16) + pl)*16)*1040 + 32*(s%16)}')
            lq.append(('b', q))
        a(f's_setprio {opt("gprio1", 0)}')
        for q in range(PD): bread(q)
        XQ = opt('xq', 21)
        for q in range(1, 64, 2):
            s = q // 2
            need = max([i for i, x in enumerate(lq) if x == ('b', q) or x == ('x', s)] + [-1])
            if need >= 0:
                a(f's_waitcnt lgkmcnt({len(lq) - 1 - need})')
                del lq[:need + 1]
            for pl, Gx in ((0, GR), (1, GI)):
                a(f'v_mfma_f32_32x32x16_bf16 {t16(Gx)}, {q4(4*s)}, {q4(BT + 4*((q-1+pl)%4))}, {"0" if s == 0 else t16(Gx)}')
            if q - 1 + PD == 32:
                a('s_setprio 3')
                self.wait(F_S[2], sleep=1); lq.clear()
                a(f's_setprio {opt("gprio1", 0)}')
                self.stamp(12)
            if XQ < q <= XQ + 32:
                sx = (q - XQ) // 2 - 1
                a(f'ds_read_b128 {q4(64 + 4*sx)}, v{vXR2 if sx & 4 else vXR} offset:{32*sx}'); lq.append(('x', 16 + sx))
            if q + PD < 64: bread(q - 1 + PD); bread(q + PD)
            if s < 2:
                for m in range(4): bdma(1, 4 * s + m)
            elif s < 6: xdma(1, range(4 * s - 8, 4 * s - 4))
            elif opt('pad1', 0): a(f's_nop {opt("pad1", 0) - 1}')
            if q == XQ:
                a('s_waitcnt vmcnt(0)')
                self.sig(F_S[2]); lq.append(('s', 0))
                a(f's_or_b32 s{sT0}, s2, s{sSW}\ns_cbranch_scc1 L_noep')
                a(f's_mov_b64 exec, 1\nbuffer_store_dword v{vTG}, off, s[{SWS}:{SWS+3}], 0 sc1\ns_mov_b64 exec, -1')
                a('L_noep:')
                a(f's_cmp_lg_u32 s{sTB}, 0\ns_cbranch_scc1 L_nozero')
                a(f's_lshl_b32 s{sT0}, s{sPB}, 14\ns_lshl_b32 s{sT1}, s{sSW}, 11\ns_add_u32 s{sT0}, s{sT0}, s{sT1}\ns_add_u32 s{sT0}, s{sT0}, {WS_EBUF:#x}')
                for n in range(2): a(f'buffer_store_dwordx4 {q4(SN+4)}, v{vL16}, s[{SWS}:{SWS+3}], s{sT0} offen offset:{1024*n} sc1')
                a('L_nozero:')
                a(f's_lshr_b32 s{sT0}, s{sSW}, 1\ns_and_b32 s{sT1}, s{sRB}, 1\ns_cmp_lg_u32 s{sT0}, s{sT1}\ns_cbranch_scc1 L_nosent')
                a(f's_lshl_b32 s{sT1}, s{sCG}, 12\ns_add_u32 s{sT0}, s{sXB}, s{sT1}\ns_add_u32 s{sT0}, s{sT0}, {WS_OBUF:#x}')
                self.xstore([f'buffer_store_dwordx4 {q4(SN)}, v{vL16}, s[{SWS}:{SWS+3}], s{sT0} offen offset:{1024*n}' for n in range(4)], 's')
                a('L_nosent:')
                if opt('pf', 1): self.prefetch((10, 11, 4), vPF)
        a('s_setprio 3')
        self.stamp(6)
        if opt('stop', 0) == 6: self.end(); return
        RE = 'op_sel:[0,0,0] op_sel_hi:[0,1,1]'
        IM = 'op_sel:[1,0,0] op_sel_hi:[1,1,1]'
        T0, T1 = 8, 10
        def pstep(dr, di, sr, si, l, ur, ui, ns=0, nu=0):
            a(f'v_pk_fma_f32 {pr(T0)}, {pr(l)}, {pr(si)}, {pr(ur)} {IM} neg_lo:[{1-ns},0,0] neg_hi:[{1-ns},0,0]')
            a(f'v_pk_fma_f32 {pr(T1)}, {pr(l)}, {pr(sr)}, {pr(ui)} {IM} neg_lo:[0,0,{nu}] neg_hi:[0,0,{nu}]')
            a(f'v_pk_fma_f32 {pr(dr)}, {pr(l)}, {pr(sr)}, {pr(T0)} {RE}')
            a(f'v_pk_fma_f32 {pr(di)}, {pr(l)}, {pr(si)}, {pr(T1)} {RE} neg_lo:[{ns},0,0] neg_hi:[{ns},0,0]')
        def cstep(dr, di, sr, si, l, ur, ui):
            a(f'v_fma_f32 v{T0}, -v{l+1}, v{si}, v{ur}\nv_fma_f32 v{T1}, v{l+1}, v{sr}, v{ui}\nv_fma_f32 v{dr}, v{l}, v{sr}, v{T0}\nv_fma_f32 v{di}, v{l}, v{si}, v{T1}')
        def zstep(d, s, l, u):
            a(f'v_pk_fma_f32 {pr(T0)}, {pr(l)}, {pr(s)}, {pr(u)} {RE}')
            a(f'v_pk_fma_f32 {pr(d)}, {pr(l)}, {pr(s)}, {pr(T0)} op_sel:[1,1,0] op_sel_hi:[1,0,1] neg_lo:[1,0,0]')
        def cmul(r, i, neg):
            a(f'v_pk_mul_f32 {pr(T0)}, {pr(CC)}, {pr(i)} op_sel:[1,0] op_sel_hi:[1,1]')
            a(f'v_pk_mul_f32 {pr(T1)}, {pr(CC)}, {pr(r)} op_sel:[1,0] op_sel_hi:[1,1]')
            a(f'v_pk_fma_f32 {pr(r)}, {pr(CC)}, {pr(r)}, {pr(T0)} {RE} neg_lo:[0,0,{neg}] neg_hi:[0,0,{neg}]')
            a(f'v_pk_fma_f32 {pr(i)}, {pr(CC)}, {pr(i)}, {pr(T1)} {RE} neg_lo:[{neg},0,1] neg_hi:[{neg},0,1]')
        ER, EI, EE = 12, 14, 16
        pstep(ER, EI, GR, GI, L1, GR + 2, GI + 2, 1, 1)
        for r in range(4, 16, 2): pstep(ER, EI, ER, EI, L1, GR + r, GI + r, 0, 1)
        cstep(EE, EE + 1, ER, EI, L8, ER + 1, EI + 1)
        a(f'ds_write_b64 v{vSX}, {pr(EE)} offset:{L_SXO}')
        self.sig(F_S[3])
        self.srd(SB, P(10), 512 * 1024)
        self.srd(SC, P(11), 512 * 1024)
        if HR_:
            a(f's_bitcmp1_b32 s{sCG}, 2\ns_cselect_b32 s{SB}, s{P(11)}, s{P(10)}\ns_cselect_b32 s{SB+1}, s{P(11)+1}, s{P(10)+1}\ns_cselect_b32 s{SC}, s{P(10)}, s{P(11)}\ns_cselect_b32 s{SC+1}, s{P(10)+1}, s{P(11)+1}')
        a(f's_lshl_b32 s{sT3}, s{sSW}, 1\ns_mov_b32 s{sM0}, 0\ns_mov_b32 s{sM0+1}, -1')
        a(f's_lshl_b32 s{sT4}, s{sPB}, 14\ns_lshl_b32 s{sT1}, s{sTB}, 9\ns_add_u32 s{sT4}, s{sT4}, s{sT1}\ns_add_u32 s{sT4}, s{sT4}, {WS_EBUF:#x}')
        self.wait(F_S[3], sleep=1)
        for c in range(7): a(f'ds_read_b64 {pr(20+2*c)}, v{vP8} offset:{(c//2)*XW + L_SXO + (c%2)*256}')
        a('s_waitcnt lgkmcnt(0)')
        for c in range(7):
            a(f's_cmp_lt_u32 s{sT3}, {c}\ns_cbranch_scc1 L_lh_done')
            a(f's_cmp_gt_u32 s{sT3}, {c}\ns_cselect_b64 exec, -1, s[{sM0}:{sM0+1}]')
            zstep(LC, LC, L16, 20 + 2 * c)
        zstep(vTG - 2, LC, L16, EE)
        a(f's_add_u32 s{sT0}, s{sT4}, {16*512 - 512}\nbuffer_store_dwordx4 v[{vTG-2}:{vTG+1}], v{vL16}, s[{SWS}:{SWS+3}], s{sT0} offen sc1')
        a('L_lh_done:\ns_mov_b64 exec, -1')
        self.stamp(7)
        def cdma(srd, base):
            a(f's_mul_i32 s{sT1}, s{sSW}, {16*1040}\ns_lshl_b32 s{sT2}, s{sCG}, 16\ns_lshl_b32 s{sT3}, s{sSW}, 14\ns_add_u32 s{sT2}, s{sT2}, s{sT3}')
            rowdma(srd, base, sT2, 16)
        if not opt('cmf', 1): cdma(SB, L_A1)
        for r in range(0, 16, 2): cmul(GR + r, GI + r, 1)
        if opt('cmf', 1): cdma(SB, L_A1)
        a(f's_mov_b32 s{sCNT}, 100000')
        a('L_eg:')
        for q in range(8): a(f'buffer_load_dwordx3 v[{24+4*q}:{26+4*q}], v{vEA}, s[{SWS}:{SWS+3}], s{sT4} offen offset:{512*q} sc1')
        a('s_waitcnt vmcnt(0)')
        a(f'v_cmp_ne_u32 vcc, s{sTAG}, v26')
        for q in range(1, 8): a(f'v_cmp_ne_u32 s[{sM1}:{sM1+1}], s{sTAG}, v{26+4*q}\ns_or_b64 vcc, vcc, s[{sM1}:{sM1+1}]')
        a(f's_cbranch_scc0 L_egd\ns_sleep {opt("esleep", 10)}\ns_sub_u32 s{sCNT}, s{sCNT}, 1\ns_cbranch_scc0 L_eg')
        a('L_egd:')
        self.sig(F_S[9])
        self.stamp(8)
        for q in range(1, 8): zstep(24, 24, L128, 24 + 4 * q)
        a(f'v_pk_mul_f32 {pr(T0)}, {pr(FF)}, {pr(24)} op_sel:[0,0] op_sel_hi:[0,1]')
        a(f'v_pk_fma_f32 {pr(20)}, {pr(FF)}, {pr(24)}, {pr(T0)} op_sel:[1,1,0] op_sel_hi:[1,0,1] neg_lo:[1,0,0]')
        a(f'v_mov_b32 v22, v20\nv_mov_b32 v23, v21\nv_permlane32_swap_b32 v20, v22\nv_permlane32_swap_b32 v21, v23\nv_pk_add_f32 {pr(20)}, {pr(20)}, {pr(22)}')
        IR, II = 24, 26
        cstep(IR, II, 20, 21, WW, LC, LC + 1)
        cstep(IR + 1, II + 1, IR, II, L8, ER, EI)
        cmul(IR, II, 0)
        pstep(GR, GI, IR, II, L1, GR, GI)
        for r in range(2, 16, 2): pstep(GR + r, GI + r, GR + r - 2, GI + r - 2, L1, GR + r, GI + r)
        for pl, Gx in ((0, GR), (1, GI)):
            for j in range(8):
                r0 = 4 * (j % 4) + j // 4
                a(f'v_cvt_pk_bf16_f32 v{28+8*pl+j}, v{Gx+r0}, v{Gx+r0+2}')
            a(f'ds_write_b128 v{vTW}, {q4(28+8*pl)} offset:{L_TBO+2048*pl}\nds_write_b128 v{vTW}, {q4(32+8*pl)} offset:{L_TBO+2048*pl+16}')
        for pl in range(2):
            for f in range(2):
                d = 44 + 8 * pl + 4 * f
                a(f'ds_read_b64_tr_b16 {pr(d)}, v{vTR} offset:{L_TBO+2048*pl+1024*f}\nds_read_b64_tr_b16 {pr(d+2)}, v{vTR} offset:{L_TBO+2048*pl+1024*f+256}')
        a(f's_lshl_b32 s{sT0}, s{sXB}, 1\ns_lshl_b32 s{sT1}, s{sPB}, 11\ns_add_u32 s{sT0}, s{sT0}, s{sT1}\ns_add_u32 s{sT0}, s{sT0}, {WS_HBUF:#x}\ns_add_u32 s{sT1}, s{sT0}, 0x8000')
        hs = []
        for pl in range(2):
            for f in range(2):
                d = 44 + 8 * pl + 4 * f
                hs += [f's_waitcnt lgkmcnt({6 - 4*pl - 2*f})', f'buffer_store_dwordx4 {q4(d)}, v{vL16}, s[{SWS}:{SWS+3}], s{sT0 if pl == 0 else sT1} offen offset:{1024*f}']
        self.xstore(hs, 'h')
        YK, YS, XF, HR = 128, 144, 184, 160
        a(f's_lshl_b32 s{sT0}, s{sTP}, 15\ns_lshl_b32 s{sT1}, s{sCT}, 6\ns_add_u32 s{sT0}, s{sT0}, s{sT1}')
        a(f'buffer_load_dwordx4 {q4(XF)}, v{vXS}, s[{SA}:{SA+3}], s{sT0} offen\nbuffer_load_dwordx4 {q4(XF+4)}, v{vXS}, s[{SA}:{SA+3}], s{sT0} offen offset:32')
        a(f's_lshr_b32 s{sT4}, s{sXB}, 4\ns_lshl_b32 s{sT3}, s{sPB}, 7\ns_add_u32 s{sT4}, s{sT4}, s{sT3}\ns_add_u32 s{sT4}, s{sT4}, {WS_HFLAG:#x}')
        self.wait(F_S[9], sleep=1)
        if opt('cearly', 1):
            for j in range(16): a(f'ds_read_b128 {q4(8*j)}, v{vCK} offset:{32*j}\nds_read_b128 {q4(8*j+4)}, v{vCS} offset:{32*j}')
            self.sig(F_S[6])
        a(f's_mov_b32 s{sM1}, -1\ns_mov_b32 s{sM1+1}, 0\ns_waitcnt vmcnt(2)')
        a(f's_mov_b64 exec, s[{sM1}:{sM1+1}]')
        self.xstore([f'buffer_store_dword v{vTG}, v{vOA}, s[{SWS}:{SWS+3}], s{sT4} offen'], 'h')
        a('s_mov_b64 exec, -1')
        self.stamp(9)
        if opt('stop', 0) == 9: self.end(); return
        LATE = opt('late', 1)
        if not LATE: cdma(SC, L_A2)
        if not opt('cearly', 1):
            for j in range(16): a(f'ds_read_b128 {q4(8*j)}, v{vCK} offset:{32*j}\nds_read_b128 {q4(8*j+4)}, v{vCS} offset:{32*j}')
            self.sig(F_S[6])
        a(f's_waitcnt vmcnt({1 if LATE else 17})')
        a(f'v_mfma_f32_32x32x16_bf16 {t16(YK)}, {q4(XF)}, {q4(DG)}, 0')
        a(f'v_mfma_f32_32x32x16_bf16 {t16(YK)}, {q4(XF+4)}, {q4(DG+4)}, {t16(YK)}')
        self.srd(SB, P(4), 512 * 1024)
        a(f's_lshl_b32 s{sT4}, s{sSW}, 17\ns_lshl_b32 s{sT1}, s{sCG}, 7\ns_add_u32 s{sT4}, s{sT4}, s{sT1}\ns_and_b32 s{sT1}, s{sCG}, 3\ns_lshl_b32 s{sT1}, s{sT1}, 16\ns_xor_b32 s{sT4}, s{sT4}, s{sT1}\ns_lshl_b32 s{sT1}, s{sSW}, 14\ns_add_u32 m0, s{sT1}, {L_A1}')
        self.wait(F_S[6], sleep=1)
        for m in range(16):
            a(f's_xor_b32 s{sT0}, s{sT4}, {8192*m:#x}\nbuffer_load_dwordx4 v{vWI}, s[{SB}:{SB+3}], s{sT0} offen lds\ns_add_u32 m0, m0, 1024')
        a(f's_lshl_b32 s{sT0}, s{sTP}, 11\ns_add_u32 s{sT0}, s{sT0}, {WS_HFLAG:#x}\ns_mov_b64 exec, 0xffff')
        a(f's_mov_b32 s{sCNT}, 100000')
        a('L_gph:')
        a(f'buffer_load_dword v{vT}, v{vHF}, s[{SWS}:{SWS+3}], s{sT0} offen sc1\ns_waitcnt vmcnt(0)\nv_cmp_ne_u32 vcc, s{sTAG}, v{vT}\ns_cbranch_vccz L_gdh')
        a(f's_sleep {opt("hsleep", 10)}\ns_sub_u32 s{sCNT}, s{sCNT}, 1\ns_cbranch_scc0 L_gph')
        a('L_gdh:\ns_mov_b64 exec, -1')
        self.sig(F_S[5])
        self.stamp(13)
        if opt('stop', 0) == 10: self.end(); return
        a(f's_lshl_b32 s{sT3}, s{sTP}, 16\ns_and_b32 s{sT0}, s{sSW}, 1\ns_lshl_b32 s{sT0}, s{sT0}, 14\ns_add_u32 s{sT3}, s{sT3}, s{sT0}\ns_add_u32 s{sT3}, s{sT3}, {WS_HBUF:#x}')
        if HR_: a(f's_and_b32 s{sT0}, s{sCG}, 3\ns_lshl_b32 s{sT0}, s{sT0}, 12\ns_add_u32 s{sT3}, s{sT3}, s{sT0}\ns_and_b32 s{sT0}, s{sCG}, 4\ns_lshl_b32 s{sT0}, s{sT0}, 13\ns_add_u32 s{sT3}, s{sT3}, s{sT0}')
        NR = 13
        vq = []
        def hload(j):
            go = lambda g: ((g % 4) << 12) | ((g // 4) << 15)
            if j % 4 == 0 and j > 0: a(f's_xor_b32 s{sT3}, s{sT3}, {go(j // 4) ^ go(j // 4 - 1):#x}')
            a(f'buffer_load_dwordx4 {q4(HR + 4*(j%NR))}, v{vL16}, s[{SWS}:{SWS+3}], s{sT3} offen offset:{1024*(j%4)} sc1')
            vq.append(('h', j))
        for j in range(NR - 1): hload(j)
        a(f's_setprio {opt("gprio4", 0)}')
        lq = []
        def cread(j, k):
            a(f'ds_read_b128 {q4(8*(j%16) + 4*k)}, v{vCS2 if k else vCK2} offset:{32*(j%16)}')
        if not LATE:
            a('s_setprio 3')
            self.wait(F_S[5], sleep=1)
            a(f's_setprio {opt("gprio4", 0)}')
        else:
            a(f's_mul_i32 s{sT1}, s{sSW}, {16*1040}\ns_lshl_b32 s{sT2}, s{sCG}, 16\ns_lshl_b32 s{sT4}, s{sSW}, 14\ns_add_u32 s{sT2}, s{sT2}, s{sT4}')
        FJ = opt('fj', 22); CS = opt('cs', 9); CW = opt('cw', 11)
        pend = [(jj, k) for jj in range(16, 32) for k in range(2)]
        SF = opt('sf', 1)
        for j in range(FJ + 1 if SF else 32):
            w = 's_waitcnt lgkmcnt(0)'
            if ('h', j) in vq:
                need = vq.index(('h', j))
                w = f's_waitcnt vmcnt({len(vq) - 1 - need}) lgkmcnt(0)'
                del vq[:need + 1]
            a(w)
            c = 8 * (j % 16); h = q4(HR + 4 * (j % NR))
            a(f'v_mfma_f32_32x32x16_bf16 {t16(YK)}, {h}, {q4(c)}, {t16(YK)}')
            a(f'v_mfma_f32_32x32x16_bf16 {t16(YS)}, {h}, {q4(c+4)}, {"0" if j == 0 else t16(YS)}')
            if not LATE:
                if j < 16: cread(16 + j, 0)
                if 15 <= j < min(31, FJ): cread(j + 1, 1)
                if j == FJ:
                    for jj in range(j + 1, 32): cread(jj, 1)
            else:
                if j < 4:
                    for m in range(4 * j, 4 * j + 4):
                        if m % 4 == 0: a(f's_add_u32 m0, s{sT1}, {L_A2 + m*1040}\ns_add_u32 s{sT0}, s{sT2}, {1024*m}')
                        else: a('s_add_u32 m0, m0, 16')
                        a(f'buffer_load_dwordx4 v{vCL}, s[{SC}:{SC+3}], s{sT0} offen offset:{1024*(m%4)} lds')
                        vq.append(('c', m))
                if j == CS:
                    need = vq.index(('c', 15))
                    a(f's_waitcnt vmcnt({len(vq) - 1 - need})'); del vq[:need + 1]
                    self.sig(F_WO)
                if j == CW:
                    a('s_setprio 3')
                    self.wait(F_WO, sleep=1)
                    a(f's_setprio {opt("gprio4", 0)}')
                if j >= CW:
                    n = len(pend) if j >= FJ else 2
                    for _ in range(n):
                        if pend and pend[0][0] - 16 <= j: cread(*pend.pop(0))
                    assert not pend or pend[0][0] > j + 1
            if j + NR - 1 < 32: hload(j + NR - 1)
            if 's4st' in OPT and j in (0, 4, 10, 16, 22, 31): self.stamp({0: 1, 4: 3, 10: 4, 16: 5, 22: 10, 31: 11}[j])
            HJ = opt('hj', 20)
            if opt('pad4', 0) and j < HJ: a(f's_nop {opt("pad4", 0) - 1}')
            if j == HJ - 1:
                a('s_setprio 3')
                self.wait(F_AX, sleep=opt('hjs', 4), va=vS); lq.clear()
                a(f's_setprio {opt("gprio5", 0)}')
        if SF:
            assert LATE and not pend and FJ + NR - 1 >= 31
            self.sig(F_S[7])
            a('s_waitcnt vmcnt(0) lgkmcnt(0)')
            for j in range(FJ + 1, 32): a(f'v_mfma_f32_32x32x16_bf16 {t16(YS)}, {q4(HR + 4*(j%NR))}, {q4(8*(j%16)+4)}, {t16(YS)}')
            ky = [f'v_mfma_f32_32x32x16_bf16 {t16(YK)}, {q4(HR + 4*(j%NR))}, {q4(8*(j%16))}, {t16(YK)}' for j in range(FJ + 1, 32)]
            a(ky.pop(0)); a(ky.pop(0))
        a('s_setprio 3')
        if not SF: self.sig(F_S[7])
        self.srd(SOUT, P(14), 2048 * 4096)
        a(f's_lshl_b32 s{sT2}, s{sTP}, 17\ns_lshl_b32 s{sT1}, s{sCT}, 7\ns_add_u32 s{sT2}, s{sT2}, s{sT1}')
        self.wait(F_S[7], sleep=1)
        for q in range(4):
            a(f'ds_write_b128 v{vYW}, {q4(YS+4*q)} offset:{1024*q}')
            if SF and ky and q < 3: a(ky.pop(0))
        self.sig(F_S[8])
        if SF:
            for x in ky: a(x)
            a('s_nop 0')
        if 's4st' in OPT: self.stamp(12)
        self.wait(F_S[8], sleep=1)
        for q in range(4): a(f'ds_read_b128 {q4(YS+4*q)}, v{vYR} offset:{1024*q}')
        a('s_waitcnt lgkmcnt(0)')
        fl = {0: '', 1: ' sc1', 2: ' nt', 3: ' sc0 sc1', 4: ' sc1 nt', 5: ' sc0 nt', 6: ' sc0 sc1 nt'}[opt('yfl', 2)]
        for r in range(0, 16, 2): a(f'v_pk_add_f32 {pr(YS+r)}, {pr(YK+r)}, {pr(YS+r)}')
        for r in range(16):
            a(f's_add_u32 s{sT0}, s{sT2}, {((r % 4) + 8 * (r // 4)) * 4096}')
            if 'noy' not in OPT: a(f'buffer_store_dword v{YS+r}, v{vOA}, s[{SOUT}:{SOUT+3}], s{sT0} offen offset:2048{fl}')
        self.stamp(2)
        self.end()

HEADER = open('cdna_kernels/' + NAME + '.s.ref').read().split('; Override launch')[0]

DOC = '''; ---------------------------------------------------------------------------------------------
; ---------------------------------------------------------------------------------------------
'''

def make(stamps=False):
    g = G(stamps)
    body = g.build()
    txt = HEADER + f'; @launch grid=(256,1,1) block=(512,1,1) lds={L_TOTAL}\n' + DOC
    txt += f'''.amdgcn_target "amdgcn-amd-amdhsa--gfx950"
.text
.globl {NAME}_kernel
.p2align 8
.type {NAME}_kernel,@function
{NAME}_kernel:
{body}.section .rodata,"a"
.p2align 6
.amdhsa_kernel {NAME}_kernel
  .amdhsa_next_free_vgpr 256
  .amdhsa_next_free_sgpr 102
  .amdhsa_accum_offset 256
  .amdhsa_group_segment_fixed_size 0
  .amdhsa_kernarg_size 136
  .amdhsa_user_sgpr_count 2
  .amdhsa_user_sgpr_kernarg_segment_ptr 1
  .amdhsa_system_sgpr_workgroup_id_x 1
.end_amdhsa_kernel
'''
    return txt, g.a.n_ins

if __name__ == '__main__':
    pos = [x for x in sys.argv[1:] if not x.startswith('--')]
    out = pos[0] if pos else 'cdna_kernels/' + NAME + '.s'
    txt, n = make(stamps='stamps' in OPT)
    open(out, 'w').write(txt)
    print('wrote', out, n, 'instructions')
```

```python
import sys, math, struct
from asm import Asm

NAME = 'concat_heads__grouped_kv_mqa__ssm_conv_s5__prompt'
OPT = dict((x[2:].split('=') + ['1'])[:2] for x in sys.argv if x.startswith('--'))
def opt(k, d): return int(OPT.get(k, d))
XC = opt('xco', 0) or opt('xch', 0) or opt('xcs', 0)
def f2u(x): return struct.unpack('<I', struct.pack('<f', x))[0]
def pr(r): return f'v[{r}:{r+1}]'
def q4(r): return f'v[{r}:{r+3}]'
def t16(r): return f'v[{r}:{r+15}]'

WS_KVFLAG = 0x8000
WS_KVIMG = 0x10000
WS_EBUF = 0x40000
WS_HFLAG = 0x80000
WS_OBUF = 0x100000
WS_HBUF = 0x400000
WS_DBG = 0x800000
WS_SIZE = 0x1000000
def FL(i): return 16 * i
F_L1, F_L2, F_L4, F_L6 = FL(0), FL(1), FL(2), FL(3)
F_QP, F_KVD = FL(4), FL(5)
F_A1, F_AX, F_AY = FL(6), FL(7), FL(8)
F_S = [FL(9 + i) for i in range(10)]
F_WO = FL(19)
F_OX = FL(20)
F_SL = [FL(22 + i) for i in range(3)]
F_KMAX, F_XC, F_KST = FL(25), FL(25) + 4, FL(25) + 8
F_TAG, F_QA = FL(26), FL(27)
L_QN = 512
L_ACCF = 1024
L_QF = 5120
L_ACCD = 13312
L_WKV = L_ACCD
L_A1 = 29696
L_A2 = 96256
L_MX = L_A2 + 66560
L_TOTAL = 163840
XW = 16640
L_SXO = 1024
L_TBO = 2048

sWV, sRB, sCG, sTB, sPB, sTAG = 3, 4, 5, 6, 7, 8
sT0, sT1, sT2, sT3, sT4, sT5 = 9, 10, 11, 12, 13, 14
sCNT = 15
P = lambda i: 16 + 2 * i
SA, SB, SC, SWS, SOUT = 52, 56, 60, 64, 68
sSW = 72
sPH, sTJ, sOW = 73, 74, 75
sM0, sM1 = 76, 78
sQH = 81
sOB, sPRE = 101, 81
sXC = 100
sST = 82
SPIN = 400000
vT, vLN, vL16, vEP, vF, vS, vONE = 249, 250, 251, 252, 253, 254, 255

class G:
    def __init__(self, stamps=False):
        self.a = Asm(); self.stamps = stamps; self.cyc = True
    def srd(self, d, p, size):
        self.a(f's_mov_b32 s{d}, s{p}\ns_mov_b32 s{d+1}, s{p+1}\ns_mov_b32 s{d+2}, {size:#x}\ns_mov_b32 s{d+3}, 0x20000')
    def stamp(self, i):
        if self.stamps:
            self.a(f's_memrealtime s[98:99]\ns_waitcnt lgkmcnt(0)\ns_mov_b32 s{sST+i}, s98')
            m = {5: 8, 6: 9}
            if self.cyc and i in m:
                self.a(f's_memtime s[98:99]\ns_waitcnt lgkmcnt(0)\ns_mov_b32 s{sST+m[i]}, s98')
    def end(self):
        a = self.a
        if self.stamps:
            a('s_waitcnt vmcnt(0)')
            self.stamp(15)
            if 'diag' in OPT and self.cyc != ('diagsv' in OPT):
                da, db = [int(x) for x in OPT['diag'].split(',')]
                L = a.label('DG')
                a(f's_sub_u32 s{sT1}, s{sST+db}, s{sST+da}')
                if 'diagxc' in OPT: a(f's_xor_b32 s{sT1}, s{sXC}, {opt("diagxc", 0) - 1}\ns_mul_i32 s{sT1}, s{sT1}, 1000')
                if 'diagcyc' in OPT: a(f's_lshr_b32 s{sT1}, s{sT1}, 1')
                else: a(f's_lshl_b32 s{sT1}, s{sT1}, 3')
                a(f's_min_u32 s{sT1}, s{sT1}, 100000\ns_add_u32 s{sT1}, s{sT1}, s{sST+15}')
                a(f'{L}:\ns_sleep 4\ns_memrealtime s[98:99]\ns_waitcnt lgkmcnt(0)\ns_cmp_lt_u32 s98, s{sT1}\ns_cbranch_scc1 {L}')
            a(f's_lshl_b32 s{sT0}, s2, 3\ns_add_u32 s{sT0}, s{sT0}, s{sWV}\ns_lshl_b32 s{sT0}, s{sT0}, 6\ns_add_u32 s{sT0}, s{sT0}, {WS_DBG:#x}')
            a('s_mov_b64 exec, 1')
            for i in range(16):
                a(f'v_mov_b32 v{vT}, s{sST+i}\nbuffer_store_dword v{vT}, off, s[{SWS}:{SWS+3}], s{sT0} offset:{4*i}')
            a('s_waitcnt vmcnt(0)')
        a('s_endpgm')
    def sig(self, off, va=vS):
        self.a(f'ds_write_b32 v{va}, v{vONE} offset:{off}')
    def wait(self, off, sleep=1, va=vF):
        a = self.a; L = a.label('W'); D = a.label('WD')
        a(f's_mov_b32 s{sCNT}, {SPIN}')
        a(f'{L}:')
        a(f'ds_read_b32 v{vT}, v{va} offset:{off}\ns_waitcnt lgkmcnt(0)\nv_cmp_eq_u32 vcc, 0, v{vT}\ns_cbranch_vccz {D}')
        a((f's_sleep {sleep}\n' if sleep else '') + f's_sub_u32 s{sCNT}, s{sCNT}, 1\ns_cbranch_scc0 {L}')
        a(f'{D}:')
    def xstore(self, lines, kind='o'):
        a = self.a
        if not opt('xc' + kind, 0):
            for x in lines: a(x + (' sc1' if x.startswith('buffer') else ''))
            return
        L = a.label('X'); D = a.label('XD')
        a(f's_cmp_eq_u32 s{sXC}, 1\ns_cbranch_scc0 {L}')
        for x in lines: a(x + (' nt' if x.startswith('buffer') and opt('xnt', 0) else ''))
        a(f's_branch {D}')
        a(f'{L}:')
        for x in lines: a(x + (' sc1' if x.startswith('buffer') else ''))
        a(f'{D}:')
    def get_tag(self):
        self.a(f'v_readfirstlane_b32 s{sTAG}, v{vEP}\ns_mul_i32 s{sTAG}, s{sTAG}, 0x9E3779B1\ns_add_u32 s{sTAG}, s{sTAG}, 0x7F4A7C15')

    def build(self):
        a = self.a
        a('s_cmp_ge_u32 s2, 256\ns_cbranch_scc1 L_exit')
        a('s_load_dwordx16 s[16:31], s[0:1], 0\ns_load_dwordx16 s[32:47], s[0:1], 64\ns_load_dwordx2 s[48:49], s[0:1], 128')
        if self.stamps:
            for i in range(16): a(f's_mov_b32 s{sST+i}, 0')
        a(f'v_and_b32 v{vLN}, 63, v0\nv_lshrrev_b32 v{vT}, 6, v0\nv_lshlrev_b32 v{vL16}, 4, v{vLN}\nv_readfirstlane_b32 s{sWV}, v{vT}')
        if not opt('ent', 0): self.code_prefetch()
        a(f's_and_b32 s{sT0}, s2, 7\ns_lshr_b32 s{sT1}, s2, 3')
        a(f's_lshr_b32 s{sT2}, s{sT1}, 3\ns_lshl2_add_u32 s{sRB}, s{sT0}, s{sT2}\ns_and_b32 s{sCG}, s{sT1}, 7')
        a(f's_lshr_b32 s{sTB}, s{sRB}, 1\ns_and_b32 s{sPB}, s{sT1}, 15\ns_and_b32 s{sSW}, s{sWV}, 3')
        a(f's_cmp_ge_u32 s{sWV}, 4\ns_cbranch_scc1 L_service')
        a(f's_lshr_b32 s{sT5}, s{sCG}, 1\ns_lshl_b32 s{sT4}, s{sRB}, 16')
        def xa_rows(g):
            if g == 0: a(f's_lshl2_add_u32 s{sT0}, s{sT5}, s{sSW}\ns_lshl_b32 s{sT0}, s{sT0}, 2')
            else: a(f's_add_u32 s{sT0}, s{sT5}, {g}\ns_and_b32 s{sT0}, s{sT0}, 3\ns_lshl2_add_u32 s{sT0}, s{sT0}, s{sSW}\ns_lshl_b32 s{sT0}, s{sT0}, 2')
            a(f's_mul_i32 s{sT1}, s{sT0}, 1040\ns_add_u32 m0, s{sT1}, {L_A1}\ns_lshl_b32 s{sT0}, s{sT0}, 10\ns_add_u32 s{sT0}, s{sT0}, s{sT4}')
            if g == 0:
                a('s_waitcnt lgkmcnt(0)')
                self.stamp(0)
                self.srd(SA, P(0), 2048 * 1024)
            for n in range(4):
                a(f'buffer_load_dwordx4 v{vL16}, s[{SA}:{SA+3}], s{sT0} offen offset:{1024*n} lds')
                if n < 3: a('s_add_u32 m0, m0, 16')
        xa_rows(0)
        a(f's_bitcmp1_b32 s{sCG}, 0\ns_cselect_b32 s{SB}, s{P(3)}, s{P(2)}\ns_cselect_b32 s{SB+1}, s{P(3)+1}, s{P(2)+1}\ns_mov_b32 s{SB+2}, 0x4000\ns_mov_b32 s{SB+3}, 0x20000')
        a(f's_lshl_b32 s{sT0}, s{sWV}, 12\ns_add_u32 m0, s{sT0}, {L_WKV}')
        a(f'v_lshrrev_b32 v2, 1, v{vL16}\nv_and_b32 v2, 128, v2\nv_xor_b32 v2, v2, v{vL16}')
        for n in range(4):
            a(f'buffer_load_dwordx4 v2, s[{SB}:{SB+3}], s{sT0} offen offset:{1024*n} lds')
        self.srd(SC, P(1), 512 * 1024)
        NPQ = 0
        if opt('pfq', 0):
            G = opt('pfg', 6)
            a(f'v_lshlrev_b32 v3, {G}, v{vLN}\ns_lshr_b32 s{sT0}, s2, 3\ns_lshl_b32 s{sT0}, s{sT0}, 2\ns_add_u32 s{sT0}, s{sT0}, s{sSW}\ns_lshl_b32 s{sT0}, s{sT0}, 12')
            if G == 7: a(f's_mov_b32 s{sM0}, -1\ns_mov_b32 s{sM0+1}, 0\ns_mov_b64 exec, s[{sM0}:{sM0+1}]')
            a(f'buffer_load_dword v4, v3, s[{SC}:{SC+3}], s{sT0} offen'); NPQ = 1
            if opt('pfq', 0) > 1:
                for p in (8, 9):
                    self.srd(SOUT, P(p), 512 * 1024)
                    a(f'buffer_load_dword v4, v3, s[{SOUT}:{SOUT+3}], s{sT0} offen'); NPQ += 1
                self.srd(SOUT, P(5), 2048 * 1024)
                a(f's_lshr_b32 s{sT0}, s{sT0}, 1\ns_and_b32 s{sT1}, s2, 7\ns_lshl_b32 s{sT1}, s{sT1}, 18\ns_add_u32 s{sT0}, s{sT0}, s{sT1}\nv_lshrrev_b32 v3, 1, v3')
                a(f'buffer_load_dword v4, v3, s[{SOUT}:{SOUT+3}], s{sT0} offen'); NPQ += 1
            a('s_mov_b64 exec, -1')
        self.wimg_lane_addr(0, 1)
        a(f's_lshl_b32 s{sT3}, s{sSW}, 13\ns_lshl_b32 s{sT1}, s{sCG}, 7\ns_add_u32 s{sT3}, s{sT3}, s{sT1}\ns_and_b32 s{sT1}, s{sRB}, 3\ns_lshl_b32 s{sT1}, s{sT1}, 17\ns_add_u32 s{sT3}, s{sT3}, s{sT1}')
        a(f's_lshl_b32 s{sT2}, s{sSW}, 10')
        def wq_rows(c):
            for n in range(4 * c, 4 * c + 4):
                a(f's_add_u32 m0, s{sT2}, {L_A2 + 4096*n}\ns_xor_b32 s{sT0}, s{sT3}, {0x8000*n:#x}')
                a(f'buffer_load_dwordx4 v0, s[{SC}:{SC+3}], s{sT0} offen lds')
        FO = opt('fo', 1)
        if FO == 0: wq_rows(0)
        else: xa_rows(1)
        self.common_regs()
        self.srd(SWS, P(16), WS_SIZE)
        a('s_barrier')
        self.stamp(1)
        a(f's_waitcnt vmcnt({4 + NPQ})')
        self.sig(F_L1)
        if FO == 0: xa_rows(1)
        xa_rows(2); xa_rows(3)
        if FO == 1: wq_rows(0)
        if FO == 0: wq_rows(1)
        a('s_waitcnt vmcnt(4)')
        self.sig(F_L2)
        if FO == 1: wq_rows(1)
        wq_rows(2); wq_rows(3)
        self.stamp(2)
        a('s_waitcnt vmcnt(8)')
        self.sig(F_L4)
        if opt('lay', 1):
            a('s_branch L_attn')
            self.service()
            self.cyc = True
            a('L_attn:')
            self.attention()
        else:
            self.attention()
            self.service()
        a('L_exit:\ns_endpgm')
        return a.finish()

    def code_prefetch(self):
        a = self.a
        if opt('cpf', 1):
            a(f's_cmp_lg_u32 s{sWV}, {opt("cpw", 5)}\ns_cbranch_scc1 L_nocpf')
            a(f's_getpc_b64 s[{sM0}:{sM0+1}]')
            a('L_pc:')
            a(f's_lshr_b32 s{sT0}, s2, 3\ns_mul_i32 s{sT0}, s{sT0}, 1536\ns_min_u32 s{sT0}, s{sT0}, L_exit-{NAME}_kernel-1536\ns_sub_u32 s{sM0}, s{sM0}, L_pc-{NAME}_kernel\ns_subb_u32 s{sM0+1}, s{sM0+1}, 0')
            a(f'v_min_u32 v2, 23, v{vLN}\nv_lshlrev_b32 v2, 6, v2\nv_add_u32 v2, s{sT0}, v2\nv_mov_b32 v3, s{sM0+1}\nv_add_co_u32 v2, vcc, s{sM0}, v2\nv_addc_co_u32 v3, vcc, 0, v3, vcc')
            a(f's_mov_b64 exec, 0xffffff\nglobal_load_dword v{vEP}, v[2:3], off\ns_mov_b64 exec, -1')
            a('L_nocpf:')

    def common_regs(self):
        self.a(f'v_and_b32 v{vF}, 3, v{vLN}\nv_lshlrev_b32 v{vF}, 2, v{vF}\ns_lshl_b32 s{sT0}, s{sSW}, 2\nv_mov_b32 v{vS}, s{sT0}\nv_mov_b32 v{vONE}, 1')

    def wimg_lane_addr(self, vd, vt):
        a = self.a
        a(f'v_lshrrev_b32 v{vt}, 2, v{vLN}\nv_and_b32 v{vt}, 4, v{vt}\nv_and_b32 v{vd}, 7, v{vLN}\nv_xor_b32 v{vd}, v{vd}, v{vt}\nv_lshlrev_b32 v{vd}, 4, v{vd}')
        a(f'v_lshrrev_b32 v{vt}, 3, v{vLN}\nv_lshl_add_u32 v{vd}, v{vt}, 10, v{vd}')

    def tr_parts(self, c0, r, wpart):
        a = self.a
        a(f'v_bfe_u32 v{c0}, v{vLN}, 4, 1\nv_lshlrev_b32 v{c0}, 5, v{c0}\nv_and_b32 v{r}, 3, v{vLN}\nv_lshl_add_u32 v{c0}, v{r}, 3, v{c0}\nv_bfe_u32 v{r}, v{vLN}, 2, 2')
        a(f's_and_b32 s{sT0}, s{sSW}, 1\nv_lshrrev_b32 v{wpart}, 1, v{r}\nv_xor_b32 v{wpart}, s{sT0}, v{wpart}\nv_lshl_add_u32 v{wpart}, v{wpart}, 6, v{c0}\nv_lshl_add_u32 v{wpart}, v{r}, 7, v{wpart}')

    def prefetch(self, ptrs, vd):
        a = self.a
        a(f's_lshr_b32 s{sT0}, s2, 3\ns_lshl_b32 s{sT0}, s{sT0}, 2\ns_add_u32 s{sT0}, s{sT0}, s{sSW}\ns_lshl_b32 s{sT0}, s{sT0}, 12')
        for p in ptrs:
            self.srd(SOUT, P(p), 512 * 1024)
            a(f'buffer_load_dword v{vEP}, v{vd}, s[{SOUT}:{SOUT+3}], s{sT0} offen')

    def attention(self):
        a = self.a
        K, V, S0, O, Q = 0, 64, 192, 224, 240
        vIDX, vA16, vA8, vQA, vL8 = 244, 245, 246, 247, 248
        R = dict(K=K, V=V, S0=S0, O=O, Q=Q, vIDX=vIDX, vA16=vA16, vA8=vA8, vQA=vQA, vL8=vL8, vM=vEP)
        a(f'v_and_b32 v{Q}, 11, v{vLN}\nv_cmp_eq_u32 vcc, 0, v{Q}\nv_mov_b32 v{Q}, 0x3f803f80\nv_cndmask_b32 v{vT}, 0, v{Q}, vcc')
        MK = opt('mask', 0)
        self.masked = lambda i: (MK >> i) & 1
        for i in range(16):
            for r in range(0 if self.masked(i) else 4, 8): a(f'v_mov_b32 v{V+8*i+r}, v{vT}')
        a(f'v_lshlrev_b32 v{vL8}, 3, v{vLN}\nv_mov_b32 v{vIDX}, 0xdddd')
        def init_state(ph0):
            for i in range(16): a(f'v_mov_b32 v{O+i}, 0')
            a(f's_mov_b32 s{sTJ}, s{sSW}\ns_mov_b32 s{sPH}, {ph0}')
            a(f's_lshl_b32 s{sT0}, s{sTJ}, 10\nv_add_u32 v{vQA}, s{sT0}, v{vL16}')
            a(f's_lshl_b32 s{sT0}, s{sTJ}, 11\nv_add_u32 v{vA16}, s{sT0}, v{vL16}\ns_lshl_b32 s{sT0}, s{sTJ}, 9\nv_add_u32 v{vA8}, s{sT0}, v{vL8}')
        init_state(0)
        FS = opt('fs', 6)
        a(f'v_lshlrev_b32 v{S0+4}, {FS}, v{vLN}\nv_mov_b32 v{S0+3}, 0')
        if XC: a(f's_getreg_b32 s{sXC}, hwreg(HW_REG_XCC_ID)')
        a(f's_lshl_b32 s{sT3}, s{sWV}, {FS + 6}\ns_add_u32 s{sT3}, s{sT3}, {WS_KVFLAG:#x}')
        a(f's_lshl_b32 s{sT4}, s{sWV}, 15\ns_add_u32 s{sT4}, s{sT4}, {WS_KVIMG:#x}\ns_lshl_b32 s{sT0}, s{sCG}, 12\ns_add_u32 s{sT4}, s{sT4}, s{sT0}')
        a(f's_lshl_b32 s{sOW}, s{sRB}, 16\ns_lshl_b32 s{sT0}, s{sCG}, 12\ns_add_u32 s{sOW}, s{sOW}, s{sT0}\ns_add_u32 s{sOW}, s{sOW}, {WS_OBUF:#x}')
        a(f's_add_u32 s{sT0}, s{sSW}, 1\ns_and_b32 s{sT0}, s{sT0}, 3\ns_lshl_b32 s{sT0}, s{sT0}, 10\ns_add_u32 s{sOW}, s{sOW}, s{sT0}')
        a(f's_mov_b32 s{sM0}, 0xffff\ns_mov_b32 s{sM0+1}, 0xffff')
        a(f's_lshl_b32 s{sOB}, s{sRB}, 16\ns_lshr_b32 s{sT0}, s{sSW}, 1\ns_lshl_b32 s{sT0}, s{sT0}, 2\ns_and_b32 s{sT2}, s{sCG}, 3\ns_add_u32 s{sT0}, s{sT0}, s{sT2}\ns_lshl_b32 s{sT0}, s{sT0}, 12')
        a(f's_add_u32 s{sOB}, s{sOB}, s{sT0}\ns_add_u32 s{sOB}, s{sOB}, {WS_OBUF:#x}\ns_mov_b32 s{sPRE}, 0')
        self.tr_parts(0, 1, 2)
        a(f'v_lshrrev_b32 v1, 5, v{vLN}\nv_lshl_add_u32 v2, v1, 9, v2\ns_lshr_b32 s{sT0}, s{sSW}, 1\ns_lshl_b32 s{sT0}, s{sT0}, 15\ns_add_u32 s{sT0}, s{sT0}, {L_A1}\nv_add_u32 v{vLN}, s{sT0}, v2')
        a(f's_waitcnt vmcnt(0)')
        self.sig(F_L6)
        self.stamp(3)
        if opt('trig', 0) == 1:
            self.wait(F_KVD, sleep=1); self.wait(F_L6, sleep=1)
        else:
            self.wait(F_QA if opt('pw', 0) == 0 else F_KVD, sleep=1)
        a(f'ds_read_b32 v{vEP}, v{vF} offset:{F_TAG}\ns_waitcnt lgkmcnt(0)\nv_readfirstlane_b32 s{sTAG}, v{vEP}')
        if opt('pf1', 0):
            a(f's_lshr_b32 s{sT0}, s2, 3\ns_lshl_b32 s{sT0}, s{sT0}, 2\ns_add_u32 s{sT0}, s{sT0}, s{sSW}\ns_lshl_b32 s{sT0}, s{sT0}, 12')
            for k, p in enumerate((8, 9)):
                self.srd(SB, P(p), 512 * 1024)
                for n in range(4): a(f'buffer_load_dwordx4 {q4(4 + 16*k + 4*n)}, v{vL16}, s[{SB}:{SB+3}], s{sT0} offen offset:{1024*n}')
            self.srd(SB, P(5), 2048 * 1024)
            a(f's_lshr_b32 s{sT0}, s{sT0}, 1\ns_and_b32 s{sT1}, s2, 7\ns_lshl_b32 s{sT1}, s{sT1}, 18\ns_add_u32 s{sT0}, s{sT0}, s{sT1}')
            for n in range(2): a(f'buffer_load_dwordx4 {q4(36 + 4*n)}, v{vL16}, s[{SB}:{SB+3}], s{sT0} offen offset:{1024*n}')
        if opt('pw', 0): a(f's_sleep {opt("pw", 0)}')
        a(f's_mov_b32 s{sCNT}, 100000')
        KW = opt('kw', 0)
        a(f's_lshr_b32 s{sT0}, s2, 3\ns_lshl_b32 s{sT0}, s{sT0}, 2\ns_add_u32 s{sT0}, s{sT0}, s{sSW}\ns_lshl_b32 s{sT0}, s{sT0}, 10\ns_add_u32 s{sT0}, s{sT0}, {WS_KVIMG:#x}')
        kwl = f'buffer_load_dwordx4 {q4(S0+8)}, v{vL16}, s[{SWS}:{SWS+3}], s{sT0} offen sc1'
        if KW == 2: a(kwl)
        a('L_kvp:')
        a(f'buffer_load_dwordx3 v[{S0}:{S0+2}], v{S0+4}, s[{SWS}:{SWS+3}], s{sT3} offen sc1')
        if KW == 1: a(kwl)
        a(f's_waitcnt vmcnt({1 if KW == 1 else 0})\nv_cmp_ne_u32 vcc, s{sTAG}, v{S0}\ns_cbranch_vccz L_kvpd')
        if opt('pm', 1): a('s_mov_b64 exec, vcc')
        a((f's_sleep {opt("kvsleep", 1)}\n' if opt("kvsleep", 1) else '') + f's_sub_u32 s{sCNT}, s{sCNT}, 1\ns_cbranch_scc0 L_kvp')
        a('L_kvpd:\ns_mov_b64 exec, -1')
        if self.stamps: a(f's_mov_b32 s{sST+13}, s{sCNT}')
        self.stamp(4)
        for i in range(opt('nup', 7)): a(self.kvload(R, i))
        a(f'ds_max_u32 v{S0+3}, v{S0+1} offset:{F_KMAX}')
        if XC:
            a(f's_lshr_b32 s{sT0}, s{sRB}, 3\ns_cmp_eq_u32 s{sT0}, s{sSW}\ns_cbranch_scc0 L_noxc')
            a(f'v_cmp_ne_u32 vcc, s{sXC}, v{S0+2}\ns_bitcmp1_b32 s{sRB}, 2\ns_cselect_b32 s{sT0}, vcc_hi, vcc_lo\ns_cmp_eq_u32 s{sT0}, 0\ns_cselect_b32 s{sT0}, 1, 0')
            a(f'v_mov_b32 v{S0+2}, s{sT0}\nds_write_b32 v{S0+3}, v{S0+2} offset:{F_XC}')
            a('L_noxc:')
        self.wait(F_QP, sleep=0)
        a(f'ds_read_b128 {q4(Q)}, v{vQA} offset:{L_QF}')
        self.stamp(5)
        self.attn_fast(R)
        a('L_attn_epi:')
        if 'phs' in OPT:
            for p in range(8): a(f's_mov_b32 s{sST+2*p}, s{16+4*p}\ns_mov_b32 s{sST+2*p+1}, s{17+4*p}')
            a(f's_lshl_b32 s{sT0}, s2, 3\ns_add_u32 s{sT0}, s{sT0}, s{sWV}\ns_lshl_b32 s{sT0}, s{sT0}, 6\ns_add_u32 s{sT0}, s{sT0}, {WS_DBG + 0x100000:#x}')
            a('s_mov_b64 exec, 1')
            for i in range(16):
                a(f'v_mov_b32 v{vT}, s{sST+i}\nbuffer_store_dword v{vT}, off, s[{SWS}:{SWS+3}], s{sT0} offset:{4*i}')
            a('s_waitcnt vmcnt(0)\ns_endpgm')
        self.oproj_pre()
        self.stamp(6)
        self.publish(R, 0x8000, F_AY)
        if 'nosvc' in OPT or 'stop' in OPT: self.end()
        else: self.oproj()
        a('L_check6:')
        self.wait(F_S[9], sleep=1)
        a('s_branch L_checked6')
        a('L_check1:')
        self.wait(F_S[0], sleep=1)
        a(f'v_cmp_ne_u32 vcc, 1, v{vT}\ns_cbranch_vccz L_checked1')
        self.wait(F_S[9], sleep=1)
        if XC: a(f's_mov_b32 s{sXC}, 0')
        vL4, vW = vA8, vA16
        self.sig(F_SL[0]); self.wait(F_SL[0])
        a(f'v_lshrrev_b32 v{vL4}, 2, v{vL16}\ns_mov_b32 s{sT2}, 0\ns_lshl_b32 s{sT3}, s{sWV}, 11\nv_add_u32 v{vW}, s{sT3}, v{vL4}')
        a('L_slow_pre:')
        a(f's_lshl_b32 s{sT0}, s{sT2}, 10\nv_add_u32 v{vT}, s{sT0}, v{vL16}\nds_read_b128 {q4(Q)}, v{vT} offset:{L_QF}\ns_waitcnt lgkmcnt(0)')
        a(f'v_mov_b32 v{S0+20}, 0xff800000')
        for i in range(16):
            a(f'v_mfma_f32_32x32x16_bf16 {t16(S0)}, {q4(K+4*i)}, {q4(Q)}, 0')
            for r in range(0, 16, 2): a(f'v_max3_f32 v{S0+20}, v{S0+r}, v{S0+r+1}, v{S0+20}')
        a(f'v_mov_b32 v{S0+21}, v{S0+20}\nv_permlane32_swap_b32 v{S0+20}, v{S0+21}\nv_max_f32 v{S0+20}, v{S0+20}, v{S0+21}')
        a(f'ds_write_b32 v{vW}, v{S0+20} offset:{L_ACCD}\nv_add_u32 v{vW}, 256, v{vW}')
        a(f's_add_u32 s{sT2}, s{sT2}, 1\ns_cmp_lt_u32 s{sT2}, 8\ns_cbranch_scc1 L_slow_pre')
        self.sig(F_SL[1]); self.wait(F_SL[1])
        a(f's_lshl_b32 s{sT0}, s{sWV}, 8\nv_add_u32 v{vW}, s{sT0}, v{vL4}')
        for t in range(2):
            for w in range(4): a(f'ds_read_b32 v{S0+4*t+w}, v{vW} offset:{L_ACCD + 2048*w + 1024*t}')
        a(f'v_and_b32 v{vW}, 0x7c, v{vL4}\ns_lshl_b32 s{sT0}, s{sWV}, 7\ns_add_u32 s{sT0}, s{sT0}, {L_MX}\nv_add_u32 v{vW}, s{sT0}, v{vW}')
        a('s_waitcnt lgkmcnt(0)')
        for t in range(2):
            b = S0 + 4 * t
            a(f'v_max3_f32 v{b}, v{b}, v{b+1}, v{b+2}\nv_max_f32 v{b}, v{b}, v{b+3}\nds_write_b32 v{vW}, v{b} offset:{512*t}')
        init_state(16)
        a(f'v_mov_b32 v{S0}, 0\nv_mov_b32 v{S0+1}, 17\nds_write_b64 v{vA8}, {pr(S0)} offset:{L_ACCF+2048}')
        a(f'ds_write_b128 v{vA16}, {q4(O)} offset:{L_ACCD+8192}\nds_write_b128 v{vA16}, {q4(O)} offset:{L_ACCD+8192+1024}')
        self.sig(F_SL[2]); self.wait(F_SL[2])
        a(f'ds_read_b128 {q4(Q)}, v{vQA} offset:{L_QF}')
        self.attn_loop(R, True)
        a('s_branch L_attn_epi')

    QD = [r for i in range(16) for r in (4 * i, 64 + 8 * i, 68 + 8 * i)]
    def WF(self, st): return self.QD[st]
    def OF(self, q, n): return self.QD[16 + 4 * ((q + 3) % 4) + 16 * (q // 4) + n]
    def wo_read(self, st, vWO): return f'ds_read_b64_tr_b16 {pr(self.WF(st))}, v{vWO} offset:{2048*st}\nds_read_b64_tr_b16 {pr(self.WF(st)+2)}, v{vWO} offset:{2048*st+1024}'
    def o_load(self, q):
        t = f's_xor_b32 s{sT0}, s{sOB}, {4096*(q%4) + 0x8000*(q//4):#x}'
        for n in range(4): t += f'\nbuffer_load_dwordx4 {q4(self.OF(q, n))}, v{vL16}, s[{SWS}:{SWS+3}], s{sT0} offen offset:{1024*n} sc1'
        return t

    def kvload(self, R, i):
        K, V = R['K'], R['V']
        t = ''
        if i % 2 == 0 and i > 0: t += f's_xor_b32 s{sT4}, s{sT4}, {((i // 2) ^ (i // 2 - 1)) << 12:#x}\n'
        o = (i % 2) * 2048
        t += f'buffer_load_dwordx4 {q4(K+4*i)}, v{vL16}, s[{SWS}:{SWS+3}], s{sT4} offen offset:{o} sc1\n'
        if self.masked(i):
            t += f's_mov_b64 exec, s[{sM0}:{sM0+1}]\nbuffer_load_dwordx4 {q4(V+8*i)}, v{vL16}, s[{SWS}:{SWS+3}], s{sT4} offen offset:{o+1024} sc1\n'
            t += f'buffer_load_dwordx4 {q4(V+8*i+4)}, v{vL16}, s[{SWS}:{SWS+3}], s{sT4} offen offset:{o+1024+256} sc1\ns_mov_b64 exec, -1'
        else:
            t += f'buffer_load_dwordx4 {q4(V+8*i)}, v{vL16}, s[{SWS}:{SWS+3}], s{sT4} offen offset:{o+1024} sc1'
        return t

    def publish(self, R, off, flag):
        a = self.a; O = R['O']
        a(f'v_rcp_f32 v{O+8}, v{O+8}\ns_add_u32 s{sT0}, s{sOW}, {off}')
        for r in range(0, 8, 2): a(f'v_pk_mul_f32 {pr(O+r)}, {pr(O+8)}, {pr(O+r)} op_sel:[0,0] op_sel_hi:[0,1]')
        for r in range(4): a(f'v_cvt_pk_bf16_f32 v{O+r}, v{O+2*r}, v{O+2*r+1}')
        self.xstore([f'buffer_store_dwordx4 {q4(O)}, v{vL16}, s[{SWS}:{SWS+3}], s{sT0} offen'])
        if off: self.sig(flag)

    def attn_fast(self, R):
        a = self.a
        K, V, S0, O, Q = R['K'], R['V'], R['S0'], R['O'], R['Q']
        vIDX, vA16, vA8, vQA, vL8 = R['vIDX'], R['vA16'], R['vA8'], R['vQA'], R['vL8']
        NUP = opt('nup', 7)
        sK = [[50, 51, 80], [sT1, sT2, sT3], [sT5, sPH, sTJ]]
        for k in range(1, 4):
            a(f's_sub_u32 s{sT0}, s{sSW}, {k}\ns_and_b32 s{sT0}, s{sT0}, 3\ns_lshl_b32 s{sK[k-1][0]}, s{sT0}, 9\ns_lshl_b32 s{sK[k-1][1]}, s{sT0}, 10\ns_lshl_b32 s{sK[k-1][2]}, s{sT0}, 11')
        def Sb(i): return S0 + 16 * (i % 2)
        def E(i, r): return f'v_exp_f32 v{Sb(i)+r}, v{Sb(i)+r}'
        CM = '-4.0' if opt('cm', 1) else '0'
        PP = opt('pp', 15)
        def QK(i): return f'v_mfma_f32_32x32x16_bf16 {t16(Sb(i))}, {q4(K+4*(i%16))}, {q4(Q)}, {CM}'
        def PV(i, h): return f'v_smfmac_f32_32x32x32_bf16 {t16(O)}, {q4(V+8*(i%16)+4*h)}, v[{Sb(i)+8*h}:{Sb(i)+8*h+7}], v{vIDX}'
        def rd(st): return [f'ds_read_b64 {pr(O+8)}, v{vA8} offset:{L_ACCF+2048*st}', f'ds_read_b128 {q4(O)}, v{vA16} offset:{L_ACCD+8192*st}', f'ds_read_b128 {q4(O+4)}, v{vA16} offset:{L_ACCD+8192*st+1024}']
        def wr(st): return [f'ds_write_b128 v{vA16}, {q4(O)} offset:{L_ACCD+8192*st}', f'ds_write_b128 v{vA16}, {q4(O+4)} offset:{L_ACCD+8192*st+1024}', f'ds_write_b64 v{vA8}, {pr(O+8)} offset:{L_ACCF+2048*st}']
        nl = lambda i: 3 if self.masked(i) else 2
        cov = [-1]
        def plain(p, i):
            e = [E(i, r) for r in range(16)]
            w = []; sw = []; ld = []
            if p == 0:
                KR = opt('kr', 3)
                issued = sum(nl(t) for t in range(min(16, KR * i + NUP)))
                VW = opt('vw', 4)
                if i > cov[0]:
                    last = i if i < opt('vw1', 2) else min(15, i + VW - 1)
                    cov[0] = last
                    needed = sum(nl(t) for t in range(last + 1)) + (1 if last < 15 else 0)
                    assert issued >= needed
                    w = [f's_waitcnt vmcnt({issued - needed})']
                if not self.masked(i): sw = [f'v_permlane16_swap_b32 v{V+8*i+r}, v{V+8*i+4+r}' for r in range(4)]
                for t in range(KR * i + NUP, min(16, KR * (i + 1) + NUP)):
                    ld += [self.kvload(R, t)]
                    if t == 15: ld += [f'ds_write_b32 v{vS}, v{vONE} offset:{F_A1}']
            qk = [QK(i + 1)]
            if i == 15:
                if p < 7: w += ['s_waitcnt lgkmcnt(0)']
                else: qk = []
            if i == 14 and p < 7:
                if p % 2 == 1: ld += [f'v_add_u32 v{vQA}, s{sK[p//2][1]}, v{vL16}']
                ld += [f'ds_read_b128 {q4(Q)}, v{vQA} offset:{L_QF + 4096*((p+1)%2)}']
                if p in (1, 6): ld += [f'ds_read_b32 v{vT}, v{vF} offset:{F_S[0] if p == 1 else F_S[9]}']
                if p == 6 and XC: ld += [f'ds_read_b32 v{vEP}, v{vF} offset:{F_XC}']
            if i == 15 and p in (1, 6):
                sw = [f'v_cmp_ne_u32 vcc, 1, v{vT}'] + ([f'v_readfirstlane_b32 s{sXC}, v{vEP}'] if p == 6 and XC else [])
                ld = [f's_cbranch_vccnz L_check{p}', f'L_checked{p}:']
            if p == 7 and opt('xl', 0) and 'nosvc' not in OPT and 'stop' not in OPT:
                X0 = opt('xl0', 16 - opt('xl', 0))
                if i == X0 - 2: ld += [f'ds_read_b32 v{vT}, v{vF} offset:{F_S[5]}']
                if i == X0 - 1: ld += [f's_waitcnt lgkmcnt(0)\nv_cmp_eq_u32 vcc, 0, v{vT}\ns_cmp_eq_u64 vcc, 0\ns_cselect_b32 s{sPRE}, 1, 0']
                k = i - X0
                if 0 <= k < opt('xl', 0):
                    assert (16 + 4 * k + 3) // 3 < i
                    L = a.label('PF')
                    ld += [f's_cmp_eq_u32 s{sPRE}, 0\ns_cbranch_scc1 {L}', self.o_load((k + 1) % 4), f'{L}:']
            if p == 7 and i == opt('rel', 99): ld += [f'ds_write_b32 v{vS}, v{vONE} offset:{F_AX}']
            if p == 7 and opt('pre', 0) and 'nosvc' not in OPT and 'stop' not in OPT:
                P0 = opt('pre0', 6)
                if i == P0 - 1: ld += [f'ds_read_b32 v{vT}, v{vF} offset:{F_S[5]}']
                if i == P0: ld += [f's_waitcnt lgkmcnt(0)\nv_cmp_eq_u32 vcc, 0, v{vT}\ns_cmp_eq_u64 vcc, 0\ns_cselect_b32 s{sPRE}, 1, 0']
                grp = []
                k = i - P0 - 1
                if 0 <= k < 4: grp = [self.wo_read(st, vLN) for st in range(4 * k, 4 * k + 4)]; top = 4 * k + 3
                if 4 <= k < 8: grp = [self.o_load((k - 3) % 4)]; top = 16 + 4 * (k - 4) + 3
                if grp:
                    assert top // 3 < i, (top, i)
                    L = a.label('PF')
                    ld += [f's_cmp_eq_u32 s{sPRE}, 0\ns_cbranch_scc1 {L}'] + grp + [f'{L}:']
            seq = e[0:2] + ([] if (p == 0 and i == 0) else [PV(i - 1, 1)]) + e[2:5] + w + qk + sw + e[5:7] + ld + e[7:PP] + [PV(i, 0)] + e[PP:16]
            for x in seq: a(x)
        a(f's_setprio {opt("aprio", 1)}')
        a(f's_waitcnt vmcnt({sum(nl(t) for t in range(NUP)) - 1}) lgkmcnt(0)')
        a(QK(0))
        NW = opt('nw', 3)
        for p in range(8):
            if p == 0:
                plain(0, 0); plain(0, 1)
            else:
                e = [E(0, r) for r in range(16)]
                for x in e[0:2] + [PV(15, 1)] + e[2:5] + [QK(1)] + e[5:8]: a(x)
                so, si = (p - 1) % 2, p % 2
                WS = opt('wsp', 0) if 1 < p < 7 else 0
                if WS == 1:
                    for x in [wr(so)[0], f'v_mov_b32 v{O+9}, {p+1}', e[8], wr(so)[1], e[9], wr(so)[2]]: a(x)
                    e = e[:8] + ['', ''] + e[10:]
                elif WS == 2:
                    for x in [wr(so)[0], f'v_mov_b32 v{O+9}, {p+1}', e[8], e[9], wr(so)[1], e[10], e[11], wr(so)[2]]: a(x)
                    e = e[:8] + ['', '', '', ''] + e[12:]
                elif p < 7:
                    for x in [wr(so)[0], f'v_mov_b32 v{O+9}, {p+1}', wr(so)[1], wr(so)[2]]: a(x)
                else:
                    self.publish(R, 0, F_AX)
                if p % 2 == 0: a(f'v_add_u32 v{vA8}, s{sK[p//2-1][0]}, v{vL8}\nv_add_u32 v{vA16}, s{sK[p//2-1][2]}, v{vL16}')
                if p == 1:
                    for r in range(0, 8, 2): a(f'v_pk_mul_f32 {pr(O+r)}, {pr(O+10)}, {pr(O+10)}')
                    a(f'v_mov_b32 v{O+8}, 0')
                    for x in e[8:PP] + [PV(0, 0)] + e[PP:16]: a(x)
                    plain(p, 1)
                else:
                    for x in rd(si) + e[8:16]: a(x)
                    e = [E(1, r) for r in range(16)]
                    for x in e[0:NW]: a(x)
                    a(f's_waitcnt lgkmcnt(0)\nv_cmp_gt_u32 vcc, {p}, v{O+9}')
                    a(e[NW])
                    a(f's_cbranch_vccnz L_hw{p}')
                    a(f'L_hd{p}:')
                    n = NW + 1
                    for x in [PV(0, 0)] + e[n:n+3] + [PV(0, 1)] + e[n+3:n+6] + [QK(2)] + e[n+6:n+9] + [PV(1, 0)] + e[n+9:16]: a(x)
            for i in range(2, 16):
                plain(p, i)
            if p == 0: self.stamp(7)
            if 'phs' in OPT: a(f's_memtime s[98:99]\ns_memrealtime s[{16+4*p}:{17+4*p}]\ns_waitcnt lgkmcnt(0)\ns_mov_b32 s{17+4*p}, s98')
        a('s_nop 0')
        a(PV(15, 1))
        a(f's_branch L_attn_epi')
        for p in range(2, 8):
            a(f'L_hw{p}:')
            a(f's_mov_b32 s{sCNT}, {SPIN}')
            a(f'L_hl{p}:')
            a(f's_sleep 1')
            for x in rd(p % 2): a(x)
            a(f's_waitcnt lgkmcnt(0)\nv_cmp_gt_u32 vcc, {p}, v{O+9}\ns_cbranch_vccz L_hd{p}\ns_sub_u32 s{sCNT}, s{sCNT}, 1\ns_cbranch_scc0 L_hl{p}\ns_branch L_hd{p}')

    def attn_loop(self, R, slow):
        a = self.a
        K, V, S0, O, Q = R['K'], R['V'], R['S0'], R['O'], R['Q']
        vIDX, vA16, vA8, vQA, vL8, vM = R['vIDX'], R['vA16'], R['vA8'], R['vQA'], R['vL8'], R['vM']
        sf = '_s' if slow else '_f'
        PH0 = 16 if slow else 0
        NUP = opt('nup', 6)
        def Sb(i): return S0 + 16 * (i % 2)
        def E(i, r):
            s = Sb(i) + r
            return (f'v_sub_f32 v{s}, v{s}, v{vM}\n' if slow else '') + f'v_exp_f32 v{s}, v{s}'
        def QK(i): return f'v_mfma_f32_32x32x16_bf16 {t16(Sb(i))}, {q4(K+4*(i%16))}, {q4(Q)}, 0'
        def PV(i, h): return f'v_smfmac_f32_32x32x32_bf16 {t16(O)}, {q4(V+8*(i%16)+4*h)}, v[{Sb(i)+8*h}:{Sb(i)+8*h+7}], v{vIDX}'
        rd = [f'ds_read_b64 {pr(O+8)}, v{vA8} offset:{L_ACCF}', f'ds_read_b128 {q4(O)}, v{vA16} offset:{L_ACCD}', f'ds_read_b128 {q4(O+4)}, v{vA16} offset:{L_ACCD+1024}']
        wr = [f'ds_write_b128 v{vA16}, {q4(O)} offset:{L_ACCD}', f'ds_write_b128 v{vA16}, {q4(O+4)} offset:{L_ACCD+1024}', f'ds_write_b64 v{vA8}, {pr(O+8)} offset:{L_ACCF}']
        def getm():
            if slow:
                a(f'v_lshrrev_b32 v{vT}, 2, v{vL16}\nv_and_b32 v{vT}, 0x7c, v{vT}\ns_lshl_b32 s{sT0}, s{sTJ}, 7\ns_add_u32 s{sT0}, s{sT0}, {L_MX}\nv_add_u32 v{vT}, s{sT0}, v{vT}')
                a(f'ds_read_b32 v{vM}, v{vT}\ns_waitcnt lgkmcnt(0)')
        nl = lambda i: 3 if self.masked(i) else 2
        def plain(i, ph0=False):
            e = [E(i, r) for r in range(16)]
            w = []; sw = []; ld = []
            if ph0 and not slow:
                issued = sum(nl(t) for t in range(min(16, i + NUP)))
                needed = sum(nl(t) for t in range(i + 1)) + (1 if i < 15 else 0)
                w = [f's_waitcnt vmcnt({issued - needed})']
                if not self.masked(i): sw = [f'v_permlane16_swap_b32 v{V+8*i+r}, v{V+8*i+4+r}' for r in range(4)]
                if i + NUP < 16: ld = [self.kvload(R, i + NUP)]
                if i + NUP == 15: ld += [f'ds_write_b32 v{vS}, v{vONE} offset:{F_A1}']
            if i == 15: w += ['s_waitcnt lgkmcnt(0)']
            seq = e[0:2] + ([] if (ph0 and i == 0) else [PV(i - 1, 1)]) + e[2:5] + w + [QK(i + 1)] + sw
            if i == 14:
                seq += [f's_add_u32 s{sT1}, s{sPH}, 1\ns_lshr_b32 s{sT2}, s{sT1}, 1\ns_sub_u32 s{sT2}, s{sSW}, s{sT2}', e[5],
                        f's_and_b32 s{sT2}, s{sT2}, 3\ns_and_b32 s{sT1}, s{sT1}, 1\ns_lshl_b32 s{sT1}, s{sT1}, 2', e[6],
                        f's_add_u32 s{sT2}, s{sT2}, s{sT1}\ns_lshl_b32 s{sT0}, s{sT2}, 10', e[7], f'v_add_u32 v{vQA}, s{sT0}, v{vL16}', e[8],
                        f'ds_read_b128 {q4(Q)}, v{vQA} offset:{L_QF}'] + e[9:11]
            else:
                seq += e[5:11]
            seq += [PV(i, 0)] + e[11:13] + ld + e[13:16]
            for x in seq: a(x)
        a(f's_setprio {opt("aprio", 1)}')
        getm()
        a(f's_waitcnt vmcnt({sum(nl(t) for t in range(NUP)) - 1}) lgkmcnt(0)')
        a(QK(0))
        if slow:
            plain(0, True); plain(1)
            a(f's_branch L_mid{sf}')
        else:
            for i in range(16): plain(i, True)
            self.stamp(7)
        a('.p2align 6')
        a(f'L_loop{sf}:')
        a(f's_add_u32 s{sPH}, s{sPH}, 1\ns_mov_b32 s{sTJ}, s{sT2}')
        getm()
        e = [E(0, r) for r in range(16)]
        for x in e[0:2] + [PV(15, 1), e[2], f's_add_u32 s{sT1}, s{sPH}, 1', e[3], f's_lshl_b32 s{sT3}, s{sTJ}, 9', e[4], QK(1), f's_lshl_b32 s{sT4}, s{sTJ}, 11', e[5], e[6],
                           f's_cmp_eq_u32 s{sPH}, {PH0 + 7}', e[7], f's_cbranch_scc1 L_finx{sf}',
                           wr[0], f'v_mov_b32 v{O+9}, s{sT1}', e[8], wr[1], e[9], wr[2]]: a(x)
        a(f'L_finxd{sf}:')
        for x in [f'v_add_u32 v{vA8}, s{sT3}, v{vL8}', f'v_add_u32 v{vA16}, s{sT4}, v{vL16}', rd[0], e[10], rd[1], e[11], rd[2]] + e[12:16]: a(x)
        e0 = e
        e = [E(1, r) for r in range(16)]
        NW = opt('nw', 6)
        for x in e[0:NW]: a(x)
        a(f's_waitcnt lgkmcnt(0)\nv_cmp_gt_u32 vcc, s{sPH}, v{O+9}\ns_cbranch_vccnz L_hw{sf}')
        a(f'L_hd{sf}:')
        for x in [PV(0, 0)] + e[NW:NW+3] + [PV(0, 1)] + e[NW+3:NW+6] + [QK(2)] + e[NW+6:NW+9] + [PV(1, 0)] + e[NW+9:16]: a(x)
        a(f'L_mid{sf}:')
        for i in range(2, 16):
            plain(i)
        a(f's_cmp_lt_u32 s{sPH}, {PH0 + 7}\ns_cbranch_scc1 L_loop{sf}')
        a(PV(15, 1))
        a(f's_nop 10\ns_branch L_end{sf}')
        a(f'L_finx{sf}:')
        a(e0[8]); a(e0[9])
        self.publish(R, 0, F_AX)
        a(f's_branch L_finxd{sf}')
        a(f'L_hw{sf}:')
        a(f's_mov_b32 s{sCNT}, {SPIN}')
        a(f'L_hl{sf}:')
        a(f's_sleep 1')
        for x in rd: a(x)
        a(f's_waitcnt lgkmcnt(0)\nv_cmp_gt_u32 vcc, s{sPH}, v{O+9}\ns_cbranch_vccz L_hd{sf}\ns_sub_u32 s{sCNT}, s{sCNT}, 1\ns_cbranch_scc0 L_hl{sf}\ns_branch L_hd{sf}')
        a(f'L_end{sf}:')

    def oproj_pre(self):
        a = self.a
        a('s_setprio 3')
        self.sig(F_AX)
        a(f'ds_read_b32 v{vEP}, v{vF} offset:{F_S[5]}')
        a(f'v_lshrrev_b32 v241, 9, v{vL16}\nv_bfe_u32 v243, v{vL16}, 2, 7\nv_lshl_add_u32 v243, v241, 14, v243\nv_mov_b32 v240, 0\nv_mov_b32 v241, 0')
        a(f's_and_b32 s{sT0}, s{sOW}, 0xc00\ns_lshl_b32 s{sT0}, s{sT0}, 1\nv_add_u32 v242, s{sT0}, v{vL16}\ns_xor_b32 s{sT0}, s{sT0}, 0x1000\nv_add_u32 v245, s{sT0}, v{vL16}\nv_xor_b32 v246, 8, v{vS}')

    def oproj(self):
        a = self.a
        vZ, vOA, vXW, vXR, vP = 240, 243, 242, 245, 246
        OA = [192, 208]
        sPEND, sKH, sOUT = sT3, sT1, sT5
        order = (1, 2, 3, 0)
        for h in range(2): a(f'v_mfma_f32_32x32x8_bf16 {t16(OA[h])}, {pr(vZ)}, {pr(vZ)}, 0')
        loads = lambda q: a(self.o_load(q))
        def proc(q, lab):
            R_ = [self.OF(q, n) + r for n in range(4) for r in range(4)]
            a(f'v_max3_u32 v{vT}, v{R_[0]}, v{R_[1]}, v{R_[2]}')
            for r in range(3, 15, 2): a(f'v_max3_u32 v{vT}, v{R_[r]}, v{R_[r+1]}, v{vT}')
            a(f'v_max_u32 v{vT}, v{R_[15]}, v{vT}\nv_cmp_eq_u32 vcc, -1, v{vT}\ns_cbranch_vccnz {lab}')
            for n in range(4):
                a(f'v_mfma_f32_32x32x16_bf16 {t16(OA[q//4])}, {q4(self.OF(q, n))}, {q4(self.WF(4*(q%4)+n))}, {t16(OA[q//4])}')
            a(f's_bitset0_b32 s{sPEND}, {q}')
            a(f'{lab}:')
        if opt('tail2', 0):
            def retry(h):
                a(f'L_oretry{h}:')
                a(f's_and_b32 s{sT0}, s{sPEND}, {15 << (4*h)}\ns_cbranch_scc0 L_odone{h}\ns_sub_u32 s{sCNT}, s{sCNT}, 1\ns_cbranch_scc1 L_odone{h}')
                for q in range(4 * h, 4 * h + 4):
                    a(f's_bitcmp0_b32 s{sPEND}, {q}\ns_cbranch_scc1 L_ol_{q}')
                    loads(q)
                    a(f'L_ol_{q}:')
                a('s_waitcnt vmcnt(0)')
                for q in range(4 * h, 4 * h + 4):
                    a(f's_bitcmp0_b32 s{sPEND}, {q}\ns_cbranch_scc1 L_o2_{q}')
                    proc(q, f'L_o2_{q}')
                a(f's_branch L_oretry{h}')
                a(f'L_odone{h}:')
            fl = {0: '', 1: ' sc1', 2: ' nt'}[opt('ofl', 2)]
            def send(h):
                a(f's_nop 7\ns_bitcmp1_b32 s{sSW}, 1\ns_cbranch_scc1 L_sh{h}')
                for kh in range(2):
                    sd = OA[h] + 8 - 8 * kh
                    a(f'ds_write_b128 v{vXW}, {q4(sd)} offset:{L_ACCD+8192*h}\nds_write_b128 v{vXW}, {q4(sd+4)} offset:{L_ACCD+8192*h+1024}')
                    self.sig(F_OX + 16 * h)
                    if kh == 0: a(f's_branch L_sd{h}\nL_sh{h}:')
                    else:
                        for r in range(0, 8, 2): a(f'v_pk_mov_b32 {pr(OA[h]+r)}, {pr(OA[h]+8+r)}, {pr(OA[h]+8+r)} op_sel:[0,1]')
                a(f'L_sd{h}:')
            def finish(h):
                self.wait(F_OX + 16 * h, sleep=0, va=vP)
                t = OA[h] + 8
                a(f'ds_read_b128 {q4(t)}, v{vXR} offset:{L_ACCD+8192*h}\nds_read_b128 {q4(t+4)}, v{vXR} offset:{L_ACCD+8192*h+1024}')
                for r in range(8):
                    if r % 4 == 0: a(f's_waitcnt lgkmcnt({1 - r//4})')
                    a(f'v_add_f32 v{t+r}, v{t+r}, v{OA[h]+r}\ns_add_u32 s{sT0}, s{sOUT}, {((r % 4) + 8 * (r // 4) + 32 * h) * 4096}')
                    if 'noo' not in OPT: a(f'buffer_store_dword v{t+r}, v{vOA}, s[{SOUT}:{SOUT+3}], s{sT0} offen{fl}')
            def verify(q):
                R_ = [self.OF(q, n) + r for n in range(4) for r in range(4)]
                if opt('vlite', 0): return [f'v_max3_u32 v{vT}, v{R_[3]}, v{R_[7]}, v{R_[11]}', f'v_max_u32 v{vT}, v{R_[15]}, v{vT}', f'v_cmp_eq_u32 vcc, -1, v{vT}']
                return [f'v_max3_u32 v{vT}, v{R_[0]}, v{R_[1]}, v{R_[2]}'] + [f'v_max3_u32 v{vT}, v{R_[r]}, v{R_[r+1]}, v{vT}' for r in range(3, 15, 2)] + [f'v_max_u32 v{vT}, v{R_[15]}, v{vT}', f'v_cmp_eq_u32 vcc, -1, v{vT}']
            tails = []
            def pproc(q, nxt, wait=None):
                v = ([wait] if wait else []) + (verify(nxt) if nxt is not None else [])
                a(f's_cbranch_vccnz L_ps{q}')
                k = (len(v) + 2) // 3
                for n in range(4):
                    a(f'v_mfma_f32_32x32x16_bf16 {t16(OA[q//4])}, {q4(self.OF(q, n))}, {q4(self.WF(4*(q%4)+n))}, {t16(OA[q//4])}')
                    if n == 0: a(f's_bitset0_b32 s{sPEND}, {q}')
                    else:
                        for x in v[(n - 1) * k:n * k]: a(x)
                a(f'L_pj{q}:')
                tails.append((q, v))
            a(f's_mov_b32 s{sPEND}, 0xff\ns_cmp_eq_u32 s{sPRE}, 1\ns_cbranch_scc1 L_prej')
            self.wait(F_S[5], sleep=1)
            self.wait(F_AY, sleep=0)
            for q in order: loads(q)
            for st in range(16): a(self.wo_read(st, vLN))
            a('s_waitcnt vmcnt(0)')
            a('L_prej:')
            a('s_waitcnt vmcnt(1) lgkmcnt(0)')
            NX = opt('nx', 2)
            for x in verify(1): a(x)
            for k in range(NX): pproc(order[k], order[k + 1] if k + 1 < NX else None)
            self.wait(F_AY, sleep=0)
            self.stamp(11)
            loads(5); loads(6)
            if NX < 4:
                for x in verify(order[NX]): a(x)
            rest = [7, 4]
            for k in range(NX, 4):
                pproc(order[k], order[k + 1] if k < 3 else None)
                if rest: loads(rest.pop(0))
            for q in rest: loads(q)
            self.srd(SOUT, P(14), 2048 * 4096)
            a(f's_lshr_b32 s{sKH}, s{sSW}, 1\ns_mov_b32 s{sCNT}, 50000')
            a(f's_lshl_b32 s{sOUT}, s{sRB}, 18\ns_lshl_b32 s{sT0}, s{sCG}, 1\ns_and_b32 s{sT2}, s{sWV}, 1\ns_add_u32 s{sT0}, s{sT0}, s{sT2}\ns_lshl_b32 s{sT0}, s{sT0}, 7\ns_add_u32 s{sOUT}, s{sOUT}, s{sT0}\ns_lshl_b32 s{sT0}, s{sKH}, 16\ns_add_u32 s{sOUT}, s{sOUT}, s{sT0}')
            retry(0)
            send(0)
            self.stamp(12)
            a('s_waitcnt vmcnt(12)')
            for x in verify(5): a(x)
            for k, q in enumerate(order):
                pproc(4 + q, 4 + order[k + 1] if k < 3 else None, f's_waitcnt vmcnt({8 - 4*k})' if k < 3 else None)
            a(f's_cmp_eq_u32 s{sPEND}, 0\ns_cbranch_scc1 L_ofast')
            finish(0)
            a(f's_mov_b32 s{sCNT}, 50000')
            retry(1)
            send(1)
            a('s_branch L_olast')
            a('L_ofast:')
            OA.append(OA[1])
            a(f's_nop 7\ns_bitcmp1_b32 s{sSW}, 1\ns_cbranch_scc1 L_shf')
            for kh in range(2):
                sd = OA[1] + 8 - 8 * kh
                a(f'ds_write_b128 v{vXW}, {q4(sd)} offset:{L_ACCD+8192}\nds_write_b128 v{vXW}, {q4(sd+4)} offset:{L_ACCD+8192+1024}')
                self.sig(F_OX + 16)
                if kh == 0: a('s_branch L_sdf\nL_shf:')
                else:
                    for r in range(0, 8, 2): a(f'v_pk_mov_b32 {pr(OA[1]+r)}, {pr(OA[1]+8+r)}, {pr(OA[1]+8+r)} op_sel:[0,1]')
            a('L_sdf:')
            finish(0)
            a('L_olast:')
            self.stamp(1)
            finish(1)
            self.end()
            for q, v in tails:
                a(f'L_ps{q}:')
                for x in v: a(x)
                a(f's_nop 0\ns_branch L_pj{q}')
            return
        a(f's_mov_b32 s{sPEND}, 0xff')
        if opt('pre', 0):
            a(f's_cmp_eq_u32 s{sPRE}, 0\ns_cbranch_scc1 L_nopre')
            a('s_waitcnt vmcnt(1) lgkmcnt(0)')
            proc(1, 'L_o0_1'); proc(2, 'L_o0_2')
            self.wait(F_AY, sleep=0)
            a('s_branch L_prej')
            a('L_nopre:')
        TV = opt('tv', 2)
        if TV == 0:
            self.wait(F_S[5], sleep=1)
            self.wait(F_AY, sleep=0)
            for q in order: loads(q)
            for st in range(16): a(self.wo_read(st, vLN))
            a('s_waitcnt vmcnt(0) lgkmcnt(0)')
            proc(1, 'L_o0b_1'); proc(2, 'L_o0b_2')
            a('L_prej:')
            self.stamp(11)
            loads(5); loads(6)
            proc(3, 'L_o0_3')
            loads(7)
            proc(0, 'L_o0_0')
            loads(4)
        else:
            NE = {1: 0, 2: 2, 3: 4, 4: 3}[TV]
            XL = opt('xl', 0)
            if XL:
                a(f's_cmp_eq_u32 s{sPRE}, 1\ns_cbranch_scc1 L_xl')
            if opt('s5p', 1):
                a(f's_waitcnt lgkmcnt(0)\nv_cmp_eq_u32 vcc, 0, v{vEP}\ns_cbranch_vccz L_s5ok')
            self.wait(F_S[5], sleep=1)
            a('L_s5ok:')
            for q in order[:XL]: loads(q)
            a('L_xl:')
            for q in order[XL:max(XL, NE)]: loads(q)
            for st in range(16): a(self.wo_read(st, vLN))
            self.wait(F_AY, sleep=0)
            self.stamp(11)
            for q in order[max(XL, NE):]: loads(q)
            YD = opt('yd', 3)
            iss = 0
            for k, q in enumerate(order):
                while iss < min(4, k + 1 - YD): loads(4 + order[iss]); iss += 1
                a(f's_waitcnt vmcnt({12 - 4*k + 4*iss})')
                proc(q, f'L_o0_{q}')
            while iss < 4: loads(4 + order[iss]); iss += 1
        self.stamp(12)
        self.srd(SOUT, P(14), 2048 * 4096)
        a(f's_lshr_b32 s{sKH}, s{sSW}, 1\ns_mov_b32 s{sCNT}, 50000')
        a(f's_lshl_b32 s{sOUT}, s{sRB}, 18\ns_lshl_b32 s{sT0}, s{sCG}, 1\ns_and_b32 s{sT2}, s{sWV}, 1\ns_add_u32 s{sT0}, s{sT0}, s{sT2}\ns_lshl_b32 s{sT0}, s{sT0}, 7\ns_add_u32 s{sOUT}, s{sOUT}, s{sT0}\ns_lshl_b32 s{sT0}, s{sKH}, 17\ns_add_u32 s{sOUT}, s{sOUT}, s{sT0}')
        for k, q in enumerate(order):
            a(f's_waitcnt vmcnt({12 - 4*k})')
            proc(4 + q, f'L_o1_{q}')
        a('L_oretry:')
        a(f's_cmp_eq_u32 s{sPEND}, 0\ns_cbranch_scc1 L_odone\ns_sub_u32 s{sCNT}, s{sCNT}, 1\ns_cbranch_scc1 L_odone')
        for q in range(8):
            a(f's_bitcmp0_b32 s{sPEND}, {q}\ns_cbranch_scc1 L_ol_{q}')
            loads(q)
            a(f'L_ol_{q}:')
        a('s_waitcnt vmcnt(0)')
        for q in range(8):
            a(f's_bitcmp0_b32 s{sPEND}, {q}\ns_cbranch_scc1 L_o2_{q}')
            proc(q, f'L_o2_{q}')
        a('s_branch L_oretry')
        a('L_odone:')
        if self.stamps: a(f's_mov_b32 s{sST+14}, s{sCNT}')
        self.stamp(1)
        fl = {0: '', 1: ' sc1', 2: ' nt', 3: ' sc0 sc1', 4: ' sc1 nt', 5: ' sc0 nt', 6: ' sc0 sc1 nt'}[opt('ofl', 2)]
        a(f's_nop 7\ns_cmp_eq_u32 s{sKH}, 0\ns_cbranch_scc0 L_ohi')
        for kh in range(2):
            keep, send = OA[kh], OA[1 - kh]
            for q in range(4): a(f'ds_write_b128 v{vXW}, {q4(send+4*q)} offset:{L_ACCD + 8192*(q//2) + 1024*(q%2)}')
            self.sig(F_OX)
            self.wait(F_OX, sleep=0, va=vP)
            for q in range(4): a(f'ds_read_b128 {q4(4*q)}, v{vXR} offset:{L_ACCD + 8192*(q//2) + 1024*(q%2)}')
            for r in range(16):
                if r % 4 == 0: a(f's_waitcnt lgkmcnt({3 - r//4})')
                a(f'v_add_f32 v{r}, v{r}, v{keep+r}\ns_add_u32 s{sT0}, s{sOUT}, {((r % 4) + 8 * (r // 4)) * 4096}')
                if 'noo' not in OPT: a(f'buffer_store_dword v{r}, v{vOA}, s[{SOUT}:{SOUT+3}], s{sT0} offen{fl}')
            self.end()
            if kh == 0: a('L_ohi:')

    def kvproj(self):
        a = self.a
        vXA, vWA, vU, vO, vZ, D = 176, 177, 178, 179, 180, 184
        a(f's_lshr_b32 s{sT5}, s{sCG}, 1')
        a(f'v_and_b32 v{vT}, 15, v{vLN}\ns_lshl_b32 s{sT0}, s{sT5}, 4\nv_add_u32 v{vO}, s{sT0}, v{vT}\nv_mul_u32_u24 v{vXA}, 1040, v{vO}')
        a(f'v_lshrrev_b32 v{vU}, 4, v{vLN}\nv_lshl_add_u32 v{vXA}, v{vU}, 4, v{vXA}\nv_add_u32 v{vXA}, {L_A1}, v{vXA}')
        a(f'v_lshlrev_b32 v{vWA}, 3, v{vT}\nv_lshl_add_u32 v{vWA}, v{vU}, 8, v{vWA}\nv_and_b32 v181, 1, v{vU}\nv_lshl_add_u32 v{vWA}, v181, 7, v{vWA}\nv_xor_b32 v181, 128, v{vWA}\nv_add_u32 v{vWA}, {L_WKV}, v{vWA}\nv_add_u32 v181, {L_WKV}, v181')
        a(f's_and_b32 s{sT1}, s{sCG}, 1\ns_xor_b32 s{sT2}, s{sT1}, 1')
        a(f'v_lshrrev_b32 v{vO}, s{sT1}, v{vU}\nv_and_b32 v{vO}, 1, v{vO}\nv_lshlrev_b32 v{vO}, 9, v{vO}\nv_lshl_add_u32 v{vO}, v{vT}, 4, v{vO}')
        a(f'v_lshrrev_b32 v{vT}, s{sT2}, v{vU}\nv_and_b32 v{vT}, 1, v{vT}\nv_lshl_add_u32 v{vO}, v{vT}, 3, v{vO}')
        a(f's_lshl_b32 s{sT0}, s{sRB}, 1\ns_lshr_b32 s{sT2}, s{sT5}, 1\ns_add_u32 s{sT0}, s{sT0}, s{sT2}\ns_lshl_b32 s{sT0}, s{sT0}, 1\ns_add_u32 s{sT0}, s{sT0}, s{sT1}\ns_lshl_b32 s{sT0}, s{sT0}, 10')
        a(f's_and_b32 s{sT2}, s{sT5}, 1\ns_lshl_b32 s{sT2}, s{sT2}, 8\ns_add_u32 s{sT0}, s{sT0}, s{sT2}\ns_add_u32 s{sT3}, s{sT0}, {WS_KVIMG:#x}')
        a(f's_lshl_b32 s{sT4}, s{sRB}, 3\ns_add_u32 s{sT4}, s{sT4}, s{sCG}\ns_lshl_b32 s{sT4}, s{sT4}, {opt("fs", 6)}\ns_add_u32 s{sT4}, s{sT4}, {WS_KVFLAG:#x}')
        a(f'v_mov_b32 v{vZ}, 0')
        a(f's_lshl_b32 s{sT0}, s{sSW}, 8\nv_add_u32 v{vXA}, s{sT0}, v{vXA}\ns_lshl_b32 s{sT0}, s{sSW}, 12\nv_add_u32 v{vWA}, s{sT0}, v{vWA}\nv_add_u32 v181, s{sT0}, v181')
        a(f's_lshl_b32 s{sT0}, s{sSW}, 10\nv_add_u32 v{vU}, s{sT0}, v{vL16}')
        self.wait(F_L1, sleep=0)
        self.stamp(12)
        for s in range(4):
            b = 128 + 8 * s
            a(f'ds_read_b128 {q4(b)}, v{vXA} offset:{64*s}')
            a(f'ds_read_b64_tr_b16 {pr(b+4)}, v{vWA} offset:{1024*s}')
            a(f'ds_read_b64_tr_b16 {pr(b+6)}, v181 offset:{1024*s}')
        a(f's_bitcmp1_b32 s{sCG}, 0\ns_cbranch_scc1 L_kv_v')
        for kind in 'kv':
            for s in range(4):
                a(f's_waitcnt lgkmcnt({3 * (3 - s)})')
                b = 128 + 8 * s
                A, B = (q4(b + 4), q4(b)) if kind == 'k' else (q4(b), q4(b + 4))
                a(f'v_mfma_f32_16x16x32_bf16 {q4(D)}, {A}, {B}, {"0" if s == 0 else q4(D)}')
            if kind == 'k': a('s_branch L_kv_j\nL_kv_v:')
        a('L_kv_j:')
        a(f's_cmp_eq_u32 s{sSW}, 0\ns_cbranch_scc1 L_kv_0\ns_nop 5')
        a(f'ds_write_b128 v{vU}, {q4(D)} offset:{L_QF}')
        self.sig(F_S[4])
        a('s_branch L_nokv')
        a('L_kv_0:')
        self.sig(F_S[4])
        self.wait(F_S[4], sleep=0)
        for q in range(3): a(f'ds_read_b128 {q4(128+4*q)}, v{vL16} offset:{L_QF + 1024*(q+1)}')
        for q in range(3):
            a(f's_waitcnt lgkmcnt({2-q})\nv_pk_add_f32 {pr(D)}, {pr(D)}, {pr(128+4*q)}\nv_pk_add_f32 {pr(D+2)}, {pr(D+2)}, {pr(130+4*q)}')
        a(f'v_cvt_pk_bf16_f32 v188, v{D}, v{D+1}\nv_cvt_pk_bf16_f32 v189, v{D+2}, v{D+3}')
        a(f'buffer_store_dwordx2 v[188:189], v{vO}, s[{SWS}:{SWS+3}], s{sT3} offen sc1')
        a(f's_bitcmp1_b32 s{sCG}, 0\ns_cbranch_scc1 L_kv_v2')
        a(f'v_mul_f32 v190, v{D}, v{D}\nv_fmac_f32 v190, v{D+1}, v{D+1}\nv_fmac_f32 v190, v{D+2}, v{D+2}\nv_fmac_f32 v190, v{D+3}, v{D+3}')
        a('v_mov_b32 v191, v190\nv_permlane32_swap_b32 v190, v191\nv_add_f32 v190, v190, v191')
        a('v_mov_b32 v191, v190\nv_permlane16_swap_b32 v190, v191\nv_add_f32 v190, v190, v191')
        a('s_mov_b64 exec, 0xffff\ns_branch L_kv_fin')
        a('L_kv_v2:')
        a(f'v_max3_f32 v190, |v{D}|, |v{D+1}|, |v{D+2}|\nv_max_f32 v190, |v{D+3}|, v190')
        a(f's_mov_b32 s{sT1}, {f2u(2.0**50):#x}\nv_cmp_lt_f32 vcc, s{sT1}, v190\nv_mov_b32 v190, 0x7f800000\ns_mov_b64 exec, vcc')
        a('L_kv_fin:')
        a(f'ds_max_u32 v{vZ}, v190 offset:{F_KST}\ns_mov_b64 exec, -1\nds_read_b32 v183, v{vZ} offset:{F_KST}')
        a('s_waitcnt vmcnt(1)')
        self.get_tag()
        if XC: a(f's_getreg_b32 s{sT0}, hwreg(HW_REG_XCC_ID)\nv_mov_b32 v184, s{sT0}')
        a(f'v_mov_b32 v182, s{sTAG}\nds_write_b32 v{vF}, v182 offset:{F_TAG}')
        self.stamp(13)

    def service(self):
        a = self.a
        self.cyc = False
        L1, L8, L16, L128, FF, WW, CC = 192, 194, 196, 198, 200, 202, 204
        DG = 206
        vXD, vXR, vXR2, vBD, vHA, vHB, vSX, vTW, vTR, vEA, vXS, vOA, vWI, vP8, vCK, vCS, vCK2, vCS2, vHF, vYW, vE0, vPF, vTG, vYR = range(214, 238)
        PRM = 238
        vC31, vHI, vU, vWA, vXA, vQ = 242, 243, 244, 245, 246, 247
        a('L_service:')
        if opt('ent', 0): self.code_prefetch()
        a(f'v_mov_b32 v0, 0\nv_mov_b32 v1, 0\nv_mov_b32 v2, 0\nv_mov_b32 v3, 0')
        a(f's_lshl_b32 s{sT0}, s{sSW}, 10\nv_add_u32 v{vT}, s{sT0}, v{vL16}\nds_write_b128 v{vT}, v[0:3] offset:{L_ACCF}')
        a(f'v_lshlrev_b32 v{vT}, 3, v{vLN}\nds_write_b64 v{vT}, v[0:1]')
        a(f'v_and_b32 v{vC31}, 31, v{vLN}\nv_lshlrev_b32 v{vU}, 1, v{vC31}\nv_lshrrev_b32 v{vHI}, 5, v{vLN}')
        a('s_waitcnt lgkmcnt(0)')
        self.stamp(0)
        a('s_setprio 3')
        self.srd(SWS, P(16), WS_SIZE)
        a(f's_cmp_lg_u32 s{sSW}, 0\ns_cbranch_scc1 L_noepl')
        a(f'buffer_load_dword v{vEP}, off, s[{SWS}:{SWS+3}], 0 sc1')
        a('L_noepl:')
        a(f's_lshl_b32 s{sT0}, s{sPB}, 6')
        for k, p in enumerate((6, 7, 12)):
            self.srd(SA, P(p), 1024)
            a(f'buffer_load_ushort v{PRM+k}, v{vU}, s[{SA}:{SA+3}], s{sT0} offen')
        self.srd(SA, P(13), 1024)
        a(f's_lshl_b32 s{sT0}, s{sCG}, 7\ns_and_b32 s{sT1}, s{sWV}, 1\ns_lshl_b32 s{sT1}, s{sT1}, 6\ns_add_u32 s{sT0}, s{sT0}, s{sT1}')
        a(f'buffer_load_ushort v{PRM+3}, v{vU}, s[{SA}:{SA+3}], s{sT0} offen')
        a('s_barrier')
        self.common_regs()
        self.tr_parts(vTR, vU, vWA)
        a(f'v_lshl_add_u32 v{vTR}, v{vU}, 6, v{vTR}\nv_lshl_add_u32 v{vTR}, v{vHI}, 9, v{vTR}')
        a(f'v_lshl_add_u32 v{vWA}, v{vHI}, 10, v{vWA}\nv_add_u32 v{vWA}, {L_A2}, v{vWA}')
        a(f'v_mul_u32_u24 v{vCK}, 1040, v{vC31}\nv_lshl_add_u32 v{vCK}, v{vHI}, 4, v{vCK}\nv_add_u32 v{vCK}, {L_A1}, v{vCK}')
        a(f's_lshr_b32 s{sT0}, s{sSW}, 1\ns_mul_i32 s{sT0}, s{sT0}, {32*1040}\nv_add_u32 v{vXA}, s{sT0}, v{vCK}')
        a(f's_lshl_b32 s{sT0}, s{sSW}, 11\nv_add_u32 v{vQ}, s{sT0}, v{vL16}')
        sXB, sXL, sTP, sCT = 73, 74, 75, 80
        a(f's_lshl_b32 s{sXB}, s{sTB}, 2\ns_add_u32 s{sXB}, s{sXB}, s{sSW}\ns_lshl_b32 s{sXB}, s{sXB}, 15')
        a(f's_mul_i32 s{sXL}, s{sSW}, {XW}\ns_add_u32 s{sXL}, s{sXL}, {L_A2}')
        a(f's_lshl_b32 s{sTP}, s{sRB}, 1\ns_lshr_b32 s{sT0}, s{sSW}, 1\ns_add_u32 s{sTP}, s{sTP}, s{sT0}')
        a(f's_lshl_b32 s{sCT}, s{sCG}, 1\ns_and_b32 s{sT0}, s{sSW}, 1\ns_add_u32 s{sCT}, s{sCT}, s{sT0}')
        a(f'v_lshlrev_b32 v{vT}, 3, v{vHI}\nv_xor_b32 v{vT}, v{vC31}, v{vT}\nv_lshlrev_b32 v{vT}, 4, v{vT}\nv_lshl_add_u32 v{vXD}, v{vHI}, 13, v{vT}\nv_lshl_add_u32 v{vBD}, v{vHI}, 10, v{vT}')
        def tmap(i):
            r = 4 * (i >> 3) + (i & 3)
            return 16 * ((i >> 2) & 1) + (r >> 1) + 8 * (r & 1)
        def xdma(half, ms=range(16)):
            for m in ms:
                a(f's_xor_b32 s{sT0}, s{sXM}, {m}\ns_mul_i32 s{sT0}, s{sT0}, 1040\ns_add_u32 m0, s{sT0}, s{sXL}\ns_xor_b32 s{sT0}, s{sXG}, {tmap(2*m)*1024 + 512*half}')
                a(f'buffer_load_dwordx4 v{vXD}, s[{SA}:{SA+3}], s{sT0} offen lds')
        sXM, sXG, sHB = 50, 51, 81
        a(f's_and_b32 s{sXM}, s{sPB}, 14\ns_and_b32 s{sT0}, s{sPB}, 2\ns_lshl_b32 s{sT0}, s{sT0}, 3\ns_lshr_b32 s{sT1}, s{sPB}, 2\ns_lshl_b32 s{sT1}, s{sT1}, 1\ns_add_u32 s{sT0}, s{sT0}, s{sT1}\ns_lshl_b32 s{sT0}, s{sT0}, 10')
        a(f's_xor_b32 s{sHB}, s{sPB}, s{sTB}\ns_and_b32 s{sHB}, s{sHB}, {opt("hrot", 1)}\ns_lshl_b32 s{sHB}, s{sHB}, 9\ns_add_u32 s{sT0}, s{sT0}, s{sHB}\ns_add_u32 s{sXG}, s{sXB}, s{sT0}')
        a(f'v_lshrrev_b32 v{vU}, 1, v{vC31}\nv_mul_u32_u24 v{vU}, 1040, v{vU}\nv_lshl_add_u32 v{vU}, v{vHI}, 4, v{vU}\nv_and_b32 v{vT}, 1, v{vC31}')
        a(f'v_mul_u32_u24 v{vHA}, 640, v{vT}\nv_mul_u32_u24 v{vHB}, 384, v{vT}\nv_add_u32 v{vHA}, v{vHA}, v{vU}\nv_add_u32 v{vHB}, v{vHB}, v{vU}')
        a(f'v_add_u32 v{vXR}, s{sXL}, v{vHA}\nv_add_u32 v{vXR2}, s{sXL}, v{vHB}\nv_add_u32 v{vHA}, {L_A1}, v{vHA}\nv_add_u32 v{vHB}, {L_A1}, v{vHB}')
        a(f'v_lshlrev_b32 v{vSX}, 3, v{vLN}\nv_add_u32 v{vSX}, s{sXL}, v{vSX}')
        a(f'v_lshlrev_b32 v{vP8}, 3, v{vC31}\nv_add_u32 v{vP8}, {L_A2}, v{vP8}')
        a(f'v_lshlrev_b32 v{vTW}, 6, v{vC31}\nv_lshl_add_u32 v{vTW}, v{vHI}, 5, v{vTW}\nv_add_u32 v{vTW}, s{sXL}, v{vTW}\nv_add_u32 v{vTR}, s{sXL}, v{vTR}')
        a(f'v_lshlrev_b32 v{vEA}, 4, v{vC31}\nv_xor_b32 v{vT}, 1, v{vHI}\nv_lshl_add_u32 v{vEA}, v{vT}, 12, v{vEA}')
        a(f'v_lshlrev_b32 v{vXS}, 10, v{vC31}\nv_lshl_add_u32 v{vXS}, v{vHI}, 4, v{vXS}')
        a(f'v_lshlrev_b32 v{vOA}, 2, v{vC31}\nv_lshl_add_u32 v{vOA}, v{vHI}, 14, v{vOA}')
        self.wimg_lane_addr(vWI, vT)
        a(f's_and_b32 s{sT0}, s{sSW}, 1\ns_mul_i32 s{sT1}, s{sT0}, {512 - 32*1040}\ns_add_u32 s{sT1}, s{sT1}, {32*1040}\nv_add_u32 v{vCS}, s{sT1}, v{vCK}')
        a(f's_mul_i32 s{sT1}, s{sT0}, {32*1040 + 512}\nv_add_u32 v{vCK}, s{sT1}, v{vCK}\nv_add_u32 v{vCK2}, {L_A2 - L_A1}, v{vCK}\nv_add_u32 v{vCS2}, {L_A2 - L_A1}, v{vCS}')
        a(f'v_and_b32 v{vHF}, 15, v{vLN}\nv_lshlrev_b32 v{vHF}, 7, v{vHF}\nv_lshlrev_b32 v{vPF}, 6, v{vLN}')
        a(f'v_add_u32 v{vYW}, s{sXL}, v{vL16}\ns_xor_b32 s{sT0}, s{sSW}, 1\ns_mul_i32 s{sT0}, s{sT0}, {XW}\ns_add_u32 s{sT0}, s{sT0}, {L_A2}\nv_add_u32 v{vYR}, s{sT0}, v{vL16}')
        self.kvproj()
        a('L_nokv:')
        a(f's_cmp_eq_u32 s{sSW}, 0\ns_cbranch_scc1 L_pw1\ns_waitcnt vmcnt(0)')
        a('L_pw1:')
        a(f'v_lshlrev_b32 v0, 16, v{PRM}\nv_lshlrev_b32 v1, 16, v{PRM+1}\nv_lshlrev_b32 v2, 16, v{PRM+2}')
        LOG2E = f2u(math.log2(math.e))
        a(f'v_mul_f32 v2, {LOG2E:#x}, v2\nv_exp_f32 v2, v2\nv_cvt_pk_bf16_f32 v2, v2, v2\nv_lshlrev_b32 v2, 16, v2')
        a(f'v_mul_f32 v4, v2, v0\nv_mul_f32 v5, v2, v1\nv_mul_f32 v4, {LOG2E:#x}, v4\nv_mul_f32 v5, {f2u(-1/(2*math.pi)):#x}, v5')
        def power(d, n):
            a(f'v_mul_f32 v6, {n}, v4\nv_mul_f32 v7, {n}, v5\nv_exp_f32 v6, v6\nv_fract_f32 v7, v7\nv_cos_f32 v8, v7\nv_sin_f32 v9, v7\nv_mul_f32 v{d}, v6, v8\nv_mul_f32 v{d+1}, v6, v9')
        power(L1, '1.0')
        power(L8, f'{f2u(8.0):#x}')
        power(L16, f'{f2u(16.0):#x}')
        power(L128, f'{f2u(128.0):#x}')
        a(f'v_cvt_f32_u32 v11, v{vHI}\nv_mul_f32 v11, {f2u(1024.0):#x}, v11')
        power(FF, 'v11')
        a(f's_lshl_b32 s{sT0}, s{sSW}, 1\nv_add_u32 v11, s{sT0}, v{vHI}\nv_cvt_f32_u32 v11, v11\nv_mul_f32 v11, {f2u(16.0):#x}, v11')
        power(WW, 'v11')
        a(f'v_add_f32 v6, -1.0, v{L1}\nv_mul_f32 v7, v0, v0\nv_fmac_f32 v7, v1, v1\nv_rcp_f32 v7, v7\nv_add_f32 v7, v7, v7')
        a(f'v_mul_f32 v8, v6, v0\nv_fma_f32 v8, -v{L1+1}, v1, v8\nv_mul_f32 v9, v6, v1\nv_fma_f32 v9, -v{L1+1}, v0, -v9\nv_mul_f32 v{CC}, v8, v7\nv_mul_f32 v{CC+1}, v9, v7')
        a(f'v_and_b32 v6, 1, v{vLN}\nv_lshlrev_b32 v6, 4, v6\nv_lshlrev_b32 v3, v6, v{PRM+3}')
        a(f'v_lshrrev_b32 v6, 1, v{vC31}\nv_lshlrev_b32 v7, 2, v{vHI}\nv_sub_u32 v6, v6, v7')
        for q in range(8):
            a(f'v_cmp_eq_u32 vcc, {8*(q//4) + q%4}, v6\nv_cndmask_b32 v{DG+q}, 0, v3, vcc')
        LC = PRM
        a(f'v_mov_b32 v{LC}, 0\nv_mov_b32 v{LC+1}, 0')
        WT, D = 128, 160
        def kvflag():
            a(f's_cmp_lg_u32 s{sSW}, 0\ns_cbranch_scc1 L_nokvf')
            a('s_waitcnt vmcnt(0)')
            a(f's_mov_b64 exec, {(1 << (1 << (opt("fs", 6) - 4))) - 1:#x}\nbuffer_store_dwordx4 v[182:185], v{vL16}, s[{SWS}:{SWS+3}], s{sT4} offen sc1\ns_mov_b64 exec, -1')
            self.sig(F_KVD, va=vF)
            self.stamp(14)
            a('L_nokvf:')
        FP = opt('fp', 16)
        if FP < 0:
            a('s_waitcnt lgkmcnt(0)'); kvflag()
        self.wait(F_L2, sleep=1)
        self.stamp(1)
        vXQ = [vU, 186, 187, 191]
        a(f's_and_b32 s{sT1}, s{sRB}, 3')
        for c in range(4): a(f's_xor_b32 s{sT0}, s{sT1}, {c}\ns_lshl_b32 s{sT0}, s{sT0}, 8\nv_add_u32 v{vXQ[c]}, s{sT0}, v{vXA}')
        def xr(st): a(f'ds_read_b128 {q4(4*st)}, v{vXQ[st//8]} offset:{32*(st%8)}')
        NPR = opt('npr', 16)
        if FP == 0: kvflag()
        for k, st in enumerate(range(32 - NPR, 32)):
            xr(st)
            if FP == 8 and k == opt('fpk', 15): kvflag()
        if FP == 16: kvflag()
        lq = []
        def wr(st):
            b = WT + 4 * (st % 8)
            if st < 32 - NPR: xr(st); lq.append(st)
            a(f'ds_read_b64_tr_b16 {pr(b)}, v{vWA} offset:{2048*st}\nds_read_b64_tr_b16 {pr(b+2)}, v{vWA} offset:{2048*st+512}')
            lq.extend([st, st])
        for s0, s1, fl in ((0, 16, F_L4), (16, 32, F_L6)):
            self.wait(fl, sleep=0)
            if s0 == 0:
                self.stamp(2)
            dp = 4 if s0 < 32 - NPR else 6
            for st in range(s0, s0 + dp): wr(st)
            for st in range(s0, s1):
                lq[:] = [x for x in lq if x > st]
                a(f's_waitcnt lgkmcnt({len(lq)})')
                a(f'v_mfma_f32_32x32x16_bf16 {t16(D)}, {q4(WT + 4*(st%8))}, {q4(4*st)}, {"0" if st == 0 else t16(D)}')
                if st + dp < s1: wr(st + dp)
            if s0 == 0:
                if FP == 32: kvflag()
                self.wait(F_KVD, sleep=0)
                self.sig(F_QA)
                a(f'ds_read_b32 v{vTG}, v{vF} offset:{F_TAG}')
        QS = f2u(0.25 * math.log2(math.e))
        a(f'v_mov_b32 v24, {QS:#x}')
        for r in range(8):
            a(f'v_pk_mul_f32 {pr(D+2*r)}, v[24:25], {pr(D+2*r)} op_sel:[0,0] op_sel_hi:[0,1]')
            a(f'v_cvt_pk_bf16_f32 v{16+r}, v{D+2*r}, v{D+2*r+1}')
            if r == 3: a(f'ds_write_b128 v{vQ}, v[16:19] offset:{L_QF}')
        a(f'ds_write_b128 v{vQ}, v[20:23] offset:{L_QF+1024}')
        self.sig(F_QP)
        self.stamp(3)
        a(f'v_mul_f32 v8, v{D}, v{D}\nv_mul_f32 v9, v{D+8}, v{D+8}')
        for r in range(1, 8): a(f'v_fmac_f32 v8, v{D+r}, v{D+r}\nv_fmac_f32 v9, v{D+8+r}, v{D+8+r}')
        a('v_permlane32_swap_b32 v8, v9\nv_add_f32 v8, v8, v9')
        a(f'v_mov_b32 v{vQ}, v8')
        if 'nosvc' in OPT:
            self.sig(F_S[0]); self.sig(F_S[9]); self.end(); return
        vCL = vXA
        HR_ = opt('hr', 0)
        a(f's_and_b32 s{sT0}, s{sCG}, {3 if HR_ else 0}\ns_lshl_b32 s{sT0}, s{sT0}, 7\nv_xor_b32 v{vCL}, s{sT0}, v{vL16}')
        SN = 180
        a(f'v_readfirstlane_b32 s{sTAG}, v{vTG}')
        a(f'v_mov_b32 v{SN}, -1\nv_mov_b32 v{SN+1}, -1\nv_mov_b32 v{SN+2}, -1\nv_mov_b32 v{SN+3}, -1\nv_mov_b32 v{SN+4}, 0\nv_mov_b32 v{SN+5}, 0\nv_mov_b32 v{SN+6}, v{vTG}\nv_mov_b32 v{SN+7}, 0')
        self.srd(SA, P(5), 2048 * 1024)
        self.srd(SB, P(8), 512 * 1024)
        self.srd(SC, P(9), 512 * 1024)
        self.stamp(11)
        def bdma(half, only=None):
            if half == 0: a(f's_mul_i32 s{sT1}, s{sSW}, {4*1040}\ns_lshl_b32 s{sT2}, s{sPB}, 15\ns_lshl_b32 s{sT3}, s{sSW}, 13\ns_add_u32 s{sT2}, s{sT2}, s{sT3}\ns_add_u32 s{sT2}, s{sT2}, s{sHB}')
            for pl, srd in ((0, SB), (1, SC)):
                for m in range(4):
                    if only is not None and only != 4 * pl + m: continue
                    a(f's_add_u32 m0, s{sT1}, {L_A1 + ((2*half + pl)*16 + m)*1040}\ns_xor_b32 s{sT0}, s{sT2}, {2048*m + 512*half}')
                    a(f'buffer_load_dwordx4 v{vBD}, s[{srd}:{srd+3}], s{sT0} offen lds')
        def xread(half):
            for s in range(16): a(f'ds_read_b128 {q4(64*half + 4*s)}, v{vXR2 if s & 4 else vXR} offset:{32*s}')
        def rowdma(srd, base, sg, n):
            for m in range(n):
                if m % 4 == 0: a(f's_add_u32 m0, s{sT1}, {base + m*1040}\ns_add_u32 s{sT0}, s{sg}, {1024*m}')
                else: a('s_add_u32 m0, m0, 16')
                a(f'buffer_load_dwordx4 v{vCL}, s[{srd}:{srd+3}], s{sT0} offen offset:{1024*(m%4)} lds')
        self.wait(F_A1, sleep=opt('a1s', 4))
        self.stamp(10)
        a(f'ds_read_b64 {pr(SN+8)}, v{SN+4} offset:{F_KMAX}')
        xdma(0, range(2)); a(f's_mov_b32 s{sT0}, {f2u(3400.0):#x}\ns_waitcnt lgkmcnt(0)')
        a(f'v_mul_f32 v{vT}, v{SN+8}, v{vQ}\nv_cmp_nge_f32 vcc, s{sT0}, v{vT}' + (f'\nv_readfirstlane_b32 s{sXC}, v{SN+9}' if XC else '') + f'\ns_cmp_eq_u64 vcc, 0\ns_cselect_b32 s{sT0}, 1, 2\nv_mov_b32 v{vQ}, s{sT0}')
        a(f'ds_write_b32 v{vS}, v{vQ} offset:{F_S[0]}')
        bdma(0); xdma(0, range(2, 16))
        a('s_waitcnt vmcnt(0)')
        self.sig(F_S[1])
        self.stamp(4)
        xread(0)
        self.wait(F_S[1], sleep=1)
        self.stamp(5)
        GR, GI, BT = 128, 144, 160
        PD = 2 * opt('s1depth', 1)
        lq = []
        def bread(q):
            s, pl = q // 2, q % 2
            a(f'ds_read_b128 {q4(BT + 4*(q%4))}, v{vHB if s & 4 else vHA} offset:{((2*(s//16) + pl)*16)*1040 + 32*(s%16)}')
            lq.append(('b', q))
        a(f's_setprio {opt("gprio1", 0)}')
        for q in range(PD): bread(q)
        XQ = opt('xq', 21)
        for q in range(1, 64, 2):
            s = q // 2
            need = max([i for i, x in enumerate(lq) if x == ('b', q) or x == ('x', s)] + [-1])
            if need >= 0:
                a(f's_waitcnt lgkmcnt({len(lq) - 1 - need})')
                del lq[:need + 1]
            for pl, Gx in ((0, GR), (1, GI)):
                a(f'v_mfma_f32_32x32x16_bf16 {t16(Gx)}, {q4(4*s)}, {q4(BT + 4*((q-1+pl)%4))}, {"0" if s == 0 else t16(Gx)}')
            if q - 1 + PD == 32:
                a('s_setprio 3')
                self.wait(F_S[2], sleep=1); lq.clear()
                a(f's_setprio {opt("gprio1", 0)}')
                self.stamp(12)
            if XQ < q <= XQ + 32:
                sx = (q - XQ) // 2 - 1
                a(f'ds_read_b128 {q4(64 + 4*sx)}, v{vXR2 if sx & 4 else vXR} offset:{32*sx}'); lq.append(('x', 16 + sx))
            if q + PD < 64: bread(q - 1 + PD); bread(q + PD)
            if s < 2:
                for m in range(4): bdma(1, 4 * s + m)
            elif s < 6: xdma(1, range(4 * s - 8, 4 * s - 4))
            elif opt('pad1', 0): a(f's_nop {opt("pad1", 0) - 1}')
            if q == XQ:
                a('s_waitcnt vmcnt(0)')
                self.sig(F_S[2]); lq.append(('s', 0))
                a(f's_or_b32 s{sT0}, s2, s{sSW}\ns_cbranch_scc1 L_noep')
                a(f's_mov_b64 exec, 1\nbuffer_store_dword v{vTG}, off, s[{SWS}:{SWS+3}], 0 sc1\ns_mov_b64 exec, -1')
                a('L_noep:')
                a(f's_cmp_lg_u32 s{sTB}, 0\ns_cbranch_scc1 L_nozero')
                a(f's_lshl_b32 s{sT0}, s{sPB}, 14\ns_lshl_b32 s{sT1}, s{sSW}, 11\ns_add_u32 s{sT0}, s{sT0}, s{sT1}\ns_add_u32 s{sT0}, s{sT0}, {WS_EBUF:#x}')
                for n in range(2): a(f'buffer_store_dwordx4 {q4(SN+4)}, v{vL16}, s[{SWS}:{SWS+3}], s{sT0} offen offset:{1024*n} sc1')
                a('L_nozero:')
                a(f's_lshr_b32 s{sT0}, s{sSW}, 1\ns_and_b32 s{sT1}, s{sRB}, 1\ns_cmp_lg_u32 s{sT0}, s{sT1}\ns_cbranch_scc1 L_nosent')
                a(f's_lshl_b32 s{sT1}, s{sCG}, 12\ns_add_u32 s{sT0}, s{sXB}, s{sT1}\ns_add_u32 s{sT0}, s{sT0}, {WS_OBUF:#x}')
                self.xstore([f'buffer_store_dwordx4 {q4(SN)}, v{vL16}, s[{SWS}:{SWS+3}], s{sT0} offen offset:{1024*n}' for n in range(4)], 's')
                a('L_nosent:')
                if opt('pf', 1): self.prefetch((10, 11, 4), vPF)
        a('s_setprio 3')
        self.stamp(6)
        if opt('stop', 0) == 6: self.end(); return
        RE = 'op_sel:[0,0,0] op_sel_hi:[0,1,1]'
        IM = 'op_sel:[1,0,0] op_sel_hi:[1,1,1]'
        T0, T1 = 8, 10
        def pstep(dr, di, sr, si, l, ur, ui, ns=0, nu=0):
            a(f'v_pk_fma_f32 {pr(T0)}, {pr(l)}, {pr(si)}, {pr(ur)} {IM} neg_lo:[{1-ns},0,0] neg_hi:[{1-ns},0,0]')
            a(f'v_pk_fma_f32 {pr(T1)}, {pr(l)}, {pr(sr)}, {pr(ui)} {IM} neg_lo:[0,0,{nu}] neg_hi:[0,0,{nu}]')
            a(f'v_pk_fma_f32 {pr(dr)}, {pr(l)}, {pr(sr)}, {pr(T0)} {RE}')
            a(f'v_pk_fma_f32 {pr(di)}, {pr(l)}, {pr(si)}, {pr(T1)} {RE} neg_lo:[{ns},0,0] neg_hi:[{ns},0,0]')
        def cstep(dr, di, sr, si, l, ur, ui):
            a(f'v_fma_f32 v{T0}, -v{l+1}, v{si}, v{ur}\nv_fma_f32 v{T1}, v{l+1}, v{sr}, v{ui}\nv_fma_f32 v{dr}, v{l}, v{sr}, v{T0}\nv_fma_f32 v{di}, v{l}, v{si}, v{T1}')
        def zstep(d, s, l, u):
            a(f'v_pk_fma_f32 {pr(T0)}, {pr(l)}, {pr(s)}, {pr(u)} {RE}')
            a(f'v_pk_fma_f32 {pr(d)}, {pr(l)}, {pr(s)}, {pr(T0)} op_sel:[1,1,0] op_sel_hi:[1,0,1] neg_lo:[1,0,0]')
        def cmul(r, i, neg):
            a(f'v_pk_mul_f32 {pr(T0)}, {pr(CC)}, {pr(i)} op_sel:[1,0] op_sel_hi:[1,1]')
            a(f'v_pk_mul_f32 {pr(T1)}, {pr(CC)}, {pr(r)} op_sel:[1,0] op_sel_hi:[1,1]')
            a(f'v_pk_fma_f32 {pr(r)}, {pr(CC)}, {pr(r)}, {pr(T0)} {RE} neg_lo:[0,0,{neg}] neg_hi:[0,0,{neg}]')
            a(f'v_pk_fma_f32 {pr(i)}, {pr(CC)}, {pr(i)}, {pr(T1)} {RE} neg_lo:[{neg},0,1] neg_hi:[{neg},0,1]')
        ER, EI, EE = 12, 14, 16
        pstep(ER, EI, GR, GI, L1, GR + 2, GI + 2, 1, 1)
        for r in range(4, 16, 2): pstep(ER, EI, ER, EI, L1, GR + r, GI + r, 0, 1)
        cstep(EE, EE + 1, ER, EI, L8, ER + 1, EI + 1)
        a(f'ds_write_b64 v{vSX}, {pr(EE)} offset:{L_SXO}')
        self.sig(F_S[3])
        self.srd(SB, P(10), 512 * 1024)
        self.srd(SC, P(11), 512 * 1024)
        if HR_:
            a(f's_bitcmp1_b32 s{sCG}, 2\ns_cselect_b32 s{SB}, s{P(11)}, s{P(10)}\ns_cselect_b32 s{SB+1}, s{P(11)+1}, s{P(10)+1}\ns_cselect_b32 s{SC}, s{P(10)}, s{P(11)}\ns_cselect_b32 s{SC+1}, s{P(10)+1}, s{P(11)+1}')
        a(f's_lshl_b32 s{sT3}, s{sSW}, 1\ns_mov_b32 s{sM0}, 0\ns_mov_b32 s{sM0+1}, -1')
        a(f's_lshl_b32 s{sT4}, s{sPB}, 14\ns_lshl_b32 s{sT1}, s{sTB}, 9\ns_add_u32 s{sT4}, s{sT4}, s{sT1}\ns_add_u32 s{sT4}, s{sT4}, {WS_EBUF:#x}')
        self.wait(F_S[3], sleep=1)
        for c in range(7): a(f'ds_read_b64 {pr(20+2*c)}, v{vP8} offset:{(c//2)*XW + L_SXO + (c%2)*256}')
        a('s_waitcnt lgkmcnt(0)')
        for c in range(7):
            a(f's_cmp_lt_u32 s{sT3}, {c}\ns_cbranch_scc1 L_lh_done')
            a(f's_cmp_gt_u32 s{sT3}, {c}\ns_cselect_b64 exec, -1, s[{sM0}:{sM0+1}]')
            zstep(LC, LC, L16, 20 + 2 * c)
        zstep(vTG - 2, LC, L16, EE)
        a(f's_add_u32 s{sT0}, s{sT4}, {16*512 - 512}\nbuffer_store_dwordx4 v[{vTG-2}:{vTG+1}], v{vL16}, s[{SWS}:{SWS+3}], s{sT0} offen sc1')
        a('L_lh_done:\ns_mov_b64 exec, -1')
        self.stamp(7)
        def cdma(srd, base):
            a(f's_mul_i32 s{sT1}, s{sSW}, {16*1040}\ns_lshl_b32 s{sT2}, s{sCG}, 16\ns_lshl_b32 s{sT3}, s{sSW}, 14\ns_add_u32 s{sT2}, s{sT2}, s{sT3}')
            rowdma(srd, base, sT2, 16)
        if not opt('cmf', 1): cdma(SB, L_A1)
        for r in range(0, 16, 2): cmul(GR + r, GI + r, 1)
        if opt('cmf', 1): cdma(SB, L_A1)
        a(f's_mov_b32 s{sCNT}, 100000')
        a('L_eg:')
        for q in range(8): a(f'buffer_load_dwordx3 v[{24+4*q}:{26+4*q}], v{vEA}, s[{SWS}:{SWS+3}], s{sT4} offen offset:{512*q} sc1')
        a('s_waitcnt vmcnt(0)')
        a(f'v_cmp_ne_u32 vcc, s{sTAG}, v26')
        for q in range(1, 8): a(f'v_cmp_ne_u32 s[{sM1}:{sM1+1}], s{sTAG}, v{26+4*q}\ns_or_b64 vcc, vcc, s[{sM1}:{sM1+1}]')
        a(f's_cbranch_scc0 L_egd\ns_sleep {opt("esleep", 10)}\ns_sub_u32 s{sCNT}, s{sCNT}, 1\ns_cbranch_scc0 L_eg')
        a('L_egd:')
        self.sig(F_S[9])
        self.stamp(8)
        for q in range(1, 8): zstep(24, 24, L128, 24 + 4 * q)
        a(f'v_pk_mul_f32 {pr(T0)}, {pr(FF)}, {pr(24)} op_sel:[0,0] op_sel_hi:[0,1]')
        a(f'v_pk_fma_f32 {pr(20)}, {pr(FF)}, {pr(24)}, {pr(T0)} op_sel:[1,1,0] op_sel_hi:[1,0,1] neg_lo:[1,0,0]')
        a(f'v_mov_b32 v22, v20\nv_mov_b32 v23, v21\nv_permlane32_swap_b32 v20, v22\nv_permlane32_swap_b32 v21, v23\nv_pk_add_f32 {pr(20)}, {pr(20)}, {pr(22)}')
        IR, II = 24, 26
        cstep(IR, II, 20, 21, WW, LC, LC + 1)
        cstep(IR + 1, II + 1, IR, II, L8, ER, EI)
        cmul(IR, II, 0)
        pstep(GR, GI, IR, II, L1, GR, GI)
        for r in range(2, 16, 2): pstep(GR + r, GI + r, GR + r - 2, GI + r - 2, L1, GR + r, GI + r)
        for pl, Gx in ((0, GR), (1, GI)):
            for j in range(8):
                r0 = 4 * (j % 4) + j // 4
                a(f'v_cvt_pk_bf16_f32 v{28+8*pl+j}, v{Gx+r0}, v{Gx+r0+2}')
            a(f'ds_write_b128 v{vTW}, {q4(28+8*pl)} offset:{L_TBO+2048*pl}\nds_write_b128 v{vTW}, {q4(32+8*pl)} offset:{L_TBO+2048*pl+16}')
        for pl in range(2):
            for f in range(2):
                d = 44 + 8 * pl + 4 * f
                a(f'ds_read_b64_tr_b16 {pr(d)}, v{vTR} offset:{L_TBO+2048*pl+1024*f}\nds_read_b64_tr_b16 {pr(d+2)}, v{vTR} offset:{L_TBO+2048*pl+1024*f+256}')
        a(f's_lshl_b32 s{sT0}, s{sXB}, 1\ns_lshl_b32 s{sT1}, s{sPB}, 11\ns_add_u32 s{sT0}, s{sT0}, s{sT1}\ns_add_u32 s{sT0}, s{sT0}, {WS_HBUF:#x}\ns_add_u32 s{sT1}, s{sT0}, 0x8000')
        hs = []
        for pl in range(2):
            for f in range(2):
                d = 44 + 8 * pl + 4 * f
                hs += [f's_waitcnt lgkmcnt({6 - 4*pl - 2*f})', f'buffer_store_dwordx4 {q4(d)}, v{vL16}, s[{SWS}:{SWS+3}], s{sT0 if pl == 0 else sT1} offen offset:{1024*f}']
        self.xstore(hs, 'h')
        YK, YS, XF, HR = 128, 144, 184, 160
        a(f's_lshl_b32 s{sT0}, s{sTP}, 15\ns_lshl_b32 s{sT1}, s{sCT}, 6\ns_add_u32 s{sT0}, s{sT0}, s{sT1}')
        a(f'buffer_load_dwordx4 {q4(XF)}, v{vXS}, s[{SA}:{SA+3}], s{sT0} offen\nbuffer_load_dwordx4 {q4(XF+4)}, v{vXS}, s[{SA}:{SA+3}], s{sT0} offen offset:32')
        a(f's_lshr_b32 s{sT4}, s{sXB}, 4\ns_lshl_b32 s{sT3}, s{sPB}, 7\ns_add_u32 s{sT4}, s{sT4}, s{sT3}\ns_add_u32 s{sT4}, s{sT4}, {WS_HFLAG:#x}')
        self.wait(F_S[9], sleep=1)
        if opt('cearly', 1):
            for j in range(16): a(f'ds_read_b128 {q4(8*j)}, v{vCK} offset:{32*j}\nds_read_b128 {q4(8*j+4)}, v{vCS} offset:{32*j}')
            self.sig(F_S[6])
        a(f's_mov_b32 s{sM1}, -1\ns_mov_b32 s{sM1+1}, 0\ns_waitcnt vmcnt(2)')
        a(f's_mov_b64 exec, s[{sM1}:{sM1+1}]')
        self.xstore([f'buffer_store_dword v{vTG}, v{vOA}, s[{SWS}:{SWS+3}], s{sT4} offen'], 'h')
        a('s_mov_b64 exec, -1')
        self.stamp(9)
        if opt('stop', 0) == 9: self.end(); return
        LATE = opt('late', 1)
        if not LATE: cdma(SC, L_A2)
        if not opt('cearly', 1):
            for j in range(16): a(f'ds_read_b128 {q4(8*j)}, v{vCK} offset:{32*j}\nds_read_b128 {q4(8*j+4)}, v{vCS} offset:{32*j}')
            self.sig(F_S[6])
        a(f's_waitcnt vmcnt({1 if LATE else 17})')
        a(f'v_mfma_f32_32x32x16_bf16 {t16(YK)}, {q4(XF)}, {q4(DG)}, 0')
        a(f'v_mfma_f32_32x32x16_bf16 {t16(YK)}, {q4(XF+4)}, {q4(DG+4)}, {t16(YK)}')
        self.srd(SB, P(4), 512 * 1024)
        a(f's_lshl_b32 s{sT4}, s{sSW}, 17\ns_lshl_b32 s{sT1}, s{sCG}, 7\ns_add_u32 s{sT4}, s{sT4}, s{sT1}\ns_and_b32 s{sT1}, s{sCG}, 3\ns_lshl_b32 s{sT1}, s{sT1}, 16\ns_xor_b32 s{sT4}, s{sT4}, s{sT1}\ns_lshl_b32 s{sT1}, s{sSW}, 14\ns_add_u32 m0, s{sT1}, {L_A1}')
        self.wait(F_S[6], sleep=1)
        for m in range(16):
            a(f's_xor_b32 s{sT0}, s{sT4}, {8192*m:#x}\nbuffer_load_dwordx4 v{vWI}, s[{SB}:{SB+3}], s{sT0} offen lds\ns_add_u32 m0, m0, 1024')
        a(f's_lshl_b32 s{sT0}, s{sTP}, 11\ns_add_u32 s{sT0}, s{sT0}, {WS_HFLAG:#x}\ns_mov_b64 exec, 0xffff')
        a(f's_mov_b32 s{sCNT}, 100000')
        a('L_gph:')
        a(f'buffer_load_dword v{vT}, v{vHF}, s[{SWS}:{SWS+3}], s{sT0} offen sc1\ns_waitcnt vmcnt(0)\nv_cmp_ne_u32 vcc, s{sTAG}, v{vT}\ns_cbranch_vccz L_gdh')
        a(f's_sleep {opt("hsleep", 10)}\ns_sub_u32 s{sCNT}, s{sCNT}, 1\ns_cbranch_scc0 L_gph')
        a('L_gdh:\ns_mov_b64 exec, -1')
        self.sig(F_S[5])
        self.stamp(13)
        if opt('stop', 0) == 10: self.end(); return
        a(f's_lshl_b32 s{sT3}, s{sTP}, 16\ns_and_b32 s{sT0}, s{sSW}, 1\ns_lshl_b32 s{sT0}, s{sT0}, 14\ns_add_u32 s{sT3}, s{sT3}, s{sT0}\ns_add_u32 s{sT3}, s{sT3}, {WS_HBUF:#x}')
        if HR_: a(f's_and_b32 s{sT0}, s{sCG}, 3\ns_lshl_b32 s{sT0}, s{sT0}, 12\ns_add_u32 s{sT3}, s{sT3}, s{sT0}\ns_and_b32 s{sT0}, s{sCG}, 4\ns_lshl_b32 s{sT0}, s{sT0}, 13\ns_add_u32 s{sT3}, s{sT3}, s{sT0}')
        NR = 13
        vq = []
        def hload(j):
            go = lambda g: ((g % 4) << 12) | ((g // 4) << 15)
            if j % 4 == 0 and j > 0: a(f's_xor_b32 s{sT3}, s{sT3}, {go(j // 4) ^ go(j // 4 - 1):#x}')
            a(f'buffer_load_dwordx4 {q4(HR + 4*(j%NR))}, v{vL16}, s[{SWS}:{SWS+3}], s{sT3} offen offset:{1024*(j%4)} sc1')
            vq.append(('h', j))
        for j in range(NR - 1): hload(j)
        a(f's_setprio {opt("gprio4", 0)}')
        lq = []
        def cread(j, k):
            a(f'ds_read_b128 {q4(8*(j%16) + 4*k)}, v{vCS2 if k else vCK2} offset:{32*(j%16)}')
        if not LATE:
            a('s_setprio 3')
            self.wait(F_S[5], sleep=1)
            a(f's_setprio {opt("gprio4", 0)}')
        else:
            a(f's_mul_i32 s{sT1}, s{sSW}, {16*1040}\ns_lshl_b32 s{sT2}, s{sCG}, 16\ns_lshl_b32 s{sT4}, s{sSW}, 14\ns_add_u32 s{sT2}, s{sT2}, s{sT4}')
        FJ = opt('fj', 22); CS = opt('cs', 9); CW = opt('cw', 11)
        pend = [(jj, k) for jj in range(16, 32) for k in range(2)]
        SF = opt('sf', 1)
        for j in range(FJ + 1 if SF else 32):
            w = 's_waitcnt lgkmcnt(0)'
            if ('h', j) in vq:
                need = vq.index(('h', j))
                w = f's_waitcnt vmcnt({len(vq) - 1 - need}) lgkmcnt(0)'
                del vq[:need + 1]
            a(w)
            c = 8 * (j % 16); h = q4(HR + 4 * (j % NR))
            a(f'v_mfma_f32_32x32x16_bf16 {t16(YK)}, {h}, {q4(c)}, {t16(YK)}')
            a(f'v_mfma_f32_32x32x16_bf16 {t16(YS)}, {h}, {q4(c+4)}, {"0" if j == 0 else t16(YS)}')
            if not LATE:
                if j < 16: cread(16 + j, 0)
                if 15 <= j < min(31, FJ): cread(j + 1, 1)
                if j == FJ:
                    for jj in range(j + 1, 32): cread(jj, 1)
            else:
                if j < 4:
                    for m in range(4 * j, 4 * j + 4):
                        if m % 4 == 0: a(f's_add_u32 m0, s{sT1}, {L_A2 + m*1040}\ns_add_u32 s{sT0}, s{sT2}, {1024*m}')
                        else: a('s_add_u32 m0, m0, 16')
                        a(f'buffer_load_dwordx4 v{vCL}, s[{SC}:{SC+3}], s{sT0} offen offset:{1024*(m%4)} lds')
                        vq.append(('c', m))
                if j == CS:
                    need = vq.index(('c', 15))
                    a(f's_waitcnt vmcnt({len(vq) - 1 - need})'); del vq[:need + 1]
                    self.sig(F_WO)
                if j == CW:
                    a('s_setprio 3')
                    self.wait(F_WO, sleep=1)
                    a(f's_setprio {opt("gprio4", 0)}')
                if j >= CW:
                    n = len(pend) if j >= FJ else 2
                    for _ in range(n):
                        if pend and pend[0][0] - 16 <= j: cread(*pend.pop(0))
                    assert not pend or pend[0][0] > j + 1
            if j + NR - 1 < 32: hload(j + NR - 1)
            if 's4st' in OPT and j in (0, 4, 10, 16, 22, 31): self.stamp({0: 1, 4: 3, 10: 4, 16: 5, 22: 10, 31: 11}[j])
            HJ = opt('hj', 20)
            if opt('pad4', 0) and j < HJ: a(f's_nop {opt("pad4", 0) - 1}')
            if j == HJ - 1:
                a('s_setprio 3')
                self.wait(F_AX, sleep=opt('hjs', 4), va=vS); lq.clear()
                a(f's_setprio {opt("gprio5", 0)}')
        if SF:
            assert LATE and not pend and FJ + NR - 1 >= 31
            self.sig(F_S[7])
            a('s_waitcnt vmcnt(0) lgkmcnt(0)')
            for j in range(FJ + 1, 32): a(f'v_mfma_f32_32x32x16_bf16 {t16(YS)}, {q4(HR + 4*(j%NR))}, {q4(8*(j%16)+4)}, {t16(YS)}')
            ky = [f'v_mfma_f32_32x32x16_bf16 {t16(YK)}, {q4(HR + 4*(j%NR))}, {q4(8*(j%16))}, {t16(YK)}' for j in range(FJ + 1, 32)]
            a(ky.pop(0)); a(ky.pop(0))
        a('s_setprio 3')
        if not SF: self.sig(F_S[7])
        self.srd(SOUT, P(14), 2048 * 4096)
        a(f's_lshl_b32 s{sT2}, s{sTP}, 17\ns_lshl_b32 s{sT1}, s{sCT}, 7\ns_add_u32 s{sT2}, s{sT2}, s{sT1}')
        self.wait(F_S[7], sleep=1)
        for q in range(4):
            a(f'ds_write_b128 v{vYW}, {q4(YS+4*q)} offset:{1024*q}')
            if SF and ky and q < 3: a(ky.pop(0))
        self.sig(F_S[8])
        if SF:
            for x in ky: a(x)
            a('s_nop 0')
        if 's4st' in OPT: self.stamp(12)
        self.wait(F_S[8], sleep=1)
        for q in range(4): a(f'ds_read_b128 {q4(YS+4*q)}, v{vYR} offset:{1024*q}')
        a('s_waitcnt lgkmcnt(0)')
        fl = {0: '', 1: ' sc1', 2: ' nt', 3: ' sc0 sc1', 4: ' sc1 nt', 5: ' sc0 nt', 6: ' sc0 sc1 nt'}[opt('yfl', 2)]
        for r in range(0, 16, 2): a(f'v_pk_add_f32 {pr(YS+r)}, {pr(YK+r)}, {pr(YS+r)}')
        for r in range(16):
            a(f's_add_u32 s{sT0}, s{sT2}, {((r % 4) + 8 * (r // 4)) * 4096}')
            if 'noy' not in OPT: a(f'buffer_store_dword v{YS+r}, v{vOA}, s[{SOUT}:{SOUT+3}], s{sT0} offen offset:2048{fl}')
        self.stamp(2)
        self.end()

HEADER = open('cdna_kernels/' + NAME + '.s.ref').read().split('; Override launch')[0]

DOC = '''; ---------------------------------------------------------------------------------------------
; ---------------------------------------------------------------------------------------------
'''

def make(stamps=False):
    g = G(stamps)
    body = g.build()
    txt = HEADER + f'; @launch grid=(256,1,1) block=(512,1,1) lds={L_TOTAL}\n' + DOC
    txt += f'''.amdgcn_target "amdgcn-amd-amdhsa--gfx950"
.text
.globl {NAME}_kernel
.p2align 8
.type {NAME}_kernel,@function
{NAME}_kernel:
{body}.section .rodata,"a"
.p2align 6
.amdhsa_kernel {NAME}_kernel
  .amdhsa_next_free_vgpr 256
  .amdhsa_next_free_sgpr 102
  .amdhsa_accum_offset 256
  .amdhsa_group_segment_fixed_size 0
  .amdhsa_kernarg_size 136
  .amdhsa_user_sgpr_count 2
  .amdhsa_user_sgpr_kernarg_segment_ptr 1
  .amdhsa_system_sgpr_workgroup_id_x 1
.end_amdhsa_kernel
'''
    return txt, g.a.n_ins

if __name__ == '__main__':
    pos = [x for x in sys.argv[1:] if not x.startswith('--')]
    out = pos[0] if pos else 'cdna_kernels/' + NAME + '.s'
    txt, n = make(stamps='stamps' in OPT)
    open(out, 'w').write(txt)
    print('wrote', out, n, 'instructions')
```

```python
import sys, math, struct
from asm import Asm

NAME = 'concat_heads__grouped_kv_mqa__ssm_conv_s5__prompt'
OPT = dict((x[2:].split('=') + ['1'])[:2] for x in sys.argv if x.startswith('--'))
def opt(k, d): return int(OPT.get(k, d))
XC = opt('xco', 0) or opt('xch', 0) or opt('xcs', 0)
def f2u(x): return struct.unpack('<I', struct.pack('<f', x))[0]
def pr(r): return f'v[{r}:{r+1}]'
def q4(r): return f'v[{r}:{r+3}]'
def t16(r): return f'v[{r}:{r+15}]'

WS_KVFLAG = 0x8000
WS_KVIMG = 0x10000
WS_EBUF = 0x40000
WS_HFLAG = 0x80000
WS_OBUF = 0x100000
WS_HBUF = 0x400000
WS_DBG = 0x800000
WS_SIZE = 0x1000000
def FL(i): return 16 * i
F_L1, F_L2, F_L4, F_L6 = FL(0), FL(1), FL(2), FL(3)
F_QP, F_KVD = FL(4), FL(5)
F_A1, F_AX, F_AY = FL(6), FL(7), FL(8)
F_S = [FL(9 + i) for i in range(10)]
F_WO = FL(19)
F_OX = FL(20)
F_SL = [FL(22 + i) for i in range(3)]
F_KMAX, F_XC, F_KST = FL(25), FL(25) + 4, FL(25) + 8
F_TAG, F_QA = FL(26), FL(27)
L_QN = 512
L_ACCF = 1024
L_QF = 5120
L_ACCD = 13312
L_WKV = L_ACCD
L_A1 = 29696
L_A2 = 96256
L_MX = L_A2 + 66560
L_TOTAL = 163840
XW = 16640
L_SXO = 1024
L_TBO = 2048

sWV, sRB, sCG, sTB, sPB, sTAG = 3, 4, 5, 6, 7, 8
sT0, sT1, sT2, sT3, sT4, sT5 = 9, 10, 11, 12, 13, 14
sCNT = 15
P = lambda i: 16 + 2 * i
SA, SB, SC, SWS, SOUT = 52, 56, 60, 64, 68
sSW = 72
sPH, sTJ, sOW = 73, 74, 75
sM0, sM1 = 76, 78
sQH = 81
sOB, sPRE = 101, 81
sXC = 100
sST = 82
SPIN = 400000
vT, vLN, vL16, vEP, vF, vS, vONE = 249, 250, 251, 252, 253, 254, 255

class G:
    def __init__(self, stamps=False):
        self.a = Asm(); self.stamps = stamps; self.cyc = True
    def srd(self, d, p, size):
        self.a(f's_mov_b32 s{d}, s{p}\ns_mov_b32 s{d+1}, s{p+1}\ns_mov_b32 s{d+2}, {size:#x}\ns_mov_b32 s{d+3}, 0x20000')
    def stamp(self, i):
        if self.stamps and not (getattr(self, 'mute', False) and i != 15):
            self.a(f's_memrealtime s[98:99]\ns_waitcnt lgkmcnt(0)\ns_mov_b32 s{sST+i}, s98')
            m = {5: 8, 6: 9}
            if self.cyc and i in m:
                self.a(f's_memtime s[98:99]\ns_waitcnt lgkmcnt(0)\ns_mov_b32 s{sST+m[i]}, s98')
    def end(self):
        a = self.a
        if self.stamps:
            a('s_waitcnt vmcnt(0)')
            self.stamp(15)
            if 'diag' in OPT and self.cyc != ('diagsv' in OPT):
                da, db = [int(x) for x in OPT['diag'].split(',')]
                L = a.label('DG')
                a(f's_sub_u32 s{sT1}, s{sST+db}, s{sST+da}')
                if 'diagxc' in OPT: a(f's_xor_b32 s{sT1}, s{sXC}, {opt("diagxc", 0) - 1}\ns_mul_i32 s{sT1}, s{sT1}, 1000')
                if 'diagcyc' in OPT: a(f's_lshr_b32 s{sT1}, s{sT1}, 1')
                else: a(f's_lshl_b32 s{sT1}, s{sT1}, 3')
                a(f's_cmp_eq_u32 s{sST+db}, 0\ns_cselect_b32 s{sT1}, 0, s{sT1}')
                a(f's_min_u32 s{sT1}, s{sT1}, 100000\ns_add_u32 s{sT1}, s{sT1}, s{sST+15}')
                a(f'{L}:\ns_sleep 4\ns_memrealtime s[98:99]\ns_waitcnt lgkmcnt(0)\ns_cmp_lt_u32 s98, s{sT1}\ns_cbranch_scc1 {L}')
            a(f's_lshl_b32 s{sT0}, s2, 3\ns_add_u32 s{sT0}, s{sT0}, s{sWV}\ns_lshl_b32 s{sT0}, s{sT0}, 6\ns_add_u32 s{sT0}, s{sT0}, {WS_DBG:#x}')
            a('s_mov_b64 exec, 1')
            for i in range(16):
                a(f'v_mov_b32 v{vT}, s{sST+i}\nbuffer_store_dword v{vT}, off, s[{SWS}:{SWS+3}], s{sT0} offset:{4*i}')
            a('s_waitcnt vmcnt(0)')
        a('s_endpgm')
    def sig(self, off, va=vS):
        self.a(f'ds_write_b32 v{va}, v{vONE} offset:{off}')
    def wait(self, off, sleep=1, va=vF):
        a = self.a; L = a.label('W'); D = a.label('WD')
        a(f's_mov_b32 s{sCNT}, {SPIN}')
        a(f'{L}:')
        a(f'ds_read_b32 v{vT}, v{va} offset:{off}\ns_waitcnt lgkmcnt(0)\nv_cmp_eq_u32 vcc, 0, v{vT}\ns_cbranch_vccz {D}')
        a((f's_sleep {sleep}\n' if sleep else '') + f's_sub_u32 s{sCNT}, s{sCNT}, 1\ns_cbranch_scc0 {L}')
        a(f'{D}:')
    def xstore(self, lines, kind='o'):
        a = self.a
        if not opt('xc' + kind, 0):
            for x in lines: a(x + (' sc1' if x.startswith('buffer') else ''))
            return
        L = a.label('X'); D = a.label('XD')
        a(f's_cmp_eq_u32 s{sXC}, 1\ns_cbranch_scc0 {L}')
        for x in lines: a(x + (' nt' if x.startswith('buffer') and opt('xnt', 0) else ''))
        a(f's_branch {D}')
        a(f'{L}:')
        for x in lines: a(x + (' sc1' if x.startswith('buffer') else ''))
        a(f'{D}:')
    def get_tag(self):
        self.a(f'v_readfirstlane_b32 s{sTAG}, v{vEP}\ns_mul_i32 s{sTAG}, s{sTAG}, 0x9E3779B1\ns_add_u32 s{sTAG}, s{sTAG}, 0x7F4A7C15')

    def build(self):
        a = self.a
        a('s_cmp_ge_u32 s2, 256\ns_cbranch_scc1 L_exit')
        a('s_load_dwordx16 s[16:31], s[0:1], 0\ns_load_dwordx16 s[32:47], s[0:1], 64\ns_load_dwordx2 s[48:49], s[0:1], 128')
        if self.stamps:
            for i in range(16): a(f's_mov_b32 s{sST+i}, 0')
        a(f'v_and_b32 v{vLN}, 63, v0\nv_lshrrev_b32 v{vT}, 6, v0\nv_lshlrev_b32 v{vL16}, 4, v{vLN}\nv_readfirstlane_b32 s{sWV}, v{vT}')
        if not opt('ent', 0): self.code_prefetch()
        a(f's_and_b32 s{sT0}, s2, 7\ns_lshr_b32 s{sT1}, s2, 3')
        a(f's_lshr_b32 s{sT2}, s{sT1}, 3\ns_lshl2_add_u32 s{sRB}, s{sT0}, s{sT2}\ns_and_b32 s{sCG}, s{sT1}, 7')
        a(f's_lshr_b32 s{sTB}, s{sRB}, 1\ns_and_b32 s{sPB}, s{sT1}, 15\ns_and_b32 s{sSW}, s{sWV}, 3')
        a(f's_cmp_ge_u32 s{sWV}, 4\ns_cbranch_scc1 L_service')
        a(f's_lshr_b32 s{sT5}, s{sCG}, 1\ns_lshl_b32 s{sT4}, s{sRB}, 16')
        def xa_rows(g):
            if g == 0: a(f's_lshl2_add_u32 s{sT0}, s{sT5}, s{sSW}\ns_lshl_b32 s{sT0}, s{sT0}, 2')
            else: a(f's_add_u32 s{sT0}, s{sT5}, {g}\ns_and_b32 s{sT0}, s{sT0}, 3\ns_lshl2_add_u32 s{sT0}, s{sT0}, s{sSW}\ns_lshl_b32 s{sT0}, s{sT0}, 2')
            a(f's_mul_i32 s{sT1}, s{sT0}, 1040\ns_add_u32 m0, s{sT1}, {L_A1}\ns_lshl_b32 s{sT0}, s{sT0}, 10\ns_add_u32 s{sT0}, s{sT0}, s{sT4}')
            if g == 0:
                a('s_waitcnt lgkmcnt(0)')
                self.stamp(0)
                self.srd(SA, P(0), 2048 * 1024)
            for n in range(4):
                fx = ['', ' nt', ' sc1 nt', ' sc0 sc1 nt', ' sc1', ' sc0 nt'][opt('xant', 0)] if g == 0 else ''
                a(f'buffer_load_dwordx4 v{vL16}, s[{SA}:{SA+3}], s{sT0} offen offset:{1024*n}{fx} lds')
                if n < 3: a('s_add_u32 m0, m0, 16')
        xa_rows(0)
        a(f's_bitcmp1_b32 s{sCG}, 0\ns_cselect_b32 s{SB}, s{P(3)}, s{P(2)}\ns_cselect_b32 s{SB+1}, s{P(3)+1}, s{P(2)+1}\ns_mov_b32 s{SB+2}, 0x4000\ns_mov_b32 s{SB+3}, 0x20000')
        a(f's_lshl_b32 s{sT0}, s{sWV}, 12\ns_add_u32 m0, s{sT0}, {L_WKV}')
        a(f'v_lshrrev_b32 v2, 1, v{vL16}\nv_and_b32 v2, 128, v2\nv_xor_b32 v2, v2, v{vL16}')
        for n in range(4):
            a(f'buffer_load_dwordx4 v2, s[{SB}:{SB+3}], s{sT0} offen offset:{1024*n} lds')
        self.srd(SC, P(1), 512 * 1024)
        NPQ = 0
        if opt('pfq', 0):
            G = opt('pfg', 6)
            a(f'v_lshlrev_b32 v3, {G}, v{vLN}\ns_lshr_b32 s{sT0}, s2, 3\ns_lshl_b32 s{sT0}, s{sT0}, 2\ns_add_u32 s{sT0}, s{sT0}, s{sSW}\ns_lshl_b32 s{sT0}, s{sT0}, 12')
            if G == 7: a(f's_mov_b32 s{sM0}, -1\ns_mov_b32 s{sM0+1}, 0\ns_mov_b64 exec, s[{sM0}:{sM0+1}]')
            a(f'buffer_load_dword v4, v3, s[{SC}:{SC+3}], s{sT0} offen'); NPQ = 1
            if opt('pfq', 0) > 1:
                for p in (8, 9):
                    self.srd(SOUT, P(p), 512 * 1024)
                    a(f'buffer_load_dword v4, v3, s[{SOUT}:{SOUT+3}], s{sT0} offen'); NPQ += 1
                self.srd(SOUT, P(5), 2048 * 1024)
                a(f's_lshr_b32 s{sT0}, s{sT0}, 1\ns_and_b32 s{sT1}, s2, 7\ns_lshl_b32 s{sT1}, s{sT1}, 18\ns_add_u32 s{sT0}, s{sT0}, s{sT1}\nv_lshrrev_b32 v3, 1, v3')
                a(f'buffer_load_dword v4, v3, s[{SOUT}:{SOUT+3}], s{sT0} offen'); NPQ += 1
            a('s_mov_b64 exec, -1')
        self.wimg_lane_addr(0, 1)
        a(f's_lshl_b32 s{sT3}, s{sSW}, 13\ns_lshl_b32 s{sT1}, s{sCG}, 7\ns_add_u32 s{sT3}, s{sT3}, s{sT1}\ns_and_b32 s{sT1}, s{sRB}, 3\ns_lshl_b32 s{sT1}, s{sT1}, 17\ns_add_u32 s{sT3}, s{sT3}, s{sT1}')
        a(f's_lshl_b32 s{sT2}, s{sSW}, 10')
        def wq_rows(c):
            for n in range(4 * c, 4 * c + 4):
                a(f's_add_u32 m0, s{sT2}, {L_A2 + 4096*n}\ns_xor_b32 s{sT0}, s{sT3}, {0x8000*n:#x}')
                a(f'buffer_load_dwordx4 v0, s[{SC}:{SC+3}], s{sT0} offen lds')
        FO = opt('fo', 1)
        if FO == 0: wq_rows(0)
        else: xa_rows(1)
        self.common_regs()
        self.srd(SWS, P(16), WS_SIZE)
        a('s_barrier')
        self.stamp(1)
        a(f's_waitcnt vmcnt({4 + NPQ})')
        self.sig(F_L1)
        if FO == 0: xa_rows(1)
        xa_rows(2); xa_rows(3)
        if FO == 1: wq_rows(0)
        if FO == 0: wq_rows(1)
        a('s_waitcnt vmcnt(4)')
        self.sig(F_L2)
        if FO == 1: wq_rows(1)
        wq_rows(2); wq_rows(3)
        self.stamp(2)
        a('s_waitcnt vmcnt(8)')
        self.sig(F_L4)
        if opt('lay', 1):
            a('s_branch L_attn')
            self.service()
            self.cyc = True; self.mute = False
            a('L_attn:')
            self.attention()
        else:
            self.attention()
            self.service()
        a('L_exit:\ns_endpgm')
        return a.finish()

    def code_prefetch(self):
        a = self.a
        if opt('cpf', 1):
            a(f's_cmp_lg_u32 s{sWV}, {opt("cpw", 5)}\ns_cbranch_scc1 L_nocpf')
            a(f's_getpc_b64 s[{sM0}:{sM0+1}]')
            a('L_pc:')
            a(f's_lshr_b32 s{sT0}, s2, 3\ns_mul_i32 s{sT0}, s{sT0}, 1536\ns_min_u32 s{sT0}, s{sT0}, L_exit-{NAME}_kernel-1536\ns_sub_u32 s{sM0}, s{sM0}, L_pc-{NAME}_kernel\ns_subb_u32 s{sM0+1}, s{sM0+1}, 0')
            a(f'v_min_u32 v2, 23, v{vLN}\nv_lshlrev_b32 v2, 6, v2\nv_add_u32 v2, s{sT0}, v2\nv_mov_b32 v3, s{sM0+1}\nv_add_co_u32 v2, vcc, s{sM0}, v2\nv_addc_co_u32 v3, vcc, 0, v3, vcc')
            a(f's_mov_b64 exec, 0xffffff\nglobal_load_dword v{vEP}, v[2:3], off\ns_mov_b64 exec, -1')
            a('L_nocpf:')

    def common_regs(self):
        self.a(f'v_and_b32 v{vF}, 3, v{vLN}\nv_lshlrev_b32 v{vF}, 2, v{vF}\ns_lshl_b32 s{sT0}, s{sSW}, 2\nv_mov_b32 v{vS}, s{sT0}\nv_mov_b32 v{vONE}, 1')

    def wimg_lane_addr(self, vd, vt):
        a = self.a
        a(f'v_lshrrev_b32 v{vt}, 2, v{vLN}\nv_and_b32 v{vt}, 4, v{vt}\nv_and_b32 v{vd}, 7, v{vLN}\nv_xor_b32 v{vd}, v{vd}, v{vt}\nv_lshlrev_b32 v{vd}, 4, v{vd}')
        a(f'v_lshrrev_b32 v{vt}, 3, v{vLN}\nv_lshl_add_u32 v{vd}, v{vt}, 10, v{vd}')

    def tr_parts(self, c0, r, wpart):
        a = self.a
        a(f'v_bfe_u32 v{c0}, v{vLN}, 4, 1\nv_lshlrev_b32 v{c0}, 5, v{c0}\nv_and_b32 v{r}, 3, v{vLN}\nv_lshl_add_u32 v{c0}, v{r}, 3, v{c0}\nv_bfe_u32 v{r}, v{vLN}, 2, 2')
        a(f's_and_b32 s{sT0}, s{sSW}, 1\nv_lshrrev_b32 v{wpart}, 1, v{r}\nv_xor_b32 v{wpart}, s{sT0}, v{wpart}\nv_lshl_add_u32 v{wpart}, v{wpart}, 6, v{c0}\nv_lshl_add_u32 v{wpart}, v{r}, 7, v{wpart}')

    def prefetch(self, ptrs, vd):
        a = self.a
        a(f's_lshr_b32 s{sT0}, s2, 3\ns_lshl_b32 s{sT0}, s{sT0}, 2\ns_add_u32 s{sT0}, s{sT0}, s{sSW}\ns_lshl_b32 s{sT0}, s{sT0}, 12')
        for p in ptrs:
            self.srd(SOUT, P(p), 512 * 1024)
            a(f'buffer_load_dword v{vEP}, v{vd}, s[{SOUT}:{SOUT+3}], s{sT0} offen')

    def attention(self):
        a = self.a
        K, V, S0, O, Q = 0, 64, 192, 224, 240
        vIDX, vA16, vA8, vQA, vL8 = 244, 245, 246, 247, 248
        R = dict(K=K, V=V, S0=S0, O=O, Q=Q, vIDX=vIDX, vA16=vA16, vA8=vA8, vQA=vQA, vL8=vL8, vM=vEP)
        a(f'v_and_b32 v{Q}, 11, v{vLN}\nv_cmp_eq_u32 vcc, 0, v{Q}\nv_mov_b32 v{Q}, 0x3f803f80\nv_cndmask_b32 v{vT}, 0, v{Q}, vcc')
        MK = opt('mask', 0)
        self.masked = lambda i: (MK >> i) & 1
        for i in range(16):
            for r in range(0 if self.masked(i) else 4, 8): a(f'v_mov_b32 v{V+8*i+r}, v{vT}')
        a(f'v_lshlrev_b32 v{vL8}, 3, v{vLN}\nv_mov_b32 v{vIDX}, 0xdddd')
        def init_state(ph0):
            for i in range(16): a(f'v_mov_b32 v{O+i}, 0')
            a(f's_mov_b32 s{sTJ}, s{sSW}\ns_mov_b32 s{sPH}, {ph0}')
            a(f's_lshl_b32 s{sT0}, s{sTJ}, 10\nv_add_u32 v{vQA}, s{sT0}, v{vL16}')
            a(f's_lshl_b32 s{sT0}, s{sTJ}, 11\nv_add_u32 v{vA16}, s{sT0}, v{vL16}\ns_lshl_b32 s{sT0}, s{sTJ}, 9\nv_add_u32 v{vA8}, s{sT0}, v{vL8}')
        init_state(0)
        FS = opt('fs', 6)
        a(f'v_lshlrev_b32 v{S0+4}, {FS}, v{vLN}\nv_mov_b32 v{S0+3}, 0')
        if XC: a(f's_getreg_b32 s{sXC}, hwreg(HW_REG_XCC_ID)')
        a(f's_lshl_b32 s{sT3}, s{sWV}, {FS + 6}\ns_add_u32 s{sT3}, s{sT3}, {WS_KVFLAG:#x}')
        a(f's_lshl_b32 s{sT4}, s{sWV}, 15\ns_add_u32 s{sT4}, s{sT4}, {WS_KVIMG:#x}\ns_lshl_b32 s{sT0}, s{sCG}, 12\ns_add_u32 s{sT4}, s{sT4}, s{sT0}')
        a(f's_lshl_b32 s{sOW}, s{sRB}, 16\ns_lshl_b32 s{sT0}, s{sCG}, 12\ns_add_u32 s{sOW}, s{sOW}, s{sT0}\ns_add_u32 s{sOW}, s{sOW}, {WS_OBUF:#x}')
        a(f's_add_u32 s{sT0}, s{sSW}, 1\ns_and_b32 s{sT0}, s{sT0}, 3\ns_lshl_b32 s{sT0}, s{sT0}, 10\ns_add_u32 s{sOW}, s{sOW}, s{sT0}')
        a(f's_mov_b32 s{sM0}, 0xffff\ns_mov_b32 s{sM0+1}, 0xffff')
        a(f's_lshl_b32 s{sOB}, s{sRB}, 16\ns_lshr_b32 s{sT0}, s{sSW}, 1\ns_lshl_b32 s{sT0}, s{sT0}, 2\ns_and_b32 s{sT2}, s{sCG}, 3\ns_add_u32 s{sT0}, s{sT0}, s{sT2}\ns_lshl_b32 s{sT0}, s{sT0}, 12')
        a(f's_add_u32 s{sOB}, s{sOB}, s{sT0}\ns_add_u32 s{sOB}, s{sOB}, {WS_OBUF:#x}\ns_mov_b32 s{sPRE}, 0')
        self.tr_parts(0, 1, 2)
        a(f'v_lshrrev_b32 v1, 5, v{vLN}\nv_lshl_add_u32 v2, v1, 9, v2\ns_lshr_b32 s{sT0}, s{sSW}, 1\ns_lshl_b32 s{sT0}, s{sT0}, 15\ns_add_u32 s{sT0}, s{sT0}, {L_A1}\nv_add_u32 v{vLN}, s{sT0}, v2')
        a(f's_waitcnt vmcnt(0)')
        self.sig(F_L6)
        self.stamp(3)
        if opt('trig', 0) == 1:
            self.wait(F_KVD, sleep=1); self.wait(F_L6, sleep=1)
        else:
            self.wait(F_QA if opt('pw', 0) == 0 else F_KVD, sleep=1)
        a(f'ds_read_b32 v{vEP}, v{vF} offset:{F_TAG}\ns_waitcnt lgkmcnt(0)\nv_readfirstlane_b32 s{sTAG}, v{vEP}')
        if opt('pf1', 0):
            a(f's_lshr_b32 s{sT0}, s2, 3\ns_lshl_b32 s{sT0}, s{sT0}, 2\ns_add_u32 s{sT0}, s{sT0}, s{sSW}\ns_lshl_b32 s{sT0}, s{sT0}, 12')
            for k, p in enumerate((8, 9)):
                self.srd(SB, P(p), 512 * 1024)
                for n in range(4): a(f'buffer_load_dwordx4 {q4(4 + 16*k + 4*n)}, v{vL16}, s[{SB}:{SB+3}], s{sT0} offen offset:{1024*n}')
            self.srd(SB, P(5), 2048 * 1024)
            a(f's_lshr_b32 s{sT0}, s{sT0}, 1\ns_and_b32 s{sT1}, s2, 7\ns_lshl_b32 s{sT1}, s{sT1}, 18\ns_add_u32 s{sT0}, s{sT0}, s{sT1}')
            for n in range(2): a(f'buffer_load_dwordx4 {q4(36 + 4*n)}, v{vL16}, s[{SB}:{SB+3}], s{sT0} offen offset:{1024*n}')
        if opt('pw', 0): a(f's_sleep {opt("pw", 0)}')
        a(f's_mov_b32 s{sCNT}, 100000')
        KW = opt('kw', 0)
        a(f's_lshr_b32 s{sT0}, s2, 3\ns_lshl_b32 s{sT0}, s{sT0}, 2\ns_add_u32 s{sT0}, s{sT0}, s{sSW}\ns_lshl_b32 s{sT0}, s{sT0}, 10\ns_add_u32 s{sT0}, s{sT0}, {WS_KVIMG:#x}')
        kwl = f'buffer_load_dwordx4 {q4(S0+8)}, v{vL16}, s[{SWS}:{SWS+3}], s{sT0} offen sc1'
        if KW == 2: a(kwl)
        a('L_kvp:')
        a(f'buffer_load_dwordx3 v[{S0}:{S0+2}], v{S0+4}, s[{SWS}:{SWS+3}], s{sT3} offen sc1')
        if KW == 1: a(kwl)
        a(f's_waitcnt vmcnt({1 if KW == 1 else 0})\nv_cmp_ne_u32 vcc, s{sTAG}, v{S0}\ns_cbranch_vccz L_kvpd')
        if opt('pm', 1): a('s_mov_b64 exec, vcc')
        a((f's_sleep {opt("kvsleep", 1)}\n' if opt("kvsleep", 1) else '') + f's_sub_u32 s{sCNT}, s{sCNT}, 1\ns_cbranch_scc0 L_kvp')
        a('L_kvpd:\ns_mov_b64 exec, -1')
        if self.stamps: a(f's_mov_b32 s{sST+13}, s{sCNT}')
        self.stamp(4)
        for i in range(opt('nup', 7)): a(self.kvload(R, i))
        a(f'ds_max_u32 v{S0+3}, v{S0+1} offset:{F_KMAX}')
        if XC:
            a(f's_lshr_b32 s{sT0}, s{sRB}, 3\ns_cmp_eq_u32 s{sT0}, s{sSW}\ns_cbranch_scc0 L_noxc')
            a(f'v_cmp_ne_u32 vcc, s{sXC}, v{S0+2}\ns_bitcmp1_b32 s{sRB}, 2\ns_cselect_b32 s{sT0}, vcc_hi, vcc_lo\ns_cmp_eq_u32 s{sT0}, 0\ns_cselect_b32 s{sT0}, 1, 0')
            a(f'v_mov_b32 v{S0+2}, s{sT0}\nds_write_b32 v{S0+3}, v{S0+2} offset:{F_XC}')
            a('L_noxc:')
        self.wait(F_QP, sleep=0)
        a(f'ds_read_b128 {q4(Q)}, v{vQA} offset:{L_QF}')
        self.stamp(5)
        self.attn_fast(R)
        a('L_attn_epi:')
        if 'phs' in OPT:
            for p in range(8): a(f's_mov_b32 s{sST+2*p}, s{16+4*p}\ns_mov_b32 s{sST+2*p+1}, s{17+4*p}')
            a(f's_lshl_b32 s{sT0}, s2, 3\ns_add_u32 s{sT0}, s{sT0}, s{sWV}\ns_lshl_b32 s{sT0}, s{sT0}, 6\ns_add_u32 s{sT0}, s{sT0}, {WS_DBG + 0x100000:#x}')
            a('s_mov_b64 exec, 1')
            for i in range(16):
                a(f'v_mov_b32 v{vT}, s{sST+i}\nbuffer_store_dword v{vT}, off, s[{SWS}:{SWS+3}], s{sT0} offset:{4*i}')
            a('s_waitcnt vmcnt(0)\ns_endpgm')
        self.oproj_pre()
        self.stamp(6)
        self.publish(R, 0x8000, F_AY)
        if 'nosvc' in OPT or 'stop' in OPT: self.end()
        else: self.oproj()
        a('L_check6:')
        self.wait(F_S[9], sleep=1)
        a('s_branch L_checked6')
        a('L_check1:')
        self.wait(F_S[0], sleep=1)
        a(f'v_cmp_ne_u32 vcc, 1, v{vT}\ns_cbranch_vccz L_checked1')
        self.wait(F_S[9], sleep=1)
        if XC: a(f's_mov_b32 s{sXC}, 0')
        vL4, vW = vA8, vA16
        self.sig(F_SL[0]); self.wait(F_SL[0])
        a(f'v_lshrrev_b32 v{vL4}, 2, v{vL16}\ns_mov_b32 s{sT2}, 0\ns_lshl_b32 s{sT3}, s{sWV}, 11\nv_add_u32 v{vW}, s{sT3}, v{vL4}')
        a('L_slow_pre:')
        a(f's_lshl_b32 s{sT0}, s{sT2}, 10\nv_add_u32 v{vT}, s{sT0}, v{vL16}\nds_read_b128 {q4(Q)}, v{vT} offset:{L_QF}\ns_waitcnt lgkmcnt(0)')
        a(f'v_mov_b32 v{S0+20}, 0xff800000')
        for i in range(16):
            a(f'v_mfma_f32_32x32x16_bf16 {t16(S0)}, {q4(K+4*i)}, {q4(Q)}, 0')
            for r in range(0, 16, 2): a(f'v_max3_f32 v{S0+20}, v{S0+r}, v{S0+r+1}, v{S0+20}')
        a(f'v_mov_b32 v{S0+21}, v{S0+20}\nv_permlane32_swap_b32 v{S0+20}, v{S0+21}\nv_max_f32 v{S0+20}, v{S0+20}, v{S0+21}')
        a(f'ds_write_b32 v{vW}, v{S0+20} offset:{L_ACCD}\nv_add_u32 v{vW}, 256, v{vW}')
        a(f's_add_u32 s{sT2}, s{sT2}, 1\ns_cmp_lt_u32 s{sT2}, 8\ns_cbranch_scc1 L_slow_pre')
        self.sig(F_SL[1]); self.wait(F_SL[1])
        a(f's_lshl_b32 s{sT0}, s{sWV}, 8\nv_add_u32 v{vW}, s{sT0}, v{vL4}')
        for t in range(2):
            for w in range(4): a(f'ds_read_b32 v{S0+4*t+w}, v{vW} offset:{L_ACCD + 2048*w + 1024*t}')
        a(f'v_and_b32 v{vW}, 0x7c, v{vL4}\ns_lshl_b32 s{sT0}, s{sWV}, 7\ns_add_u32 s{sT0}, s{sT0}, {L_MX}\nv_add_u32 v{vW}, s{sT0}, v{vW}')
        a('s_waitcnt lgkmcnt(0)')
        for t in range(2):
            b = S0 + 4 * t
            a(f'v_max3_f32 v{b}, v{b}, v{b+1}, v{b+2}\nv_max_f32 v{b}, v{b}, v{b+3}\nds_write_b32 v{vW}, v{b} offset:{512*t}')
        init_state(16)
        a(f'v_mov_b32 v{S0}, 0\nv_mov_b32 v{S0+1}, 17\nds_write_b64 v{vA8}, {pr(S0)} offset:{L_ACCF+2048}')
        a(f'ds_write_b128 v{vA16}, {q4(O)} offset:{L_ACCD+8192}\nds_write_b128 v{vA16}, {q4(O)} offset:{L_ACCD+8192+1024}')
        self.sig(F_SL[2]); self.wait(F_SL[2])
        a(f'ds_read_b128 {q4(Q)}, v{vQA} offset:{L_QF}')
        self.attn_loop(R, True)
        a('s_branch L_attn_epi')

    QD = [r for i in range(16) for r in (4 * i, 64 + 8 * i, 68 + 8 * i)]
    def WF(self, st): return self.QD[st]
    def OF(self, q, n): return self.QD[16 + 4 * ((q + 3) % 4) + 16 * (q // 4) + n]
    def wo_read(self, st, vWO): return f'ds_read_b64_tr_b16 {pr(self.WF(st))}, v{vWO} offset:{2048*st}\nds_read_b64_tr_b16 {pr(self.WF(st)+2)}, v{vWO} offset:{2048*st+1024}'
    def o_load(self, q):
        t = f's_xor_b32 s{sT0}, s{sOB}, {4096*(q%4) + 0x8000*(q//4):#x}'
        for n in range(4): t += f'\nbuffer_load_dwordx4 {q4(self.OF(q, n))}, v{vL16}, s[{SWS}:{SWS+3}], s{sT0} offen offset:{1024*n} sc1'
        return t

    def kvload(self, R, i):
        K, V = R['K'], R['V']
        t = ''
        if i % 2 == 0 and i > 0: t += f's_xor_b32 s{sT4}, s{sT4}, {((i // 2) ^ (i // 2 - 1)) << 12:#x}\n'
        o = (i % 2) * 2048
        t += f'buffer_load_dwordx4 {q4(K+4*i)}, v{vL16}, s[{SWS}:{SWS+3}], s{sT4} offen offset:{o} sc1\n'
        if self.masked(i):
            t += f's_mov_b64 exec, s[{sM0}:{sM0+1}]\nbuffer_load_dwordx4 {q4(V+8*i)}, v{vL16}, s[{SWS}:{SWS+3}], s{sT4} offen offset:{o+1024} sc1\n'
            t += f'buffer_load_dwordx4 {q4(V+8*i+4)}, v{vL16}, s[{SWS}:{SWS+3}], s{sT4} offen offset:{o+1024+256} sc1\ns_mov_b64 exec, -1'
        else:
            t += f'buffer_load_dwordx4 {q4(V+8*i)}, v{vL16}, s[{SWS}:{SWS+3}], s{sT4} offen offset:{o+1024} sc1'
        return t

    def publish(self, R, off, flag):
        a = self.a; O = R['O']
        a(f'v_rcp_f32 v{O+8}, v{O+8}\ns_add_u32 s{sT0}, s{sOW}, {off}')
        for r in range(0, 8, 2): a(f'v_pk_mul_f32 {pr(O+r)}, {pr(O+8)}, {pr(O+r)} op_sel:[0,0] op_sel_hi:[0,1]')
        for r in range(4): a(f'v_cvt_pk_bf16_f32 v{O+r}, v{O+2*r}, v{O+2*r+1}')
        self.xstore([f'buffer_store_dwordx4 {q4(O)}, v{vL16}, s[{SWS}:{SWS+3}], s{sT0} offen'])
        if off: self.sig(flag)

    def attn_fast(self, R):
        a = self.a
        K, V, S0, O, Q = R['K'], R['V'], R['S0'], R['O'], R['Q']
        vIDX, vA16, vA8, vQA, vL8 = R['vIDX'], R['vA16'], R['vA8'], R['vQA'], R['vL8']
        NUP = opt('nup', 7)
        sK = [[50, 51, 80], [sT1, sT2, sT3], [sT5, sPH, sTJ]]
        for k in range(1, 4):
            a(f's_sub_u32 s{sT0}, s{sSW}, {k}\ns_and_b32 s{sT0}, s{sT0}, 3\ns_lshl_b32 s{sK[k-1][0]}, s{sT0}, 9\ns_lshl_b32 s{sK[k-1][1]}, s{sT0}, 10\ns_lshl_b32 s{sK[k-1][2]}, s{sT0}, 11')
        def Sb(i): return S0 + 16 * (i % 2)
        def E(i, r): return f'v_exp_f32 v{Sb(i)+r}, v{Sb(i)+r}'
        CM = '-4.0' if opt('cm', 1) else '0'
        PP = opt('pp', 15)
        def QK(i): return f'v_mfma_f32_32x32x16_bf16 {t16(Sb(i))}, {q4(K+4*(i%16))}, {q4(Q)}, {CM}'
        def PV(i, h): return f'v_smfmac_f32_32x32x32_bf16 {t16(O)}, {q4(V+8*(i%16)+4*h)}, v[{Sb(i)+8*h}:{Sb(i)+8*h+7}], v{vIDX}'
        def rd(st): return [f'ds_read_b64 {pr(O+8)}, v{vA8} offset:{L_ACCF+2048*st}', f'ds_read_b128 {q4(O)}, v{vA16} offset:{L_ACCD+8192*st}', f'ds_read_b128 {q4(O+4)}, v{vA16} offset:{L_ACCD+8192*st+1024}']
        def wr(st): return [f'ds_write_b128 v{vA16}, {q4(O)} offset:{L_ACCD+8192*st}', f'ds_write_b128 v{vA16}, {q4(O+4)} offset:{L_ACCD+8192*st+1024}', f'ds_write_b64 v{vA8}, {pr(O+8)} offset:{L_ACCF+2048*st}']
        nl = lambda i: 3 if self.masked(i) else 2
        cov = [-1]
        def plain(p, i):
            e = [E(i, r) for r in range(16)]
            w = []; sw = []; ld = []
            if p == 0:
                KR = opt('kr', 3)
                issued = sum(nl(t) for t in range(min(16, KR * i + NUP)))
                VW = opt('vw', 4)
                if i > cov[0]:
                    last = i if i < opt('vw1', 2) else min(15, i + VW - 1)
                    cov[0] = last
                    needed = sum(nl(t) for t in range(last + 1)) + (1 if last < 15 else 0)
                    assert issued >= needed
                    w = [f's_waitcnt vmcnt({issued - needed})']
                if not self.masked(i): sw = [f'v_permlane16_swap_b32 v{V+8*i+r}, v{V+8*i+4+r}' for r in range(4)]
                for t in range(KR * i + NUP, min(16, KR * (i + 1) + NUP)):
                    ld += [self.kvload(R, t)]
                    if t == 15: ld += [f'ds_write_b32 v{vS}, v{vONE} offset:{F_A1}']
            qk = [QK(i + 1)]
            if i == 15:
                if p < 7: w += ['s_waitcnt lgkmcnt(0)']
                else: qk = []
            if i == 14 and p < 7:
                if p % 2 == 1: ld += [f'v_add_u32 v{vQA}, s{sK[p//2][1]}, v{vL16}']
                ld += [f'ds_read_b128 {q4(Q)}, v{vQA} offset:{L_QF + 4096*((p+1)%2)}']
                if p in (1, 6): ld += [f'ds_read_b32 v{vT}, v{vF} offset:{F_S[0] if p == 1 else F_S[9]}']
                if p == 6 and XC: ld += [f'ds_read_b32 v{vEP}, v{vF} offset:{F_XC}']
            if i == 15 and p in (1, 6):
                sw = [f'v_cmp_ne_u32 vcc, 1, v{vT}'] + ([f'v_readfirstlane_b32 s{sXC}, v{vEP}'] if p == 6 and XC else [])
                ld = [f's_cbranch_vccnz L_check{p}', f'L_checked{p}:']
            if p == 7 and opt('xl', 0) and 'nosvc' not in OPT and 'stop' not in OPT:
                X0 = opt('xl0', 16 - opt('xl', 0))
                if i == X0 - 2: ld += [f'ds_read_b32 v{vT}, v{vF} offset:{F_S[5]}']
                if i == X0 - 1: ld += [f's_waitcnt lgkmcnt(0)\nv_cmp_eq_u32 vcc, 0, v{vT}\ns_cmp_eq_u64 vcc, 0\ns_cselect_b32 s{sPRE}, 1, 0']
                k = i - X0
                if 0 <= k < opt('xl', 0):
                    assert (16 + 4 * k + 3) // 3 < i
                    L = a.label('PF')
                    ld += [f's_cmp_eq_u32 s{sPRE}, 0\ns_cbranch_scc1 {L}', self.o_load((k + 1) % 4), f'{L}:']
            if p == 7 and i == opt('rel', 99): ld += [f'ds_write_b32 v{vS}, v{vONE} offset:{F_AX}']
            if p == 7 and opt('pre', 0) and 'nosvc' not in OPT and 'stop' not in OPT:
                P0 = opt('pre0', 6)
                if i == P0 - 1: ld += [f'ds_read_b32 v{vT}, v{vF} offset:{F_S[5]}']
                if i == P0: ld += [f's_waitcnt lgkmcnt(0)\nv_cmp_eq_u32 vcc, 0, v{vT}\ns_cmp_eq_u64 vcc, 0\ns_cselect_b32 s{sPRE}, 1, 0']
                grp = []
                k = i - P0 - 1
                if 0 <= k < 4: grp = [self.wo_read(st, vLN) for st in range(4 * k, 4 * k + 4)]; top = 4 * k + 3
                if 4 <= k < 8: grp = [self.o_load((k - 3) % 4)]; top = 16 + 4 * (k - 4) + 3
                if grp:
                    assert top // 3 < i, (top, i)
                    L = a.label('PF')
                    ld += [f's_cmp_eq_u32 s{sPRE}, 0\ns_cbranch_scc1 {L}'] + grp + [f'{L}:']
            seq = e[0:2] + ([] if (p == 0 and i == 0) else [PV(i - 1, 1)]) + e[2:5] + w + qk + sw + e[5:7] + ld + e[7:PP] + [PV(i, 0)] + e[PP:16]
            for x in seq: a(x)
        a(f's_setprio {opt("aprio", 1)}')
        a(f's_waitcnt vmcnt({sum(nl(t) for t in range(NUP)) - 1}) lgkmcnt(0)')
        a(QK(0))
        NW = opt('nw', 3)
        for p in range(8):
            if p == 0:
                plain(0, 0); plain(0, 1)
            else:
                e = [E(0, r) for r in range(16)]
                for x in e[0:2] + [PV(15, 1)] + e[2:5] + [QK(1)] + e[5:8]: a(x)
                so, si = (p - 1) % 2, p % 2
                WS = opt('wsp', 0) if 1 < p < 7 else 0
                if WS == 1:
                    for x in [wr(so)[0], f'v_mov_b32 v{O+9}, {p+1}', e[8], wr(so)[1], e[9], wr(so)[2]]: a(x)
                    e = e[:8] + ['', ''] + e[10:]
                elif WS == 2:
                    for x in [wr(so)[0], f'v_mov_b32 v{O+9}, {p+1}', e[8], e[9], wr(so)[1], e[10], e[11], wr(so)[2]]: a(x)
                    e = e[:8] + ['', '', '', ''] + e[12:]
                elif p < 7:
                    for x in [wr(so)[0], f'v_mov_b32 v{O+9}, {p+1}', wr(so)[1], wr(so)[2]]: a(x)
                else:
                    self.publish(R, 0, F_AX)
                if p % 2 == 0: a(f'v_add_u32 v{vA8}, s{sK[p//2-1][0]}, v{vL8}\nv_add_u32 v{vA16}, s{sK[p//2-1][2]}, v{vL16}')
                if p == 1:
                    for r in range(0, 8, 2): a(f'v_pk_mul_f32 {pr(O+r)}, {pr(O+10)}, {pr(O+10)}')
                    a(f'v_mov_b32 v{O+8}, 0')
                    for x in e[8:PP] + [PV(0, 0)] + e[PP:16]: a(x)
                    plain(p, 1)
                else:
                    for x in rd(si) + e[8:16]: a(x)
                    e = [E(1, r) for r in range(16)]
                    for x in e[0:NW]: a(x)
                    a(f's_waitcnt lgkmcnt(0)\nv_cmp_gt_u32 vcc, {p}, v{O+9}')
                    a(e[NW])
                    a(f's_cbranch_vccnz L_hw{p}')
                    a(f'L_hd{p}:')
                    n = NW + 1
                    for x in [PV(0, 0)] + e[n:n+3] + [PV(0, 1)] + e[n+3:n+6] + [QK(2)] + e[n+6:n+9] + [PV(1, 0)] + e[n+9:16]: a(x)
            for i in range(2, 16):
                plain(p, i)
            if p == 0: self.stamp(7)
            if 'phs' in OPT: a(f's_memtime s[98:99]\ns_memrealtime s[{16+4*p}:{17+4*p}]\ns_waitcnt lgkmcnt(0)\ns_mov_b32 s{17+4*p}, s98')
        a('s_nop 0')
        a(PV(15, 1))
        a(f's_branch L_attn_epi')
        for p in range(2, 8):
            a(f'L_hw{p}:')
            a(f's_mov_b32 s{sCNT}, {SPIN}')
            a(f'L_hl{p}:')
            a(f's_sleep 1')
            for x in rd(p % 2): a(x)
            a(f's_waitcnt lgkmcnt(0)\nv_cmp_gt_u32 vcc, {p}, v{O+9}\ns_cbranch_vccz L_hd{p}\ns_sub_u32 s{sCNT}, s{sCNT}, 1\ns_cbranch_scc0 L_hl{p}\ns_branch L_hd{p}')

    def attn_loop(self, R, slow):
        a = self.a
        K, V, S0, O, Q = R['K'], R['V'], R['S0'], R['O'], R['Q']
        vIDX, vA16, vA8, vQA, vL8, vM = R['vIDX'], R['vA16'], R['vA8'], R['vQA'], R['vL8'], R['vM']
        sf = '_s' if slow else '_f'
        PH0 = 16 if slow else 0
        NUP = opt('nup', 6)
        def Sb(i): return S0 + 16 * (i % 2)
        def E(i, r):
            s = Sb(i) + r
            return (f'v_sub_f32 v{s}, v{s}, v{vM}\n' if slow else '') + f'v_exp_f32 v{s}, v{s}'
        def QK(i): return f'v_mfma_f32_32x32x16_bf16 {t16(Sb(i))}, {q4(K+4*(i%16))}, {q4(Q)}, 0'
        def PV(i, h): return f'v_smfmac_f32_32x32x32_bf16 {t16(O)}, {q4(V+8*(i%16)+4*h)}, v[{Sb(i)+8*h}:{Sb(i)+8*h+7}], v{vIDX}'
        rd = [f'ds_read_b64 {pr(O+8)}, v{vA8} offset:{L_ACCF}', f'ds_read_b128 {q4(O)}, v{vA16} offset:{L_ACCD}', f'ds_read_b128 {q4(O+4)}, v{vA16} offset:{L_ACCD+1024}']
        wr = [f'ds_write_b128 v{vA16}, {q4(O)} offset:{L_ACCD}', f'ds_write_b128 v{vA16}, {q4(O+4)} offset:{L_ACCD+1024}', f'ds_write_b64 v{vA8}, {pr(O+8)} offset:{L_ACCF}']
        def getm():
            if slow:
                a(f'v_lshrrev_b32 v{vT}, 2, v{vL16}\nv_and_b32 v{vT}, 0x7c, v{vT}\ns_lshl_b32 s{sT0}, s{sTJ}, 7\ns_add_u32 s{sT0}, s{sT0}, {L_MX}\nv_add_u32 v{vT}, s{sT0}, v{vT}')
                a(f'ds_read_b32 v{vM}, v{vT}\ns_waitcnt lgkmcnt(0)')
        nl = lambda i: 3 if self.masked(i) else 2
        def plain(i, ph0=False):
            e = [E(i, r) for r in range(16)]
            w = []; sw = []; ld = []
            if ph0 and not slow:
                issued = sum(nl(t) for t in range(min(16, i + NUP)))
                needed = sum(nl(t) for t in range(i + 1)) + (1 if i < 15 else 0)
                w = [f's_waitcnt vmcnt({issued - needed})']
                if not self.masked(i): sw = [f'v_permlane16_swap_b32 v{V+8*i+r}, v{V+8*i+4+r}' for r in range(4)]
                if i + NUP < 16: ld = [self.kvload(R, i + NUP)]
                if i + NUP == 15: ld += [f'ds_write_b32 v{vS}, v{vONE} offset:{F_A1}']
            if i == 15: w += ['s_waitcnt lgkmcnt(0)']
            seq = e[0:2] + ([] if (ph0 and i == 0) else [PV(i - 1, 1)]) + e[2:5] + w + [QK(i + 1)] + sw
            if i == 14:
                seq += [f's_add_u32 s{sT1}, s{sPH}, 1\ns_lshr_b32 s{sT2}, s{sT1}, 1\ns_sub_u32 s{sT2}, s{sSW}, s{sT2}', e[5],
                        f's_and_b32 s{sT2}, s{sT2}, 3\ns_and_b32 s{sT1}, s{sT1}, 1\ns_lshl_b32 s{sT1}, s{sT1}, 2', e[6],
                        f's_add_u32 s{sT2}, s{sT2}, s{sT1}\ns_lshl_b32 s{sT0}, s{sT2}, 10', e[7], f'v_add_u32 v{vQA}, s{sT0}, v{vL16}', e[8],
                        f'ds_read_b128 {q4(Q)}, v{vQA} offset:{L_QF}'] + e[9:11]
            else:
                seq += e[5:11]
            seq += [PV(i, 0)] + e[11:13] + ld + e[13:16]
            for x in seq: a(x)
        a(f's_setprio {opt("aprio", 1)}')
        getm()
        a(f's_waitcnt vmcnt({sum(nl(t) for t in range(NUP)) - 1}) lgkmcnt(0)')
        a(QK(0))
        if slow:
            plain(0, True); plain(1)
            a(f's_branch L_mid{sf}')
        else:
            for i in range(16): plain(i, True)
            self.stamp(7)
        a('.p2align 6')
        a(f'L_loop{sf}:')
        a(f's_add_u32 s{sPH}, s{sPH}, 1\ns_mov_b32 s{sTJ}, s{sT2}')
        getm()
        e = [E(0, r) for r in range(16)]
        for x in e[0:2] + [PV(15, 1), e[2], f's_add_u32 s{sT1}, s{sPH}, 1', e[3], f's_lshl_b32 s{sT3}, s{sTJ}, 9', e[4], QK(1), f's_lshl_b32 s{sT4}, s{sTJ}, 11', e[5], e[6],
                           f's_cmp_eq_u32 s{sPH}, {PH0 + 7}', e[7], f's_cbranch_scc1 L_finx{sf}',
                           wr[0], f'v_mov_b32 v{O+9}, s{sT1}', e[8], wr[1], e[9], wr[2]]: a(x)
        a(f'L_finxd{sf}:')
        for x in [f'v_add_u32 v{vA8}, s{sT3}, v{vL8}', f'v_add_u32 v{vA16}, s{sT4}, v{vL16}', rd[0], e[10], rd[1], e[11], rd[2]] + e[12:16]: a(x)
        e0 = e
        e = [E(1, r) for r in range(16)]
        NW = opt('nw', 6)
        for x in e[0:NW]: a(x)
        a(f's_waitcnt lgkmcnt(0)\nv_cmp_gt_u32 vcc, s{sPH}, v{O+9}\ns_cbranch_vccnz L_hw{sf}')
        a(f'L_hd{sf}:')
        for x in [PV(0, 0)] + e[NW:NW+3] + [PV(0, 1)] + e[NW+3:NW+6] + [QK(2)] + e[NW+6:NW+9] + [PV(1, 0)] + e[NW+9:16]: a(x)
        a(f'L_mid{sf}:')
        for i in range(2, 16):
            plain(i)
        a(f's_cmp_lt_u32 s{sPH}, {PH0 + 7}\ns_cbranch_scc1 L_loop{sf}')
        a(PV(15, 1))
        a(f's_nop 10\ns_branch L_end{sf}')
        a(f'L_finx{sf}:')
        a(e0[8]); a(e0[9])
        self.publish(R, 0, F_AX)
        a(f's_branch L_finxd{sf}')
        a(f'L_hw{sf}:')
        a(f's_mov_b32 s{sCNT}, {SPIN}')
        a(f'L_hl{sf}:')
        a(f's_sleep 1')
        for x in rd: a(x)
        a(f's_waitcnt lgkmcnt(0)\nv_cmp_gt_u32 vcc, s{sPH}, v{O+9}\ns_cbranch_vccz L_hd{sf}\ns_sub_u32 s{sCNT}, s{sCNT}, 1\ns_cbranch_scc0 L_hl{sf}\ns_branch L_hd{sf}')
        a(f'L_end{sf}:')

    def oproj_pre(self):
        a = self.a
        a('s_setprio 3')
        self.sig(F_AX)
        a(f'ds_read_b32 v{vEP}, v{vF} offset:{F_S[5]}')
        a(f'v_lshrrev_b32 v241, 9, v{vL16}\nv_bfe_u32 v243, v{vL16}, 2, 7\nv_lshl_add_u32 v243, v241, 14, v243\nv_mov_b32 v240, 0\nv_mov_b32 v241, 0')
        a(f's_and_b32 s{sT0}, s{sOW}, 0xc00\ns_lshl_b32 s{sT0}, s{sT0}, 1\nv_add_u32 v242, s{sT0}, v{vL16}\ns_xor_b32 s{sT0}, s{sT0}, 0x1000\nv_add_u32 v245, s{sT0}, v{vL16}\nv_xor_b32 v246, 8, v{vS}')

    def oproj(self):
        a = self.a
        vZ, vOA, vXW, vXR, vP = 240, 243, 242, 245, 246
        OA = [192, 208]
        sPEND, sKH, sOUT = sT3, sT1, sT5
        order = (1, 2, 3, 0)
        for h in range(2): a(f'v_mfma_f32_32x32x8_bf16 {t16(OA[h])}, {pr(vZ)}, {pr(vZ)}, 0')
        loads = lambda q: a(self.o_load(q))
        def proc(q, lab):
            R_ = [self.OF(q, n) + r for n in range(4) for r in range(4)]
            a(f'v_max3_u32 v{vT}, v{R_[0]}, v{R_[1]}, v{R_[2]}')
            for r in range(3, 15, 2): a(f'v_max3_u32 v{vT}, v{R_[r]}, v{R_[r+1]}, v{vT}')
            a(f'v_max_u32 v{vT}, v{R_[15]}, v{vT}\nv_cmp_eq_u32 vcc, -1, v{vT}\ns_cbranch_vccnz {lab}')
            for n in range(4):
                a(f'v_mfma_f32_32x32x16_bf16 {t16(OA[q//4])}, {q4(self.OF(q, n))}, {q4(self.WF(4*(q%4)+n))}, {t16(OA[q//4])}')
            a(f's_bitset0_b32 s{sPEND}, {q}')
            a(f'{lab}:')
        if opt('tail2', 0):
            def retry(h):
                a(f'L_oretry{h}:')
                a(f's_and_b32 s{sT0}, s{sPEND}, {15 << (4*h)}\ns_cbranch_scc0 L_odone{h}\ns_sub_u32 s{sCNT}, s{sCNT}, 1\ns_cbranch_scc1 L_odone{h}')
                for q in range(4 * h, 4 * h + 4):
                    a(f's_bitcmp0_b32 s{sPEND}, {q}\ns_cbranch_scc1 L_ol_{q}')
                    loads(q)
                    a(f'L_ol_{q}:')
                a('s_waitcnt vmcnt(0)')
                for q in range(4 * h, 4 * h + 4):
                    a(f's_bitcmp0_b32 s{sPEND}, {q}\ns_cbranch_scc1 L_o2_{q}')
                    proc(q, f'L_o2_{q}')
                a(f's_branch L_oretry{h}')
                a(f'L_odone{h}:')
            fl = {0: '', 1: ' sc1', 2: ' nt'}[opt('ofl', 2)]
            def send(h):
                a(f's_nop 7\ns_bitcmp1_b32 s{sSW}, 1\ns_cbranch_scc1 L_sh{h}')
                for kh in range(2):
                    sd = OA[h] + 8 - 8 * kh
                    a(f'ds_write_b128 v{vXW}, {q4(sd)} offset:{L_ACCD+8192*h}\nds_write_b128 v{vXW}, {q4(sd+4)} offset:{L_ACCD+8192*h+1024}')
                    self.sig(F_OX + 16 * h)
                    if kh == 0: a(f's_branch L_sd{h}\nL_sh{h}:')
                    else:
                        for r in range(0, 8, 2): a(f'v_pk_mov_b32 {pr(OA[h]+r)}, {pr(OA[h]+8+r)}, {pr(OA[h]+8+r)} op_sel:[0,1]')
                a(f'L_sd{h}:')
            def finish(h):
                self.wait(F_OX + 16 * h, sleep=0, va=vP)
                t = OA[h] + 8
                a(f'ds_read_b128 {q4(t)}, v{vXR} offset:{L_ACCD+8192*h}\nds_read_b128 {q4(t+4)}, v{vXR} offset:{L_ACCD+8192*h+1024}')
                for r in range(8):
                    if r % 4 == 0: a(f's_waitcnt lgkmcnt({1 - r//4})')
                    a(f'v_add_f32 v{t+r}, v{t+r}, v{OA[h]+r}\ns_add_u32 s{sT0}, s{sOUT}, {((r % 4) + 8 * (r // 4) + 32 * h) * 4096}')
                    if 'noo' not in OPT: a(f'buffer_store_dword v{t+r}, v{vOA}, s[{SOUT}:{SOUT+3}], s{sT0} offen{fl}')
            def verify(q):
                R_ = [self.OF(q, n) + r for n in range(4) for r in range(4)]
                if opt('vlite', 0): return [f'v_max3_u32 v{vT}, v{R_[3]}, v{R_[7]}, v{R_[11]}', f'v_max_u32 v{vT}, v{R_[15]}, v{vT}', f'v_cmp_eq_u32 vcc, -1, v{vT}']
                return [f'v_max3_u32 v{vT}, v{R_[0]}, v{R_[1]}, v{R_[2]}'] + [f'v_max3_u32 v{vT}, v{R_[r]}, v{R_[r+1]}, v{vT}' for r in range(3, 15, 2)] + [f'v_max_u32 v{vT}, v{R_[15]}, v{vT}', f'v_cmp_eq_u32 vcc, -1, v{vT}']
            tails = []
            def pproc(q, nxt, wait=None):
                v = ([wait] if wait else []) + (verify(nxt) if nxt is not None else [])
                a(f's_cbranch_vccnz L_ps{q}')
                k = (len(v) + 2) // 3
                for n in range(4):
                    a(f'v_mfma_f32_32x32x16_bf16 {t16(OA[q//4])}, {q4(self.OF(q, n))}, {q4(self.WF(4*(q%4)+n))}, {t16(OA[q//4])}')
                    if n == 0: a(f's_bitset0_b32 s{sPEND}, {q}')
                    else:
                        for x in v[(n - 1) * k:n * k]: a(x)
                a(f'L_pj{q}:')
                tails.append((q, v))
            a(f's_mov_b32 s{sPEND}, 0xff\ns_cmp_eq_u32 s{sPRE}, 1\ns_cbranch_scc1 L_prej')
            self.wait(F_S[5], sleep=1)
            self.wait(F_AY, sleep=0)
            for q in order: loads(q)
            for st in range(16): a(self.wo_read(st, vLN))
            a('s_waitcnt vmcnt(0)')
            a('L_prej:')
            a('s_waitcnt vmcnt(1) lgkmcnt(0)')
            NX = opt('nx', 2)
            for x in verify(1): a(x)
            for k in range(NX): pproc(order[k], order[k + 1] if k + 1 < NX else None)
            self.wait(F_AY, sleep=0)
            self.stamp(11)
            loads(5); loads(6)
            if NX < 4:
                for x in verify(order[NX]): a(x)
            rest = [7, 4]
            for k in range(NX, 4):
                pproc(order[k], order[k + 1] if k < 3 else None)
                if rest: loads(rest.pop(0))
            for q in rest: loads(q)
            self.srd(SOUT, P(14), 2048 * 4096)
            a(f's_lshr_b32 s{sKH}, s{sSW}, 1\ns_mov_b32 s{sCNT}, 50000')
            a(f's_lshl_b32 s{sOUT}, s{sRB}, 18\ns_lshl_b32 s{sT0}, s{sCG}, 1\ns_and_b32 s{sT2}, s{sWV}, 1\ns_add_u32 s{sT0}, s{sT0}, s{sT2}\ns_lshl_b32 s{sT0}, s{sT0}, 7\ns_add_u32 s{sOUT}, s{sOUT}, s{sT0}\ns_lshl_b32 s{sT0}, s{sKH}, 16\ns_add_u32 s{sOUT}, s{sOUT}, s{sT0}')
            retry(0)
            send(0)
            self.stamp(12)
            a('s_waitcnt vmcnt(12)')
            for x in verify(5): a(x)
            for k, q in enumerate(order):
                pproc(4 + q, 4 + order[k + 1] if k < 3 else None, f's_waitcnt vmcnt({8 - 4*k})' if k < 3 else None)
            a(f's_cmp_eq_u32 s{sPEND}, 0\ns_cbranch_scc1 L_ofast')
            finish(0)
            a(f's_mov_b32 s{sCNT}, 50000')
            retry(1)
            send(1)
            a('s_branch L_olast')
            a('L_ofast:')
            OA.append(OA[1])
            a(f's_nop 7\ns_bitcmp1_b32 s{sSW}, 1\ns_cbranch_scc1 L_shf')
            for kh in range(2):
                sd = OA[1] + 8 - 8 * kh
                a(f'ds_write_b128 v{vXW}, {q4(sd)} offset:{L_ACCD+8192}\nds_write_b128 v{vXW}, {q4(sd+4)} offset:{L_ACCD+8192+1024}')
                self.sig(F_OX + 16)
                if kh == 0: a('s_branch L_sdf\nL_shf:')
                else:
                    for r in range(0, 8, 2): a(f'v_pk_mov_b32 {pr(OA[1]+r)}, {pr(OA[1]+8+r)}, {pr(OA[1]+8+r)} op_sel:[0,1]')
            a('L_sdf:')
            finish(0)
            a('L_olast:')
            self.stamp(1)
            finish(1)
            self.end()
            for q, v in tails:
                a(f'L_ps{q}:')
                for x in v: a(x)
                a(f's_nop 0\ns_branch L_pj{q}')
            return
        a(f's_mov_b32 s{sPEND}, 0xff')
        if opt('pre', 0):
            a(f's_cmp_eq_u32 s{sPRE}, 0\ns_cbranch_scc1 L_nopre')
            a('s_waitcnt vmcnt(1) lgkmcnt(0)')
            proc(1, 'L_o0_1'); proc(2, 'L_o0_2')
            self.wait(F_AY, sleep=0)
            a('s_branch L_prej')
            a('L_nopre:')
        TV = opt('tv', 2)
        if TV == 0:
            self.wait(F_S[5], sleep=1)
            self.wait(F_AY, sleep=0)
            for q in order: loads(q)
            for st in range(16): a(self.wo_read(st, vLN))
            a('s_waitcnt vmcnt(0) lgkmcnt(0)')
            proc(1, 'L_o0b_1'); proc(2, 'L_o0b_2')
            a('L_prej:')
            self.stamp(11)
            loads(5); loads(6)
            proc(3, 'L_o0_3')
            loads(7)
            proc(0, 'L_o0_0')
            loads(4)
        else:
            NE = {1: 0, 2: 2, 3: 4, 4: 3}[TV]
            XL = opt('xl', 0)
            if XL:
                a(f's_cmp_eq_u32 s{sPRE}, 1\ns_cbranch_scc1 L_xl')
            if opt('s5p', 1):
                a(f's_waitcnt lgkmcnt(0)\nv_cmp_eq_u32 vcc, 0, v{vEP}\ns_cbranch_vccz L_s5ok')
            self.wait(F_S[5], sleep=1)
            a('L_s5ok:')
            for q in order[:XL]: loads(q)
            a('L_xl:')
            for q in order[XL:max(XL, NE)]: loads(q)
            for st in range(16): a(self.wo_read(st, vLN))
            self.wait(F_AY, sleep=0)
            self.stamp(11)
            for q in order[max(XL, NE):]: loads(q)
            YD = opt('yd', 3)
            iss = 0
            for k, q in enumerate(order):
                while iss < min(4, k + 1 - YD): loads(4 + order[iss]); iss += 1
                a(f's_waitcnt vmcnt({12 - 4*k + 4*iss})')
                proc(q, f'L_o0_{q}')
            while iss < 4: loads(4 + order[iss]); iss += 1
        self.stamp(12)
        self.srd(SOUT, P(14), 2048 * 4096)
        a(f's_lshr_b32 s{sKH}, s{sSW}, 1\ns_mov_b32 s{sCNT}, 50000')
        a(f's_lshl_b32 s{sOUT}, s{sRB}, 18\ns_lshl_b32 s{sT0}, s{sCG}, 1\ns_and_b32 s{sT2}, s{sWV}, 1\ns_add_u32 s{sT0}, s{sT0}, s{sT2}\ns_lshl_b32 s{sT0}, s{sT0}, 7\ns_add_u32 s{sOUT}, s{sOUT}, s{sT0}\ns_lshl_b32 s{sT0}, s{sKH}, 17\ns_add_u32 s{sOUT}, s{sOUT}, s{sT0}')
        for k, q in enumerate(order):
            a(f's_waitcnt vmcnt({12 - 4*k})')
            proc(4 + q, f'L_o1_{q}')
        a('L_oretry:')
        a(f's_cmp_eq_u32 s{sPEND}, 0\ns_cbranch_scc1 L_odone\ns_sub_u32 s{sCNT}, s{sCNT}, 1\ns_cbranch_scc1 L_odone')
        for q in range(8):
            a(f's_bitcmp0_b32 s{sPEND}, {q}\ns_cbranch_scc1 L_ol_{q}')
            loads(q)
            a(f'L_ol_{q}:')
        a('s_waitcnt vmcnt(0)')
        for q in range(8):
            a(f's_bitcmp0_b32 s{sPEND}, {q}\ns_cbranch_scc1 L_o2_{q}')
            proc(q, f'L_o2_{q}')
        a('s_branch L_oretry')
        a('L_odone:')
        if self.stamps: a(f's_mov_b32 s{sST+14}, s{sCNT}')
        self.stamp(1)
        fl = {0: '', 1: ' sc1', 2: ' nt', 3: ' sc0 sc1', 4: ' sc1 nt', 5: ' sc0 nt', 6: ' sc0 sc1 nt'}[opt('ofl', 2)]
        a(f's_nop 7\ns_cmp_eq_u32 s{sKH}, 0\ns_cbranch_scc0 L_ohi')
        for kh in range(2):
            keep, send = OA[kh], OA[1 - kh]
            for q in range(4): a(f'ds_write_b128 v{vXW}, {q4(send+4*q)} offset:{L_ACCD + 8192*(q//2) + 1024*(q%2)}')
            self.sig(F_OX)
            self.wait(F_OX, sleep=0, va=vP)
            for q in range(4): a(f'ds_read_b128 {q4(4*q)}, v{vXR} offset:{L_ACCD + 8192*(q//2) + 1024*(q%2)}')
            for r in range(16):
                if r % 4 == 0: a(f's_waitcnt lgkmcnt({3 - r//4})')
                a(f'v_add_f32 v{r}, v{r}, v{keep+r}\ns_add_u32 s{sT0}, s{sOUT}, {((r % 4) + 8 * (r // 4)) * 4096}')
                if 'noo' not in OPT: a(f'buffer_store_dword v{r}, v{vOA}, s[{SOUT}:{SOUT+3}], s{sT0} offen{fl}')
            self.end()
            if kh == 0: a('L_ohi:')

    def kvproj(self):
        a = self.a
        vXA, vWA, vU, vO, vZ, D = 176, 177, 178, 179, 180, 184
        a(f's_lshr_b32 s{sT5}, s{sCG}, 1')
        a(f'v_and_b32 v{vT}, 15, v{vLN}\ns_lshl_b32 s{sT0}, s{sT5}, 4\nv_add_u32 v{vO}, s{sT0}, v{vT}\nv_mul_u32_u24 v{vXA}, 1040, v{vO}')
        a(f'v_lshrrev_b32 v{vU}, 4, v{vLN}\nv_lshl_add_u32 v{vXA}, v{vU}, 4, v{vXA}\nv_add_u32 v{vXA}, {L_A1}, v{vXA}')
        a(f'v_lshlrev_b32 v{vWA}, 3, v{vT}\nv_lshl_add_u32 v{vWA}, v{vU}, 8, v{vWA}\nv_and_b32 v181, 1, v{vU}\nv_lshl_add_u32 v{vWA}, v181, 7, v{vWA}\nv_xor_b32 v181, 128, v{vWA}\nv_add_u32 v{vWA}, {L_WKV}, v{vWA}\nv_add_u32 v181, {L_WKV}, v181')
        a(f's_and_b32 s{sT1}, s{sCG}, 1\ns_xor_b32 s{sT2}, s{sT1}, 1')
        a(f'v_lshrrev_b32 v{vO}, s{sT1}, v{vU}\nv_and_b32 v{vO}, 1, v{vO}\nv_lshlrev_b32 v{vO}, 9, v{vO}\nv_lshl_add_u32 v{vO}, v{vT}, 4, v{vO}')
        a(f'v_lshrrev_b32 v{vT}, s{sT2}, v{vU}\nv_and_b32 v{vT}, 1, v{vT}\nv_lshl_add_u32 v{vO}, v{vT}, 3, v{vO}')
        a(f's_lshl_b32 s{sT0}, s{sRB}, 1\ns_lshr_b32 s{sT2}, s{sT5}, 1\ns_add_u32 s{sT0}, s{sT0}, s{sT2}\ns_lshl_b32 s{sT0}, s{sT0}, 1\ns_add_u32 s{sT0}, s{sT0}, s{sT1}\ns_lshl_b32 s{sT0}, s{sT0}, 10')
        a(f's_and_b32 s{sT2}, s{sT5}, 1\ns_lshl_b32 s{sT2}, s{sT2}, 8\ns_add_u32 s{sT0}, s{sT0}, s{sT2}\ns_add_u32 s{sT3}, s{sT0}, {WS_KVIMG:#x}')
        a(f's_lshl_b32 s{sT4}, s{sRB}, 3\ns_add_u32 s{sT4}, s{sT4}, s{sCG}\ns_lshl_b32 s{sT4}, s{sT4}, {opt("fs", 6)}\ns_add_u32 s{sT4}, s{sT4}, {WS_KVFLAG:#x}')
        a(f'v_mov_b32 v{vZ}, 0')
        a(f's_lshl_b32 s{sT0}, s{sSW}, 8\nv_add_u32 v{vXA}, s{sT0}, v{vXA}\ns_lshl_b32 s{sT0}, s{sSW}, 12\nv_add_u32 v{vWA}, s{sT0}, v{vWA}\nv_add_u32 v181, s{sT0}, v181')
        a(f's_lshl_b32 s{sT0}, s{sSW}, 10\nv_add_u32 v{vU}, s{sT0}, v{vL16}')
        self.wait(F_L1, sleep=0)
        self.stamp(12)
        for s in range(4):
            b = 128 + 8 * s
            a(f'ds_read_b128 {q4(b)}, v{vXA} offset:{64*s}')
            a(f'ds_read_b64_tr_b16 {pr(b+4)}, v{vWA} offset:{1024*s}')
            a(f'ds_read_b64_tr_b16 {pr(b+6)}, v181 offset:{1024*s}')
        a(f's_bitcmp1_b32 s{sCG}, 0\ns_cbranch_scc1 L_kv_v')
        for kind in 'kv':
            for s in range(4):
                a(f's_waitcnt lgkmcnt({3 * (3 - s)})')
                b = 128 + 8 * s
                A, B = (q4(b + 4), q4(b)) if kind == 'k' else (q4(b), q4(b + 4))
                a(f'v_mfma_f32_16x16x32_bf16 {q4(D)}, {A}, {B}, {"0" if s == 0 else q4(D)}')
            if kind == 'k': a('s_branch L_kv_j\nL_kv_v:')
        a('L_kv_j:')
        a(f's_cmp_eq_u32 s{sSW}, 0\ns_cbranch_scc1 L_kv_0\ns_nop 5')
        a(f'ds_write_b128 v{vU}, {q4(D)} offset:{L_QF}')
        self.sig(F_S[4])
        a('s_branch L_nokv')
        a('L_kv_0:')
        self.sig(F_S[4])
        self.wait(F_S[4], sleep=0)
        for q in range(3): a(f'ds_read_b128 {q4(128+4*q)}, v{vL16} offset:{L_QF + 1024*(q+1)}')
        for q in range(3):
            a(f's_waitcnt lgkmcnt({2-q})\nv_pk_add_f32 {pr(D)}, {pr(D)}, {pr(128+4*q)}\nv_pk_add_f32 {pr(D+2)}, {pr(D+2)}, {pr(130+4*q)}')
        a(f'v_cvt_pk_bf16_f32 v188, v{D}, v{D+1}\nv_cvt_pk_bf16_f32 v189, v{D+2}, v{D+3}')
        a(f'buffer_store_dwordx2 v[188:189], v{vO}, s[{SWS}:{SWS+3}], s{sT3} offen{[" sc1", " sc0 sc1", " sc1 nt"][opt("kvst", 0)]}')
        a(f's_bitcmp1_b32 s{sCG}, 0\ns_cbranch_scc1 L_kv_v2')
        a(f'v_mul_f32 v190, v{D}, v{D}\nv_fmac_f32 v190, v{D+1}, v{D+1}\nv_fmac_f32 v190, v{D+2}, v{D+2}\nv_fmac_f32 v190, v{D+3}, v{D+3}')
        a('v_mov_b32 v191, v190\nv_permlane32_swap_b32 v190, v191\nv_add_f32 v190, v190, v191')
        a('v_mov_b32 v191, v190\nv_permlane16_swap_b32 v190, v191\nv_add_f32 v190, v190, v191')
        a('s_mov_b64 exec, 0xffff\ns_branch L_kv_fin')
        a('L_kv_v2:')
        a(f'v_max3_f32 v190, |v{D}|, |v{D+1}|, |v{D+2}|\nv_max_f32 v190, |v{D+3}|, v190')
        a(f's_mov_b32 s{sT1}, {f2u(2.0**50):#x}\nv_cmp_lt_f32 vcc, s{sT1}, v190\nv_mov_b32 v190, 0x7f800000\ns_mov_b64 exec, vcc')
        a('L_kv_fin:')
        a(f'ds_max_u32 v{vZ}, v190 offset:{F_KST}\ns_mov_b64 exec, -1\nds_read_b32 v183, v{vZ} offset:{F_KST}')
        a('s_waitcnt vmcnt(1)')
        self.get_tag()
        if XC: a(f's_getreg_b32 s{sT0}, hwreg(HW_REG_XCC_ID)\nv_mov_b32 v184, s{sT0}')
        a(f'v_mov_b32 v182, s{sTAG}\nds_write_b32 v{vF}, v182 offset:{F_TAG}')
        self.stamp(13)

    def service(self):
        a = self.a
        self.cyc = False
        L1, L8, L16, L128, FF, WW, CC = 192, 194, 196, 198, 200, 202, 204
        DG = 206
        vXD, vXR, vXR2, vBD, vHA, vHB, vSX, vTW, vTR, vEA, vXS, vOA, vWI, vP8, vCK, vCS, vCK2, vCS2, vHF, vYW, vE0, vPF, vTG, vYR = range(214, 238)
        PRM = 238
        vC31, vHI, vU, vWA, vXA, vQ = 242, 243, 244, 245, 246, 247
        a('L_service:')
        if opt('ent', 0): self.code_prefetch()
        a(f'v_mov_b32 v0, 0\nv_mov_b32 v1, 0\nv_mov_b32 v2, 0\nv_mov_b32 v3, 0')
        a(f's_lshl_b32 s{sT0}, s{sSW}, 10\nv_add_u32 v{vT}, s{sT0}, v{vL16}\nds_write_b128 v{vT}, v[0:3] offset:{L_ACCF}')
        a(f'v_lshlrev_b32 v{vT}, 3, v{vLN}\nds_write_b64 v{vT}, v[0:1]')
        a(f'v_and_b32 v{vC31}, 31, v{vLN}\nv_lshlrev_b32 v{vU}, 1, v{vC31}\nv_lshrrev_b32 v{vHI}, 5, v{vLN}')
        a('s_waitcnt lgkmcnt(0)')
        self.stamp(0)
        a('s_setprio 3')
        self.srd(SWS, P(16), WS_SIZE)
        a(f's_cmp_lg_u32 s{sSW}, 0\ns_cbranch_scc1 L_noepl')
        a(f'buffer_load_dword v{vEP}, off, s[{SWS}:{SWS+3}], 0 sc1')
        a('L_noepl:')
        a(f's_lshl_b32 s{sT0}, s{sPB}, 6')
        for k, p in enumerate((6, 7, 12)):
            self.srd(SA, P(p), 1024)
            a(f'buffer_load_ushort v{PRM+k}, v{vU}, s[{SA}:{SA+3}], s{sT0} offen')
        self.srd(SA, P(13), 1024)
        a(f's_lshl_b32 s{sT0}, s{sCG}, 7\ns_and_b32 s{sT1}, s{sWV}, 1\ns_lshl_b32 s{sT1}, s{sT1}, 6\ns_add_u32 s{sT0}, s{sT0}, s{sT1}')
        a(f'buffer_load_ushort v{PRM+3}, v{vU}, s[{SA}:{SA+3}], s{sT0} offen')
        a('s_barrier')
        self.common_regs()
        self.tr_parts(vTR, vU, vWA)
        a(f'v_lshl_add_u32 v{vTR}, v{vU}, 6, v{vTR}\nv_lshl_add_u32 v{vTR}, v{vHI}, 9, v{vTR}')
        a(f'v_lshl_add_u32 v{vWA}, v{vHI}, 10, v{vWA}\nv_add_u32 v{vWA}, {L_A2}, v{vWA}')
        a(f'v_mul_u32_u24 v{vCK}, 1040, v{vC31}\nv_lshl_add_u32 v{vCK}, v{vHI}, 4, v{vCK}\nv_add_u32 v{vCK}, {L_A1}, v{vCK}')
        a(f's_lshr_b32 s{sT0}, s{sSW}, 1\ns_mul_i32 s{sT0}, s{sT0}, {32*1040}\nv_add_u32 v{vXA}, s{sT0}, v{vCK}')
        a(f's_lshl_b32 s{sT0}, s{sSW}, 11\nv_add_u32 v{vQ}, s{sT0}, v{vL16}')
        sXB, sXL, sTP, sCT = 73, 74, 75, 80
        a(f's_lshl_b32 s{sXB}, s{sTB}, 2\ns_add_u32 s{sXB}, s{sXB}, s{sSW}\ns_lshl_b32 s{sXB}, s{sXB}, 15')
        a(f's_mul_i32 s{sXL}, s{sSW}, {XW}\ns_add_u32 s{sXL}, s{sXL}, {L_A2}')
        a(f's_lshl_b32 s{sTP}, s{sRB}, 1\ns_lshr_b32 s{sT0}, s{sSW}, 1\ns_add_u32 s{sTP}, s{sTP}, s{sT0}')
        a(f's_lshl_b32 s{sCT}, s{sCG}, 1\ns_and_b32 s{sT0}, s{sSW}, 1\ns_add_u32 s{sCT}, s{sCT}, s{sT0}')
        a(f'v_lshlrev_b32 v{vT}, 3, v{vHI}\nv_xor_b32 v{vT}, v{vC31}, v{vT}\nv_lshlrev_b32 v{vT}, 4, v{vT}\nv_lshl_add_u32 v{vXD}, v{vHI}, 13, v{vT}\nv_lshl_add_u32 v{vBD}, v{vHI}, 10, v{vT}')
        def tmap(i):
            r = 4 * (i >> 3) + (i & 3)
            return 16 * ((i >> 2) & 1) + (r >> 1) + 8 * (r & 1)
        def xdma(half, ms=range(16)):
            for m in ms:
                a(f's_xor_b32 s{sT0}, s{sXM}, {m}\ns_mul_i32 s{sT0}, s{sT0}, 1040\ns_add_u32 m0, s{sT0}, s{sXL}\ns_xor_b32 s{sT0}, s{sXG}, {tmap(2*m)*1024 + 512*half}')
                a(f'buffer_load_dwordx4 v{vXD}, s[{SA}:{SA+3}], s{sT0} offen{" nt" if (half == 0 and m < opt("xbnt", 0)) else ""} lds')
        sXM, sXG, sHB = 50, 51, 81
        a(f's_and_b32 s{sXM}, s{sPB}, 14\ns_and_b32 s{sT0}, s{sPB}, 2\ns_lshl_b32 s{sT0}, s{sT0}, 3\ns_lshr_b32 s{sT1}, s{sPB}, 2\ns_lshl_b32 s{sT1}, s{sT1}, 1\ns_add_u32 s{sT0}, s{sT0}, s{sT1}\ns_lshl_b32 s{sT0}, s{sT0}, 10')
        a(f's_xor_b32 s{sHB}, s{sPB}, s{sTB}\ns_and_b32 s{sHB}, s{sHB}, {opt("hrot", 1)}\ns_lshl_b32 s{sHB}, s{sHB}, 9\ns_add_u32 s{sT0}, s{sT0}, s{sHB}\ns_add_u32 s{sXG}, s{sXB}, s{sT0}')
        a(f'v_lshrrev_b32 v{vU}, 1, v{vC31}\nv_mul_u32_u24 v{vU}, 1040, v{vU}\nv_lshl_add_u32 v{vU}, v{vHI}, 4, v{vU}\nv_and_b32 v{vT}, 1, v{vC31}')
        a(f'v_mul_u32_u24 v{vHA}, 640, v{vT}\nv_mul_u32_u24 v{vHB}, 384, v{vT}\nv_add_u32 v{vHA}, v{vHA}, v{vU}\nv_add_u32 v{vHB}, v{vHB}, v{vU}')
        a(f'v_add_u32 v{vXR}, s{sXL}, v{vHA}\nv_add_u32 v{vXR2}, s{sXL}, v{vHB}\nv_add_u32 v{vHA}, {L_A1}, v{vHA}\nv_add_u32 v{vHB}, {L_A1}, v{vHB}')
        a(f'v_lshlrev_b32 v{vSX}, 3, v{vLN}\nv_add_u32 v{vSX}, s{sXL}, v{vSX}')
        a(f'v_lshlrev_b32 v{vP8}, 3, v{vC31}\nv_add_u32 v{vP8}, {L_A2}, v{vP8}')
        a(f'v_lshlrev_b32 v{vTW}, 6, v{vC31}\nv_lshl_add_u32 v{vTW}, v{vHI}, 5, v{vTW}\nv_add_u32 v{vTW}, s{sXL}, v{vTW}\nv_add_u32 v{vTR}, s{sXL}, v{vTR}')
        a(f'v_lshlrev_b32 v{vEA}, 4, v{vC31}\nv_xor_b32 v{vT}, 1, v{vHI}\nv_lshl_add_u32 v{vEA}, v{vT}, 12, v{vEA}')
        a(f'v_lshlrev_b32 v{vXS}, 10, v{vC31}\nv_lshl_add_u32 v{vXS}, v{vHI}, 4, v{vXS}')
        a(f'v_lshlrev_b32 v{vOA}, 2, v{vC31}\nv_lshl_add_u32 v{vOA}, v{vHI}, 14, v{vOA}')
        self.wimg_lane_addr(vWI, vT)
        a(f's_and_b32 s{sT0}, s{sSW}, 1\ns_mul_i32 s{sT1}, s{sT0}, {512 - 32*1040}\ns_add_u32 s{sT1}, s{sT1}, {32*1040}\nv_add_u32 v{vCS}, s{sT1}, v{vCK}')
        a(f's_mul_i32 s{sT1}, s{sT0}, {32*1040 + 512}\nv_add_u32 v{vCK}, s{sT1}, v{vCK}\nv_add_u32 v{vCK2}, {L_A2 - L_A1}, v{vCK}\nv_add_u32 v{vCS2}, {L_A2 - L_A1}, v{vCS}')
        a(f'v_and_b32 v{vHF}, 15, v{vLN}\nv_lshlrev_b32 v{vHF}, 7, v{vHF}\nv_lshlrev_b32 v{vPF}, 6, v{vLN}')
        a(f'v_add_u32 v{vYW}, s{sXL}, v{vL16}\ns_xor_b32 s{sT0}, s{sSW}, 1\ns_mul_i32 s{sT0}, s{sT0}, {XW}\ns_add_u32 s{sT0}, s{sT0}, {L_A2}\nv_add_u32 v{vYR}, s{sT0}, v{vL16}')
        self.kvproj()
        a('L_nokv:')
        a(f's_cmp_eq_u32 s{sSW}, 0\ns_cbranch_scc1 L_pw1\ns_waitcnt vmcnt(0)')
        a('L_pw1:')
        a(f'v_lshlrev_b32 v0, 16, v{PRM}\nv_lshlrev_b32 v1, 16, v{PRM+1}\nv_lshlrev_b32 v2, 16, v{PRM+2}')
        LOG2E = f2u(math.log2(math.e))
        a(f'v_mul_f32 v2, {LOG2E:#x}, v2\nv_exp_f32 v2, v2\nv_cvt_pk_bf16_f32 v2, v2, v2\nv_lshlrev_b32 v2, 16, v2')
        a(f'v_mul_f32 v4, v2, v0\nv_mul_f32 v5, v2, v1\nv_mul_f32 v4, {LOG2E:#x}, v4\nv_mul_f32 v5, {f2u(-1/(2*math.pi)):#x}, v5')
        def power(d, n):
            a(f'v_mul_f32 v6, {n}, v4\nv_mul_f32 v7, {n}, v5\nv_exp_f32 v6, v6\nv_fract_f32 v7, v7\nv_cos_f32 v8, v7\nv_sin_f32 v9, v7\nv_mul_f32 v{d}, v6, v8\nv_mul_f32 v{d+1}, v6, v9')
        power(L1, '1.0')
        power(L8, f'{f2u(8.0):#x}')
        power(L16, f'{f2u(16.0):#x}')
        power(L128, f'{f2u(128.0):#x}')
        a(f'v_cvt_f32_u32 v11, v{vHI}\nv_mul_f32 v11, {f2u(1024.0):#x}, v11')
        power(FF, 'v11')
        a(f's_lshl_b32 s{sT0}, s{sSW}, 1\nv_add_u32 v11, s{sT0}, v{vHI}\nv_cvt_f32_u32 v11, v11\nv_mul_f32 v11, {f2u(16.0):#x}, v11')
        power(WW, 'v11')
        a(f'v_add_f32 v6, -1.0, v{L1}\nv_mul_f32 v7, v0, v0\nv_fmac_f32 v7, v1, v1\nv_rcp_f32 v7, v7\nv_add_f32 v7, v7, v7')
        a(f'v_mul_f32 v8, v6, v0\nv_fma_f32 v8, -v{L1+1}, v1, v8\nv_mul_f32 v9, v6, v1\nv_fma_f32 v9, -v{L1+1}, v0, -v9\nv_mul_f32 v{CC}, v8, v7\nv_mul_f32 v{CC+1}, v9, v7')
        a(f'v_and_b32 v6, 1, v{vLN}\nv_lshlrev_b32 v6, 4, v6\nv_lshlrev_b32 v3, v6, v{PRM+3}')
        a(f'v_lshrrev_b32 v6, 1, v{vC31}\nv_lshlrev_b32 v7, 2, v{vHI}\nv_sub_u32 v6, v6, v7')
        for q in range(8):
            a(f'v_cmp_eq_u32 vcc, {8*(q//4) + q%4}, v6\nv_cndmask_b32 v{DG+q}, 0, v3, vcc')
        LC = PRM
        a(f'v_mov_b32 v{LC}, 0\nv_mov_b32 v{LC+1}, 0')
        WT, D = 128, 160
        def kvflag():
            a(f's_cmp_lg_u32 s{sSW}, 0\ns_cbranch_scc1 L_nokvf')
            a('s_waitcnt vmcnt(0)')
            a(f's_mov_b64 exec, {(1 << (1 << (opt("fs", 6) - 4))) - 1:#x}\nbuffer_store_dwordx4 v[182:185], v{vL16}, s[{SWS}:{SWS+3}], s{sT4} offen sc1\ns_mov_b64 exec, -1')
            self.sig(F_KVD, va=vF)
            self.stamp(14)
            a('L_nokvf:')
        FP = opt('fp', 16)
        if FP < 0:
            a('s_waitcnt lgkmcnt(0)'); kvflag()
        self.wait(F_L2, sleep=1)
        self.stamp(1)
        vXQ = [vU, 186, 187, 191]
        a(f's_and_b32 s{sT1}, s{sRB}, 3')
        for c in range(4): a(f's_xor_b32 s{sT0}, s{sT1}, {c}\ns_lshl_b32 s{sT0}, s{sT0}, 8\nv_add_u32 v{vXQ[c]}, s{sT0}, v{vXA}')
        def xr(st): a(f'ds_read_b128 {q4(4*st)}, v{vXQ[st//8]} offset:{32*(st%8)}')
        NPR = opt('npr', 16)
        if FP == 0: kvflag()
        for k, st in enumerate(range(32 - NPR, 32)):
            xr(st)
            if FP == 8 and k == opt('fpk', 15): kvflag()
        if FP == 16: kvflag()
        lq = []
        def wr(st):
            b = WT + 4 * (st % 8)
            if st < 32 - NPR: xr(st); lq.append(st)
            a(f'ds_read_b64_tr_b16 {pr(b)}, v{vWA} offset:{2048*st}\nds_read_b64_tr_b16 {pr(b+2)}, v{vWA} offset:{2048*st+512}')
            lq.extend([st, st])
        for s0, s1, fl in ((0, 16, F_L4), (16, 32, F_L6)):
            self.wait(fl, sleep=0)
            if s0 == 0:
                self.stamp(2)
            dp = 4 if s0 < 32 - NPR else 6
            for st in range(s0, s0 + dp): wr(st)
            for st in range(s0, s1):
                lq[:] = [x for x in lq if x > st]
                a(f's_waitcnt lgkmcnt({len(lq)})')
                a(f'v_mfma_f32_32x32x16_bf16 {t16(D)}, {q4(WT + 4*(st%8))}, {q4(4*st)}, {"0" if st == 0 else t16(D)}')
                if st + dp < s1: wr(st + dp)
            if s0 == 0:
                if FP == 32: kvflag()
                self.wait(F_KVD, sleep=0)
                self.sig(F_QA)
                a(f'ds_read_b32 v{vTG}, v{vF} offset:{F_TAG}')
        QS = f2u(0.25 * math.log2(math.e))
        a(f'v_mov_b32 v24, {QS:#x}')
        for r in range(8):
            a(f'v_pk_mul_f32 {pr(D+2*r)}, v[24:25], {pr(D+2*r)} op_sel:[0,0] op_sel_hi:[0,1]')
            a(f'v_cvt_pk_bf16_f32 v{16+r}, v{D+2*r}, v{D+2*r+1}')
            if r == 3: a(f'ds_write_b128 v{vQ}, v[16:19] offset:{L_QF}')
        a(f'ds_write_b128 v{vQ}, v[20:23] offset:{L_QF+1024}')
        self.sig(F_QP)
        self.stamp(3)
        self.mute = 'front' in OPT
        a(f'v_mul_f32 v8, v{D}, v{D}\nv_mul_f32 v9, v{D+8}, v{D+8}')
        for r in range(1, 8): a(f'v_fmac_f32 v8, v{D+r}, v{D+r}\nv_fmac_f32 v9, v{D+8+r}, v{D+8+r}')
        a('v_permlane32_swap_b32 v8, v9\nv_add_f32 v8, v8, v9')
        a(f'v_mov_b32 v{vQ}, v8')
        if 'nosvc' in OPT:
            self.sig(F_S[0]); self.sig(F_S[9]); self.end(); return
        vCL = vXA
        HR_ = opt('hr', 0)
        a(f's_and_b32 s{sT0}, s{sCG}, {3 if HR_ else 0}\ns_lshl_b32 s{sT0}, s{sT0}, 7\nv_xor_b32 v{vCL}, s{sT0}, v{vL16}')
        SN = 180
        a(f'v_readfirstlane_b32 s{sTAG}, v{vTG}')
        a(f'v_mov_b32 v{SN}, -1\nv_mov_b32 v{SN+1}, -1\nv_mov_b32 v{SN+2}, -1\nv_mov_b32 v{SN+3}, -1\nv_mov_b32 v{SN+4}, 0\nv_mov_b32 v{SN+5}, 0\nv_mov_b32 v{SN+6}, v{vTG}\nv_mov_b32 v{SN+7}, 0')
        self.srd(SA, P(5), 2048 * 1024)
        self.srd(SB, P(8), 512 * 1024)
        self.srd(SC, P(9), 512 * 1024)
        self.stamp(11)
        def bdma(half, only=None):
            if half == 0: a(f's_mul_i32 s{sT1}, s{sSW}, {4*1040}\ns_lshl_b32 s{sT2}, s{sPB}, 15\ns_lshl_b32 s{sT3}, s{sSW}, 13\ns_add_u32 s{sT2}, s{sT2}, s{sT3}\ns_add_u32 s{sT2}, s{sT2}, s{sHB}')
            for pl, srd in ((0, SB), (1, SC)):
                for m in range(4):
                    if only is not None and only != 4 * pl + m: continue
                    a(f's_add_u32 m0, s{sT1}, {L_A1 + ((2*half + pl)*16 + m)*1040}\ns_xor_b32 s{sT0}, s{sT2}, {2048*m + 512*half}')
                    a(f'buffer_load_dwordx4 v{vBD}, s[{srd}:{srd+3}], s{sT0} offen lds')
        def xread(half):
            for s in range(16): a(f'ds_read_b128 {q4(64*half + 4*s)}, v{vXR2 if s & 4 else vXR} offset:{32*s}')
        def rowdma(srd, base, sg, n):
            for m in range(n):
                if m % 4 == 0: a(f's_add_u32 m0, s{sT1}, {base + m*1040}\ns_add_u32 s{sT0}, s{sg}, {1024*m}')
                else: a('s_add_u32 m0, m0, 16')
                a(f'buffer_load_dwordx4 v{vCL}, s[{srd}:{srd+3}], s{sT0} offen offset:{1024*(m%4)} lds')
        self.wait(F_A1, sleep=opt('a1s', 4))
        self.stamp(10)
        a(f'ds_read_b64 {pr(SN+8)}, v{SN+4} offset:{F_KMAX}')
        xdma(0, range(2)); a(f's_mov_b32 s{sT0}, {f2u(3400.0):#x}\ns_waitcnt lgkmcnt(0)')
        a(f'v_mul_f32 v{vT}, v{SN+8}, v{vQ}\nv_cmp_nge_f32 vcc, s{sT0}, v{vT}' + (f'\nv_readfirstlane_b32 s{sXC}, v{SN+9}' if XC else '') + f'\ns_cmp_eq_u64 vcc, 0\ns_cselect_b32 s{sT0}, 1, 2\nv_mov_b32 v{vQ}, s{sT0}')
        a(f'ds_write_b32 v{vS}, v{vQ} offset:{F_S[0]}')
        bdma(0); xdma(0, range(2, 16))
        a('s_waitcnt vmcnt(0)')
        self.sig(F_S[1])
        self.stamp(4)
        xread(0)
        self.wait(F_S[1], sleep=1)
        self.stamp(5)
        GR, GI, BT = 128, 144, 160
        PD = 2 * opt('s1depth', 1)
        lq = []
        def bread(q):
            s, pl = q // 2, q % 2
            a(f'ds_read_b128 {q4(BT + 4*(q%4))}, v{vHB if s & 4 else vHA} offset:{((2*(s//16) + pl)*16)*1040 + 32*(s%16)}')
            lq.append(('b', q))
        a(f's_setprio {opt("gprio1", 0)}')
        for q in range(PD): bread(q)
        XQ = opt('xq', 21)
        for q in range(1, 64, 2):
            s = q // 2
            need = max([i for i, x in enumerate(lq) if x == ('b', q) or x == ('x', s)] + [-1])
            if need >= 0:
                a(f's_waitcnt lgkmcnt({len(lq) - 1 - need})')
                del lq[:need + 1]
            for pl, Gx in ((0, GR), (1, GI)):
                a(f'v_mfma_f32_32x32x16_bf16 {t16(Gx)}, {q4(4*s)}, {q4(BT + 4*((q-1+pl)%4))}, {"0" if s == 0 else t16(Gx)}')
            if q - 1 + PD == 32:
                a('s_setprio 3')
                self.wait(F_S[2], sleep=1); lq.clear()
                a(f's_setprio {opt("gprio1", 0)}')
                self.stamp(12)
            if XQ < q <= XQ + 32:
                sx = (q - XQ) // 2 - 1
                a(f'ds_read_b128 {q4(64 + 4*sx)}, v{vXR2 if sx & 4 else vXR} offset:{32*sx}'); lq.append(('x', 16 + sx))
            if q + PD < 64: bread(q - 1 + PD); bread(q + PD)
            if s < 2:
                for m in range(4): bdma(1, 4 * s + m)
            elif s < 6: xdma(1, range(4 * s - 8, 4 * s - 4))
            elif opt('pad1', 0): a(f's_nop {opt("pad1", 0) - 1}')
            if q == XQ:
                a('s_waitcnt vmcnt(0)')
                self.sig(F_S[2]); lq.append(('s', 0))
                a(f's_or_b32 s{sT0}, s2, s{sSW}\ns_cbranch_scc1 L_noep')
                a(f's_mov_b64 exec, 1\nbuffer_store_dword v{vTG}, off, s[{SWS}:{SWS+3}], 0 sc1\ns_mov_b64 exec, -1')
                a('L_noep:')
                a(f's_cmp_lg_u32 s{sTB}, 0\ns_cbranch_scc1 L_nozero')
                a(f's_lshl_b32 s{sT0}, s{sPB}, 14\ns_lshl_b32 s{sT1}, s{sSW}, 11\ns_add_u32 s{sT0}, s{sT0}, s{sT1}\ns_add_u32 s{sT0}, s{sT0}, {WS_EBUF:#x}')
                for n in range(2): a(f'buffer_store_dwordx4 {q4(SN+4)}, v{vL16}, s[{SWS}:{SWS+3}], s{sT0} offen offset:{1024*n} sc1')
                a('L_nozero:')
                a(f's_lshr_b32 s{sT0}, s{sSW}, 1\ns_and_b32 s{sT1}, s{sRB}, 1\ns_cmp_lg_u32 s{sT0}, s{sT1}\ns_cbranch_scc1 L_nosent')
                a(f's_lshl_b32 s{sT1}, s{sCG}, 12\ns_add_u32 s{sT0}, s{sXB}, s{sT1}\ns_add_u32 s{sT0}, s{sT0}, {WS_OBUF:#x}')
                self.xstore([f'buffer_store_dwordx4 {q4(SN)}, v{vL16}, s[{SWS}:{SWS+3}], s{sT0} offen offset:{1024*n}' for n in range(4)], 's')
                a('L_nosent:')
                if opt('pf', 1): self.prefetch((10, 11, 4), vPF)
        a('s_setprio 3')
        self.stamp(6)
        if opt('stop', 0) == 6: self.end(); return
        RE = 'op_sel:[0,0,0] op_sel_hi:[0,1,1]'
        IM = 'op_sel:[1,0,0] op_sel_hi:[1,1,1]'
        T0, T1 = 8, 10
        def pstep(dr, di, sr, si, l, ur, ui, ns=0, nu=0):
            a(f'v_pk_fma_f32 {pr(T0)}, {pr(l)}, {pr(si)}, {pr(ur)} {IM} neg_lo:[{1-ns},0,0] neg_hi:[{1-ns},0,0]')
            a(f'v_pk_fma_f32 {pr(T1)}, {pr(l)}, {pr(sr)}, {pr(ui)} {IM} neg_lo:[0,0,{nu}] neg_hi:[0,0,{nu}]')
            a(f'v_pk_fma_f32 {pr(dr)}, {pr(l)}, {pr(sr)}, {pr(T0)} {RE}')
            a(f'v_pk_fma_f32 {pr(di)}, {pr(l)}, {pr(si)}, {pr(T1)} {RE} neg_lo:[{ns},0,0] neg_hi:[{ns},0,0]')
        def cstep(dr, di, sr, si, l, ur, ui):
            a(f'v_fma_f32 v{T0}, -v{l+1}, v{si}, v{ur}\nv_fma_f32 v{T1}, v{l+1}, v{sr}, v{ui}\nv_fma_f32 v{dr}, v{l}, v{sr}, v{T0}\nv_fma_f32 v{di}, v{l}, v{si}, v{T1}')
        def zstep(d, s, l, u):
            a(f'v_pk_fma_f32 {pr(T0)}, {pr(l)}, {pr(s)}, {pr(u)} {RE}')
            a(f'v_pk_fma_f32 {pr(d)}, {pr(l)}, {pr(s)}, {pr(T0)} op_sel:[1,1,0] op_sel_hi:[1,0,1] neg_lo:[1,0,0]')
        def cmul(r, i, neg):
            a(f'v_pk_mul_f32 {pr(T0)}, {pr(CC)}, {pr(i)} op_sel:[1,0] op_sel_hi:[1,1]')
            a(f'v_pk_mul_f32 {pr(T1)}, {pr(CC)}, {pr(r)} op_sel:[1,0] op_sel_hi:[1,1]')
            a(f'v_pk_fma_f32 {pr(r)}, {pr(CC)}, {pr(r)}, {pr(T0)} {RE} neg_lo:[0,0,{neg}] neg_hi:[0,0,{neg}]')
            a(f'v_pk_fma_f32 {pr(i)}, {pr(CC)}, {pr(i)}, {pr(T1)} {RE} neg_lo:[{neg},0,1] neg_hi:[{neg},0,1]')
        ER, EI, EE = 12, 14, 16
        pstep(ER, EI, GR, GI, L1, GR + 2, GI + 2, 1, 1)
        for r in range(4, 16, 2): pstep(ER, EI, ER, EI, L1, GR + r, GI + r, 0, 1)
        cstep(EE, EE + 1, ER, EI, L8, ER + 1, EI + 1)
        a(f'ds_write_b64 v{vSX}, {pr(EE)} offset:{L_SXO}')
        self.sig(F_S[3])
        self.srd(SB, P(10), 512 * 1024)
        self.srd(SC, P(11), 512 * 1024)
        if HR_:
            a(f's_bitcmp1_b32 s{sCG}, 2\ns_cselect_b32 s{SB}, s{P(11)}, s{P(10)}\ns_cselect_b32 s{SB+1}, s{P(11)+1}, s{P(10)+1}\ns_cselect_b32 s{SC}, s{P(10)}, s{P(11)}\ns_cselect_b32 s{SC+1}, s{P(10)+1}, s{P(11)+1}')
        a(f's_lshl_b32 s{sT3}, s{sSW}, 1\ns_mov_b32 s{sM0}, 0\ns_mov_b32 s{sM0+1}, -1')
        a(f's_lshl_b32 s{sT4}, s{sPB}, 14\ns_lshl_b32 s{sT1}, s{sTB}, 9\ns_add_u32 s{sT4}, s{sT4}, s{sT1}\ns_add_u32 s{sT4}, s{sT4}, {WS_EBUF:#x}')
        self.wait(F_S[3], sleep=1)
        for c in range(7): a(f'ds_read_b64 {pr(20+2*c)}, v{vP8} offset:{(c//2)*XW + L_SXO + (c%2)*256}')
        a('s_waitcnt lgkmcnt(0)')
        for c in range(7):
            a(f's_cmp_lt_u32 s{sT3}, {c}\ns_cbranch_scc1 L_lh_done')
            a(f's_cmp_gt_u32 s{sT3}, {c}\ns_cselect_b64 exec, -1, s[{sM0}:{sM0+1}]')
            zstep(LC, LC, L16, 20 + 2 * c)
        zstep(vTG - 2, LC, L16, EE)
        a(f's_add_u32 s{sT0}, s{sT4}, {16*512 - 512}\nbuffer_store_dwordx4 v[{vTG-2}:{vTG+1}], v{vL16}, s[{SWS}:{SWS+3}], s{sT0} offen sc1')
        a('L_lh_done:\ns_mov_b64 exec, -1')
        self.stamp(7)
        def cdma(srd, base):
            a(f's_mul_i32 s{sT1}, s{sSW}, {16*1040}\ns_lshl_b32 s{sT2}, s{sCG}, 16\ns_lshl_b32 s{sT3}, s{sSW}, 14\ns_add_u32 s{sT2}, s{sT2}, s{sT3}')
            rowdma(srd, base, sT2, 16)
        if not opt('cmf', 1): cdma(SB, L_A1)
        for r in range(0, 16, 2): cmul(GR + r, GI + r, 1)
        if opt('cmf', 1): cdma(SB, L_A1)
        a(f's_mov_b32 s{sCNT}, 100000')
        a('L_eg:')
        for q in range(8): a(f'buffer_load_dwordx3 v[{24+4*q}:{26+4*q}], v{vEA}, s[{SWS}:{SWS+3}], s{sT4} offen offset:{512*q} sc1')
        a('s_waitcnt vmcnt(0)')
        a(f'v_cmp_ne_u32 vcc, s{sTAG}, v26')
        for q in range(1, 8): a(f'v_cmp_ne_u32 s[{sM1}:{sM1+1}], s{sTAG}, v{26+4*q}\ns_or_b64 vcc, vcc, s[{sM1}:{sM1+1}]')
        a(f's_cbranch_scc0 L_egd\ns_sleep {opt("esleep", 10)}\ns_sub_u32 s{sCNT}, s{sCNT}, 1\ns_cbranch_scc0 L_eg')
        a('L_egd:')
        self.sig(F_S[9])
        self.stamp(8)
        for q in range(1, 8): zstep(24, 24, L128, 24 + 4 * q)
        a(f'v_pk_mul_f32 {pr(T0)}, {pr(FF)}, {pr(24)} op_sel:[0,0] op_sel_hi:[0,1]')
        a(f'v_pk_fma_f32 {pr(20)}, {pr(FF)}, {pr(24)}, {pr(T0)} op_sel:[1,1,0] op_sel_hi:[1,0,1] neg_lo:[1,0,0]')
        a(f'v_mov_b32 v22, v20\nv_mov_b32 v23, v21\nv_permlane32_swap_b32 v20, v22\nv_permlane32_swap_b32 v21, v23\nv_pk_add_f32 {pr(20)}, {pr(20)}, {pr(22)}')
        IR, II = 24, 26
        cstep(IR, II, 20, 21, WW, LC, LC + 1)
        cstep(IR + 1, II + 1, IR, II, L8, ER, EI)
        cmul(IR, II, 0)
        pstep(GR, GI, IR, II, L1, GR, GI)
        for r in range(2, 16, 2): pstep(GR + r, GI + r, GR + r - 2, GI + r - 2, L1, GR + r, GI + r)
        for pl, Gx in ((0, GR), (1, GI)):
            for j in range(8):
                r0 = 4 * (j % 4) + j // 4
                a(f'v_cvt_pk_bf16_f32 v{28+8*pl+j}, v{Gx+r0}, v{Gx+r0+2}')
            a(f'ds_write_b128 v{vTW}, {q4(28+8*pl)} offset:{L_TBO+2048*pl}\nds_write_b128 v{vTW}, {q4(32+8*pl)} offset:{L_TBO+2048*pl+16}')
        for pl in range(2):
            for f in range(2):
                d = 44 + 8 * pl + 4 * f
                a(f'ds_read_b64_tr_b16 {pr(d)}, v{vTR} offset:{L_TBO+2048*pl+1024*f}\nds_read_b64_tr_b16 {pr(d+2)}, v{vTR} offset:{L_TBO+2048*pl+1024*f+256}')
        a(f's_lshl_b32 s{sT0}, s{sXB}, 1\ns_lshl_b32 s{sT1}, s{sPB}, 11\ns_add_u32 s{sT0}, s{sT0}, s{sT1}\ns_add_u32 s{sT0}, s{sT0}, {WS_HBUF:#x}\ns_add_u32 s{sT1}, s{sT0}, 0x8000')
        hs = []
        for pl in range(2):
            for f in range(2):
                d = 44 + 8 * pl + 4 * f
                hs += [f's_waitcnt lgkmcnt({6 - 4*pl - 2*f})', f'buffer_store_dwordx4 {q4(d)}, v{vL16}, s[{SWS}:{SWS+3}], s{sT0 if pl == 0 else sT1} offen offset:{1024*f}']
        self.xstore(hs, 'h')
        YK, YS, XF, HR = 128, 144, 184, 160
        a(f's_lshl_b32 s{sT0}, s{sTP}, 15\ns_lshl_b32 s{sT1}, s{sCT}, 6\ns_add_u32 s{sT0}, s{sT0}, s{sT1}')
        a(f'buffer_load_dwordx4 {q4(XF)}, v{vXS}, s[{SA}:{SA+3}], s{sT0} offen\nbuffer_load_dwordx4 {q4(XF+4)}, v{vXS}, s[{SA}:{SA+3}], s{sT0} offen offset:32')
        a(f's_lshr_b32 s{sT4}, s{sXB}, 4\ns_lshl_b32 s{sT3}, s{sPB}, 7\ns_add_u32 s{sT4}, s{sT4}, s{sT3}\ns_add_u32 s{sT4}, s{sT4}, {WS_HFLAG:#x}')
        self.wait(F_S[9], sleep=1)
        if opt('cearly', 1):
            for j in range(16): a(f'ds_read_b128 {q4(8*j)}, v{vCK} offset:{32*j}\nds_read_b128 {q4(8*j+4)}, v{vCS} offset:{32*j}')
            self.sig(F_S[6])
        a(f's_mov_b32 s{sM1}, -1\ns_mov_b32 s{sM1+1}, 0\ns_waitcnt vmcnt(2)')
        a(f's_mov_b64 exec, s[{sM1}:{sM1+1}]')
        self.xstore([f'buffer_store_dword v{vTG}, v{vOA}, s[{SWS}:{SWS+3}], s{sT4} offen'], 'h')
        a('s_mov_b64 exec, -1')
        self.stamp(9)
        if opt('stop', 0) == 9: self.end(); return
        LATE = opt('late', 1)
        if not LATE: cdma(SC, L_A2)
        if not opt('cearly', 1):
            for j in range(16): a(f'ds_read_b128 {q4(8*j)}, v{vCK} offset:{32*j}\nds_read_b128 {q4(8*j+4)}, v{vCS} offset:{32*j}')
            self.sig(F_S[6])
        a(f's_waitcnt vmcnt({1 if LATE else 17})')
        a(f'v_mfma_f32_32x32x16_bf16 {t16(YK)}, {q4(XF)}, {q4(DG)}, 0')
        a(f'v_mfma_f32_32x32x16_bf16 {t16(YK)}, {q4(XF+4)}, {q4(DG+4)}, {t16(YK)}')
        self.srd(SB, P(4), 512 * 1024)
        a(f's_lshl_b32 s{sT4}, s{sSW}, 17\ns_lshl_b32 s{sT1}, s{sCG}, 7\ns_add_u32 s{sT4}, s{sT4}, s{sT1}\ns_and_b32 s{sT1}, s{sCG}, 3\ns_lshl_b32 s{sT1}, s{sT1}, 16\ns_xor_b32 s{sT4}, s{sT4}, s{sT1}\ns_lshl_b32 s{sT1}, s{sSW}, 14\ns_add_u32 m0, s{sT1}, {L_A1}')
        self.wait(F_S[6], sleep=1)
        for m in range(16):
            a(f's_xor_b32 s{sT0}, s{sT4}, {8192*m:#x}\nbuffer_load_dwordx4 v{vWI}, s[{SB}:{SB+3}], s{sT0} offen lds\ns_add_u32 m0, m0, 1024')
        a(f's_lshl_b32 s{sT0}, s{sTP}, 11\ns_add_u32 s{sT0}, s{sT0}, {WS_HFLAG:#x}\ns_mov_b64 exec, 0xffff')
        a(f's_mov_b32 s{sCNT}, 100000')
        a('L_gph:')
        a(f'buffer_load_dword v{vT}, v{vHF}, s[{SWS}:{SWS+3}], s{sT0} offen sc1\ns_waitcnt vmcnt(0)\nv_cmp_ne_u32 vcc, s{sTAG}, v{vT}\ns_cbranch_vccz L_gdh')
        a(f's_sleep {opt("hsleep", 10)}\ns_sub_u32 s{sCNT}, s{sCNT}, 1\ns_cbranch_scc0 L_gph')
        a('L_gdh:\ns_mov_b64 exec, -1')
        self.sig(F_S[5])
        self.stamp(13)
        if opt('stop', 0) == 10: self.end(); return
        a(f's_lshl_b32 s{sT3}, s{sTP}, 16\ns_and_b32 s{sT0}, s{sSW}, 1\ns_lshl_b32 s{sT0}, s{sT0}, 14\ns_add_u32 s{sT3}, s{sT3}, s{sT0}\ns_add_u32 s{sT3}, s{sT3}, {WS_HBUF:#x}')
        if HR_: a(f's_and_b32 s{sT0}, s{sCG}, 3\ns_lshl_b32 s{sT0}, s{sT0}, 12\ns_add_u32 s{sT3}, s{sT3}, s{sT0}\ns_and_b32 s{sT0}, s{sCG}, 4\ns_lshl_b32 s{sT0}, s{sT0}, 13\ns_add_u32 s{sT3}, s{sT3}, s{sT0}')
        NR = 13
        vq = []
        def hload(j):
            go = lambda g: ((g % 4) << 12) | ((g // 4) << 15)
            if j % 4 == 0 and j > 0: a(f's_xor_b32 s{sT3}, s{sT3}, {go(j // 4) ^ go(j // 4 - 1):#x}')
            a(f'buffer_load_dwordx4 {q4(HR + 4*(j%NR))}, v{vL16}, s[{SWS}:{SWS+3}], s{sT3} offen offset:{1024*(j%4)} sc1')
            vq.append(('h', j))
        for j in range(NR - 1): hload(j)
        a(f's_setprio {opt("gprio4", 0)}')
        lq = []
        def cread(j, k):
            a(f'ds_read_b128 {q4(8*(j%16) + 4*k)}, v{vCS2 if k else vCK2} offset:{32*(j%16)}')
        if not LATE:
            a('s_setprio 3')
            self.wait(F_S[5], sleep=1)
            a(f's_setprio {opt("gprio4", 0)}')
        else:
            a(f's_mul_i32 s{sT1}, s{sSW}, {16*1040}\ns_lshl_b32 s{sT2}, s{sCG}, 16\ns_lshl_b32 s{sT4}, s{sSW}, 14\ns_add_u32 s{sT2}, s{sT2}, s{sT4}')
        FJ = opt('fj', 22); CS = opt('cs', 9); CW = opt('cw', 11)
        pend = [(jj, k) for jj in range(16, 32) for k in range(2)]
        SF = opt('sf', 1)
        for j in range(FJ + 1 if SF else 32):
            w = 's_waitcnt lgkmcnt(0)'
            if ('h', j) in vq:
                need = vq.index(('h', j))
                w = f's_waitcnt vmcnt({len(vq) - 1 - need}) lgkmcnt(0)'
                del vq[:need + 1]
            a(w)
            c = 8 * (j % 16); h = q4(HR + 4 * (j % NR))
            a(f'v_mfma_f32_32x32x16_bf16 {t16(YK)}, {h}, {q4(c)}, {t16(YK)}')
            a(f'v_mfma_f32_32x32x16_bf16 {t16(YS)}, {h}, {q4(c+4)}, {"0" if j == 0 else t16(YS)}')
            if not LATE:
                if j < 16: cread(16 + j, 0)
                if 15 <= j < min(31, FJ): cread(j + 1, 1)
                if j == FJ:
                    for jj in range(j + 1, 32): cread(jj, 1)
            else:
                if j < 4:
                    for m in range(4 * j, 4 * j + 4):
                        if m % 4 == 0: a(f's_add_u32 m0, s{sT1}, {L_A2 + m*1040}\ns_add_u32 s{sT0}, s{sT2}, {1024*m}')
                        else: a('s_add_u32 m0, m0, 16')
                        a(f'buffer_load_dwordx4 v{vCL}, s[{SC}:{SC+3}], s{sT0} offen offset:{1024*(m%4)} lds')
                        vq.append(('c', m))
                if j == CS:
                    need = vq.index(('c', 15))
                    a(f's_waitcnt vmcnt({len(vq) - 1 - need})'); del vq[:need + 1]
                    self.sig(F_WO)
                if j == CW:
                    a('s_setprio 3')
                    self.wait(F_WO, sleep=1)
                    a(f's_setprio {opt("gprio4", 0)}')
                if j >= CW:
                    n = len(pend) if j >= FJ else 2
                    for _ in range(n):
                        if pend and pend[0][0] - 16 <= j: cread(*pend.pop(0))
                    assert not pend or pend[0][0] > j + 1
            if j + NR - 1 < 32: hload(j + NR - 1)
            if 's4st' in OPT and j in (0, 4, 10, 16, 22, 31): self.stamp({0: 1, 4: 3, 10: 4, 16: 5, 22: 10, 31: 11}[j])
            HJ = opt('hj', 20)
            if opt('pad4', 0) and j < HJ: a(f's_nop {opt("pad4", 0) - 1}')
            if j == HJ - 1:
                a('s_setprio 3')
                self.wait(F_AX, sleep=opt('hjs', 4), va=vS); lq.clear()
                a(f's_setprio {opt("gprio5", 0)}')
        if SF:
            assert LATE and not pend and FJ + NR - 1 >= 31
            self.sig(F_S[7])
            a('s_waitcnt vmcnt(0) lgkmcnt(0)')
            for j in range(FJ + 1, 32): a(f'v_mfma_f32_32x32x16_bf16 {t16(YS)}, {q4(HR + 4*(j%NR))}, {q4(8*(j%16)+4)}, {t16(YS)}')
            ky = [f'v_mfma_f32_32x32x16_bf16 {t16(YK)}, {q4(HR + 4*(j%NR))}, {q4(8*(j%16))}, {t16(YK)}' for j in range(FJ + 1, 32)]
            a(ky.pop(0)); a(ky.pop(0))
        a('s_setprio 3')
        if not SF: self.sig(F_S[7])
        self.srd(SOUT, P(14), 2048 * 4096)
        a(f's_lshl_b32 s{sT2}, s{sTP}, 17\ns_lshl_b32 s{sT1}, s{sCT}, 7\ns_add_u32 s{sT2}, s{sT2}, s{sT1}')
        self.wait(F_S[7], sleep=1)
        for q in range(4):
            a(f'ds_write_b128 v{vYW}, {q4(YS+4*q)} offset:{1024*q}')
            if SF and ky and q < 3: a(ky.pop(0))
        self.sig(F_S[8])
        if SF:
            for x in ky: a(x)
            a('s_nop 0')
        if 's4st' in OPT: self.stamp(12)
        self.wait(F_S[8], sleep=1)
        for q in range(4): a(f'ds_read_b128 {q4(YS+4*q)}, v{vYR} offset:{1024*q}')
        a('s_waitcnt lgkmcnt(0)')
        fl = {0: '', 1: ' sc1', 2: ' nt', 3: ' sc0 sc1', 4: ' sc1 nt', 5: ' sc0 nt', 6: ' sc0 sc1 nt'}[opt('yfl', 2)]
        for r in range(0, 16, 2): a(f'v_pk_add_f32 {pr(YS+r)}, {pr(YK+r)}, {pr(YS+r)}')
        for r in range(16):
            a(f's_add_u32 s{sT0}, s{sT2}, {((r % 4) + 8 * (r // 4)) * 4096}')
            if 'noy' not in OPT: a(f'buffer_store_dword v{YS+r}, v{vOA}, s[{SOUT}:{SOUT+3}], s{sT0} offen offset:2048{fl}')
        self.stamp(2)
        self.end()

HEADER = open('cdna_kernels/' + NAME + '.s.ref').read().split('; Override launch')[0]

DOC = '''; ---------------------------------------------------------------------------------------------
; ---------------------------------------------------------------------------------------------
'''

def make(stamps=False):
    g = G(stamps)
    body = g.build()
    txt = HEADER + f'; @launch grid=(256,1,1) block=(512,1,1) lds={L_TOTAL}\n' + DOC
    txt += f'''.amdgcn_target "amdgcn-amd-amdhsa--gfx950"
.text
.globl {NAME}_kernel
.p2align 8
.type {NAME}_kernel,@function
{NAME}_kernel:
{body}.section .rodata,"a"
.p2align 6
.amdhsa_kernel {NAME}_kernel
  .amdhsa_next_free_vgpr 256
  .amdhsa_next_free_sgpr 102
  .amdhsa_accum_offset 256
  .amdhsa_group_segment_fixed_size 0
  .amdhsa_kernarg_size 136
  .amdhsa_user_sgpr_count 2
  .amdhsa_user_sgpr_kernarg_segment_ptr 1
  .amdhsa_system_sgpr_workgroup_id_x 1
.end_amdhsa_kernel
'''
    return txt, g.a.n_ins

if __name__ == '__main__':
    pos = [x for x in sys.argv[1:] if not x.startswith('--')]
    out = pos[0] if pos else 'cdna_kernels/' + NAME + '.s'
    txt, n = make(stamps='stamps' in OPT)
    open(out, 'w').write(txt)
    print('wrote', out, n, 'instructions')
```

```python
import sys, math, struct
from asm import Asm

NAME = 'concat_heads__grouped_kv_mqa__ssm_conv_s5__prompt'
OPT = dict((x[2:].split('=') + ['1'])[:2] for x in sys.argv if x.startswith('--'))
def opt(k, d): return int(OPT.get(k, d))
XC = opt('xco', 0) or opt('xch', 0) or opt('xcs', 0)
def f2u(x): return struct.unpack('<I', struct.pack('<f', x))[0]
def pr(r): return f'v[{r}:{r+1}]'
def q4(r): return f'v[{r}:{r+3}]'
def t16(r): return f'v[{r}:{r+15}]'

WS_KVFLAG = 0x8000
WS_KVIMG = 0x10000
WS_EBUF = 0x40000
WS_HFLAG = 0x80000
WS_OBUF = 0x100000
WS_HBUF = 0x400000
WS_DBG = 0x800000
WS_SIZE = 0x1000000
def FL(i): return 16 * i
F_L1, F_L2, F_L4, F_L6 = FL(0), FL(1), FL(2), FL(3)
F_QP, F_KVD = FL(4), FL(5)
F_A1, F_AX, F_AY = FL(6), FL(7), FL(8)
F_S = [FL(9 + i) for i in range(10)]
F_WO = FL(19)
F_OX = FL(20)
F_SL = [FL(22 + i) for i in range(3)]
F_KMAX, F_XC, F_KST = FL(25), FL(25) + 4, FL(25) + 8
F_TAG, F_QA = FL(26), FL(27)
L_QN = 512
L_ACCF = 1024
L_QF = 5120
L_ACCD = 13312
L_WKV = L_ACCD
L_A1 = 29696
L_A2 = 96256
L_MX = L_A2 + 66560
L_TOTAL = 163840
XW = 16640
L_SXO = 1024
L_TBO = 2048

sWV, sRB, sCG, sTB, sPB, sTAG = 3, 4, 5, 6, 7, 8
sT0, sT1, sT2, sT3, sT4, sT5 = 9, 10, 11, 12, 13, 14
sCNT = 15
P = lambda i: 16 + 2 * i
SA, SB, SC, SWS, SOUT = 52, 56, 60, 64, 68
sSW = 72
sPH, sTJ, sOW = 73, 74, 75
sM0, sM1 = 76, 78
sQH = 81
sOB, sPRE = 101, 81
sXC = 100
sST = 82
SPIN = opt('spin', 400000)
vT, vLN, vL16, vEP, vF, vS, vONE = 249, 250, 251, 252, 253, 254, 255

class G:
    def __init__(self, stamps=False):
        self.a = Asm(); self.stamps = stamps; self.cyc = True
    def srd(self, d, p, size):
        self.a(f's_mov_b32 s{d}, s{p}\ns_mov_b32 s{d+1}, s{p+1}\ns_mov_b32 s{d+2}, {size:#x}\ns_mov_b32 s{d+3}, 0x20000')
    def stamp(self, i):
        if self.stamps and not (getattr(self, 'mute', False) and i != 15):
            self.a(f's_memrealtime s[98:99]\ns_waitcnt lgkmcnt(0)\ns_mov_b32 s{sST+i}, s98')
            m = {5: 8, 6: 9}
            if self.cyc and i in m:
                self.a(f's_memtime s[98:99]\ns_waitcnt lgkmcnt(0)\ns_mov_b32 s{sST+m[i]}, s98')
    def end(self):
        a = self.a
        if self.stamps:
            a('s_waitcnt vmcnt(0)')
            self.stamp(15)
            if 'diag' in OPT and self.cyc != ('diagsv' in OPT):
                da, db = [int(x) for x in OPT['diag'].split(',')]
                L = a.label('DG')
                a(f's_sub_u32 s{sT1}, s{sST+db}, s{sST+da}')
                if 'diagxc' in OPT: a(f's_xor_b32 s{sT1}, s{sXC}, {opt("diagxc", 0) - 1}\ns_mul_i32 s{sT1}, s{sT1}, 1000')
                if 'diagcyc' in OPT: a(f's_lshr_b32 s{sT1}, s{sT1}, 1')
                else: a(f's_lshl_b32 s{sT1}, s{sT1}, 3')
                a(f's_cmp_eq_u32 s{sST+db}, 0\ns_cselect_b32 s{sT1}, 0, s{sT1}')
                a(f's_min_u32 s{sT1}, s{sT1}, 100000\ns_add_u32 s{sT1}, s{sT1}, s{sST+15}')
                a(f'{L}:\ns_sleep 4\ns_memrealtime s[98:99]\ns_waitcnt lgkmcnt(0)\ns_cmp_lt_u32 s98, s{sT1}\ns_cbranch_scc1 {L}')
            a(f's_lshl_b32 s{sT0}, s2, 3\ns_add_u32 s{sT0}, s{sT0}, s{sWV}\ns_lshl_b32 s{sT0}, s{sT0}, 6\ns_add_u32 s{sT0}, s{sT0}, {WS_DBG:#x}')
            a('s_mov_b64 exec, 1')
            for i in range(16):
                a(f'v_mov_b32 v{vT}, s{sST+i}\nbuffer_store_dword v{vT}, off, s[{SWS}:{SWS+3}], s{sT0} offset:{4*i}')
            a('s_waitcnt vmcnt(0)')
        a('s_endpgm')
    def sig(self, off, va=vS):
        self.a(f'ds_write_b32 v{va}, v{vONE} offset:{off}')
    def wait(self, off, sleep=1, va=vF):
        a = self.a; L = a.label('W'); D = a.label('WD')
        a(f's_mov_b32 s{sCNT}, {SPIN}')
        a(f'{L}:')
        a(f'ds_read_b32 v{vT}, v{va} offset:{off}\ns_waitcnt lgkmcnt(0)\nv_cmp_eq_u32 vcc, 0, v{vT}\ns_cbranch_vccz {D}')
        a((f's_sleep {sleep}\n' if sleep else '') + f's_sub_u32 s{sCNT}, s{sCNT}, 1\ns_cbranch_scc0 {L}')
        self.tmo(1000 + off)
        a(f'{D}:')
    def xstore(self, lines, kind='o'):
        a = self.a
        if not opt('xc' + kind, 0):
            for x in lines: a(x + (' sc1' if x.startswith('buffer') else ''))
            return
        L = a.label('X'); D = a.label('XD')
        a(f's_cmp_eq_u32 s{sXC}, 1\ns_cbranch_scc0 {L}')
        for x in lines: a(x + (' nt' if x.startswith('buffer') and opt('xnt', 0) else ''))
        a(f's_branch {D}')
        a(f'{L}:')
        for x in lines: a(x + (' sc1' if x.startswith('buffer') else ''))
        a(f'{D}:')
    def tmo(self, ident):
        if 'tmo' in OPT:
            a = self.a
            a(f's_mov_b32 s92, s{P(15)}\ns_mov_b32 s93, s{P(15)+1}\ns_mov_b32 s94, 256\ns_mov_b32 s95, 0x20000\ns_lshl_b32 s96, s2, 16\ns_lshl_b32 s97, s{sWV}, 12\ns_add_u32 s96, s96, s97\ns_add_u32 s96, s96, {ident}')
            a(f'v_mov_b32 v{vT}, s96\ns_lshl_b32 s97, s{sWV}, 2\nbuffer_store_dword v{vT}, off, s[92:95], s97\ns_waitcnt vmcnt(0)')
    def get_tag(self):
        self.a(f'v_readfirstlane_b32 s{sTAG}, v{vEP}\ns_mul_i32 s{sTAG}, s{sTAG}, 0x9E3779B1\ns_add_u32 s{sTAG}, s{sTAG}, 0x7F4A7C15')

    def build(self):
        a = self.a
        a('s_cmp_ge_u32 s2, 256\ns_cbranch_scc1 L_exit')
        a('s_load_dwordx16 s[16:31], s[0:1], 0\ns_load_dwordx16 s[32:47], s[0:1], 64\ns_load_dwordx2 s[48:49], s[0:1], 128')
        if self.stamps:
            for i in range(16): a(f's_mov_b32 s{sST+i}, 0')
        a(f'v_and_b32 v{vLN}, 63, v0\nv_lshrrev_b32 v{vT}, 6, v0\nv_lshlrev_b32 v{vL16}, 4, v{vLN}\nv_readfirstlane_b32 s{sWV}, v{vT}')
        if not opt('ent', 0): self.code_prefetch()
        a(f's_and_b32 s{sT0}, s2, 7\ns_lshr_b32 s{sT1}, s2, 3')
        a(f's_lshr_b32 s{sT2}, s{sT1}, 3\ns_lshl2_add_u32 s{sRB}, s{sT0}, s{sT2}\ns_and_b32 s{sCG}, s{sT1}, 7')
        a(f's_lshr_b32 s{sTB}, s{sRB}, 1\ns_and_b32 s{sPB}, s{sT1}, 15\ns_and_b32 s{sSW}, s{sWV}, 3')
        a(f's_cmp_ge_u32 s{sWV}, 4\ns_cbranch_scc1 L_service')
        a(f's_lshr_b32 s{sT5}, s{sCG}, 1\ns_lshl_b32 s{sT4}, s{sRB}, 16')
        def xa_rows(g):
            if g == 0: a(f's_lshl2_add_u32 s{sT0}, s{sT5}, s{sSW}\ns_lshl_b32 s{sT0}, s{sT0}, 2')
            else: a(f's_add_u32 s{sT0}, s{sT5}, {g}\ns_and_b32 s{sT0}, s{sT0}, 3\ns_lshl2_add_u32 s{sT0}, s{sT0}, s{sSW}\ns_lshl_b32 s{sT0}, s{sT0}, 2')
            a(f's_mul_i32 s{sT1}, s{sT0}, 1040\ns_add_u32 m0, s{sT1}, {L_A1}\ns_lshl_b32 s{sT0}, s{sT0}, 10\ns_add_u32 s{sT0}, s{sT0}, s{sT4}')
            if g == 0:
                a('s_waitcnt lgkmcnt(0)')
                self.stamp(0)
                self.srd(SA, P(0), 2048 * 1024)
            for n in range(4):
                fx = ['', ' nt', ' sc1 nt', ' sc0 sc1 nt', ' sc1', ' sc0 nt'][opt('xant', 0)] if g == 0 else ''
                a(f'buffer_load_dwordx4 v{vL16}, s[{SA}:{SA+3}], s{sT0} offen offset:{1024*n}{fx} lds')
                if n < 3: a('s_add_u32 m0, m0, 16')
        xa_rows(0)
        a(f's_bitcmp1_b32 s{sCG}, 0\ns_cselect_b32 s{SB}, s{P(3)}, s{P(2)}\ns_cselect_b32 s{SB+1}, s{P(3)+1}, s{P(2)+1}\ns_mov_b32 s{SB+2}, 0x4000\ns_mov_b32 s{SB+3}, 0x20000')
        a(f's_lshl_b32 s{sT0}, s{sWV}, 12\ns_add_u32 m0, s{sT0}, {L_WKV}')
        a(f'v_lshrrev_b32 v2, 1, v{vL16}\nv_and_b32 v2, 128, v2\nv_xor_b32 v2, v2, v{vL16}')
        for n in range(4):
            a(f'buffer_load_dwordx4 v2, s[{SB}:{SB+3}], s{sT0} offen offset:{1024*n} lds')
        self.srd(SC, P(1), 512 * 1024)
        NPQ = 0
        if opt('pfq', 0):
            G = opt('pfg', 6)
            a(f'v_lshlrev_b32 v3, {G}, v{vLN}\ns_lshr_b32 s{sT0}, s2, 3\ns_lshl_b32 s{sT0}, s{sT0}, 2\ns_add_u32 s{sT0}, s{sT0}, s{sSW}\ns_lshl_b32 s{sT0}, s{sT0}, 12')
            if G == 7: a(f's_mov_b32 s{sM0}, -1\ns_mov_b32 s{sM0+1}, 0\ns_mov_b64 exec, s[{sM0}:{sM0+1}]')
            a(f'buffer_load_dword v4, v3, s[{SC}:{SC+3}], s{sT0} offen'); NPQ = 1
            if opt('pfq', 0) > 1:
                for p in (8, 9):
                    self.srd(SOUT, P(p), 512 * 1024)
                    a(f'buffer_load_dword v4, v3, s[{SOUT}:{SOUT+3}], s{sT0} offen'); NPQ += 1
                self.srd(SOUT, P(5), 2048 * 1024)
                a(f's_lshr_b32 s{sT0}, s{sT0}, 1\ns_and_b32 s{sT1}, s2, 7\ns_lshl_b32 s{sT1}, s{sT1}, 18\ns_add_u32 s{sT0}, s{sT0}, s{sT1}\nv_lshrrev_b32 v3, 1, v3')
                a(f'buffer_load_dword v4, v3, s[{SOUT}:{SOUT+3}], s{sT0} offen'); NPQ += 1
            a('s_mov_b64 exec, -1')
        self.wimg_lane_addr(0, 1)
        a(f's_lshl_b32 s{sT3}, s{sSW}, 13\ns_lshl_b32 s{sT1}, s{sCG}, 7\ns_add_u32 s{sT3}, s{sT3}, s{sT1}\ns_and_b32 s{sT1}, s{sRB}, 3\ns_lshl_b32 s{sT1}, s{sT1}, 17\ns_add_u32 s{sT3}, s{sT3}, s{sT1}')
        a(f's_lshl_b32 s{sT2}, s{sSW}, 10')
        def wq_rows(c):
            for n in range(4 * c, 4 * c + 4):
                a(f's_add_u32 m0, s{sT2}, {L_A2 + 4096*n}\ns_xor_b32 s{sT0}, s{sT3}, {0x8000*n:#x}')
                a(f'buffer_load_dwordx4 v0, s[{SC}:{SC+3}], s{sT0} offen lds')
        FO = opt('fo', 1)
        if FO == 0: wq_rows(0)
        else: xa_rows(1)
        self.common_regs()
        self.srd(SWS, P(16), WS_SIZE)
        a('s_barrier')
        self.stamp(1)
        a(f's_waitcnt vmcnt({4 + NPQ})')
        self.sig(F_L1)
        if FO == 0: xa_rows(1)
        xa_rows(2); xa_rows(3)
        if FO == 1: wq_rows(0)
        if FO == 0: wq_rows(1)
        a('s_waitcnt vmcnt(4)')
        self.sig(F_L2)
        if FO == 1: wq_rows(1)
        wq_rows(2); wq_rows(3)
        self.stamp(2)
        a('s_waitcnt vmcnt(8)')
        self.sig(F_L4)
        if opt('lay', 1):
            a('s_branch L_attn')
            self.service()
            self.cyc = True; self.mute = False
            a('L_attn:')
            self.attention()
        else:
            self.attention()
            self.service()
        a('L_exit:\ns_endpgm')
        return a.finish()

    def code_prefetch(self):
        a = self.a
        if opt('cpf', 1):
            a(f's_cmp_lg_u32 s{sWV}, {opt("cpw", 5)}\ns_cbranch_scc1 L_nocpf')
            a(f's_getpc_b64 s[{sM0}:{sM0+1}]')
            a('L_pc:')
            a(f's_lshr_b32 s{sT0}, s2, 3\ns_mul_i32 s{sT0}, s{sT0}, 1536\ns_min_u32 s{sT0}, s{sT0}, L_exit-{NAME}_kernel-1536\ns_sub_u32 s{sM0}, s{sM0}, L_pc-{NAME}_kernel\ns_subb_u32 s{sM0+1}, s{sM0+1}, 0')
            a(f'v_min_u32 v2, 23, v{vLN}\nv_lshlrev_b32 v2, 6, v2\nv_add_u32 v2, s{sT0}, v2\nv_mov_b32 v3, s{sM0+1}\nv_add_co_u32 v2, vcc, s{sM0}, v2\nv_addc_co_u32 v3, vcc, 0, v3, vcc')
            a(f's_mov_b64 exec, 0xffffff\nglobal_load_dword v{vEP}, v[2:3], off\ns_mov_b64 exec, -1')
            a('L_nocpf:')

    def common_regs(self):
        self.a(f'v_and_b32 v{vF}, 3, v{vLN}\nv_lshlrev_b32 v{vF}, 2, v{vF}\ns_lshl_b32 s{sT0}, s{sSW}, 2\nv_mov_b32 v{vS}, s{sT0}\nv_mov_b32 v{vONE}, 1')

    def wimg_lane_addr(self, vd, vt):
        a = self.a
        a(f'v_lshrrev_b32 v{vt}, 2, v{vLN}\nv_and_b32 v{vt}, 4, v{vt}\nv_and_b32 v{vd}, 7, v{vLN}\nv_xor_b32 v{vd}, v{vd}, v{vt}\nv_lshlrev_b32 v{vd}, 4, v{vd}')
        a(f'v_lshrrev_b32 v{vt}, 3, v{vLN}\nv_lshl_add_u32 v{vd}, v{vt}, 10, v{vd}')

    def tr_parts(self, c0, r, wpart):
        a = self.a
        a(f'v_bfe_u32 v{c0}, v{vLN}, 4, 1\nv_lshlrev_b32 v{c0}, 5, v{c0}\nv_and_b32 v{r}, 3, v{vLN}\nv_lshl_add_u32 v{c0}, v{r}, 3, v{c0}\nv_bfe_u32 v{r}, v{vLN}, 2, 2')
        a(f's_and_b32 s{sT0}, s{sSW}, 1\nv_lshrrev_b32 v{wpart}, 1, v{r}\nv_xor_b32 v{wpart}, s{sT0}, v{wpart}\nv_lshl_add_u32 v{wpart}, v{wpart}, 6, v{c0}\nv_lshl_add_u32 v{wpart}, v{r}, 7, v{wpart}')

    def prefetch(self, ptrs, vd):
        a = self.a
        a(f's_lshr_b32 s{sT0}, s2, 3\ns_lshl_b32 s{sT0}, s{sT0}, 2\ns_add_u32 s{sT0}, s{sT0}, s{sSW}\ns_lshl_b32 s{sT0}, s{sT0}, 12')
        for p in ptrs:
            self.srd(SOUT, P(p), 512 * 1024)
            a(f'buffer_load_dword v{vEP}, v{vd}, s[{SOUT}:{SOUT+3}], s{sT0} offen')

    def attention(self):
        a = self.a
        K, V, S0, O, Q = 0, 64, 192, 224, 240
        vIDX, vA16, vA8, vQA, vL8 = 244, 245, 246, 247, 248
        R = dict(K=K, V=V, S0=S0, O=O, Q=Q, vIDX=vIDX, vA16=vA16, vA8=vA8, vQA=vQA, vL8=vL8, vM=vEP)
        a(f'v_and_b32 v{Q}, 11, v{vLN}\nv_cmp_eq_u32 vcc, 0, v{Q}\nv_mov_b32 v{Q}, 0x3f803f80\nv_cndmask_b32 v{vT}, 0, v{Q}, vcc')
        MK = opt('mask', 0)
        self.masked = lambda i: (MK >> i) & 1
        for i in range(16):
            for r in range(0 if self.masked(i) else 4, 8): a(f'v_mov_b32 v{V+8*i+r}, v{vT}')
        a(f'v_lshlrev_b32 v{vL8}, 3, v{vLN}\nv_mov_b32 v{vIDX}, 0xdddd')
        def init_state(ph0):
            for i in range(16): a(f'v_mov_b32 v{O+i}, 0')
            a(f's_mov_b32 s{sTJ}, s{sSW}\ns_mov_b32 s{sPH}, {ph0}')
            a(f's_lshl_b32 s{sT0}, s{sTJ}, 10\nv_add_u32 v{vQA}, s{sT0}, v{vL16}')
            a(f's_lshl_b32 s{sT0}, s{sTJ}, 11\nv_add_u32 v{vA16}, s{sT0}, v{vL16}\ns_lshl_b32 s{sT0}, s{sTJ}, 9\nv_add_u32 v{vA8}, s{sT0}, v{vL8}')
        init_state(0)
        FS = opt('fs', 6)
        a(f'v_lshlrev_b32 v{S0+4}, {FS}, v{vLN}\nv_mov_b32 v{S0+3}, 0')
        if XC: a(f's_getreg_b32 s{sXC}, hwreg(HW_REG_XCC_ID)')
        a(f's_lshl_b32 s{sT3}, s{sWV}, {FS + 6}\ns_add_u32 s{sT3}, s{sT3}, {WS_KVFLAG:#x}')
        a(f's_lshl_b32 s{sT4}, s{sWV}, 15\ns_add_u32 s{sT4}, s{sT4}, {WS_KVIMG:#x}\ns_lshl_b32 s{sT0}, s{sCG}, 12\ns_add_u32 s{sT4}, s{sT4}, s{sT0}')
        a(f's_lshl_b32 s{sOW}, s{sRB}, 16\ns_lshl_b32 s{sT0}, s{sCG}, 12\ns_add_u32 s{sOW}, s{sOW}, s{sT0}\ns_add_u32 s{sOW}, s{sOW}, {WS_OBUF:#x}')
        a(f's_add_u32 s{sT0}, s{sSW}, 1\ns_and_b32 s{sT0}, s{sT0}, 3\ns_lshl_b32 s{sT0}, s{sT0}, 10\ns_add_u32 s{sOW}, s{sOW}, s{sT0}')
        a(f's_mov_b32 s{sM0}, 0xffff\ns_mov_b32 s{sM0+1}, 0xffff')
        a(f's_lshl_b32 s{sOB}, s{sRB}, 16\ns_lshr_b32 s{sT0}, s{sSW}, 1\ns_lshl_b32 s{sT0}, s{sT0}, 2\ns_and_b32 s{sT2}, s{sCG}, 3\ns_add_u32 s{sT0}, s{sT0}, s{sT2}\ns_lshl_b32 s{sT0}, s{sT0}, 12')
        a(f's_add_u32 s{sOB}, s{sOB}, s{sT0}\ns_add_u32 s{sOB}, s{sOB}, {WS_OBUF:#x}\ns_mov_b32 s{sPRE}, 0')
        self.tr_parts(0, 1, 2)
        a(f'v_lshrrev_b32 v1, 5, v{vLN}\nv_lshl_add_u32 v2, v1, 9, v2\ns_lshr_b32 s{sT0}, s{sSW}, 1\ns_lshl_b32 s{sT0}, s{sT0}, 15\ns_add_u32 s{sT0}, s{sT0}, {L_A1}\nv_add_u32 v{vLN}, s{sT0}, v2')
        a(f's_waitcnt vmcnt(0)')
        self.sig(F_L6)
        self.stamp(3)
        if opt('trig', 0) == 1:
            self.wait(F_KVD, sleep=1); self.wait(F_L6, sleep=1)
        else:
            self.wait(F_QA if opt('pw', 0) == 0 else F_KVD, sleep=1)
        a(f'ds_read_b32 v{vEP}, v{vF} offset:{F_TAG}\ns_waitcnt lgkmcnt(0)\nv_readfirstlane_b32 s{sTAG}, v{vEP}')
        if opt('pf1', 0):
            a(f's_lshr_b32 s{sT0}, s2, 3\ns_lshl_b32 s{sT0}, s{sT0}, 2\ns_add_u32 s{sT0}, s{sT0}, s{sSW}\ns_lshl_b32 s{sT0}, s{sT0}, 12')
            for k, p in enumerate((8, 9)):
                self.srd(SB, P(p), 512 * 1024)
                for n in range(4): a(f'buffer_load_dwordx4 {q4(4 + 16*k + 4*n)}, v{vL16}, s[{SB}:{SB+3}], s{sT0} offen offset:{1024*n}')
            self.srd(SB, P(5), 2048 * 1024)
            a(f's_lshr_b32 s{sT0}, s{sT0}, 1\ns_and_b32 s{sT1}, s2, 7\ns_lshl_b32 s{sT1}, s{sT1}, 18\ns_add_u32 s{sT0}, s{sT0}, s{sT1}')
            for n in range(2): a(f'buffer_load_dwordx4 {q4(36 + 4*n)}, v{vL16}, s[{SB}:{SB+3}], s{sT0} offen offset:{1024*n}')
        if opt('pw', 0): a(f's_sleep {opt("pw", 0)}')
        a(f's_mov_b32 s{sCNT}, 100000')
        KW = opt('kw', 0)
        a(f's_lshr_b32 s{sT0}, s2, 3\ns_lshl_b32 s{sT0}, s{sT0}, 2\ns_add_u32 s{sT0}, s{sT0}, s{sSW}\ns_lshl_b32 s{sT0}, s{sT0}, 10\ns_add_u32 s{sT0}, s{sT0}, {WS_KVIMG:#x}')
        kwl = f'buffer_load_dwordx4 {q4(S0+8)}, v{vL16}, s[{SWS}:{SWS+3}], s{sT0} offen sc1'
        if KW == 2: a(kwl)
        a('L_kvp:')
        a(f'buffer_load_dwordx3 v[{S0}:{S0+2}], v{S0+4}, s[{SWS}:{SWS+3}], s{sT3} offen sc1')
        if KW == 1: a(kwl)
        a(f's_waitcnt vmcnt({1 if KW == 1 else 0})\nv_cmp_ne_u32 vcc, s{sTAG}, v{S0}\ns_cbranch_vccz L_kvpd')
        if opt('pm', 1): a('s_mov_b64 exec, vcc')
        a((f's_sleep {opt("kvsleep", 1)}\n' if opt("kvsleep", 1) else '') + f's_sub_u32 s{sCNT}, s{sCNT}, 1\ns_cbranch_scc0 L_kvp')
        a('L_kvpd:\ns_mov_b64 exec, -1')
        if self.stamps: a(f's_mov_b32 s{sST+13}, s{sCNT}')
        self.stamp(4)
        for i in range(opt('nup', 7)): a(self.kvload(R, i))
        a(f'ds_max_u32 v{S0+3}, v{S0+1} offset:{F_KMAX}')
        if XC:
            a(f's_lshr_b32 s{sT0}, s{sRB}, 3\ns_cmp_eq_u32 s{sT0}, s{sSW}\ns_cbranch_scc0 L_noxc')
            a(f'v_cmp_ne_u32 vcc, s{sXC}, v{S0+2}\ns_bitcmp1_b32 s{sRB}, 2\ns_cselect_b32 s{sT0}, vcc_hi, vcc_lo\ns_cmp_eq_u32 s{sT0}, 0\ns_cselect_b32 s{sT0}, 1, 0')
            a(f'v_mov_b32 v{S0+2}, s{sT0}\nds_write_b32 v{S0+3}, v{S0+2} offset:{F_XC}')
            a('L_noxc:')
        self.wait(F_QP, sleep=0)
        a(f'ds_read_b128 {q4(Q)}, v{vQA} offset:{L_QF}')
        self.stamp(5)
        self.attn_fast(R)
        a('L_attn_epi:')
        if 'phs' in OPT:
            for p in range(8): a(f's_mov_b32 s{sST+2*p}, s{16+4*p}\ns_mov_b32 s{sST+2*p+1}, s{17+4*p}')
            a(f's_lshl_b32 s{sT0}, s2, 3\ns_add_u32 s{sT0}, s{sT0}, s{sWV}\ns_lshl_b32 s{sT0}, s{sT0}, 6\ns_add_u32 s{sT0}, s{sT0}, {WS_DBG + 0x100000:#x}')
            a('s_mov_b64 exec, 1')
            for i in range(16):
                a(f'v_mov_b32 v{vT}, s{sST+i}\nbuffer_store_dword v{vT}, off, s[{SWS}:{SWS+3}], s{sT0} offset:{4*i}')
            a('s_waitcnt vmcnt(0)\ns_endpgm')
        self.oproj_pre()
        self.stamp(6)
        self.publish(R, 0x8000, F_AY)
        if 'nosvc' in OPT or 'stop' in OPT: self.end()
        else: self.oproj()
        a('L_check6:')
        self.wait(F_S[9], sleep=1)
        a('s_branch L_checked6')
        a('L_check1:')
        self.wait(F_S[0], sleep=1)
        a(f'v_cmp_ne_u32 vcc, 1, v{vT}\ns_cbranch_vccz L_checked1')
        self.wait(F_S[9], sleep=1)
        if XC: a(f's_mov_b32 s{sXC}, 0')
        vL4, vW = vA8, vA16
        self.sig(F_SL[0]); self.wait(F_SL[0])
        a(f'v_lshrrev_b32 v{vL4}, 2, v{vL16}\ns_mov_b32 s{sT2}, 0\ns_lshl_b32 s{sT3}, s{sWV}, 11\nv_add_u32 v{vW}, s{sT3}, v{vL4}')
        a('L_slow_pre:')
        a(f's_lshl_b32 s{sT0}, s{sT2}, 10\nv_add_u32 v{vT}, s{sT0}, v{vL16}\nds_read_b128 {q4(Q)}, v{vT} offset:{L_QF}\ns_waitcnt lgkmcnt(0)')
        a(f'v_mov_b32 v{S0+20}, 0xff800000')
        for i in range(16):
            a(f'v_mfma_f32_32x32x16_bf16 {t16(S0)}, {q4(K+4*i)}, {q4(Q)}, 0')
            for r in range(0, 16, 2): a(f'v_max3_f32 v{S0+20}, v{S0+r}, v{S0+r+1}, v{S0+20}')
        a(f'v_mov_b32 v{S0+21}, v{S0+20}\nv_permlane32_swap_b32 v{S0+20}, v{S0+21}\nv_max_f32 v{S0+20}, v{S0+20}, v{S0+21}')
        a(f'ds_write_b32 v{vW}, v{S0+20} offset:{L_ACCD}\nv_add_u32 v{vW}, 256, v{vW}')
        a(f's_add_u32 s{sT2}, s{sT2}, 1\ns_cmp_lt_u32 s{sT2}, 8\ns_cbranch_scc1 L_slow_pre')
        self.sig(F_SL[1]); self.wait(F_SL[1])
        a(f's_lshl_b32 s{sT0}, s{sWV}, 8\nv_add_u32 v{vW}, s{sT0}, v{vL4}')
        for t in range(2):
            for w in range(4): a(f'ds_read_b32 v{S0+4*t+w}, v{vW} offset:{L_ACCD + 2048*w + 1024*t}')
        a(f'v_and_b32 v{vW}, 0x7c, v{vL4}\ns_lshl_b32 s{sT0}, s{sWV}, 7\ns_add_u32 s{sT0}, s{sT0}, {L_MX}\nv_add_u32 v{vW}, s{sT0}, v{vW}')
        a('s_waitcnt lgkmcnt(0)')
        for t in range(2):
            b = S0 + 4 * t
            a(f'v_max3_f32 v{b}, v{b}, v{b+1}, v{b+2}\nv_max_f32 v{b}, v{b}, v{b+3}\nds_write_b32 v{vW}, v{b} offset:{512*t}')
        init_state(16)
        a(f'v_mov_b32 v{S0}, 0\nv_mov_b32 v{S0+1}, 17\nds_write_b64 v{vA8}, {pr(S0)} offset:{L_ACCF+2048}')
        a(f'ds_write_b128 v{vA16}, {q4(O)} offset:{L_ACCD+8192}\nds_write_b128 v{vA16}, {q4(O)} offset:{L_ACCD+8192+1024}')
        self.sig(F_SL[2]); self.wait(F_SL[2])
        a(f'ds_read_b128 {q4(Q)}, v{vQA} offset:{L_QF}')
        self.attn_loop(R, True)
        a('s_branch L_attn_epi')

    QD = [r for i in range(16) for r in (4 * i, 64 + 8 * i, 68 + 8 * i)]
    def WF(self, st): return self.QD[st]
    def OF(self, q, n): return self.QD[16 + 4 * ((q + 3) % 4) + 16 * (q // 4) + n]
    def wo_read(self, st, vWO): return f'ds_read_b64_tr_b16 {pr(self.WF(st))}, v{vWO} offset:{2048*st}\nds_read_b64_tr_b16 {pr(self.WF(st)+2)}, v{vWO} offset:{2048*st+1024}'
    def o_load(self, q):
        t = f's_xor_b32 s{sT0}, s{sOB}, {4096*(q%4) + 0x8000*(q//4):#x}'
        for n in range(4): t += f'\nbuffer_load_dwordx4 {q4(self.OF(q, n))}, v{vL16}, s[{SWS}:{SWS+3}], s{sT0} offen offset:{1024*n} sc1'
        return t

    def kvload(self, R, i):
        K, V = R['K'], R['V']
        t = ''
        if i % 2 == 0 and i > 0: t += f's_xor_b32 s{sT4}, s{sT4}, {((i // 2) ^ (i // 2 - 1)) << 12:#x}\n'
        o = (i % 2) * 2048
        t += f'buffer_load_dwordx4 {q4(K+4*i)}, v{vL16}, s[{SWS}:{SWS+3}], s{sT4} offen offset:{o} sc1\n'
        if self.masked(i):
            t += f's_mov_b64 exec, s[{sM0}:{sM0+1}]\nbuffer_load_dwordx4 {q4(V+8*i)}, v{vL16}, s[{SWS}:{SWS+3}], s{sT4} offen offset:{o+1024} sc1\n'
            t += f'buffer_load_dwordx4 {q4(V+8*i+4)}, v{vL16}, s[{SWS}:{SWS+3}], s{sT4} offen offset:{o+1024+256} sc1\ns_mov_b64 exec, -1'
        else:
            t += f'buffer_load_dwordx4 {q4(V+8*i)}, v{vL16}, s[{SWS}:{SWS+3}], s{sT4} offen offset:{o+1024} sc1'
        return t

    def publish(self, R, off, flag):
        a = self.a; O = R['O']
        a(f'v_rcp_f32 v{O+8}, v{O+8}\ns_add_u32 s{sT0}, s{sOW}, {off}')
        for r in range(0, 8, 2): a(f'v_pk_mul_f32 {pr(O+r)}, {pr(O+8)}, {pr(O+r)} op_sel:[0,0] op_sel_hi:[0,1]')
        for r in range(4): a(f'v_cvt_pk_bf16_f32 v{O+r}, v{O+2*r}, v{O+2*r+1}')
        self.xstore([f'buffer_store_dwordx4 {q4(O)}, v{vL16}, s[{SWS}:{SWS+3}], s{sT0} offen'])
        if off: self.sig(flag)

    def attn_fast(self, R):
        a = self.a
        K, V, S0, O, Q = R['K'], R['V'], R['S0'], R['O'], R['Q']
        vIDX, vA16, vA8, vQA, vL8 = R['vIDX'], R['vA16'], R['vA8'], R['vQA'], R['vL8']
        NUP = opt('nup', 7)
        sK = [[50, 51, 80], [sT1, sT2, sT3], [sT5, sPH, sTJ]]
        for k in range(1, 4):
            a(f's_sub_u32 s{sT0}, s{sSW}, {k}\ns_and_b32 s{sT0}, s{sT0}, 3\ns_lshl_b32 s{sK[k-1][0]}, s{sT0}, 9\ns_lshl_b32 s{sK[k-1][1]}, s{sT0}, 10\ns_lshl_b32 s{sK[k-1][2]}, s{sT0}, 11')
        def Sb(i): return S0 + 16 * (i % 2)
        def E(i, r): return f'v_exp_f32 v{Sb(i)+r}, v{Sb(i)+r}'
        CM = '-4.0' if opt('cm', 1) else '0'
        PP = opt('pp', 15)
        def QK(i): return f'v_mfma_f32_32x32x16_bf16 {t16(Sb(i))}, {q4(K+4*(i%16))}, {q4(Q)}, {CM}'
        def PV(i, h): return f'v_smfmac_f32_32x32x32_bf16 {t16(O)}, {q4(V+8*(i%16)+4*h)}, v[{Sb(i)+8*h}:{Sb(i)+8*h+7}], v{vIDX}'
        def rd(st): return [f'ds_read_b64 {pr(O+8)}, v{vA8} offset:{L_ACCF+2048*st}', f'ds_read_b128 {q4(O)}, v{vA16} offset:{L_ACCD+8192*st}', f'ds_read_b128 {q4(O+4)}, v{vA16} offset:{L_ACCD+8192*st+1024}']
        def wr(st): return [f'ds_write_b128 v{vA16}, {q4(O)} offset:{L_ACCD+8192*st}', f'ds_write_b128 v{vA16}, {q4(O+4)} offset:{L_ACCD+8192*st+1024}', f'ds_write_b64 v{vA8}, {pr(O+8)} offset:{L_ACCF+2048*st}']
        nl = lambda i: 3 if self.masked(i) else 2
        cov = [-1]
        def plain(p, i):
            e = [E(i, r) for r in range(16)]
            w = []; sw = []; ld = []
            if p == 0:
                KR = opt('kr', 3)
                issued = sum(nl(t) for t in range(min(16, KR * i + NUP)))
                VW = opt('vw', 4)
                if i > cov[0]:
                    last = i if i < opt('vw1', 2) else min(15, i + VW - 1)
                    cov[0] = last
                    needed = sum(nl(t) for t in range(last + 1)) + (1 if last < 15 else 0)
                    assert issued >= needed
                    w = [f's_waitcnt vmcnt({issued - needed})']
                if not self.masked(i): sw = [f'v_permlane16_swap_b32 v{V+8*i+r}, v{V+8*i+4+r}' for r in range(4)]
                for t in range(KR * i + NUP, min(16, KR * (i + 1) + NUP)):
                    ld += [self.kvload(R, t)]
                    if t == 15: ld += [f'ds_write_b32 v{vS}, v{vONE} offset:{F_A1}']
            qk = [QK(i + 1)]
            if i == 15:
                if p < 7: w += ['s_waitcnt lgkmcnt(0)']
                else: qk = []
            if i == 14 and p < 7:
                if p % 2 == 1: ld += [f'v_add_u32 v{vQA}, s{sK[p//2][1]}, v{vL16}']
                ld += [f'ds_read_b128 {q4(Q)}, v{vQA} offset:{L_QF + 4096*((p+1)%2)}']
                if p in (1, 6): ld += [f'ds_read_b32 v{vT}, v{vF} offset:{F_S[0] if p == 1 else F_S[9]}']
                if p == 6 and XC: ld += [f'ds_read_b32 v{vEP}, v{vF} offset:{F_XC}']
            if i == 15 and p in (1, 6):
                sw = [f'v_cmp_ne_u32 vcc, 1, v{vT}'] + ([f'v_readfirstlane_b32 s{sXC}, v{vEP}'] if p == 6 and XC else [])
                ld = [f's_cbranch_vccnz L_check{p}', f'L_checked{p}:']
            if p == 7 and opt('xl', 0) and 'nosvc' not in OPT and 'stop' not in OPT:
                X0 = opt('xl0', 16 - opt('xl', 0))
                if i == X0 - 2: ld += [f'ds_read_b32 v{vT}, v{vF} offset:{F_S[5]}']
                if i == X0 - 1: ld += [f's_waitcnt lgkmcnt(0)\nv_cmp_eq_u32 vcc, 0, v{vT}\ns_cmp_eq_u64 vcc, 0\ns_cselect_b32 s{sPRE}, 1, 0']
                k = i - X0
                if 0 <= k < opt('xl', 0):
                    assert (16 + 4 * k + 3) // 3 < i
                    L = a.label('PF')
                    ld += [f's_cmp_eq_u32 s{sPRE}, 0\ns_cbranch_scc1 {L}', self.o_load((k + 1) % 4), f'{L}:']
            if p == 7 and i == opt('rel', 99): ld += [f'ds_write_b32 v{vS}, v{vONE} offset:{F_AX}']
            if p == 7 and opt('pre', 0) and 'nosvc' not in OPT and 'stop' not in OPT:
                P0 = opt('pre0', 6)
                if i == P0 - 1: ld += [f'ds_read_b32 v{vT}, v{vF} offset:{F_S[5]}']
                if i == P0: ld += [f's_waitcnt lgkmcnt(0)\nv_cmp_eq_u32 vcc, 0, v{vT}\ns_cmp_eq_u64 vcc, 0\ns_cselect_b32 s{sPRE}, 1, 0']
                grp = []
                k = i - P0 - 1
                if 0 <= k < 4: grp = [self.wo_read(st, vLN) for st in range(4 * k, 4 * k + 4)]; top = 4 * k + 3
                if 4 <= k < 8: grp = [self.o_load((k - 3) % 4)]; top = 16 + 4 * (k - 4) + 3
                if grp:
                    assert top // 3 < i, (top, i)
                    L = a.label('PF')
                    ld += [f's_cmp_eq_u32 s{sPRE}, 0\ns_cbranch_scc1 {L}'] + grp + [f'{L}:']
            seq = e[0:2] + ([] if (p == 0 and i == 0) else [PV(i - 1, 1)]) + e[2:5] + w + qk + sw + e[5:7] + ld + e[7:PP] + [PV(i, 0)] + e[PP:16]
            for x in seq: a(x)
        a(f's_setprio {opt("aprio", 1)}')
        a(f's_waitcnt vmcnt({sum(nl(t) for t in range(NUP)) - 1}) lgkmcnt(0)')
        a(QK(0))
        NW = opt('nw', 3)
        for p in range(8):
            if p == 0:
                plain(0, 0); plain(0, 1)
            else:
                e = [E(0, r) for r in range(16)]
                for x in e[0:2] + [PV(15, 1)] + e[2:5] + [QK(1)] + e[5:8]: a(x)
                so, si = (p - 1) % 2, p % 2
                WS = opt('wsp', 0) if 1 < p < 7 else 0
                if WS == 1:
                    for x in [wr(so)[0], f'v_mov_b32 v{O+9}, {p+1}', e[8], wr(so)[1], e[9], wr(so)[2]]: a(x)
                    e = e[:8] + ['', ''] + e[10:]
                elif WS == 2:
                    for x in [wr(so)[0], f'v_mov_b32 v{O+9}, {p+1}', e[8], e[9], wr(so)[1], e[10], e[11], wr(so)[2]]: a(x)
                    e = e[:8] + ['', '', '', ''] + e[12:]
                elif p < 7:
                    for x in [wr(so)[0], f'v_mov_b32 v{O+9}, {p+1}', wr(so)[1], wr(so)[2]]: a(x)
                else:
                    self.publish(R, 0, F_AX)
                if p % 2 == 0: a(f'v_add_u32 v{vA8}, s{sK[p//2-1][0]}, v{vL8}\nv_add_u32 v{vA16}, s{sK[p//2-1][2]}, v{vL16}')
                if p == 1:
                    for r in range(0, 8, 2): a(f'v_pk_mul_f32 {pr(O+r)}, {pr(O+10)}, {pr(O+10)}')
                    a(f'v_mov_b32 v{O+8}, 0')
                    for x in e[8:PP] + [PV(0, 0)] + e[PP:16]: a(x)
                    plain(p, 1)
                else:
                    for x in rd(si) + e[8:16]: a(x)
                    e = [E(1, r) for r in range(16)]
                    for x in e[0:NW]: a(x)
                    a(f's_waitcnt lgkmcnt(0)\nv_cmp_gt_u32 vcc, {p}, v{O+9}')
                    a(e[NW])
                    a(f's_cbranch_vccnz L_hw{p}')
                    a(f'L_hd{p}:')
                    n = NW + 1
                    for x in [PV(0, 0)] + e[n:n+3] + [PV(0, 1)] + e[n+3:n+6] + [QK(2)] + e[n+6:n+9] + [PV(1, 0)] + e[n+9:16]: a(x)
            for i in range(2, 16):
                plain(p, i)
            if p == 0: self.stamp(7)
            if 'phs' in OPT: a(f's_memtime s[98:99]\ns_memrealtime s[{16+4*p}:{17+4*p}]\ns_waitcnt lgkmcnt(0)\ns_mov_b32 s{17+4*p}, s98')
        a('s_nop 0')
        a(PV(15, 1))
        a(f's_branch L_attn_epi')
        for p in range(2, 8):
            a(f'L_hw{p}:')
            a(f's_mov_b32 s{sCNT}, {SPIN}')
            a(f'L_hl{p}:')
            a(f's_sleep 1')
            for x in rd(p % 2): a(x)
            a(f's_waitcnt lgkmcnt(0)\nv_cmp_gt_u32 vcc, {p}, v{O+9}\ns_cbranch_vccz L_hd{p}\ns_sub_u32 s{sCNT}, s{sCNT}, 1\ns_cbranch_scc0 L_hl{p}')
            self.tmo(p)
            a(f's_branch L_hd{p}')

    def attn_loop(self, R, slow):
        a = self.a
        K, V, S0, O, Q = R['K'], R['V'], R['S0'], R['O'], R['Q']
        vIDX, vA16, vA8, vQA, vL8, vM = R['vIDX'], R['vA16'], R['vA8'], R['vQA'], R['vL8'], R['vM']
        sf = '_s' if slow else '_f'
        PH0 = 16 if slow else 0
        NUP = opt('nup', 6)
        def Sb(i): return S0 + 16 * (i % 2)
        def E(i, r):
            s = Sb(i) + r
            return (f'v_sub_f32 v{s}, v{s}, v{vM}\n' if slow else '') + f'v_exp_f32 v{s}, v{s}'
        def QK(i): return f'v_mfma_f32_32x32x16_bf16 {t16(Sb(i))}, {q4(K+4*(i%16))}, {q4(Q)}, 0'
        def PV(i, h): return f'v_smfmac_f32_32x32x32_bf16 {t16(O)}, {q4(V+8*(i%16)+4*h)}, v[{Sb(i)+8*h}:{Sb(i)+8*h+7}], v{vIDX}'
        rd = [f'ds_read_b64 {pr(O+8)}, v{vA8} offset:{L_ACCF}', f'ds_read_b128 {q4(O)}, v{vA16} offset:{L_ACCD}', f'ds_read_b128 {q4(O+4)}, v{vA16} offset:{L_ACCD+1024}']
        wr = [f'ds_write_b128 v{vA16}, {q4(O)} offset:{L_ACCD}', f'ds_write_b128 v{vA16}, {q4(O+4)} offset:{L_ACCD+1024}', f'ds_write_b64 v{vA8}, {pr(O+8)} offset:{L_ACCF}']
        def getm():
            if slow:
                a(f'v_lshrrev_b32 v{vT}, 2, v{vL16}\nv_and_b32 v{vT}, 0x7c, v{vT}\ns_lshl_b32 s{sT0}, s{sTJ}, 7\ns_add_u32 s{sT0}, s{sT0}, {L_MX}\nv_add_u32 v{vT}, s{sT0}, v{vT}')
                a(f'ds_read_b32 v{vM}, v{vT}\ns_waitcnt lgkmcnt(0)')
        nl = lambda i: 3 if self.masked(i) else 2
        def plain(i, ph0=False):
            e = [E(i, r) for r in range(16)]
            w = []; sw = []; ld = []
            if ph0 and not slow:
                issued = sum(nl(t) for t in range(min(16, i + NUP)))
                needed = sum(nl(t) for t in range(i + 1)) + (1 if i < 15 else 0)
                w = [f's_waitcnt vmcnt({issued - needed})']
                if not self.masked(i): sw = [f'v_permlane16_swap_b32 v{V+8*i+r}, v{V+8*i+4+r}' for r in range(4)]
                if i + NUP < 16: ld = [self.kvload(R, i + NUP)]
                if i + NUP == 15: ld += [f'ds_write_b32 v{vS}, v{vONE} offset:{F_A1}']
            if i == 15: w += ['s_waitcnt lgkmcnt(0)']
            seq = e[0:2] + ([] if (ph0 and i == 0) else [PV(i - 1, 1)]) + e[2:5] + w + [QK(i + 1)] + sw
            if i == 14:
                seq += [f's_add_u32 s{sT1}, s{sPH}, 1\ns_lshr_b32 s{sT2}, s{sT1}, 1\ns_sub_u32 s{sT2}, s{sSW}, s{sT2}', e[5],
                        f's_and_b32 s{sT2}, s{sT2}, 3\ns_and_b32 s{sT1}, s{sT1}, 1\ns_lshl_b32 s{sT1}, s{sT1}, 2', e[6],
                        f's_add_u32 s{sT2}, s{sT2}, s{sT1}\ns_lshl_b32 s{sT0}, s{sT2}, 10', e[7], f'v_add_u32 v{vQA}, s{sT0}, v{vL16}', e[8],
                        f'ds_read_b128 {q4(Q)}, v{vQA} offset:{L_QF}'] + e[9:11]
            else:
                seq += e[5:11]
            seq += [PV(i, 0)] + e[11:13] + ld + e[13:16]
            for x in seq: a(x)
        a(f's_setprio {opt("aprio", 1)}')
        getm()
        a(f's_waitcnt vmcnt({sum(nl(t) for t in range(NUP)) - 1}) lgkmcnt(0)')
        a(QK(0))
        if slow:
            plain(0, True); plain(1)
            a(f's_branch L_mid{sf}')
        else:
            for i in range(16): plain(i, True)
            self.stamp(7)
        a('.p2align 6')
        a(f'L_loop{sf}:')
        a(f's_add_u32 s{sPH}, s{sPH}, 1\ns_mov_b32 s{sTJ}, s{sT2}')
        getm()
        e = [E(0, r) for r in range(16)]
        for x in e[0:2] + [PV(15, 1), e[2], f's_add_u32 s{sT1}, s{sPH}, 1', e[3], f's_lshl_b32 s{sT3}, s{sTJ}, 9', e[4], QK(1), f's_lshl_b32 s{sT4}, s{sTJ}, 11', e[5], e[6],
                           f's_cmp_eq_u32 s{sPH}, {PH0 + 7}', e[7], f's_cbranch_scc1 L_finx{sf}',
                           wr[0], f'v_mov_b32 v{O+9}, s{sT1}', e[8], wr[1], e[9], wr[2]]: a(x)
        a(f'L_finxd{sf}:')
        for x in [f'v_add_u32 v{vA8}, s{sT3}, v{vL8}', f'v_add_u32 v{vA16}, s{sT4}, v{vL16}', rd[0], e[10], rd[1], e[11], rd[2]] + e[12:16]: a(x)
        e0 = e
        e = [E(1, r) for r in range(16)]
        NW = opt('nw', 6)
        for x in e[0:NW]: a(x)
        a(f's_waitcnt lgkmcnt(0)\nv_cmp_gt_u32 vcc, s{sPH}, v{O+9}\ns_cbranch_vccnz L_hw{sf}')
        a(f'L_hd{sf}:')
        for x in [PV(0, 0)] + e[NW:NW+3] + [PV(0, 1)] + e[NW+3:NW+6] + [QK(2)] + e[NW+6:NW+9] + [PV(1, 0)] + e[NW+9:16]: a(x)
        a(f'L_mid{sf}:')
        for i in range(2, 16):
            plain(i)
        a(f's_cmp_lt_u32 s{sPH}, {PH0 + 7}\ns_cbranch_scc1 L_loop{sf}')
        a(PV(15, 1))
        a(f's_nop 10\ns_branch L_end{sf}')
        a(f'L_finx{sf}:')
        a(e0[8]); a(e0[9])
        self.publish(R, 0, F_AX)
        a(f's_branch L_finxd{sf}')
        a(f'L_hw{sf}:')
        a(f's_mov_b32 s{sCNT}, {SPIN}')
        a(f'L_hl{sf}:')
        a(f's_sleep 1')
        for x in rd: a(x)
        a(f's_waitcnt lgkmcnt(0)\nv_cmp_gt_u32 vcc, s{sPH}, v{O+9}\ns_cbranch_vccz L_hd{sf}\ns_sub_u32 s{sCNT}, s{sCNT}, 1\ns_cbranch_scc0 L_hl{sf}\ns_branch L_hd{sf}')
        a(f'L_end{sf}:')

    def oproj_pre(self):
        a = self.a
        a('s_setprio 3')
        self.sig(F_AX)
        a(f'ds_read_b32 v{vEP}, v{vF} offset:{F_S[5]}')
        a(f'v_lshrrev_b32 v241, 9, v{vL16}\nv_bfe_u32 v243, v{vL16}, 2, 7\nv_lshl_add_u32 v243, v241, 14, v243\nv_mov_b32 v240, 0\nv_mov_b32 v241, 0')
        a(f's_and_b32 s{sT0}, s{sOW}, 0xc00\ns_lshl_b32 s{sT0}, s{sT0}, 1\nv_add_u32 v242, s{sT0}, v{vL16}\ns_xor_b32 s{sT0}, s{sT0}, 0x1000\nv_add_u32 v245, s{sT0}, v{vL16}\nv_xor_b32 v246, 8, v{vS}')

    def oproj(self):
        a = self.a
        vZ, vOA, vXW, vXR, vP = 240, 243, 242, 245, 246
        OA = [192, 208]
        sPEND, sKH, sOUT = sT3, sT1, sT5
        order = (1, 2, 3, 0)
        for h in range(2): a(f'v_mfma_f32_32x32x8_bf16 {t16(OA[h])}, {pr(vZ)}, {pr(vZ)}, 0')
        loads = lambda q: a(self.o_load(q))
        def proc(q, lab):
            R_ = [self.OF(q, n) + r for n in range(4) for r in range(4)]
            a(f'v_max3_u32 v{vT}, v{R_[0]}, v{R_[1]}, v{R_[2]}')
            for r in range(3, 15, 2): a(f'v_max3_u32 v{vT}, v{R_[r]}, v{R_[r+1]}, v{vT}')
            a(f'v_max_u32 v{vT}, v{R_[15]}, v{vT}\nv_cmp_eq_u32 vcc, -1, v{vT}\ns_cbranch_vccnz {lab}')
            for n in range(4):
                a(f'v_mfma_f32_32x32x16_bf16 {t16(OA[q//4])}, {q4(self.OF(q, n))}, {q4(self.WF(4*(q%4)+n))}, {t16(OA[q//4])}')
            a(f's_bitset0_b32 s{sPEND}, {q}')
            a(f'{lab}:')
        if opt('tail2', 0):
            def retry(h):
                a(f'L_oretry{h}:')
                a(f's_and_b32 s{sT0}, s{sPEND}, {15 << (4*h)}\ns_cbranch_scc0 L_odone{h}\ns_sub_u32 s{sCNT}, s{sCNT}, 1\ns_cbranch_scc1 L_odone{h}')
                for q in range(4 * h, 4 * h + 4):
                    a(f's_bitcmp0_b32 s{sPEND}, {q}\ns_cbranch_scc1 L_ol_{q}')
                    loads(q)
                    a(f'L_ol_{q}:')
                a('s_waitcnt vmcnt(0)')
                for q in range(4 * h, 4 * h + 4):
                    a(f's_bitcmp0_b32 s{sPEND}, {q}\ns_cbranch_scc1 L_o2_{q}')
                    proc(q, f'L_o2_{q}')
                a(f's_branch L_oretry{h}')
                a(f'L_odone{h}:')
            fl = {0: '', 1: ' sc1', 2: ' nt'}[opt('ofl', 2)]
            def send(h):
                a(f's_nop 7\ns_bitcmp1_b32 s{sSW}, 1\ns_cbranch_scc1 L_sh{h}')
                for kh in range(2):
                    sd = OA[h] + 8 - 8 * kh
                    a(f'ds_write_b128 v{vXW}, {q4(sd)} offset:{L_ACCD+8192*h}\nds_write_b128 v{vXW}, {q4(sd+4)} offset:{L_ACCD+8192*h+1024}')
                    self.sig(F_OX + 16 * h)
                    if kh == 0: a(f's_branch L_sd{h}\nL_sh{h}:')
                    else:
                        for r in range(0, 8, 2): a(f'v_pk_mov_b32 {pr(OA[h]+r)}, {pr(OA[h]+8+r)}, {pr(OA[h]+8+r)} op_sel:[0,1]')
                a(f'L_sd{h}:')
            def finish(h):
                self.wait(F_OX + 16 * h, sleep=0, va=vP)
                t = OA[h] + 8
                a(f'ds_read_b128 {q4(t)}, v{vXR} offset:{L_ACCD+8192*h}\nds_read_b128 {q4(t+4)}, v{vXR} offset:{L_ACCD+8192*h+1024}')
                for r in range(8):
                    if r % 4 == 0: a(f's_waitcnt lgkmcnt({1 - r//4})')
                    a(f'v_add_f32 v{t+r}, v{t+r}, v{OA[h]+r}\ns_add_u32 s{sT0}, s{sOUT}, {((r % 4) + 8 * (r // 4) + 32 * h) * 4096}')
                    if 'noo' not in OPT: a(f'buffer_store_dword v{t+r}, v{vOA}, s[{SOUT}:{SOUT+3}], s{sT0} offen{fl}')
            def verify(q):
                R_ = [self.OF(q, n) + r for n in range(4) for r in range(4)]
                if opt('vlite', 0): return [f'v_max3_u32 v{vT}, v{R_[3]}, v{R_[7]}, v{R_[11]}', f'v_max_u32 v{vT}, v{R_[15]}, v{vT}', f'v_cmp_eq_u32 vcc, -1, v{vT}']
                return [f'v_max3_u32 v{vT}, v{R_[0]}, v{R_[1]}, v{R_[2]}'] + [f'v_max3_u32 v{vT}, v{R_[r]}, v{R_[r+1]}, v{vT}' for r in range(3, 15, 2)] + [f'v_max_u32 v{vT}, v{R_[15]}, v{vT}', f'v_cmp_eq_u32 vcc, -1, v{vT}']
            tails = []
            def pproc(q, nxt, wait=None):
                v = ([wait] if wait else []) + (verify(nxt) if nxt is not None else [])
                a(f's_cbranch_vccnz L_ps{q}')
                k = (len(v) + 2) // 3
                for n in range(4):
                    a(f'v_mfma_f32_32x32x16_bf16 {t16(OA[q//4])}, {q4(self.OF(q, n))}, {q4(self.WF(4*(q%4)+n))}, {t16(OA[q//4])}')
                    if n == 0: a(f's_bitset0_b32 s{sPEND}, {q}')
                    else:
                        for x in v[(n - 1) * k:n * k]: a(x)
                a(f'L_pj{q}:')
                tails.append((q, v))
            a(f's_mov_b32 s{sPEND}, 0xff\ns_cmp_eq_u32 s{sPRE}, 1\ns_cbranch_scc1 L_prej')
            self.wait(F_S[5], sleep=1)
            self.wait(F_AY, sleep=0)
            for q in order: loads(q)
            for st in range(16): a(self.wo_read(st, vLN))
            a('s_waitcnt vmcnt(0)')
            a('L_prej:')
            a('s_waitcnt vmcnt(1) lgkmcnt(0)')
            NX = opt('nx', 2)
            for x in verify(1): a(x)
            for k in range(NX): pproc(order[k], order[k + 1] if k + 1 < NX else None)
            self.wait(F_AY, sleep=0)
            self.stamp(11)
            loads(5); loads(6)
            if NX < 4:
                for x in verify(order[NX]): a(x)
            rest = [7, 4]
            for k in range(NX, 4):
                pproc(order[k], order[k + 1] if k < 3 else None)
                if rest: loads(rest.pop(0))
            for q in rest: loads(q)
            self.srd(SOUT, P(14), 2048 * 4096)
            a(f's_lshr_b32 s{sKH}, s{sSW}, 1\ns_mov_b32 s{sCNT}, 50000')
            a(f's_lshl_b32 s{sOUT}, s{sRB}, 18\ns_lshl_b32 s{sT0}, s{sCG}, 1\ns_and_b32 s{sT2}, s{sWV}, 1\ns_add_u32 s{sT0}, s{sT0}, s{sT2}\ns_lshl_b32 s{sT0}, s{sT0}, 7\ns_add_u32 s{sOUT}, s{sOUT}, s{sT0}\ns_lshl_b32 s{sT0}, s{sKH}, 16\ns_add_u32 s{sOUT}, s{sOUT}, s{sT0}')
            retry(0)
            send(0)
            self.stamp(12)
            a('s_waitcnt vmcnt(12)')
            for x in verify(5): a(x)
            for k, q in enumerate(order):
                pproc(4 + q, 4 + order[k + 1] if k < 3 else None, f's_waitcnt vmcnt({8 - 4*k})' if k < 3 else None)
            a(f's_cmp_eq_u32 s{sPEND}, 0\ns_cbranch_scc1 L_ofast')
            finish(0)
            a(f's_mov_b32 s{sCNT}, 50000')
            retry(1)
            send(1)
            a('s_branch L_olast')
            a('L_ofast:')
            OA.append(OA[1])
            a(f's_nop 7\ns_bitcmp1_b32 s{sSW}, 1\ns_cbranch_scc1 L_shf')
            for kh in range(2):
                sd = OA[1] + 8 - 8 * kh
                a(f'ds_write_b128 v{vXW}, {q4(sd)} offset:{L_ACCD+8192}\nds_write_b128 v{vXW}, {q4(sd+4)} offset:{L_ACCD+8192+1024}')
                self.sig(F_OX + 16)
                if kh == 0: a('s_branch L_sdf\nL_shf:')
                else:
                    for r in range(0, 8, 2): a(f'v_pk_mov_b32 {pr(OA[1]+r)}, {pr(OA[1]+8+r)}, {pr(OA[1]+8+r)} op_sel:[0,1]')
            a('L_sdf:')
            finish(0)
            a('L_olast:')
            self.stamp(1)
            finish(1)
            self.end()
            for q, v in tails:
                a(f'L_ps{q}:')
                for x in v: a(x)
                a(f's_nop 0\ns_branch L_pj{q}')
            return
        a(f's_mov_b32 s{sPEND}, 0xff')
        if opt('pre', 0):
            a(f's_cmp_eq_u32 s{sPRE}, 0\ns_cbranch_scc1 L_nopre')
            a('s_waitcnt vmcnt(1) lgkmcnt(0)')
            proc(1, 'L_o0_1'); proc(2, 'L_o0_2')
            self.wait(F_AY, sleep=0)
            a('s_branch L_prej')
            a('L_nopre:')
        TV = opt('tv', 2)
        if TV == 0:
            self.wait(F_S[5], sleep=1)
            self.wait(F_AY, sleep=0)
            for q in order: loads(q)
            for st in range(16): a(self.wo_read(st, vLN))
            a('s_waitcnt vmcnt(0) lgkmcnt(0)')
            proc(1, 'L_o0b_1'); proc(2, 'L_o0b_2')
            a('L_prej:')
            self.stamp(11)
            loads(5); loads(6)
            proc(3, 'L_o0_3')
            loads(7)
            proc(0, 'L_o0_0')
            loads(4)
        else:
            NE = {1: 0, 2: 2, 3: 4, 4: 3}[TV]
            XL = opt('xl', 0)
            if XL:
                a(f's_cmp_eq_u32 s{sPRE}, 1\ns_cbranch_scc1 L_xl')
            if opt('s5p', 1):
                a(f's_waitcnt lgkmcnt(0)\nv_cmp_eq_u32 vcc, 0, v{vEP}\ns_cbranch_vccz L_s5ok')
            self.wait(F_S[5], sleep=1)
            a('L_s5ok:')
            for q in order[:XL]: loads(q)
            a('L_xl:')
            for q in order[XL:max(XL, NE)]: loads(q)
            for st in range(16): a(self.wo_read(st, vLN))
            self.wait(F_AY, sleep=0)
            self.stamp(11)
            for q in order[max(XL, NE):]: loads(q)
            YD = opt('yd', 3)
            iss = 0
            for k, q in enumerate(order):
                while iss < min(4, k + 1 - YD): loads(4 + order[iss]); iss += 1
                a(f's_waitcnt vmcnt({12 - 4*k + 4*iss})')
                proc(q, f'L_o0_{q}')
            while iss < 4: loads(4 + order[iss]); iss += 1
        self.stamp(12)
        self.srd(SOUT, P(14), 2048 * 4096)
        a(f's_lshr_b32 s{sKH}, s{sSW}, 1\ns_mov_b32 s{sCNT}, 50000')
        a(f's_lshl_b32 s{sOUT}, s{sRB}, 18\ns_lshl_b32 s{sT0}, s{sCG}, 1\ns_and_b32 s{sT2}, s{sWV}, 1\ns_add_u32 s{sT0}, s{sT0}, s{sT2}\ns_lshl_b32 s{sT0}, s{sT0}, 7\ns_add_u32 s{sOUT}, s{sOUT}, s{sT0}\ns_lshl_b32 s{sT0}, s{sKH}, 17\ns_add_u32 s{sOUT}, s{sOUT}, s{sT0}')
        for k, q in enumerate(order):
            a(f's_waitcnt vmcnt({12 - 4*k})')
            proc(4 + q, f'L_o1_{q}')
        a('L_oretry:')
        a(f's_cmp_eq_u32 s{sPEND}, 0\ns_cbranch_scc1 L_odone\ns_sub_u32 s{sCNT}, s{sCNT}, 1\ns_cbranch_scc1 L_odone')
        for q in range(8):
            a(f's_bitcmp0_b32 s{sPEND}, {q}\ns_cbranch_scc1 L_ol_{q}')
            loads(q)
            a(f'L_ol_{q}:')
        a('s_waitcnt vmcnt(0)')
        for q in range(8):
            a(f's_bitcmp0_b32 s{sPEND}, {q}\ns_cbranch_scc1 L_o2_{q}')
            proc(q, f'L_o2_{q}')
        a('s_branch L_oretry')
        a('L_odone:')
        if self.stamps: a(f's_mov_b32 s{sST+14}, s{sCNT}')
        self.stamp(1)
        fl = {0: '', 1: ' sc1', 2: ' nt', 3: ' sc0 sc1', 4: ' sc1 nt', 5: ' sc0 nt', 6: ' sc0 sc1 nt'}[opt('ofl', 2)]
        a(f's_nop 7\ns_cmp_eq_u32 s{sKH}, 0\ns_cbranch_scc0 L_ohi')
        for kh in range(2):
            keep, send = OA[kh], OA[1 - kh]
            for q in range(4): a(f'ds_write_b128 v{vXW}, {q4(send+4*q)} offset:{L_ACCD + 8192*(q//2) + 1024*(q%2)}')
            self.sig(F_OX)
            self.wait(F_OX, sleep=0, va=vP)
            for q in range(4): a(f'ds_read_b128 {q4(4*q)}, v{vXR} offset:{L_ACCD + 8192*(q//2) + 1024*(q%2)}')
            for r in range(16):
                if r % 4 == 0: a(f's_waitcnt lgkmcnt({3 - r//4})')
                a(f'v_add_f32 v{r}, v{r}, v{keep+r}\ns_add_u32 s{sT0}, s{sOUT}, {((r % 4) + 8 * (r // 4)) * 4096}')
                if 'noo' not in OPT: a(f'buffer_store_dword v{r}, v{vOA}, s[{SOUT}:{SOUT+3}], s{sT0} offen{fl}')
            self.end()
            if kh == 0: a('L_ohi:')

    def kvproj(self):
        a = self.a
        vXA, vWA, vU, vO, vZ, D = 176, 177, 178, 179, 180, 184
        a(f's_lshr_b32 s{sT5}, s{sCG}, 1')
        a(f'v_and_b32 v{vT}, 15, v{vLN}\ns_lshl_b32 s{sT0}, s{sT5}, 4\nv_add_u32 v{vO}, s{sT0}, v{vT}\nv_mul_u32_u24 v{vXA}, 1040, v{vO}')
        a(f'v_lshrrev_b32 v{vU}, 4, v{vLN}\nv_lshl_add_u32 v{vXA}, v{vU}, 4, v{vXA}\nv_add_u32 v{vXA}, {L_A1}, v{vXA}')
        a(f'v_lshlrev_b32 v{vWA}, 3, v{vT}\nv_lshl_add_u32 v{vWA}, v{vU}, 8, v{vWA}\nv_and_b32 v181, 1, v{vU}\nv_lshl_add_u32 v{vWA}, v181, 7, v{vWA}\nv_xor_b32 v181, 128, v{vWA}\nv_add_u32 v{vWA}, {L_WKV}, v{vWA}\nv_add_u32 v181, {L_WKV}, v181')
        a(f's_and_b32 s{sT1}, s{sCG}, 1\ns_xor_b32 s{sT2}, s{sT1}, 1')
        a(f'v_lshrrev_b32 v{vO}, s{sT1}, v{vU}\nv_and_b32 v{vO}, 1, v{vO}\nv_lshlrev_b32 v{vO}, 9, v{vO}\nv_lshl_add_u32 v{vO}, v{vT}, 4, v{vO}')
        a(f'v_lshrrev_b32 v{vT}, s{sT2}, v{vU}\nv_and_b32 v{vT}, 1, v{vT}\nv_lshl_add_u32 v{vO}, v{vT}, 3, v{vO}')
        a(f's_lshl_b32 s{sT0}, s{sRB}, 1\ns_lshr_b32 s{sT2}, s{sT5}, 1\ns_add_u32 s{sT0}, s{sT0}, s{sT2}\ns_lshl_b32 s{sT0}, s{sT0}, 1\ns_add_u32 s{sT0}, s{sT0}, s{sT1}\ns_lshl_b32 s{sT0}, s{sT0}, 10')
        a(f's_and_b32 s{sT2}, s{sT5}, 1\ns_lshl_b32 s{sT2}, s{sT2}, 8\ns_add_u32 s{sT0}, s{sT0}, s{sT2}\ns_add_u32 s{sT3}, s{sT0}, {WS_KVIMG:#x}')
        a(f's_lshl_b32 s{sT4}, s{sRB}, 3\ns_add_u32 s{sT4}, s{sT4}, s{sCG}\ns_lshl_b32 s{sT4}, s{sT4}, {opt("fs", 6)}\ns_add_u32 s{sT4}, s{sT4}, {WS_KVFLAG:#x}')
        a(f'v_mov_b32 v{vZ}, 0')
        a(f's_lshl_b32 s{sT0}, s{sSW}, 8\nv_add_u32 v{vXA}, s{sT0}, v{vXA}\ns_lshl_b32 s{sT0}, s{sSW}, 12\nv_add_u32 v{vWA}, s{sT0}, v{vWA}\nv_add_u32 v181, s{sT0}, v181')
        a(f's_lshl_b32 s{sT0}, s{sSW}, 10\nv_add_u32 v{vU}, s{sT0}, v{vL16}')
        self.wait(F_L1, sleep=0)
        self.stamp(12)
        for s in range(4):
            b = 128 + 8 * s
            a(f'ds_read_b128 {q4(b)}, v{vXA} offset:{64*s}')
            a(f'ds_read_b64_tr_b16 {pr(b+4)}, v{vWA} offset:{1024*s}')
            a(f'ds_read_b64_tr_b16 {pr(b+6)}, v181 offset:{1024*s}')
        a(f's_bitcmp1_b32 s{sCG}, 0\ns_cbranch_scc1 L_kv_v')
        for kind in 'kv':
            for s in range(4):
                a(f's_waitcnt lgkmcnt({3 * (3 - s)})')
                b = 128 + 8 * s
                A, B = (q4(b + 4), q4(b)) if kind == 'k' else (q4(b), q4(b + 4))
                a(f'v_mfma_f32_16x16x32_bf16 {q4(D)}, {A}, {B}, {"0" if s == 0 else q4(D)}')
            if kind == 'k': a('s_branch L_kv_j\nL_kv_v:')
        a('L_kv_j:')
        a(f's_cmp_eq_u32 s{sSW}, 0\ns_cbranch_scc1 L_kv_0\ns_nop 5')
        a(f'ds_write_b128 v{vU}, {q4(D)} offset:{L_QF}')
        self.sig(F_S[4])
        a('s_branch L_nokv')
        a('L_kv_0:')
        self.sig(F_S[4])
        self.wait(F_S[4], sleep=0)
        for q in range(3): a(f'ds_read_b128 {q4(128+4*q)}, v{vL16} offset:{L_QF + 1024*(q+1)}')
        for q in range(3):
            a(f's_waitcnt lgkmcnt({2-q})\nv_pk_add_f32 {pr(D)}, {pr(D)}, {pr(128+4*q)}\nv_pk_add_f32 {pr(D+2)}, {pr(D+2)}, {pr(130+4*q)}')
        a(f'v_cvt_pk_bf16_f32 v188, v{D}, v{D+1}\nv_cvt_pk_bf16_f32 v189, v{D+2}, v{D+3}')
        a(f'buffer_store_dwordx2 v[188:189], v{vO}, s[{SWS}:{SWS+3}], s{sT3} offen{[" sc1", " sc0 sc1", " sc1 nt"][opt("kvst", 0)]}')
        a(f's_bitcmp1_b32 s{sCG}, 0\ns_cbranch_scc1 L_kv_v2')
        a(f'v_mul_f32 v190, v{D}, v{D}\nv_fmac_f32 v190, v{D+1}, v{D+1}\nv_fmac_f32 v190, v{D+2}, v{D+2}\nv_fmac_f32 v190, v{D+3}, v{D+3}')
        a('v_mov_b32 v191, v190\nv_permlane32_swap_b32 v190, v191\nv_add_f32 v190, v190, v191')
        a('v_mov_b32 v191, v190\nv_permlane16_swap_b32 v190, v191\nv_add_f32 v190, v190, v191')
        a('s_mov_b64 exec, 0xffff\ns_branch L_kv_fin')
        a('L_kv_v2:')
        a(f'v_max3_f32 v190, |v{D}|, |v{D+1}|, |v{D+2}|\nv_max_f32 v190, |v{D+3}|, v190')
        a(f's_mov_b32 s{sT1}, {f2u(2.0**50):#x}\nv_cmp_lt_f32 vcc, s{sT1}, v190\nv_mov_b32 v190, 0x7f800000\ns_mov_b64 exec, vcc')
        a('L_kv_fin:')
        a(f'ds_max_u32 v{vZ}, v190 offset:{F_KST}\ns_mov_b64 exec, -1\nds_read_b32 v183, v{vZ} offset:{F_KST}')
        a('s_waitcnt vmcnt(1)')
        self.get_tag()
        if XC: a(f's_getreg_b32 s{sT0}, hwreg(HW_REG_XCC_ID)\nv_mov_b32 v184, s{sT0}')
        a(f'v_mov_b32 v182, s{sTAG}\nds_write_b32 v{vF}, v182 offset:{F_TAG}')
        self.stamp(13)

    def service(self):
        a = self.a
        self.cyc = False
        L1, L8, L16, L128, FF, WW, CC = 192, 194, 196, 198, 200, 202, 204
        DG = 206
        vXD, vXR, vXR2, vBD, vHA, vHB, vSX, vTW, vTR, vEA, vXS, vOA, vWI, vP8, vCK, vCS, vCK2, vCS2, vHF, vYW, vE0, vPF, vTG, vYR = range(214, 238)
        PRM = 238
        vC31, vHI, vU, vWA, vXA, vQ = 242, 243, 244, 245, 246, 247
        a('L_service:')
        if opt('ent', 0): self.code_prefetch()
        a(f'v_mov_b32 v0, 0\nv_mov_b32 v1, 0\nv_mov_b32 v2, 0\nv_mov_b32 v3, 0')
        a(f's_lshl_b32 s{sT0}, s{sSW}, 10\nv_add_u32 v{vT}, s{sT0}, v{vL16}\nds_write_b128 v{vT}, v[0:3] offset:{L_ACCF}')
        a(f'v_lshlrev_b32 v{vT}, 3, v{vLN}\nds_write_b64 v{vT}, v[0:1]')
        a(f'v_and_b32 v{vC31}, 31, v{vLN}\nv_lshlrev_b32 v{vU}, 1, v{vC31}\nv_lshrrev_b32 v{vHI}, 5, v{vLN}')
        a('s_waitcnt lgkmcnt(0)')
        self.stamp(0)
        a('s_setprio 3')
        self.srd(SWS, P(16), WS_SIZE)
        a(f's_cmp_lg_u32 s{sSW}, 0\ns_cbranch_scc1 L_noepl')
        a(f'buffer_load_dword v{vEP}, off, s[{SWS}:{SWS+3}], 0 sc1')
        a('L_noepl:')
        a(f's_lshl_b32 s{sT0}, s{sPB}, 6')
        for k, p in enumerate((6, 7, 12)):
            self.srd(SA, P(p), 1024)
            a(f'buffer_load_ushort v{PRM+k}, v{vU}, s[{SA}:{SA+3}], s{sT0} offen')
        self.srd(SA, P(13), 1024)
        a(f's_lshl_b32 s{sT0}, s{sCG}, 7\ns_and_b32 s{sT1}, s{sWV}, 1\ns_lshl_b32 s{sT1}, s{sT1}, 6\ns_add_u32 s{sT0}, s{sT0}, s{sT1}')
        a(f'buffer_load_ushort v{PRM+3}, v{vU}, s[{SA}:{SA+3}], s{sT0} offen')
        a('s_barrier')
        self.common_regs()
        self.tr_parts(vTR, vU, vWA)
        a(f'v_lshl_add_u32 v{vTR}, v{vU}, 6, v{vTR}\nv_lshl_add_u32 v{vTR}, v{vHI}, 9, v{vTR}')
        a(f'v_lshl_add_u32 v{vWA}, v{vHI}, 10, v{vWA}\nv_add_u32 v{vWA}, {L_A2}, v{vWA}')
        a(f'v_mul_u32_u24 v{vCK}, 1040, v{vC31}\nv_lshl_add_u32 v{vCK}, v{vHI}, 4, v{vCK}\nv_add_u32 v{vCK}, {L_A1}, v{vCK}')
        a(f's_lshr_b32 s{sT0}, s{sSW}, 1\ns_mul_i32 s{sT0}, s{sT0}, {32*1040}\nv_add_u32 v{vXA}, s{sT0}, v{vCK}')
        a(f's_lshl_b32 s{sT0}, s{sSW}, 11\nv_add_u32 v{vQ}, s{sT0}, v{vL16}')
        sXB, sXL, sTP, sCT = 73, 74, 75, 80
        a(f's_lshl_b32 s{sXB}, s{sTB}, 2\ns_add_u32 s{sXB}, s{sXB}, s{sSW}\ns_lshl_b32 s{sXB}, s{sXB}, 15')
        a(f's_mul_i32 s{sXL}, s{sSW}, {XW}\ns_add_u32 s{sXL}, s{sXL}, {L_A2}')
        a(f's_lshl_b32 s{sTP}, s{sRB}, 1\ns_lshr_b32 s{sT0}, s{sSW}, 1\ns_add_u32 s{sTP}, s{sTP}, s{sT0}')
        a(f's_lshl_b32 s{sCT}, s{sCG}, 1\ns_and_b32 s{sT0}, s{sSW}, 1\ns_add_u32 s{sCT}, s{sCT}, s{sT0}')
        a(f'v_lshlrev_b32 v{vT}, 3, v{vHI}\nv_xor_b32 v{vT}, v{vC31}, v{vT}\nv_lshlrev_b32 v{vT}, 4, v{vT}\nv_lshl_add_u32 v{vXD}, v{vHI}, 13, v{vT}\nv_lshl_add_u32 v{vBD}, v{vHI}, 10, v{vT}')
        def tmap(i):
            r = 4 * (i >> 3) + (i & 3)
            return 16 * ((i >> 2) & 1) + (r >> 1) + 8 * (r & 1)
        def xdma(half, ms=range(16)):
            for m in ms:
                a(f's_xor_b32 s{sT0}, s{sXM}, {m}\ns_mul_i32 s{sT0}, s{sT0}, 1040\ns_add_u32 m0, s{sT0}, s{sXL}\ns_xor_b32 s{sT0}, s{sXG}, {tmap(2*m)*1024 + 512*half}')
                a(f'buffer_load_dwordx4 v{vXD}, s[{SA}:{SA+3}], s{sT0} offen{" nt" if (half == 0 and m < opt("xbnt", 0)) else ""} lds')
        sXM, sXG, sHB = 50, 51, 81
        a(f's_and_b32 s{sXM}, s{sPB}, 14\ns_and_b32 s{sT0}, s{sPB}, 2\ns_lshl_b32 s{sT0}, s{sT0}, 3\ns_lshr_b32 s{sT1}, s{sPB}, 2\ns_lshl_b32 s{sT1}, s{sT1}, 1\ns_add_u32 s{sT0}, s{sT0}, s{sT1}\ns_lshl_b32 s{sT0}, s{sT0}, 10')
        a(f's_xor_b32 s{sHB}, s{sPB}, s{sTB}\ns_and_b32 s{sHB}, s{sHB}, {opt("hrot", 1)}\ns_lshl_b32 s{sHB}, s{sHB}, 9\ns_add_u32 s{sT0}, s{sT0}, s{sHB}\ns_add_u32 s{sXG}, s{sXB}, s{sT0}')
        a(f'v_lshrrev_b32 v{vU}, 1, v{vC31}\nv_mul_u32_u24 v{vU}, 1040, v{vU}\nv_lshl_add_u32 v{vU}, v{vHI}, 4, v{vU}\nv_and_b32 v{vT}, 1, v{vC31}')
        a(f'v_mul_u32_u24 v{vHA}, 640, v{vT}\nv_mul_u32_u24 v{vHB}, 384, v{vT}\nv_add_u32 v{vHA}, v{vHA}, v{vU}\nv_add_u32 v{vHB}, v{vHB}, v{vU}')
        a(f'v_add_u32 v{vXR}, s{sXL}, v{vHA}\nv_add_u32 v{vXR2}, s{sXL}, v{vHB}\nv_add_u32 v{vHA}, {L_A1}, v{vHA}\nv_add_u32 v{vHB}, {L_A1}, v{vHB}')
        a(f'v_lshlrev_b32 v{vSX}, 3, v{vLN}\nv_add_u32 v{vSX}, s{sXL}, v{vSX}')
        a(f'v_lshlrev_b32 v{vP8}, 3, v{vC31}\nv_add_u32 v{vP8}, {L_A2}, v{vP8}')
        a(f'v_lshlrev_b32 v{vTW}, 6, v{vC31}\nv_lshl_add_u32 v{vTW}, v{vHI}, 5, v{vTW}\nv_add_u32 v{vTW}, s{sXL}, v{vTW}\nv_add_u32 v{vTR}, s{sXL}, v{vTR}')
        a(f'v_lshlrev_b32 v{vEA}, 4, v{vC31}\nv_xor_b32 v{vT}, 1, v{vHI}\nv_lshl_add_u32 v{vEA}, v{vT}, 12, v{vEA}')
        a(f'v_lshlrev_b32 v{vXS}, 10, v{vC31}\nv_lshl_add_u32 v{vXS}, v{vHI}, 4, v{vXS}')
        a(f'v_lshlrev_b32 v{vOA}, 2, v{vC31}\nv_lshl_add_u32 v{vOA}, v{vHI}, 14, v{vOA}')
        self.wimg_lane_addr(vWI, vT)
        a(f's_and_b32 s{sT0}, s{sSW}, 1\ns_mul_i32 s{sT1}, s{sT0}, {512 - 32*1040}\ns_add_u32 s{sT1}, s{sT1}, {32*1040}\nv_add_u32 v{vCS}, s{sT1}, v{vCK}')
        a(f's_mul_i32 s{sT1}, s{sT0}, {32*1040 + 512}\nv_add_u32 v{vCK}, s{sT1}, v{vCK}\nv_add_u32 v{vCK2}, {L_A2 - L_A1}, v{vCK}\nv_add_u32 v{vCS2}, {L_A2 - L_A1}, v{vCS}')
        a(f'v_and_b32 v{vHF}, 15, v{vLN}\nv_lshlrev_b32 v{vHF}, 7, v{vHF}\nv_lshlrev_b32 v{vPF}, 6, v{vLN}')
        a(f'v_add_u32 v{vYW}, s{sXL}, v{vL16}\ns_xor_b32 s{sT0}, s{sSW}, 1\ns_mul_i32 s{sT0}, s{sT0}, {XW}\ns_add_u32 s{sT0}, s{sT0}, {L_A2}\nv_add_u32 v{vYR}, s{sT0}, v{vL16}')
        self.kvproj()
        a('L_nokv:')
        a(f's_cmp_eq_u32 s{sSW}, 0\ns_cbranch_scc1 L_pw1\ns_waitcnt vmcnt(0)')
        a('L_pw1:')
        def kvflag():
            a(f's_cmp_lg_u32 s{sSW}, 0\ns_cbranch_scc1 L_nokvf')
            a('s_waitcnt vmcnt(0)')
            a(f's_mov_b64 exec, {(1 << (1 << (opt("fs", 6) - 4))) - 1:#x}\nbuffer_store_dwordx4 v[182:185], v{vL16}, s[{SWS}:{SWS+3}], s{sT4} offen sc1\ns_mov_b64 exec, -1')
            self.sig(F_KVD, va=vF)
            self.stamp(14)
            a('L_nokvf:')
        FP = opt('fp', 16)
        LC = PRM
        def params():
            a(f'v_lshlrev_b32 v0, 16, v{PRM}\nv_lshlrev_b32 v1, 16, v{PRM+1}\nv_lshlrev_b32 v2, 16, v{PRM+2}')
            LOG2E = f2u(math.log2(math.e))
            a(f'v_mul_f32 v2, {LOG2E:#x}, v2\nv_exp_f32 v2, v2\nv_cvt_pk_bf16_f32 v2, v2, v2\nv_lshlrev_b32 v2, 16, v2')
            a(f'v_mul_f32 v4, v2, v0\nv_mul_f32 v5, v2, v1\nv_mul_f32 v4, {LOG2E:#x}, v4\nv_mul_f32 v5, {f2u(-1/(2*math.pi)):#x}, v5')
            def power(d, n):
                a(f'v_mul_f32 v6, {n}, v4\nv_mul_f32 v7, {n}, v5\nv_exp_f32 v6, v6\nv_fract_f32 v7, v7\nv_cos_f32 v8, v7\nv_sin_f32 v9, v7\nv_mul_f32 v{d}, v6, v8\nv_mul_f32 v{d+1}, v6, v9')
            power(L1, '1.0')
            power(L8, f'{f2u(8.0):#x}')
            power(L16, f'{f2u(16.0):#x}')
            power(L128, f'{f2u(128.0):#x}')
            if FP == -2:
                a('s_waitcnt lgkmcnt(0)'); kvflag()
            a(f'v_cvt_f32_u32 v11, v{vHI}\nv_mul_f32 v11, {f2u(1024.0):#x}, v11')
            power(FF, 'v11')
            a(f's_lshl_b32 s{sT0}, s{sSW}, 1\nv_add_u32 v11, s{sT0}, v{vHI}\nv_cvt_f32_u32 v11, v11\nv_mul_f32 v11, {f2u(16.0):#x}, v11')
            power(WW, 'v11')
            if FP == -3:
                a('s_waitcnt lgkmcnt(0)'); kvflag()
            a(f'v_add_f32 v6, -1.0, v{L1}\nv_mul_f32 v7, v0, v0\nv_fmac_f32 v7, v1, v1\nv_rcp_f32 v7, v7\nv_add_f32 v7, v7, v7')
            a(f'v_mul_f32 v8, v6, v0\nv_fma_f32 v8, -v{L1+1}, v1, v8\nv_mul_f32 v9, v6, v1\nv_fma_f32 v9, -v{L1+1}, v0, -v9\nv_mul_f32 v{CC}, v8, v7\nv_mul_f32 v{CC+1}, v9, v7')
            a(f'v_and_b32 v6, 1, v{vLN}\nv_lshlrev_b32 v6, 4, v6\nv_lshlrev_b32 v3, v6, v{PRM+3}')
            a(f'v_lshrrev_b32 v6, 1, v{vC31}\nv_lshlrev_b32 v7, 2, v{vHI}\nv_sub_u32 v6, v6, v7')
            for q in range(8):
                a(f'v_cmp_eq_u32 vcc, {8*(q//4) + q%4}, v6\nv_cndmask_b32 v{DG+q}, 0, v3, vcc')
            a(f'v_mov_b32 v{LC}, 0\nv_mov_b32 v{LC+1}, 0')
        PL = opt('pl', 0)
        if PL == 0: params()
        if PL == 2:
            a(f's_cmp_eq_u32 s{sSW}, 0\ns_cbranch_scc1 L_pl1')
            params()
            a('L_pl1:')
        WT, D = 128, 160
        if FP == -1:
            a('s_waitcnt lgkmcnt(0)'); kvflag()
        self.wait(F_L2, sleep=1)
        self.stamp(1)
        vXQ = [vU, 186, 187, 191]
        a(f's_and_b32 s{sT1}, s{sRB}, 3')
        for c in range(4): a(f's_xor_b32 s{sT0}, s{sT1}, {c}\ns_lshl_b32 s{sT0}, s{sT0}, 8\nv_add_u32 v{vXQ[c]}, s{sT0}, v{vXA}')
        def xr(st): a(f'ds_read_b128 {q4(4*st)}, v{vXQ[st//8]} offset:{32*(st%8)}')
        NPR = opt('npr', 16)
        if FP == 0: kvflag()
        for k, st in enumerate(range(32 - NPR, 32)):
            xr(st)
            if FP == 8 and k == opt('fpk', 15): kvflag()
        if FP == 16: kvflag()
        lq = []
        def wr(st):
            b = WT + 4 * (st % 8)
            if st < 32 - NPR: xr(st); lq.append(st)
            a(f'ds_read_b64_tr_b16 {pr(b)}, v{vWA} offset:{2048*st}\nds_read_b64_tr_b16 {pr(b+2)}, v{vWA} offset:{2048*st+512}')
            lq.extend([st, st])
        for s0, s1, fl in ((0, 16, F_L4), (16, 32, F_L6)):
            self.wait(fl, sleep=0)
            if s0 == 0:
                self.stamp(2)
            dp = 4 if s0 < 32 - NPR else 6
            for st in range(s0, s0 + dp): wr(st)
            for st in range(s0, s1):
                lq[:] = [x for x in lq if x > st]
                a(f's_waitcnt lgkmcnt({len(lq)})')
                a(f'v_mfma_f32_32x32x16_bf16 {t16(D)}, {q4(WT + 4*(st%8))}, {q4(4*st)}, {"0" if st == 0 else t16(D)}')
                if st + dp < s1: wr(st + dp)
            if s0 == 0:
                if FP == 32: kvflag()
                self.wait(F_KVD, sleep=0)
                self.sig(F_QA)
                a(f'ds_read_b32 v{vTG}, v{vF} offset:{F_TAG}')
        QS = f2u(0.25 * math.log2(math.e))
        a(f'v_mov_b32 v24, {QS:#x}')
        for r in range(8):
            a(f'v_pk_mul_f32 {pr(D+2*r)}, v[24:25], {pr(D+2*r)} op_sel:[0,0] op_sel_hi:[0,1]')
            a(f'v_cvt_pk_bf16_f32 v{16+r}, v{D+2*r}, v{D+2*r+1}')
            if r == 3: a(f'ds_write_b128 v{vQ}, v[16:19] offset:{L_QF}')
        a(f'ds_write_b128 v{vQ}, v[20:23] offset:{L_QF+1024}')
        self.sig(F_QP)
        self.stamp(3)
        self.mute = 'front' in OPT
        a(f'v_mul_f32 v8, v{D}, v{D}\nv_mul_f32 v9, v{D+8}, v{D+8}')
        for r in range(1, 8): a(f'v_fmac_f32 v8, v{D+r}, v{D+r}\nv_fmac_f32 v9, v{D+8+r}, v{D+8+r}')
        a('v_permlane32_swap_b32 v8, v9\nv_add_f32 v8, v8, v9')
        a(f'v_mov_b32 v{vQ}, v8')
        if 'nosvc' in OPT:
            self.sig(F_S[0]); self.sig(F_S[9]); self.end(); return
        if PL == 1: params()
        if PL == 2:
            a(f's_cmp_lg_u32 s{sSW}, 0\ns_cbranch_scc1 L_pl2')
            params()
            a('L_pl2:')
        vCL = vXA
        HR_ = opt('hr', 0)
        a(f's_and_b32 s{sT0}, s{sCG}, {3 if HR_ else 0}\ns_lshl_b32 s{sT0}, s{sT0}, 7\nv_xor_b32 v{vCL}, s{sT0}, v{vL16}')
        SN = 180
        a(f'v_readfirstlane_b32 s{sTAG}, v{vTG}')
        a(f'v_mov_b32 v{SN}, -1\nv_mov_b32 v{SN+1}, -1\nv_mov_b32 v{SN+2}, -1\nv_mov_b32 v{SN+3}, -1\nv_mov_b32 v{SN+4}, 0\nv_mov_b32 v{SN+5}, 0\nv_mov_b32 v{SN+6}, v{vTG}\nv_mov_b32 v{SN+7}, 0')
        self.srd(SA, P(5), 2048 * 1024)
        self.srd(SB, P(8), 512 * 1024)
        self.srd(SC, P(9), 512 * 1024)
        self.stamp(11)
        def bdma(half, only=None):
            if half == 0: a(f's_mul_i32 s{sT1}, s{sSW}, {4*1040}\ns_lshl_b32 s{sT2}, s{sPB}, 15\ns_lshl_b32 s{sT3}, s{sSW}, 13\ns_add_u32 s{sT2}, s{sT2}, s{sT3}\ns_add_u32 s{sT2}, s{sT2}, s{sHB}')
            for pl, srd in ((0, SB), (1, SC)):
                for m in range(4):
                    if only is not None and only != 4 * pl + m: continue
                    a(f's_add_u32 m0, s{sT1}, {L_A1 + ((2*half + pl)*16 + m)*1040}\ns_xor_b32 s{sT0}, s{sT2}, {2048*m + 512*half}')
                    a(f'buffer_load_dwordx4 v{vBD}, s[{srd}:{srd+3}], s{sT0} offen lds')
        def xread(half):
            for s in range(16): a(f'ds_read_b128 {q4(64*half + 4*s)}, v{vXR2 if s & 4 else vXR} offset:{32*s}')
        def rowdma(srd, base, sg, n):
            for m in range(n):
                if m % 4 == 0: a(f's_add_u32 m0, s{sT1}, {base + m*1040}\ns_add_u32 s{sT0}, s{sg}, {1024*m}')
                else: a('s_add_u32 m0, m0, 16')
                a(f'buffer_load_dwordx4 v{vCL}, s[{srd}:{srd+3}], s{sT0} offen offset:{1024*(m%4)} lds')
        self.wait(F_A1, sleep=opt('a1s', 4))
        self.stamp(10)
        a(f'ds_read_b64 {pr(SN+8)}, v{SN+4} offset:{F_KMAX}')
        xdma(0, range(2)); a(f's_mov_b32 s{sT0}, {f2u(3400.0):#x}\ns_waitcnt lgkmcnt(0)')
        a(f'v_mul_f32 v{vT}, v{SN+8}, v{vQ}\nv_cmp_nge_f32 vcc, s{sT0}, v{vT}' + (f'\nv_readfirstlane_b32 s{sXC}, v{SN+9}' if XC else '') + f'\ns_cmp_eq_u64 vcc, 0\ns_cselect_b32 s{sT0}, 1, 2\nv_mov_b32 v{vQ}, s{sT0}')
        a(f'ds_write_b32 v{vS}, v{vQ} offset:{F_S[0]}')
        bdma(0); xdma(0, range(2, 16))
        a('s_waitcnt vmcnt(0)')
        self.sig(F_S[1])
        self.stamp(4)
        xread(0)
        self.wait(F_S[1], sleep=1)
        self.stamp(5)
        GR, GI, BT = 128, 144, 160
        PD = 2 * opt('s1depth', 1)
        lq = []
        def bread(q):
            s, pl = q // 2, q % 2
            a(f'ds_read_b128 {q4(BT + 4*(q%4))}, v{vHB if s & 4 else vHA} offset:{((2*(s//16) + pl)*16)*1040 + 32*(s%16)}')
            lq.append(('b', q))
        a(f's_setprio {opt("gprio1", 0)}')
        for q in range(PD): bread(q)
        XQ = opt('xq', 21)
        for q in range(1, 64, 2):
            s = q // 2
            need = max([i for i, x in enumerate(lq) if x == ('b', q) or x == ('x', s)] + [-1])
            if need >= 0:
                a(f's_waitcnt lgkmcnt({len(lq) - 1 - need})')
                del lq[:need + 1]
            for pl, Gx in ((0, GR), (1, GI)):
                a(f'v_mfma_f32_32x32x16_bf16 {t16(Gx)}, {q4(4*s)}, {q4(BT + 4*((q-1+pl)%4))}, {"0" if s == 0 else t16(Gx)}')
            if q - 1 + PD == 32:
                a('s_setprio 3')
                self.wait(F_S[2], sleep=1); lq.clear()
                a(f's_setprio {opt("gprio1", 0)}')
                self.stamp(12)
            if XQ < q <= XQ + 32:
                sx = (q - XQ) // 2 - 1
                a(f'ds_read_b128 {q4(64 + 4*sx)}, v{vXR2 if sx & 4 else vXR} offset:{32*sx}'); lq.append(('x', 16 + sx))
            if q + PD < 64: bread(q - 1 + PD); bread(q + PD)
            if s < 2:
                for m in range(4): bdma(1, 4 * s + m)
            elif s < 6: xdma(1, range(4 * s - 8, 4 * s - 4))
            elif opt('pad1', 0): a(f's_nop {opt("pad1", 0) - 1}')
            if q == XQ:
                a('s_waitcnt vmcnt(0)')
                self.sig(F_S[2]); lq.append(('s', 0))
                a(f's_or_b32 s{sT0}, s2, s{sSW}\ns_cbranch_scc1 L_noep')
                a(f's_mov_b64 exec, 1\nbuffer_store_dword v{vTG}, off, s[{SWS}:{SWS+3}], 0 sc1\ns_mov_b64 exec, -1')
                a('L_noep:')
                a(f's_cmp_lg_u32 s{sTB}, 0\ns_cbranch_scc1 L_nozero')
                a(f's_lshl_b32 s{sT0}, s{sPB}, 14\ns_lshl_b32 s{sT1}, s{sSW}, 11\ns_add_u32 s{sT0}, s{sT0}, s{sT1}\ns_add_u32 s{sT0}, s{sT0}, {WS_EBUF:#x}')
                for n in range(2): a(f'buffer_store_dwordx4 {q4(SN+4)}, v{vL16}, s[{SWS}:{SWS+3}], s{sT0} offen offset:{1024*n} sc1')
                a('L_nozero:')
                a(f's_lshr_b32 s{sT0}, s{sSW}, 1\ns_and_b32 s{sT1}, s{sRB}, 1\ns_cmp_lg_u32 s{sT0}, s{sT1}\ns_cbranch_scc1 L_nosent')
                a(f's_lshl_b32 s{sT1}, s{sCG}, 12\ns_add_u32 s{sT0}, s{sXB}, s{sT1}\ns_add_u32 s{sT0}, s{sT0}, {WS_OBUF:#x}')
                self.xstore([f'buffer_store_dwordx4 {q4(SN)}, v{vL16}, s[{SWS}:{SWS+3}], s{sT0} offen offset:{1024*n}' for n in range(4)], 's')
                a('L_nosent:')
                if opt('pf', 1): self.prefetch((10, 11, 4), vPF)
        a('s_setprio 3')
        self.stamp(6)
        if opt('stop', 0) == 6: self.end(); return
        RE = 'op_sel:[0,0,0] op_sel_hi:[0,1,1]'
        IM = 'op_sel:[1,0,0] op_sel_hi:[1,1,1]'
        T0, T1 = 8, 10
        def pstep(dr, di, sr, si, l, ur, ui, ns=0, nu=0):
            a(f'v_pk_fma_f32 {pr(T0)}, {pr(l)}, {pr(si)}, {pr(ur)} {IM} neg_lo:[{1-ns},0,0] neg_hi:[{1-ns},0,0]')
            a(f'v_pk_fma_f32 {pr(T1)}, {pr(l)}, {pr(sr)}, {pr(ui)} {IM} neg_lo:[0,0,{nu}] neg_hi:[0,0,{nu}]')
            a(f'v_pk_fma_f32 {pr(dr)}, {pr(l)}, {pr(sr)}, {pr(T0)} {RE}')
            a(f'v_pk_fma_f32 {pr(di)}, {pr(l)}, {pr(si)}, {pr(T1)} {RE} neg_lo:[{ns},0,0] neg_hi:[{ns},0,0]')
        def cstep(dr, di, sr, si, l, ur, ui):
            a(f'v_fma_f32 v{T0}, -v{l+1}, v{si}, v{ur}\nv_fma_f32 v{T1}, v{l+1}, v{sr}, v{ui}\nv_fma_f32 v{dr}, v{l}, v{sr}, v{T0}\nv_fma_f32 v{di}, v{l}, v{si}, v{T1}')
        def zstep(d, s, l, u):
            a(f'v_pk_fma_f32 {pr(T0)}, {pr(l)}, {pr(s)}, {pr(u)} {RE}')
            a(f'v_pk_fma_f32 {pr(d)}, {pr(l)}, {pr(s)}, {pr(T0)} op_sel:[1,1,0] op_sel_hi:[1,0,1] neg_lo:[1,0,0]')
        def cmul(r, i, neg):
            a(f'v_pk_mul_f32 {pr(T0)}, {pr(CC)}, {pr(i)} op_sel:[1,0] op_sel_hi:[1,1]')
            a(f'v_pk_mul_f32 {pr(T1)}, {pr(CC)}, {pr(r)} op_sel:[1,0] op_sel_hi:[1,1]')
            a(f'v_pk_fma_f32 {pr(r)}, {pr(CC)}, {pr(r)}, {pr(T0)} {RE} neg_lo:[0,0,{neg}] neg_hi:[0,0,{neg}]')
            a(f'v_pk_fma_f32 {pr(i)}, {pr(CC)}, {pr(i)}, {pr(T1)} {RE} neg_lo:[{neg},0,1] neg_hi:[{neg},0,1]')
        ER, EI, EE = 12, 14, 16
        pstep(ER, EI, GR, GI, L1, GR + 2, GI + 2, 1, 1)
        for r in range(4, 16, 2): pstep(ER, EI, ER, EI, L1, GR + r, GI + r, 0, 1)
        cstep(EE, EE + 1, ER, EI, L8, ER + 1, EI + 1)
        a(f'ds_write_b64 v{vSX}, {pr(EE)} offset:{L_SXO}')
        self.sig(F_S[3])
        self.srd(SB, P(10), 512 * 1024)
        self.srd(SC, P(11), 512 * 1024)
        if HR_:
            a(f's_bitcmp1_b32 s{sCG}, 2\ns_cselect_b32 s{SB}, s{P(11)}, s{P(10)}\ns_cselect_b32 s{SB+1}, s{P(11)+1}, s{P(10)+1}\ns_cselect_b32 s{SC}, s{P(10)}, s{P(11)}\ns_cselect_b32 s{SC+1}, s{P(10)+1}, s{P(11)+1}')
        a(f's_lshl_b32 s{sT3}, s{sSW}, 1\ns_mov_b32 s{sM0}, 0\ns_mov_b32 s{sM0+1}, -1')
        a(f's_lshl_b32 s{sT4}, s{sPB}, 14\ns_lshl_b32 s{sT1}, s{sTB}, 9\ns_add_u32 s{sT4}, s{sT4}, s{sT1}\ns_add_u32 s{sT4}, s{sT4}, {WS_EBUF:#x}')
        self.wait(F_S[3], sleep=1)
        for c in range(7): a(f'ds_read_b64 {pr(20+2*c)}, v{vP8} offset:{(c//2)*XW + L_SXO + (c%2)*256}')
        a('s_waitcnt lgkmcnt(0)')
        for c in range(7):
            a(f's_cmp_lt_u32 s{sT3}, {c}\ns_cbranch_scc1 L_lh_done')
            a(f's_cmp_gt_u32 s{sT3}, {c}\ns_cselect_b64 exec, -1, s[{sM0}:{sM0+1}]')
            zstep(LC, LC, L16, 20 + 2 * c)
        zstep(vTG - 2, LC, L16, EE)
        a(f's_add_u32 s{sT0}, s{sT4}, {16*512 - 512}\nbuffer_store_dwordx4 v[{vTG-2}:{vTG+1}], v{vL16}, s[{SWS}:{SWS+3}], s{sT0} offen sc1')
        a('L_lh_done:\ns_mov_b64 exec, -1')
        self.stamp(7)
        def cdma(srd, base):
            a(f's_mul_i32 s{sT1}, s{sSW}, {16*1040}\ns_lshl_b32 s{sT2}, s{sCG}, 16\ns_lshl_b32 s{sT3}, s{sSW}, 14\ns_add_u32 s{sT2}, s{sT2}, s{sT3}')
            rowdma(srd, base, sT2, 16)
        if not opt('cmf', 1): cdma(SB, L_A1)
        for r in range(0, 16, 2): cmul(GR + r, GI + r, 1)
        if opt('cmf', 1): cdma(SB, L_A1)
        a(f's_mov_b32 s{sCNT}, 100000')
        a('L_eg:')
        for q in range(8): a(f'buffer_load_dwordx3 v[{24+4*q}:{26+4*q}], v{vEA}, s[{SWS}:{SWS+3}], s{sT4} offen offset:{512*q} sc1')
        a('s_waitcnt vmcnt(0)')
        a(f'v_cmp_ne_u32 vcc, s{sTAG}, v26')
        for q in range(1, 8): a(f'v_cmp_ne_u32 s[{sM1}:{sM1+1}], s{sTAG}, v{26+4*q}\ns_or_b64 vcc, vcc, s[{sM1}:{sM1+1}]')
        a(f's_cbranch_scc0 L_egd\ns_sleep {opt("esleep", 10)}\ns_sub_u32 s{sCNT}, s{sCNT}, 1\ns_cbranch_scc0 L_eg')
        a('L_egd:')
        self.sig(F_S[9])
        self.stamp(8)
        for q in range(1, 8): zstep(24, 24, L128, 24 + 4 * q)
        a(f'v_pk_mul_f32 {pr(T0)}, {pr(FF)}, {pr(24)} op_sel:[0,0] op_sel_hi:[0,1]')
        a(f'v_pk_fma_f32 {pr(20)}, {pr(FF)}, {pr(24)}, {pr(T0)} op_sel:[1,1,0] op_sel_hi:[1,0,1] neg_lo:[1,0,0]')
        a(f'v_mov_b32 v22, v20\nv_mov_b32 v23, v21\nv_permlane32_swap_b32 v20, v22\nv_permlane32_swap_b32 v21, v23\nv_pk_add_f32 {pr(20)}, {pr(20)}, {pr(22)}')
        IR, II = 24, 26
        cstep(IR, II, 20, 21, WW, LC, LC + 1)
        cstep(IR + 1, II + 1, IR, II, L8, ER, EI)
        cmul(IR, II, 0)
        pstep(GR, GI, IR, II, L1, GR, GI)
        for r in range(2, 16, 2): pstep(GR + r, GI + r, GR + r - 2, GI + r - 2, L1, GR + r, GI + r)
        for pl, Gx in ((0, GR), (1, GI)):
            for j in range(8):
                r0 = 4 * (j % 4) + j // 4
                a(f'v_cvt_pk_bf16_f32 v{28+8*pl+j}, v{Gx+r0}, v{Gx+r0+2}')
            a(f'ds_write_b128 v{vTW}, {q4(28+8*pl)} offset:{L_TBO+2048*pl}\nds_write_b128 v{vTW}, {q4(32+8*pl)} offset:{L_TBO+2048*pl+16}')
        for pl in range(2):
            for f in range(2):
                d = 44 + 8 * pl + 4 * f
                a(f'ds_read_b64_tr_b16 {pr(d)}, v{vTR} offset:{L_TBO+2048*pl+1024*f}\nds_read_b64_tr_b16 {pr(d+2)}, v{vTR} offset:{L_TBO+2048*pl+1024*f+256}')
        a(f's_lshl_b32 s{sT0}, s{sXB}, 1\ns_lshl_b32 s{sT1}, s{sPB}, 11\ns_add_u32 s{sT0}, s{sT0}, s{sT1}\ns_add_u32 s{sT0}, s{sT0}, {WS_HBUF:#x}\ns_add_u32 s{sT1}, s{sT0}, 0x8000')
        hs = []
        for pl in range(2):
            for f in range(2):
                d = 44 + 8 * pl + 4 * f
                hs += [f's_waitcnt lgkmcnt({6 - 4*pl - 2*f})', f'buffer_store_dwordx4 {q4(d)}, v{vL16}, s[{SWS}:{SWS+3}], s{sT0 if pl == 0 else sT1} offen offset:{1024*f}']
        self.xstore(hs, 'h')
        YK, YS, XF, HR = 128, 144, 184, 160
        a(f's_lshl_b32 s{sT0}, s{sTP}, 15\ns_lshl_b32 s{sT1}, s{sCT}, 6\ns_add_u32 s{sT0}, s{sT0}, s{sT1}')
        a(f'buffer_load_dwordx4 {q4(XF)}, v{vXS}, s[{SA}:{SA+3}], s{sT0} offen\nbuffer_load_dwordx4 {q4(XF+4)}, v{vXS}, s[{SA}:{SA+3}], s{sT0} offen offset:32')
        a(f's_lshr_b32 s{sT4}, s{sXB}, 4\ns_lshl_b32 s{sT3}, s{sPB}, 7\ns_add_u32 s{sT4}, s{sT4}, s{sT3}\ns_add_u32 s{sT4}, s{sT4}, {WS_HFLAG:#x}')
        self.wait(F_S[9], sleep=1)
        if opt('cearly', 1):
            for j in range(16): a(f'ds_read_b128 {q4(8*j)}, v{vCK} offset:{32*j}\nds_read_b128 {q4(8*j+4)}, v{vCS} offset:{32*j}')
            self.sig(F_S[6])
        a(f's_mov_b32 s{sM1}, -1\ns_mov_b32 s{sM1+1}, 0\ns_waitcnt vmcnt(2)')
        a(f's_mov_b64 exec, s[{sM1}:{sM1+1}]')
        self.xstore([f'buffer_store_dword v{vTG}, v{vOA}, s[{SWS}:{SWS+3}], s{sT4} offen'], 'h')
        a('s_mov_b64 exec, -1')
        self.stamp(9)
        if opt('stop', 0) == 9: self.end(); return
        LATE = opt('late', 1)
        if not LATE: cdma(SC, L_A2)
        if not opt('cearly', 1):
            for j in range(16): a(f'ds_read_b128 {q4(8*j)}, v{vCK} offset:{32*j}\nds_read_b128 {q4(8*j+4)}, v{vCS} offset:{32*j}')
            self.sig(F_S[6])
        a(f's_waitcnt vmcnt({1 if LATE else 17})')
        a(f'v_mfma_f32_32x32x16_bf16 {t16(YK)}, {q4(XF)}, {q4(DG)}, 0')
        a(f'v_mfma_f32_32x32x16_bf16 {t16(YK)}, {q4(XF+4)}, {q4(DG+4)}, {t16(YK)}')
        self.srd(SB, P(4), 512 * 1024)
        a(f's_lshl_b32 s{sT4}, s{sSW}, 17\ns_lshl_b32 s{sT1}, s{sCG}, 7\ns_add_u32 s{sT4}, s{sT4}, s{sT1}\ns_and_b32 s{sT1}, s{sCG}, 3\ns_lshl_b32 s{sT1}, s{sT1}, 16\ns_xor_b32 s{sT4}, s{sT4}, s{sT1}\ns_lshl_b32 s{sT1}, s{sSW}, 14\ns_add_u32 m0, s{sT1}, {L_A1}')
        self.wait(F_S[6], sleep=1)
        for m in range(16):
            a(f's_xor_b32 s{sT0}, s{sT4}, {8192*m:#x}\nbuffer_load_dwordx4 v{vWI}, s[{SB}:{SB+3}], s{sT0} offen lds\ns_add_u32 m0, m0, 1024')
        a(f's_lshl_b32 s{sT0}, s{sTP}, 11\ns_add_u32 s{sT0}, s{sT0}, {WS_HFLAG:#x}\ns_mov_b64 exec, 0xffff')
        a(f's_mov_b32 s{sCNT}, 100000')
        a('L_gph:')
        a(f'buffer_load_dword v{vT}, v{vHF}, s[{SWS}:{SWS+3}], s{sT0} offen sc1\ns_waitcnt vmcnt(0)\nv_cmp_ne_u32 vcc, s{sTAG}, v{vT}\ns_cbranch_vccz L_gdh')
        a(f's_sleep {opt("hsleep", 10)}\ns_sub_u32 s{sCNT}, s{sCNT}, 1\ns_cbranch_scc0 L_gph')
        a('L_gdh:\ns_mov_b64 exec, -1')
        self.sig(F_S[5])
        self.stamp(13)
        if opt('stop', 0) == 10: self.end(); return
        a(f's_lshl_b32 s{sT3}, s{sTP}, 16\ns_and_b32 s{sT0}, s{sSW}, 1\ns_lshl_b32 s{sT0}, s{sT0}, 14\ns_add_u32 s{sT3}, s{sT3}, s{sT0}\ns_add_u32 s{sT3}, s{sT3}, {WS_HBUF:#x}')
        if HR_: a(f's_and_b32 s{sT0}, s{sCG}, 3\ns_lshl_b32 s{sT0}, s{sT0}, 12\ns_add_u32 s{sT3}, s{sT3}, s{sT0}\ns_and_b32 s{sT0}, s{sCG}, 4\ns_lshl_b32 s{sT0}, s{sT0}, 13\ns_add_u32 s{sT3}, s{sT3}, s{sT0}')
        NR = 13
        vq = []
        def hload(j):
            go = lambda g: ((g % 4) << 12) | ((g // 4) << 15)
            if j % 4 == 0 and j > 0: a(f's_xor_b32 s{sT3}, s{sT3}, {go(j // 4) ^ go(j // 4 - 1):#x}')
            a(f'buffer_load_dwordx4 {q4(HR + 4*(j%NR))}, v{vL16}, s[{SWS}:{SWS+3}], s{sT3} offen offset:{1024*(j%4)} sc1')
            vq.append(('h', j))
        for j in range(NR - 1): hload(j)
        a(f's_setprio {opt("gprio4", 0)}')
        lq = []
        def cread(j, k):
            a(f'ds_read_b128 {q4(8*(j%16) + 4*k)}, v{vCS2 if k else vCK2} offset:{32*(j%16)}')
        if not LATE:
            a('s_setprio 3')
            self.wait(F_S[5], sleep=1)
            a(f's_setprio {opt("gprio4", 0)}')
        else:
            a(f's_mul_i32 s{sT1}, s{sSW}, {16*1040}\ns_lshl_b32 s{sT2}, s{sCG}, 16\ns_lshl_b32 s{sT4}, s{sSW}, 14\ns_add_u32 s{sT2}, s{sT2}, s{sT4}')
        FJ = opt('fj', 22); CS = opt('cs', 9); CW = opt('cw', 11)
        pend = [(jj, k) for jj in range(16, 32) for k in range(2)]
        SF = opt('sf', 1)
        for j in range(FJ + 1 if SF else 32):
            w = 's_waitcnt lgkmcnt(0)'
            if ('h', j) in vq:
                need = vq.index(('h', j))
                w = f's_waitcnt vmcnt({len(vq) - 1 - need}) lgkmcnt(0)'
                del vq[:need + 1]
            a(w)
            c = 8 * (j % 16); h = q4(HR + 4 * (j % NR))
            a(f'v_mfma_f32_32x32x16_bf16 {t16(YK)}, {h}, {q4(c)}, {t16(YK)}')
            a(f'v_mfma_f32_32x32x16_bf16 {t16(YS)}, {h}, {q4(c+4)}, {"0" if j == 0 else t16(YS)}')
            if not LATE:
                if j < 16: cread(16 + j, 0)
                if 15 <= j < min(31, FJ): cread(j + 1, 1)
                if j == FJ:
                    for jj in range(j + 1, 32): cread(jj, 1)
            else:
                if j < 4:
                    for m in range(4 * j, 4 * j + 4):
                        if m % 4 == 0: a(f's_add_u32 m0, s{sT1}, {L_A2 + m*1040}\ns_add_u32 s{sT0}, s{sT2}, {1024*m}')
                        else: a('s_add_u32 m0, m0, 16')
                        a(f'buffer_load_dwordx4 v{vCL}, s[{SC}:{SC+3}], s{sT0} offen offset:{1024*(m%4)} lds')
                        vq.append(('c', m))
                if j == CS:
                    need = vq.index(('c', 15))
                    a(f's_waitcnt vmcnt({len(vq) - 1 - need})'); del vq[:need + 1]
                    self.sig(F_WO)
                if j == CW:
                    a('s_setprio 3')
                    self.wait(F_WO, sleep=1)
                    a(f's_setprio {opt("gprio4", 0)}')
                if j >= CW:
                    n = len(pend) if j >= FJ else 2
                    for _ in range(n):
                        if pend and pend[0][0] - 16 <= j: cread(*pend.pop(0))
                    assert not pend or pend[0][0] > j + 1
            if j + NR - 1 < 32: hload(j + NR - 1)
            if 's4st' in OPT and j in (0, 4, 10, 16, 22, 31): self.stamp({0: 1, 4: 3, 10: 4, 16: 5, 22: 10, 31: 11}[j])
            HJ = opt('hj', 20)
            if opt('pad4', 0) and j < HJ: a(f's_nop {opt("pad4", 0) - 1}')
            if j == HJ - 1:
                a('s_setprio 3')
                self.wait(F_AX, sleep=opt('hjs', 4), va=vS); lq.clear()
                a(f's_setprio {opt("gprio5", 0)}')
        if SF:
            assert LATE and not pend and FJ + NR - 1 >= 31
            self.sig(F_S[7])
            a('s_waitcnt vmcnt(0) lgkmcnt(0)')
            for j in range(FJ + 1, 32): a(f'v_mfma_f32_32x32x16_bf16 {t16(YS)}, {q4(HR + 4*(j%NR))}, {q4(8*(j%16)+4)}, {t16(YS)}')
            ky = [f'v_mfma_f32_32x32x16_bf16 {t16(YK)}, {q4(HR + 4*(j%NR))}, {q4(8*(j%16))}, {t16(YK)}' for j in range(FJ + 1, 32)]
            a(ky.pop(0)); a(ky.pop(0))
        a('s_setprio 3')
        if not SF: self.sig(F_S[7])
        self.srd(SOUT, P(14), 2048 * 4096)
        a(f's_lshl_b32 s{sT2}, s{sTP}, 17\ns_lshl_b32 s{sT1}, s{sCT}, 7\ns_add_u32 s{sT2}, s{sT2}, s{sT1}')
        self.wait(F_S[7], sleep=1)
        for q in range(4):
            a(f'ds_write_b128 v{vYW}, {q4(YS+4*q)} offset:{1024*q}')
            if SF and ky and q < 3: a(ky.pop(0))
        self.sig(F_S[8])
        if SF:
            for x in ky: a(x)
            a('s_nop 0')
        if 's4st' in OPT: self.stamp(12)
        self.wait(F_S[8], sleep=1)
        for q in range(4): a(f'ds_read_b128 {q4(YS+4*q)}, v{vYR} offset:{1024*q}')
        a('s_waitcnt lgkmcnt(0)')
        fl = {0: '', 1: ' sc1', 2: ' nt', 3: ' sc0 sc1', 4: ' sc1 nt', 5: ' sc0 nt', 6: ' sc0 sc1 nt'}[opt('yfl', 2)]
        for r in range(0, 16, 2): a(f'v_pk_add_f32 {pr(YS+r)}, {pr(YK+r)}, {pr(YS+r)}')
        for r in range(16):
            a(f's_add_u32 s{sT0}, s{sT2}, {((r % 4) + 8 * (r // 4)) * 4096}')
            if 'noy' not in OPT: a(f'buffer_store_dword v{YS+r}, v{vOA}, s[{SOUT}:{SOUT+3}], s{sT0} offen offset:2048{fl}')
        self.stamp(2)
        self.end()

HEADER = open('cdna_kernels/' + NAME + '.s.ref').read().split('; Override launch')[0]

DOC = '''; ---------------------------------------------------------------------------------------------
; ---------------------------------------------------------------------------------------------
'''

def make(stamps=False):
    g = G(stamps)
    body = g.build()
    txt = HEADER + f'; @launch grid=(256,1,1) block=(512,1,1) lds={L_TOTAL}\n' + DOC
    txt += f'''.amdgcn_target "amdgcn-amd-amdhsa--gfx950"
.text
.globl {NAME}_kernel
.p2align 8
.type {NAME}_kernel,@function
{NAME}_kernel:
{body}.section .rodata,"a"
.p2align 6
.amdhsa_kernel {NAME}_kernel
  .amdhsa_next_free_vgpr 256
  .amdhsa_next_free_sgpr 102
  .amdhsa_accum_offset 256
  .amdhsa_group_segment_fixed_size 0
  .amdhsa_kernarg_size 136
  .amdhsa_user_sgpr_count 2
  .amdhsa_user_sgpr_kernarg_segment_ptr 1
  .amdhsa_system_sgpr_workgroup_id_x 1
.end_amdhsa_kernel
'''
    return txt, g.a.n_ins

if __name__ == '__main__':
    pos = [x for x in sys.argv[1:] if not x.startswith('--')]
    out = pos[0] if pos else 'cdna_kernels/' + NAME + '.s'
    txt, n = make(stamps='stamps' in OPT)
    open(out, 'w').write(txt)
    print('wrote', out, n, 'instructions')
```
